```python
import torch

def _softmax(x, axis=-1):
    return torch.softmax(x, dim=axis)

def _gelu(x):
    return torch.nn.functional.gelu(x, approximate='tanh')

def _silu(x):
    return torch.nn.functional.silu(x)

def _sigmoid(x):
    return torch.sigmoid(x)

def _layernorm(x, axis=-1, eps=1e-05):
    m = x.mean(dim=axis, keepdim=True)
    v = x.var(dim=axis, keepdim=True, unbiased=False)
    return (x - m) / torch.sqrt(v + eps)

def _scatter_add(tgt, idx, src, axis=0):
    return tgt.clone().index_add_(axis, idx, src)

def _segment_sum(src, seg, n):
    out = torch.zeros((n,) + src.shape[1:], dtype=src.dtype)
    return out.index_add_(0, seg, src)

def _pad(x, pw):
    flat = tuple((v for pair in reversed(pw) for v in pair))
    return torch.nn.functional.pad(x, flat)
kernel_name = 'gated_mix__memory_aug_recurrent_mem_tr__dense_activation_silu__prompt'

def setup_inputs():

    _w = lambda a: (lambda t: t.to(torch.bfloat16) if t.is_floating_point() else t)(torch.as_tensor(a))

    def _A_setup():
        B, S, Dm = (1, 2048, 448)
        H, Dh = (16, 256)
        M, seg = (8, 32)
        seg = min(seg, S)
        S = S // seg * seg
        return {'x': _w((lambda *s: torch.randn(*s, dtype=torch.bfloat16) * 0.05)(B, S, Dm)), 'mem0': _w((lambda *s: torch.randn(*s, dtype=torch.bfloat16) * 0.4)(B, M, Dm)), 'Wq': _w((lambda *s: torch.randn(*s, dtype=torch.bfloat16) * 6.4)(Dm, H, Dh) * Dm ** (-0.5)), 'Wk': _w((lambda *s: torch.randn(*s, dtype=torch.bfloat16) * 6.4)(Dm, H, Dh) * Dm ** (-0.5)), 'Wv': _w((lambda *s: torch.randn(*s, dtype=torch.bfloat16) * 0.4)(Dm, H, Dh) * Dm ** (-0.5)), 'Wo': _w((lambda *s: torch.randn(*s, dtype=torch.bfloat16) * 0.4)(H, Dh, Dm) * (H * Dh) ** (-0.5)), 'seg_len': seg}
    _A_in = _A_setup()

    def _B_setup():
        B, S, D, F = (1, 2048, 448, 1792)
        return {'x': _w((lambda *s: torch.randn(*s, dtype=torch.bfloat16) * 0.05)(B, S, D)), 'w1': _w((lambda *s: torch.randn(*s, dtype=torch.bfloat16) * 3.2)(D, F) * D ** (-0.5)), 'w2': _w((lambda *s: torch.randn(*s, dtype=torch.bfloat16) * 0.2)(F, D) * F ** (-0.5))}
    _B_in = _B_setup()
    return {'A_x': _A_in['x'], 'A_mem0': _A_in['mem0'], 'A_Wq': _A_in['Wq'], 'A_Wk': _A_in['Wk'], 'A_Wv': _A_in['Wv'], 'A_Wo': _A_in['Wo'], 'A_seg_len': _A_in['seg_len'], 'B_x': _B_in['x'], 'B_w1': _B_in['w1'], 'B_w2': _B_in['w2'], 'gate_w': _w((lambda *s: torch.randn(*s, dtype=torch.bfloat16) * 0.05)(448) * 16.0)}

def reference(A_x, A_mem0, A_Wq, A_Wk, A_Wv, A_Wo, A_seg_len, B_x, B_w1, B_w2, gate_w):

    def _A_ref(x, mem0, Wq, Wk, Wv, Wo, seg_len):
        B, S, Dm = x.shape
        H, Dh = (Wq.shape[1], Wq.shape[2])
        M = mem0.shape[1]
        scale = Dh ** (-0.5)
        n_seg = S // seg_len
        L = M + seg_len
        idx = torch.arange(L)
        mask = (idx[:, None] < M) | (idx[:, None] >= idx[None, :])
        mem = mem0
        outs = []
        for s in range(n_seg):
            xs = x[:, s * seg_len:(s + 1) * seg_len, :].clone()
            h = torch.concatenate([mem, xs], axis=1)
            q = torch.einsum('btd,dhe->bhte', h, Wq)
            k = torch.einsum('btd,dhe->bhte', h, Wk)
            v = torch.einsum('btd,dhe->bhte', h, Wv)
            scores = torch.einsum('bhqe,bhke->bhqk', q, k) * scale
            scores = torch.where(mask[None, None], scores, -1000000000.0)
            p = _softmax(scores, axis=-1)
            o = torch.einsum('bhqk,bhke->bhqe', p, v)
            o = torch.einsum('bhte,hed->btd', o, Wo)
            mem = o[:, :M, :].clone()
            outs.append(o[:, M:, :])
        return torch.concatenate(outs, axis=1)

    def _B_ref(x, w1, w2):
        h = torch.einsum('bsd,df->bsf', x, w1)
        h = _silu(h)
        out = torch.einsum('bsf,fd->bsd', h, w2)
        return out
    x = A_x
    g = _sigmoid((x * gate_w).sum(-1, keepdims=True))
    a = _A_ref(x, A_mem0, A_Wq, A_Wk, A_Wv, A_Wo, A_seg_len)
    b = _B_ref(x, B_w1, B_w2)
    return g * a + (1 - g) * b
```

```python
import re

REG_RE = re.compile(r'^(-|\|)?(abs\()?([vas])(\d+|\[(\d+):(\d+)\])\)?\|?$')

def parse_reg(tok):
    tok = tok.strip()
    if tok == 'vcc': return [('s', 106), ('s', 107)]
    if tok == 'vcc_lo': return [('s', 106)]
    if tok == 'vcc_hi': return [('s', 107)]
    if tok == 'exec': return [('s', 126), ('s', 127)]
    if tok == 'm0': return [('s', 124)]
    m = REG_RE.match(tok)
    if not m: return []
    k = m.group(3)
    if m.group(5) is not None:
        return [(k, i) for i in range(int(m.group(5)), int(m.group(6)) + 1)]
    return [(k, int(m.group(4)))]

TRANS = ('v_exp_f32', 'v_log_f32', 'v_rcp_f32', 'v_rsq_f32', 'v_sqrt_f32', 'v_sin_f32', 'v_cos_f32')

class Ins:
    __slots__ = ('text', 'op', 'cls', 'w', 'r', 'ws', 'passes', 'A', 'B', 'C', 'dpp', 'data', 'sread')
    def __init__(self, text):
        self.text = text
        t = text.split(';')[0].strip()
        parts = t.split(None, 1)
        self.op = op = parts[0]
        rest = parts[1] if len(parts) > 1 else ''
        rest = re.sub(r'(\w+):\[([^\]]*)\]', lambda m: m.group(1) + ':' + m.group(2).replace(',', '_'), rest)
        ops = [o.strip() for o in rest.split(',')] if rest else []
        mods = ''
        if ops:
            last = ops[-1].split(None, 1)
            ops[-1] = last[0]
            mods = last[1] if len(last) > 1 else ''
        self.w = set(); self.r = set(); self.ws = 1; self.passes = 0
        self.A = self.B = self.C = set(); self.dpp = set(); self.data = set(); self.sread = set()
        R = [set(parse_reg(o)) for o in ops]
        if op == 's_nop':
            self.cls = 'nop'; self.ws = int(ops[0], 0) + 1
        elif op.startswith('v_mfma') or op.startswith('v_smfmac'):
            self.cls = 'mfma'
            self.passes = 8 if '32x32' in op else 4
            if '4x4x4' in op: self.passes = 2
            self.w = R[0]; self.A = R[1]; self.B = R[2]
            if op.startswith('v_smfmac'):
                self.C = set(R[0]); self.A = R[1] | R[3]
            else:
                self.C = R[3]
            self.r = self.A | self.B | self.C
        elif op.startswith('v_'):
            self.cls = 'trans' if op.replace('_e32', '').replace('_e64', '') in TRANS else 'valu'
            if op.startswith('v_swap') or op.startswith('v_permlane'):
                self.w = R[0] | R[1]; self.r = R[0] | R[1]
            elif op.startswith('v_add_co') or op.startswith('v_addc_co') or op.startswith('v_sub_co') or op.startswith('v_mad_u64'):
                self.w = R[0] | R[1]; self.r = set().union(*R[2:])
            elif op == 'v_nop':
                pass
            else:
                self.w = R[0]; self.r = set().union(*R[1:]) if len(R) > 1 else set()
                if op.startswith('v_fmac') or op.startswith('v_pk_fmac') or op.startswith('v_writelane') or op.startswith('v_dot2c'): self.r |= R[0]
                if op.startswith('v_cndmask') and len(ops) == 3: self.r |= set(parse_reg('vcc'))
            if any(k in mods for k in ('row_', 'quad_perm', 'wave_', 'row_bcast', 'row_mirror', 'row_half')):
                self.dpp = R[1]
                self.r |= R[0]
            self.sread = {x for x in self.r if x[0] == 's'}
        elif op.startswith('ds_'):
            self.cls = 'ds'
            if op.startswith('ds_read') or op.startswith('ds_bpermute') or op.startswith('ds_swizzle') or op.startswith('ds_permute'):
                self.w = R[0]; self.r = set().union(*R[1:])
            else:
                self.r = set().union(*R); self.data = set().union(*R[1:])
        elif op.startswith('global_') or op.startswith('buffer_'):
            self.cls = 'vmem'
            lds = ('_lds_' in op) or (' lds' in (' ' + mods))
            if op in ('buffer_wbl2', 'buffer_inv'):
                pass
            elif lds:
                self.r = set().union(*R) | set(parse_reg('m0')); self.cls = 'vmemlds'
            elif '_load' in op:
                self.w = R[0]; self.r = set().union(*R[1:])
            elif op.startswith('global_store'):
                self.r = set().union(*R); self.data = R[1]
            elif op.startswith('buffer_store'):
                self.r = set().union(*R); self.data = R[0]
            elif 'atomic' in op:
                if op.startswith('global_') and 'sc0' in mods:
                    self.w = R[0]; self.r = set().union(*R[1:])
                else:
                    self.r = set().union(*R)
                    if 'sc0' in mods: self.w = R[0]
            self.sread = {x for x in self.r if x[0] == 's'}
        elif op.startswith('s_'):
            self.cls = 'salu'
            if op.startswith('s_cmp') or op.startswith('s_cbranch') or op in ('s_branch', 's_barrier', 's_waitcnt', 's_endpgm', 's_sleep', 's_setprio', 's_bitcmp0_b32', 's_bitcmp1_b32'):
                self.r = set().union(*R) if R else set()
            else:
                self.w = R[0] if R else set(); self.r = set().union(*R[1:]) if len(R) > 1 else set()
                if 'saveexec' in op: self.w |= set(parse_reg('exec'))
        else:
            raise ValueError('unknown instr: ' + text)

def need(p, c):
    n = 0
    pv = p.cls in ('valu', 'trans')
    cv = c.cls in ('valu', 'trans')
    pw_v = {x for x in p.w if x[0] != 's'}
    pw_s = {x for x in p.w if x[0] == 's'}
    if pv:
        if c.cls == 'mfma' and pw_v & c.r: n = max(n, 2)
        if c.dpp and pw_v & c.dpp: n = max(n, 2)
        if c.op.startswith('v_permlane') and pw_v & c.r: n = max(n, 2)
        if (c.op.startswith('v_readlane') or c.op.startswith('v_readfirstlane')) and pw_v & c.r: n = max(n, 1)
        if p.cls == 'trans' and c.cls == 'valu' and pw_v & c.r: n = max(n, 1)
        if p.cls == 'trans' and c.cls in ('ds', 'vmem') and pw_v & c.r: n = max(n, 1)
        if pw_s:
            if cv and pw_s & c.sread: n = max(n, 4 if c.op.startswith('v_readlane') or c.op.startswith('v_writelane') else 2)
            if c.cls in ('vmem', 'vmemlds') and pw_s & c.sread: n = max(n, 5)
    if p.cls == 'mfma':
        big = {2: 5, 4: 8, 8: 12}[p.passes]; mid = {2: 4, 4: 6, 8: 10}[p.passes]
        if c.cls == 'mfma':
            if p.w & (c.A | c.B): n = max(n, big)
            if p.w & c.C:
                if not (p.w == c.C and p.op == c.op): n = max(n, mid)
                elif p.passes == 2: n = max(n, 2)
            elif p.w & c.w: n = max(n, mid)
        elif p.w & (c.r | c.w): n = max(n, big)
        if cv and (p.C - p.w) & c.w: n = max(n, {2: 1, 4: 3, 8: 7}[p.passes])
    if p.cls == 'vmem' and p.data and len(p.data) >= 3 and p.data & c.w:
        n = max(n, 2 if cv else 1)
    if p.cls == 'salu' and ('s', 124) in p.w and c.cls == 'vmemlds': n = max(n, 1)
    return n

class Asm:
    def __init__(self):
        self.out = []
        self.hist = []
        self.nnop = 0
        self.timed = True
    def raw(self, text): self.out.append(text)
    def c(self, text): self.out.append('    ; ' + text)
    def label(self, name):
        self.out.append(name + ':')
    def I(self, text):
        for line in text.strip().split('\n'):
            line = line.strip()
            if not line or line.startswith(';'): continue
            if line.endswith(':'):
                self.label(line[:-1]); continue
            ins = Ins(line)
            pad = self._pad(ins)
            while pad > 0:
                k = min(pad, 16)
                nop = Ins('s_nop %d' % (k - 1)); self.hist.append(nop); self.out.append('    ' + nop.text); self.nnop += 1
                pad -= k
            self.hist.append(ins); self.out.append('    ' + line)
    def _pad(self, ins):
        h = self.hist[-40:]
        t = []; cur = 0; lastm = None
        for p in h + [ins]:
            if self.timed and lastm is not None:
                if p.cls == 'mfma': cur = max(cur, lastm[0] + lastm[1])
                elif p.cls in ('valu', 'trans'): cur = max(cur, lastm[0] + 2)
            t.append(cur)
            if p.cls == 'mfma': lastm = (cur, p.passes)
            cur += p.ws
        pad = 0
        for p, tp in zip(h, t[:-1]):
            k = need(p, ins)
            if k:
                have = t[-1] - tp - 1
                if k > have: pad = max(pad, k - have)
        if pad and self.hist:
            plain = t[-2] + h[-1].ws
            pad += t[-1] - plain
        return pad
    def flush(self, n=12):
        dist = 0; pad = 0
        for p in reversed(self.hist[-24:]):
            k = 0
            if p.cls == 'mfma': k = {2: 5, 4: 8, 8: 12}[p.passes]
            elif p.cls in ('valu', 'trans'): k = 5 if any(x[0] == 's' for x in p.w) else 2
            elif p.cls == 'vmem' and len(p.data) >= 3: k = 2
            if k > dist: pad = max(pad, k - dist)
            dist += p.ws
        if pad: self.I('s_nop %d' % (pad - 1))
    def text(self): return '\n'.join(self.out) + '\n'

def v(a, n=1): return 'v%d' % a if n == 1 else 'v[%d:%d]' % (a, a + n - 1)
def a_(a, n=1): return 'a%d' % a if n == 1 else 'a[%d:%d]' % (a, a + n - 1)
def s(a, n=1): return 's%d' % a if n == 1 else 's[%d:%d]' % (a, a + n - 1)
def u(idx, n):
    return a_(idx, n)


class Cnt:
    def __init__(self, asm, name, cap):
        self.asm = asm; self.name = name; self.cap = cap; self.q = []
    def add(self, tag=None):
        self.q.append(tag)
        assert len(self.q) <= self.cap, (self.name, len(self.q))
    def text(self, tag):
        if tag not in self.q: return None
        i = len(self.q) - 1 - self.q[::-1].index(tag)
        n = len(self.q) - 1 - i
        self.q = self.q[i + 1:]
        return 's_waitcnt %s(%d)' % (self.name, n)
    def wait(self, tag):
        t = self.text(tag)
        if t: self.asm.I(t)
    def drain(self):
        self.q = []; self.asm.I('s_waitcnt %s(0)' % self.name)
    def clear(self): self.q = []
```

```python
from common import *

NSTEP = 63
CLK = 's_memrealtime'
OPT = set()
SDELAY = 0
VDELAY = 0
PDELAY = 0
HSLEEP = 2
sROLE, sW, sSTEP, sBUD, sSENT = 3, 4, 5, 6, 7
sWS, sX0, sX1, sMEM, sP, sVX, sMT, sWP, sWT = 8, 10, 12, 14, 16, 18, 20, 22, 24
sC, sTMP, sTMP2 = 26, 27, 28
sM20, sMHI, sMG = 30, 32, 34
sM48 = 38
sLB = 36
sT0, sDBG = 40, 44
sXCC, sEA, sEB, sFL = 29, 64, 66, 68
BUDGET = 1 << 21

def chain_common(A):
    A.I(f'''
    v_lshrrev_b32 v1, 6, v0
    v_and_b32 v0, 63, v0
    v_readfirstlane_b32 {s(sW)}, v1
    s_mov_b32 {s(sSTEP)}, 0
    s_mov_b32 {s(sBUD)}, 0
    s_mov_b32 {s(sSENT)}, {SENT}
    s_getreg_b32 {s(sXCC)}, hwreg(HW_REG_XCC_ID, 0, 4)
    s_add_u32 {s(sXCC)}, {s(sXCC)}, 1
    s_lshl_b32 s40, {s(sROLE)}, 2
    v_mov_b32 v1, s40
    v_mov_b32 v2, {s(sXCC)}
    ''')
    addp(A, 40, sWS, XCC_OFF)
    A.I('global_store_dword v1, v2, s[40:41] sc1')

def xcc_check(A, tag, mlo, mhi, t):
    addp(A, 40, sWS, XCC_OFF)
    A.I(f'''
    v_min_u32 {v(t)}, 30, v0
    v_lshlrev_b32 {v(t)}, 2, {v(t)}
L_{tag}_xc:
    global_load_dword {v(t+1)}, {v(t)}, s[40:41] sc1
    s_add_u32 {s(sBUD)}, {s(sBUD)}, 1
    s_cmp_gt_u32 {s(sBUD)}, {BUDGET}
    s_cbranch_scc1 L_bail
    s_waitcnt vmcnt(0)
    v_cmp_eq_u32 vcc, 0, {v(t+1)}
    s_cbranch_vccnz L_{tag}_xc
    v_cmp_ne_u32 vcc, {s(sXCC)}, {v(t+1)}
    s_mov_b32 s40, {mlo}
    s_mov_b32 s41, {mhi}
    s_cmp_eq_u64 vcc, {0 if 'slow' not in OPT else -1}
    s_cselect_b64 {s(sEA,2)}, s[40:41], 0
    s_cselect_b64 {s(sEB,2)}, 0, s[40:41]
    ''')

def mem_poll(A, tag, vG0, vG1, vPR, vD):
    def rnd(d):
        A.I(f'''
        global_load_dword {v(d)}, {v(vPR)}, {s(sMEM,2)} sc1
        global_load_lds_dwordx4 {v(vG0)}, {s(sMEM,2)} sc1
        s_mov_b64 exec, {s(sM48,2)}
        global_load_lds_dwordx4 {v(vG0)}, {s(sMEM,2)} offset:1024 sc1
        s_mov_b64 exec, -1
        ''')
    A.label(f'L_{tag}_mp')
    A.I(f's_mov_b32 m0, {s(sLB)}')
    if 'mp2' not in OPT or (tag == 'va' and 'vmp2' not in OPT):
        A.label(f'L_{tag}_mpl')
        rnd(vD)
        A.I(f'''
        s_add_u32 {s(sBUD)}, {s(sBUD)}, 1
        s_cmp_gt_u32 {s(sBUD)}, {BUDGET}
        s_cbranch_scc1 L_bail
        s_waitcnt vmcnt(2)
        v_cmp_eq_u32 vcc, {s(sSENT)}, {v(vD)}
        s_cbranch_vccnz L_{tag}_mpl
        s_waitcnt vmcnt(0) lgkmcnt(0)
        s_barrier
        ''')
        return
    rnd(vD)
    A.label(f'L_{tag}_mpl')
    rnd(vD + 1)
    A.I(f'''
    s_waitcnt vmcnt(5)
    v_cmp_eq_u32 vcc, {s(sSENT)}, {v(vD)}
    s_cbranch_vccz L_{tag}_mpok
    ''')
    rnd(vD)
    A.I(f'''
    s_add_u32 {s(sBUD)}, {s(sBUD)}, 1
    s_cmp_gt_u32 {s(sBUD)}, {BUDGET}
    s_cbranch_scc1 L_bail
    s_waitcnt vmcnt(5)
    v_cmp_eq_u32 vcc, {s(sSENT)}, {v(vD+1)}
    s_cbranch_vccnz L_{tag}_mpl
L_{tag}_mpok:
    s_waitcnt vmcnt(3) lgkmcnt(0)
    s_barrier
    ''')

def mem_poll_setup(A, vG0, vG1, vPR, t):
    A.I(f'''
    s_mul_i32 {s(sLB)}, {s(sW)}, 1792
    v_lshlrev_b32 {v(vG0)}, 4, v0
    v_add_u32 {v(vG0)}, {s(sLB)}, {v(vG0)}
    s_mov_b32 {s(sM48)}, -1
    s_mov_b32 {s(sM48+1)}, 0xffff
    v_min_u32 {v(t)}, 13, v0
    v_lshlrev_b32 {v(t)}, 7, {v(t)}
    v_add3_u32 {v(vPR)}, {s(sLB)}, {v(t)}, 64
    ''')

def stamp(A, idx, prof):
    if not prof: return
    A.I(f'{CLK} {s(48 + 2 * idx, 2)}')

def stamp_flush(A, prof):
    if not prof: return
    A.I('s_waitcnt lgkmcnt(0)')
    for i in range(8): A.I(f'v_writelane_b32 v19, {s(48 + 2 * i)}, {i}')
    A.I(f'''
    v_lshlrev_b32 v20, 2, v0
    s_mov_b64 exec, 0xffff
    global_store_dword v20, v19, {s(sDBG,2)}
    s_mov_b64 exec, -1
    ''')
    addp(A, sDBG, sDBG, 64)

def score(A, prof=0):
    L_MEM, L_TB, L_SB, L_RW, L_XB = 0, 8192, 20480, 26624, 51200
    vIDX, vG0, vG1, vPR, vAF0, vAF1, vMB0, vMB1, vTW, vTR, vSW, vSR, vPS, vX0, vX1, vRW, vSM = range(1, 18)
    vXB = vG1; sXB = 37; vCK = 127
    RING, XF, R, TOPC, TMP, SACC, TACC, WV = 20, 52, 84, 108, 112, 116, 128, 144
    MEMB, TOPA, TOPB = R, R + 16, R + 20
    seq = score_seq()
    def wreg(i):
        if i < 3: return v(R + 8 * i, 8)
        if i < 35: return a_(8 * (i - 3), 8)
        return v(WV + 8 * (i - 35), 8)
    lg = Cnt(A, 'lgkmcnt', 15)
    A.label('L_score')
    chain_common(A)
    T = 20
    A.I(f'''
    v_and_b32 {v(T)}, 15, v0
    v_lshrrev_b32 {v(T+1)}, 4, v0
    v_and_b32 {v(T+2)}, 7, v0
    v_mov_b32 {v(vIDX)}, 0x4444
    v_mov_b32 {v(T+3)}, 0xeeee
    v_cmp_lt_u32 vcc, 7, {v(T)}
    v_cndmask_b32 {v(vIDX)}, {v(vIDX)}, {v(T+3)}, vcc
    ''')
    mem_poll_setup(A, vG0, vG1, vPR, T + 4)
    A.I(f'''
    v_lshlrev_b32 {v(T+4)}, 7, {v(T+1)}
    v_lshl_add_u32 {v(T+4)}, {v(T+2)}, 4, {v(T+4)}
    s_and_b32 {s(sTMP)}, {s(sW)}, 1
    s_mul_i32 {s(sTMP2)}, {s(sTMP)}, {7*512}
    v_add_u32 {v(vAF0)}, {s(sTMP2)}, {v(T+4)}
    s_sub_u32 {s(sTMP2)}, {7*512}, {s(sTMP2)}
    v_add_u32 {v(vAF1)}, {s(sTMP2)}, {v(T+4)}
    s_lshr_b32 {s(sTMP2)}, {s(sW)}, 1
    s_mul_i32 {s(sTMP2)}, {s(sTMP2)}, 7
    s_lshl_b32 {s(sTMP)}, {s(sTMP)}, 2
    s_add_u32 {s(sTMP)}, {s(sTMP)}, {s(sTMP2)}
    s_add_u32 {s(sTMP2)}, {s(sTMP2)}, 3
    s_lshl_b32 s40, {s(sTMP)}, 9
    s_lshl_b32 s41, {s(sTMP2)}, 9
    v_add_u32 {v(vMB0)}, s40, {v(T+4)}
    v_add_u32 {v(vMB1)}, s41, {v(T+4)}
    s_lshl_b32 s40, {s(sTMP)}, 11
    s_lshl_b32 s41, {s(sTMP2)}, 11
    v_lshl_add_u32 {v(vX0)}, v0, 4, s40
    v_lshl_add_u32 {v(vX1)}, v0, 4, s41
    s_mul_i32 s40, {s(sW)}, 3072
    s_add_u32 s40, s40, {L_TB}
    v_mul_u32_u24 {v(T+5)}, 192, {v(T+1)}
    v_lshl_add_u32 {v(T+5)}, {v(T)}, 3, {v(T+5)}
    v_add_u32 {v(vTW)}, s40, {v(T+5)}
    v_and_b32 {v(T+5)}, 1, v0
    v_mul_u32_u24 {v(T+5)}, 192, {v(T+5)}
    v_lshrrev_b32 {v(T+6)}, 2, v0
    v_lshl_add_u32 {v(T+5)}, {v(T+6)}, 3, {v(T+5)}
    v_add_u32 {v(vTR)}, s40, {v(T+5)}
    s_mul_i32 s40, {s(sW)}, 1408
    s_add_u32 s40, s40, {L_SB}
    v_mul_u32_u24 {v(T+5)}, 176, {v(T+2)}
    v_add_u32 {v(T+5)}, s40, {v(T+5)}
    v_lshrrev_b32 {v(T+6)}, 3, {v(T)}
    v_lshlrev_b32 {v(T+7)}, 6, {v(T+6)}
    v_lshl_add_u32 {v(T+7)}, {v(T+1)}, 4, {v(T+7)}
    v_add3_u32 {v(vSW)}, {v(T+5)}, {v(T+7)}, 32
    v_and_b32 {v(T+7)}, 1, {v(T+1)}
    v_lshlrev_b32 {v(T+7)}, 4, {v(T+7)}
    v_lshrrev_b32 {v(T+8)}, 1, {v(T+1)}
    v_lshl_add_u32 {v(T+8)}, {v(T+8)}, 1, {v(T+6)}
    v_lshl_add_u32 {v(T+7)}, {v(T+8)}, 2, {v(T+7)}
    v_add_u32 {v(vSM)}, {v(T+5)}, {v(T+7)}
    v_lshrrev_b32 {v(T+5)}, 5, v0
    v_lshl_add_u32 {v(T+5)}, {s(sW)}, 1, {v(T+5)}
    v_and_b32 {v(T+6)}, 31, v0
    v_min_u32 {v(T+6)}, 20, {v(T+6)}
    v_mul_u32_u24 {v(T+7)}, 176, {v(T+5)}
    v_lshl_add_u32 {v(T+7)}, {v(T+6)}, 3, {v(T+7)}
    v_add_u32 {v(vSR)}, {L_SB}, {v(T+7)}
    s_lshr_b32 s40, {s(sROLE)}, 2
    s_mul_i32 s40, s40, 2560
    s_and_b32 s41, {s(sROLE)}, 1
    s_bfe_u32 s42, {s(sROLE)}, 0x10001
    s_lshl_b32 s43, s41, 7
    s_lshl_b32 s46, s42, 5
    s_add_u32 s43, s43, s46
    s_add_u32 s43, s43, s40
    s_add_u32 s43, s43, 2048
    v_and_b32 {v(T+7)}, 1, {v(T+6)}
    v_lshlrev_b32 {v(T+7)}, 8, {v(T+7)}
    v_lshrrev_b32 {v(T+8)}, 1, {v(T+6)}
    v_lshl_add_u32 {v(T+7)}, {v(T+8)}, 6, {v(T+7)}
    v_lshl_add_u32 {v(T+7)}, {v(T+5)}, 2, {v(T+7)}
    v_add_u32 {v(T+7)}, s43, {v(T+7)}
    s_lshl_b32 s43, s42, 10
    s_lshl_b32 s46, s41, 9
    s_add_u32 s43, s43, s46
    s_add_u32 s43, s43, s40
    v_subrev_u32 {v(T+8)}, 4, {v(T+6)}
    v_lshrrev_b32 {v(T+9)}, 2, {v(T+8)}
    v_and_b32 {v(T+8)}, 3, {v(T+8)}
    v_lshlrev_b32 {v(T+8)}, 2, {v(T+8)}
    v_lshl_add_u32 {v(T+8)}, {v(T+9)}, 7, {v(T+8)}
    v_lshl_add_u32 {v(T+8)}, {v(T+5)}, 4, {v(T+8)}
    v_add_u32 {v(T+8)}, s43, {v(T+8)}
    v_cmp_gt_u32 vcc, 4, {v(T+6)}
    v_cndmask_b32 {v(vPS)}, {v(T+8)}, {v(T+7)}, vcc
    s_mul_i32 s40, {s(sW)}, 6144
    s_add_u32 s40, s40, {L_RW}
    v_lshl_add_u32 {v(vRW)}, v0, 4, s40
    s_mov_b32 {s(sM20)}, 0x000fffff
    s_mov_b32 {s(sM20+1)}, 0x000fffff
    s_mov_b32 {s(sMHI)}, 0xff00ff00
    s_mov_b32 {s(sMHI+1)}, 0xff00ff00
    s_mov_b32 {s(sMG)}, 0
    s_mov_b32 {s(sMG+1)}, -1
    s_mov_b32 {s(sC)}, {hex(__import__("struct").unpack("<I", __import__("struct").pack("<f", 1.4426950408889634/16))[0])}
    ''')
    A.I(f'''
    v_mul_u32_u24 {v(T+5)}, 176, {v(T+2)}
    s_mul_i32 s40, {s(sW)}, 1408
    s_add_u32 s40, s40, {L_SB + 160}
    v_add_u32 {v(T+5)}, s40, {v(T+5)}
    v_mov_b32 {v(T+6)}, 0xff800000
    v_mov_b32 {v(T+7)}, 0xff800000
    ds_write_b64 {v(T+5)}, {v(T+6,2)}
    ''')
    A.I(f'''
    s_mul_i32 s40, {s(sROLE)}, {MF_HEAD}
    s_and_b32 s41, {s(sW)}, 1
    s_mul_i32 s41, s41, {7*2048}
    s_mul_i32 s42, {s(sTMP)}, {14*2048}
    s_mul_i32 s43, {s(sTMP2)}, {14*2048}
    v_lshlrev_b32 {v(T+8)}, 4, v0
    s_add_u32 s46, s42, s41
    v_add_u32 {v(T+9)}, s46, {v(T+8)}
    s_sub_u32 s46, s42, s41
    s_add_u32 s46, s46, {7*2048}
    v_add_u32 {v(T+10)}, s46, {v(T+8)}
    s_add_u32 s46, s43, s41
    v_add_u32 {v(T+11)}, s46, {v(T+8)}
    ''')
    addp(A, sWT, sWS, MF_OFF); addps(A, sWT, sWT, 40)
    for i, (L, jj) in enumerate(seq):
        va = T + 11 if L == 3 else T + 9 if jj < 7 else T + 10
        addp(A, 40, sWT, ((L % 3) * 14 + jj % 7) * 2048)
        for hf in range(2):
            if i < 3: dst = v(R + 8 * i + 4 * hf, 4)
            elif i < 35: dst = a_(8 * (i - 3) + 4 * hf, 4)
            else: dst = v(WV + 8 * (i - 35) + 4 * hf, 4)
            A.I(f'global_load_dwordx4 {dst}, {v(va)}, s[40:41] offset:{hf*1024}')
        if i == 23:
            A.I('s_waitcnt vmcnt(42)')
            for k in range(6): A.I(f'ds_write_b128 {v(vRW)}, {v(R+4*k,4)} offset:{k*1024}')
        if i > 23: A.I('s_waitcnt vmcnt(42)')
    xcc_check(A, 'sc', '0x000fffff', '0x000fffff', T)
    addp(A, sMEM, sWS, MEMS_OFF); addp(A, sP, sWS, PS_OFF)
    addp(A, sX0, sWS, XI_OFF); addp(A, sX1, sX0, 4096)
    if prof:
        A.I(f's_lshl_b32 s40, {s(sROLE)}, 2\n s_add_u32 s40, s40, {s(sW)}\n s_lshl_b32 s40, s40, 12')
        addp(A, sDBG, sWS, END_OFF); addps(A, sDBG, sDBG, 40)
    def xload(k):
        L, t = k >> 1, k & 1
        if L < 2: A.I(f'global_load_dwordx4 {v(XF+4*k,4)}, {v(vX0)}, {s(sX0,2)} offset:{1024*k}')
        elif L == 2: A.I(f'global_load_dwordx4 {v(XF+4*k,4)}, {v(vX0)}, {s(sX1,2)} offset:{1024*t}')
        else: A.I(f'global_load_dwordx4 {v(XF+4*k,4)}, {v(vX1)}, {s(sX0,2)} offset:{1024*t}')
    for k in range(16): A.I(f'v_mov_b32 {v(TACC+k)}, 0')
    A.I('s_waitcnt vmcnt(0) lgkmcnt(0)')
    A.label('L_sc_step')
    stamp(A, 0, prof)
    if prof: A.I('s_memtime s[62:63]')
    mem_poll(A, 'sc', vG0, vG1, vPR, TMP)
    stamp(A, 1, prof)
    lg.clear()
    def rdfrag(jj):
        ad = f'{v(vAF0)} offset:{jj*512}' if jj < 7 else f'{v(vAF1)} offset:{(jj-7)*512}'
        A.I(f'ds_read_b128 {v(RING + 4*(jj%8), 4)}, {ad}'); lg.add(('f', jj))
    def rdmemb(L):
        ad = f'{v(vMB0)} offset:{L*512}' if L < 3 else f'{v(vMB1)}'
        A.I(f'ds_read_b128 {v(MEMB + 4*L, 4)}, {ad}'); lg.add(('m', L))
    def cvt(L, k): A.I(f'v_cvt_pk_bf16_f32 {v(TMP + 2*(L&1) + k)}, {v(TACC+4*L+2*k)}, {v(TACC+4*L+2*k+1)}')
    def twr(L):
        A.I(f'ds_write_b64 {v(vTW)}, {v(TMP + 2*(L&1), 2)} offset:{L*768}'); lg.add(('w', L))
    TOPD = RING + 4 * (8 % 8)
    top = {0: TOPA, 1: TOPB, 2: TOPD, 3: TOPC}
    def trr(L):
        A.I(f'ds_read_b64_tr_b16 {v(top[L], 2)}, {v(vTR)} offset:{L*768}'); lg.add(('x', L))
        A.I(f'ds_read_b64_tr_b16 {v(top[L]+2, 2)}, {v(vTR)} offset:{L*768+384}'); lg.add(('t', L))
    def smm1(L, t, first=False):
        lg.wait(('t', L))
        a = v(MEMB + 4*L, 4) if t == 0 else v(XF + 8*L + 4*(t-1), 4)
        c = '0' if first else v(SACC + 4*t, 4)
        A.I(f'v_mfma_f32_16x16x32_bf16 {v(SACC+4*t,4)}, {a}, {v(top[L],4)}, {c}')
    CHK = 19 if not prof else TMP + 2
    def chk(j0, first=False):
        a, b = v(RING + 4*(j0 % 8)), v(RING + 4*((j0+1) % 8))
        if first: A.I(f'v_max_u32 {v(vCK)}, {a}, {b}')
        else: A.I(f'v_max3_u32 {v(vCK)}, {a}, {b}, {v(vCK)}')
    fill = {i: [] for i in range(49)}
    for k in range(2, 8): fill[k - 2].append(lambda k=k: rdfrag(k))
    for k, i in enumerate([18, 22, 25, 28, 31, 34]): fill[i].append(lambda k=k: rdfrag(8 + k))
    for k, L in enumerate([3, 0, 1, 2]): fill[6 + k].append(lambda L=L: rdmemb(L))
    fill[23].append(lambda: cvt(3, 0)); fill[24].append(lambda: cvt(3, 1)); fill[26].append(lambda: twr(3)); fill[27].append(lambda: trr(3))
    for j0, i in zip(range(0, 14, 2), [3, 9, 15, 25, 29, 35, 41]): fill[i].append(lambda j0=j0: chk(j0, j0 == 0))
    fill[42].append(lambda: A.I(f'v_cmp_eq_u32 vcc, {s(sSENT)}, {v(vCK)}'))
    fill[43].append(lambda: cvt(0, 0)); fill[44].append(lambda: cvt(0, 1))
    fill[45] += [lambda: A.I('s_cbranch_vccnz L_sc_redo'), lambda: twr(0), lambda: cvt(1, 0)]; fill[46] += [lambda: trr(0), lambda: cvt(1, 1)]
    fill[47].append(lambda: twr(1)); fill[48].append(lambda: trr(1))
    if 'nox' not in OPT:
        for k, i in zip([6, 7, 0, 1, 2, 3, 4, 5], [0, 4, 8, 12, 16, 20, 24, 28]): fill[i].insert(0, lambda k=k: xload(k))
    rdfrag(0); rdfrag(1)
    for i, (L, jj) in enumerate(seq):
        lg.wait(('f', jj))
        A.I(f'v_smfmac_f32_16x16x64_bf16 {v(TACC+4*L,4)}, {v(RING+4*(jj%8),4)}, {wreg(i)}, {v(vIDX)}')
        for f in fill[i]: f()
    stamp(A, 2, prof > 1)
    A.I('s_waitcnt vmcnt(0)')
    smm1(3, 1, True); smm1(3, 2, True)
    cvt(2, 0); cvt(2, 1); twr(2); trr(2)
    smm1(3, 0, True)
    for L in (0, 1, 2):
        for t in (1, 2, 0): smm1(L, t)
    Z = RING + 4
    for r in range(4): A.I(f'v_cndmask_b32 {v(Z+4+r)}, {v(SACC+4+r)}, {v(SACC+8+r)}, {s(sMHI,2)}')
    A.I(f'''
    ds_write_b128 {v(vSW)}, {v(Z+4,4)}
    v_cndmask_b32 {v(Z)}, {v(SACC)}, {v(SACC+1)}, {s(sMHI,2)}
    v_cndmask_b32 {v(Z+1)}, {v(SACC+2)}, {v(SACC+3)}, {s(sMHI,2)}
    v_cndmask_b32 {v(Z)}, {v(Z)}, {v(Z+1)}, {s(sMG,2)}
    ds_write_b32 {v(vSM)}, {v(Z)}
    s_waitcnt lgkmcnt(0)
    s_barrier
    ''')
    stamp(A, 3, prof)
    for k in range(4): A.I(f'ds_read_b64 {v(Z+2*k,2)}, {v(vSR)} offset:{k*1408}')
    E, M = Z + 8, Z + 10
    dpp = lambda k: f'row_ror:{k} row_mask:0xf bank_mask:0xf'
    A.I(f'''
    s_waitcnt lgkmcnt(2)
    v_pk_add_f32 {v(Z,2)}, {v(Z,2)}, {v(Z+2,2)}
    s_waitcnt lgkmcnt(0)
    v_pk_add_f32 {v(Z+4,2)}, {v(Z+4,2)}, {v(Z+6,2)}
    v_pk_add_f32 {v(Z,2)}, {v(Z,2)}, {v(Z+4,2)}
    v_max_f32 {v(M)}, {v(Z)}, {v(Z+1)}
    ''')
    for k in (8, 4, 2, 1): A.I(f'v_max_f32_dpp {v(M)}, {v(M)}, {v(M)} {dpp(k)}')
    A.I(f'''
    v_mov_b32 {v(M+1)}, {v(M)}
    v_permlane16_swap_b32 {v(M)}, {v(M+1)}
    v_max_f32 {v(M)}, {v(M)}, {v(M+1)}
    v_mul_f32 {v(M)}, {s(sC)}, {v(M)}
    v_fma_f32 {v(E)}, {v(Z)}, {s(sC)}, -{v(M)}
    v_fma_f32 {v(E+1)}, {v(Z+1)}, {s(sC)}, -{v(M)}
    v_exp_f32 {v(E)}, {v(E)}
    v_exp_f32 {v(E+1)}, {v(E+1)}
    v_add_f32 {v(M)}, {v(E)}, {v(E+1)}
    ''')
    for k in (8, 4, 2, 1): A.I(f'v_add_f32_dpp {v(M)}, {v(M)}, {v(M)} {dpp(k)}')
    A.I(f'''
    v_mov_b32 {v(M+1)}, {v(M)}
    v_permlane16_swap_b32 {v(M)}, {v(M+1)}
    v_add_f32 {v(M)}, {v(M)}, {v(M+1)}
    v_rcp_f32 {v(M)}, {v(M)}
    v_mul_f32 {v(E)}, {v(E)}, {v(M)}
    v_mul_f32 {v(E+1)}, {v(E+1)}, {v(M)}
    v_cvt_pk_bf16_f32 {v(E)}, {v(E)}, {v(E+1)}
    s_mov_b64 exec, {s(sEA,2)}
    global_store_dword {v(vPS)}, {v(E)}, {s(sP,2)}
    s_mov_b64 exec, {s(sEB,2)}
    global_store_dword {v(vPS)}, {v(E)}, {s(sP,2)} sc1
    s_mov_b64 exec, -1
    ''')
    stamp(A, 4, prof)
    A.I(f's_add_u32 {s(sSTEP)}, {s(sSTEP)}, 1\n s_cmp_ge_u32 {s(sSTEP)}, {NSTEP}\n s_cbranch_scc1 L_sc_end')
    for k in range(6): A.I(f'ds_read_b128 {v(R+4*k,4)}, {v(vRW)} offset:{k*1024}')
    for k in range(16): A.I(f'v_mov_b32 {v(TACC+k)}, 0')
    addp(A, sP, sP, PS_SLOT); addp(A, sX0, sX0, XI_SEG); addp(A, sX1, sX1, XI_SEG); addp(A, sMEM, sMEM, MEM_SLOT)
    if SDELAY: A.I(f's_sleep {SDELAY}')
    stamp(A, 5, prof)
    stamp_flush(A, prof)
    A.I('s_branch L_sc_step')
    A.label('L_sc_redo')
    A.I('s_waitcnt vmcnt(0) lgkmcnt(0)\n s_nop 15\n s_barrier')
    for k in range(6): A.I(f'ds_read_b128 {v(R+4*k,4)}, {v(vRW)} offset:{k*1024}')
    for k in range(16): A.I(f'v_mov_b32 {v(TACC+k)}, 0')
    A.I('s_branch L_sc_mp')
    A.label('L_sc_end')
    stamp_flush(A, prof)
    A.I('s_endpgm')

def value(A, prof=0):
    L_MEM, L_RB, L_WL = 0, 8192, 16384
    RBW = 32 * 48
    vIDX, vG0, vG1, vPR, vAF, vWL, vV0, vV1, vPM, vPX, vPP, vRWR, vRRD, vMS, vWPO, vZ, vDUM, vFL = range(1, 19)
    vCK = vG1
    ARING, HRING, VXF, WACC, WX, WY, OX, OY, PF, WV = 20, 36, 60, 92, 108, 112, 116, 120, 124, 176
    lg = Cnt(A, 'lgkmcnt', 15)
    def wreg(hh, j):
        k = (hh * 14 + j) * 8
        return a_(k, 8) if k < 256 else v(WV + k - 256, 8)
    A.label('L_value')
    chain_common(A)
    T = 20
    A.I(f'''
    s_sub_u32 {s(sROLE)}, {s(sROLE)}, 16
    v_and_b32 {v(T)}, 15, v0
    v_lshrrev_b32 {v(T+1)}, 4, v0
    v_and_b32 {v(T+2)}, 7, v0
    v_mov_b32 {v(vIDX)}, 0x4444
    v_mov_b32 {v(T+3)}, 0xeeee
    v_cmp_lt_u32 vcc, 7, {v(T)}
    v_cndmask_b32 {v(vIDX)}, {v(vIDX)}, {v(T+3)}, vcc
    ''')
    mem_poll_setup(A, vG0, vG1, vPR, T + 4)
    A.I(f'''
    v_lshlrev_b32 {v(vAF)}, 7, {v(T+1)}
    v_lshl_add_u32 {v(vAF)}, {v(T+2)}, 4, {v(vAF)}
    s_mul_i32 s40, {s(sW)}, 28672
    s_add_u32 s40, s40, {L_WL}
    v_lshl_add_u32 {v(vWL)}, v0, 4, s40
    s_lshl_b32 s40, {s(sW)}, 13
    v_lshl_add_u32 {v(vV0)}, v0, 4, s40
    v_add_u32 {v(vV1)}, 4096, {v(vV0)}
    s_mul_i32 s40, {s(sW)}, 2560
    v_and_b32 {v(T+5)}, 1, {v(T+1)}
    v_lshl_add_u32 {v(vPX)}, v0, 4, s40
    v_lshl_add_u32 {v(vPM)}, v0, 2, s40
    v_min_u32 {v(T+7)}, 19, v0
    v_lshl_add_u32 {v(vPP)}, {v(T+7)}, 7, s40
    v_and_b32 {v(T+7)}, 3, v0
    v_lshl_add_u32 {v(T+7)}, {s(sW)}, 2, {v(T+7)}
    v_lshlrev_b32 {v(vFL)}, 2, {v(T+7)}
    s_mul_i32 s40, {s(sW)}, {RBW}
    s_add_u32 s40, s40, {L_RB}
    v_lshrrev_b32 {v(T+7)}, 5, v0
    v_lshl_add_u32 {v(T+7)}, {v(T+7)}, 4, {v(T)}
    v_mul_u32_u24 {v(T+7)}, 48, {v(T+7)}
    v_lshl_add_u32 {v(T+7)}, {v(T+5)}, 4, {v(T+7)}
    v_add_u32 {v(vRWR)}, s40, {v(T+7)}
    v_lshl_add_u32 {v(T+7)}, {s(sW)}, 3, {v(T+2)}
    v_mul_u32_u24 {v(T+7)}, 48, {v(T+7)}
    v_lshrrev_b32 {v(T+8)}, 3, v0
    v_lshl_add_u32 {v(T+7)}, {v(T+8)}, 2, {v(T+7)}
    v_add_u32 {v(vRRD)}, {L_RB}, {v(T+7)}
    s_lshl_b32 s40, {s(sROLE)}, 9
    s_lshl_b32 s41, {s(sW)}, 7
    s_add_u32 s40, s40, s41
    v_lshl_add_u32 {v(vMS)}, v0, 1, s40
    s_mul_i32 s40, {s(sW)}, {4*MF_HEAD}
    s_mul_i32 s41, {s(sROLE)}, {14*2048}
    s_add_u32 s40, s40, s41
    ''')
    addp(A, sWT, sWS, MF_OFF + MF_MAT); addps(A, sWT, sWT, 40)
    A.I(f'v_lshlrev_b32 {v(T+8)}, 4, v0')
    n = 0
    for hh in (3, 0, 1, 2):
        addp(A, 40, sWT, hh * MF_HEAD)
        for q in range(28):
            if hh == 3: dst = v(60 + 4 * q, 4)
            else:
                k = 112 * hh + 4 * q; dst = a_(k, 4) if k < 256 else v(WV + k - 256, 4)
            A.I(f'global_load_dwordx4 {dst}, {v(T+8)}, s[40:41] offset:{(q%4)*1024}')
            if q % 4 == 3: addp(A, 40, 40, 4096)
            if n == 59:
                A.I('s_waitcnt vmcnt(32)')
                for k in range(28): A.I(f'ds_write_b128 {v(vWL)}, {v(60+4*k,4)} offset:{k*1024}')
            if n > 59: A.I('s_waitcnt vmcnt(40)')
            n += 1
    xcc_check(A, 'va', '-1', '-1', T)
    addp(A, sMEM, sWS, MEMS_OFF); addp(A, sP, sWS, PS_OFF); addp(A, sFL, sWS, FL_OFF)
    A.I(f's_mul_i32 s40, {s(sROLE)}, {VX_SC}'); addp(A, sVX, sWS, VX_OFF); addps(A, sVX, sVX, 40)
    def flagwait(tag, loaded):
        if loaded:
            A.I(f'v_cmp_eq_u32 vcc, 0, {v(vDUM)}\n s_cbranch_vccz L_{tag}_ok')
        A.I(f'''
L_{tag}:
        global_load_dword {v(vDUM)}, {v(vFL)}, {s(sFL,2)} sc1
        s_add_u32 {s(sBUD)}, {s(sBUD)}, 1
        s_cmp_gt_u32 {s(sBUD)}, {BUDGET}
        s_cbranch_scc1 L_bail
        s_waitcnt vmcnt(0)
        v_cmp_eq_u32 vcc, 0, {v(vDUM)}
        s_cbranch_vccnz L_{tag}
L_{tag}_ok:
        ''')
    if 'noflag' not in OPT: flagwait('va_f0', False)
    addp(A, sFL, sFL, 256)
    if prof:
        A.I(f's_add_u32 s40, {s(sROLE)}, 16\n s_lshl_b32 s40, s40, 2\n s_add_u32 s40, s40, {s(sW)}\n s_lshl_b32 s40, s40, 12')
        addp(A, sDBG, sWS, END_OFF); addps(A, sDBG, sDBG, 40)
    A.I('s_waitcnt vmcnt(0) lgkmcnt(0)')
    def vxload(k):
        hh, t = k >> 1, k & 1
        A.I(f'global_load_dwordx4 {v(VXF+16*t+4*hh,4)}, {v(vV0 if hh < 2 else vV1)}, {s(sVX,2)} offset:{(hh&1)*2048+t*1024} ' + ('nt' if 'vxnt' in OPT else '' if 'vxplain' in OPT else 'sc1'))
    def rdh(j):
        for k in range(2):
            A.I(f'ds_read_b128 {v(HRING+8*(j%3)+4*k,4)}, {v(vWL)} offset:{(2*j+k)*1024}'); lg.add(('h', j))
    def rda(j):
        A.I(f'ds_read_b128 {v(ARING+4*(j%4),4)}, {v(vAF)} offset:{j*512}'); lg.add(('a', j))
    def prep():
        for k in range(16): A.I(f'v_mov_b32 {v(WACC+k)}, 0')
        rdh(0); rdh(1)
    prep()
    A.label('L_va_step')
    stamp(A, 0, prof)
    mem_poll(A, 'va', vG0, vG1, vPR, PF + 24)
    stamp(A, 1, prof)
    lg.clear()
    rda(0); rda(1); rda(2)
    for j in range(14):
        lg.wait(('a', j))
        for hh in range(4):
            if hh == 3: lg.wait(('h', j))
            w = wreg(hh, j) if hh < 3 else v(HRING + 8 * (j % 3), 8)
            A.I(f'v_smfmac_f32_16x16x64_bf16 {v(WACC+4*hh,4)}, {v(ARING+4*(j%4),4)}, {w}, {v(vIDX)}')
            if hh == 0 and j + 2 < 14: rdh(j + 2)
            if hh == 1 and j + 3 < 14: rda(j + 3)
            if hh == 2 and j < 8 and 'novx' not in OPT: vxload(j)
            if hh == 2 and j == 8: A.I(f'global_load_dword {v(vDUM)}, {v(vFL)}, {s(sFL,2)} sc1')
            if hh == 2:
                if j == 0: A.I(f'v_mov_b32 {v(vCK)}, {v(ARING)}')
                else: A.I(f'v_max_u32 {v(vCK)}, {v(vCK)}, {v(ARING+4*(j%4))}')
            if hh == 3 and j == 13: A.I(f'v_cmp_eq_u32 vcc, {s(sSENT)}, {v(vCK)}')
    A.I('s_cbranch_vccnz L_va_redo')
    for k in range(2):
        for p in range(2):
            A.I(f'v_cvt_pk_bf16_f32 {v(WX+2*k+p)}, {v(WACC+8*p+2*k)}, {v(WACC+8*p+2*k+1)}')
            A.I(f'v_cvt_pk_bf16_f32 {v(WY+2*k+p)}, {v(WACC+8*p+4+2*k)}, {v(WACC+8*p+4+2*k+1)}')
    for k in range(4): A.I(f'v_permlane32_swap_b32 {v(WX+k)}, {v(WY+k)}')
    stamp(A, 2, prof)
    if 'vxwait' in OPT:
        A.I('s_waitcnt vmcnt(0)'); stamp(A, 6, prof)
    def prnd(F):
        A.I(f'''
        global_load_dwordx4 {v(F,4)}, {v(vPX)}, {s(sP,2)} sc1
        global_load_dwordx4 {v(F+4,4)}, {v(vPX)}, {s(sP,2)} offset:1024 sc1
        global_load_dword {v(F+8)}, {v(vPM)}, {s(sP,2)} offset:2048 sc1
        global_load_dword {v(F+9)}, {v(vPM)}, {s(sP,2)} offset:2304 sc1
        ''')
    def pchk(F, n):
        A.I(f'''
        s_waitcnt vmcnt({n})
        v_max3_u32 {v(vCK)}, {v(F)}, {v(F+4)}, {v(F+8)}
        v_max_u32 {v(vCK)}, {v(vCK)}, {v(F+9)}
        v_cmp_eq_u32 vcc, {s(sSENT)}, {v(vCK)}
        v_smfmac_f32_16x16x64_bf16 {v(OX,4)}, {v(F,4)}, {v(VXF,8)}, {v(vIDX)}
        v_smfmac_f32_16x16x64_bf16 {v(OY,4)}, {v(F,4)}, {v(VXF+16,8)}, {v(vIDX)}
        ''')
    def pfin(F):
        stamp(A, 3, prof)
        A.I(f'''
        v_smfmac_f32_16x16x64_bf16 {v(OX,4)}, {v(F+4,4)}, {v(VXF+8,8)}, {v(vIDX)}
        v_smfmac_f32_16x16x64_bf16 {v(OY,4)}, {v(F+4,4)}, {v(VXF+24,8)}, {v(vIDX)}
        v_smfmac_f32_16x16x32_bf16 {v(OX,4)}, {v(F+8,2)}, {v(WX,4)}, {v(vIDX)}
        v_smfmac_f32_16x16x32_bf16 {v(OY,4)}, {v(F+8,2)}, {v(WY,4)}, {v(vIDX)}
        ''')
    def pbud():
        A.I(f'''
        s_add_u32 {s(sBUD)}, {s(sBUD)}, 1
        s_cmp_gt_u32 {s(sBUD)}, {BUDGET}
        s_cbranch_scc1 L_bail
        ''')
    def pzero():
        for k in range(8): A.I(f'v_mov_b32 {v(OX+k)}, 0')
    if PDELAY: A.I(f's_sleep {PDELAY}')
    if 'pp2' not in OPT:
        A.label('L_va_pp'); prnd(PF); pbud(); pzero(); pchk(PF, 0); A.I('s_cbranch_vccnz L_va_pp'); pfin(PF)
    else:
        PG = PF + 12
        prnd(PF)
        A.label('L_va_pp'); prnd(PG); pbud(); pzero(); pchk(PF, 4); A.I('s_cbranch_vccz L_va_ppa')
        prnd(PF); pbud(); pzero(); pchk(PG, 4); A.I('s_cbranch_vccnz L_va_pp')
        pfin(PG); A.I('s_branch L_va_ppj')
        A.label('L_va_ppa'); pfin(PF)
        A.label('L_va_ppj')
    for r in range(4): A.I(f'v_permlane32_swap_b32 {v(OX+r)}, {v(OY+r)}')
    A.I(f'''
    v_pk_add_f32 {v(OX,2)}, {v(OX,2)}, {v(OY,2)}
    v_pk_add_f32 {v(OX+2,2)}, {v(OX+2,2)}, {v(OY+2,2)}
    ds_write_b128 {v(vRWR)}, {v(OX,4)}
    s_waitcnt lgkmcnt(0)
    s_barrier
    ''')
    Z = ARING
    for k in range(4): A.I(f'ds_read_b32 {v(Z+k)}, {v(vRRD)} offset:{k*RBW}')
    addp(A, sMEM, sMEM, MEM_SLOT); addp(A, sP, sP, PS_SLOT)
    A.I(f'''
    s_waitcnt lgkmcnt(0)
    v_pk_add_f32 {v(Z,2)}, {v(Z,2)}, {v(Z+2,2)}
    v_add_f32 {v(Z)}, {v(Z)}, {v(Z+1)}
    v_cvt_pk_bf16_f32 {v(vZ)}, {v(Z)}, {v(Z)}
    s_mov_b64 exec, {s(sEA,2)}
    global_store_short {v(vMS)}, {v(vZ)}, {s(sMEM,2)}
    s_mov_b64 exec, {s(sEB,2)}
    global_store_short {v(vMS)}, {v(vZ)}, {s(sMEM,2)} sc1
    s_mov_b64 exec, -1
    ''')
    stamp(A, 4, prof)
    A.I(f's_add_u32 {s(sSTEP)}, {s(sSTEP)}, 1\n s_cmp_ge_u32 {s(sSTEP)}, {NSTEP}\n s_cbranch_scc1 L_va_end')
    if 'noflag' not in OPT: flagwait('va_f1', True)
    addp(A, sVX, sVX, 14 * VX_SC); addp(A, sFL, sFL, 256)
    lg.clear(); prep()
    if VDELAY: A.I(f's_sleep {VDELAY}')
    stamp(A, 5, prof)
    stamp_flush(A, prof)
    A.I('s_branch L_va_step')
    A.label('L_va_redo')
    A.I('s_waitcnt vmcnt(0) lgkmcnt(0)\n s_nop 15\n s_barrier')
    lg.clear(); prep()
    A.I('s_branch L_va_mp')
    A.label('L_va_end')
    stamp_flush(A, prof)
    A.I('s_endpgm')

def helper(A):
    vG0, vX, vP, vM, D = 1, 2, 3, 4, 8
    A.label('L_helper')
    chain_common(A)
    A.I(f'''
    s_mul_i32 {s(sLB)}, {s(sW)}, 1792
    v_lshlrev_b32 {v(vG0)}, 4, v0
    v_add_u32 {v(vG0)}, {s(sLB)}, {v(vG0)}
    s_mov_b32 {s(sM48)}, -1
    s_mov_b32 {s(sM48+1)}, 0xffff
    s_mul_i32 s40, {s(sW)}, 7168
    v_min_u32 {v(vX)}, 55, v0
    v_lshl_add_u32 {v(vX)}, {v(vX)}, 7, s40
    s_mul_i32 s40, {s(sW)}, 2560
    v_min_u32 {v(vP)}, 19, v0
    v_lshl_add_u32 {v(vP)}, {v(vP)}, 7, s40
    v_min_u32 {v(vM)}, 13, v0
    v_lshl_add_u32 {v(vM)}, {v(vM)}, 7, {s(sLB)}
    v_mov_b32 {v(D+4)}, 0
    v_mov_b32 {v(D+5)}, 0
    v_mov_b32 {v(D+6)}, 0
    v_mov_b32 {v(D+7)}, 0
    ''')
    addp(A, sMEM, sWS, MEMS_OFF); addp(A, sMT, sWS, MEMT_OFF); addp(A, sP, sWS, PS_OFF); addp(A, sVX, sWS, MEMS_OFF + MEM_SLOT); addp(A, sX0, sWS, XI_OFF)
    A.I(f'''
    global_load_dword v20, {v(vX)}, {s(sX0,2)}
    global_load_dword v21, {v(vP)}, {s(sP,2)} sc1
    global_load_dword v22, {v(vM)}, {s(sVX,2)} sc1
    ''')
    addp(A, sX0, sX0, 28672); addp(A, sP, sP, PS_SLOT); addp(A, sVX, sVX, MEM_SLOT)
    A.I(f'global_load_dword v20, {v(vX)}, {s(sX0,2)}')
    addp(A, sX0, sX0, 28672)
    A.I(f'''
L_he_step:
    s_sleep {HSLEEP}
    global_load_dwordx4 {v(D,4)}, {v(vG0)}, {s(sMEM,2)} sc1
    s_mov_b64 exec, {s(sM48,2)}
    global_load_dwordx4 {v(D+4,4)}, {v(vG0)}, {s(sMEM,2)} offset:1024 sc1
    s_mov_b64 exec, -1
    s_add_u32 {s(sBUD)}, {s(sBUD)}, 1
    s_cmp_gt_u32 {s(sBUD)}, {BUDGET}
    s_cbranch_scc1 L_bail
    s_waitcnt vmcnt(0)
    v_max3_u32 v16, {v(D)}, {v(D+1)}, {v(D+2)}
    v_max3_u32 v16, v16, {v(D+3)}, {v(D+4)}
    v_max3_u32 v16, v16, {v(D+5)}, {v(D+6)}
    v_max_u32 v16, v16, {v(D+7)}
    v_cmp_eq_u32 vcc, {s(sSENT)}, v16
    s_cbranch_vccnz L_he_step
    global_store_dwordx4 {v(vG0)}, {v(D,4)}, {s(sMT,2)} sc1
    s_mov_b64 exec, {s(sM48,2)}
    global_store_dwordx4 {v(vG0)}, {v(D+4,4)}, {s(sMT,2)} offset:1024 sc1
    s_mov_b64 exec, -1
    s_add_u32 {s(sSTEP)}, {s(sSTEP)}, 1
    s_cmp_ge_u32 {s(sSTEP)}, {NSTEP}
    s_cbranch_scc1 L_he_nox
    global_load_dword v20, {v(vX)}, {s(sX0,2)}
    global_load_dword v21, {v(vP)}, {s(sP,2)} sc1
    global_load_dword v22, {v(vM)}, {s(sVX,2)} sc1
L_he_nox:
    ''')
    addp(A, sX0, sX0, 28672); addp(A, sP, sP, PS_SLOT); addp(A, sVX, sVX, MEM_SLOT); addp(A, sMEM, sMEM, MEM_SLOT); addp(A, sMT, sMT, MEM_SLOT)
    A.I(f'''
    s_cmp_le_u32 {s(sSTEP)}, {NSTEP}
    s_cbranch_scc1 L_he_step
    s_endpgm
    ''')
```

```python
from asmlib import *
from layout import *
import struct
def f32(x): return hex(struct.unpack('<I', struct.pack('<f', x))[0])
def addp(A, dst, src, off):
    A.I(f's_add_u32 {s(dst)}, {s(src)}, {off & 0xffffffff}')
    A.I(f's_addc_u32 {s(dst+1)}, {s(src+1)}, 0')
def addps(A, dst, src, sreg):
    A.I(f's_add_u32 {s(dst)}, {s(src)}, {s(sreg)}')
    A.I(f's_addc_u32 {s(dst+1)}, {s(src+1)}, 0')
def dpp(k): return f'row_ror:{k} row_mask:0xf bank_mask:0xf'
KA_X, KA_MEM0, KA_WQ, KA_WK, KA_WV, KA_WO, KA_W1, KA_W2, KA_GW, KA_OUT, KA_DBG, KA_WS = 0, 8, 16, 24, 32, 40, 64, 72, 80, 88, 96, 104
```

```python
NSEG = 64
MF_OFF   = 0
MF_HEAD  = 14 * 14 * 2048
MF_MAT   = 16 * MF_HEAD
VX_OFF   = MF_OFF + 2 * MF_MAT
VX_SC    = 32768
MEM_SLOT = 8192
MEMS_OFF = VX_OFF + NSEG * 14 * VX_SC
FILL_OFF = MEMS_OFF + MEM_SLOT
MEMT_OFF = MEMS_OFF + 64 * MEM_SLOT
PS_OFF   = MEMT_OFF + 64 * MEM_SLOT
PS_SLOT  = 10240
FILL_END = FILL_OFF + 224 * 8192
assert PS_OFF + NSEG * PS_SLOT <= FILL_END
XI_OFF   = FILL_END
XI_SEG   = 28672
XD_OFF   = XI_OFF + NSEG * XI_SEG
G_OFF    = XD_OFF + NSEG * XI_SEG
FL_OFF   = G_OFF + 8192
XCC_OFF  = FL_OFF + NSEG * 256
HI_OFF   = XCC_OFF + 32 * 128
HI_SEG   = 56 * 2048
PX_OFF   = HI_OFF + NSEG * HI_SEG
PX_SEG   = 40 * 1024
WT_OFF   = PX_OFF + NSEG * PX_SEG
WT_SEG   = 4 * 28 * 1024
END_OFF  = WT_OFF + NSEG * WT_SEG
SENT = 0xFFBFFFBF
P0 = [0, 4, 7, 11]
P3 = [3, 3, 10, 10]
LAG = 5
def score_seq():
    seq = []
    for t in range(14 + LAG):
        if t < 14: seq += [(0, t), (1, t)]
        if t < 7: seq.append((3, t))
        if t >= LAG: seq.append((2, t - LAG))
    return seq
if __name__ == '__main__':
    for k, x in list(globals().items()):
        if k.endswith('_OFF') or k.endswith('_END'): print(k, x, x % 4096)
```

```python
from common import *
LDNT = ''

def prep_kernel():
    A = Asm()
    sW, sWS, sU, sV, sO, sH, sJB, sB = 4, 8, 10, 12, 14, 16, 17, 18
    A.I(f'''
    s_cmp_ge_u32 s2, 256
    s_cbranch_scc1 L_p_end
    s_load_dwordx2 {s(sWS,2)}, s[0:1], {KA_WS}
    s_load_dwordx8 s[24:31], s[0:1], {KA_WQ}
    v_lshrrev_b32 v1, 6, v0
    v_and_b32 v0, 63, v0
    s_and_b32 s20, s2, 7
    s_lshr_b32 s21, s2, 3
    v_readfirstlane_b32 {s(sW)}, v1
    v_and_b32 v1, 15, v0
    v_lshrrev_b32 v2, 4, v0
    s_cmp_ge_u32 s21, 28
    s_cbranch_scc1 L_p_x
    s_mul_i32 s22, s21, 37
    s_lshr_b32 s22, s22, 8
    s_mul_i32 s23, s22, 7
    s_sub_u32 {s(sJB)}, s21, s23
    s_lshl_b32 s23, s20, 2
    s_add_u32 s23, s23, s22
    s_and_b32 {s(sH)}, s23, 15
    s_lshr_b32 s3, s23, 4
    s_waitcnt lgkmcnt(0)
    ''')
    A.I(f'''
    s_mul_i32 s22, s21, 8
    s_add_u32 s22, s22, s20
    s_lshl_b32 s22, s22, 13
    s_lshl_b32 s23, {s(sW)}, 11
    s_add_u32 s22, s22, s23
    v_lshl_add_u32 v3, v0, 4, s22
    v_mov_b32 v4, {SENT}
    v_mov_b32 v5, {SENT}
    v_mov_b32 v6, {SENT}
    v_mov_b32 v7, {SENT}
    ''')
    addp(A, 20, sWS, FILL_OFF)
    A.I('global_store_dwordx4 v3, v[4:7], s[20:21]\n global_store_dwordx4 v3, v[4:7], s[20:21] offset:1024')
    A.I(f'''
    s_mul_i32 s20, s3, {MF_MAT}
    s_mul_i32 s21, {s(sH)}, {MF_HEAD}
    s_add_u32 s20, s20, s21
    s_lshr_b32 s21, {s(sW)}, 1
    s_mul_i32 s21, s21, 14
    s_and_b32 s22, {s(sW)}, 1
    s_add_u32 s21, s21, s22
    s_lshl_b32 s22, {s(sJB)}, 1
    s_add_u32 s21, s21, s22
    s_lshl_b32 s21, s21, 11
    s_add_u32 s20, s20, s21
    ''')
    addps(A, sO, sWS, 20)
    if MF_OFF: addp(A, sO, sO, MF_OFF)
    VA, VB, VR, VU, VV, vO = 8, 12, 16, 20, 24, 28
    UF, RING, ACC, OUT = 64, 128, 160, 176
    A.I(f'''
    v_lshlrev_b32 {v(vO)}, 4, v0
    v_lshrrev_b32 v3, 5, v0
    v_and_b32 v4, 31, v0
    s_lshl_b32 s20, {s(sW)}, 4
    ''')
    for b in range(4):
        A.I(f'''
        v_add_u32 v5, {2*b}, v3
        v_and_b32 v6, 3, v5
        v_lshlrev_b32 v6, 2, v6
        v_xor_b32 v6, v6, v4
        v_xor_b32 v6, {(b>>1)<<1}, v6
        v_add_u32 v5, s20, v5
        v_lshlrev_b32 v5, 13, v5
        v_lshl_add_u32 {v(VA+b)}, v6, 4, v5
        ''')
    A.I(f'''
    v_and_b32 v5, 3, v1
    v_lshlrev_b32 v5, 2, v5
    v_bfe_u32 v6, v1, 2, 1
    v_lshl_add_u32 v5, v6, 1, v5
    s_and_b32 s21, {s(sW)}, 1
    s_lshl_b32 s21, s21, 5
    v_add_u32 v6, s21, v1
    v_lshlrev_b32 v6, 9, v6
    v_add_u32 v6, {4*32768}, v6
    ''')
    for b in range(4):
        A.I(f'''
        v_add_u32 v7, {4*b}, v2
        v_xor_b32 v7, v7, v5
        v_lshlrev_b32 {v(VR+b)}, 4, v7
        v_add_u32 {v(VU+b)}, {v(VR+b)}, v6
        ''')
    A.I(f'''
    s_lshl_b32 s20, {s(sJB)}, 19
    s_lshl_b32 s21, {s(sH)}, 9
    s_add_u32 s20, s20, s21
    s_lshl_b32 {s(sB)}, {s(sW)}, 13
    s_cmp_eq_u32 s3, 0
    s_cbranch_scc0 L_p_matB
    ''')
    def body(mat):
        vm = Cnt(A, 'vmcnt', 63); lg = Cnt(A, 'lgkmcnt', 15)
        vm.add('f'); vm.add('f')
        pu, pv = (24, 26) if mat == 0 else (28, 30)
        addps(A, sU, pu, 20)
        if mat == 0:
            addps(A, sV, pv, 21)
            A.I(f's_lshl_b32 s20, {s(sW)}, 4')
            for b in range(4):
                A.I(f'''
                v_add_u32 v5, {2*(b&1)}, v3
                v_lshlrev_b32 v6, 2, v5
                v_xor_b32 v6, v6, v4
                v_xor_b32 v6, {(b>>1)<<1}, v6
                v_add3_u32 v5, s20, v5, {8*(b>>1)}
                v_lshlrev_b32 v5, 13, v5
                v_lshl_add_u32 {v(VB+b)}, v6, 4, v5
                ''')
            A.I(f'''
            s_lshr_b32 s21, {s(sW)}, 1
            s_lshl_b32 s21, s21, 5
            v_lshrrev_b32 v5, 2, v1
            v_and_b32 v6, 3, v1
            v_lshl_add_u32 v5, v5, 3, v6
            v_add_u32 v5, s21, v5
            v_lshlrev_b32 v5, 9, v5
            ''')
            for b in range(4): A.I(f'v_add_u32 {v(VR+b)}, {v(VR+b)}, v5')
        else:
            A.I(f's_mul_i32 s21, {s(sH)}, {256*896}\n s_mul_i32 s22, {s(sW)}, {64*896}\n s_add_u32 s21, s21, s22')
            addps(A, sV, pv, 21)
            A.I(f'''
            v_lshrrev_b32 v5, 3, v0
            v_and_b32 v6, 7, v0
            v_bfe_u32 v7, v0, 4, 1
            v_lshlrev_b32 v7, 1, v7
            v_xor_b32 v6, v6, v7
            v_mul_u32_u24 v5, 896, v5
            v_lshl_add_u32 {v(VB)}, v6, 4, v5
            v_xor_b32 v6, 4, v6
            v_lshl_add_u32 {v(VB+1)}, v6, 4, v5
            v_add_u32 {v(VB+1)}, {8*896}, {v(VB+1)}
            v_bfe_u32 v5, v0, 2, 2
            v_lshl_add_u32 v6, v2, 3, v5
            v_lshlrev_b32 v6, 7, v6
            v_and_b32 v7, 1, v0
            v_lshl_add_u32 v6, v7, 3, v6
            v_and_b32 v5, 2, v5
            v_and_b32 v7, 1, v2
            v_lshl_add_u32 v5, v7, 2, v5
            v_bfe_u32 v7, v0, 1, 1
            v_xor_b32 v5, v5, v7
            s_lshr_b32 s21, {s(sW)}, 1
            s_lshl_b32 s21, s21, 2
            v_xor_b32 v5, s21, v5
            v_lshl_add_u32 {v(VR)}, v5, 4, v6
            v_xor_b32 v5, 2, v5
            v_lshl_add_u32 {v(VR+1)}, v5, 4, v6
            ''')
        def dma(vaddr, base, buf, kk, tag):
            A.I(f's_add_u32 m0, {s(sB)}, {buf*32768 + kk*1024}')
            A.I(f'global_load_lds_dwordx4 {v(vaddr)}, {s(base,2)} {LDNT}'); vm.add(tag)
        def dmaU():
            for kk in range(8):
                if kk == 4: addp(A, sU, sU, 65536)
                dma(VA + (kk & 3), sU, 4, kk, 'U')
        def dmaV(cc):
            buf = cc % 5
            if mat == 0:
                addp(A, 22, sV, 32768)
                for kk in range(8): dma(VB + (kk & 1) + 2 * (kk >> 2), 22 if kk & 2 else sV, buf, kk, ('V', cc))
                addp(A, sV, sV, 64 * 8192)
            else:
                A.I(f's_mov_b64 s[22:23], {s(sV,2)}')
                for kk in range(8):
                    dma(VB + (kk & 1), 22, buf, kk, ('V', cc))
                    if kk & 1 and kk < 7: addp(A, 22, 22, 16 * 896)
                addp(A, sV, sV, 128)
        dmaU()
        for cc in range(4): dmaV(cc)
        vm.wait('U'); A.I('s_barrier')
        for tp in range(2):
            for kk in range(8):
                A.I(f'ds_read_b128 {v(UF + 32*tp + 4*kk, 4)}, {v(VU + (kk&3))} offset:{(kk>>2)*256 + tp*8192}')
            A.I('s_waitcnt lgkmcnt(0)')
        nreg = 4 if mat == 0 else 2
        for cc in range(7):
            buf = cc % 5
            for b in range(nreg): A.I(f'v_add_u32 {v(VV+b)}, {buf*32768}, {v(VR+b)}')
            vm.wait(('V', cc)); A.I('s_barrier')
            if cc < 3: dmaV(cc + 4)
            def rd(kk):
                r = RING + 8 * (kk % 3)
                for y in range(2):
                    if mat == 0:
                        A.I(f'ds_read_b128 {v(r+4*y,4)}, {v(VV+(kk&3))} offset:{(kk>>2)*256 + y*2048}'); lg.add((kk, y))
                    else:
                        for hi in range(2):
                            A.I(f'ds_read_b64_tr_b16 {v(r+4*y+2*hi,2)}, {v(VV+y)} offset:{kk*4096 + hi*512}'); lg.add((kk, y))
            rd(0); rd(1)
            for kk in range(8):
                r = RING + 8 * (kk % 3)
                for y in range(2):
                    lg.wait((kk, y))
                    for tp in range(2):
                        acc = v(ACC + 8*tp + 4*y, 4)
                        A.I(f'v_mfma_f32_16x16x32_bf16 {acc}, {v(UF+32*tp+4*kk,4)}, {v(r+4*y,4)}, {acc if kk else 0}')
                        if y == 0 and tp == 0 and kk + 2 < 8: rd(kk + 2)
            o = OUT + 8 * (cc & 1)
            for tp in range(2):
                for k in range(2):
                    for y in range(2):
                        A.I(f'v_cvt_pk_bf16_f32 {v(o+4*tp+2*k+y)}, {v(ACC+8*tp+4*y+2*k)}, {v(ACC+8*tp+4*y+2*k+1)}')
            A.I(f'global_store_dwordx4 {v(vO)}, {v(o,4)}, {s(sO,2)}'); vm.add('st')
            A.I(f'global_store_dwordx4 {v(vO)}, {v(o+4,4)}, {s(sO,2)} offset:1024'); vm.add('st')
            addp(A, sO, sO, 2 * 14 * 2048)
        A.I('s_endpgm')
    body(0)
    A.label('L_p_matB')
    body(1)
    A.label('L_p_x')
    sX, sXI, sXD, sG, sI = 10, 12, 14, 16, 18
    GW, D = 40, 72
    A.I(f'''
    s_load_dwordx4 s[32:35], s[0:1], {KA_X}
    s_load_dwordx2 s[36:37], s[0:1], {KA_GW}
    s_sub_u32 s21, s21, 28
    s_lshl_b32 s21, s21, 3
    s_add_u32 {s(sI)}, s21, s20
    s_mul_i32 s20, {s(sI)}, {2*XI_SEG}
    s_mul_i32 s21, {s(sW)}, 7168
    s_add_u32 s22, s20, s21
    s_waitcnt lgkmcnt(0)
    ''')
    addps(A, sX, 32, 22)
    addp(A, sXI, sWS, XI_OFF); addps(A, sXI, sXI, 22)
    addp(A, sXD, sWS, XD_OFF); addps(A, sXD, sXD, 22)
    A.I(f'v_lshlrev_b32 v3, 4, v0')
    for sg in range(2):
        for k in range(7):
            A.I(f's_add_u32 m0, s21, {sg*32768 + k*1024 - (k%4)*1024}')
            A.I(f'global_load_lds_dwordx4 v3, {s(sX,2)} offset:{(k%4)*1024}')
            if k == 3: addp(A, sX, sX, 4096)
        addp(A, sX, sX, XI_SEG - 4096)
    A.I('v_and_b32 v4, 7, v0\n v_lshlrev_b32 v5, 4, v4')
    for i in range(7): A.I(f'global_load_dwordx4 {v(GW+4*i,4)}, v5, s[36:37] offset:{128*i}')
    A.I(f'''
    v_mov_b32 v8, 0
    v_mov_b32 v9, 0
    s_lshl_b32 s22, {s(sI)}, 9
    v_lshl_add_u32 v6, v0, 3, s22
    s_lshl_b32 s22, {s(sI)}, 7
    v_and_b32 v7, 31, v0
    v_lshl_add_u32 v7, v7, 2, s22
    ''')
    addp(A, 22, sWS, FL_OFF); A.I('global_store_dwordx2 v6, v[8:9], s[22:23]')
    addp(A, 22, sWS, XCC_OFF); A.I('global_store_dword v7, v8, s[22:23]')
    A.I(f's_cmp_lg_u32 {s(sI)}, 0\n s_cbranch_scc1 L_p_nomem')
    addp(A, 22, sWS, MEMS_OFF)
    A.I(f's_mul_i32 s30, {s(sW)}, 112')
    for k in range(2):
        A.I(f'''
        v_min_u32 v6, {63 if k == 0 else 47}, v0
        v_add3_u32 v6, v6, s30, {64*k}
        v_and_b32 v7, 7, v6
        v_mul_u32_u24 v7, 896, v7
        v_lshrrev_b32 v10, 3, v6
        v_lshl_add_u32 v7, v10, 4, v7
        global_load_dwordx4 v[12:15], v7, s[34:35]
        v_lshlrev_b32 v6, 4, v6
        s_waitcnt vmcnt(0)
        ''')
        for r in range(4): A.I(f'v_cmp_eq_u32 vcc, {SENT}, {v(12+r)}\n v_cndmask_b32 {v(12+r)}, {v(12+r)}, -1, vcc')
        A.I('global_store_dwordx4 v6, v[12:15], s[22:23]')
    A.label('L_p_nomem')
    A.I(f'''
    v_mul_u32_u24 v6, 896, v1
    v_lshl_add_u32 v7, v2, 3, v6
    v_lshl_add_u32 v6, v2, 4, v6
    v_lshrrev_b32 v10, 3, v0
    v_lshl_add_u32 v11, {s(sW)}, 3, v10
    v_mul_u32_u24 v12, 896, v11
    v_add_u32 v12, v12, v5
    v_lshlrev_b32 v11, 2, v11
    s_lshl_b32 s22, {s(sI)}, 8
    s_waitcnt vmcnt(0)
    s_barrier
    ''')
    addp(A, sG, sWS, G_OFF); addps(A, sG, sG, 22)
    for sg in range(2):
        for k in range(7):
            A.I(f'''
            s_mul_i32 s22, {s(sW)}, 7
            s_add_u32 s22, s22, {k}
            s_and_b32 s23, s22, 1
            s_mul_i32 s23, s23, 14336
            s_lshr_b32 s22, s22, 1
            s_lshl_b32 s22, s22, 6
            s_add_u32 s22, s22, s23
            s_add_u32 s22, s22, {sg*32768}
            v_add_u32 v13, s22, v6
            v_add_u32 v14, s22, v7
            ds_read_b128 {v(D+8*k,4)}, v13
            ds_read2_b64 {v(D+8*k+4,4)}, v14 offset0:0 offset1:4
            ''')
        A.I('s_waitcnt lgkmcnt(0)')
        for k in range(7):
            A.I(f'global_store_dwordx4 v3, {v(D+8*k,4)}, {s(sXI,2)} offset:{(k%4)*1024}')
            A.I(f'global_store_dwordx4 v3, {v(D+8*k+4,4)}, {s(sXD,2)} offset:{(k%4)*1024}')
            if k == 3: addp(A, sXI, sXI, 4096); addp(A, sXD, sXD, 4096)
        addp(A, sXI, sXI, XI_SEG - 4096); addp(A, sXD, sXD, XI_SEG - 4096)
        X = 140
        for i in range(7): A.I(f'ds_read_b128 {v(X+4*i,4)}, v12 offset:{sg*32768 + 128*i}')
        A.I('v_mov_b32 v16, 0\n v_mov_b32 v17, 0\n s_waitcnt lgkmcnt(0)')
        for i in range(28):
            A.I(f'''
            v_lshlrev_b32 v18, 16, {v(X+i)}
            v_lshlrev_b32 v19, 16, {v(GW+i)}
            v_fmac_f32 v16, v18, v19
            v_and_b32 v18, 0xffff0000, {v(X+i)}
            v_and_b32 v19, 0xffff0000, {v(GW+i)}
            v_fmac_f32 v17, v18, v19
            ''')
        A.I(f'''
        v_add_f32 v16, v16, v17
        v_add_f32_dpp v16, v16, v16 quad_perm:[1,0,3,2] row_mask:0xf bank_mask:0xf
        v_add_f32_dpp v16, v16, v16 quad_perm:[2,3,0,1] row_mask:0xf bank_mask:0xf
        v_add_f32_dpp v16, v16, v16 row_half_mirror row_mask:0xf bank_mask:0xf
        v_mul_f32 v16, {f32(-1.4426950408889634)}, v16
        v_exp_f32 v16, v16
        v_add_f32 v16, 1.0, v16
        v_rcp_f32 v16, v16
        global_store_dword v11, v16, {s(sG,2)} offset:{sg*128}
        ''')
    A.label('L_p_end')
    A.I('s_endpgm')
    return A

if __name__ == '__main__':
    print(prep_kernel().text())
```

```python
from common import *
BUDGET = 1 << 20
sH, sW, sSEG, sBUD, sSENT = 3, 4, 5, 6, 7
sWS = 8
sA, sB_, sC_, sD, sE, sF = 10, 12, 14, 16, 18, 20
sREP, sLB, sPAR = 22, 23, 24
sM0, sM1 = 26, 28
T0 = 40

def wave_setup(A):
    A.I(f'''
    v_lshrrev_b32 v1, 6, v0
    v_and_b32 v0, 63, v0
    v_readfirstlane_b32 {s(sW)}, v1
    v_and_b32 v1, 15, v0
    v_lshrrev_b32 v2, 4, v0
    v_lshlrev_b32 v3, 4, v0
    s_mov_b32 {s(sBUD)}, 0
    s_mov_b32 {s(sSENT)}, {SENT}
    ''')

def budget(A):
    A.I(f's_add_u32 {s(sBUD)}, {s(sBUD)}, 1\n s_cmp_gt_u32 {s(sBUD)}, {BUDGET}\n s_cbranch_scc1 L_bail')

def p0p3(A, d0, d3):
    A.I(f'''
    s_and_b32 s46, {s(sW)}, 1
    s_lshr_b32 {s(d3)}, {s(sW)}, 1
    s_mul_i32 {s(d3)}, {s(d3)}, 7
    s_lshl_b32 {s(d0)}, s46, 2
    s_add_u32 {s(d0)}, {s(d0)}, {s(d3)}
    s_add_u32 {s(d3)}, {s(d3)}, 3
    s_sub_u32 {s(sPAR)}, 0, s46
    s_mov_b32 {s(sPAR+1)}, {s(sPAR)}
    ''')

WV, WS_ = 176, 120
def wtile(t, j):
    if t == 6: return v(WS_ + 4 * j, 4)
    k = (t * 14 + j) * 4
    return a_(k, 4) if k < 256 else v(WV + k - 256, 4)
def wmov(t, j, r):
    k = (t * 14 + j) * 4 + r
    return ('v_accvgpr_write_b32', a_(k)) if k < 256 else ('v_mov_b32', v(WV + k - 256))

def load_head(A, mat):
    p0p3(A, 40, 41)
    A.I(f'''
    s_mul_i32 s42, {s(sH)}, {MF_HEAD}
    s_mul_i32 s43, s40, {14*2048}
    s_add_u32 s43, s43, s42
    s_mul_i32 s44, s41, {14*2048}
    s_add_u32 s44, s44, s42
    ''')
    addp(A, sA, sWS, MF_OFF + mat * MF_MAT); addps(A, sB_, sA, 44); addps(A, sA, sA, 43)
    vm = Cnt(A, 'vmcnt', 63)
    ST, N = 32, 11
    blocks = [(L, j) for L in range(4) for j in range(14)]
    def issue(i):
        L, j = blocks[i]; r = ST + 8 * (i % N); base = sA if L < 3 else sB_
        o = (j & 1) * 2048
        A.I(f'global_load_dwordx4 {v(r,4)}, v3, {s(base,2)} offset:{o}'); vm.add(i)
        A.I(f'global_load_dwordx4 {v(r+4,4)}, v3, {s(base,2)} offset:{o+1024}'); vm.add(i)
        if j & 1: addp(A, base, base, 4096)
    for i in range(N): issue(i)
    for i, (L, j) in enumerate(blocks):
        vm.wait(i); r = ST + 8 * (i % N)
        if L < 3:
            for k in range(8):
                op, d = wmov(2 * L + (k & 1), j, k >> 1); A.I(f'{op} {d}, {v(r+k)}')
        else:
            for k in range(4): A.I(f'v_cndmask_b32 {v(WS_+4*j+k)}, {v(r+2*k)}, {v(r+2*k+1)}, {s(sPAR,2)}')
        if i + N < len(blocks): issue(i + N)

def xdma(A, ptr, toggle=True):
    for k in range(7):
        A.I(f's_add_u32 m0, {s(sLB)}, {k*1024 - (k%4)*1024}')
        A.I(f'global_load_lds_dwordx4 v3, {s(ptr,2)} offset:{(k%4)*1024}')
        if k == 3: addp(A, ptr, ptr, 4096)
    addp(A, ptr, ptr, 4 * XI_SEG - 4096)

def xsetup(A, ptr):
    A.I(f'''
    s_mul_i32 {s(sLB)}, {s(sW)}, 7168
    s_mul_i32 s40, {s(sREP)}, {XI_SEG}
    s_add_u32 s40, s40, {s(sLB)}
    s_mov_b32 {s(sSEG)}, {s(sREP)}
    ''')
    addp(A, ptr, sWS, XD_OFF); addps(A, ptr, ptr, 40)

def gemm(A, ntile, wt, acc, ring, vX, offs, wfirst, extra=None):
    lg = Cnt(A, 'lgkmcnt', 15)
    def rd(j, tt):
        A.I(f'ds_read_b128 {v(ring + 8*(j%3) + 4*tt, 4)}, {v(vX)} offset:{j*2048 + offs[tt]}'); lg.add((j, tt))
    for j in range(2): rd(j, 0); rd(j, 1)
    n = 0
    for j in range(14):
        for tt in range(2):
            lg.wait((j, tt))
            x = v(ring + 8*(j%3) + 4*tt, 4)
            for t in range(ntile):
                d = v(acc + 8*t + 4*tt, 4)
                a, b = (wt(t, j), x) if wfirst else (x, wt(t, j))
                A.I(f'v_mfma_f32_16x16x32_bf16 {d}, {a}, {b}, {d if j else 0}')
                if t == 0 and j + 2 < 14: rd(j + 2, tt)
                if extra: extra(n)
                n += 1

def flag_store(A, ptr, vOne, vZero):
    A.I(f'global_store_dword {v(vZero)}, {v(vOne)}, {s(ptr,2)} sc1')

def mem_fetch(A, tag, ptr, vG, D, lds):
    A.I(f'''
L_{tag}_mf:
    global_load_dwordx4 {v(D,4)}, {v(vG)}, {s(ptr,2)} sc1
    global_load_dwordx4 {v(D+4,4)}, {v(vG+1)}, {s(ptr,2)} sc1
    ''')
    budget(A)
    A.I(f'''
    s_waitcnt vmcnt(0)
    v_max3_u32 {v(D+8)}, {v(D)}, {v(D+1)}, {v(D+2)}
    v_max3_u32 {v(D+8)}, {v(D+8)}, {v(D+3)}, {v(D+4)}
    v_max3_u32 {v(D+8)}, {v(D+8)}, {v(D+5)}, {v(D+6)}
    v_max_u32 {v(D+8)}, {v(D+8)}, {v(D+7)}
    v_cmp_eq_u32 vcc, {s(sSENT)}, {v(D+8)}
    s_cbranch_vccz L_{tag}_mg
    s_sleep 4
    s_branch L_{tag}_mf
L_{tag}_mg:
    ds_write_b128 {v(vG)}, {v(D,4)} offset:{lds}
    ds_write_b128 {v(vG+1)}, {v(D+4,4)} offset:{lds}
    s_waitcnt lgkmcnt(0)
    s_barrier
    ''')

def mem_fetch_setup(A, vG):
    A.I(f'''
    s_mul_i32 s40, {s(sW)}, 1792
    v_add_u32 {v(vG)}, s40, v3
    v_min_u32 {v(vG+1)}, 47, v0
    v_lshlrev_b32 {v(vG+1)}, 4, {v(vG+1)}
    v_add3_u32 {v(vG+1)}, {v(vG+1)}, s40, s40
    v_subrev_u32 {v(vG+1)}, s40, {v(vG+1)}
    v_add_u32 {v(vG+1)}, 1024, {v(vG+1)}
    ''')

def tokv(A):
    ACC, RING, O = 64, 32, 8
    vX, vXc, vOne, vZero, vG, vMA, vWT = 4, 5, 6, 7, 56, 58, 59
    L_MEM = 57344
    sX, sVO, sVS, sFL, sMT, sWT = sA, sB_, sC_, sD, sE, sF
    A.label('L_tokv')
    wave_setup(A)
    load_head(A, 1)
    xsetup(A, sX); xdma(A, sX)
    p0p3(A, 40, 41)
    A.I(f'''
    s_mul_i32 s42, {s(sREP)}, {14*VX_SC}
    s_lshl_b32 s43, {s(sH)}, 11
    s_add_u32 s42, s42, s43
    s_lshl_b32 s43, s40, 15
    s_add_u32 s43, s43, s42
    s_lshl_b32 s44, s41, 15
    s_add_u32 s44, s44, s42
    s_and_b32 s45, {s(sW)}, 1
    s_lshl_b32 s45, s45, 10
    s_add_u32 s44, s44, s45
    v_lshrrev_b32 v8, 3, v1
    v_lshlrev_b32 v8, 10, v8
    v_lshl_add_u32 v8, v2, 8, v8
    v_and_b32 v9, 7, v0
    v_lshl_add_u32 {v(vX)}, v9, 4, v8
    v_mov_b32 {v(vOne)}, 1
    v_mov_b32 {v(vZero)}, 0
    ''')
    addp(A, sVO, sWS, VX_OFF); addps(A, sVS, sVO, 44); addps(A, sVO, sVO, 43)
    A.I(f's_lshl_b32 s42, {s(sREP)}, 8\n s_lshl_b32 s43, {s(sH)}, 2\n s_add_u32 s42, s42, s43')
    addp(A, sFL, sWS, FL_OFF); addps(A, sFL, sFL, 42)
    A.I(f'v_mov_b32 {v(vXc)}, {v(vX)}')
    A.label('L_tv_item')
    A.I(f'''
    s_waitcnt vmcnt(0)
    s_barrier
    s_cmp_lt_u32 {s(sSEG)}, 4
    s_cbranch_scc1 L_tv_nofl
    ''')
    flag_store(A, sFL, vOne, vZero); addp(A, sFL, sFL, 1024)
    A.label('L_tv_nofl')
    A.I(f'''
    s_cmp_ge_u32 {s(sSEG)}, 64
    s_cbranch_scc1 L_tv_w
    s_xor_b32 {s(sLB)}, {s(sLB)}, 0x8000
    s_cmp_ge_u32 {s(sSEG)}, 60
    s_cbranch_scc1 L_tv_nox
    ''')
    xdma(A, sX)
    A.label('L_tv_nox')
    gemm(A, 7, wtile, ACC, RING, vXc, [0, 128], False)
    A.I(f'v_xor_b32 {v(vXc)}, 0x8000, {v(vXc)}')
    for t in range(7):
        o = O + 4 * (t % 4)
        for k in range(2):
            for tt in range(2):
                A.I(f'v_cvt_pk_bf16_f32 {v(o+2*k+tt)}, {v(ACC+8*t+4*tt+2*k)}, {v(ACC+8*t+4*tt+2*k+1)}')
        if t < 6:
            if t == 2: addp(A, 40, sVO, 32768)
            if t == 4: addp(A, 40, 40, 32768)
            A.I(f'global_store_dwordx4 v3, {v(o,4)}, {s(sVO if t < 2 else 40,2)} offset:{(t&1)*1024} sc1')
        else: A.I(f'global_store_dwordx4 v3, {v(o,4)}, {s(sVS,2)} sc1')
    addp(A, sVO, sVO, 4 * 14 * VX_SC); addp(A, sVS, sVS, 4 * 14 * VX_SC)
    A.I(f's_add_u32 {s(sSEG)}, {s(sSEG)}, 4\n s_branch L_tv_item')
    A.label('L_tv_w')
    mem_fetch_setup(A, vG)
    p0p3(A, 40, 41)
    A.I(f'''
    s_mov_b32 {s(sSEG)}, {s(sREP)}
    v_lshrrev_b32 v8, 1, v2
    v_lshlrev_b32 v8, 7, v8
    v_and_b32 v9, 7, v0
    v_lshl_add_u32 v8, v9, 4, v8
    v_and_b32 v9, 1, v2
    v_lshl_add_u32 v8, v9, 3, v8
    v_add_u32 {v(vMA)}, {L_MEM}, v8
    s_and_b32 s42, {s(sH)}, 3
    s_lshl_b32 s42, s42, 8
    v_lshl_add_u32 v8, v1, 4, s42
    v_lshl_add_u32 {v(vWT)}, v9, 3, v8
    s_mul_i32 s42, {s(sREP)}, {WT_SEG}
    s_lshr_b32 s43, {s(sH)}, 2
    s_mul_i32 s43, s43, {28*1024}
    s_add_u32 s42, s42, s43
    s_lshl_b32 s43, s40, 11
    s_add_u32 s43, s43, s42
    s_lshl_b32 s44, s41, 11
    s_add_u32 s44, s44, s42
    s_and_b32 s45, {s(sW)}, 1
    s_lshl_b32 s45, s45, 10
    s_add_u32 s44, s44, s45
    ''')
    addp(A, sVO, sWS, WT_OFF); addps(A, sVS, sVO, 44); addps(A, sVO, sVO, 43)
    A.I(f's_lshl_b32 s42, {s(sREP)}, 8\n s_lshl_b32 s43, {s(sH)}, 2\n s_add_u32 s42, s42, s43')
    addp(A, sFL, sWS, FL_OFF + 128); addps(A, sFL, sFL, 42)
    A.I(f's_lshl_b32 s42, {s(sREP)}, 13')
    addp(A, sMT, sWS, MEMT_OFF); addps(A, sMT, sMT, 42)
    A.label('L_tw_item')
    mem_fetch(A, 'tw', sMT, vG, 8, L_MEM)
    lg = Cnt(A, 'lgkmcnt', 15)
    def rd(j):
        A.I(f'ds_read2_b64 {v(RING+4*(j%4),4)}, {v(vMA)} offset0:{(j%3)*64} offset1:{(j%3)*64+32}'); lg.add(j)
        if j % 3 == 2: A.I(f'v_add_u32 {v(vMA)}, 1536, {v(vMA)}')
    for j in range(3): rd(j)
    for j in range(14):
        lg.wait(j)
        for t in range(7):
            d = v(ACC + 4*t, 4)
            A.I(f'v_mfma_f32_16x16x32_bf16 {d}, {v(RING+4*(j%4),4)}, {wtile(t,j)}, {d if j else 0}')
            if t == 0 and j + 3 < 14: rd(j + 3)
    A.I(f'v_subrev_u32 {v(vMA)}, {4*1536}, {v(vMA)}')
    A.I('s_mov_b32 exec_hi, 0')
    for t in range(7):
        o = O + 2 * t
        for k in range(2): A.I(f'v_cvt_pk_bf16_f32 {v(o+k)}, {v(ACC+4*t+2*k)}, {v(ACC+4*t+2*k+1)}')
        if t == 4: addp(A, 40, sVO, 4096)
        if t < 6: A.I(f'global_store_dwordx2 {v(vWT)}, {v(o,2)}, {s(sVO if t < 4 else 40,2)} offset:{(t%4)*1024} sc1')
        else: A.I(f'global_store_dwordx2 {v(vWT)}, {v(o,2)}, {s(sVS,2)} sc1')
    A.I('s_mov_b64 exec, -1\n s_waitcnt vmcnt(0)\n s_barrier')
    flag_store(A, sFL, vOne, vZero)
    addp(A, sFL, sFL, 1024); addp(A, sMT, sMT, 4 * MEM_SLOT); addp(A, sVO, sVO, 4 * WT_SEG); addp(A, sVS, sVS, 4 * WT_SEG)
    A.I(f's_add_u32 {s(sSEG)}, {s(sSEG)}, 4\n s_cmp_lt_u32 {s(sSEG)}, 64\n s_cbranch_scc1 L_tw_item\n s_endpgm')

def tokt(A):
    ACC, RING = 64, 32
    TB = 8
    vX, vXc, vOne, vZero, vG, vMB0, vMB1, vSW, vSR0, vSR1, vPX, vXI0, vXI1 = 4, 5, 6, 7, 56, 58, 59, 60, 61, 62, 63, 4, 1
    vGT = 2
    L_MEM, L_SB = 61440, 61440 + 8192
    SBW = 32 * 176
    sX, sXI, sPX, sFL, sMT, sG = sA, sB_, sC_, sD, sE, sF
    sK = 48
    sCC, sM5, sMK0 = 30, 32, 34
    A.label('L_tokt')
    wave_setup(A)
    load_head(A, 0)
    xsetup(A, sX); xdma(A, sX)
    mem_fetch_setup(A, vG)
    p0p3(A, 40, 41)
    A.I(f'''
    v_mov_b32 {v(vXc)}, v3
    v_mov_b32 {v(vOne)}, 1
    v_mov_b32 {v(vZero)}, 0
    s_lshl_b32 s42, s40, 11
    v_add_u32 {v(vXI0)}, s42, v3
    s_lshl_b32 s42, s41, 11
    s_and_b32 s45, {s(sW)}, 1
    s_lshl_b32 s45, s45, 3
    s_add_u32 s42, s42, s45
    v_add_u32 v20, s42, v3
    v_and_b32 v9, 7, v0
    v_lshlrev_b32 v8, 7, v2
    v_lshl_add_u32 v8, v9, 4, v8
    s_lshl_b32 s42, s40, 9
    s_add_u32 s42, s42, {L_MEM}
    v_add_u32 {v(vMB0)}, s42, v8
    s_lshl_b32 s42, s41, 9
    s_add_u32 s42, s42, s45
    s_add_u32 s42, s42, {L_MEM}
    v_add_u32 {v(vMB1)}, s42, v8
    s_mul_i32 s42, {s(sW)}, {SBW}
    s_add_u32 s42, s42, {L_SB}
    v_mul_u32_u24 v8, 176, v1
    v_lshl_add_u32 v8, v2, 4, v8
    v_add_u32 {v(vSW)}, s42, v8
    v_lshrrev_b32 v10, 3, v0
    v_lshl_add_u32 v10, {s(sW)}, 3, v10
    v_min_u32 v11, 4, v9
    v_subrev_u32 v11, 1, v11
    v_lshrrev_b32 v12, 1, v11
    v_and_b32 v13, 1, v11
    v_lshlrev_b32 v13, 2, v13
    v_lshl_add_u32 v13, v12, 4, v13
    v_lshlrev_b32 v14, 2, v13
    v_add_u32 v14, 32, v14
    v_add_u32 v15, 32, v14
    v_cmp_eq_u32 {s(sMK0,2)}, 0, v9
    v_cndmask_b32 v14, v14, 0, {s(sMK0,2)}
    v_cndmask_b32 v15, v15, 16, {s(sMK0,2)}
    v_mul_u32_u24 v8, 176, v10
    v_add_u32 v8, {L_SB}, v8
    v_add_u32 {v(vSR0)}, v8, v14
    v_add_u32 {v(vSR1)}, v8, v15
    v_lshlrev_b32 {v(vGT)}, 2, v10
    v_mov_b32 {v(vXI1)}, v20
    v_cmp_gt_u32 {s(sM5,2)}, 5, v9
    ''')
    for i in range(8):
        A.I(f'''
        v_add_u32 v8, {8*(i>>2) + (i&3)}, v13
        v_cmp_le_u32 vcc, v8, v10
        s_or_b64 vcc, vcc, {s(sMK0,2)}
        s_and_b64 {s(sK+2*i,2)}, vcc, {s(sM5,2)}
        ''')
    A.I(f'''
    s_and_b32 s42, {s(sH)}, 3
    v_mov_b32 v8, s42
    v_cndmask_b32 v12, v11, v8, {s(sMK0,2)}
    v_cndmask_b32 v8, v8, 4, {s(sMK0,2)}
    v_lshrrev_b32 v14, 4, v10
    v_lshl_add_u32 v8, v8, 1, v14
    v_lshlrev_b32 v8, 10, v8
    v_and_b32 v14, 15, v10
    v_lshl_add_u32 v14, v12, 4, v14
    v_lshl_add_u32 {v(vPX)}, v14, 4, v8
    s_mov_b32 {s(sCC)}, {f32(1.4426950408889634/16)}
    s_mul_i32 s42, {s(sREP)}, {PX_SEG}
    s_lshr_b32 s43, {s(sH)}, 2
    s_mul_i32 s43, s43, 10240
    s_add_u32 s42, s42, s43
    ''')
    addp(A, sPX, sWS, PX_OFF); addps(A, sPX, sPX, 42)
    A.I(f's_mul_i32 s42, {s(sREP)}, {XI_SEG}'); addp(A, sXI, sWS, XI_OFF); addps(A, sXI, sXI, 42)
    A.I(f's_lshl_b32 s42, {s(sREP)}, 8\n s_lshl_b32 s43, {s(sH)}, 2\n s_add_u32 s42, s42, s43')
    addp(A, sFL, sWS, FL_OFF + 64); addps(A, sFL, sFL, 42)
    A.I(f's_lshl_b32 s42, {s(sREP)}, 13'); addp(A, sMT, sWS, MEMT_OFF); addps(A, sMT, sMT, 42)
    A.I(f's_lshl_b32 s42, {s(sREP)}, 7'); addp(A, sG, sWS, G_OFF); addps(A, sG, sG, 42)
    A.label('L_tt_item')
    A.I(f'''
    s_waitcnt vmcnt(0)
    s_barrier
    s_xor_b32 {s(sLB)}, {s(sLB)}, 0x8000
    s_cmp_ge_u32 {s(sSEG)}, 60
    s_cbranch_scc1 L_tt_nox
    ''')
    xdma(A, sX)
    A.label('L_tt_nox')
    gemm(A, 7, wtile, ACC, RING, vXc, [0, 1024], True)
    A.I(f'v_xor_b32 {v(vXc)}, 0x8000, {v(vXc)}')
    for tt in range(2):
        for t in range(7):
            for k in range(2):
                d = TB + 8*(t>>1) + 4*tt + 2*(t&1) + k if t < 6 else TB + 24 + 2*tt + k
                A.I(f'v_cvt_pk_bf16_f32 {v(d)}, {v(ACC+8*t+4*tt+2*k)}, {v(ACC+8*t+4*tt+2*k+1)}')
    XF, MB, SA, vGV = 64, 36, 96, 0
    addp(A, 40, sXI, 4096)
    for L in range(3):
        for t in range(2):
            A.I(f'global_load_dwordx4 {v(XF+8*L+4*t,4)}, {v(vXI0)}, {s(sXI if L < 2 else 40,2)} offset:{(L&1)*2048+t*1024}')
    for t in range(2): A.I(f'global_load_dwordx2 {v(XF+24+2*t,2)}, {v(vXI1)}, {s(sXI,2)} offset:{t*1024}')
    A.I(f'global_load_dword {v(vGV)}, {v(vGT)}, {s(sG,2)}\n s_waitcnt vmcnt(0)')
    def smm(a4, a2, tt, d):
        for L in range(3): A.I(f'v_mfma_f32_16x16x32_bf16 {v(d,4)}, {v(a4(L),4)}, {v(TB+8*L+4*tt,4)}, {v(d,4) if L else 0}')
        A.I(f'v_mfma_f32_16x16x16_bf16 {v(d,4)}, {v(a2,2)}, {v(TB+24+2*tt,2)}, {v(d,4)}')
    smm(lambda L: XF + 8*L, XF + 24, 0, SA); smm(lambda L: XF + 8*L, XF + 24, 1, SA + 4); smm(lambda L: XF + 8*L + 4, XF + 26, 1, SA + 8)
    mem_fetch(A, 'tt', sMT, vG, 64, L_MEM)
    for L in range(3): A.I(f'ds_read_b128 {v(MB+4*L,4)}, {v(vMB0)} offset:{L*512}')
    A.I(f'ds_read_b64 {v(MB+12,2)}, {v(vMB1)}\n s_waitcnt lgkmcnt(0)')
    smm(lambda L: MB + 4*L, MB + 12, 0, SA + 12); smm(lambda L: MB + 4*L, MB + 12, 1, SA + 16)
    A.I(f'''
    ds_write_b128 {v(vSW)}, {v(SA+12,4)}
    ds_write_b128 {v(vSW)}, {v(SA+16,4)} offset:{16*176}
    ds_write_b128 {v(vSW)}, {v(SA,4)} offset:32
    ds_write_b128 {v(vSW)}, {v(SA+4,4)} offset:{16*176+32}
    ds_write_b128 {v(vSW)}, {v(SA+8,4)} offset:{16*176+96}
    s_waitcnt lgkmcnt(0)
    s_barrier
    ''')
    Z, M = 64, 36
    for k in range(4):
        A.I(f'ds_read_b128 {v(Z+8*k,4)}, {v(vSR0)} offset:{k*SBW}\n ds_read_b128 {v(Z+8*k+4,4)}, {v(vSR1)} offset:{k*SBW}')
    A.I(f'v_mov_b32 {v(M+1)}, 0xff800000\n s_waitcnt lgkmcnt(0)')
    for a, b in ((0, 8), (16, 24), (0, 16)):
        for k in range(0, 8, 2): A.I(f'v_pk_add_f32 {v(Z+a+k,2)}, {v(Z+a+k,2)}, {v(Z+b+k,2)}')
    for i in range(8): A.I(f'v_cndmask_b32 {v(Z+i)}, {v(M+1)}, {v(Z+i)}, {s(sK+2*i,2)}')
    red = ['quad_perm:[1,0,3,2] row_mask:0xf bank_mask:0xf', 'quad_perm:[2,3,0,1] row_mask:0xf bank_mask:0xf', 'row_half_mirror row_mask:0xf bank_mask:0xf']
    A.I(f'''
    v_max3_f32 {v(M)}, {v(Z)}, {v(Z+1)}, {v(Z+2)}
    v_max3_f32 {v(M)}, {v(M)}, {v(Z+3)}, {v(Z+4)}
    v_max3_f32 {v(M)}, {v(M)}, {v(Z+5)}, {v(Z+6)}
    v_max_f32 {v(M)}, {v(M)}, {v(Z+7)}
    ''')
    for r in red: A.I(f'v_max_f32_dpp {v(M)}, {v(M)}, {v(M)} {r}')
    A.I(f'v_mul_f32 {v(M)}, {s(sCC)}, {v(M)}')
    for i in range(8): A.I(f'v_fma_f32 {v(Z+i)}, {v(Z+i)}, {s(sCC)}, -{v(M)}')
    for i in range(8): A.I(f'v_exp_f32 {v(Z+i)}, {v(Z+i)}')
    A.I(f'''
    v_pk_add_f32 {v(M,2)}, {v(Z,2)}, {v(Z+2,2)}
    v_pk_add_f32 {v(M+2,2)}, {v(Z+4,2)}, {v(Z+6,2)}
    v_pk_add_f32 {v(M,2)}, {v(M,2)}, {v(M+2,2)}
    v_add_f32 {v(M)}, {v(M)}, {v(M+1)}
    ''')
    for r in red: A.I(f'v_add_f32_dpp {v(M)}, {v(M)}, {v(M)} {r}')
    A.I(f'v_rcp_f32 {v(M)}, {v(M)}\n v_mul_f32 {v(M)}, {v(M)}, {v(vGV)}')
    for i in range(8): A.I(f'v_mul_f32 {v(Z+i)}, {v(Z+i)}, {v(M)}')
    O = Z + 8
    A.I(f'''
    v_cvt_pk_bf16_f32 {v(O)}, {v(Z)}, {v(Z+1)}
    v_cvt_pk_bf16_f32 {v(O+4)}, {v(Z+2)}, {v(Z+3)}
    v_cvt_pk_bf16_f32 {v(O+5)}, {v(Z+4)}, {v(Z+5)}
    v_cvt_pk_bf16_f32 {v(O+3)}, {v(Z+6)}, {v(Z+7)}
    v_cndmask_b32 {v(O+1)}, {v(O+5)}, {v(O+4)}, {s(sMK0,2)}
    v_cndmask_b32 {v(O+2)}, {v(O+4)}, {v(O+5)}, {s(sMK0,2)}
    s_mov_b64 exec, {s(sM5,2)}
    global_store_dwordx4 {v(vPX)}, {v(O,4)}, {s(sPX,2)} sc1
    s_mov_b64 exec, -1
    s_waitcnt vmcnt(0)
    s_barrier
    ''')
    flag_store(A, sFL, vOne, vZero)
    addp(A, sFL, sFL, 1024); addp(A, sMT, sMT, 4 * MEM_SLOT); addp(A, sPX, sPX, 4 * PX_SEG); addp(A, sXI, sXI, 4 * XI_SEG); addp(A, sG, sG, 512)
    A.I(f's_add_u32 {s(sSEG)}, {s(sSEG)}, 4\n s_cmp_lt_u32 {s(sSEG)}, 64\n s_cbranch_scc1 L_tt_item\n s_endpgm')

def load_tr(A, ptr, stride):
    vS, vR = 8, 9
    A.I(f'''
    s_mul_i32 s42, {s(sW)}, 28672
    v_lshrrev_b32 v10, 3, v0
    v_and_b32 v11, 7, v0
    v_lshrrev_b32 v12, 4, v0
    v_lshlrev_b32 v12, 1, v12
    v_xor_b32 v11, v11, v12
    v_mul_u32_u24 v10, {stride}, v10
    v_lshl_add_u32 {v(vS)}, v11, 4, v10
    v_bfe_u32 v10, v0, 2, 2
    v_lshl_add_u32 v11, v2, 2, v10
    v_lshlrev_b32 v11, 7, v11
    v_and_b32 v12, 1, v0
    v_lshl_add_u32 v11, v12, 3, v11
    v_add_u32 v11, s42, v11
    v_and_b32 v10, 2, v10
    v_and_b32 v12, 1, v2
    v_lshl_add_u32 v10, v12, 2, v10
    v_bfe_u32 v12, v0, 1, 1
    v_xor_b32 v10, v10, v12
    ''')
    for t in range(4):
        A.I(f'v_xor_b32 v12, {2*t}, v10\n v_lshl_add_u32 {v(13+t)}, v12, 4, v11')
    for half in range(2):
        for k in range(28):
            A.I(f's_add_u32 m0, s42, {k*1024}')
            A.I(f'global_load_lds_dwordx4 {v(vS)}, {s(ptr,2)}')
            addp(A, ptr, ptr, 8 * stride)
        A.I('s_waitcnt vmcnt(0)')
        for jj in range(7):
            j = 7 * half + jj
            for t in range(4):
                for hi in range(2):
                    A.I(f'ds_read_b64_tr_b16 {a_((t*14+j)*4+2*hi,2)}, {v(13+t)} offset:{jj*4096 + hi*2048}')
            A.I('s_waitcnt lgkmcnt(0)')

def at(t, j): return a_((t * 14 + j) * 4, 4)

def ffn1(A):
    ACC, RING = 64, 32
    vXc, vOne, vZero, vGT, vOG = 5, 6, 7, 4, 56
    sX, sW1, sHO, sFL, sG = sA, sB_, sC_, sD, sE
    A.label('L_ffn1')
    A.I(f's_load_dwordx2 {s(sW1,2)}, s[0:1], {KA_W1}')
    wave_setup(A)
    A.I(f's_lshl_b32 s40, {s(sH)}, 9\n s_lshl_b32 s41, {s(sW)}, 7\n s_add_u32 s40, s40, s41\n s_waitcnt lgkmcnt(0)')
    addps(A, sW1, sW1, 40)
    load_tr(A, sW1, 3584)
    A.I('s_barrier')
    xsetup(A, sX); xdma(A, sX)
    A.I(f'''
    v_mov_b32 {v(vXc)}, v3
    v_mov_b32 {v(vOne)}, 1
    v_mov_b32 {v(vZero)}, 0
    v_lshlrev_b32 {v(vGT)}, 2, v1
    s_mul_i32 s42, {s(sREP)}, {HI_SEG}
    s_lshl_b32 s43, {s(sH)}, 14
    s_add_u32 s42, s42, s43
    s_lshl_b32 s43, {s(sW)}, 12
    s_add_u32 s42, s42, s43
    ''')
    addp(A, sHO, sWS, HI_OFF); addps(A, sHO, sHO, 42)
    A.I(f's_lshl_b32 s42, {s(sREP)}, 8\n s_lshl_b32 s43, {s(sH)}, 2\n s_add_u32 s42, s42, s43')
    addp(A, sFL, sWS, FL_OFF + 192); addps(A, sFL, sFL, 42)
    A.I(f's_lshl_b32 s42, {s(sREP)}, 7'); addp(A, sG, sWS, G_OFF); addps(A, sG, sG, 42)
    A.label('L_f1_item')
    A.I(f'''
    s_waitcnt vmcnt(0)
    s_barrier
    s_cmp_lt_u32 {s(sSEG)}, 4
    s_cbranch_scc1 L_f1_nofl
    ''')
    flag_store(A, sFL, vOne, vZero); addp(A, sFL, sFL, 1024)
    A.label('L_f1_nofl')
    A.I(f'''
    s_cmp_ge_u32 {s(sSEG)}, 64
    s_cbranch_scc1 L_bail
    global_load_dword {v(vOG)}, {v(vGT)}, {s(sG,2)}
    global_load_dword {v(vOG+1)}, {v(vGT)}, {s(sG,2)} offset:64
    s_xor_b32 {s(sLB)}, {s(sLB)}, 0x8000
    s_cmp_ge_u32 {s(sSEG)}, 60
    s_cbranch_scc1 L_f1_nox
    ''')
    xdma(A, sX)
    A.label('L_f1_nox')
    gemm(A, 4, at, ACC, RING, vXc, [0, 1024], True)
    A.I(f'''
    v_xor_b32 {v(vXc)}, 0x8000, {v(vXc)}
    s_waitcnt vmcnt(0)
    v_sub_f32 {v(vOG)}, 1.0, {v(vOG)}
    v_sub_f32 {v(vOG+1)}, 1.0, {v(vOG+1)}
    ''')
    E, O = 8, 16
    for p in range(2):
        for tt in range(2):
            regs = [ACC + 8*(2*p+y) + 4*tt + r for y in range(2) for r in range(4)]
            for i, r in enumerate(regs): A.I(f'v_mul_f32 {v(E+i)}, {f32(-1.4426950408889634)}, {v(r)}')
            for i in range(8): A.I(f'v_exp_f32 {v(E+i)}, {v(E+i)}')
            for i in range(8): A.I(f'v_add_f32 {v(E+i)}, 1.0, {v(E+i)}')
            for i in range(8): A.I(f'v_rcp_f32 {v(E+i)}, {v(E+i)}')
            for i, r in enumerate(regs): A.I(f'v_mul_f32 {v(r)}, {v(r)}, {v(vOG+tt)}')
            for i, r in enumerate(regs): A.I(f'v_mul_f32 {v(E+i)}, {v(E+i)}, {v(r)}')
            o = O + 4 * (2*p + tt)
            for k in range(4): A.I(f'v_cvt_pk_bf16_f32 {v(o+k)}, {v(E+2*k)}, {v(E+2*k+1)}')
            A.I(f'global_store_dwordx4 v3, {v(o,4)}, {s(sHO,2)} offset:{(2*p+tt)*1024} sc1')
    addp(A, sHO, sHO, 4 * HI_SEG); addp(A, sG, sG, 512)
    A.I(f's_add_u32 {s(sSEG)}, {s(sSEG)}, 4\n s_branch L_f1_item')

def outs(A):
    ACC, VF, WF, PF, HR = 8, 40, 104, 120, 160
    NH = 8
    vF, vFA, vRW, vRR, vO, vV1 = 4, 5, 6, 7, 224, 225
    RBW = 32 * 272
    sW2, sHI, sVX, sWT, sPX, sFL, sOUT = sA, sB_, sC_, sD, sE, sF, 30
    sMA, sMB = sM0, sM1
    A.label('L_outs')
    A.I(f's_load_dwordx2 {s(sW2,2)}, s[0:1], {KA_W2}\n s_load_dwordx2 {s(sOUT,2)}, s[0:1], {KA_OUT}')
    wave_setup(A)
    A.I(f's_mul_i32 s40, {s(sW)}, {448*896}\n s_lshl_b32 s41, {s(sH)}, 7\n s_add_u32 s40, s40, s41\n s_waitcnt lgkmcnt(0)')
    addps(A, sW2, sW2, 40)
    load_tr(A, sW2, 896)
    A.I(f'''
    s_barrier
    s_mov_b32 {s(sSEG)}, {s(sREP)}
    v_lshlrev_b32 {v(vFA)}, 2, v0
    v_add_u32 {v(vV1)}, 4096, v3
    s_mov_b32 {s(sMA)}, 0x0000ffff
    s_mov_b32 {s(sMA+1)}, 0x007f0000
    s_mov_b32 {s(sMB)}, 0xffff0000
    s_mov_b32 {s(sMB+1)}, 0x0000ffff
    s_mul_i32 s42, {s(sW)}, {RBW}
    v_mul_u32_u24 {v(vRW)}, 272, v1
    v_lshl_add_u32 {v(vRW)}, v2, 4, {v(vRW)}
    v_add_u32 {v(vRW)}, s42, {v(vRW)}
    v_lshrrev_b32 v10, 3, v0
    v_lshl_add_u32 v10, {s(sW)}, 3, v10
    v_and_b32 v11, 7, v0
    v_mul_u32_u24 {v(vRR)}, 272, v10
    v_lshl_add_u32 {v(vRR)}, v11, 5, {v(vRR)}
    v_mul_u32_u24 {v(vO)}, 896, v10
    v_lshl_add_u32 {v(vO)}, v11, 4, {v(vO)}
    s_mul_i32 s42, {s(sREP)}, {32*896}
    s_lshl_b32 s43, {s(sH)}, 7
    s_add_u32 s42, s42, s43
    ''')
    addps(A, sOUT, sOUT, 42)
    A.I(f's_mul_i32 s42, {s(sREP)}, {HI_SEG}\n s_mul_i32 s43, {s(sW)}, 28672\n s_add_u32 s42, s42, s43')
    addp(A, sHI, sWS, HI_OFF); addps(A, sHI, sHI, 42)
    A.I(f's_mul_i32 s42, {s(sREP)}, {14*VX_SC}\n s_lshl_b32 s43, {s(sH)}, 16\n s_add_u32 s42, s42, s43\n s_lshl_b32 s43, {s(sW)}, 13\n s_add_u32 s42, s42, s43')
    addp(A, sVX, sWS, VX_OFF); addps(A, sVX, sVX, 42)
    A.I(f's_mul_i32 s42, {s(sREP)}, {WT_SEG}\n s_mul_i32 s43, {s(sW)}, 28672\n s_add_u32 s42, s42, s43\n s_lshl_b32 s43, {s(sH)}, 12\n s_add_u32 s42, s42, s43')
    addp(A, sWT, sWS, WT_OFF); addps(A, sWT, sWT, 42)
    A.I(f's_mul_i32 s42, {s(sREP)}, {PX_SEG}\n s_mul_i32 s43, {s(sW)}, 10240\n s_add_u32 s42, s42, s43')
    addp(A, sPX, sWS, PX_OFF); addps(A, sPX, sPX, 42)
    A.I(f's_lshl_b32 s42, {s(sREP)}, 8'); addp(A, sFL, sWS, FL_OFF); addps(A, sFL, sFL, 42)
    def wait_flags(tag, mask):
        A.I(f'''
L_{tag}:
        global_load_dword {v(vF)}, {v(vFA)}, {s(sFL,2)} sc1
        ''')
        budget(A)
        A.I(f'''
        s_waitcnt vmcnt(0)
        v_cmp_eq_u32 vcc, 0, {v(vF)}
        s_and_b64 vcc, vcc, {s(mask,2)}
        s_cbranch_vccz L_{tag}_ok
        s_sleep 4
        s_branch L_{tag}
L_{tag}_ok:
        ''')
    A.label('L_ou_item')
    wait_flags('ou_f1', sMA)
    vm = Cnt(A, 'vmcnt', 63)
    A.I(f's_mov_b64 s[40:41], {s(sHI,2)}')
    def hload(i):
        A.I(f'global_load_dwordx4 {v(HR+4*(i%(2*NH)),4)}, v3, s[40:41] offset:{(i%4)*1024} sc1'); vm.add(('h', i))
        if i % 4 == 3: addp(A, 40, 40, 4096)
    for i in range(2 * NH): hload(i)
    addp(A, 42, sVX, 32768)
    vl = [(hh, ct) for hh in range(4) for ct in range(4)]
    def vload(n):
        hh, ct = vl[n]
        A.I(f'global_load_dwordx4 {v(VF+16*hh+4*ct,4)}, {v(3 if hh < 2 else vV1)}, {s(sVX if ct < 2 else 42,2)} offset:{(hh&1)*2048+(ct&1)*1024} sc1'); vm.add(('v', n))
    for j in range(14):
        for tt in range(2):
            i = 2*j + tt
            vm.wait(('h', i))
            for ct in range(4):
                d = v(ACC + 8*ct + 4*tt, 4)
                A.I(f'v_mfma_f32_16x16x32_bf16 {d}, {at(ct,j)}, {v(HR+4*(i%(2*NH)),4)}, {d if j else 0}')
            if i + 2 * NH < 28: hload(i + 2 * NH)
            elif i - 12 < 16: vload(i - 12)
    wait_flags('ou_f2', sMB)
    vm.clear()
    addp(A, 40, sPX, 4096); addp(A, 42, sPX, 8192)
    for i in range(10):
        A.I(f'global_load_dwordx4 {v(PF+4*i,4)}, v3, {s([sPX,40,42][i>>2],2)} offset:{(i%4)*1024} sc1'); vm.add(('p', i))
        if i == 3:
            for ct in range(4):
                A.I(f'global_load_dwordx4 {v(WF+4*ct,4)}, v3, {s(sWT,2)} offset:{ct*1024} sc1'); vm.add(('w', ct))
    for k in range(5):
        for tt in range(2):
            vm.wait(('p', 2*k + tt))
            for ct in range(4):
                d = v(ACC + 8*ct + 4*tt, 4)
                a = v(VF + 16*k + 4*ct, 4) if k < 4 else v(WF + 4*ct, 4)
                A.I(f'v_mfma_f32_16x16x32_bf16 {d}, {a}, {v(PF+8*k+4*tt,4)}, {d}')
    A.I('s_barrier')
    for tt in range(2):
        for ct in range(4):
            A.I(f'ds_write_b128 {v(vRW)}, {v(ACC+8*ct+4*tt,4)} offset:{tt*16*272 + ct*64}')
    A.I('s_waitcnt lgkmcnt(0)\n s_barrier')
    Z = VF
    for k in range(4):
        A.I(f'ds_read_b128 {v(Z+8*k,4)}, {v(vRR)} offset:{k*RBW}\n ds_read_b128 {v(Z+8*k+4,4)}, {v(vRR)} offset:{k*RBW+16}')
    A.I('s_waitcnt lgkmcnt(0)')
    for a, b in ((0, 8), (16, 24), (0, 16)):
        for k in range(0, 8, 2): A.I(f'v_pk_add_f32 {v(Z+a+k,2)}, {v(Z+a+k,2)}, {v(Z+b+k,2)}')
    for k in range(4): A.I(f'v_cvt_pk_bf16_f32 {v(Z+8+k)}, {v(Z+2*k)}, {v(Z+2*k+1)}')
    A.I(f'global_store_dwordx4 {v(vO)}, {v(Z+8,4)}, {s(sOUT,2)}')
    addp(A, sOUT, sOUT, 7 * 32 * 896); addp(A, sHI, sHI, 7 * HI_SEG); addp(A, sVX, sVX, 7 * 14 * VX_SC)
    addp(A, sWT, sWT, 7 * WT_SEG); addp(A, sPX, sPX, 7 * PX_SEG); addp(A, sFL, sFL, 7 * 256)
    A.I(f's_add_u32 {s(sSEG)}, {s(sSEG)}, 7\n s_cmp_lt_u32 {s(sSEG)}, 64\n s_cbranch_scc1 L_ou_item\n s_endpgm')
```

```python
import sys
from common import *
import chain, tok, prep

NAME = 'gated_mix__memory_aug_recurrent_mem_tr__dense_activation_silu__prompt'

def main_kernel(prof=0, roles=('chain', 'tokv', 'tokt', 'ffn1', 'outs')):
    A = Asm()
    A.I(f'''
    s_cmp_ge_u32 s2, 256
    s_cbranch_scc1 L_bail
    s_load_dwordx2 s[8:9], s[0:1], {KA_WS}
    s_and_b32 s40, s2, 7
    s_lshr_b32 s3, s2, 3
    s_waitcnt lgkmcnt(0)
    s_cmp_lg_u32 s40, 0
    s_cbranch_scc1 L_tok
    s_cmp_lt_u32 s3, 16
    s_cbranch_scc1 {'L_score' if 'chain' in roles else 'L_bail'}
    s_cmp_lt_u32 s3, 30
    s_cbranch_scc1 {'L_value' if 'chain' in roles else 'L_bail'}
    s_cmp_eq_u32 s3, 30
    s_cbranch_scc1 {'L_helper' if 'chain' in roles else 'L_bail'}
    s_endpgm
L_tok:
    s_sub_u32 s40, s40, 1
    s_cmp_ge_u32 s3, 7
    s_cbranch_scc1 L_tok1
    s_mov_b32 {s(tok.sREP)}, s40
    s_branch {'L_outs' if 'outs' in roles else 'L_bail'}
L_tok1:
    s_cmp_ge_u32 s3, 11
    s_cbranch_scc1 L_tok2
    s_sub_u32 {s(tok.sREP)}, s3, 7
    s_mov_b32 s3, s40
    s_branch {'L_ffn1' if 'ffn1' in roles else 'L_bail'}
L_tok2:
    s_mul_i32 s40, s40, 21
    s_add_u32 s40, s40, s3
    s_sub_u32 s40, s40, 11
    s_cmp_ge_u32 s40, 128
    s_cbranch_scc1 L_bail
    s_and_b32 {s(tok.sREP)}, s40, 3
    s_lshr_b32 s3, s40, 3
    s_bitcmp1_b32 s40, 2
    s_cbranch_scc1 {'L_tokt' if 'tokt' in roles else 'L_bail'}
    s_branch {'L_tokv' if 'tokv' in roles else 'L_bail'}
L_bail:
    s_endpgm
    ''')
    chain.score(A, prof); chain.value(A, prof); chain.helper(A)
    tok.tokv(A); tok.tokt(A); tok.ffn1(A); tok.outs(A)
    return A

KD = '''.section .rodata,"a"
.p2align 6
.amdhsa_kernel {name}
  .amdhsa_next_free_vgpr {nv}
  .amdhsa_next_free_sgpr 96
  .amdhsa_accum_offset 256
  .amdhsa_group_segment_fixed_size 0
  .amdhsa_kernarg_size 112
  .amdhsa_user_sgpr_count 2
  .amdhsa_user_sgpr_kernarg_segment_ptr 1
  .amdhsa_system_sgpr_workgroup_id_x 1
  .amdhsa_float_denorm_mode_32 3
.end_amdhsa_kernel
'''
def full(prof=0, **kw):
    ref = open('cdna_kernels/' + NAME + '.s.ref').read().split('\n') if False else None
    k1, k2 = 'prep_kernel', NAME + '_kernel'
    out = [HEADER,
           f'; @launch kernel={k1} grid=(256,1,1) block=(256,1,1) lds=163840',
           f'; @launch kernel={k2} grid=(256,1,1) block=(256,1,1) lds=135168',
           '.amdgcn_target "amdgcn-amd-amdhsa--gfx950"', '.text']
    for n, A in ((k1, prep.prep_kernel()), (k2, main_kernel(prof, **kw))):
        out += [f'.globl {n}', '.p2align 8', f'.type {n},@function', f'{n}:', A.text()]
    out += [KD.format(name=k1, nv=256), KD.format(name=k2, nv=512)]
    return '\n'.join(out)

HEADER = '''; Kernarg layout for this problem (112 bytes, ptrs only, base s[0:1]):
; main kernel : memory recurrence (16 score + 14 value + 1 relay workgroups) and the token side (x B, x A + softmax, FFN, mix)'''

if __name__ == '__main__':
    open('cdna_kernels/' + NAME + '.s', 'w').write(full())
```

```python
from common import *
import prep
from prep import wait_ready, sDB, DB_XCC

NSTEP = 63
CLK = 's_memrealtime'
OPT = set()
SDELAY = 0
VDELAY = 0
PDELAY = 0
HSLEEP = 2
LIM = 60
EB = -1
EA = -1
HDEPTH = 2
sROLE, sW, sSTEP, sBUD, sSENT = 3, 4, 5, 6, 7
sWS, sX0, sX1, sMEM, sP, sVX, sMT, sWP, sWT = 8, 10, 12, 14, 16, 18, 20, 22, 24
sC, sTMP, sTMP2 = 26, 27, 28
sM20, sMHI, sMG = 30, 32, 34
sM48 = 38
sLB = 36
sT0, sDBG = 40, 44
sXCC, sEA, sEB, sFL = 75, 64, 66, 68
BUDGET = 1 << 21

def xcc_publish(A):
    A.I(f'''
    s_getreg_b32 {s(sXCC)}, hwreg(HW_REG_XCC_ID, 0, 4)
    s_add_u32 {s(sXCC)}, {s(sXCC)}, 1
    v_mov_b32 v3, {s(sROLE)}
    v_mov_b32 v4, {s(sXCC)}
    global_store_byte v3, v4, {s(sDB,2)} offset:{DB_XCC} sc1
    ''')

def chain_common(A):
    A.I(f'''
    s_mov_b32 {s(sSTEP)}, 0
    s_mov_b32 {s(sBUD)}, 0
    s_mov_b32 {s(sSENT)}, {SENT}
    ''')

def xcc_check(A, tag, mlo, mhi, t):
    A.I(f'''
    v_min_u32 {v(t)}, 31, v0
L_{tag}_xc:
    global_load_ubyte {v(t+1)}, {v(t)}, {s(sDB,2)} offset:{DB_XCC} sc1
    s_add_u32 {s(sBUD)}, {s(sBUD)}, 1
    s_cmp_gt_u32 {s(sBUD)}, {BUDGET}
    s_cbranch_scc1 L_bail
    s_waitcnt vmcnt(0)
    v_cmp_eq_u32 vcc, 0, {v(t+1)}
    s_cbranch_vccnz L_{tag}_xc
    v_cmp_ne_u32 vcc, {s(sXCC)}, {v(t+1)}
    s_mov_b32 s40, {mlo}
    s_mov_b32 s41, {mhi}
    s_cmp_eq_u64 vcc, {0 if 'slow' not in OPT else -1}
    s_cselect_b64 {s(sEA,2)}, s[40:41], 0
    s_cselect_b64 {s(sEB,2)}, 0, s[40:41]
    ''')

def hint_spin(A, tag, vAd, d, off):
    ld = lambda r: A.I(f'global_load_dword {v(r)}, {v(vAd)}, {s(sMEM,2)} offset:{off} sc1')
    bud = f's_add_u32 {s(sBUD)}, {s(sBUD)}, 1\n s_cmp_gt_u32 {s(sBUD)}, {BUDGET}\n s_cbranch_scc1 L_bail'
    if HDEPTH == 1:
        A.label(f'L_{tag}'); ld(d); A.I(bud)
        A.I(f's_waitcnt vmcnt(0)\n v_cmp_eq_u32 vcc, {s(sSENT)}, {v(d)}\n s_cbranch_vccnz L_{tag}')
        return
    ld(d)
    A.label(f'L_{tag}'); ld(d + 1)
    A.I(f's_waitcnt vmcnt(1)\n v_cmp_eq_u32 vcc, {s(sSENT)}, {v(d)}\n s_cbranch_vccz L_{tag}_ok')
    ld(d); A.I(bud)
    A.I(f's_waitcnt vmcnt(1)\n v_cmp_eq_u32 vcc, {s(sSENT)}, {v(d+1)}\n s_cbranch_vccnz L_{tag}')
    A.label(f'L_{tag}_ok')

def mem_poll(A, tag, vG0, vG1, vPR, vD):
    def rnd(d):
        A.I(f'''
        global_load_dword {v(d)}, {v(vPR)}, {s(sMEM,2)} sc1
        global_load_lds_dwordx4 {v(vG0)}, {s(sMEM,2)} sc1
        s_mov_b64 exec, {s(sM48,2)}
        global_load_lds_dwordx4 {v(vG0)}, {s(sMEM,2)} offset:1024 sc1
        s_mov_b64 exec, -1
        ''')
    A.label(f'L_{tag}_mp')
    A.I(f's_mov_b32 m0, {s(sLB)}')
    if 'mtrig' in OPT or 'mtrig1' in OPT:
        if 'mtrig1' in OPT: A.I('s_mov_b64 exec, 1')
        A.I(f'''
        global_load_dword {v(vD)}, {v(vPR)}, {s(sMEM,2)} sc1
L_{tag}_mt:
        global_load_dword {v(vD+1)}, {v(vPR)}, {s(sMEM,2)} sc1
        s_waitcnt vmcnt(1)
        v_cmp_eq_u32 vcc, {s(sSENT)}, {v(vD)}
        s_cbranch_vccz L_{tag}_mtok
        global_load_dword {v(vD)}, {v(vPR)}, {s(sMEM,2)} sc1
        s_add_u32 {s(sBUD)}, {s(sBUD)}, 1
        s_cmp_gt_u32 {s(sBUD)}, {BUDGET}
        s_cbranch_scc1 L_bail
        s_waitcnt vmcnt(1)
        v_cmp_eq_u32 vcc, {s(sSENT)}, {v(vD+1)}
        s_cbranch_vccnz L_{tag}_mt
L_{tag}_mtok:
        s_mov_b64 exec, -1
        ''')
        vD = vD + 2
    if 'mp2' not in OPT or (tag == 'va' and 'vmp2' not in OPT):
        A.label(f'L_{tag}_mpl')
        rnd(vD)
        A.I(f'''
        s_add_u32 {s(sBUD)}, {s(sBUD)}, 1
        s_cmp_gt_u32 {s(sBUD)}, {BUDGET}
        s_cbranch_scc1 L_bail
        s_waitcnt vmcnt(2)
        v_cmp_eq_u32 vcc, {s(sSENT)}, {v(vD)}
        s_cbranch_vccnz L_{tag}_mpl
        s_waitcnt vmcnt(0) lgkmcnt(0)
        s_barrier
        ''')
        return
    rnd(vD)
    A.label(f'L_{tag}_mpl')
    rnd(vD + 1)
    A.I(f'''
    s_waitcnt vmcnt(5)
    v_cmp_eq_u32 vcc, {s(sSENT)}, {v(vD)}
    s_cbranch_vccz L_{tag}_mpok
    ''')
    rnd(vD)
    A.I(f'''
    s_add_u32 {s(sBUD)}, {s(sBUD)}, 1
    s_cmp_gt_u32 {s(sBUD)}, {BUDGET}
    s_cbranch_scc1 L_bail
    s_waitcnt vmcnt(5)
    v_cmp_eq_u32 vcc, {s(sSENT)}, {v(vD+1)}
    s_cbranch_vccnz L_{tag}_mpl
L_{tag}_mpok:
    s_waitcnt vmcnt(3) lgkmcnt(0)
    s_barrier
    ''')

def mem_poll_setup(A, vG0, vG1, vPR, t):
    A.I(f'''
    s_mul_i32 {s(sLB)}, {s(sW)}, 1792
    v_lshlrev_b32 {v(vG0)}, 4, v0
    v_add_u32 {v(vG0)}, {s(sLB)}, {v(vG0)}
    s_mov_b32 {s(sM48)}, -1
    s_mov_b32 {s(sM48+1)}, 0xffff
    v_min_u32 {v(t)}, {13 if 'pr4' not in OPT else 3}, v0
    v_lshlrev_b32 {v(t)}, {7 if 'pr4' not in OPT else 9}, {v(t)}
    v_add3_u32 {v(vPR)}, {s(sLB)}, {v(t)}, 64
    v_add_u32 {v(vPR)}, {0 if 'pr4' not in OPT else 128}, {v(vPR)}
    ''')

def sreg(i): return 48 + 2 * i if i < 8 else 76 + 2 * (i - 8)

def stamp(A, idx, prof):
    if not prof: return
    A.I(f'{CLK} {s(sreg(idx), 2)}')

def stamp_flush(A, prof):
    if not prof: return
    A.I('s_waitcnt lgkmcnt(0)')
    for i in range(16): A.I(f'v_writelane_b32 v19, {s(sreg(i))}, {i}')
    A.I(f'''
    v_lshlrev_b32 v20, 2, v0
    s_mov_b64 exec, 0xffff
    global_store_dword v20, v19, {s(sDBG,2)}
    s_mov_b64 exec, -1
    ''')
    addp(A, sDBG, sDBG, 64)

def score(A, prof=0):
    L_MEM, L_TB, L_SB, L_RW, L_XB = 0, 8192, 20480, 26624, 51200
    vIDX, vG0, vG1, vPR, vAF0, vAF1, vMB0, vMB1, vTW, vTR, vSW, vSR, vPS, vX0, vX1, vRW, vSM = range(1, 18)
    vHA = vG1; vHB = 18; vCK = 127
    def hintB(pos):
        if EB == pos: A.I(f'global_store_dword {v(vHB)}, {v(vHB)}, {s(sMEM,2)} sc1' if 'slow' in OPT else f'global_store_dword {v(vHB)}, {v(vHB)}, {s(sMEM,2)}')
    RING, XF, R, TOPC, TMP, SACC, TACC, WV = 20, 52, 84, 108, 112, 116, 128, 144
    MEMB, TOPA, TOPB = R, R + 16, R + 20
    seq = score_seq()
    def wreg(i):
        if i < 3: return v(R + 8 * i, 8)
        if i < 35: return a_(8 * (i - 3), 8)
        return v(WV + 8 * (i - 35), 8)
    lg = Cnt(A, 'lgkmcnt', 15)
    A.label('L_score')
    chain_common(A)
    T = 20
    A.I(f'''
    v_and_b32 {v(T)}, 15, v0
    v_lshrrev_b32 {v(T+1)}, 4, v0
    v_and_b32 {v(T+2)}, 7, v0
    v_mov_b32 {v(vIDX)}, 0x4444
    v_mov_b32 {v(T+3)}, 0xeeee
    v_cmp_lt_u32 vcc, 7, {v(T)}
    v_cndmask_b32 {v(vIDX)}, {v(vIDX)}, {v(T+3)}, vcc
    ''')
    mem_poll_setup(A, vG0, vG1, vPR, T + 4)
    A.I(f'''
    v_lshlrev_b32 {v(T+4)}, 7, {v(T+1)}
    v_lshl_add_u32 {v(T+4)}, {v(T+2)}, 4, {v(T+4)}
    s_and_b32 {s(sTMP)}, {s(sW)}, 1
    s_mul_i32 {s(sTMP2)}, {s(sTMP)}, {7*512}
    v_add_u32 {v(vAF0)}, {s(sTMP2)}, {v(T+4)}
    s_sub_u32 {s(sTMP2)}, {7*512}, {s(sTMP2)}
    v_add_u32 {v(vAF1)}, {s(sTMP2)}, {v(T+4)}
    s_lshr_b32 {s(sTMP2)}, {s(sW)}, 1
    s_mul_i32 {s(sTMP2)}, {s(sTMP2)}, 7
    s_lshl_b32 {s(sTMP)}, {s(sTMP)}, 2
    s_add_u32 {s(sTMP)}, {s(sTMP)}, {s(sTMP2)}
    s_add_u32 {s(sTMP2)}, {s(sTMP2)}, 3
    s_lshl_b32 s40, {s(sTMP)}, 9
    s_lshl_b32 s41, {s(sTMP2)}, 9
    v_add_u32 {v(vMB0)}, s40, {v(T+4)}
    v_add_u32 {v(vMB1)}, s41, {v(T+4)}
    s_lshl_b32 s40, {s(sTMP)}, 11
    s_lshl_b32 s41, {s(sTMP2)}, 11
    v_lshl_add_u32 {v(vX0)}, v0, 4, s40
    v_lshl_add_u32 {v(vX1)}, v0, 4, s41
    s_mul_i32 s40, {s(sW)}, 3072
    s_add_u32 s40, s40, {L_TB}
    v_mul_u32_u24 {v(T+5)}, 192, {v(T+1)}
    v_lshl_add_u32 {v(T+5)}, {v(T)}, 3, {v(T+5)}
    v_add_u32 {v(vTW)}, s40, {v(T+5)}
    v_and_b32 {v(T+5)}, 1, v0
    v_mul_u32_u24 {v(T+5)}, 192, {v(T+5)}
    v_lshrrev_b32 {v(T+6)}, 2, v0
    v_lshl_add_u32 {v(T+5)}, {v(T+6)}, 3, {v(T+5)}
    v_add_u32 {v(vTR)}, s40, {v(T+5)}
    s_mul_i32 s40, {s(sW)}, 1408
    s_add_u32 s40, s40, {L_SB}
    v_mul_u32_u24 {v(T+5)}, 176, {v(T+2)}
    v_add_u32 {v(T+5)}, s40, {v(T+5)}
    v_lshrrev_b32 {v(T+6)}, 3, {v(T)}
    v_lshlrev_b32 {v(T+7)}, 6, {v(T+6)}
    v_lshl_add_u32 {v(T+7)}, {v(T+1)}, 4, {v(T+7)}
    v_add3_u32 {v(vSW)}, {v(T+5)}, {v(T+7)}, 32
    v_and_b32 {v(T+7)}, 1, {v(T+1)}
    v_lshlrev_b32 {v(T+7)}, 4, {v(T+7)}
    v_lshrrev_b32 {v(T+8)}, 1, {v(T+1)}
    v_lshl_add_u32 {v(T+8)}, {v(T+8)}, 1, {v(T+6)}
    v_lshl_add_u32 {v(T+7)}, {v(T+8)}, 2, {v(T+7)}
    v_add_u32 {v(vSM)}, {v(T+5)}, {v(T+7)}
    v_lshrrev_b32 {v(T+5)}, 5, v0
    v_lshl_add_u32 {v(T+5)}, {s(sW)}, 1, {v(T+5)}
    v_and_b32 {v(T+6)}, 31, v0
    v_min_u32 {v(T+6)}, 20, {v(T+6)}
    v_mul_u32_u24 {v(T+7)}, 176, {v(T+5)}
    v_lshl_add_u32 {v(T+7)}, {v(T+6)}, 3, {v(T+7)}
    v_add_u32 {v(vSR)}, {L_SB}, {v(T+7)}
    s_lshr_b32 s40, {s(sROLE)}, 2
    s_mul_i32 s40, s40, 2560
    s_and_b32 s41, {s(sROLE)}, 1
    s_bfe_u32 s42, {s(sROLE)}, 0x10001
    s_lshl_b32 s43, s41, 7
    s_lshl_b32 s46, s42, 5
    s_add_u32 s43, s43, s46
    s_add_u32 s43, s43, s40
    s_add_u32 s43, s43, 2048
    v_and_b32 {v(T+7)}, 1, {v(T+6)}
    v_lshlrev_b32 {v(T+7)}, 8, {v(T+7)}
    v_lshrrev_b32 {v(T+8)}, 1, {v(T+6)}
    v_lshl_add_u32 {v(T+7)}, {v(T+8)}, 6, {v(T+7)}
    v_lshl_add_u32 {v(T+7)}, {v(T+5)}, 2, {v(T+7)}
    v_add_u32 {v(T+7)}, s43, {v(T+7)}
    s_lshl_b32 s43, s42, 10
    s_lshl_b32 s46, s41, 9
    s_add_u32 s43, s43, s46
    s_add_u32 s43, s43, s40
    v_subrev_u32 {v(T+8)}, 4, {v(T+6)}
    v_lshrrev_b32 {v(T+9)}, 2, {v(T+8)}
    v_and_b32 {v(T+8)}, 3, {v(T+8)}
    v_lshlrev_b32 {v(T+8)}, 2, {v(T+8)}
    v_lshl_add_u32 {v(T+8)}, {v(T+9)}, 7, {v(T+8)}
    v_lshl_add_u32 {v(T+8)}, {v(T+5)}, 4, {v(T+8)}
    v_add_u32 {v(T+8)}, s43, {v(T+8)}
    v_cmp_gt_u32 vcc, 4, {v(T+6)}
    v_cndmask_b32 {v(vPS)}, {v(T+8)}, {v(T+7)}, vcc
    s_mul_i32 s40, {s(sW)}, 6144
    s_add_u32 s40, s40, {L_RW}
    v_lshl_add_u32 {v(vRW)}, v0, 4, s40
    s_mov_b32 {s(sM20)}, 0x000fffff
    s_mov_b32 {s(sM20+1)}, 0x000fffff
    s_mov_b32 {s(sMHI)}, 0xff00ff00
    s_mov_b32 {s(sMHI+1)}, 0xff00ff00
    s_mov_b32 {s(sMG)}, 0
    s_mov_b32 {s(sMG+1)}, -1
    s_mov_b32 {s(sC)}, {hex(__import__("struct").unpack("<I", __import__("struct").pack("<f", 1.4426950408889634/16))[0])}
    ''')
    A.I(f'''
    v_mul_u32_u24 {v(T+5)}, 176, {v(T+2)}
    s_mul_i32 s40, {s(sW)}, 1408
    s_add_u32 s40, s40, {L_SB + 160}
    v_add_u32 {v(T+5)}, s40, {v(T+5)}
    v_mov_b32 {v(T+6)}, 0xff800000
    v_mov_b32 {v(T+7)}, 0xff800000
    ds_write_b64 {v(T+5)}, {v(T+6,2)}
    ''')
    A.I(f'''
    s_mul_i32 s40, {s(sROLE)}, {MF_HEAD}
    s_and_b32 s41, {s(sW)}, 1
    s_mul_i32 s41, s41, {7*2048}
    s_mul_i32 s42, {s(sTMP)}, {14*2048}
    s_mul_i32 s43, {s(sTMP2)}, {14*2048}
    v_lshlrev_b32 {v(T+8)}, 4, v0
    s_add_u32 s46, s42, s41
    v_add_u32 {v(T+9)}, s46, {v(T+8)}
    s_sub_u32 s46, s42, s41
    s_add_u32 s46, s46, {7*2048}
    v_add_u32 {v(T+10)}, s46, {v(T+8)}
    s_add_u32 s46, s43, s41
    v_add_u32 {v(T+11)}, s46, {v(T+8)}
    ''')
    addp(A, sWT, sWS, MF_OFF); addps(A, sWT, sWT, 40)
    wait_ready(A, 'sc', T + 12, sROLE)
    tl(A, 1, 4, T + 12)
    for i, (L, jj) in enumerate(seq):
        va = T + 11 if L == 3 else T + 9 if jj < 7 else T + 10
        addp(A, 40, sWT, ((L % 3) * 14 + jj % 7) * 2048)
        for hf in range(2):
            if i < 3: dst = v(R + 8 * i + 4 * hf, 4)
            elif i < 35: dst = a_(8 * (i - 3) + 4 * hf, 4)
            else: dst = v(WV + 8 * (i - 35) + 4 * hf, 4)
            A.I(f'global_load_dwordx4 {dst}, {v(va)}, s[40:41] offset:{hf*1024} sc1')
        if i == 23:
            A.I('s_waitcnt vmcnt(42)')
            for k in range(6): A.I(f'ds_write_b128 {v(vRW)}, {v(R+4*k,4)} offset:{k*1024}')
        if i > 23: A.I('s_waitcnt vmcnt(42)')
    xcc_check(A, 'sc', '0x000fffff', '0x000fffff', T)
    tl(A, 1, 1, T)
    addp(A, sMEM, sWS, MEMS_OFF); addp(A, sP, sWS, PS_OFF)
    addp(A, sX0, sWS, XI_OFF); addp(A, sX1, sX0, 4096)
    if prof:
        A.I(f's_lshl_b32 s40, {s(sROLE)}, 2\n s_add_u32 s40, s40, {s(sW)}\n s_lshl_b32 s40, s40, 12')
        addp(A, sDBG, sWS, END_OFF); addps(A, sDBG, sDBG, 40)
    def xload(k):
        L, t = k >> 1, k & 1
        if L < 2: A.I(f'global_load_dwordx4 {v(XF+4*k,4)}, {v(vX0)}, {s(sX0,2)} offset:{1024*k} sc1')
        elif L == 2: A.I(f'global_load_dwordx4 {v(XF+4*k,4)}, {v(vX0)}, {s(sX1,2)} offset:{1024*t} sc1')
        else: A.I(f'global_load_dwordx4 {v(XF+4*k,4)}, {v(vX1)}, {s(sX0,2)} offset:{1024*t} sc1')
    for k in range(8): xload(k)
    for k in range(16): A.I(f'v_mov_b32 {v(TACC+k)}, 0')
    A.I(f'''
    v_min_u32 {v(vHA)}, 55, v0
    v_lshlrev_b32 {v(vHA)}, 2, {v(vHA)}
    v_add_u32 {v(vHA)}, 7168, {v(vHA)}
    s_lshl_b32 s40, {s(sROLE)}, 2
    s_add_u32 s40, s40, {s(sW)}
    s_lshl_b32 s40, s40, 2
    s_add_u32 s40, s40, 7424
    v_mov_b32 {v(vHB)}, s40
    s_waitcnt vmcnt(0) lgkmcnt(0)
    ''')
    A.label('L_sc_step')
    stamp(A, 0, prof)
    if prof: A.I('s_memtime s[62:63]')
    if EA >= 0:
        A.I(f's_cmp_eq_u32 {s(sSTEP)}, 0\n s_cbranch_scc1 L_sc_mp')
        hint_spin(A, 'sc_h', vHA, TMP + 2, 0)
    mem_poll(A, 'sc', vG0, vG1, vPR, TMP)
    stamp(A, 1, prof)
    lg.clear()
    def rdfrag(jj):
        ad = f'{v(vAF0)} offset:{jj*512}' if jj < 7 else f'{v(vAF1)} offset:{(jj-7)*512}'
        A.I(f'ds_read_b128 {v(RING + 4*(jj%8), 4)}, {ad}'); lg.add(('f', jj))
    def rdmemb(L):
        ad = f'{v(vMB0)} offset:{L*512}' if L < 3 else f'{v(vMB1)}'
        A.I(f'ds_read_b128 {v(MEMB + 4*L, 4)}, {ad}'); lg.add(('m', L))
    def cvt(L, k): A.I(f'v_cvt_pk_bf16_f32 {v(TMP + 2*(L&1) + k)}, {v(TACC+4*L+2*k)}, {v(TACC+4*L+2*k+1)}')
    def twr(L):
        A.I(f'ds_write_b64 {v(vTW)}, {v(TMP + 2*(L&1), 2)} offset:{L*768}'); lg.add(('w', L))
    TOPD = RING + 4 * (8 % 8)
    top = {0: TOPA, 1: TOPB, 2: TOPD, 3: TOPC}
    def trr(L):
        A.I(f'ds_read_b64_tr_b16 {v(top[L], 2)}, {v(vTR)} offset:{L*768}'); lg.add(('x', L))
        A.I(f'ds_read_b64_tr_b16 {v(top[L]+2, 2)}, {v(vTR)} offset:{L*768+384}'); lg.add(('t', L))
    def smm1(L, t, first=False):
        lg.wait(('t', L))
        a = v(MEMB + 4*L, 4) if t == 0 else v(XF + 8*L + 4*(t-1), 4)
        c = '0' if first else v(SACC + 4*t, 4)
        A.I(f'v_mfma_f32_16x16x32_bf16 {v(SACC+4*t,4)}, {a}, {v(top[L],4)}, {c}')
    CHK = 19 if not prof else TMP + 2
    def chk(j0, first=False):
        a, b = v(RING + 4*(j0 % 8)), v(RING + 4*((j0+1) % 8))
        if first: A.I(f'v_max_u32 {v(vCK)}, {a}, {b}')
        else: A.I(f'v_max3_u32 {v(vCK)}, {a}, {b}, {v(vCK)}')
    fill = {i: [] for i in range(49)}
    for k in range(2, 8): fill[k - 2].append(lambda k=k: rdfrag(k))
    for k, i in enumerate([18, 22, 25, 28, 31, 34]): fill[i].append(lambda k=k: rdfrag(8 + k))
    for k, L in enumerate([3, 0, 1, 2]): fill[6 + k].append(lambda L=L: rdmemb(L))
    fill[23].append(lambda: cvt(3, 0)); fill[24].append(lambda: cvt(3, 1)); fill[26].append(lambda: twr(3)); fill[27].append(lambda: trr(3))
    for j0, i in zip(range(0, 14, 2), [3, 9, 15, 25, 29, 35, 41]): fill[i].append(lambda j0=j0: chk(j0, j0 == 0))
    fill[42].append(lambda: A.I(f'v_cmp_eq_u32 vcc, {s(sSENT)}, {v(vCK)}'))
    fill[43].append(lambda: cvt(0, 0)); fill[44].append(lambda: cvt(0, 1))
    fill[45] += [lambda: twr(0), lambda: cvt(1, 0)]; fill[46] += [lambda: trr(0), lambda: cvt(1, 1)]
    fill[47].append(lambda: twr(1)); fill[48].append(lambda: trr(1))
    if 'nox' not in OPT and 'xinT' in OPT:
        for k, i in zip([6, 7, 0, 1, 2, 3, 4, 5], [0, 2, 4, 6, 8, 10, 12, 14]): fill[i].insert(0, lambda k=k: xload(k))
    rdfrag(0); rdfrag(1)
    for i, (L, jj) in enumerate(seq):
        lg.wait(('f', jj))
        A.I(f'v_smfmac_f32_16x16x64_bf16 {v(TACC+4*L,4)}, {v(RING+4*(jj%8),4)}, {wreg(i)}, {v(vIDX)}')
        if i == 0: stamp(A, 8, prof > 1)
        if i == 24: stamp(A, 9, prof > 1)
        for f in fill[i]: f()
    stamp(A, 2, prof > 1)
    if 'xinT' in OPT: A.I('s_waitcnt vmcnt(0)')
    smm1(3, 1, True); smm1(3, 2, True)
    cvt(2, 0); cvt(2, 1); twr(2); trr(2)
    smm1(3, 0, True)
    A.I('s_cbranch_vccnz L_sc_redo')
    for L in (0, 1, 2):
        for t in (1, 2, 0): smm1(L, t)
    stamp(A, 10, prof > 1)
    hintB(0)
    Z = RING + 4
    for r in range(4): A.I(f'v_cndmask_b32 {v(Z+4+r)}, {v(SACC+4+r)}, {v(SACC+8+r)}, {s(sMHI,2)}')
    A.I(f'''
    ds_write_b128 {v(vSW)}, {v(Z+4,4)}
    v_cndmask_b32 {v(Z)}, {v(SACC)}, {v(SACC+1)}, {s(sMHI,2)}
    v_cndmask_b32 {v(Z+1)}, {v(SACC+2)}, {v(SACC+3)}, {s(sMHI,2)}
    v_cndmask_b32 {v(Z)}, {v(Z)}, {v(Z+1)}, {s(sMG,2)}
    ds_write_b32 {v(vSM)}, {v(Z)}
    ''')
    stamp(A, 11, prof > 1)
    hintB(1)
    A.I('s_waitcnt lgkmcnt(0)')
    stamp(A, 12, prof > 1)
    A.I('s_barrier')
    stamp(A, 3, prof)
    for k in range(4): A.I(f'ds_read_b64 {v(Z+2*k,2)}, {v(vSR)} offset:{k*1408}')
    hintB(2)
    E, M = Z + 8, Z + 10
    dpp = lambda k: f'row_ror:{k} row_mask:0xf bank_mask:0xf'
    A.I(f'''
    s_waitcnt lgkmcnt(2)
    v_pk_add_f32 {v(Z,2)}, {v(Z,2)}, {v(Z+2,2)}
    s_waitcnt lgkmcnt(0)
    v_pk_add_f32 {v(Z+4,2)}, {v(Z+4,2)}, {v(Z+6,2)}
    v_pk_add_f32 {v(Z,2)}, {v(Z,2)}, {v(Z+4,2)}
    ''')
    stamp(A, 13, prof > 1)
    hintB(3)
    def summ(a):
        A.I(f'''
        v_exp_f32 {v(E)}, {v(a)}
        v_exp_f32 {v(E+1)}, {v(a+1)}
        v_add_f32 {v(M)}, {v(E)}, {v(E+1)}
        ''')
        for k in (8, 4, 2, 1): A.I(f'v_add_f32_dpp {v(M)}, {v(M)}, {v(M)} {dpp(k)}')
        A.I(f'''
        v_mov_b32 {v(M+1)}, {v(M)}
        v_permlane16_swap_b32 {v(M)}, {v(M+1)}
        v_add_f32 {v(M)}, {v(M)}, {v(M+1)}
        ''')
    def truemax():
        A.I(f'v_max_f32 {v(M)}, {v(Z)}, {v(Z+1)}')
        for k in (8, 4, 2, 1): A.I(f'v_max_f32_dpp {v(M)}, {v(M)}, {v(M)} {dpp(k)}')
        A.I(f'''
        v_mov_b32 {v(M+1)}, {v(M)}
        v_permlane16_swap_b32 {v(M)}, {v(M+1)}
        v_max_f32 {v(M)}, {v(M)}, {v(M+1)}
        v_sub_f32 {v(E)}, {v(Z)}, {v(M)}
        v_sub_f32 {v(E+1)}, {v(Z+1)}, {v(M)}
        ''')
        summ(E)
    def norm(check):
        if check:
            A.I(f'''
            v_subrev_u32 {v(M+3)}, {(127 - LIM) << 23}, {v(M)}
            v_cmp_lt_u32 vcc, {(2 * LIM) << 23}, {v(M+3)}
            ''')
        A.I(f'''
        v_rcp_f32 {v(M+2)}, {v(M)}
        v_pk_mul_f32 {v(E,2)}, {v(E,2)}, {v(M+2,2)} op_sel_hi:[1,0]
        v_cvt_pk_bf16_f32 {v(E)}, {v(E)}, {v(E+1)}
        ''')
        if check: A.I('s_cbranch_vccnz L_sc_max')
    if 'max' in OPT: truemax(); norm(False)
    else: summ(Z); stamp(A, 14, prof > 1); norm(True)
    A.label('L_sc_norm')
    A.I(f'''
    s_mov_b64 exec, {s(sEA,2)}
    global_store_dword {v(vPS)}, {v(E)}, {s(sP,2)}
    s_mov_b64 exec, {s(sEB,2)}
    global_store_dword {v(vPS)}, {v(E)}, {s(sP,2)} sc1
    s_mov_b64 exec, -1
    ''')
    stamp(A, 4, prof)
    A.I(f's_add_u32 {s(sSTEP)}, {s(sSTEP)}, 1\n s_cmp_ge_u32 {s(sSTEP)}, {NSTEP}\n s_cbranch_scc1 L_sc_end')
    addp(A, sX0, sX0, XI_SEG); addp(A, sX1, sX1, XI_SEG)
    if 'nox' not in OPT and 'xinT' not in OPT:
        for k in range(8): xload(k)
    for k in range(6): A.I(f'ds_read_b128 {v(R+4*k,4)}, {v(vRW)} offset:{k*1024}')
    for k in range(16): A.I(f'v_mov_b32 {v(TACC+k)}, 0')
    addp(A, sP, sP, PS_SLOT); addp(A, sMEM, sMEM, MEM_SLOT)
    if SDELAY: A.I(f's_sleep {SDELAY}')
    stamp(A, 5, prof)
    stamp_flush(A, prof)
    A.I('s_branch L_sc_step')
    if 'max' not in OPT:
        A.label('L_sc_max'); A.I('s_nop 1'); truemax(); norm(False); A.I('s_branch L_sc_norm')
    A.label('L_sc_redo')
    A.I('s_waitcnt vmcnt(0) lgkmcnt(0)\n s_nop 15\n s_barrier')
    for k in range(6): A.I(f'ds_read_b128 {v(R+4*k,4)}, {v(vRW)} offset:{k*1024}')
    for k in range(16): A.I(f'v_mov_b32 {v(TACC+k)}, 0')
    A.I('s_branch L_sc_mp')
    A.label('L_sc_end')
    tl(A, 1, 2, T)
    stamp_flush(A, prof)
    A.I('s_endpgm')

def value(A, prof=0):
    L_MEM, L_RB, L_WL = 0, 8192, 16384
    RBW = 32 * 48
    vIDX, vG0, vG1, vPR, vAF, vWL, vV0, vV1, vPM, vPX, vPP, vRWR, vRRD, vMS, vWPO, vZ, vDUM, vFL = range(1, 19)
    vCK = vG1; vHA = vWPO; vHB = vPP
    def hintA(pos):
        if EA == pos: A.I(f'global_store_dword {v(vHA)}, {v(vHA)}, {s(sMEM,2)} sc1' if 'slow' in OPT else f'global_store_dword {v(vHA)}, {v(vHA)}, {s(sMEM,2)}')
    ARING, HRING, VXF, WACC, WX, WY, OX, OY, PF, WV = 20, 36, 60, 92, 108, 112, 116, 120, 124, 176
    lg = Cnt(A, 'lgkmcnt', 15)
    def wreg(hh, j):
        k = (hh * 14 + j) * 8
        return a_(k, 8) if k < 256 else v(WV + k - 256, 8)
    A.label('L_value')
    chain_common(A)
    T = 20
    A.I(f'''
    s_sub_u32 {s(sROLE)}, {s(sROLE)}, 16
    v_and_b32 {v(T)}, 15, v0
    v_lshrrev_b32 {v(T+1)}, 4, v0
    v_and_b32 {v(T+2)}, 7, v0
    v_mov_b32 {v(vIDX)}, 0x4444
    v_mov_b32 {v(T+3)}, 0xeeee
    v_cmp_lt_u32 vcc, 7, {v(T)}
    v_cndmask_b32 {v(vIDX)}, {v(vIDX)}, {v(T+3)}, vcc
    ''')
    mem_poll_setup(A, vG0, vG1, vPR, T + 4)
    A.I(f'''
    v_lshlrev_b32 {v(vAF)}, 7, {v(T+1)}
    v_lshl_add_u32 {v(vAF)}, {v(T+2)}, 4, {v(vAF)}
    s_mul_i32 s40, {s(sW)}, 28672
    s_add_u32 s40, s40, {L_WL}
    v_lshl_add_u32 {v(vWL)}, v0, 4, s40
    s_lshl_b32 s40, {s(sW)}, 13
    v_lshl_add_u32 {v(vV0)}, v0, 4, s40
    v_add_u32 {v(vV1)}, 4096, {v(vV0)}
    s_mul_i32 s40, {s(sW)}, 2560
    v_and_b32 {v(T+5)}, 1, {v(T+1)}
    v_lshl_add_u32 {v(vPX)}, v0, 4, s40
    v_lshl_add_u32 {v(vPM)}, v0, 2, s40
    s_lshl_b32 s41, {s(sROLE)}, 2
    s_add_u32 s41, s41, {s(sW)}
    s_lshl_b32 s41, s41, 2
    s_add_u32 s41, s41, {7168 + MEM_SLOT}
    v_mov_b32 {v(vHA)}, s41
    v_and_b32 {v(T+7)}, 3, v0
    v_lshl_add_u32 {v(T+7)}, {s(sW)}, 2, {v(T+7)}
    v_lshlrev_b32 {v(vFL)}, 2, {v(T+7)}
    v_lshl_add_u32 {v(vHB)}, {s(sW)}, 4, {v(T)}
    v_lshlrev_b32 {v(vHB)}, 2, {v(vHB)}
    v_add_u32 {v(vHB)}, 7424, {v(vHB)}
    s_mul_i32 s40, {s(sW)}, {RBW}
    s_add_u32 s40, s40, {L_RB}
    v_lshrrev_b32 {v(T+7)}, 5, v0
    v_lshl_add_u32 {v(T+7)}, {v(T+7)}, 4, {v(T)}
    v_mul_u32_u24 {v(T+7)}, 48, {v(T+7)}
    v_lshl_add_u32 {v(T+7)}, {v(T+5)}, 4, {v(T+7)}
    v_add_u32 {v(vRWR)}, s40, {v(T+7)}
    v_lshl_add_u32 {v(T+7)}, {s(sW)}, 3, {v(T+2)}
    v_mul_u32_u24 {v(T+7)}, 48, {v(T+7)}
    v_lshrrev_b32 {v(T+8)}, 3, v0
    v_lshl_add_u32 {v(T+7)}, {v(T+8)}, 2, {v(T+7)}
    v_add_u32 {v(vRRD)}, {L_RB}, {v(T+7)}
    s_lshl_b32 s40, {s(sROLE)}, 9
    s_lshl_b32 s41, {s(sW)}, 7
    s_add_u32 s40, s40, s41
    v_lshl_add_u32 {v(vMS)}, v0, 1, s40
    s_mul_i32 s40, {s(sW)}, {4*MF_HEAD}
    s_mul_i32 s41, {s(sROLE)}, {14*2048}
    s_add_u32 s40, s40, s41
    ''')
    addp(A, sWT, sWS, MF_OFF + MF_MAT); addps(A, sWT, sWT, 40)
    wait_ready(A, 'va', T + 12)
    tl(A, 1, 4, T + 12)
    A.I(f'v_lshlrev_b32 {v(T+8)}, 4, v0')
    n = 0
    for hh in (3, 0, 1, 2):
        addp(A, 40, sWT, hh * MF_HEAD)
        for q in range(28):
            if hh == 3: dst = v(60 + 4 * q, 4)
            else:
                k = 112 * hh + 4 * q; dst = a_(k, 4) if k < 256 else v(WV + k - 256, 4)
            A.I(f'global_load_dwordx4 {dst}, {v(T+8)}, s[40:41] offset:{(q%4)*1024} sc1')
            if q % 4 == 3: addp(A, 40, 40, 4096)
            if n == 59:
                A.I('s_waitcnt vmcnt(32)')
                for k in range(28): A.I(f'ds_write_b128 {v(vWL)}, {v(60+4*k,4)} offset:{k*1024}')
            if n > 59: A.I('s_waitcnt vmcnt(40)')
            n += 1
    xcc_check(A, 'va', '-1', '-1', T)
    tl(A, 1, 1, T)
    addp(A, sMEM, sWS, MEMS_OFF); addp(A, sP, sWS, PS_OFF); addp(A, sFL, sWS, FL_OFF)
    A.I(f's_mul_i32 s40, {s(sROLE)}, {VX_SC}'); addp(A, sVX, sWS, VX_OFF); addps(A, sVX, sVX, 40)
    def flagwait(tag, loaded):
        if loaded:
            A.I(f'v_cmp_eq_u32 vcc, 0, {v(vDUM)}\n s_cbranch_vccz L_{tag}_ok')
        A.I(f'''
L_{tag}:
        global_load_dword {v(vDUM)}, {v(vFL)}, {s(sFL,2)} sc1
        s_add_u32 {s(sBUD)}, {s(sBUD)}, 1
        s_cmp_gt_u32 {s(sBUD)}, {BUDGET}
        s_cbranch_scc1 L_bail
        s_waitcnt vmcnt(0)
        v_cmp_eq_u32 vcc, 0, {v(vDUM)}
        s_cbranch_vccnz L_{tag}
L_{tag}_ok:
        ''')
    if 'noflag' not in OPT: flagwait('va_f0', False)
    tl(A, 1, 3, T)
    addp(A, sFL, sFL, 256)
    if prof:
        A.I(f's_add_u32 s40, {s(sROLE)}, 16\n s_lshl_b32 s40, s40, 2\n s_add_u32 s40, s40, {s(sW)}\n s_lshl_b32 s40, s40, 12')
        addp(A, sDBG, sWS, END_OFF); addps(A, sDBG, sDBG, 40)
    A.I('s_waitcnt vmcnt(0) lgkmcnt(0)')
    def vxload(k):
        hh, t = k >> 1, k & 1
        A.I(f'global_load_dwordx4 {v(VXF+16*t+4*hh,4)}, {v(vV0 if hh < 2 else vV1)}, {s(sVX,2)} offset:{(hh&1)*2048+t*1024} ' + ('nt' if 'vxnt' in OPT else '' if 'vxplain' in OPT else 'sc1'))
    def rdh(j):
        for k in range(2):
            A.I(f'ds_read_b128 {v(HRING+8*(j%3)+4*k,4)}, {v(vWL)} offset:{(2*j+k)*1024}'); lg.add(('h', j))
    def rda(j):
        A.I(f'ds_read_b128 {v(ARING+4*(j%4),4)}, {v(vAF)} offset:{j*512}'); lg.add(('a', j))
    def prep():
        for k in range(16): A.I(f'v_mov_b32 {v(WACC+k)}, 0')
        rdh(0); rdh(1)
    prep()
    A.label('L_va_step')
    stamp(A, 0, prof)
    mem_poll(A, 'va', vG0, vG1, vPR, PF + 24)
    stamp(A, 1, prof)
    lg.clear()
    rda(0); rda(1); rda(2)
    for j in range(14):
        lg.wait(('a', j))
        for hh in range(4):
            if hh == 3: lg.wait(('h', j))
            w = wreg(hh, j) if hh < 3 else v(HRING + 8 * (j % 3), 8)
            A.I(f'v_smfmac_f32_16x16x64_bf16 {v(WACC+4*hh,4)}, {v(ARING+4*(j%4),4)}, {w}, {v(vIDX)}')
            if hh == 0 and j + 2 < 14: rdh(j + 2)
            if hh == 1 and j + 3 < 14: rda(j + 3)
            if hh == 2 and j < 8 and 'novx' not in OPT: vxload(j)
            if hh == 2 and j == 8: A.I(f'global_load_dword {v(vDUM)}, {v(vFL)}, {s(sFL,2)} sc1')
            if hh == 2:
                if j == 0: A.I(f'v_mov_b32 {v(vCK)}, {v(ARING)}')
                else: A.I(f'v_max_u32 {v(vCK)}, {v(vCK)}, {v(ARING+4*(j%4))}')
            if hh == 3 and j == 13: A.I(f'v_cmp_eq_u32 vcc, {s(sSENT)}, {v(vCK)}')
    A.I('s_cbranch_vccnz L_va_redo')
    for k in range(2):
        for p in range(2):
            A.I(f'v_cvt_pk_bf16_f32 {v(WX+2*k+p)}, {v(WACC+8*p+2*k)}, {v(WACC+8*p+2*k+1)}')
            A.I(f'v_cvt_pk_bf16_f32 {v(WY+2*k+p)}, {v(WACC+8*p+4+2*k)}, {v(WACC+8*p+4+2*k+1)}')
    for k in range(4): A.I(f'v_permlane32_swap_b32 {v(WX+k)}, {v(WY+k)}')
    stamp(A, 2, prof)
    if 'vxwait' in OPT:
        A.I('s_waitcnt vmcnt(0)'); stamp(A, 6, prof)
    def prnd(F):
        A.I(f'''
        global_load_dwordx4 {v(F,4)}, {v(vPX)}, {s(sP,2)} sc1
        global_load_dwordx4 {v(F+4,4)}, {v(vPX)}, {s(sP,2)} offset:1024 sc1
        global_load_dword {v(F+8)}, {v(vPM)}, {s(sP,2)} offset:2048 sc1
        global_load_dword {v(F+9)}, {v(vPM)}, {s(sP,2)} offset:2304 sc1
        ''')
    def pchk(F, n):
        A.I(f'''
        s_waitcnt vmcnt({n})
        v_max3_u32 {v(vCK)}, {v(F)}, {v(F+4)}, {v(F+8)}
        v_max_u32 {v(vCK)}, {v(vCK)}, {v(F+9)}
        v_cmp_eq_u32 vcc, {s(sSENT)}, {v(vCK)}
        v_smfmac_f32_16x16x64_bf16 {v(OX,4)}, {v(F,4)}, {v(VXF,8)}, {v(vIDX)}
        v_smfmac_f32_16x16x64_bf16 {v(OY,4)}, {v(F,4)}, {v(VXF+16,8)}, {v(vIDX)}
        ''')
    def pfin(F):
        stamp(A, 3, prof)
        hintA(0)
        A.I(f'''
        v_smfmac_f32_16x16x64_bf16 {v(OX,4)}, {v(F+4,4)}, {v(VXF+8,8)}, {v(vIDX)}
        v_smfmac_f32_16x16x64_bf16 {v(OY,4)}, {v(F+4,4)}, {v(VXF+24,8)}, {v(vIDX)}
        v_smfmac_f32_16x16x32_bf16 {v(OX,4)}, {v(F+8,2)}, {v(WX,4)}, {v(vIDX)}
        v_smfmac_f32_16x16x32_bf16 {v(OY,4)}, {v(F+8,2)}, {v(WY,4)}, {v(vIDX)}
        ''')
    def pbud():
        A.I(f'''
        s_add_u32 {s(sBUD)}, {s(sBUD)}, 1
        s_cmp_gt_u32 {s(sBUD)}, {BUDGET}
        s_cbranch_scc1 L_bail
        ''')
    def pzero():
        for k in range(8): A.I(f'v_mov_b32 {v(OX+k)}, 0')
    if PDELAY: A.I(f's_sleep {PDELAY}')
    if EB >= 0: hint_spin(A, 'va_h', vHB, PF + 12, 0)
    if 'ptrig' in OPT:
        A.I(f'''
        global_load_dword {v(PF+12)}, {v(vPM)}, {s(sP,2)} offset:2304 sc1
L_va_pt:
        global_load_dword {v(PF+13)}, {v(vPM)}, {s(sP,2)} offset:2304 sc1
        s_waitcnt vmcnt(1)
        v_cmp_eq_u32 vcc, {s(sSENT)}, {v(PF+12)}
        s_cbranch_vccz L_va_ptok
        global_load_dword {v(PF+12)}, {v(vPM)}, {s(sP,2)} offset:2304 sc1
        ''')
        pbud()
        A.I(f'''
        s_waitcnt vmcnt(1)
        v_cmp_eq_u32 vcc, {s(sSENT)}, {v(PF+13)}
        s_cbranch_vccnz L_va_pt
L_va_ptok:
        ''')
    if 'prog' in OPT:
        F = PF
        A.label('L_va_pp'); prnd(PF); pbud(); pzero()
        A.I(f'''
        s_waitcnt vmcnt(3)
        v_smfmac_f32_16x16x64_bf16 {v(OX,4)}, {v(F,4)}, {v(VXF,8)}, {v(vIDX)}
        v_smfmac_f32_16x16x64_bf16 {v(OY,4)}, {v(F,4)}, {v(VXF+16,8)}, {v(vIDX)}
        s_waitcnt vmcnt(0)
        v_max3_u32 {v(vCK)}, {v(F)}, {v(F+4)}, {v(F+8)}
        v_smfmac_f32_16x16x64_bf16 {v(OX,4)}, {v(F+4,4)}, {v(VXF+8,8)}, {v(vIDX)}
        v_max_u32 {v(vCK)}, {v(vCK)}, {v(F+9)}
        v_smfmac_f32_16x16x64_bf16 {v(OY,4)}, {v(F+4,4)}, {v(VXF+24,8)}, {v(vIDX)}
        v_cmp_eq_u32 vcc, {s(sSENT)}, {v(vCK)}
        v_smfmac_f32_16x16x32_bf16 {v(OX,4)}, {v(F+8,2)}, {v(WX,4)}, {v(vIDX)}
        v_smfmac_f32_16x16x32_bf16 {v(OY,4)}, {v(F+8,2)}, {v(WY,4)}, {v(vIDX)}
        s_cbranch_vccnz L_va_pp
        ''')
        stamp(A, 3, prof)
    elif 'nospec' in OPT:
        F = PF
        pzero()
        A.label('L_va_pp'); prnd(PF); pbud()
        A.I(f'''
        s_waitcnt vmcnt(0)
        v_max3_u32 {v(vCK)}, {v(F)}, {v(F+4)}, {v(F+8)}
        v_max_u32 {v(vCK)}, {v(vCK)}, {v(F+9)}
        v_cmp_eq_u32 vcc, {s(sSENT)}, {v(vCK)}
        s_cbranch_vccnz L_va_pp
        v_smfmac_f32_16x16x64_bf16 {v(OX,4)}, {v(F,4)}, {v(VXF,8)}, {v(vIDX)}
        v_smfmac_f32_16x16x64_bf16 {v(OY,4)}, {v(F,4)}, {v(VXF+16,8)}, {v(vIDX)}
        ''')
        pfin(PF)
    elif 'pp2' not in OPT:
        A.label('L_va_pp'); prnd(PF); pbud(); pzero(); pchk(PF, 0); A.I('s_cbranch_vccnz L_va_pp'); pfin(PF)
    else:
        PG = PF + 12
        prnd(PF)
        A.label('L_va_pp'); prnd(PG); pbud(); pzero(); pchk(PF, 4); A.I('s_cbranch_vccz L_va_ppa')
        prnd(PF); pbud(); pzero(); pchk(PG, 4); A.I('s_cbranch_vccnz L_va_pp')
        pfin(PG); A.I('s_branch L_va_ppj')
        A.label('L_va_ppa'); pfin(PF)
        A.label('L_va_ppj')
    stamp(A, 8, prof > 1)
    hintA(1)
    for r in range(4): A.I(f'v_permlane32_swap_b32 {v(OX+r)}, {v(OY+r)}')
    A.I(f'''
    v_pk_add_f32 {v(OX,2)}, {v(OX,2)}, {v(OY,2)}
    v_pk_add_f32 {v(OX+2,2)}, {v(OX+2,2)}, {v(OY+2,2)}
    ds_write_b128 {v(vRWR)}, {v(OX,4)}
    ''')
    stamp(A, 9, prof > 1)
    hintA(2)
    A.I('s_waitcnt lgkmcnt(0)')
    stamp(A, 10, prof > 1)
    A.I('s_barrier')
    stamp(A, 11, prof > 1)
    Z = ARING
    for k in range(4): A.I(f'ds_read_b32 {v(Z+k)}, {v(vRRD)} offset:{k*RBW}')
    hintA(3)
    addp(A, sMEM, sMEM, MEM_SLOT); addp(A, sP, sP, PS_SLOT)
    A.I(f'''
    s_waitcnt lgkmcnt(0)
    ''')
    stamp(A, 12, prof > 1)
    A.I(f'''
    v_pk_add_f32 {v(Z,2)}, {v(Z,2)}, {v(Z+2,2)}
    v_add_f32 {v(Z)}, {v(Z)}, {v(Z+1)}
    v_cvt_pk_bf16_f32 {v(vZ)}, {v(Z)}, {v(Z)}
    s_mov_b64 exec, {s(sEA,2)}
    global_store_short {v(vMS)}, {v(vZ)}, {s(sMEM,2)}
    s_mov_b64 exec, {s(sEB,2)}
    global_store_short {v(vMS)}, {v(vZ)}, {s(sMEM,2)} sc1
    s_mov_b64 exec, -1
    ''')
    stamp(A, 4, prof)
    A.I(f's_add_u32 {s(sSTEP)}, {s(sSTEP)}, 1\n s_cmp_ge_u32 {s(sSTEP)}, {NSTEP}\n s_cbranch_scc1 L_va_end')
    if 'noflag' not in OPT: flagwait('va_f1', True)
    addp(A, sVX, sVX, 14 * VX_SC); addp(A, sFL, sFL, 256)
    lg.clear(); prep()
    if VDELAY: A.I(f's_sleep {VDELAY}')
    stamp(A, 5, prof)
    stamp_flush(A, prof)
    A.I('s_branch L_va_step')
    A.label('L_va_redo')
    A.I('s_waitcnt vmcnt(0) lgkmcnt(0)\n s_nop 15\n s_barrier')
    lg.clear(); prep()
    A.I('s_branch L_va_mp')
    A.label('L_va_end')
    tl(A, 1, 2, T)
    stamp_flush(A, prof)
    A.I('s_endpgm')

def helper(A):
    vG0, vX, vP, vM, vV, vF, D = 1, 2, 3, 4, 5, 6, 8
    A.label('L_helper')
    chain_common(A)
    A.I(f'''
    s_sub_u32 {s(sROLE)}, {s(sROLE)}, 30
    s_mul_i32 {s(sLB)}, {s(sW)}, 1792
    v_lshlrev_b32 {v(vG0)}, 4, v0
    v_add_u32 {v(vG0)}, {s(sLB)}, {v(vG0)}
    s_mov_b32 {s(sM48)}, -1
    s_mov_b32 {s(sM48+1)}, 0xffff
    s_mul_i32 s40, {s(sW)}, 7168
    v_min_u32 {v(vX)}, 55, v0
    v_lshl_add_u32 {v(vX)}, {v(vX)}, 7, s40
    s_mul_i32 s40, {s(sW)}, 2560
    v_min_u32 {v(vP)}, 19, v0
    v_lshl_add_u32 {v(vP)}, {v(vP)}, 7, s40
    v_min_u32 {v(vM)}, 17, v0
    v_lshl_add_u32 {v(vM)}, {v(vM)}, 7, {s(sLB)}
    s_lshl_b32 s40, {s(sROLE)}, 2
    s_add_u32 s40, s40, {s(sW)}
    s_mul_i32 s40, s40, {7*8192}
    v_lshl_add_u32 {v(vV)}, v0, 7, s40
    v_and_b32 {v(vF)}, 15, v0
    v_lshlrev_b32 {v(vF)}, 2, {v(vF)}
    v_mov_b32 {v(D+4)}, 0
    v_mov_b32 {v(D+5)}, 0
    v_mov_b32 {v(D+6)}, 0
    v_mov_b32 {v(D+7)}, 0
    ''')
    sM2 = sX1
    wait_ready(A, 'he', 20)
    addp(A, sMEM, sWS, MEMS_OFF); addp(A, sMT, sWS, MEMT_OFF); addp(A, sP, sWS, PS_OFF); addp(A, sM2, sWS, MEMS_OFF + MEM_SLOT); addp(A, sX0, sWS, XI_OFF)
    addp(A, sVX, sWS, VX_OFF + 14 * VX_SC); addp(A, sFL, sWS, FL_OFF + 256)
    A.I(f'''
    global_load_dword v20, {v(vX)}, {s(sX0,2)} sc1
    global_load_dword v21, {v(vP)}, {s(sP,2)} sc1
    global_load_dword v22, {v(vM)}, {s(sM2,2)} sc1
    ''')
    addp(A, sX0, sX0, 28672); addp(A, sP, sP, PS_SLOT); addp(A, sM2, sM2, MEM_SLOT)
    A.I(f'global_load_dword v20, {v(vX)}, {s(sX0,2)} sc1')
    addp(A, sX0, sX0, 28672)
    A.I(f'''
L_he_step:
    s_sleep {HSLEEP}
    global_load_dwordx4 {v(D,4)}, {v(vG0)}, {s(sMEM,2)} sc1
    s_mov_b64 exec, {s(sM48,2)}
    global_load_dwordx4 {v(D+4,4)}, {v(vG0)}, {s(sMEM,2)} offset:1024 sc1
    s_mov_b64 exec, -1
    global_load_dword v23, {v(vF)}, {s(sFL,2)} sc1
    s_add_u32 {s(sBUD)}, {s(sBUD)}, 1
    s_cmp_gt_u32 {s(sBUD)}, {BUDGET}
    s_cbranch_scc1 L_bail
    s_waitcnt vmcnt(0)
    v_max3_u32 v16, {v(D)}, {v(D+1)}, {v(D+2)}
    v_max3_u32 v16, v16, {v(D+3)}, {v(D+4)}
    v_max3_u32 v16, v16, {v(D+5)}, {v(D+6)}
    v_max_u32 v16, v16, {v(D+7)}
    v_cmp_eq_u32 vcc, {s(sSENT)}, v16
    s_cbranch_vccnz L_he_step
    s_add_u32 {s(sSTEP)}, {s(sSTEP)}, 1
    s_cmp_lg_u32 {s(sROLE)}, 0
    s_cbranch_scc1 L_he_nox
    global_store_dwordx4 {v(vG0)}, {v(D,4)}, {s(sMT,2)} sc1
    s_mov_b64 exec, {s(sM48,2)}
    global_store_dwordx4 {v(vG0)}, {v(D+4,4)}, {s(sMT,2)} offset:1024 sc1
    s_mov_b64 exec, -1
    s_cmp_ge_u32 {s(sSTEP)}, {NSTEP}
    s_cbranch_scc1 L_he_nox
    global_load_dword v20, {v(vX)}, {s(sX0,2)} sc1
    global_load_dword v21, {v(vP)}, {s(sP,2)} sc1
    global_load_dword v22, {v(vM)}, {s(sM2,2)} sc1
L_he_nox:
    s_cmp_ge_u32 {s(sSTEP)}, {NSTEP}
    s_cbranch_scc1 L_he_nov
    v_cmp_eq_u32 vcc, 0, v23
    s_cbranch_vccnz L_he_nov
    ''')
    if 'vpf' in OPT:
        A.I(f's_mov_b64 s[40:41], {s(sVX,2)}')
        for k in range(7):
            A.I(f'global_load_dword {v(24+k)}, {v(vV)}, s[40:41] sc1')
            if k < 6: addp(A, 40, 40, 8192)
    A.label('L_he_nov')
    addp(A, sX0, sX0, 28672); addp(A, sP, sP, PS_SLOT); addp(A, sM2, sM2, MEM_SLOT); addp(A, sMEM, sMEM, MEM_SLOT); addp(A, sMT, sMT, MEM_SLOT)
    addp(A, sVX, sVX, 14 * VX_SC); addp(A, sFL, sFL, 256)
    A.I(f'''
    s_cmp_le_u32 {s(sSTEP)}, {NSTEP}
    s_cbranch_scc1 L_he_step
    s_endpgm
    ''')
```

```python
from asmlib import *
from layout import *
import struct
def f32(x): return hex(struct.unpack('<I', struct.pack('<f', x))[0])
def addp(A, dst, src, off):
    A.I(f's_add_u32 {s(dst)}, {s(src)}, {off & 0xffffffff}')
    A.I(f's_addc_u32 {s(dst+1)}, {s(src+1)}, 0')
def addps(A, dst, src, sreg):
    A.I(f's_add_u32 {s(dst)}, {s(src)}, {s(sreg)}')
    A.I(f's_addc_u32 {s(dst+1)}, {s(src+1)}, 0')
def dpp(k): return f'row_ror:{k} row_mask:0xf bank_mask:0xf'
CSC = 1.4426950408889634 / 16
KA_X, KA_MEM0, KA_WQ, KA_WK, KA_WV, KA_WO, KA_W1, KA_W2, KA_GW, KA_OUT, KA_DBG, KA_WS = 0, 8, 16, 24, 32, 40, 64, 72, 80, 88, 96, 104

TL = {'on': 0}
TL_OFF = END_OFF + 0x80000
def tl(A, kern, idx, vt, ws=8):
    if not TL['on']: return
    A.I(f'''
    s_memrealtime s[72:73]
    s_lshl_b32 s74, s70, 6
    s_add_u32 s74, s74, {TL_OFF + kern * 32768 + idx * 4}
    s_waitcnt lgkmcnt(0)
    v_mov_b32 {v(vt)}, s74
    v_mov_b32 {v(vt+1)}, s72
    global_store_dword {v(vt)}, {v(vt+1)}, {s(ws,2)}
    ''')
```

```python
from common import *
LDNT = ''
DB_B, DB_A, DB_X, DB_XCC = 0, 64, 128, 160
sW, sWS, sDB = 4, 8, 96
BUDGET = 1 << 20

def signal(A, off_sreg, vt):
    A.I(f'''
    s_waitcnt vmcnt(0)
    s_barrier
    v_mov_b32 {v(vt)}, {s(off_sreg)}
    v_mov_b32 {v(vt+1)}, 1
    s_cmp_lg_u32 {s(sW)}, 0
    s_cbranch_scc1 L_sig{signal.n}
    s_mov_b64 exec, 1
    global_atomic_add {v(vt)}, {v(vt+1)}, {s(sDB,2)} sc1
    s_mov_b64 exec, -1
L_sig{signal.n}:
    ''')
    signal.n += 1
signal.n = 0

def wait_ready(A, tag, vt, amask=None):
    A.I(f'''
    s_cmp_lg_u32 {s(sW)}, 0
    s_cbranch_scc1 L_{tag}_rb
    v_min_u32 {v(vt)}, 32, v0
    v_cmp_eq_u32 vcc, 32, {v(vt)}
    v_lshlrev_b32 {v(vt)}, 2, {v(vt)}
    v_cndmask_b32 {v(vt+1)}, 14, 32, vcc
    s_mov_b32 s40, 0xffff
    s_mov_b32 s41, 1
    s_mov_b32 s42, 0
    ''')
    if amask is not None:
        A.I(f's_add_u32 s43, {s(amask)}, 16\n s_bitset1_b32 s40, s43')
    A.I(f'''
L_{tag}_rp:
    global_load_dword {v(vt+2)}, {v(vt)}, {s(sDB,2)} sc1
    s_add_u32 s42, s42, 1
    s_cmp_gt_u32 s42, {BUDGET}
    s_cbranch_scc1 L_bail
    s_waitcnt vmcnt(0)
    v_cmp_ne_u32 vcc, {v(vt+2)}, {v(vt+1)}
    s_and_b64 vcc, vcc, s[40:41]
    s_cbranch_vccz L_{tag}_rb
    s_sleep 2
    s_branch L_{tag}_rp
L_{tag}_rb:
    s_barrier
    ''')

def gemm_jobs(A, sN):
    sU, sV, sO, sH, sJB, sB, sHF = 10, 12, 14, 16, 17, 18, 19
    A.I(f'''
    s_load_dwordx8 s[24:31], s[0:1], {KA_WQ}
    s_mul_i32 {s(sH)}, {s(sN)}, 4682
    s_lshr_b32 {s(sH)}, {s(sH)}, 16
    s_mul_i32 s20, {s(sH)}, 14
    s_sub_u32 {s(sJB)}, {s(sN)}, s20
    s_cmp_ge_u32 {s(sJB)}, 7
    s_cselect_b32 {s(sHF)}, 1, 0
    s_mul_i32 s20, {s(sHF)}, 7
    s_sub_u32 {s(sJB)}, {s(sJB)}, s20
    s_lshl_b32 s22, {s(sN)}, 13
    s_lshl_b32 s23, {s(sW)}, 11
    s_add_u32 s22, s22, s23
    v_lshl_add_u32 v3, v0, 4, s22
    v_mov_b32 v4, {SENT}
    v_mov_b32 v5, {SENT}
    v_mov_b32 v6, {SENT}
    v_mov_b32 v7, {SENT}
    ''')
    addp(A, 20, sWS, FILL_OFF)
    A.I('global_store_dwordx4 v3, v[4:7], s[20:21] sc1\n global_store_dwordx4 v3, v[4:7], s[20:21] offset:1024 sc1')
    VA, VB, VR, VU, VV, vO, VL = 8, 12, 16, 20, 24, 28, 32
    UF, RING, ACC, OUT = 64, 128, 160, 176
    UBUF = 112 * 1024
    A.I(f'''
    v_lshlrev_b32 {v(vO)}, 4, v0
    v_lshrrev_b32 v3, 5, v0
    v_and_b32 v4, 31, v0
    s_lshl_b32 s20, {s(sW)}, 4
    ''')
    for b in range(4):
        A.I(f'''
        v_add_u32 v5, {2*b}, v3
        v_and_b32 v6, 3, v5
        v_lshlrev_b32 v6, 2, v6
        v_xor_b32 v6, v6, v4
        v_xor_b32 v6, {(b>>1)<<1}, v6
        v_add_u32 v5, s20, v5
        v_lshlrev_b32 v5, 13, v5
        v_lshl_add_u32 {v(VA+b)}, v6, 4, v5
        ''')
    A.I(f'''
    v_and_b32 v5, 3, v1
    v_lshlrev_b32 v5, 2, v5
    v_bfe_u32 v6, v1, 2, 1
    v_lshl_add_u32 v5, v6, 1, v5
    s_and_b32 s21, {s(sW)}, 1
    s_lshl_b32 s21, s21, 5
    v_add_u32 v6, s21, v1
    v_lshlrev_b32 v6, 9, v6
    v_add_u32 v6, {UBUF}, v6
    ''')
    for b in range(4):
        A.I(f'''
        v_add_u32 v7, {4*b}, v2
        v_xor_b32 v7, v7, v5
        v_lshlrev_b32 {v(VL+b)}, 4, v7
        v_add_u32 {v(VU+b)}, {v(VL+b)}, v6
        ''')
    A.I(f's_lshl_b32 {s(sB)}, {s(sW)}, 13\n s_waitcnt lgkmcnt(0)')
    def body(mat):
        vm = Cnt(A, 'vmcnt', 63); lg = Cnt(A, 'lgkmcnt', 15)
        pu, pv = (24, 26) if mat == 0 else (28, 30)
        A.I(f'''
        s_lshl_b32 s20, {s(sJB)}, 19
        s_lshl_b32 s21, {s(sH)}, 9
        s_add_u32 s20, s20, s21
        ''')
        addps(A, sU, pu, 20)
        A.I(f'''
        s_mul_i32 s20, {s(sH)}, {MF_HEAD}
        s_lshr_b32 s22, {s(sW)}, 1
        s_mul_i32 s23, {s(sHF)}, 7
        s_add_u32 s22, s22, s23
        s_mul_i32 s22, s22, 14
        s_and_b32 s23, {s(sW)}, 1
        s_add_u32 s22, s22, s23
        s_lshl_b32 s23, {s(sJB)}, 1
        s_add_u32 s22, s22, s23
        s_lshl_b32 s22, s22, 11
        s_add_u32 s20, s20, s22
        ''')
        addp(A, sO, sWS, MF_OFF + mat * MF_MAT); addps(A, sO, sO, 20)
        if mat == 0:
            A.I(f's_mul_i32 s22, {s(sHF)}, {224*8192}\n s_add_u32 s21, s21, s22')
            addps(A, sV, pv, 21)
            A.I(f's_lshl_b32 s20, {s(sW)}, 4')
            for b in range(4):
                A.I(f'''
                v_add_u32 v5, {2*(b&1)}, v3
                v_lshlrev_b32 v6, 2, v5
                v_xor_b32 v6, v6, v4
                v_xor_b32 v6, {(b>>1)<<1}, v6
                v_add3_u32 v5, s20, v5, {8*(b>>1)}
                v_lshlrev_b32 v5, 13, v5
                v_lshl_add_u32 {v(VB+b)}, v6, 4, v5
                ''')
            A.I(f'''
            s_lshr_b32 s21, {s(sW)}, 1
            s_lshl_b32 s21, s21, 5
            v_lshrrev_b32 v5, 2, v1
            v_and_b32 v6, 3, v1
            v_lshl_add_u32 v5, v5, 3, v6
            v_add_u32 v5, s21, v5
            v_lshlrev_b32 v5, 9, v5
            ''')
            for b in range(4): A.I(f'v_add_u32 {v(VR+b)}, {v(VL+b)}, v5')
        else:
            A.I(f'''
            s_mul_i32 s21, {s(sH)}, {256*896}
            s_mul_i32 s22, {s(sW)}, {64*896}
            s_add_u32 s21, s21, s22
            s_mul_i32 s22, {s(sHF)}, 448
            s_add_u32 s21, s21, s22
            ''')
            addps(A, sV, pv, 21)
            A.I(f'''
            v_lshrrev_b32 v5, 3, v0
            v_and_b32 v6, 7, v0
            v_bfe_u32 v7, v0, 4, 1
            v_lshlrev_b32 v7, 1, v7
            v_xor_b32 v6, v6, v7
            v_mul_u32_u24 v5, 896, v5
            v_lshl_add_u32 {v(VB)}, v6, 4, v5
            v_and_b32 v29, 3, v6
            v_lshl_add_u32 {v(VB+2)}, v29, 4, v5
            v_xor_b32 v6, 4, v6
            v_lshl_add_u32 {v(VB+1)}, v6, 4, v5
            v_add_u32 {v(VB+1)}, {8*896}, {v(VB+1)}
            v_add_u32 {v(VB+3)}, {8*896}, {v(VB+2)}
            v_bfe_u32 v5, v0, 2, 2
            v_lshl_add_u32 v6, v2, 3, v5
            v_lshlrev_b32 v6, 7, v6
            v_and_b32 v7, 1, v0
            v_lshl_add_u32 v6, v7, 3, v6
            v_and_b32 v5, 2, v5
            v_and_b32 v7, 1, v2
            v_lshl_add_u32 v5, v7, 2, v5
            v_bfe_u32 v7, v0, 1, 1
            v_xor_b32 v5, v5, v7
            s_lshr_b32 s21, {s(sW)}, 1
            s_lshl_b32 s21, s21, 2
            v_xor_b32 v5, s21, v5
            v_lshl_add_u32 {v(VR)}, v5, 4, v6
            v_xor_b32 v5, 2, v5
            v_lshl_add_u32 {v(VR+1)}, v5, 4, v6
            ''')
        def dma(vaddr, base, lds, tag):
            A.I(f's_add_u32 m0, {s(sB)}, {lds}')
            A.I(f'global_load_lds_dwordx4 {v(vaddr)}, {s(base,2)} {LDNT}'); vm.add(tag)
        for kk in range(8):
            if kk == 4: addp(A, sU, sU, 65536)
            dma(VA + (kk & 3), sU, UBUF + kk * 1024, 'U')
        for cc in range(4):
            if mat == 0:
                if cc == 3:
                    A.I(f'''
                    s_cmp_ge_u32 {s(sW)}, 2
                    s_cselect_b32 s20, {32*8192}, 0
                    s_cselect_b32 s21, 32768, 0
                    s_sub_u32 {s(sV)}, {s(sV)}, s20
                    s_subb_u32 {s(sV+1)}, {s(sV+1)}, 0
                    s_add_u32 {s(sB)}, {s(sB)}, s21
                    ''')
                addp(A, 22, sV, 32768)
                for kk in range(8): dma(VB + (kk & 1) + 2 * (kk >> 2), 22 if kk & 2 else sV, cc * 32768 + kk * 1024, ('V', cc))
                if cc < 3: addp(A, sV, sV, 64 * 8192)
            elif cc < 3:
                A.I(f's_mov_b64 s[22:23], {s(sV,2)}')
                for kk in range(8):
                    dma(VB + (kk & 1), 22, cc * 32768 + kk * 1024, ('V', cc))
                    if kk & 1 and kk < 7: addp(A, 22, 22, 16 * 896)
                addp(A, sV, sV, 128)
        vm.wait('U'); A.I('s_barrier')
        for tp in range(2):
            for kk in range(8):
                A.I(f'ds_read_b128 {v(UF + 32*tp + 4*kk, 4)}, {v(VU + (kk&3))} offset:{(kk>>2)*256 + tp*8192}')
            A.I('s_waitcnt lgkmcnt(0)')
        nreg = 4 if mat == 0 else 2
        for cc in range(4):
            buf = cc * 32768 if (mat == 0 or cc < 3) else 96 * 1024
            for b in range(nreg): A.I(f'v_add_u32 {v(VV+b)}, {buf}, {v(VR+b)}')
            vm.wait(('V', cc)); A.I('s_barrier')
            if mat == 1 and cc == 0:
                for kk in range(8):
                    dma(VB + 2 + (kk & 1), sV, 96 * 1024 + kk * 1024, ('V', 3))
                    if kk & 1 and kk < 7: addp(A, sV, sV, 16 * 896)
            if cc == 3: A.I(f's_cmp_ge_u32 {s(sW)}, 2\n s_cbranch_scc1 L_pj_done{mat}')
            def rd(kk):
                r = RING + 8 * (kk % 3)
                for y in range(2):
                    if mat == 0:
                        A.I(f'ds_read_b128 {v(r+4*y,4)}, {v(VV+(kk&3))} offset:{(kk>>2)*256 + y*2048}'); lg.add((kk, y))
                    else:
                        for hi in range(2):
                            A.I(f'ds_read_b64_tr_b16 {v(r+4*y+2*hi,2)}, {v(VV+y)} offset:{kk*4096 + hi*512}'); lg.add((kk, y))
            rd(0); rd(1)
            for kk in range(8):
                r = RING + 8 * (kk % 3)
                for y in range(2):
                    lg.wait((kk, y))
                    for tp in range(2):
                        acc = v(ACC + 8*tp + 4*y, 4)
                        A.I(f'v_mfma_f32_16x16x32_bf16 {acc}, {v(UF+32*tp+4*kk,4)}, {v(r+4*y,4)}, {acc if kk else 0}')
                        if y == 0 and tp == 0 and kk + 2 < 8: rd(kk + 2)
            o = OUT + 8 * (cc & 1)
            if mat == 0:
                for k in range(16): A.I(f'v_mul_f32 {v(ACC+k)}, {f32(CSC)}, {v(ACC+k)}')
            for tp in range(2):
                for k in range(2):
                    for y in range(2):
                        A.I(f'v_cvt_pk_bf16_f32 {v(o+4*tp+2*k+y)}, {v(ACC+8*tp+4*y+2*k)}, {v(ACC+8*tp+4*y+2*k+1)}')
            A.I(f'global_store_dwordx4 {v(vO)}, {v(o,4)}, {s(sO,2)} sc1'); vm.add('st')
            A.I(f'global_store_dwordx4 {v(vO)}, {v(o+4,4)}, {s(sO,2)} offset:1024 sc1'); vm.add('st')
            addp(A, sO, sO, 2 * 14 * 2048)
        A.label(f'L_pj_done{mat}')
        A.I(f's_lshl_b32 s20, {s(sH)}, 2')
        if mat == 0: A.I(f's_add_u32 s20, s20, {DB_A}')
        signal(A, 20, 30)
        tl(A, 0, 1 + (1 - mat), 200)
    body(1)
    body(0)

def x_job(A, sI):
    sX, sXI, sXD, sG = 10, 12, 14, 16
    GW, D = 40, 72
    A.I(f'''
    s_load_dwordx4 s[32:35], s[0:1], {KA_X}
    s_load_dwordx2 s[36:37], s[0:1], {KA_GW}
    s_mul_i32 s20, {s(sI)}, {2*XI_SEG}
    s_mul_i32 s21, {s(sW)}, 7168
    s_add_u32 s22, s20, s21
    s_waitcnt lgkmcnt(0)
    ''')
    addps(A, sX, 32, 22)
    addp(A, sXI, sWS, XI_OFF); addps(A, sXI, sXI, 22)
    addp(A, sXD, sWS, XD_OFF); addps(A, sXD, sXD, 22)
    A.I(f'v_lshlrev_b32 v3, 4, v0')
    for sg in range(2):
        for k in range(7):
            A.I(f's_add_u32 m0, s21, {sg*32768 + k*1024 - (k%4)*1024}')
            A.I(f'global_load_lds_dwordx4 v3, {s(sX,2)} offset:{(k%4)*1024}')
            if k == 3: addp(A, sX, sX, 4096)
        addp(A, sX, sX, XI_SEG - 4096)
    A.I('v_and_b32 v4, 7, v0\n v_lshlrev_b32 v5, 4, v4')
    for i in range(7): A.I(f'global_load_dwordx4 {v(GW+4*i,4)}, v5, s[36:37] offset:{128*i}')
    A.I(f'''
    v_mov_b32 v8, 0
    v_mov_b32 v9, 0
    s_lshl_b32 s22, {s(sI)}, 9
    v_lshl_add_u32 v6, v0, 3, s22
    ''')
    addp(A, 22, sWS, FL_OFF); A.I('global_store_dwordx2 v6, v[8:9], s[22:23] sc1')
    A.I(f's_cmp_lg_u32 {s(sI)}, 31\n s_cbranch_scc1 L_p_nomem')
    addp(A, 22, sWS, MEMS_OFF)
    A.I(f's_mul_i32 s30, {s(sW)}, 112')
    for k in range(2):
        A.I(f'''
        v_min_u32 v6, {63 if k == 0 else 47}, v0
        v_add3_u32 v6, v6, s30, {64*k}
        v_and_b32 v7, 7, v6
        v_mul_u32_u24 v7, 896, v7
        v_lshrrev_b32 v10, 3, v6
        v_lshl_add_u32 v7, v10, 4, v7
        global_load_dwordx4 v[12:15], v7, s[34:35]
        v_lshlrev_b32 v6, 4, v6
        s_waitcnt vmcnt(0)
        ''')
        for r in range(4): A.I(f'v_cmp_eq_u32 vcc, {SENT}, {v(12+r)}\n v_cndmask_b32 {v(12+r)}, {v(12+r)}, -1, vcc')
        A.I('global_store_dwordx4 v6, v[12:15], s[22:23] sc1')
    A.label('L_p_nomem')
    A.I(f'''
    v_mul_u32_u24 v6, 896, v1
    v_lshl_add_u32 v7, v2, 3, v6
    v_lshl_add_u32 v6, v2, 4, v6
    v_lshrrev_b32 v10, 3, v0
    v_lshl_add_u32 v11, {s(sW)}, 3, v10
    v_mul_u32_u24 v12, 896, v11
    v_add_u32 v12, v12, v5
    v_lshlrev_b32 v11, 2, v11
    s_lshl_b32 s22, {s(sI)}, 8
    s_waitcnt vmcnt(0)
    s_barrier
    ''')
    addp(A, sG, sWS, G_OFF); addps(A, sG, sG, 22)
    for sg in range(2):
        for k in range(7):
            A.I(f'''
            s_mul_i32 s22, {s(sW)}, 7
            s_add_u32 s22, s22, {k}
            s_and_b32 s23, s22, 1
            s_mul_i32 s23, s23, 14336
            s_lshr_b32 s22, s22, 1
            s_lshl_b32 s22, s22, 6
            s_add_u32 s22, s22, s23
            s_add_u32 s22, s22, {sg*32768}
            v_add_u32 v13, s22, v6
            v_add_u32 v14, s22, v7
            ds_read_b128 {v(D+8*k,4)}, v13
            ds_read2_b64 {v(D+8*k+4,4)}, v14 offset0:0 offset1:4
            ''')
        A.I('s_waitcnt lgkmcnt(0)')
        for k in range(7):
            A.I(f'global_store_dwordx4 v3, {v(D+8*k,4)}, {s(sXI,2)} offset:{(k%4)*1024} sc1')
            A.I(f'global_store_dwordx4 v3, {v(D+8*k+4,4)}, {s(sXD,2)} offset:{(k%4)*1024} sc1')
            if k == 3: addp(A, sXI, sXI, 4096); addp(A, sXD, sXD, 4096)
        addp(A, sXI, sXI, XI_SEG - 4096); addp(A, sXD, sXD, XI_SEG - 4096)
        X = 140
        for i in range(7): A.I(f'ds_read_b128 {v(X+4*i,4)}, v12 offset:{sg*32768 + 128*i}')
        A.I('v_mov_b32 v16, 0\n v_mov_b32 v17, 0\n s_waitcnt lgkmcnt(0)')
        for i in range(28):
            A.I(f'''
            v_lshlrev_b32 v18, 16, {v(X+i)}
            v_lshlrev_b32 v19, 16, {v(GW+i)}
            v_fmac_f32 v16, v18, v19
            v_and_b32 v18, 0xffff0000, {v(X+i)}
            v_and_b32 v19, 0xffff0000, {v(GW+i)}
            v_fmac_f32 v17, v18, v19
            ''')
        A.I(f'''
        v_add_f32 v16, v16, v17
        v_add_f32_dpp v16, v16, v16 quad_perm:[1,0,3,2] row_mask:0xf bank_mask:0xf
        v_add_f32_dpp v16, v16, v16 quad_perm:[2,3,0,1] row_mask:0xf bank_mask:0xf
        v_add_f32_dpp v16, v16, v16 row_half_mirror row_mask:0xf bank_mask:0xf
        v_mul_f32 v16, {f32(-1.4426950408889634)}, v16
        v_exp_f32 v16, v16
        v_add_f32 v16, 1.0, v16
        v_rcp_f32 v16, v16
        global_store_dword v11, v16, {s(sG,2)} offset:{sg*128} sc1
        ''')
    A.I(f's_mov_b32 s20, {DB_X}')
    signal(A, 20, 30)
    tl(A, 0, 2, 200)
```

```python
from common import *
from prep import wait_ready
BUDGET = 1 << 20
sH, sW, sSEG, sBUD, sSENT = 3, 4, 5, 6, 7
sWS = 8
sA, sB_, sC_, sD, sE, sF = 10, 12, 14, 16, 18, 20
sREP, sLB, sPAR = 22, 23, 24
sM0, sM1 = 26, 28
T0 = 40

def wave_setup(A):
    A.I(f'''
    v_lshlrev_b32 v3, 4, v0
    s_mov_b32 {s(sBUD)}, 0
    s_mov_b32 {s(sSENT)}, {SENT}
    ''')

def budget(A):
    A.I(f's_add_u32 {s(sBUD)}, {s(sBUD)}, 1\n s_cmp_gt_u32 {s(sBUD)}, {BUDGET}\n s_cbranch_scc1 L_bail')

def p0p3(A, d0, d3):
    A.I(f'''
    s_and_b32 s46, {s(sW)}, 1
    s_lshr_b32 {s(d3)}, {s(sW)}, 1
    s_mul_i32 {s(d3)}, {s(d3)}, 7
    s_lshl_b32 {s(d0)}, s46, 2
    s_add_u32 {s(d0)}, {s(d0)}, {s(d3)}
    s_add_u32 {s(d3)}, {s(d3)}, 3
    s_sub_u32 {s(sPAR)}, 0, s46
    s_mov_b32 {s(sPAR+1)}, {s(sPAR)}
    ''')

WV, WS_ = 176, 120
def wtile(t, j):
    if t == 6: return v(WS_ + 4 * j, 4)
    k = (t * 14 + j) * 4
    return a_(k, 4) if k < 256 else v(WV + k - 256, 4)
def wmov(t, j, r):
    k = (t * 14 + j) * 4 + r
    return ('v_accvgpr_write_b32', a_(k)) if k < 256 else ('v_mov_b32', v(WV + k - 256))

def load_head(A, mat):
    p0p3(A, 40, 41)
    A.I(f'''
    s_mul_i32 s42, {s(sH)}, {MF_HEAD}
    s_mul_i32 s43, s40, {14*2048}
    s_add_u32 s43, s43, s42
    s_mul_i32 s44, s41, {14*2048}
    s_add_u32 s44, s44, s42
    ''')
    addp(A, sA, sWS, MF_OFF + mat * MF_MAT); addps(A, sB_, sA, 44); addps(A, sA, sA, 43)
    vm = Cnt(A, 'vmcnt', 63)
    ST, N = 32, 11
    blocks = [(L, j) for L in range(4) for j in range(14)]
    def issue(i):
        L, j = blocks[i]; r = ST + 8 * (i % N); base = sA if L < 3 else sB_
        o = (j & 1) * 2048
        A.I(f'global_load_dwordx4 {v(r,4)}, v3, {s(base,2)} offset:{o} sc1'); vm.add(i)
        A.I(f'global_load_dwordx4 {v(r+4,4)}, v3, {s(base,2)} offset:{o+1024} sc1'); vm.add(i)
        if j & 1: addp(A, base, base, 4096)
    for i in range(N): issue(i)
    for i, (L, j) in enumerate(blocks):
        vm.wait(i); r = ST + 8 * (i % N)
        if L < 3:
            for k in range(8):
                op, d = wmov(2 * L + (k & 1), j, k >> 1); A.I(f'{op} {d}, {v(r+k)}')
        else:
            for k in range(4): A.I(f'v_cndmask_b32 {v(WS_+4*j+k)}, {v(r+2*k)}, {v(r+2*k+1)}, {s(sPAR,2)}')
        if i + N < len(blocks): issue(i + N)

def xdma(A, ptr, toggle=True):
    for k in range(7):
        A.I(f's_add_u32 m0, {s(sLB)}, {k*1024 - (k%4)*1024}')
        A.I(f'global_load_lds_dwordx4 v3, {s(ptr,2)} offset:{(k%4)*1024} sc1')
        if k == 3: addp(A, ptr, ptr, 4096)
    addp(A, ptr, ptr, 4 * XI_SEG - 4096)

def xsetup(A, ptr):
    A.I(f'''
    s_mul_i32 {s(sLB)}, {s(sW)}, 7168
    s_mul_i32 s40, {s(sREP)}, {XI_SEG}
    s_add_u32 s40, s40, {s(sLB)}
    s_mov_b32 {s(sSEG)}, {s(sREP)}
    ''')
    addp(A, ptr, sWS, XD_OFF); addps(A, ptr, ptr, 40)

def gemm(A, ntile, wt, acc, ring, vX, offs, wfirst, extra=None):
    lg = Cnt(A, 'lgkmcnt', 15)
    def rd(j, tt):
        A.I(f'ds_read_b128 {v(ring + 8*(j%3) + 4*tt, 4)}, {v(vX)} offset:{j*2048 + offs[tt]}'); lg.add((j, tt))
    for j in range(2): rd(j, 0); rd(j, 1)
    n = 0
    for j in range(14):
        for tt in range(2):
            lg.wait((j, tt))
            x = v(ring + 8*(j%3) + 4*tt, 4)
            for t in range(ntile):
                d = v(acc + 8*t + 4*tt, 4)
                a, b = (wt(t, j), x) if wfirst else (x, wt(t, j))
                A.I(f'v_mfma_f32_16x16x32_bf16 {d}, {a}, {b}, {d if j else 0}')
                if t == 0 and j + 2 < 14: rd(j + 2, tt)
                if extra: extra(n)
                n += 1

def flag_store(A, ptr, vOne, vZero):
    A.I(f'global_store_dword {v(vZero)}, {v(vOne)}, {s(ptr,2)} sc1')

def mem_fetch(A, tag, ptr, vG, D, lds):
    A.I(f'''
L_{tag}_mf:
    global_load_dwordx4 {v(D,4)}, {v(vG)}, {s(ptr,2)} sc1
    global_load_dwordx4 {v(D+4,4)}, {v(vG+1)}, {s(ptr,2)} sc1
    ''')
    budget(A)
    A.I(f'''
    s_waitcnt vmcnt(0)
    v_max3_u32 {v(D+8)}, {v(D)}, {v(D+1)}, {v(D+2)}
    v_max3_u32 {v(D+8)}, {v(D+8)}, {v(D+3)}, {v(D+4)}
    v_max3_u32 {v(D+8)}, {v(D+8)}, {v(D+5)}, {v(D+6)}
    v_max_u32 {v(D+8)}, {v(D+8)}, {v(D+7)}
    v_cmp_eq_u32 vcc, {s(sSENT)}, {v(D+8)}
    s_cbranch_vccz L_{tag}_mg
    s_sleep 4
    s_branch L_{tag}_mf
L_{tag}_mg:
    ds_write_b128 {v(vG)}, {v(D,4)} offset:{lds}
    ds_write_b128 {v(vG+1)}, {v(D+4,4)} offset:{lds}
    s_waitcnt lgkmcnt(0)
    s_barrier
    ''')

def mem_fetch_setup(A, vG):
    A.I(f'''
    s_mul_i32 s40, {s(sW)}, 1792
    v_add_u32 {v(vG)}, s40, v3
    v_min_u32 {v(vG+1)}, 47, v0
    v_lshlrev_b32 {v(vG+1)}, 4, {v(vG+1)}
    v_add3_u32 {v(vG+1)}, {v(vG+1)}, s40, s40
    v_subrev_u32 {v(vG+1)}, s40, {v(vG+1)}
    v_add_u32 {v(vG+1)}, 1024, {v(vG+1)}
    ''')

def tokv(A):
    ACC, RING, O = 64, 32, 8
    vX, vXc, vOne, vZero, vG, vMA, vWT = 4, 5, 6, 7, 56, 58, 59
    L_MEM = 57344
    sX, sVO, sVS, sFL, sMT, sWT = sA, sB_, sC_, sD, sE, sF
    A.label('L_tokv')
    wave_setup(A)
    wait_ready(A, 'tv', 8)
    load_head(A, 1)
    tl(A, 1, 1, 8)
    xsetup(A, sX); xdma(A, sX)
    p0p3(A, 40, 41)
    A.I(f'''
    s_mul_i32 s42, {s(sREP)}, {14*VX_SC}
    s_lshl_b32 s43, {s(sH)}, 11
    s_add_u32 s42, s42, s43
    s_lshl_b32 s43, s40, 15
    s_add_u32 s43, s43, s42
    s_lshl_b32 s44, s41, 15
    s_add_u32 s44, s44, s42
    s_and_b32 s45, {s(sW)}, 1
    s_lshl_b32 s45, s45, 10
    s_add_u32 s44, s44, s45
    v_lshrrev_b32 v8, 3, v1
    v_lshlrev_b32 v8, 10, v8
    v_lshl_add_u32 v8, v2, 8, v8
    v_and_b32 v9, 7, v0
    v_lshl_add_u32 {v(vX)}, v9, 4, v8
    v_mov_b32 {v(vOne)}, 1
    v_mov_b32 {v(vZero)}, 0
    ''')
    addp(A, sVO, sWS, VX_OFF); addps(A, sVS, sVO, 44); addps(A, sVO, sVO, 43)
    A.I(f's_lshl_b32 s42, {s(sREP)}, 8\n s_lshl_b32 s43, {s(sH)}, 2\n s_add_u32 s42, s42, s43')
    addp(A, sFL, sWS, FL_OFF); addps(A, sFL, sFL, 42)
    A.I(f'v_mov_b32 {v(vXc)}, {v(vX)}')
    A.label('L_tv_item')
    A.I(f'''
    s_waitcnt vmcnt(0)
    s_barrier
    s_cmp_lt_u32 {s(sSEG)}, 4
    s_cbranch_scc1 L_tv_nofl
    ''')
    flag_store(A, sFL, vOne, vZero); addp(A, sFL, sFL, 1024)
    A.label('L_tv_nofl')
    A.I(f'''
    s_cmp_ge_u32 {s(sSEG)}, 64
    s_cbranch_scc1 L_tv_w
    s_xor_b32 {s(sLB)}, {s(sLB)}, 0x8000
    s_cmp_ge_u32 {s(sSEG)}, 60
    s_cbranch_scc1 L_tv_nox
    ''')
    xdma(A, sX)
    A.label('L_tv_nox')
    gemm(A, 7, wtile, ACC, RING, vXc, [0, 128], False)
    A.I(f'v_xor_b32 {v(vXc)}, 0x8000, {v(vXc)}')
    for t in range(7):
        o = O + 4 * (t % 4)
        for k in range(2):
            for tt in range(2):
                A.I(f'v_cvt_pk_bf16_f32 {v(o+2*k+tt)}, {v(ACC+8*t+4*tt+2*k)}, {v(ACC+8*t+4*tt+2*k+1)}')
        if t < 6:
            if t == 2: addp(A, 40, sVO, 32768)
            if t == 4: addp(A, 40, 40, 32768)
            A.I(f'global_store_dwordx4 v3, {v(o,4)}, {s(sVO if t < 2 else 40,2)} offset:{(t&1)*1024} sc1')
        else: A.I(f'global_store_dwordx4 v3, {v(o,4)}, {s(sVS,2)} sc1')
    addp(A, sVO, sVO, 4 * 14 * VX_SC); addp(A, sVS, sVS, 4 * 14 * VX_SC)
    A.I(f's_add_u32 {s(sSEG)}, {s(sSEG)}, 4\n s_branch L_tv_item')
    A.label('L_tv_w')
    tl(A, 1, 3, 8)
    mem_fetch_setup(A, vG)
    p0p3(A, 40, 41)
    A.I(f'''
    s_mov_b32 {s(sSEG)}, {s(sREP)}
    v_lshrrev_b32 v8, 1, v2
    v_lshlrev_b32 v8, 7, v8
    v_and_b32 v9, 7, v0
    v_lshl_add_u32 v8, v9, 4, v8
    v_and_b32 v9, 1, v2
    v_lshl_add_u32 v8, v9, 3, v8
    v_add_u32 {v(vMA)}, {L_MEM}, v8
    s_and_b32 s42, {s(sH)}, 3
    s_lshl_b32 s42, s42, 8
    v_lshl_add_u32 v8, v1, 4, s42
    v_lshl_add_u32 {v(vWT)}, v9, 3, v8
    s_mul_i32 s42, {s(sREP)}, {WT_SEG}
    s_lshr_b32 s43, {s(sH)}, 2
    s_mul_i32 s43, s43, {28*1024}
    s_add_u32 s42, s42, s43
    s_lshl_b32 s43, s40, 11
    s_add_u32 s43, s43, s42
    s_lshl_b32 s44, s41, 11
    s_add_u32 s44, s44, s42
    s_and_b32 s45, {s(sW)}, 1
    s_lshl_b32 s45, s45, 10
    s_add_u32 s44, s44, s45
    ''')
    addp(A, sVO, sWS, WT_OFF); addps(A, sVS, sVO, 44); addps(A, sVO, sVO, 43)
    A.I(f's_lshl_b32 s42, {s(sREP)}, 8\n s_lshl_b32 s43, {s(sH)}, 2\n s_add_u32 s42, s42, s43')
    addp(A, sFL, sWS, FL_OFF + 128); addps(A, sFL, sFL, 42)
    A.I(f's_lshl_b32 s42, {s(sREP)}, 13')
    addp(A, sMT, sWS, MEMT_OFF); addps(A, sMT, sMT, 42)
    A.label('L_tw_item')
    mem_fetch(A, 'tw', sMT, vG, 8, L_MEM)
    lg = Cnt(A, 'lgkmcnt', 15)
    def rd(j):
        A.I(f'ds_read2_b64 {v(RING+4*(j%4),4)}, {v(vMA)} offset0:{(j%3)*64} offset1:{(j%3)*64+32}'); lg.add(j)
        if j % 3 == 2: A.I(f'v_add_u32 {v(vMA)}, 1536, {v(vMA)}')
    for j in range(3): rd(j)
    for j in range(14):
        lg.wait(j)
        for t in range(7):
            d = v(ACC + 4*t, 4)
            A.I(f'v_mfma_f32_16x16x32_bf16 {d}, {v(RING+4*(j%4),4)}, {wtile(t,j)}, {d if j else 0}')
            if t == 0 and j + 3 < 14: rd(j + 3)
    A.I(f'v_subrev_u32 {v(vMA)}, {4*1536}, {v(vMA)}')
    A.I('s_mov_b32 exec_hi, 0')
    for t in range(7):
        o = O + 2 * t
        for k in range(2): A.I(f'v_cvt_pk_bf16_f32 {v(o+k)}, {v(ACC+4*t+2*k)}, {v(ACC+4*t+2*k+1)}')
        if t == 4: addp(A, 40, sVO, 4096)
        if t < 6: A.I(f'global_store_dwordx2 {v(vWT)}, {v(o,2)}, {s(sVO if t < 4 else 40,2)} offset:{(t%4)*1024} sc1')
        else: A.I(f'global_store_dwordx2 {v(vWT)}, {v(o,2)}, {s(sVS,2)} sc1')
    A.I('s_mov_b64 exec, -1\n s_waitcnt vmcnt(0)\n s_barrier')
    flag_store(A, sFL, vOne, vZero)
    addp(A, sFL, sFL, 1024); addp(A, sMT, sMT, 4 * MEM_SLOT); addp(A, sVO, sVO, 4 * WT_SEG); addp(A, sVS, sVS, 4 * WT_SEG)
    A.I(f's_add_u32 {s(sSEG)}, {s(sSEG)}, 4\n s_cmp_lt_u32 {s(sSEG)}, 64\n s_cbranch_scc1 L_tw_item'); tl(A, 1, 2, 8); A.I('s_endpgm')

def tokt(A):
    ACC, RING = 64, 32
    TB = 8
    vX, vXc, vOne, vZero, vG, vMB0, vMB1, vSW, vSR0, vSR1, vPX, vXI0, vXI1 = 4, 5, 6, 7, 56, 58, 59, 60, 61, 62, 63, 4, 1
    vGT = 2
    L_MEM, L_SB = 61440, 61440 + 8192
    SBW = 32 * 176
    sX, sXI, sPX, sFL, sMT, sG = sA, sB_, sC_, sD, sE, sF
    sK = 48
    sCC, sM5, sMK0 = 30, 32, 34
    A.label('L_tokt')
    wave_setup(A)
    wait_ready(A, 'tt', 8, sH)
    load_head(A, 0)
    tl(A, 1, 1, 8)
    xsetup(A, sX); xdma(A, sX)
    mem_fetch_setup(A, vG)
    p0p3(A, 40, 41)
    A.I(f'''
    v_mov_b32 {v(vXc)}, v3
    v_mov_b32 {v(vOne)}, 1
    v_mov_b32 {v(vZero)}, 0
    s_lshl_b32 s42, s40, 11
    v_add_u32 {v(vXI0)}, s42, v3
    s_lshl_b32 s42, s41, 11
    s_and_b32 s45, {s(sW)}, 1
    s_lshl_b32 s45, s45, 3
    s_add_u32 s42, s42, s45
    v_add_u32 v20, s42, v3
    v_and_b32 v9, 7, v0
    v_lshlrev_b32 v8, 7, v2
    v_lshl_add_u32 v8, v9, 4, v8
    s_lshl_b32 s42, s40, 9
    s_add_u32 s42, s42, {L_MEM}
    v_add_u32 {v(vMB0)}, s42, v8
    s_lshl_b32 s42, s41, 9
    s_add_u32 s42, s42, s45
    s_add_u32 s42, s42, {L_MEM}
    v_add_u32 {v(vMB1)}, s42, v8
    s_mul_i32 s42, {s(sW)}, {SBW}
    s_add_u32 s42, s42, {L_SB}
    v_mul_u32_u24 v8, 176, v1
    v_lshl_add_u32 v8, v2, 4, v8
    v_add_u32 {v(vSW)}, s42, v8
    v_lshrrev_b32 v10, 3, v0
    v_lshl_add_u32 v10, {s(sW)}, 3, v10
    v_min_u32 v11, 4, v9
    v_subrev_u32 v11, 1, v11
    v_lshrrev_b32 v12, 1, v11
    v_and_b32 v13, 1, v11
    v_lshlrev_b32 v13, 2, v13
    v_lshl_add_u32 v13, v12, 4, v13
    v_lshlrev_b32 v14, 2, v13
    v_add_u32 v14, 32, v14
    v_add_u32 v15, 32, v14
    v_cmp_eq_u32 {s(sMK0,2)}, 0, v9
    v_cndmask_b32 v14, v14, 0, {s(sMK0,2)}
    v_cndmask_b32 v15, v15, 16, {s(sMK0,2)}
    v_mul_u32_u24 v8, 176, v10
    v_add_u32 v8, {L_SB}, v8
    v_add_u32 {v(vSR0)}, v8, v14
    v_add_u32 {v(vSR1)}, v8, v15
    v_lshlrev_b32 {v(vGT)}, 2, v10
    v_mov_b32 {v(vXI1)}, v20
    v_cmp_gt_u32 {s(sM5,2)}, 5, v9
    ''')
    for i in range(8):
        A.I(f'''
        v_add_u32 v8, {8*(i>>2) + (i&3)}, v13
        v_cmp_le_u32 vcc, v8, v10
        s_or_b64 vcc, vcc, {s(sMK0,2)}
        s_and_b64 {s(sK+2*i,2)}, vcc, {s(sM5,2)}
        ''')
    A.I(f'''
    s_and_b32 s42, {s(sH)}, 3
    v_mov_b32 v8, s42
    v_cndmask_b32 v12, v11, v8, {s(sMK0,2)}
    v_cndmask_b32 v8, v8, 4, {s(sMK0,2)}
    v_lshrrev_b32 v14, 4, v10
    v_lshl_add_u32 v8, v8, 1, v14
    v_lshlrev_b32 v8, 10, v8
    v_and_b32 v14, 15, v10
    v_lshl_add_u32 v14, v12, 4, v14
    v_lshl_add_u32 {v(vPX)}, v14, 4, v8
    s_mul_i32 s42, {s(sREP)}, {PX_SEG}
    s_lshr_b32 s43, {s(sH)}, 2
    s_mul_i32 s43, s43, 10240
    s_add_u32 s42, s42, s43
    ''')
    addp(A, sPX, sWS, PX_OFF); addps(A, sPX, sPX, 42)
    A.I(f's_mul_i32 s42, {s(sREP)}, {XI_SEG}'); addp(A, sXI, sWS, XI_OFF); addps(A, sXI, sXI, 42)
    A.I(f's_lshl_b32 s42, {s(sREP)}, 8\n s_lshl_b32 s43, {s(sH)}, 2\n s_add_u32 s42, s42, s43')
    addp(A, sFL, sWS, FL_OFF + 64); addps(A, sFL, sFL, 42)
    A.I(f's_lshl_b32 s42, {s(sREP)}, 13'); addp(A, sMT, sWS, MEMT_OFF); addps(A, sMT, sMT, 42)
    A.I(f's_lshl_b32 s42, {s(sREP)}, 7'); addp(A, sG, sWS, G_OFF); addps(A, sG, sG, 42)
    A.label('L_tt_item')
    A.I(f'''
    s_waitcnt vmcnt(0)
    s_barrier
    s_xor_b32 {s(sLB)}, {s(sLB)}, 0x8000
    s_cmp_ge_u32 {s(sSEG)}, 60
    s_cbranch_scc1 L_tt_nox
    ''')
    xdma(A, sX)
    A.label('L_tt_nox')
    gemm(A, 7, wtile, ACC, RING, vXc, [0, 1024], True)
    A.I(f'v_xor_b32 {v(vXc)}, 0x8000, {v(vXc)}')
    for tt in range(2):
        for t in range(7):
            for k in range(2):
                d = TB + 8*(t>>1) + 4*tt + 2*(t&1) + k if t < 6 else TB + 24 + 2*tt + k
                A.I(f'v_cvt_pk_bf16_f32 {v(d)}, {v(ACC+8*t+4*tt+2*k)}, {v(ACC+8*t+4*tt+2*k+1)}')
    XF, MB, SA, vGV = 64, 36, 96, 0
    addp(A, 40, sXI, 4096)
    for L in range(3):
        for t in range(2):
            A.I(f'global_load_dwordx4 {v(XF+8*L+4*t,4)}, {v(vXI0)}, {s(sXI if L < 2 else 40,2)} offset:{(L&1)*2048+t*1024} sc1')
    for t in range(2): A.I(f'global_load_dwordx2 {v(XF+24+2*t,2)}, {v(vXI1)}, {s(sXI,2)} offset:{t*1024} sc1')
    A.I(f'global_load_dword {v(vGV)}, {v(vGT)}, {s(sG,2)} sc1\n s_waitcnt vmcnt(0)')
    def smm(a4, a2, tt, d):
        for L in range(3): A.I(f'v_mfma_f32_16x16x32_bf16 {v(d,4)}, {v(a4(L),4)}, {v(TB+8*L+4*tt,4)}, {v(d,4) if L else 0}')
        A.I(f'v_mfma_f32_16x16x16_bf16 {v(d,4)}, {v(a2,2)}, {v(TB+24+2*tt,2)}, {v(d,4)}')
    smm(lambda L: XF + 8*L, XF + 24, 0, SA); smm(lambda L: XF + 8*L, XF + 24, 1, SA + 4); smm(lambda L: XF + 8*L + 4, XF + 26, 1, SA + 8)
    mem_fetch(A, 'tt', sMT, vG, 64, L_MEM)
    for L in range(3): A.I(f'ds_read_b128 {v(MB+4*L,4)}, {v(vMB0)} offset:{L*512}')
    A.I(f'ds_read_b64 {v(MB+12,2)}, {v(vMB1)}\n s_waitcnt lgkmcnt(0)')
    smm(lambda L: MB + 4*L, MB + 12, 0, SA + 12); smm(lambda L: MB + 4*L, MB + 12, 1, SA + 16)
    A.I(f'''
    ds_write_b128 {v(vSW)}, {v(SA+12,4)}
    ds_write_b128 {v(vSW)}, {v(SA+16,4)} offset:{16*176}
    ds_write_b128 {v(vSW)}, {v(SA,4)} offset:32
    ds_write_b128 {v(vSW)}, {v(SA+4,4)} offset:{16*176+32}
    ds_write_b128 {v(vSW)}, {v(SA+8,4)} offset:{16*176+96}
    s_waitcnt lgkmcnt(0)
    s_barrier
    ''')
    Z, M = 64, 36
    for k in range(4):
        A.I(f'ds_read_b128 {v(Z+8*k,4)}, {v(vSR0)} offset:{k*SBW}\n ds_read_b128 {v(Z+8*k+4,4)}, {v(vSR1)} offset:{k*SBW}')
    A.I(f'v_mov_b32 {v(M+1)}, 0xff800000\n s_waitcnt lgkmcnt(0)')
    for a, b in ((0, 8), (16, 24), (0, 16)):
        for k in range(0, 8, 2): A.I(f'v_pk_add_f32 {v(Z+a+k,2)}, {v(Z+a+k,2)}, {v(Z+b+k,2)}')
    for i in range(8): A.I(f'v_cndmask_b32 {v(Z+i)}, {v(M+1)}, {v(Z+i)}, {s(sK+2*i,2)}')
    red = ['quad_perm:[1,0,3,2] row_mask:0xf bank_mask:0xf', 'quad_perm:[2,3,0,1] row_mask:0xf bank_mask:0xf', 'row_half_mirror row_mask:0xf bank_mask:0xf']
    A.I(f'''
    v_max3_f32 {v(M)}, {v(Z)}, {v(Z+1)}, {v(Z+2)}
    v_max3_f32 {v(M)}, {v(M)}, {v(Z+3)}, {v(Z+4)}
    v_max3_f32 {v(M)}, {v(M)}, {v(Z+5)}, {v(Z+6)}
    v_max_f32 {v(M)}, {v(M)}, {v(Z+7)}
    ''')
    for r in red: A.I(f'v_max_f32_dpp {v(M)}, {v(M)}, {v(M)} {r}')
    for i in range(8): A.I(f'v_sub_f32 {v(Z+i)}, {v(Z+i)}, {v(M)}')
    for i in range(8): A.I(f'v_exp_f32 {v(Z+i)}, {v(Z+i)}')
    A.I(f'''
    v_pk_add_f32 {v(M,2)}, {v(Z,2)}, {v(Z+2,2)}
    v_pk_add_f32 {v(M+2,2)}, {v(Z+4,2)}, {v(Z+6,2)}
    v_pk_add_f32 {v(M,2)}, {v(M,2)}, {v(M+2,2)}
    v_add_f32 {v(M)}, {v(M)}, {v(M+1)}
    ''')
    for r in red: A.I(f'v_add_f32_dpp {v(M)}, {v(M)}, {v(M)} {r}')
    A.I(f'v_rcp_f32 {v(M)}, {v(M)}\n v_mul_f32 {v(M)}, {v(M)}, {v(vGV)}')
    for i in range(8): A.I(f'v_mul_f32 {v(Z+i)}, {v(Z+i)}, {v(M)}')
    O = Z + 8
    A.I(f'''
    v_cvt_pk_bf16_f32 {v(O)}, {v(Z)}, {v(Z+1)}
    v_cvt_pk_bf16_f32 {v(O+4)}, {v(Z+2)}, {v(Z+3)}
    v_cvt_pk_bf16_f32 {v(O+5)}, {v(Z+4)}, {v(Z+5)}
    v_cvt_pk_bf16_f32 {v(O+3)}, {v(Z+6)}, {v(Z+7)}
    v_cndmask_b32 {v(O+1)}, {v(O+5)}, {v(O+4)}, {s(sMK0,2)}
    v_cndmask_b32 {v(O+2)}, {v(O+4)}, {v(O+5)}, {s(sMK0,2)}
    s_mov_b64 exec, {s(sM5,2)}
    global_store_dwordx4 {v(vPX)}, {v(O,4)}, {s(sPX,2)} sc1
    s_mov_b64 exec, -1
    s_waitcnt vmcnt(0)
    s_barrier
    ''')
    flag_store(A, sFL, vOne, vZero)
    addp(A, sFL, sFL, 1024); addp(A, sMT, sMT, 4 * MEM_SLOT); addp(A, sPX, sPX, 4 * PX_SEG); addp(A, sXI, sXI, 4 * XI_SEG); addp(A, sG, sG, 512)
    A.I(f's_add_u32 {s(sSEG)}, {s(sSEG)}, 4\n s_cmp_lt_u32 {s(sSEG)}, 64\n s_cbranch_scc1 L_tt_item'); tl(A, 1, 2, 8); A.I('s_endpgm')

def load_tr(A, ptr, stride):
    vS, vR = 8, 9
    A.I(f'''
    s_mul_i32 s42, {s(sW)}, 28672
    v_lshrrev_b32 v10, 3, v0
    v_and_b32 v11, 7, v0
    v_lshrrev_b32 v12, 4, v0
    v_lshlrev_b32 v12, 1, v12
    v_xor_b32 v11, v11, v12
    v_mul_u32_u24 v10, {stride}, v10
    v_lshl_add_u32 {v(vS)}, v11, 4, v10
    v_bfe_u32 v10, v0, 2, 2
    v_lshl_add_u32 v11, v2, 2, v10
    v_lshlrev_b32 v11, 7, v11
    v_and_b32 v12, 1, v0
    v_lshl_add_u32 v11, v12, 3, v11
    v_add_u32 v11, s42, v11
    v_and_b32 v10, 2, v10
    v_and_b32 v12, 1, v2
    v_lshl_add_u32 v10, v12, 2, v10
    v_bfe_u32 v12, v0, 1, 1
    v_xor_b32 v10, v10, v12
    ''')
    for t in range(4):
        A.I(f'v_xor_b32 v12, {2*t}, v10\n v_lshl_add_u32 {v(13+t)}, v12, 4, v11')
    for half in range(2):
        for k in range(28):
            A.I(f's_add_u32 m0, s42, {k*1024}')
            A.I(f'global_load_lds_dwordx4 {v(vS)}, {s(ptr,2)}')
            addp(A, ptr, ptr, 8 * stride)
        A.I('s_waitcnt vmcnt(0)')
        for jj in range(7):
            j = 7 * half + jj
            for t in range(4):
                for hi in range(2):
                    A.I(f'ds_read_b64_tr_b16 {a_((t*14+j)*4+2*hi,2)}, {v(13+t)} offset:{jj*4096 + hi*2048}')
            A.I('s_waitcnt lgkmcnt(0)')

def at(t, j): return a_((t * 14 + j) * 4, 4)

def ffn1(A):
    ACC, RING = 64, 32
    vXc, vOne, vZero, vGT, vOG = 5, 6, 7, 4, 56
    sX, sW1, sHO, sFL, sG = sA, sB_, sC_, sD, sE
    A.label('L_ffn1')
    A.I(f's_load_dwordx2 {s(sW1,2)}, s[0:1], {KA_W1}')
    wave_setup(A)
    A.I(f's_lshl_b32 s40, {s(sH)}, 9\n s_lshl_b32 s41, {s(sW)}, 7\n s_add_u32 s40, s40, s41\n s_waitcnt lgkmcnt(0)')
    addps(A, sW1, sW1, 40)
    load_tr(A, sW1, 3584)
    tl(A, 1, 1, 8)
    wait_ready(A, 'f1', 8)
    xsetup(A, sX); xdma(A, sX)
    A.I(f'''
    v_mov_b32 {v(vXc)}, v3
    v_mov_b32 {v(vOne)}, 1
    v_mov_b32 {v(vZero)}, 0
    v_lshlrev_b32 {v(vGT)}, 2, v1
    s_mul_i32 s42, {s(sREP)}, {HI_SEG}
    s_lshl_b32 s43, {s(sH)}, 14
    s_add_u32 s42, s42, s43
    s_lshl_b32 s43, {s(sW)}, 12
    s_add_u32 s42, s42, s43
    ''')
    addp(A, sHO, sWS, HI_OFF); addps(A, sHO, sHO, 42)
    A.I(f's_lshl_b32 s42, {s(sREP)}, 8\n s_lshl_b32 s43, {s(sH)}, 2\n s_add_u32 s42, s42, s43')
    addp(A, sFL, sWS, FL_OFF + 192); addps(A, sFL, sFL, 42)
    A.I(f's_lshl_b32 s42, {s(sREP)}, 7'); addp(A, sG, sWS, G_OFF); addps(A, sG, sG, 42)
    A.label('L_f1_item')
    A.I(f'''
    s_waitcnt vmcnt(0)
    s_barrier
    s_cmp_lt_u32 {s(sSEG)}, 4
    s_cbranch_scc1 L_f1_nofl
    ''')
    flag_store(A, sFL, vOne, vZero); addp(A, sFL, sFL, 1024)
    A.label('L_f1_nofl')
    A.I(f'''
    s_cmp_ge_u32 {s(sSEG)}, 64
    s_cbranch_scc1 L_f1_end
    global_load_dword {v(vOG)}, {v(vGT)}, {s(sG,2)} sc1
    global_load_dword {v(vOG+1)}, {v(vGT)}, {s(sG,2)} offset:64 sc1
    s_xor_b32 {s(sLB)}, {s(sLB)}, 0x8000
    s_cmp_ge_u32 {s(sSEG)}, 60
    s_cbranch_scc1 L_f1_nox
    ''')
    xdma(A, sX)
    A.label('L_f1_nox')
    gemm(A, 4, at, ACC, RING, vXc, [0, 1024], True)
    A.I(f'''
    v_xor_b32 {v(vXc)}, 0x8000, {v(vXc)}
    s_waitcnt vmcnt(0)
    v_sub_f32 {v(vOG)}, 1.0, {v(vOG)}
    v_sub_f32 {v(vOG+1)}, 1.0, {v(vOG+1)}
    ''')
    E, O = 8, 16
    for p in range(2):
        for tt in range(2):
            regs = [ACC + 8*(2*p+y) + 4*tt + r for y in range(2) for r in range(4)]
            for i, r in enumerate(regs): A.I(f'v_mul_f32 {v(E+i)}, {f32(-1.4426950408889634)}, {v(r)}')
            for i in range(8): A.I(f'v_exp_f32 {v(E+i)}, {v(E+i)}')
            for i in range(8): A.I(f'v_add_f32 {v(E+i)}, 1.0, {v(E+i)}')
            for i in range(8): A.I(f'v_rcp_f32 {v(E+i)}, {v(E+i)}')
            for i, r in enumerate(regs): A.I(f'v_mul_f32 {v(r)}, {v(r)}, {v(vOG+tt)}')
            for i, r in enumerate(regs): A.I(f'v_mul_f32 {v(E+i)}, {v(E+i)}, {v(r)}')
            o = O + 4 * (2*p + tt)
            for k in range(4): A.I(f'v_cvt_pk_bf16_f32 {v(o+k)}, {v(E+2*k)}, {v(E+2*k+1)}')
            A.I(f'global_store_dwordx4 v3, {v(o,4)}, {s(sHO,2)} offset:{(2*p+tt)*1024} sc1')
    addp(A, sHO, sHO, 4 * HI_SEG); addp(A, sG, sG, 512)
    A.I(f's_add_u32 {s(sSEG)}, {s(sSEG)}, 4\n s_branch L_f1_item')
    A.label('L_f1_end'); tl(A, 1, 2, 8); A.I('s_endpgm')

def outs(A):
    ACC, VF, WF, PF, HR = 8, 40, 104, 120, 160
    NH = 8
    vF, vFA, vRW, vRR, vO, vV1 = 4, 5, 6, 7, 224, 225
    RBW = 32 * 272
    sW2, sHI, sVX, sWT, sPX, sFL, sOUT = sA, sB_, sC_, sD, sE, sF, 30
    sMA, sMB = sM0, sM1
    A.label('L_outs')
    A.I(f's_load_dwordx2 {s(sW2,2)}, s[0:1], {KA_W2}\n s_load_dwordx2 {s(sOUT,2)}, s[0:1], {KA_OUT}')
    wave_setup(A)
    A.I(f's_mul_i32 s40, {s(sW)}, {448*896}\n s_lshl_b32 s41, {s(sH)}, 7\n s_add_u32 s40, s40, s41\n s_waitcnt lgkmcnt(0)')
    addps(A, sW2, sW2, 40)
    load_tr(A, sW2, 896)
    tl(A, 1, 1, 8)
    wait_ready(A, 'ou', 8)
    A.I(f'''
    s_mov_b32 {s(sSEG)}, {s(sREP)}
    v_lshlrev_b32 {v(vFA)}, 2, v0
    v_add_u32 {v(vV1)}, 4096, v3
    s_mov_b32 {s(sMA)}, 0x0000ffff
    s_mov_b32 {s(sMA+1)}, 0x007f0000
    s_mov_b32 {s(sMB)}, 0xffff0000
    s_mov_b32 {s(sMB+1)}, 0x0000ffff
    s_mul_i32 s42, {s(sW)}, {RBW}
    v_mul_u32_u24 {v(vRW)}, 272, v1
    v_lshl_add_u32 {v(vRW)}, v2, 4, {v(vRW)}
    v_add_u32 {v(vRW)}, s42, {v(vRW)}
    v_lshrrev_b32 v10, 3, v0
    v_lshl_add_u32 v10, {s(sW)}, 3, v10
    v_and_b32 v11, 7, v0
    v_mul_u32_u24 {v(vRR)}, 272, v10
    v_lshl_add_u32 {v(vRR)}, v11, 5, {v(vRR)}
    v_mul_u32_u24 {v(vO)}, 896, v10
    v_lshl_add_u32 {v(vO)}, v11, 4, {v(vO)}
    s_mul_i32 s42, {s(sREP)}, {32*896}
    s_lshl_b32 s43, {s(sH)}, 7
    s_add_u32 s42, s42, s43
    ''')
    addps(A, sOUT, sOUT, 42)
    A.I(f's_mul_i32 s42, {s(sREP)}, {HI_SEG}\n s_mul_i32 s43, {s(sW)}, 28672\n s_add_u32 s42, s42, s43')
    addp(A, sHI, sWS, HI_OFF); addps(A, sHI, sHI, 42)
    A.I(f's_mul_i32 s42, {s(sREP)}, {14*VX_SC}\n s_lshl_b32 s43, {s(sH)}, 16\n s_add_u32 s42, s42, s43\n s_lshl_b32 s43, {s(sW)}, 13\n s_add_u32 s42, s42, s43')
    addp(A, sVX, sWS, VX_OFF); addps(A, sVX, sVX, 42)
    A.I(f's_mul_i32 s42, {s(sREP)}, {WT_SEG}\n s_mul_i32 s43, {s(sW)}, 28672\n s_add_u32 s42, s42, s43\n s_lshl_b32 s43, {s(sH)}, 12\n s_add_u32 s42, s42, s43')
    addp(A, sWT, sWS, WT_OFF); addps(A, sWT, sWT, 42)
    A.I(f's_mul_i32 s42, {s(sREP)}, {PX_SEG}\n s_mul_i32 s43, {s(sW)}, 10240\n s_add_u32 s42, s42, s43')
    addp(A, sPX, sWS, PX_OFF); addps(A, sPX, sPX, 42)
    A.I(f's_lshl_b32 s42, {s(sREP)}, 8'); addp(A, sFL, sWS, FL_OFF); addps(A, sFL, sFL, 42)
    def wait_flags(tag, mask):
        A.I(f'''
L_{tag}:
        global_load_dword {v(vF)}, {v(vFA)}, {s(sFL,2)} sc1
        ''')
        budget(A)
        A.I(f'''
        s_waitcnt vmcnt(0)
        v_cmp_eq_u32 vcc, 0, {v(vF)}
        s_and_b64 vcc, vcc, {s(mask,2)}
        s_cbranch_vccz L_{tag}_ok
        s_sleep 4
        s_branch L_{tag}
L_{tag}_ok:
        ''')
    A.label('L_ou_item')
    wait_flags('ou_f1', sMA)
    vm = Cnt(A, 'vmcnt', 63)
    A.I(f's_mov_b64 s[40:41], {s(sHI,2)}')
    def hload(i):
        A.I(f'global_load_dwordx4 {v(HR+4*(i%(2*NH)),4)}, v3, s[40:41] offset:{(i%4)*1024} sc1'); vm.add(('h', i))
        if i % 4 == 3: addp(A, 40, 40, 4096)
    for i in range(2 * NH): hload(i)
    addp(A, 42, sVX, 32768)
    vl = [(hh, ct) for hh in range(4) for ct in range(4)]
    def vload(n):
        hh, ct = vl[n]
        A.I(f'global_load_dwordx4 {v(VF+16*hh+4*ct,4)}, {v(3 if hh < 2 else vV1)}, {s(sVX if ct < 2 else 42,2)} offset:{(hh&1)*2048+(ct&1)*1024} sc1'); vm.add(('v', n))
    for j in range(14):
        for tt in range(2):
            i = 2*j + tt
            vm.wait(('h', i))
            for ct in range(4):
                d = v(ACC + 8*ct + 4*tt, 4)
                A.I(f'v_mfma_f32_16x16x32_bf16 {d}, {at(ct,j)}, {v(HR+4*(i%(2*NH)),4)}, {d if j else 0}')
            if i + 2 * NH < 28: hload(i + 2 * NH)
            elif i - 12 < 16: vload(i - 12)
    wait_flags('ou_f2', sMB)
    vm.clear()
    addp(A, 40, sPX, 4096); addp(A, 42, sPX, 8192)
    for i in range(10):
        A.I(f'global_load_dwordx4 {v(PF+4*i,4)}, v3, {s([sPX,40,42][i>>2],2)} offset:{(i%4)*1024} sc1'); vm.add(('p', i))
        if i == 3:
            for ct in range(4):
                A.I(f'global_load_dwordx4 {v(WF+4*ct,4)}, v3, {s(sWT,2)} offset:{ct*1024} sc1'); vm.add(('w', ct))
    for k in range(5):
        for tt in range(2):
            vm.wait(('p', 2*k + tt))
            for ct in range(4):
                d = v(ACC + 8*ct + 4*tt, 4)
                a = v(VF + 16*k + 4*ct, 4) if k < 4 else v(WF + 4*ct, 4)
                A.I(f'v_mfma_f32_16x16x32_bf16 {d}, {a}, {v(PF+8*k+4*tt,4)}, {d}')
    A.I('s_barrier')
    for tt in range(2):
        for ct in range(4):
            A.I(f'ds_write_b128 {v(vRW)}, {v(ACC+8*ct+4*tt,4)} offset:{tt*16*272 + ct*64}')
    A.I('s_waitcnt lgkmcnt(0)\n s_barrier')
    Z = VF
    for k in range(4):
        A.I(f'ds_read_b128 {v(Z+8*k,4)}, {v(vRR)} offset:{k*RBW}\n ds_read_b128 {v(Z+8*k+4,4)}, {v(vRR)} offset:{k*RBW+16}')
    A.I('s_waitcnt lgkmcnt(0)')
    for a, b in ((0, 8), (16, 24), (0, 16)):
        for k in range(0, 8, 2): A.I(f'v_pk_add_f32 {v(Z+a+k,2)}, {v(Z+a+k,2)}, {v(Z+b+k,2)}')
    for k in range(4): A.I(f'v_cvt_pk_bf16_f32 {v(Z+8+k)}, {v(Z+2*k)}, {v(Z+2*k+1)}')
    A.I(f'global_store_dwordx4 {v(vO)}, {v(Z+8,4)}, {s(sOUT,2)}')
    addp(A, sOUT, sOUT, 7 * 32 * 896); addp(A, sHI, sHI, 7 * HI_SEG); addp(A, sVX, sVX, 7 * 14 * VX_SC)
    addp(A, sWT, sWT, 7 * WT_SEG); addp(A, sPX, sPX, 7 * PX_SEG); addp(A, sFL, sFL, 7 * 256)
    A.I(f's_add_u32 {s(sSEG)}, {s(sSEG)}, 7\n s_cmp_lt_u32 {s(sSEG)}, 64\n s_cbranch_scc1 L_ou_item'); A.I('s_waitcnt vmcnt(0)'); tl(A, 1, 2, 8); A.I('s_endpgm')
```

```python
import sys
from common import *
import chain, tok, prep

NAME = 'gated_mix__memory_aug_recurrent_mem_tr__dense_activation_silu__prompt'

def main_kernel(prof=0, roles=('chain', 'tokv', 'tokt', 'ffn1', 'outs')):
    A = Asm()
    A.I(f'''
    s_cmp_ge_u32 s2, 256
    s_cbranch_scc1 L_bail
    s_load_dwordx2 s[8:9], s[0:1], {KA_WS}
    s_load_dwordx2 {s(prep.sDB,2)}, s[0:1], {KA_DBG}
    v_lshrrev_b32 v1, 6, v0
    v_and_b32 v0, 63, v0
    s_and_b32 s38, s2, 7
    s_lshr_b32 s3, s2, 3
    v_readfirstlane_b32 s4, v1
    v_and_b32 v1, 15, v0
    v_lshrrev_b32 v2, 4, v0
    s_waitcnt lgkmcnt(0)
    s_mov_b32 s70, s2
    ''')
    tl(A, 1, 0, 200)
    A.I('s_cmp_lg_u32 s38, 0\n s_cbranch_scc1 L_tok0')
    chain.xcc_publish(A)
    prep.x_job(A, 3)
    A.I(f'''
    s_cmp_lt_u32 s3, 16
    s_cbranch_scc1 L_score
    s_cmp_lt_u32 s3, 30
    s_cbranch_scc1 L_value
    s_branch L_helper
L_bail:
    s_endpgm
L_tok0:
    s_sub_u32 s39, s38, 1
    s_lshl_b32 s39, s39, 5
    s_add_u32 s39, s39, s3
    ''')
    prep.gemm_jobs(A, 39)
    A.I(f'''
    s_mov_b32 s40, s38
L_tok:
    s_sub_u32 s40, s40, 1
    s_cmp_ge_u32 s3, 7
    s_cbranch_scc1 L_tok1
    s_mov_b32 {s(tok.sREP)}, s40
    s_branch {'L_outs' if 'outs' in roles else 'L_bail'}
L_tok1:
    s_cmp_ge_u32 s3, 11
    s_cbranch_scc1 L_tok2
    s_sub_u32 {s(tok.sREP)}, s3, 7
    s_mov_b32 s3, s40
    s_branch {'L_ffn1' if 'ffn1' in roles else 'L_bail'}
L_tok2:
    s_mul_i32 s40, s40, 21
    s_add_u32 s40, s40, s3
    s_sub_u32 s40, s40, 11
    s_cmp_ge_u32 s40, 128
    s_cbranch_scc1 L_bail
    s_and_b32 {s(tok.sREP)}, s40, 3
    s_lshr_b32 s3, s40, 3
    s_bitcmp1_b32 s40, 2
    s_cbranch_scc1 {'L_tokt' if 'tokt' in roles else 'L_bail'}
    s_branch {'L_tokv' if 'tokv' in roles else 'L_bail'}
    ''')
    chain.score(A, prof); chain.value(A, prof); chain.helper(A)
    tok.tokv(A); tok.tokt(A); tok.ffn1(A); tok.outs(A)
    return A

KD = '''.section .rodata,"a"
.p2align 6
.amdhsa_kernel {name}
  .amdhsa_next_free_vgpr {nv}
  .amdhsa_next_free_sgpr 102
  .amdhsa_accum_offset 256
  .amdhsa_group_segment_fixed_size 0
  .amdhsa_kernarg_size 112
  .amdhsa_user_sgpr_count 2
  .amdhsa_user_sgpr_kernarg_segment_ptr 1
  .amdhsa_system_sgpr_workgroup_id_x 1
  .amdhsa_float_denorm_mode_32 3
.end_amdhsa_kernel
'''
def full(prof=0, **kw):
    n = NAME + '_kernel'
    out = [HEADER, '; @launch grid=(256,1,1) block=(256,1,1) lds=163840',
           '.amdgcn_target "amdgcn-amd-amdhsa--gfx950"', '.text',
           f'.globl {n}', '.p2align 8', f'.type {n},@function', f'{n}:', main_kernel(prof, **kw).text(), KD.format(name=n, nv=512)]
    return '\n'.join(out)

HEADER = '''; Kernarg layout for this problem (112 bytes, ptrs only, base s[0:1]):
; second phase: memory recurrence (16 score + 14 value + 1 relay workgroups) and the token side (x B, x A + softmax, FFN, mix)'''

if __name__ == '__main__':
    open('cdna_kernels/' + NAME + '.s', 'w').write(full())
```

```python
import re

REG_RE = re.compile(r'^(-|\|)?(abs\()?([vas])(\d+|\[(\d+):(\d+)\])\)?\|?$')

def parse_reg(tok):
    tok = tok.strip()
    if tok == 'vcc': return [('s', 106), ('s', 107)]
    if tok == 'vcc_lo': return [('s', 106)]
    if tok == 'vcc_hi': return [('s', 107)]
    if tok == 'exec': return [('s', 126), ('s', 127)]
    if tok == 'm0': return [('s', 124)]
    m = REG_RE.match(tok)
    if not m: return []
    k = m.group(3)
    if m.group(5) is not None:
        return [(k, i) for i in range(int(m.group(5)), int(m.group(6)) + 1)]
    return [(k, int(m.group(4)))]

TRANS = ('v_exp_f32', 'v_log_f32', 'v_rcp_f32', 'v_rsq_f32', 'v_sqrt_f32', 'v_sin_f32', 'v_cos_f32')

class Ins:
    __slots__ = ('text', 'op', 'cls', 'w', 'r', 'ws', 'passes', 'A', 'B', 'C', 'dpp', 'data', 'sread')
    def __init__(self, text):
        self.text = text
        t = text.split(';')[0].strip()
        parts = t.split(None, 1)
        self.op = op = parts[0]
        rest = parts[1] if len(parts) > 1 else ''
        rest = re.sub(r'(\w+):\[([^\]]*)\]', lambda m: m.group(1) + ':' + m.group(2).replace(',', '_'), rest)
        ops = [o.strip() for o in rest.split(',')] if rest else []
        mods = ''
        if ops:
            last = ops[-1].split(None, 1)
            ops[-1] = last[0]
            mods = last[1] if len(last) > 1 else ''
        self.w = set(); self.r = set(); self.ws = 1; self.passes = 0
        self.A = self.B = self.C = set(); self.dpp = set(); self.data = set(); self.sread = set()
        R = [set(parse_reg(o)) for o in ops]
        if op == 's_nop':
            self.cls = 'nop'; self.ws = int(ops[0], 0) + 1
        elif op.startswith('v_mfma') or op.startswith('v_smfmac'):
            self.cls = 'mfma'
            self.passes = 8 if '32x32' in op else 4
            if '4x4x4' in op: self.passes = 2
            self.w = R[0]; self.A = R[1]; self.B = R[2]
            if op.startswith('v_smfmac'):
                self.C = set(R[0]); self.A = R[1] | R[3]
            else:
                self.C = R[3]
            self.r = self.A | self.B | self.C
        elif op.startswith('v_'):
            self.cls = 'trans' if op.replace('_e32', '').replace('_e64', '') in TRANS else 'valu'
            if op.startswith('v_swap') or op.startswith('v_permlane'):
                self.w = R[0] | R[1]; self.r = R[0] | R[1]
            elif op.startswith('v_add_co') or op.startswith('v_addc_co') or op.startswith('v_sub_co') or op.startswith('v_mad_u64'):
                self.w = R[0] | R[1]; self.r = set().union(*R[2:])
            elif op == 'v_nop':
                pass
            else:
                self.w = R[0]; self.r = set().union(*R[1:]) if len(R) > 1 else set()
                if op.startswith('v_fmac') or op.startswith('v_pk_fmac') or op.startswith('v_writelane') or op.startswith('v_dot2c'): self.r |= R[0]
                if op.startswith('v_cndmask') and len(ops) == 3: self.r |= set(parse_reg('vcc'))
            if any(k in mods for k in ('row_', 'quad_perm', 'wave_', 'row_bcast', 'row_mirror', 'row_half')):
                self.dpp = R[1]
                self.r |= R[0]
            self.sread = {x for x in self.r if x[0] == 's'}
        elif op.startswith('ds_'):
            self.cls = 'ds'
            if op.startswith('ds_read') or op.startswith('ds_bpermute') or op.startswith('ds_swizzle') or op.startswith('ds_permute'):
                self.w = R[0]; self.r = set().union(*R[1:])
            else:
                self.r = set().union(*R); self.data = set().union(*R[1:])
        elif op.startswith('global_') or op.startswith('buffer_'):
            self.cls = 'vmem'
            lds = ('_lds_' in op) or (' lds' in (' ' + mods))
            if op in ('buffer_wbl2', 'buffer_inv'):
                pass
            elif lds:
                self.r = set().union(*R) | set(parse_reg('m0')); self.cls = 'vmemlds'
            elif '_load' in op:
                self.w = R[0]; self.r = set().union(*R[1:])
            elif op.startswith('global_store'):
                self.r = set().union(*R); self.data = R[1]
            elif op.startswith('buffer_store'):
                self.r = set().union(*R); self.data = R[0]
            elif 'atomic' in op:
                if op.startswith('global_') and 'sc0' in mods:
                    self.w = R[0]; self.r = set().union(*R[1:])
                else:
                    self.r = set().union(*R)
                    if 'sc0' in mods: self.w = R[0]
            self.sread = {x for x in self.r if x[0] == 's'}
        elif op.startswith('s_'):
            self.cls = 'salu'
            if op.startswith('s_cmp') or op.startswith('s_cbranch') or op in ('s_branch', 's_barrier', 's_waitcnt', 's_endpgm', 's_sleep', 's_setprio', 's_bitcmp0_b32', 's_bitcmp1_b32'):
                self.r = set().union(*R) if R else set()
            else:
                self.w = R[0] if R else set(); self.r = set().union(*R[1:]) if len(R) > 1 else set()
                if 'saveexec' in op: self.w |= set(parse_reg('exec'))
        else:
            raise ValueError('unknown instr: ' + text)

def need(p, c):
    n = 0
    pv = p.cls in ('valu', 'trans')
    cv = c.cls in ('valu', 'trans')
    pw_v = {x for x in p.w if x[0] != 's'}
    pw_s = {x for x in p.w if x[0] == 's'}
    if pv:
        if c.cls == 'mfma' and pw_v & c.r: n = max(n, 2)
        if c.dpp and pw_v & c.dpp: n = max(n, 2)
        if c.op.startswith('v_permlane') and pw_v & c.r: n = max(n, 2)
        if (c.op.startswith('v_readlane') or c.op.startswith('v_readfirstlane')) and pw_v & c.r: n = max(n, 1)
        if p.cls == 'trans' and c.cls == 'valu' and pw_v & c.r: n = max(n, 1)
        if p.cls == 'trans' and c.cls in ('ds', 'vmem') and pw_v & c.r: n = max(n, 1)
        if pw_s:
            if cv and pw_s & c.sread: n = max(n, 4 if c.op.startswith('v_readlane') or c.op.startswith('v_writelane') else 2)
            if c.cls in ('vmem', 'vmemlds') and pw_s & c.sread: n = max(n, 5)
    if p.cls == 'mfma':
        big = {2: 5, 4: 8, 8: 12}[p.passes]; mid = {2: 4, 4: 6, 8: 10}[p.passes]
        if c.cls == 'mfma':
            if p.w & (c.A | c.B): n = max(n, big)
            if p.w & c.C:
                if not (p.w == c.C and p.op == c.op): n = max(n, mid)
                elif p.passes == 2: n = max(n, 2)
            elif p.w & c.w: n = max(n, mid)
        elif p.w & (c.r | c.w): n = max(n, big)
        if cv and (p.C - p.w) & c.w: n = max(n, {2: 1, 4: 3, 8: 7}[p.passes])
    if p.cls == 'vmem' and p.data and len(p.data) >= 3 and p.data & c.w:
        n = max(n, 2 if cv else 1)
    if p.cls == 'salu' and ('s', 124) in p.w and c.cls == 'vmemlds': n = max(n, 1)
    return n

class Asm:
    def __init__(self):
        self.out = []
        self.hist = []
        self.nnop = 0
        self.timed = True
    def raw(self, text): self.out.append(text)
    def c(self, text): self.out.append('    ; ' + text)
    def label(self, name):
        self.out.append(name + ':')
    def I(self, text):
        for line in text.strip().split('\n'):
            line = line.strip()
            if not line or line.startswith(';'): continue
            if line.endswith(':'):
                self.label(line[:-1]); continue
            ins = Ins(line)
            pad = self._pad(ins)
            while pad > 0:
                k = min(pad, 16)
                nop = Ins('s_nop %d' % (k - 1)); self.hist.append(nop); self.out.append('    ' + nop.text); self.nnop += 1
                pad -= k
            self.hist.append(ins); self.out.append('    ' + line)
    def _pad(self, ins):
        h = self.hist[-40:]
        t = []; cur = 0; lastm = None
        for p in h + [ins]:
            if self.timed and lastm is not None:
                if p.cls == 'mfma': cur = max(cur, lastm[0] + lastm[1])
                elif p.cls in ('valu', 'trans'): cur = max(cur, lastm[0] + 2)
            t.append(cur)
            if p.cls == 'mfma': lastm = (cur, p.passes)
            cur += p.ws
        pad = 0
        for p, tp in zip(h, t[:-1]):
            k = need(p, ins)
            if k:
                have = t[-1] - tp - 1
                if k > have: pad = max(pad, k - have)
        if pad and self.hist:
            plain = t[-2] + h[-1].ws
            pad += t[-1] - plain
        return pad
    def flush(self, n=12):
        dist = 0; pad = 0
        for p in reversed(self.hist[-24:]):
            k = 0
            if p.cls == 'mfma': k = {2: 5, 4: 8, 8: 12}[p.passes]
            elif p.cls in ('valu', 'trans'): k = 5 if any(x[0] == 's' for x in p.w) else 2
            elif p.cls == 'vmem' and len(p.data) >= 3: k = 2
            if k > dist: pad = max(pad, k - dist)
            dist += p.ws
        if pad: self.I('s_nop %d' % (pad - 1))
    def text(self): return '\n'.join(self.out) + '\n'

def v(a, n=1): return 'v%d' % a if n == 1 else 'v[%d:%d]' % (a, a + n - 1)
def a_(a, n=1): return 'a%d' % a if n == 1 else 'a[%d:%d]' % (a, a + n - 1)
def s(a, n=1): return 's%d' % a if n == 1 else 's[%d:%d]' % (a, a + n - 1)
def u(idx, n):
    return a_(idx, n)


class Cnt:
    def __init__(self, asm, name, cap):
        self.asm = asm; self.name = name; self.cap = cap; self.q = []
    now = 0
    def wait_old(self, tag, age):
        if tag not in self.q: return
        old = [t for t in self.q if self.now - self.t.get(t, self.now) >= age]
        if old and self.q.index(old[-1]) > self.q.index(tag): tag = old[-1]
        self.wait(tag)
    def add(self, tag=None):
        if not hasattr(self, 't'): self.t = {}
        self.t[tag] = self.now
        self.q.append(tag)
        assert len(self.q) <= self.cap, (self.name, len(self.q))
    def text(self, tag):
        if tag not in self.q: return None
        i = len(self.q) - 1 - self.q[::-1].index(tag)
        n = len(self.q) - 1 - i
        self.q = self.q[i + 1:]
        return 's_waitcnt %s(%d)' % (self.name, n)
    def wait(self, tag):
        t = self.text(tag)
        if t: self.asm.I(t)
    def drain(self):
        self.q = []; self.asm.I('s_waitcnt %s(0)' % self.name)
    def clear(self): self.q = []
```

```python
from common import *
import prep
from prep import wait_tiles, sDB, DB_XCC

NSTEP = 63
CLK = 's_memrealtime'
OPT = {'poisT', 'mtouch', 'mtdirect'}
HSLEEP = 2
LIM = 60
XD = 0
VE = 4
AGE = 99
L3P = ''
PD = 3
FA, FB, FC, FD = 5, 3, 4, 3
PFL = 16
PFA = 2
NRES = 4
HD = 4
sROLE, sW, sSTEP, sBUD, sSENT = 3, 4, 5, 6, 7
sWS, sX0, sX1, sMEM, sP, sVX, sMT, sWT = 8, 10, 12, 14, 16, 18, 20, 24
sTMP, sTMP2 = 27, 28
sM20, sMHI, sMG = 30, 32, 34
sLB, sXB, sM48 = 36, 37, 38
sDBG = 44
sXCC, sEA, sEB, sFL = 75, 64, 66, 68
BUDGET = 1 << 21

def bud(A):
    A.I(f's_add_u32 {s(sBUD)}, {s(sBUD)}, 1\n s_cmp_gt_u32 {s(sBUD)}, {BUDGET}\n s_cbranch_scc1 L_bail')

def chain_common(A):
    A.I(f'''
    s_mov_b32 {s(sSTEP)}, 0
    s_mov_b32 {s(sBUD)}, 0
    s_mov_b32 {s(sSENT)}, {SENT}
    s_mov_b32 s90, 0
    ''')

def xcc_publish(A, role, t):
    A.I(f'''
    s_getreg_b32 {s(sXCC)}, hwreg(HW_REG_XCC_ID, 0, 4)
    s_add_u32 {s(sXCC)}, {s(sXCC)}, 1
    v_mov_b32 {v(t)}, {s(role)}
    v_mov_b32 {v(t+1)}, {s(sXCC)}
    s_waitcnt vmcnt(0)
    s_barrier
    global_store_byte {v(t)}, {v(t+1)}, {s(sDB,2)} offset:{DB_XCC} sc1
    ''')

def xcc_check(A, tag, mlo, mhi, t):
    A.I(f'''
    v_min_u32 {v(t)}, {31 if 'fetch' in OPT else 30}, v0
L_{tag}_xc:
    global_load_ubyte {v(t+1)}, {v(t)}, {s(sDB,2)} offset:{DB_XCC} sc1
    ''')
    bud(A)
    A.I(f'''
    s_waitcnt vmcnt(0)
    v_cmp_eq_u32 vcc, 0, {v(t+1)}
    s_cbranch_vccnz L_{tag}_xc
    v_cmp_ne_u32 vcc, {s(sXCC)}, {v(t+1)}
    s_mov_b32 s40, {mlo}
    s_mov_b32 s41, {mhi}
    s_cmp_eq_u64 vcc, {0 if 'slow' not in OPT else -1}
    s_cselect_b64 {s(sEA,2)}, s[40:41], 0
    s_cselect_b64 {s(sEB,2)}, 0, s[40:41]
    ''')

def store2(A, ins):
    A.I(f'''
    s_mov_b64 exec, {s(sEA,2)}
    {ins}
    s_mov_b64 exec, {s(sEB,2)}
    {ins} sc1
    ''')

def mem_poll(A, tag, vG0, vPR, vD):
    A.I(f'''
L_{tag}_mp:
    s_mov_b32 m0, {s(sLB)}
L_{tag}_mpl:
    global_load_dword {v(vD)}, {v(vPR)}, {s(sMEM,2)} sc1
    global_load_lds_dwordx4 {v(vG0)}, {s(sMEM,2)} sc1
    s_mov_b64 exec, {s(sM48,2)}
    global_load_lds_dwordx4 {v(vG0)}, {s(sMEM,2)} offset:1024 sc1
    s_mov_b64 exec, -1
    ''')
    bud(A)
    A.I(f'''
    s_waitcnt vmcnt(2)
    v_cmp_eq_u32 vcc, {s(sSENT)}, {v(vD)}
    s_cbranch_vccnz L_{tag}_mpl
    s_waitcnt vmcnt(0) lgkmcnt(0)
    s_barrier
    ''')

def mem_poll_half(A, tag, vG0, vPR, vD):
    A.I(f'''
L_{tag}_mp:
    s_cmp_ge_u32 {s(sW)}, 2
    s_cbranch_scc1 L_{tag}_mpb
    s_mov_b32 m0, {s(sLB)}
L_{tag}_mpl:
    global_load_dword {v(vD)}, {v(vPR)}, {s(sMEM,2)} sc1
    global_load_lds_dwordx4 {v(vG0)}, {s(sMEM,2)} sc1
    global_load_lds_dwordx4 {v(vG0)}, {s(sMEM,2)} offset:1024 sc1
    global_load_lds_dwordx4 {v(vG0)}, {s(sMEM,2)} offset:2048 sc1
    s_mov_b32 exec_hi, 0
    global_load_lds_dwordx4 {v(vG0)}, {s(sMEM,2)} offset:3072 sc1
    s_mov_b64 exec, -1
    ''')
    bud(A)
    A.I(f'''
    s_waitcnt vmcnt(4)
    v_cmp_eq_u32 vcc, {s(sSENT)}, {v(vD)}
    s_cbranch_vccnz L_{tag}_mpl
    s_waitcnt vmcnt(0)
L_{tag}_mpb:
    s_waitcnt lgkmcnt(0)
    s_barrier
    ''')

def mem_poll_setup(A, vG0, vPR, t, half=False):
    A.I(f'''
    s_mul_i32 {s(sLB)}, {s(sW)}, {3584 if half else 1792}
    v_lshlrev_b32 {v(vG0)}, 4, v0
    v_add_u32 {v(vG0)}, {s(sLB)}, {v(vG0)}
    s_mov_b32 {s(sM48)}, -1
    s_mov_b32 {s(sM48+1)}, 0xffff
    v_min_u32 {v(t)}, {27 if half else 13}, v0
    v_lshlrev_b32 {v(t)}, 7, {v(t)}
    v_add3_u32 {v(vPR)}, {s(sLB)}, {v(t)}, 64
    ''')

def sreg(i): return 48 + 2 * i if i < 8 else 76 + 2 * (i - 8)

def stamp(A, idx, prof):
    if not prof: return
    A.I(f'{CLK} {s(sreg(idx), 2)}')

def stamp_flush(A, prof):
    if not prof: return
    A.I('s_waitcnt lgkmcnt(0)')
    for i in range(16): A.I(f'v_writelane_b32 v21, {s(sreg(i))}, {i}')
    A.I(f'''
    v_lshlrev_b32 v20, 2, v0
    s_mov_b64 exec, 0xffff
    global_store_dword v20, v21, {s(sDBG,2)}
    s_mov_b64 exec, -1
    ''')
    addp(A, sDBG, sDBG, 64)

def idx_setup(A, vIDX, T):
    A.I(f'''
    v_and_b32 {v(T)}, 15, v0
    v_lshrrev_b32 {v(T+1)}, 4, v0
    v_and_b32 {v(T+2)}, 7, v0
    v_mov_b32 {v(vIDX)}, 0x4444
    v_mov_b32 {v(T+3)}, 0xeeee
    v_cmp_lt_u32 vcc, 7, {v(T)}
    v_cndmask_b32 {v(vIDX)}, {v(vIDX)}, {v(T+3)}, vcc
    ''')

def score(A, prof=0):
    L_MEM, L_TB, L_SB, L_RW, L_XB = 0, 8192, 20480, 26624, 51200
    vIDX, vG0, vXB, vPR, vAF0, vAF1, vMB0, vMB1, vTW, vTR, vSW, vSR, vPS, vX0, vX1, vRW, vSM, vSN = range(1, 19)
    vCK = 19
    RING, XF, R, TOPC, TMP, SACC, TACC, WV = 20, 52, 84, 108, 112, 116, 128, 144
    MEMB, TOPA, TOPB = R, R + 16, R + 20
    import layout
    if L3P: layout.L3T[:] = [int(c, 16) for c in str(L3P)]
    seq = score_seq()
    def wreg(i):
        if i < 3: return v(R + 8 * i, 8)
        if i < 35: return a_(8 * (i - 3), 8)
        return v(WV + 8 * (i - 35), 8)
    lg = Cnt(A, 'lgkmcnt', 15)
    A.label('L_score')
    A.I(f's_load_dwordx2 {s(sX0,2)}, s[0:1], {KA_X}')
    chain_common(A)
    T = 20
    idx_setup(A, vIDX, T)
    mem_poll_setup(A, vG0, vPR, T + 4)
    A.I(f'''
    v_lshlrev_b32 {v(T+4)}, 7, {v(T+1)}
    v_lshl_add_u32 {v(T+4)}, {v(T+2)}, 4, {v(T+4)}
    s_and_b32 {s(sTMP)}, {s(sW)}, 1
    s_mul_i32 {s(sTMP2)}, {s(sTMP)}, {7*512}
    v_mov_b32 {v(vAF0)}, {v(T+4)}
    v_add_u32 {v(vAF1)}, {s(sTMP2)}, {v(T+4)}
    s_lshr_b32 {s(sTMP2)}, {s(sW)}, 1
    s_mul_i32 {s(sTMP2)}, {s(sTMP2)}, 7
    s_lshl_b32 {s(sTMP)}, {s(sTMP)}, 2
    s_add_u32 {s(sTMP)}, {s(sTMP)}, {s(sTMP2)}
    s_add_u32 {s(sTMP2)}, {s(sTMP2)}, 3
    s_lshl_b32 s40, {s(sTMP)}, 9
    s_lshl_b32 s41, {s(sTMP2)}, 9
    v_add_u32 {v(vMB0)}, s40, {v(T+4)}
    v_add_u32 {v(vMB1)}, s41, {v(T+4)}
    s_lshl_b32 s40, {s(sTMP)}, 6
    s_lshl_b32 s41, {s(sTMP2)}, 6
    v_lshrrev_b32 {v(T+4)}, 2, v0
    v_mul_u32_u24 {v(T+4)}, 896, {v(T+4)}
    v_lshrrev_b32 {v(T+5)}, 5, v0
    v_lshlrev_b32 {v(T+5)}, 1, {v(T+5)}
    v_and_b32 {v(T+6)}, 3, v0
    v_xor_b32 {v(T+5)}, {v(T+5)}, {v(T+6)}
    v_lshl_add_u32 {v(T+4)}, {v(T+5)}, 4, {v(T+4)}
    v_add_u32 {v(vX0)}, s40, {v(T+4)}
    v_add_u32 {v(vX1)}, s41, {v(T+4)}
    s_lshl_b32 {s(sXB)}, {s(sW)}, 13
    s_add_u32 {s(sXB)}, {s(sXB)}, {L_XB}
    v_lshrrev_b32 {v(T+4)}, 3, {v(T)}
    v_lshlrev_b32 {v(T+4)}, 1, {v(T+4)}
    v_xor_b32 {v(T+4)}, {v(T+4)}, {v(T+1)}
    v_lshl_add_u32 {v(T+4)}, {v(T)}, 2, {v(T+4)}
    v_lshl_add_u32 {v(vXB)}, {v(T+4)}, 4, {s(sXB)}
    s_mul_i32 s40, {s(sW)}, 3072
    s_add_u32 s40, s40, {L_TB}
    v_mul_u32_u24 {v(T+5)}, 192, {v(T+1)}
    v_lshl_add_u32 {v(T+5)}, {v(T)}, 3, {v(T+5)}
    v_add_u32 {v(vTW)}, s40, {v(T+5)}
    v_and_b32 {v(T+5)}, 1, v0
    v_mul_u32_u24 {v(T+5)}, 192, {v(T+5)}
    v_lshrrev_b32 {v(T+6)}, 2, v0
    v_lshl_add_u32 {v(T+5)}, {v(T+6)}, 3, {v(T+5)}
    v_add_u32 {v(vTR)}, s40, {v(T+5)}
    s_mul_i32 s40, {s(sW)}, 1408
    s_add_u32 s40, s40, {L_SB}
    v_mul_u32_u24 {v(T+5)}, 176, {v(T+2)}
    v_add_u32 {v(T+5)}, s40, {v(T+5)}
    v_mov_b32 {v(vCK)}, {v(T+5)}
    v_lshrrev_b32 {v(T+6)}, 3, {v(T)}
    v_and_b32 {v(T+7)}, 1, {v(T+1)}
    v_mul_u32_u24 {v(T+7)}, 704, {v(T+7)}
    v_lshrrev_b32 {v(T+8)}, 1, {v(T+1)}
    v_lshl_add_u32 {v(T+7)}, {v(T+8)}, 6, {v(T+7)}
    v_lshl_add_u32 {v(T+7)}, {v(T)}, 2, {v(T+7)}
    v_add3_u32 {v(vSW)}, s40, {v(T+7)}, 32
    v_and_b32 {v(T+7)}, 1, {v(T+1)}
    v_lshlrev_b32 {v(T+7)}, 4, {v(T+7)}
    v_lshrrev_b32 {v(T+8)}, 1, {v(T+1)}
    v_lshl_add_u32 {v(T+8)}, {v(T+8)}, 1, {v(T+6)}
    v_lshl_add_u32 {v(T+7)}, {v(T+8)}, 2, {v(T+7)}
    v_add_u32 {v(vSM)}, {v(T+5)}, {v(T+7)}
    v_lshrrev_b32 {v(T+5)}, 5, v0
    v_lshl_add_u32 {v(T+5)}, {s(sW)}, 1, {v(T+5)}
    v_and_b32 {v(T+6)}, 31, v0
    v_min_u32 {v(T+6)}, 20, {v(T+6)}
    v_mul_u32_u24 {v(T+7)}, 176, {v(T+5)}
    v_lshl_add_u32 {v(T+7)}, {v(T+6)}, 3, {v(T+7)}
    v_add_u32 {v(vSR)}, {L_SB}, {v(T+7)}
    s_lshr_b32 s40, {s(sROLE)}, 2
    s_mul_i32 s40, s40, 2560
    s_and_b32 s41, {s(sROLE)}, 1
    s_bfe_u32 s42, {s(sROLE)}, 0x10001
    s_lshl_b32 s43, s41, 7
    s_lshl_b32 s46, s42, 5
    s_add_u32 s43, s43, s46
    s_add_u32 s43, s43, s40
    s_add_u32 s43, s43, 2048
    v_and_b32 {v(T+7)}, 1, {v(T+6)}
    v_lshlrev_b32 {v(T+7)}, 8, {v(T+7)}
    v_lshrrev_b32 {v(T+8)}, 1, {v(T+6)}
    v_lshl_add_u32 {v(T+7)}, {v(T+8)}, 6, {v(T+7)}
    v_lshl_add_u32 {v(T+7)}, {v(T+5)}, 2, {v(T+7)}
    v_add_u32 {v(T+7)}, s43, {v(T+7)}
    s_lshl_b32 s43, s42, 10
    s_lshl_b32 s46, s41, 9
    s_add_u32 s43, s43, s46
    s_add_u32 s43, s43, s40
    v_subrev_u32 {v(T+8)}, 4, {v(T+6)}
    v_lshrrev_b32 {v(T+9)}, 2, {v(T+8)}
    v_and_b32 {v(T+8)}, 3, {v(T+8)}
    v_lshlrev_b32 {v(T+8)}, 2, {v(T+8)}
    v_lshl_add_u32 {v(T+8)}, {v(T+9)}, 7, {v(T+8)}
    v_lshl_add_u32 {v(T+8)}, {v(T+5)}, 4, {v(T+8)}
    v_add_u32 {v(T+8)}, s43, {v(T+8)}
    v_cmp_gt_u32 vcc, 4, {v(T+6)}
    v_cndmask_b32 {v(vPS)}, {v(T+8)}, {v(T+7)}, vcc
    s_mul_i32 s40, {s(sW)}, 6144
    s_add_u32 s40, s40, {L_RW}
    v_lshl_add_u32 {v(vRW)}, v0, 4, s40
    s_mov_b32 {s(sM20)}, 0x000fffff
    s_mov_b32 {s(sM20+1)}, 0x000fffff
    s_mov_b32 {s(sMHI)}, 0xff00ff00
    s_mov_b32 {s(sMHI+1)}, 0xff00ff00
    s_mov_b32 {s(sMG)}, 0
    s_mov_b32 {s(sMG+1)}, -1
    v_mov_b32 {v(vSN)}, {SENT}
    ''')
    addp(A, sP, sWS, PS_OFF); addp(A, 40, sP, PS_SLOT)
    A.I(f'''
    s_mov_b64 exec, {s(sM20,2)}
    global_store_dword {v(vPS)}, {v(vSN)}, {s(sP,2)} sc1
    global_store_dword {v(vPS)}, {v(vSN)}, s[40:41] sc1
    s_mov_b64 exec, -1
    s_waitcnt lgkmcnt(0)
    ''')
    xcc_publish(A, sROLE, T + 12)
    addp(A, sX1, sX0, 16 * 896)
    def xdma():
        for k in range(8):
            L, t = k >> 1, k & 1
            A.I(f's_add_u32 m0, {s(sXB)}, {k*1024 - (64*L if L < 3 else 0)}')
            base = s(sX0 if t == 0 else sX1, 2)
            A.I(f'global_load_lds_dwordx4 {v(vX0)}, {base} offset:{64*L}' if L < 3 else f'global_load_lds_dwordx4 {v(vX1)}, {base}')
        addp(A, sX0, sX0, XI_SEG); addp(A, sX1, sX1, XI_SEG)
    def xread():
        for k in range(8): A.I(f'ds_read_b128 {v(RING+4*k,4)}, {v(vXB)} offset:{k*1024}')
        for L in range(4):
            A.I(f's_waitcnt lgkmcnt({6-2*L})')
            for k in range(8): A.I(f'v_mov_b32 {v(XF+8*L+k)}, {v(RING+8*L+4*(k&1)+(k>>1))}')
        for k in range(4): A.I(f'v_mov_b32 {v(SACC+4+k)}, 0')
    SC = 'sc' in OPT
    ixw = {x: i for i, x in enumerate(seq)}
    def wq(i, hf):
        if i < 3: return ('v', R + 8 * i + 4 * hf)
        if i < 35: return ('a', 8 * (i - 3) + 4 * hf)
        return ('v', WV + 8 * (i - 35) + 4 * hf)
    def rq(q, n=4): return (v if q[0] == 'v' else a_)(q[1], n)
    if SC:
        VREG = [wq(i, hf) for i, (L, jj) in enumerate(seq) if L >= 2 and i >= 3 for hf in range(2)][:32]
        UR, TC, ACC, vUS, vVS, vL, vUB, vUR = 20, 44, 52, 108, 110, 114, 118, 122
        sQ, sK, sL = 46, 48, 50
        A.I(f'''
        s_load_dwordx4 s[52:55], s[0:1], {KA_WQ}
        v_lshrrev_b32 v20, 5, v0
        v_and_b32 v21, 31, v0
        v_and_b32 v22, 15, v0
        v_lshrrev_b32 v23, 4, v0
        s_and_b32 s40, {s(sW)}, 1
        s_lshl_b32 s40, s40, 1
        s_lshl_b32 s41, {s(sW)}, 3
        ''')
        for b in range(2):
            A.I(f'''
            v_add_u32 v24, {2*b}, v20
            v_lshlrev_b32 v25, 2, v24
            v_xor_b32 v25, v25, v21
            v_lshlrev_b32 v26, 13, v24
            v_lshl_add_u32 {v(vVS+b)}, v25, 4, v26
            v_xor_b32 {v(vVS+2+b)}, 32, {v(vVS+b)}
            v_xor_b32 v25, s40, v25
            v_add_u32 v24, s41, v24
            v_lshlrev_b32 v26, 13, v24
            v_lshl_add_u32 {v(vUS+b)}, v25, 4, v26
            ''')
        A.I(f'''
        v_and_b32 v24, 3, v22
        v_lshlrev_b32 v25, 2, v24
        v_bfe_u32 v26, v22, 2, 1
        v_lshl_add_u32 v25, v26, 1, v25
        v_lshrrev_b32 v27, 2, v22
        v_lshl_add_u32 v27, v27, 3, v24
        v_lshlrev_b32 v27, 9, v27
        v_lshlrev_b32 v26, 4, v26
        v_lshrrev_b32 v28, 3, v22
        v_lshl_add_u32 v26, v28, 2, v26
        v_add_u32 v26, v26, v24
        v_lshlrev_b32 v26, 9, v26
        s_lshl_b32 {s(sL)}, {s(sW)}, 15
        v_add_u32 v26, {s(sL)}, v26
        ''')
        for b in range(4):
            A.I(f'''
            v_add_u32 v24, {4*b}, v23
            v_xor_b32 v24, v24, v25
            v_lshl_add_u32 {v(vUB+b)}, v24, 4, v27
            v_lshl_add_u32 {v(vL+b)}, v24, 4, v26
            ''')
        A.I(f'''
        s_lshl_b32 s40, {s(sROLE)}, 9
        s_lshl_b32 s41, {s(sTMP)}, 18
        s_add_u32 s41, s41, s40
        s_waitcnt lgkmcnt(0)
        ''')
        addps(A, sQ, 52, 40); addps(A, sK, 54, 41)
        vm = Cnt(A, 'vmcnt', 63); l2 = Cnt(A, 'lgkmcnt', 15)
        for k in range(32):
            A.I(f's_add_u32 m0, {s(sL)}, {k*1024}')
            A.I(f'global_load_lds_dwordx4 {v(vVS + (k&1) + 2*((k>>3)&1))}, {s(sK,2)} {prep.LDNT}'); vm.add('V')
            if k & 1: addp(A, sK, sK, 32768)
        A.I(f's_lshl_b32 {s(sL)}, {s(sW)}, 12')
        slot = lambda j: [8, 9][j] if j < 2 else (j - 2) % 10
        def issueU(j):
            for kk in range(4):
                A.I(f's_add_u32 m0, {s(sL)}, {slot(j)*16384 + kk*1024}')
                A.I(f'global_load_lds_dwordx4 {v(vUS + (kk&1))}, {s(sQ,2)} {prep.LDNT}'); vm.add(('U', j))
                if kk == 1: addp(A, sQ, sQ, 32768)
            addp(A, sQ, sQ, 32 * 8192 - 32768)
        issueU(0); issueU(1)
        vm.wait('V')
        for t in range(4):
            for kk in range(8):
                A.I(f'ds_read_b128 {rq(VREG[8*t+kk])}, {v(vL+(kk&3))} offset:{(t>>1)*16384 + (t&1)*4096 + (kk>>2)*256}')
            A.I('s_waitcnt lgkmcnt(0)')
        tl(A, 1, 6, 44)
        A.I('s_barrier')
        for j in range(2, 10): issueU(j)
        for j in range(14):
            for b in range(4): A.I(f'v_add_u32 {v(vUR+b)}, {slot(j)*16384}, {v(vUB+b)}')
            vm.wait(('U', j)); A.I('s_barrier')
            if 1 <= j <= 4: issueU(j + 9)
            if j == 7: tl(A, 1, 7, 44)
            def rdu(kk):
                for tp in range(2):
                    A.I(f'ds_read_b128 {v(UR+8*(kk%3)+4*tp,4)}, {v(vUR+(kk&3))} offset:{tp*2048 + (kk>>2)*256}'); l2.add((kk, tp))
            rdu(0); rdu(1)
            for kk in range(8):
                for tp in range(2):
                    l2.wait((kk, tp))
                    for t in range(4):
                        acc = v(ACC + 8*t + 4*tp, 4)
                        A.I(f'v_mfma_f32_16x16x32_bf16 {acc}, {v(UR+8*(kk%3)+4*tp,4)}, {rq(VREG[8*t+kk])}, {acc if kk else 0}')
                        if tp == 0 and t == 0 and kk + 2 < 8: rdu(kk + 2)
            A.I(f's_mov_b32 s40, {f32(CSC)}\n s_mov_b32 s41, s40')
            for e in range(2):
                for tp in range(2):
                    q = wq(ixw[(e, j)], tp)
                    for k in range(2):
                        for y in range(2):
                            r = ACC + 8*(2*e+y) + 4*tp + 2*k
                            A.I(f'v_pk_mul_f32 {v(r,2)}, {v(r,2)}, s[40:41]')
                    for k in range(2):
                        for y in range(2):
                            r = ACC + 8*(2*e+y) + 4*tp + 2*k
                            d = q[1] + 2*k + y if q[0] == 'v' else TC + 2*k + y
                            A.I(f'v_cvt_pk_bf16_f32 {v(d)}, {v(r)}, {v(r+1)}')
                    if q[0] == 'a':
                        for k in range(4): A.I(f'v_accvgpr_write_b32 {a_(q[1]+k)}, {v(TC+k)}')
        A.I('s_barrier')
        for k in range(6): A.I(f'ds_write_b128 {v(vRW)}, {v(R+4*k,4)} offset:{k*1024}')
        tl(A, 1, 5, T)
    A.I(f'''
    v_mov_b32 {v(T+6)}, 0xff800000
    v_mov_b32 {v(T+7)}, 0xff800000
    ds_write_b64 {v(vCK)}, {v(T+6,2)} offset:160
    ''')
    xdma()
    A.I(f'''
    s_mul_i32 s40, {s(sROLE)}, {MF_HEAD}
    s_and_b32 s41, {s(sW)}, 1
    s_mul_i32 s41, s41, {7*2048}
    s_mul_i32 s42, {s(sTMP)}, {14*2048}
    s_mul_i32 s43, {s(sTMP2)}, {14*2048}
    v_lshlrev_b32 {v(T+8)}, 4, v0
    v_add_u32 {v(T+9)}, s42, {v(T+8)}
    s_add_u32 s46, s43, s41
    v_add_u32 {v(T+11)}, s46, {v(T+8)}
    ''')
    addp(A, sWT, sWS, MF_OFF); addps(A, sWT, sWT, 40)
    def wload(i):
        L, jj = seq[i]
        addp(A, 40, sWT, ((L % 3) * 14 + jj) * 2048)
        for hf in range(2): A.I(f'global_load_dwordx4 {rq(wq(i, hf))}, {v(T + 11 if L == 3 else T + 9)}, s[40:41] offset:{hf*1024} sc1')
    if SC or 'noprog' in OPT:
        xcc_check(A, 'sc0', '0', '0', T + 12)
        wait_tiles(A, 'sc', T + 12, 0, 'head', sROLE)
        tl(A, 1, 4, T + 12)
        for i, (L, jj) in enumerate(seq):
            if SC and L < 2: continue
            wload(i)
            if i > 23: A.I('s_waitcnt vmcnt(42)')
    else:
        addp(A, sVX, sWS, PF_OFF)
        A.I(f'''
        s_lshl_b32 s40, {s(sROLE)}, 5
        v_and_b32 {v(T+12)}, 1, v0
        v_lshl_add_u32 {v(T+12)}, {v(T+12)}, 9, s40
        ''')
        for jb in range(7):
            if jb: A.I(f's_waitcnt vmcnt(12)\n v_cmp_eq_u32 vcc, 0, {v(T+13)}\n s_cbranch_vccz L_sc_w{jb}ok')
            A.I(f'L_sc_w{jb}:\n global_load_dword {v(T+13)}, {v(T+12)}, {s(sVX,2)} offset:{4*jb} sc1')
            bud(A)
            A.I(f's_waitcnt vmcnt(0)\n v_cmp_eq_u32 vcc, 0, {v(T+13)}\n s_cbranch_vccnz L_sc_w{jb}\nL_sc_w{jb}ok:')
            if jb == 0: tl(A, 1, 4, T + 14)
            if jb < 6: A.I(f'global_load_dword {v(T+13)}, {v(T+12)}, {s(sVX,2)} offset:{4*jb+4} sc1')
            for j in (2 * jb, 2 * jb + 1):
                for L in range(3): wload(ixw[(L, j)])
        for jj in range(7): wload(ixw[(3, jj)])
    xcc_check(A, 'sc', '0x000fffff', '0x000fffff', T + 12)
    if not SC:
        for k in range(6): A.I(f'ds_write_b128 {v(vRW)}, {v(R+4*k,4)} offset:{k*1024}')
    xread()
    addp(A, sMEM, sWS, MEMS_OFF)
    if prof:
        A.I(f's_lshl_b32 s40, {s(sROLE)}, 2\n s_add_u32 s40, s40, {s(sW)}\n s_lshl_b32 s40, s40, 12')
        addp(A, sDBG, sWS, END_OFF); addps(A, sDBG, sDBG, 40)
    for k in range(16): A.I(f'v_mov_b32 {v(TACC+k)}, 0')
    A.I('s_waitcnt vmcnt(0) lgkmcnt(0)')
    tl(A, 1, 1, T)
    A.label('L_sc_step')
    stamp(A, 0, prof)
    if prof: A.I('s_memtime s[62:63]')
    mem_poll(A, 'sc', vG0, vPR, TMP)
    stamp(A, 1, prof)
    lg.clear()
    def rdfrag(jj):
        A.I(f'ds_read_b128 {v(RING + 4*(jj%8), 4)}, {v(vAF0)} offset:{jj*512}'); lg.add(('f', jj))
    GR = [SACC, SACC + 8]
    def rdg(jj):
        if 'nog' in OPT: return
        A.I(f'ds_read_b128 {v(GR[jj&1], 4)}, {v(vAF1)} offset:{jj*512}'); lg.add(('g', jj))
    def rdmemb(L):
        if 'nomb' in OPT: return
        ad = f'{v(vMB0)} offset:{L*512}' if L < 3 else f'{v(vMB1)}'
        A.I(f'ds_read_b128 {v(MEMB + 4*L, 4)}, {ad}'); lg.add(('m', L))
    def cvt(L, k): A.I(f'v_cvt_pk_bf16_f32 {v(TMP + 2*(L&1) + k)}, {v(TACC+4*L+2*k)}, {v(TACC+4*L+2*k+1)}')
    def twr(L):
        A.I(f'ds_write_b64 {v(vTW)}, {v(TMP + 2*(L&1), 2)} offset:{L*768}'); lg.add(('w', L))
    TOPD = RING + 4 * (8 % 8)
    top = {0: TOPA, 1: TOPB, 2: TOPD, 3: TOPC}
    def trr(L):
        A.I(f'ds_read_b64_tr_b16 {v(top[L], 2)}, {v(vTR)} offset:{L*768}'); lg.add(('x', L))
        A.I(f'ds_read_b64_tr_b16 {v(top[L]+2, 2)}, {v(vTR)} offset:{L*768+384}'); lg.add(('t', L))
    def smm1(L, t, first=False):
        lg.wait(('m', L)); lg.wait(('t', L))
        if t == 0: A.I(f'v_mfma_f32_16x16x32_bf16 {v(SACC,4)}, {v(MEMB + 4*L, 4)}, {v(top[L],4)}, {0 if first else v(SACC,4)}')
        else: A.I(f'v_smfmac_f32_16x16x64_bf16 {v(SACC+4,4)}, {v(top[L],4)}, {v(XF + 8*L, 8)}, {v(vIDX)}')
    def chk(j0, first=False):
        if 'nochk' in OPT and not first: return
        a, b = v(RING + 4*(j0 % 8)), v(RING + 4*((j0+1) % 8))
        if first: A.I(f'v_max_u32 {v(vCK)}, {a}, {b}')
        else: A.I(f'v_max3_u32 {v(vCK)}, {a}, {b}, {v(vCK)}')
    fill = {i: [] for i in range(49)}
    ix = {x: i for i, x in enumerate(seq)}
    fill[0].append(lambda: rdg(0)); fill[1].append(lambda: rdfrag(2)); fill[ix[(1, 1)]].append(lambda: rdg(1))
    for k in range(3, 8): fill[ix[(0, k - PD)]].append(lambda k=k: rdfrag(k))
    for k in range(5): fill[ix[(3, k)]].append(lambda k=k: rdg(k + 2))
    for k in range(6): fill[ix[(2, k)]].append(lambda k=k: rdfrag(8 + k))
    e3 = ix[(3, 6)]
    if 'nol3' not in OPT: fill[e3 + 2].append(lambda: cvt(3, 0)); fill[e3 + 3].append(lambda: cvt(3, 1)); fill[e3 + 5].append(lambda: twr(3)); fill[e3 + 6].append(lambda: trr(3))
    for k, L in enumerate([3, 0, 1, 2]): fill[ix[(0, 10 + k)]].append(lambda L=L: rdmemb(L))
    for j0 in range(0, 14, 2):
        i = ix[(0, j0 + 1)]
        while i in (e3 + 2, e3 + 3): i += 1
        fill[i].append(lambda j0=j0: chk(j0, j0 == 0))
    fill[42].append(lambda: A.I(f'v_cmp_eq_u32 vcc, {s(sSENT)}, {v(vCK)}'))
    fill[43].append(lambda: cvt(0, 0)); fill[44].append(lambda: cvt(0, 1))
    fill[45] += [lambda: twr(0), lambda: cvt(1, 0)]; fill[46] += [lambda: trr(0), lambda: cvt(1, 1)]
    fill[47].append(lambda: twr(1)); fill[48].append(lambda: trr(1))
    if 'poisT' in OPT and 'nopois' not in OPT:
        fill[ix[(1, 5)]].insert(0, lambda: addp(A, 40, sP, 2 * PS_SLOT))
        fill[ix[(1, 6)]].insert(0, lambda: A.I(f's_mov_b64 exec, {s(sEA,2)}\n global_store_dword {v(vPS)}, {v(vSN)}, s[40:41]\n s_mov_b64 exec, -1'))
        fill[ix[(1, 7)]].insert(0, lambda: A.I(f's_mov_b64 exec, {s(sEB,2)}\n global_store_dword {v(vPS)}, {v(vSN)}, s[40:41] sc1\n s_mov_b64 exec, -1'))
    rdfrag(0); rdfrag(1)
    for i, (L, jj) in enumerate(seq):
        lg.now = i; lg.wait_old(('f', jj) if L < 3 else ('g', jj), AGE)
        A.I(f'v_smfmac_f32_16x16x64_bf16 {v(TACC+4*L,4)}, {v(RING+4*(jj%8) if L < 3 else GR[jj&1],4)}, {wreg(i)}, {v(vIDX)}')
        if i == 0: stamp(A, 8, prof > 1)
        if i == 24: stamp(A, 9, prof > 1)
        for f in fill[i]: f()
    stamp(A, 2, prof > 1)
    smm1(3, 1); smm1(3, 0, True)
    cvt(2, 0); cvt(2, 1); twr(2); trr(2)
    A.I('s_cbranch_vccnz L_sc_redo')
    for L in (0, 1): smm1(L, 1); smm1(L, 0)
    smm1(2, 0); smm1(2, 1)
    stamp(A, 10, prof > 1)
    Z = RING + 4
    A.I(f'''
    v_cndmask_b32 {v(Z)}, {v(SACC)}, {v(SACC+1)}, {s(sMHI,2)}
    v_cndmask_b32 {v(Z+1)}, {v(SACC+2)}, {v(SACC+3)}, {s(sMHI,2)}
    v_cndmask_b32 {v(Z)}, {v(Z)}, {v(Z+1)}, {s(sMG,2)}
    ds_write_b32 {v(vSM)}, {v(Z)}
    ds_write2_b32 {v(vSW)}, {v(SACC+4)}, {v(SACC+5)} offset0:0 offset1:44
    ds_write2_b32 {v(vSW)}, {v(SACC+6)}, {v(SACC+7)} offset0:88 offset1:132
    ''')
    stamp(A, 11, prof > 1)
    for k in range(FA): A.I(f'v_mov_b32 {v(TACC+k)}, 0')
    A.I('s_waitcnt lgkmcnt(0)')
    stamp(A, 12, prof > 1)
    A.I('s_barrier')
    stamp(A, 3, prof)
    for k in range(4): A.I(f'ds_read_b64 {v(Z+2*k,2)}, {v(vSR)} offset:{k*1408}')
    for k in range(FA, FA + FB): A.I(f'v_mov_b32 {v(TACC+k)}, 0')
    E, M = Z + 8, Z + 10
    A.I(f'''
    s_waitcnt lgkmcnt(2)
    v_pk_add_f32 {v(Z,2)}, {v(Z,2)}, {v(Z+2,2)}
    s_waitcnt lgkmcnt(0)
    v_pk_add_f32 {v(Z+4,2)}, {v(Z+4,2)}, {v(Z+6,2)}
    v_pk_add_f32 {v(Z,2)}, {v(Z,2)}, {v(Z+4,2)}
    ''')
    stamp(A, 13, prof > 1)
    def summ(a):
        A.I(f'''
        v_exp_f32 {v(E)}, {v(a)}
        v_exp_f32 {v(E+1)}, {v(a+1)}
        v_add_f32 {v(M)}, {v(E)}, {v(E+1)}
        ''')
        for k in (8, 4, 2, 1): A.I(f'v_add_f32_dpp {v(M)}, {v(M)}, {v(M)} {dpp(k)}')
        A.I(f'''
        v_mov_b32 {v(M+1)}, {v(M)}
        v_permlane16_swap_b32 {v(M)}, {v(M+1)}
        v_add_f32 {v(M)}, {v(M)}, {v(M+1)}
        ''')
    def truemax():
        A.I(f'v_max_f32 {v(M)}, {v(Z)}, {v(Z+1)}')
        for k in (8, 4, 2, 1): A.I(f'v_max_f32_dpp {v(M)}, {v(M)}, {v(M)} {dpp(k)}')
        A.I(f'''
        v_mov_b32 {v(M+1)}, {v(M)}
        v_permlane16_swap_b32 {v(M)}, {v(M+1)}
        v_max_f32 {v(M)}, {v(M)}, {v(M+1)}
        v_sub_f32 {v(E)}, {v(Z)}, {v(M)}
        v_sub_f32 {v(E+1)}, {v(Z+1)}, {v(M)}
        ''')
        summ(E)
    def norm(check):
        if check:
            A.I(f'''
            v_subrev_u32 {v(M+3)}, {(127 - LIM) << 23}, {v(M)}
            v_cmp_lt_u32 vcc, {(2 * LIM) << 23}, {v(M+3)}
            ''')
        A.I(f'''
        v_rcp_f32 {v(M+2)}, {v(M)}
        v_pk_mul_f32 {v(E,2)}, {v(E,2)}, {v(M+2,2)} op_sel_hi:[1,0]
        v_cvt_pk_bf16_f32 {v(E)}, {v(E)}, {v(E+1)}
        ''')
        if check: A.I('s_cbranch_vccnz L_sc_max')
    if 'max' in OPT: truemax(); norm(False)
    else: summ(Z); stamp(A, 14, prof > 1); norm(True)
    A.label('L_sc_norm')
    store2(A, f'global_store_dword {v(vPS)}, {v(E)}, {s(sP,2)}')
    stamp(A, 4, prof)
    if 'poisT' not in OPT:
        addp(A, 40, sP, 2 * PS_SLOT)
        store2(A, f'global_store_dword {v(vPS)}, {v(vSN)}, s[40:41]')
    A.I(f's_mov_b64 exec, -1\n s_add_u32 {s(sSTEP)}, {s(sSTEP)}, 1\n s_cmp_ge_u32 {s(sSTEP)}, {NSTEP}\n s_cbranch_scc1 L_sc_end')
    if 'nox' not in OPT: xdma()
    for k in range(6): A.I(f'ds_read_b128 {v(R+4*k,4)}, {v(vRW)} offset:{k*1024}')
    for k in range(FA + FB, 16): A.I(f'v_mov_b32 {v(TACC+k)}, 0')
    addp(A, sP, sP, PS_SLOT); addp(A, sMEM, sMEM, MEM_SLOT)
    stamp_flush(A, prof)
    A.I('s_waitcnt vmcnt(0)')
    xread()
    stamp(A, 5, prof)
    A.I('s_branch L_sc_step')
    if 'max' not in OPT:
        A.label('L_sc_max'); A.I('s_nop 1'); truemax(); norm(False); A.I('s_branch L_sc_norm')
    A.label('L_sc_redo')
    if prof: A.I(f's_add_u32 {s(sreg(15))}, {s(sreg(15))}, 1')
    A.I('s_waitcnt vmcnt(0) lgkmcnt(0)\n s_nop 15\n s_barrier')
    for k in range(6): A.I(f'ds_read_b128 {v(R+4*k,4)}, {v(vRW)} offset:{k*1024}')
    for k in range(16): A.I(f'v_mov_b32 {v(TACC+k)}, 0')
    for k in range(4): A.I(f'v_mov_b32 {v(SACC+4+k)}, 0')
    A.I('s_branch L_sc_mp')
    A.label('L_sc_end')
    tl(A, 1, 2, T)
    stamp_flush(A, prof)
    A.I('s_endpgm')

def value(A, prof=0):
    L_MEM, L_RB, L_WL, L_VB = 0, 8192, 16384, 131072
    DEC = 'dec' in OPT
    H3R, NR = 136, NRES
    RBW = 32 * 48
    vIDX, vG0, vCK, vPR, vAF, vWL, vV0, vV1, vPM, vPX, vSN, vRWR, vRRD, vMS, vZ, vDUM, vFL, vVB, vVP = range(1, 20)
    ARING, HRING, VXF, WACC, WX, WY, OX, OY, PF, WV = 20, 36, 60, 92, 108, 112, 116, 120, 124, 176
    lg = Cnt(A, 'lgkmcnt', 15)
    def wreg(hh, j):
        k = (hh * 14 + j) * 8
        return a_(k, 8) if k < 256 else v(WV + k - 256, 8)
    A.label('L_value')
    chain_common(A)
    T = 20
    A.I(f's_mov_b32 {s(sTMP)}, {s(sROLE)}\n s_sub_u32 {s(sROLE)}, {s(sROLE)}, 16')
    idx_setup(A, vIDX, T)
    mem_poll_setup(A, vG0, vPR, T + 4, DEC)
    A.I(f'''
    v_lshlrev_b32 {v(vAF)}, 7, {v(T+1)}
    v_lshl_add_u32 {v(vAF)}, {v(T+2)}, 4, {v(vAF)}
    s_mul_i32 s40, {s(sW)}, 28672
    s_add_u32 s40, s40, {L_WL}
    v_lshl_add_u32 {v(vWL)}, v0, 4, s40
    s_lshl_b32 s40, {s(sW)}, 13
    v_lshl_add_u32 {v(vV0)}, v0, 4, s40
    v_add_u32 {v(vV1)}, 4096, {v(vV0)}
    s_mul_i32 s40, {s(sW)}, 2560
    v_and_b32 {v(T+5)}, 1, {v(T+1)}
    v_lshl_add_u32 {v(vPX)}, v0, 4, s40
    v_lshl_add_u32 {v(vPM)}, v0, 2, s40
    v_lshlrev_b32 {v(vFL)}, 2, {v(T)}
    s_and_b32 s41, {s(sW)}, 1
    s_lshl_b32 s41, s41, 13
    v_lshl_add_u32 {v(vVP)}, v0, 4, s41
    s_add_u32 {s(sXB)}, s41, {L_VB}
    v_lshl_add_u32 {v(vVB)}, v0, 4, {s(sXB)}
    s_mul_i32 s40, {s(sW)}, {RBW}
    s_add_u32 s40, s40, {L_RB}
    v_lshrrev_b32 {v(T+7)}, 5, v0
    v_lshl_add_u32 {v(T+7)}, {v(T+7)}, 4, {v(T)}
    v_mul_u32_u24 {v(T+7)}, 48, {v(T+7)}
    v_lshl_add_u32 {v(T+7)}, {v(T+5)}, 4, {v(T+7)}
    v_add_u32 {v(vRWR)}, s40, {v(T+7)}
    s_and_b32 s40, {s(sW)}, 1
    s_lshl_b32 s40, s40, 4
    s_lshr_b32 s41, {s(sW)}, 1
    s_lshl_b32 s41, s41, 2
    s_add_u32 s40, s40, s41
    v_bfe_u32 {v(T+7)}, v0, 2, 1
    v_lshlrev_b32 {v(T+7)}, 3, {v(T+7)}
    v_and_b32 {v(T+8)}, 3, v0
    v_add3_u32 {v(T+7)}, {v(T+7)}, {v(T+8)}, s40
    v_mul_u32_u24 {v(T+7)}, 48, {v(T+7)}
    v_lshrrev_b32 {v(T+8)}, 3, v0
    v_lshl_add_u32 {v(T+7)}, {v(T+8)}, 2, {v(T+7)}
    v_add_u32 {v(vRRD)}, {L_RB}, {v(T+7)}
    s_lshl_b32 s40, {s(sROLE)}, 9
    s_lshl_b32 s41, {s(sW)}, 7
    s_add_u32 s40, s40, s41
    v_lshl_add_u32 {v(vMS)}, v0, 1, s40
    v_mov_b32 {v(vSN)}, {SENT}
    ''')
    addp(A, sMEM, sWS, MEMS_OFF); addp(A, 40, sMEM, MEM_SLOT); addp(A, 42, sMEM, 2 * MEM_SLOT)
    A.I(f'''
    global_store_short {v(vMS)}, {v(vSN)}, s[40:41] sc1
    global_store_short {v(vMS)}, {v(vSN)}, s[42:43] sc1
    ''')
    xcc_publish(A, sTMP, T + 12)
    A.I(f'''
    s_mul_i32 s40, {s(sW)}, {4*MF_HEAD}
    s_mul_i32 s41, {s(sROLE)}, {14*2048}
    s_add_u32 s40, s40, s41
    s_cmp_ge_u32 {s(sROLE)}, 8
    s_cselect_b32 {s(sTMP)}, 1, 0
    v_lshlrev_b32 {v(T+8)}, 4, v0
    ''')
    addp(A, sWT, sWS, MF_OFF + MF_MAT); addps(A, sWT, sWT, 40)
    addp(A, sVX, sWS, PF_OFF + 1024)
    A.I(f'''
    s_lshl_b32 s40, {s(sTMP)}, 9
    s_lshl_b32 s41, {s(sW)}, 7
    s_add_u32 s40, s40, s41
    v_lshl_add_u32 {v(T+12)}, {v(T+2)}, 2, s40
    ''')
    order = (3, 0, 1, 2)
    for n, hh in enumerate(order):
        if n: A.I(f's_waitcnt vmcnt(28)\n v_cmp_eq_u32 vcc, 0, {v(T+13)}\n s_cbranch_vccz L_va_w{hh}ok')
        A.I(f'L_va_w{hh}:\n global_load_dword {v(T+13)}, {v(T+12)}, {s(sVX,2)} offset:{32*hh} sc1')
        bud(A)
        A.I(f's_waitcnt vmcnt(0)\n v_cmp_eq_u32 vcc, 0, {v(T+13)}\n s_cbranch_vccnz L_va_w{hh}\nL_va_w{hh}ok:')
        if hh == 3: tl(A, 1, 4, T + 14)
        if hh == 1:
            for k in range(2 * NR, 28): A.I(f'ds_write_b128 {v(vWL)}, {v(60+4*k,4)} offset:{k*1024}')
            A.I('s_waitcnt lgkmcnt(0)')
            for k in range(8 * NR): A.I(f'v_mov_b32 {v(H3R+k)}, {v(60+k)}')
        if n < 3: A.I(f'global_load_dword {v(T+13)}, {v(T+12)}, {s(sVX,2)} offset:{32*order[n+1]} sc1')
        addp(A, 40, sWT, hh * MF_HEAD)
        for q in range(28):
            if hh == 3: dst = v(60 + 4 * q, 4)
            else:
                k = 112 * hh + 4 * q; dst = a_(k, 4) if k < 256 else v(WV + k - 256, 4)
            A.I(f'global_load_dwordx4 {dst}, {v(T+8)}, s[40:41] offset:{(q%4)*1024} sc1')
            if q % 4 == 3: addp(A, 40, 40, 4096)
    xcc_check(A, 'va', '-1', '-1', T + 12)
    addp(A, sP, sWS, PS_OFF); addp(A, sFL, sWS, FL_OFF); addp(A, sMT, sWS, MEMT_OFF + 63 * MEMT_SLOT)
    A.I(f's_mul_i32 s40, {s(sROLE)}, {VX_SC}'); addp(A, sVX, sWS, VX_OFF); addps(A, sVX, sVX, 40)
    A.I('s_waitcnt vmcnt(0) lgkmcnt(0)')
    tl(A, 1, 1, T)
    def flagwait(tag, loaded):
        if loaded:
            A.I(f'v_cmp_eq_u32 vcc, 0, {v(vDUM)}\n s_cbranch_vccz L_{tag}_ok')
        A.I(f'L_{tag}:\n global_load_dword {v(vDUM)}, {v(vFL)}, {s(sFL,2)} sc1')
        bud(A)
        A.I(f'''
        s_waitcnt vmcnt(0)
        v_cmp_eq_u32 vcc, 0, {v(vDUM)}
        s_cbranch_vccnz L_{tag}
L_{tag}_ok:
        ''')
    flagwait('va_f0', False)
    tl(A, 1, 3, T)
    addp(A, sFL, sFL, 256)
    if prof:
        A.I(f's_add_u32 s40, {s(sROLE)}, 16\n s_lshl_b32 s40, s40, 2\n s_add_u32 s40, s40, {s(sW)}\n s_lshl_b32 s40, s40, 12')
        addp(A, sDBG, sWS, END_OFF); addps(A, sDBG, sDBG, 40)
    def vxload(k):
        hh, t = k >> 1, k & 1
        A.I(f'global_load_dwordx4 {v(VXF+16*t+4*hh,4)}, {v(vV0 if hh < 2 else vV1)}, {s(sVX,2)} offset:{(hh&1)*2048+t*1024} sc1')
    def vxearly(tag):
        if not DEC:
            for k in range(VE): vxload(k)
            return
        A.I(f's_cmp_lt_u32 {s(sW)}, 2\n s_cbranch_scc1 L_{tag}')
        addp(A, 40, sVX, 4096)
        for k in range(8):
            A.I(f's_add_u32 m0, {s(sXB)}, {(k>>2)*4096}')
            A.I(f'global_load_lds_dwordx4 {v(vVP)}, {s(sVX if k < 4 else 40,2)} offset:{(k&3)*1024} sc1')
        for k in range(8): vxload(k)
        A.label(f'L_{tag}')
    def hslot(j): return [HRING, HRING + 8, HRING + 16, 168][(j - NR) % HD]
    def rdh(j):
        if j < NR or j >= 14: return
        for k in range(2):
            A.I(f'ds_read_b128 {v(hslot(j)+4*k,4)}, {v(vWL)} offset:{(2*j+k)*1024}'); lg.add(('h', j))
    def rda(j):
        A.I(f'ds_read_b128 {v(ARING+4*(j%4),4)}, {v(vAF)} offset:{j*512}'); lg.add(('a', j))
    def prep_():
        for k in range(16): A.I(f'v_mov_b32 {v(WACC+k)}, 0')
        for j in range(NR, NR + HD - 1): rdh(j)
    vxearly('va_e0')
    prep_()
    A.label('L_va_step')
    stamp(A, 0, prof)
    (mem_poll_half if DEC else mem_poll)(A, 'va', vG0, vPR, PF + 10)
    stamp(A, 1, prof)
    lg.clear()
    rda(0); rda(1); rda(2)
    addp(A, 40, sMEM, 3 * MEM_SLOT)
    store2(A, f'global_store_short {v(vMS)}, {v(vSN)}, s[40:41]')
    A.I('s_mov_b64 exec, -1')
    for j in range(14):
        lg.wait(('a', j))
        for hh in range(4):
            if hh == 3: lg.wait(('h', j))
            w = wreg(hh, j) if hh < 3 else v(H3R + 8 * j, 8) if j < NR else v(hslot(j), 8)
            A.I(f'v_smfmac_f32_16x16x64_bf16 {v(WACC+4*hh,4)}, {v(ARING+4*(j%4),4)}, {w}, {v(vIDX)}')
            if hh == 0 and j >= NR: rdh(j + HD - 1)
            if hh == 1 and j + 3 < 14: rda(j + 3)
            if hh == 2 and j < 8 - VE and not DEC: vxload(7 - j if 'vrev' in OPT else j + VE)
            if hh == 2 and j == 8 - VE: A.I(f'global_load_dword {v(vDUM)}, {v(vFL)}, {s(sFL,2)} sc1')
            if hh == 2:
                if j == 0: A.I(f'v_mov_b32 {v(vCK)}, {v(ARING)}')
                else: A.I(f'v_max_u32 {v(vCK)}, {v(vCK)}, {v(ARING+4*(j%4))}')
            if hh == 3 and j == 13: A.I(f'v_cmp_eq_u32 vcc, {s(sSENT)}, {v(vCK)}')
    A.I('s_cbranch_vccnz L_va_redo')
    if DEC:
        A.I(f's_waitcnt vmcnt(0)\n s_barrier\n s_cmp_ge_u32 {s(sW)}, 2\n s_cbranch_scc1 L_va_nv')
        for k in range(8): A.I(f'ds_read_b128 {v(VXF+16*(k&1)+4*(k>>1),4)}, {v(vVB)} offset:{k*1024}')
        A.label('L_va_nv')
    for k in range(2):
        for p in range(2):
            A.I(f'v_cvt_pk_bf16_f32 {v(WX+2*k+p)}, {v(WACC+8*p+2*k)}, {v(WACC+8*p+2*k+1)}')
            A.I(f'v_cvt_pk_bf16_f32 {v(WY+2*k+p)}, {v(WACC+8*p+4+2*k)}, {v(WACC+8*p+4+2*k+1)}')
    for k in range(4): A.I(f'v_permlane32_swap_b32 {v(WX+k)}, {v(WY+k)}')
    if DEC: A.I('s_waitcnt lgkmcnt(0)')
    stamp(A, 2, prof)
    if prof: A.I('s_waitcnt vmcnt(0)'); stamp(A, 6, prof)
    F = PF
    A.I(f'''
L_va_pp:
    global_load_dwordx4 {v(F,4)}, {v(vPX)}, {s(sP,2)} sc1
    global_load_dwordx4 {v(F+4,4)}, {v(vPX)}, {s(sP,2)} offset:1024 sc1
    global_load_dword {v(F+8)}, {v(vPM)}, {s(sP,2)} offset:2048 sc1
    global_load_dword {v(F+9)}, {v(vPM)}, {s(sP,2)} offset:2304 sc1
    ''')
    bud(A)
    for k in range(8): A.I(f'v_mov_b32 {v(OX+k)}, 0')
    A.I(f'''
    s_waitcnt vmcnt(3)
    v_smfmac_f32_16x16x64_bf16 {v(OX,4)}, {v(F,4)}, {v(VXF,8)}, {v(vIDX)}
    v_smfmac_f32_16x16x64_bf16 {v(OY,4)}, {v(F,4)}, {v(VXF+16,8)}, {v(vIDX)}
    s_waitcnt vmcnt(0)
    v_max3_u32 {v(vCK)}, {v(F)}, {v(F+4)}, {v(F+8)}
    v_smfmac_f32_16x16x64_bf16 {v(OX,4)}, {v(F+4,4)}, {v(VXF+8,8)}, {v(vIDX)}
    v_max_u32 {v(vCK)}, {v(vCK)}, {v(F+9)}
    v_smfmac_f32_16x16x64_bf16 {v(OY,4)}, {v(F+4,4)}, {v(VXF+24,8)}, {v(vIDX)}
    v_cmp_eq_u32 vcc, {s(sSENT)}, {v(vCK)}
    v_smfmac_f32_16x16x32_bf16 {v(OX,4)}, {v(F+8,2)}, {v(WX,4)}, {v(vIDX)}
    v_smfmac_f32_16x16x32_bf16 {v(OY,4)}, {v(F+8,2)}, {v(WY,4)}, {v(vIDX)}
    s_cbranch_vccnz L_va_pp
    ''')
    stamp(A, 3, prof)
    stamp(A, 8, prof > 1)
    A.flush()
    for r in range(4): A.I(f'v_permlane32_swap_b32 {v(OX+r)}, {v(OY+r)}')
    A.I(f'''
    v_pk_add_f32 {v(OX,2)}, {v(OX,2)}, {v(OY,2)}
    v_pk_add_f32 {v(OX+2,2)}, {v(OX+2,2)}, {v(OY+2,2)}
    ds_write_b128 {v(vRWR)}, {v(OX,4)}
    ''')
    stamp(A, 9, prof > 1)
    for k in range(FC): A.I(f'v_mov_b32 {v(WACC+k)}, 0')
    A.I('s_waitcnt lgkmcnt(0)')
    stamp(A, 10, prof > 1)
    A.I('s_barrier')
    stamp(A, 11, prof > 1)
    Z = ARING + 4
    for k in range(4): A.I(f'ds_read_b32 {v(Z+k)}, {v(vRRD)} offset:{k*RBW}')
    for k in range(FC, FC + FD): A.I(f'v_mov_b32 {v(WACC+k)}, 0')
    addp(A, sMEM, sMEM, MEM_SLOT); addp(A, sP, sP, PS_SLOT)
    A.I('s_waitcnt lgkmcnt(0)')
    stamp(A, 12, prof > 1)
    A.I(f'''
    v_pk_add_f32 {v(Z,2)}, {v(Z,2)}, {v(Z+2,2)}
    v_add_f32 {v(Z)}, {v(Z)}, {v(Z+1)}
    v_cvt_pk_bf16_f32 {v(vZ)}, {v(Z)}, {v(Z)}
    ''')
    store2(A, f'global_store_short {v(vMS)}, {v(vZ)}, {s(sMEM,2)}')
    A.I('s_mov_b64 exec, -1')
    stamp(A, 4, prof)
    A.I(f's_add_u32 {s(sSTEP)}, {s(sSTEP)}, 1\n s_cmp_ge_u32 {s(sSTEP)}, {NSTEP}\n s_cbranch_scc1 L_va_end')
    flagwait('va_f1', True)
    addp(A, sVX, sVX, 14 * VX_SC); addp(A, sFL, sFL, 256)
    vxearly('va_e1')
    lg.clear(); prep_()
    stamp(A, 5, prof)
    stamp_flush(A, prof)
    A.I('s_branch L_va_step')
    A.label('L_va_redo')
    if prof: A.I(f's_add_u32 {s(sreg(15))}, {s(sreg(15))}, 1')
    A.I('s_waitcnt vmcnt(0) lgkmcnt(0)\n s_nop 15\n s_barrier')
    lg.clear(); prep_()
    A.I('s_branch L_va_mp')
    A.label('L_va_end')
    if 'mtdirect' in OPT: A.I(f'global_store_short {v(vMS)}, {v(vZ)}, {s(sMT,2)} sc1')
    tl(A, 1, 2, T)
    stamp_flush(A, prof)
    A.I('s_endpgm')

def helper(A):
    vG0, vX, vP, vM, D = 1, 2, 3, 4, 8
    A.label('L_helper')
    A.I(f's_load_dwordx2 {s(sX0,2)}, s[0:1], {KA_X}\n s_waitcnt lgkmcnt(0)')
    chain_common(A)
    xcc_publish(A, sROLE, 20)
    A.I(f'''
    s_mul_i32 {s(sLB)}, {s(sW)}, 1792
    v_lshlrev_b32 {v(vG0)}, 4, v0
    v_add_u32 {v(vG0)}, {s(sLB)}, {v(vG0)}
    s_mov_b32 {s(sM48)}, -1
    s_mov_b32 {s(sM48+1)}, 0xffff
    s_mul_i32 s40, {s(sW)}, 7168
    v_min_u32 {v(vX)}, 55, v0
    v_lshl_add_u32 {v(vX)}, {v(vX)}, 7, s40
    s_mul_i32 s40, {s(sW)}, 2560
    v_min_u32 {v(vP)}, 19, v0
    v_lshl_add_u32 {v(vP)}, {v(vP)}, 7, s40
    v_min_u32 {v(vM)}, 13, v0
    v_lshl_add_u32 {v(vM)}, {v(vM)}, 7, {s(sLB)}
    v_add_u32 {v(vM)}, {4*MEM_SLOT}, {v(vM)}
    v_add_u32 {v(vP)}, {PS_SLOT * (2 if 'mtouch' in OPT else 0)}, {v(vP)}
    v_mov_b32 {v(D+4)}, 0
    v_mov_b32 {v(D+5)}, 0
    v_mov_b32 {v(D+6)}, 0
    v_mov_b32 {v(D+7)}, 0
    ''')
    xcc_check(A, 'he', '-1', '-1', 20)
    wait_tiles(A, 'he', 20, 1, 'all', None, 8)
    addp(A, sMEM, sWS, MEMS_OFF); addp(A, sMT, sWS, MEMT_OFF); addp(A, sP, sWS, PS_OFF)
    addp(A, sX0, sX0, XI_SEG)
    A.I(f'''
    global_load_dword v20, {v(vX)}, {s(sX0,2)}
    global_load_dword v21, {v(vP)}, {s(sP,2)} sc1
    ''')
    addp(A, sX0, sX0, XI_SEG); addp(A, sP, sP, PS_SLOT)
    if 'xahead' in OPT:
        A.I(f'global_load_dword v20, {v(vX)}, {s(sX0,2)}'); addp(A, sX0, sX0, XI_SEG)
    A.I(f'''
L_he_step:
    s_sleep {HSLEEP}
    global_load_dwordx4 {v(D,4)}, {v(vG0)}, {s(sMEM,2)} sc1
    s_mov_b64 exec, {s(sM48,2)}
    global_load_dwordx4 {v(D+4,4)}, {v(vG0)}, {s(sMEM,2)} offset:1024 sc1
    s_mov_b64 exec, -1
    ''')
    bud(A)
    A.I(f'''
    s_waitcnt vmcnt(0)
    v_max3_u32 v16, {v(D)}, {v(D+1)}, {v(D+2)}
    v_max3_u32 v16, v16, {v(D+3)}, {v(D+4)}
    v_max3_u32 v16, v16, {v(D+5)}, {v(D+6)}
    v_max_u32 v16, v16, {v(D+7)}
    v_cmp_eq_u32 vcc, {s(sSENT)}, v16
    s_cbranch_vccnz L_he_step
    s_add_u32 {s(sSTEP)}, {s(sSTEP)}, 1
    global_store_dwordx4 {v(vG0)}, {v(D,4)}, {s(sMT,2)} sc1
    s_mov_b64 exec, {s(sM48,2)}
    global_store_dwordx4 {v(vG0)}, {v(D+4,4)}, {s(sMT,2)} offset:1024 sc1
    s_mov_b64 exec, -1
    global_load_dword v21, {v(vP)}, {s(sP,2)} sc1
    {f'global_load_dword v22, {v(vM)}, {s(sMEM,2)} sc1' if 'mtouch' in OPT else ''}
    s_cmp_ge_u32 {s(sSTEP)}, {NSTEP - ('xahead' in OPT)}
    s_cbranch_scc1 L_he_nox
    global_load_dword v20, {v(vX)}, {s(sX0,2)}
L_he_nox:
    ''')
    addp(A, sX0, sX0, XI_SEG); addp(A, sP, sP, PS_SLOT); addp(A, sMEM, sMEM, MEM_SLOT); addp(A, sMT, sMT, MEMT_SLOT)
    A.I(f'''
    s_cmp_le_u32 {s(sSTEP)}, {NSTEP - ('mtdirect' in OPT)}
    s_cbranch_scc1 L_he_step
    s_endpgm
    ''')

def fetcher(A):
    vV, vF, vM = 1, 2, 3
    NL = PFL
    per = 64 // NL
    A.label('L_fetch')
    chain_common(A)
    xcc_publish(A, sROLE, 20)
    A.I(f'''
    v_lshrrev_b32 v4, {NL.bit_length()-1}, v0
    v_and_b32 v5, {NL-1}, v0
    s_lshl_b32 s40, {s(sW)}, 13
    v_lshl_add_u32 v5, v5, 7, s40
    v_and_b32 {v(vF)}, 15, v0
    v_lshlrev_b32 {v(vF)}, 2, {v(vF)}
    v_mov_b32 {v(vM)}, 4000
    ''')
    n = (14 + per - 1) // per
    for i in range(n):
        A.I(f'v_add_u32 v6, {per*i}, v4\n v_min_u32 v6, 13, v6\n v_lshl_add_u32 {v(8+i)}, v6, 15, v5')
    xcc_check(A, 'fe', '-1', '-1', 30)
    addp(A, sMEM, sWS, MEMS_OFF); addp(A, sVX, sWS, VX_OFF + PFA * 14 * VX_SC); addp(A, sFL, sWS, FL_OFF + PFA * 256)
    A.I(f'''
L_fe_step:
    global_load_dword v24, {v(vM)}, {s(sMEM,2)} sc1
    global_load_dword v25, {v(vF)}, {s(sFL,2)} sc1
    ''')
    bud(A)
    A.I(f'''
    s_waitcnt vmcnt(0)
    v_cmp_eq_u32 vcc, {s(sSENT)}, v24
    v_cmp_eq_u32 s[40:41], 0, v25
    s_or_b64 vcc, vcc, s[40:41]
    s_cbranch_vccz L_fe_go
    s_sleep 2
    s_branch L_fe_step
L_fe_go:
    ''')
    for i in range(n): A.I(f'global_load_dword {v(26)}, {v(8+i)}, {s(sVX,2)} sc1')
    addp(A, sMEM, sMEM, MEM_SLOT); addp(A, sVX, sVX, 14 * VX_SC); addp(A, sFL, sFL, 256)
    A.I(f'''
    s_add_u32 {s(sSTEP)}, {s(sSTEP)}, 1
    s_cmp_lt_u32 {s(sSTEP)}, {NSTEP - PFA}
    s_cbranch_scc1 L_fe_step
    s_endpgm
    ''')
```

```python
from asmlib import *
from layout import *
import struct
def f32(x): return hex(struct.unpack('<I', struct.pack('<f', x))[0])
def addp(A, dst, src, off):
    A.I(f's_add_u32 {s(dst)}, {s(src)}, {off & 0xffffffff}')
    A.I(f's_addc_u32 {s(dst+1)}, {s(src+1)}, 0')
def addps(A, dst, src, sreg):
    A.I(f's_add_u32 {s(dst)}, {s(src)}, {s(sreg)}')
    A.I(f's_addc_u32 {s(dst+1)}, {s(src+1)}, 0')
def dpp(k): return f'row_ror:{k} row_mask:0xf bank_mask:0xf'
CSC = 1.4426950408889634 / 16
KA_X, KA_MEM0, KA_WQ, KA_WK, KA_WV, KA_WO, KA_W1, KA_W2, KA_GW, KA_OUT, KA_DBG, KA_WS = 0, 8, 16, 24, 32, 40, 64, 72, 80, 88, 96, 104

TL = {'on': 0}
DBGW = {(1,0,'e'):0, (0,1,'e'):1, (0,2,'e'):2, (0,2,'he'):3, (1,4,'va'):4, (1,4,'sc'):5, (1,1,'va'):6, (1,1,'sc'):7, (1,3,'va'):8, (1,2,'va'):9, (1,2,'tt'):10, (1,2,'tv'):11, (1,2,'ou'):12, (1,1,'tv'):13, (1,3,'tv'):14, (1,2,'f1'):15}
TL_OFF = END_OFF + 0x80000
def tl(A, kern, idx, vt, ws=8):
    if TL.get('dbg') and (kern, idx, TL.get('role')) in DBGW:
        w = DBGW[(kern, idx, TL.get('role'))]
        TL['n'] = TL.get('n', 0) + 1
        A.I(f'''
        s_cmp_lg_u32 s4, 0
        s_cbranch_scc1 L_tl{TL['n']}
        s_cmp_ge_u32 s70, {8 if w == 0 else 256}
        s_cbranch_scc1 L_tl{TL['n']}
        s_memrealtime s[72:73]
        s_waitcnt lgkmcnt(0)
        {'s_not_b32 s72, s72' if w == 0 else ''}
        v_mov_b32 {v(vt)}, {4*w}
        v_mov_b32 {v(vt+1)}, s72
        s_mov_b64 exec, 1
        global_atomic_umax {v(vt)}, {v(vt+1)}, s[96:97] sc1
        s_mov_b64 exec, -1
L_tl{TL['n']}:
        ''')
        return
    if not TL['on']: return
    A.I(f'''
    s_memrealtime s[72:73]
    s_lshl_b32 s74, s70, 6
    s_add_u32 s74, s74, {TL_OFF + kern * 32768 + idx * 4}
    s_waitcnt lgkmcnt(0)
    v_mov_b32 {v(vt)}, s74
    v_mov_b32 {v(vt+1)}, s72
    global_store_dword {v(vt)}, {v(vt+1)}, {s(ws,2)}
    ''')
```

```python
NSEG = 64
MF_OFF   = 0
MF_HEAD  = 14 * 14 * 2048
MF_MAT   = 16 * MF_HEAD
VX_OFF   = MF_OFF + 2 * MF_MAT
VX_SC    = 32768
MEM_SLOT = 8192
MEMS_OFF = VX_OFF + NSEG * 14 * VX_SC
MEMT_OFF = MEMS_OFF + 70 * MEM_SLOT
MEMT_SLOT = 7168
PS_OFF   = MEMT_OFF + 64 * MEMT_SLOT
PS_SLOT  = 10240
G_OFF    = PS_OFF + 70 * PS_SLOT
FL_OFF   = G_OFF + 8192
PF_OFF   = FL_OFF + NSEG * 256
F2_OFF   = PF_OFF + 8192
XI_SEG   = 28672
HI_OFF   = F2_OFF + NSEG * 1024
HI_SEG   = 56 * 2048
PX_OFF   = HI_OFF + NSEG * HI_SEG
PX_SEG   = 40 * 1024
WT_OFF   = PX_OFF + NSEG * PX_SEG
WT_SEG   = 4 * 28 * 1024
FX_OFF   = WT_OFF + NSEG * WT_SEG
BP_OFF   = FX_OFF + 16 * 40960
END_OFF  = BP_OFF + 32 * 1792
SENT = 0xFFBFFFBF
P0 = [0, 4, 7, 11]
P3 = [3, 3, 10, 10]
LAG = 5
L3T = [1, 2, 3, 4, 5, 6, 7]
def score_seq():
    seq = []
    for t in range(14 + LAG):
        if t < 14: seq += [(0, t), (1, t)]
        if t in L3T: seq.append((3, L3T.index(t)))
        if t >= LAG: seq.append((2, t - LAG))
    return seq
if __name__ == '__main__':
    for k, x in list(globals().items()):
        if k.endswith('_OFF') or k.endswith('_END'): print(k, x, x % 4096)
```

```python
from common import *
PRE = 0
TOUCH = 0
TNT = ''
LDA = 'nt'
LDNT = 'nt'
DB_INIT, DB_XCC = 192, 224
sW, sWS, sDB = 4, 8, 96
BUDGET = 1 << 20

def spin(A, tag, load, regs, sleep=2):
    A.I(f'''
    s_mov_b32 s42, 0
L_{tag}_rp:
    {load}
    s_add_u32 s42, s42, 1
    s_cmp_gt_u32 s42, {BUDGET}
    s_cbranch_scc1 L_bail
    s_waitcnt vmcnt(0)
    ''')
    r = regs[0]
    for k in regs[1:]: A.I(f'v_min_u32 {v(r)}, {v(r)}, {v(k)}')
    A.I(f'''
    v_cmp_eq_u32 vcc, 0, {v(r)}
    s_cbranch_vccz L_{tag}_rb
    s_sleep {sleep}
    s_branch L_{tag}_rp
L_{tag}_rb:
    ''')

def wait_tiles(A, tag, vt, mat, kind, sreg=None, sleep=2):
    A.I(f's_cmp_lg_u32 {s(sW)}, 0\n s_cbranch_scc1 L_{tag}_rb')
    addp(A, 40, sWS, PF_OFF + mat * 1024)
    if kind == 'head':
        A.I(f'''
        v_bfe_u32 {v(vt)}, v0, 3, 1
        v_lshlrev_b32 {v(vt)}, 9, {v(vt)}
        v_and_b32 {v(vt+1)}, 7, v0
        v_lshl_add_u32 {v(vt)}, {v(vt+1)}, 2, {v(vt)}
        s_lshl_b32 s43, {s(sreg)}, 5
        v_add_u32 {v(vt)}, s43, {v(vt)}
        ''')
        spin(A, tag, f'global_load_dword {v(vt+2)}, {v(vt)}, s[40:41] sc1', [vt + 2], sleep)
    elif kind == 'half':
        A.I(f's_lshl_b32 s43, {s(sreg)}, 9\n v_lshl_add_u32 {v(vt)}, v0, 3, s43')
        spin(A, tag, f'global_load_dwordx2 {v(vt+2,2)}, {v(vt)}, s[40:41] sc1', [vt + 2, vt + 3], sleep)
    else:
        A.I(f'v_lshlrev_b32 {v(vt)}, 4, v0')
        spin(A, tag, f'global_load_dwordx4 {v(vt+2,4)}, {v(vt)}, s[40:41] sc1', [vt + 2, vt + 3, vt + 4, vt + 5], sleep)
    A.I('s_barrier')

def gemm_jobs(A, sN):
    sU, sV, sO, sH, sJB, sB, sHF, sFO = 10, 12, 14, 16, 17, 18, 19, 32
    A.I(f's_load_dwordx8 s[24:31], s[0:1], {KA_WQ}\n s_mov_b32 {s(sFO)}, 0\n s_mov_b32 {s(sFO+1)}, 0')
    VA, VB, VR, VU, VV, vO, VL = 8, 12, 16, 20, 24, 28, 32
    UF, RING, ACC, OUT = 64, 128, 160, 176
    UBUF = 128 * 1024
    A.I(f'''
    v_lshlrev_b32 {v(vO)}, 4, v0
    v_lshrrev_b32 v3, 5, v0
    v_and_b32 v4, 31, v0
    s_lshl_b32 s20, {s(sW)}, 4
    s_lshl_b32 {s(sB)}, {s(sW)}, 13
    ''')
    for b in range(4):
        A.I(f'''
        v_add_u32 v5, {2*(b&1)}, v3
        v_lshlrev_b32 v6, 2, v5
        v_xor_b32 v6, v6, v4
        v_xor_b32 v6, {(b>>1)<<1}, v6
        v_add3_u32 v5, s20, v5, {8*(b>>1)}
        v_lshlrev_b32 v5, 13, v5
        v_lshl_add_u32 {v(VA+b)}, v6, 4, v5
        ''')
    A.I(f'''
    v_and_b32 v5, 3, v1
    v_lshrrev_b32 v6, 2, v1
    v_lshl_add_u32 v36, v6, 3, v5
    v_lshlrev_b32 v36, 9, v36
    v_lshlrev_b32 v5, 2, v5
    v_bfe_u32 v6, v1, 2, 1
    v_lshl_add_u32 v5, v6, 1, v5
    s_and_b32 s21, {s(sW)}, 1
    s_lshl_b32 s21, s21, 14
    s_add_u32 s21, s21, {UBUF}
    v_add_u32 v6, s21, v36
    ''')
    for b in range(4):
        A.I(f'''
        v_add_u32 v7, {4*b}, v2
        v_xor_b32 v7, v7, v5
        v_lshlrev_b32 {v(VL+b)}, 4, v7
        v_add_u32 {v(VU+b)}, {v(VL+b)}, v6
        ''')
    A.I('s_waitcnt lgkmcnt(0)')
    vm = Cnt(A, 'vmcnt', 63); lg = Cnt(A, 'lgkmcnt', 15)
    def setup(mat):
        r = sN + 1 - mat
        pu, pv = (24, 26) if mat == 0 else (28, 30)
        A.I(f'''
        s_mul_i32 {s(sH)}, {s(r)}, 4682
        s_lshr_b32 {s(sH)}, {s(sH)}, 16
        s_mul_i32 s20, {s(sH)}, 14
        s_sub_u32 {s(sJB)}, {s(r)}, s20
        s_cmp_ge_u32 {s(sJB)}, 7
        s_cselect_b32 {s(sHF)}, 1, 0
        s_mul_i32 s20, {s(sHF)}, 7
        s_sub_u32 {s(sJB)}, {s(sJB)}, s20
        s_lshl_b32 s20, {s(sHF)}, 9
        s_lshl_b32 s21, {s(sH)}, 5
        s_add_u32 s20, s20, s21
        s_lshl_b32 s21, {s(sJB)}, 2
        s_add_u32 {s(sFO+mat)}, s20, s21
        s_lshl_b32 s20, {s(sJB)}, 19
        s_lshl_b32 s21, {s(sH)}, 9
        s_add_u32 s20, s20, s21
        ''')
        addps(A, sU, pu, 20)
        A.I(f'''
        s_mul_i32 s20, {s(sH)}, {MF_HEAD}
        s_lshr_b32 s22, {s(sW)}, 1
        s_lshl_b32 s23, {s(sHF)}, 3
        s_add_u32 s22, s22, s23
        s_mul_i32 s22, s22, 14
        s_and_b32 s23, {s(sW)}, 1
        s_add_u32 s22, s22, s23
        s_lshl_b32 s23, {s(sJB)}, 1
        s_add_u32 s22, s22, s23
        s_lshl_b32 s22, s22, 11
        s_add_u32 s20, s20, s22
        ''')
        addp(A, sO, sWS, MF_OFF + mat * MF_MAT); addps(A, sO, sO, 20)
        if mat == 0:
            A.I(f's_lshl_b32 s22, {s(sHF)}, 21\n s_add_u32 s21, s21, s22')
            addps(A, sV, pv, 21)
            A.I(f'''
            s_lshr_b32 s21, {s(sW)}, 1
            s_lshl_b32 s21, s21, 5
            v_bfe_u32 v5, v1, 2, 1
            v_lshlrev_b32 v5, 4, v5
            v_lshrrev_b32 v6, 3, v1
            v_lshl_add_u32 v5, v6, 2, v5
            v_and_b32 v6, 3, v1
            v_add3_u32 v5, v5, v6, s21
            v_lshlrev_b32 v5, 9, v5
            s_and_b32 s21, {s(sW)}, 1
            s_lshl_b32 s21, s21, 5
            ''')
            for b in range(4): A.I(f'v_add_u32 {v(VR+b)}, {v(VL+b)}, v5')
            for b in range(4): A.I(f'v_xor_b32 {v(VB+b)}, s21, {v(VA+b)}\n v_xor_b32 {v(VB+b)}, {(b>>1)<<5}, {v(VB+b)}')
        else:
            A.I(f'''
            s_mul_i32 s21, {s(sH)}, {256*896}
            s_mul_i32 s22, {s(sW)}, {64*896}
            s_add_u32 s21, s21, s22
            s_lshl_b32 s22, {s(sHF)}, 9
            s_add_u32 s21, s21, s22
            ''')
            addps(A, sV, pv, 21)
            A.I(f'''
            v_lshrrev_b32 v5, 3, v0
            v_and_b32 v6, 7, v0
            v_bfe_u32 v7, v0, 4, 1
            v_lshlrev_b32 v7, 1, v7
            v_xor_b32 v6, v6, v7
            v_mul_u32_u24 v5, 896, v5
            v_lshl_add_u32 {v(VB)}, v6, 4, v5
            v_xor_b32 v6, 4, v6
            v_lshl_add_u32 {v(VB+1)}, v6, 4, v5
            v_add_u32 {v(VB+1)}, {8*896}, {v(VB+1)}
            v_bfe_u32 v5, v0, 2, 2
            v_lshl_add_u32 v6, v2, 3, v5
            v_lshlrev_b32 v6, 7, v6
            v_and_b32 v7, 1, v0
            v_lshl_add_u32 v6, v7, 3, v6
            v_and_b32 v5, 2, v5
            v_and_b32 v7, 1, v2
            v_lshl_add_u32 v5, v7, 2, v5
            v_bfe_u32 v7, v0, 1, 1
            v_xor_b32 v5, v5, v7
            s_lshr_b32 s21, {s(sW)}, 1
            s_lshl_b32 s21, s21, 2
            v_xor_b32 v5, s21, v5
            v_lshl_add_u32 {v(VR)}, v5, 4, v6
            v_xor_b32 v5, 2, v5
            v_lshl_add_u32 {v(VR+1)}, v5, 4, v6
            ''')
    pol = [LDNT]
    def dma(vaddr, base, lds, tag):
        A.I(f's_add_u32 m0, {s(sB)}, {lds}')
        A.I(f'global_load_lds_dwordx4 {v(vaddr)}, {s(base,2)} {pol[0]}'); vm.add(tag)
    def issueU():
        addp(A, 22, sU, 32768)
        for kk in range(8): dma(VA + (kk & 1) + 2 * (kk >> 2), 22 if kk & 2 else sU, UBUF + kk * 1024, 'U')
    def issueV(mat, cc):
        step = 64 * 8192 if mat == 0 else 128
        if mat == 0:
            addp(A, 22, sV, 32768)
            for kk in range(8): dma(VB + (kk & 1) + 2 * (kk >> 2), 22 if kk & 2 else sV, cc * 32768 + kk * 1024, ('V', cc))
        else:
            A.I(f's_mov_b64 s[22:23], {s(sV,2)}')
            for kk in range(8):
                dma(VB + (kk & 1), 22, cc * 32768 + kk * 1024, ('V', cc))
                if kk & 1 and kk < 7: addp(A, 22, 22, 16 * 896)
        if cc < 2: addp(A, sV, sV, step)
        elif cc == 2:
            A.I(f's_cmp_eq_u32 {s(sHF)}, 0\n s_cselect_b32 s20, {step}, 0'); addps(A, sV, sV, 20)
    def compute(mat):
        vm.wait('U'); A.I('s_barrier')
        for tp in range(2):
            for kk in range(8):
                A.I(f'ds_read_b128 {v(UF + 32*tp + 4*kk, 4)}, {v(VU + (kk&3))} offset:{(kk>>2)*256 + tp*2048}')
            A.I('s_waitcnt lgkmcnt(0)')
        nreg = 4 if mat == 0 else 2
        for cc in range(4):
            for b in range(nreg): A.I(f'v_add_u32 {v(VV+b)}, {cc*32768}, {v(VR+b)}')
            vm.wait(('V', cc)); A.I('s_barrier')
            if cc == 3: A.I(f's_cmp_lg_u32 {s(sHF)}, 0\n s_cbranch_scc1 L_pj_done{mat}')
            def rd(kk):
                r = RING + 8 * (kk % 3)
                for y in range(2):
                    if mat == 0:
                        A.I(f'ds_read_b128 {v(r+4*y,4)}, {v(VV+(kk&3))} offset:{(kk>>2)*256 + y*4096}'); lg.add((kk, y))
                    else:
                        for hi in range(2):
                            A.I(f'ds_read_b64_tr_b16 {v(r+4*y+2*hi,2)}, {v(VV+y)} offset:{kk*4096 + hi*512}'); lg.add((kk, y))
            rd(0); rd(1)
            for kk in range(8):
                r = RING + 8 * (kk % 3)
                for y in range(2):
                    lg.wait((kk, y))
                    for tp in range(2):
                        acc = v(ACC + 8*tp + 4*y, 4)
                        A.I(f'v_mfma_f32_16x16x32_bf16 {acc}, {v(UF+32*tp+4*kk,4)}, {v(r+4*y,4)}, {acc if kk else 0}')
                        if y == 0 and tp == 0 and kk + 2 < 8: rd(kk + 2)
            o = OUT + 8 * (cc & 1)
            if mat == 0:
                for k in range(16): A.I(f'v_mul_f32 {v(ACC+k)}, {f32(CSC)}, {v(ACC+k)}')
            for tp in range(2):
                for k in range(2):
                    for y in range(2):
                        A.I(f'v_cvt_pk_bf16_f32 {v(o+4*tp+2*k+y)}, {v(ACC+8*tp+4*y+2*k)}, {v(ACC+8*tp+4*y+2*k+1)}')
            A.I(f'global_store_dwordx4 {v(vO)}, {v(o,4)}, {s(sO,2)} sc1'); vm.add('st')
            A.I(f'global_store_dwordx4 {v(vO)}, {v(o+4,4)}, {s(sO,2)} offset:1024 sc1'); vm.add('st')
            addp(A, sO, sO, 2 * 14 * 2048)
        A.label(f'L_pj_done{mat}')
    def flag(mat, tag):
        A.I(f'''
        s_barrier
        s_cmp_lg_u32 {s(sW)}, 0
        s_cbranch_scc1 L_pj_nf{tag}
        v_mov_b32 v30, {s(sFO+mat)}
        v_mov_b32 v31, 1
        ''')
        addp(A, 20, sWS, PF_OFF + mat * 1024)
        A.I('global_store_dword v30, v31, s[20:21] sc1')
        A.label(f'L_pj_nf{tag}')
        tl(A, 0, 2 - mat, 200)
    def initwait(tag):
        A.I('v_mov_b32 v30, 0')
        spin(A, tag, f'global_load_dword v31, v30, {s(sDB,2)} offset:{DB_INIT} sc1', [31])
    A.I(f'''
    s_cmp_lt_i32 {s(sN)}, 0
    s_cbranch_scc1 L_pj_onlya
    s_lshl_b32 s22, {s(sN)}, 11
    s_lshl_b32 s23, {s(sW)}, 9
    s_add_u32 s22, s22, s23
    v_lshl_add_u32 v30, v0, 3, s22
    v_mov_b32 v6, {SENT}
    v_mov_b32 v7, {SENT}
    ''')
    addp(A, 20, sWS, MEMT_OFF)
    A.I('global_store_dwordx2 v30, v[6:7], s[20:21] sc1')
    setup(1); issueU()
    for cc in range(3): issueV(1, cc)
    A.I(f'v_mov_b32 v38, 0\n global_load_dword v37, v38, {s(sDB,2)} offset:{DB_INIT} sc1'); vm.add('i')
    issueV(1, 3)
    if TOUCH:
        A.I(f'''
        s_lshl_b32 s20, {s(sJB)}, 6
        s_lshl_b32 s21, {s(sW)}, 4
        s_add_u32 s20, s20, s21
        v_lshrrev_b32 v39, 2, v0
        v_and_b32 v40, 3, v0
        v_lshlrev_b32 v40, 7, v40
        s_lshl_b32 s22, {s(sH)}, 9
        v_add_u32 v40, s22, v40
        v_add_u32 v41, s20, v39
        v_lshl_add_u32 v41, v41, 13, v40
        global_load_dword v42, v41, s[24:25] {TNT}
        s_mul_i32 s20, {s(sJB)}, 37
        s_mul_i32 s21, {s(sW)}, 10
        s_add_u32 s20, s20, s21
        s_lshl_b32 s21, {s(sHF)}, 8
        s_add_u32 s20, s20, s21
        v_min_u32 v39, 9, v39
        v_add_u32 v41, s20, v39
        v_min_u32 v41, 447, v41
        v_lshl_add_u32 v41, v41, 13, v40
        global_load_dword v42, v41, s[26:27] {TNT}
        ''')
        vm.add('t'); vm.add('t')
    compute(1)
    A.I('v_cmp_eq_u32 vcc, 0, v37\n s_cbranch_vccz L_pj_iok')
    initwait('pj_i1')
    A.I(f'''
L_pj_iok:
    s_cmp_ge_i32 {s(sN+1)}, 0
    s_cbranch_scc1 L_pj_both
    s_waitcnt vmcnt(0)
    ''')
    flag(1, 'x')
    A.I('s_branch L_pj_end')
    A.label('L_pj_onlya')
    initwait('pj_i0')
    A.I(f's_cmp_lt_i32 {s(sN+1)}, 0\n s_cbranch_scc1 L_pj_end')
    A.label('L_pj_both')
    vm.clear(); pol[0] = LDA
    setup(0)
    if PRE >= 1: issueU()
    for cc in range(PRE - 1): issueV(0, cc)
    A.I(f's_cmp_lt_i32 {s(sN)}, 0\n s_cbranch_scc1 L_pj_nob\n s_waitcnt vmcnt({8*PRE})')
    flag(1, 'y')
    A.label('L_pj_nob')
    if PRE < 1: issueU()
    for cc in range(max(PRE - 1, 0), 4): issueV(0, cc)
    compute(0)
    A.I('s_waitcnt vmcnt(0)')
    flag(0, 'z')
    A.label('L_pj_end')

def orphan(A, dst, o, t):
    A.I(f'''
    s_lshr_b32 {s(t)}, {s(o)}, 2
    s_lshl_b32 {s(t)}, {s(t)}, 3
    s_and_b32 {s(t+1)}, {s(o)}, 3
    s_add_u32 {s(t)}, {s(t)}, {s(t+1)}
    s_mul_i32 {s(t+1)}, {s(t)}, 3121
    s_lshr_b32 {s(t+1)}, {s(t+1)}, 16
    s_mul_i32 {s(t+1)}, {s(t+1)}, 11
    s_add_u32 {s(t)}, {s(t)}, {s(t+1)}
    s_add_u32 {s(dst)}, {s(t)}, 11
    ''')

def init_job(A):
    A.I(f'''
    s_load_dwordx2 s[34:35], s[0:1], {KA_MEM0}
    v_mov_b32 v8, 0
    v_mov_b32 v9, 0
    v_mov_b32 v10, 0
    v_mov_b32 v11, 0
    s_lshl_b32 s22, {s(sW)}, 12
    v_lshl_add_u32 v6, v0, 4, s22
    ''')
    addp(A, 22, sWS, FL_OFF)
    for k in range(4): A.I(f'global_store_dwordx4 v6, v[8:11], s[22:23] offset:{k*1024} sc1')
    A.I(f'''
    s_lshl_b32 s22, {s(sW)}, 9
    v_lshl_add_u32 v6, v0, 3, s22
    v_and_b32 v9, 3, v0
    v_cmp_eq_u32 vcc, 3, v9
    v_cndmask_b32 v9, 0, 1, vcc
    ''')
    addp(A, 22, sWS, PF_OFF)
    A.I(f'''
    global_store_dwordx2 v6, v[8:9], s[22:23] sc1
    s_waitcnt vmcnt(0)
    s_barrier
    v_mov_b32 v6, 0
    v_mov_b32 v7, 1
    global_store_dword v6, v7, {s(sDB,2)} offset:{DB_INIT} sc1
    ''')
    tl(A, 0, 2, 200)
    addp(A, 22, sWS, MEMS_OFF)
    A.I(f's_mul_i32 s30, {s(sW)}, 112\n s_waitcnt lgkmcnt(0)')
    for k in range(2):
        A.I(f'''
        v_min_u32 v6, {63 if k == 0 else 47}, v0
        v_add3_u32 v6, v6, s30, {64*k}
        v_and_b32 v7, 7, v6
        v_mul_u32_u24 v7, 896, v7
        v_lshrrev_b32 v10, 5, v6
        v_lshl_add_u32 v7, v10, 6, v7
        v_bfe_u32 v10, v6, 3, 1
        v_lshl_add_u32 v7, v10, 5, v7
        v_bfe_u32 v10, v6, 4, 1
        v_lshl_add_u32 v7, v10, 3, v7
        global_load_dwordx2 v[12:13], v7, s[34:35]
        global_load_dwordx2 v[14:15], v7, s[34:35] offset:16
        v_lshlrev_b32 v6, 4, v6
        s_waitcnt vmcnt(0)
        ''')
        for r in range(4): A.I(f'v_cmp_eq_u32 vcc, {SENT}, {v(12+r)}\n v_cndmask_b32 {v(12+r)}, {v(12+r)}, -1, vcc')
        A.I('global_store_dwordx4 v6, v[12:15], s[22:23] sc1')
```

```python
from common import *
from prep import wait_tiles
BUDGET = 1 << 20
sH, sW, sSEG, sBUD, sSENT = 3, 4, 5, 6, 7
sWS = 8
sA, sB_, sC_, sD, sE, sF = 10, 12, 14, 16, 18, 20
sREP, sLB, sPAR = 22, 23, 24
sM0, sM1 = 26, 28
T0 = 40

def wave_setup(A):
    A.I(f'''
    v_lshlrev_b32 v3, 4, v0
    s_mov_b32 {s(sBUD)}, 0
    s_mov_b32 {s(sSENT)}, {SENT}
    ''')

def budget(A):
    A.I(f's_add_u32 {s(sBUD)}, {s(sBUD)}, 1\n s_cmp_gt_u32 {s(sBUD)}, {BUDGET}\n s_cbranch_scc1 L_bail')

GATE = 1
OST = 'nt'
TS = 2
LIGHT = 1
LINE = 4000
def gate(A, tag):
    wait_tiles(A, tag + 'a', 8, 1, 'all', None, 8)
    if not GATE: return
    addp(A, 40, sWS, MEMT_OFF + MEMT_SLOT)
    A.I(f'''
    v_mov_b32 v8, 0
L_{tag}_g:
    s_sleep 16
    global_load_dword v9, v8, s[40:41] sc1
    ''')
    budget(A)
    A.I(f's_waitcnt vmcnt(0)\n v_cmp_eq_u32 vcc, {s(sSENT)}, v9\n s_cbranch_vccnz L_{tag}_g')

def p0p3(A, d0, d3):
    A.I(f'''
    s_and_b32 s46, {s(sW)}, 1
    s_lshr_b32 {s(d3)}, {s(sW)}, 1
    s_mul_i32 {s(d3)}, {s(d3)}, 7
    s_lshl_b32 {s(d0)}, s46, 2
    s_add_u32 {s(d0)}, {s(d0)}, {s(d3)}
    s_add_u32 {s(d3)}, {s(d3)}, 3
    s_sub_u32 {s(sPAR)}, 0, s46
    s_mov_b32 {s(sPAR+1)}, {s(sPAR)}
    ''')

WV, WS_ = 176, 120
def wtile(t, j):
    if t == 6: return v(WS_ + 4 * j, 4)
    k = (t * 14 + j) * 4
    return a_(k, 4) if k < 256 else v(WV + k - 256, 4)
def wmov(t, j, r):
    k = (t * 14 + j) * 4 + r
    return ('v_accvgpr_write_b32', a_(k)) if k < 256 else ('v_mov_b32', v(WV + k - 256))

def load_head(A, mat):
    p0p3(A, 40, 41)
    A.I(f'''
    s_mul_i32 s42, {s(sH)}, {MF_HEAD}
    s_mul_i32 s43, s40, {14*2048}
    s_add_u32 s43, s43, s42
    s_mul_i32 s44, s41, {14*2048}
    s_add_u32 s44, s44, s42
    ''')
    addp(A, sA, sWS, MF_OFF + mat * MF_MAT); addps(A, sB_, sA, 44); addps(A, sA, sA, 43)
    vm = Cnt(A, 'vmcnt', 63)
    ST, N = 32, 11
    blocks = [(L, j) for L in range(4) for j in range(14)]
    def issue(i):
        L, j = blocks[i]; r = ST + 8 * (i % N); base = sA if L < 3 else sB_
        o = (j & 1) * 2048
        A.I(f'global_load_dwordx4 {v(r,4)}, v3, {s(base,2)} offset:{o} sc1'); vm.add(i)
        A.I(f'global_load_dwordx4 {v(r+4,4)}, v3, {s(base,2)} offset:{o+1024} sc1'); vm.add(i)
        if j & 1: addp(A, base, base, 4096)
    for i in range(N): issue(i)
    for i, (L, j) in enumerate(blocks):
        vm.wait(i); r = ST + 8 * (i % N)
        if L < 3:
            for k in range(8):
                op, d = wmov(2 * L + (k & 1), j, k >> 1); A.I(f'{op} {d}, {v(r+k)}')
        else:
            for k in range(4): A.I(f'v_cndmask_b32 {v(WS_+4*j+k)}, {v(r+2*k)}, {v(r+2*k+1)}, {s(sPAR,2)}')
        if i + N < len(blocks): issue(i + N)

sXO = 80
def xdma(A, ptr, vXS):
    for k in range(7):
        addps(A, 40, ptr, sXO + k)
        A.I(f's_add_u32 m0, {s(sLB)}, {k*1024}')
        A.I(f'global_load_lds_dwordx4 {v(vXS)}, s[40:41]')
    addp(A, ptr, ptr, 4 * XI_SEG)

def xsetup(A, ptr, vXS, vXR, t):
    A.I(f'''
    s_mul_i32 {s(sLB)}, {s(sW)}, 7168
    s_mul_i32 s40, {s(sREP)}, {XI_SEG}
    s_mov_b32 {s(sSEG)}, {s(sREP)}
    v_lshrrev_b32 {v(t)}, 2, v0
    v_mul_u32_u24 {v(t)}, 896, {v(t)}
    v_lshrrev_b32 {v(t+1)}, 5, v0
    v_lshlrev_b32 {v(t+1)}, 1, {v(t+1)}
    v_and_b32 {v(vXS)}, 3, v0
    v_xor_b32 {v(t+1)}, {v(t+1)}, {v(vXS)}
    v_lshl_add_u32 {v(vXS)}, {v(t+1)}, 4, {v(t)}
    v_lshrrev_b32 {v(t)}, 3, v1
    v_lshlrev_b32 {v(t)}, 1, {v(t)}
    v_xor_b32 {v(t)}, {v(t)}, v2
    v_lshl_add_u32 {v(t)}, v1, 2, {v(t)}
    v_lshlrev_b32 {v(vXR)}, 4, {v(t)}
    ''')
    addps(A, ptr, ptr, 40)
    for k in range(7):
        A.I(f'''
        s_mul_i32 s40, {s(sW)}, 7
        s_add_u32 s40, s40, {k}
        s_and_b32 s41, s40, 1
        s_mul_i32 s41, s41, 14336
        s_lshr_b32 s40, s40, 1
        s_lshl_b32 s40, s40, 6
        s_add_u32 {s(sXO+k)}, s40, s41
        ''')

def gemm(A, ntile, wt, acc, ring, vX, offs, wfirst, extra=None):
    lg = Cnt(A, 'lgkmcnt', 15)
    def rd(j, tt):
        A.I(f'ds_read_b128 {v(ring + 8*(j%3) + 4*tt, 4)}, {v(vX[tt])} offset:{j*2048 + offs[tt]}'); lg.add((j, tt))
    for j in range(2): rd(j, 0); rd(j, 1)
    n = 0
    for j in range(14):
        for tt in range(2):
            lg.wait((j, tt))
            x = v(ring + 8*(j%3) + 4*tt, 4)
            for t in range(ntile):
                d = v(acc + 8*t + 4*tt, 4)
                a, b = (wt(t, j), x) if wfirst else (x, wt(t, j))
                A.I(f'v_mfma_f32_16x16x32_bf16 {d}, {a}, {b}, {d if j else 0}')
                if t == 0 and j + 2 < 14: rd(j + 2, tt)
                if extra: extra(n)
                n += 1

def flag_store(A, ptr, vOne, vZero):
    flag_store.n += 1
    A.I(f's_cmp_lg_u32 {s(sW)}, 0\n s_cbranch_scc1 L_fs{flag_store.n}\n global_store_dword {v(vZero)}, {v(vOne)}, {s(ptr,2)} sc1\nL_fs{flag_store.n}:')
flag_store.n = 0

def mem_fetch(A, tag, ptr, vG, D, lds):
    if LIGHT:
        A.I(f'''
        s_cmp_lg_u32 {s(sW)}, 0
        s_cbranch_scc1 L_{tag}_mh
        v_mov_b32 {v(D)}, {LINE}
L_{tag}_ml:
        global_load_dword {v(D+1)}, {v(D)}, {s(ptr,2)} sc1
        ''')
        budget(A)
        A.I(f'''
        s_waitcnt vmcnt(0)
        v_cmp_eq_u32 vcc, {s(sSENT)}, {v(D+1)}
        s_cbranch_vccz L_{tag}_mh
        s_sleep {TS}
        s_branch L_{tag}_ml
L_{tag}_mh:
        s_barrier
        ''')
    A.I(f'''
L_{tag}_mf:
    global_load_dwordx4 {v(D,4)}, {v(vG)}, {s(ptr,2)} sc1
    global_load_dwordx4 {v(D+4,4)}, {v(vG+1)}, {s(ptr,2)} sc1
    ''')
    budget(A)
    A.I(f'''
    s_waitcnt vmcnt(0)
    v_max3_u32 {v(D+8)}, {v(D)}, {v(D+1)}, {v(D+2)}
    v_max3_u32 {v(D+8)}, {v(D+8)}, {v(D+3)}, {v(D+4)}
    v_max3_u32 {v(D+8)}, {v(D+8)}, {v(D+5)}, {v(D+6)}
    v_max_u32 {v(D+8)}, {v(D+8)}, {v(D+7)}
    v_cmp_eq_u32 vcc, {s(sSENT)}, {v(D+8)}
    s_cbranch_vccz L_{tag}_mg
    s_sleep {TS if not LIGHT else 1}
    s_branch L_{tag}_mf
L_{tag}_mg:
    ds_write_b128 {v(vG)}, {v(D,4)} offset:{lds}
    ds_write_b128 {v(vG+1)}, {v(D+4,4)} offset:{lds}
    s_waitcnt lgkmcnt(0)
    s_barrier
    ''')

def mem_fetch_setup(A, vG):
    A.I(f'''
    s_mul_i32 s40, {s(sW)}, 1792
    v_add_u32 {v(vG)}, s40, v3
    v_min_u32 {v(vG+1)}, 47, v0
    v_lshlrev_b32 {v(vG+1)}, 4, {v(vG+1)}
    v_add3_u32 {v(vG+1)}, {v(vG+1)}, s40, s40
    v_subrev_u32 {v(vG+1)}, s40, {v(vG+1)}
    v_add_u32 {v(vG+1)}, 1024, {v(vG+1)}
    ''')

def tokv(A):
    ACC, RING, O = 64, 32, 8
    vX, vXc, vOne, vZero, vG, vMA, vWT, vXS = 4, 5, 6, 7, 56, 58, 59, 60
    L_MEM = 57344
    sX, sVO, sVS, sFL, sMT = sF, sB_, sC_, sD, sE
    A.label('L_tokv')
    wave_setup(A)
    A.I(f's_load_dwordx2 {s(sX,2)}, s[0:1], {KA_X}\n s_waitcnt lgkmcnt(0)')
    xsetup(A, sX, vX, vXc, 8); xdma(A, sX, vX)
    wait_tiles(A, 'tv', 8, 1, 'head', sH, 1)
    load_head(A, 1)
    A.I(f'v_mov_b32 {v(vXS)}, {v(vX)}')
    tl(A, 1, 1, 8)
    p0p3(A, 40, 41)
    A.I(f'''
    s_mul_i32 s42, {s(sREP)}, {14*VX_SC}
    s_lshl_b32 s43, {s(sH)}, 11
    s_add_u32 s42, s42, s43
    s_lshl_b32 s43, s40, 15
    s_add_u32 s43, s43, s42
    s_lshl_b32 s44, s41, 15
    s_add_u32 s44, s44, s42
    s_and_b32 s45, {s(sW)}, 1
    s_lshl_b32 s45, s45, 10
    s_add_u32 s44, s44, s45
    v_lshrrev_b32 v8, 3, v1
    v_lshlrev_b32 v8, 10, v8
    v_and_b32 v9, 7, v0
    v_lshl_add_u32 v8, v9, 6, v8
    v_lshl_add_u32 {v(vX)}, v2, 4, v8
    v_xor_b32 v9, 2, v2
    v_lshl_add_u32 {v(vXc)}, v9, 4, v8
    v_mov_b32 {v(vOne)}, 1
    v_mov_b32 {v(vZero)}, 0
    ''')
    addp(A, sVO, sWS, VX_OFF); addps(A, sVS, sVO, 44); addps(A, sVO, sVO, 43)
    A.I(f's_lshl_b32 s42, {s(sREP)}, 8\n s_lshl_b32 s43, {s(sH)}, 2\n s_add_u32 s42, s42, s43')
    addp(A, sFL, sWS, FL_OFF); addps(A, sFL, sFL, 42)
    A.label('L_tv_item')
    A.I(f'''
    s_waitcnt vmcnt(0)
    s_barrier
    s_cmp_lt_u32 {s(sSEG)}, 4
    s_cbranch_scc1 L_tv_nofl
    ''')
    flag_store(A, sFL, vOne, vZero); addp(A, sFL, sFL, 1024)
    A.label('L_tv_nofl')
    A.I(f'''
    s_cmp_ge_u32 {s(sSEG)}, 64
    s_cbranch_scc1 L_tv_w
    s_xor_b32 {s(sLB)}, {s(sLB)}, 0x8000
    s_cmp_ge_u32 {s(sSEG)}, 60
    s_cbranch_scc1 L_tv_nox
    ''')
    xdma(A, sX, vXS)
    A.label('L_tv_nox')
    gemm(A, 7, wtile, ACC, RING, [vX, vXc], [0, 512], False)
    A.I(f'v_xor_b32 {v(vXc)}, 0x8000, {v(vXc)}\n v_xor_b32 {v(vX)}, 0x8000, {v(vX)}')
    for t in range(7):
        o = O + 4 * (t % 4)
        for k in range(2):
            for tt in range(2):
                A.I(f'v_cvt_pk_bf16_f32 {v(o+2*k+tt)}, {v(ACC+8*t+4*tt+2*k)}, {v(ACC+8*t+4*tt+2*k+1)}')
        if t < 6:
            if t == 2: addp(A, 40, sVO, 32768)
            if t == 4: addp(A, 40, 40, 32768)
            A.I(f'global_store_dwordx4 v3, {v(o,4)}, {s(sVO if t < 2 else 40,2)} offset:{(t&1)*1024} sc1')
        else: A.I(f'global_store_dwordx4 v3, {v(o,4)}, {s(sVS,2)} sc1')
    addp(A, sVO, sVO, 4 * 14 * VX_SC); addp(A, sVS, sVS, 4 * 14 * VX_SC)
    A.I(f's_add_u32 {s(sSEG)}, {s(sSEG)}, 4\n s_branch L_tv_item')
    A.label('L_tv_w')
    tl(A, 1, 3, 8)
    wait_tiles(A, 'tw', 8, 1, 'all')
    mem_fetch_setup(A, vG)
    p0p3(A, 40, 41)
    A.I(f'''
    s_mov_b32 {s(sSEG)}, {s(sREP)}
    v_lshrrev_b32 v8, 1, v2
    v_lshlrev_b32 v8, 7, v8
    v_and_b32 v9, 7, v0
    v_lshl_add_u32 v8, v9, 4, v8
    v_and_b32 v9, 1, v2
    v_lshl_add_u32 v8, v9, 3, v8
    v_add_u32 {v(vMA)}, {L_MEM}, v8
    s_and_b32 s42, {s(sH)}, 3
    s_lshl_b32 s42, s42, 8
    v_lshl_add_u32 v8, v1, 4, s42
    v_lshl_add_u32 {v(vWT)}, v9, 3, v8
    s_mul_i32 s42, {s(sREP)}, {WT_SEG}
    s_lshr_b32 s43, {s(sH)}, 2
    s_mul_i32 s43, s43, {28*1024}
    s_add_u32 s42, s42, s43
    s_lshl_b32 s43, s40, 11
    s_add_u32 s43, s43, s42
    s_lshl_b32 s44, s41, 11
    s_add_u32 s44, s44, s42
    s_and_b32 s45, {s(sW)}, 1
    s_lshl_b32 s45, s45, 10
    s_add_u32 s44, s44, s45
    ''')
    addp(A, sVO, sWS, WT_OFF); addps(A, sVS, sVO, 44); addps(A, sVO, sVO, 43)
    A.I(f's_lshl_b32 s42, {s(sREP)}, 8\n s_lshl_b32 s43, {s(sH)}, 2\n s_add_u32 s42, s42, s43')
    addp(A, sFL, sWS, FL_OFF + 128); addps(A, sFL, sFL, 42)
    A.I(f's_mul_i32 s42, {s(sREP)}, {MEMT_SLOT}')
    addp(A, sMT, sWS, MEMT_OFF); addps(A, sMT, sMT, 42)
    A.label('L_tw_item')
    mem_fetch(A, 'tw', sMT, vG, 8, L_MEM)
    tl(A, 1, 5, 8)
    lg = Cnt(A, 'lgkmcnt', 15)
    def rd(j):
        A.I(f'ds_read2_b64 {v(RING+4*(j%4),4)}, {v(vMA)} offset0:{(j%3)*64} offset1:{(j%3)*64+32}'); lg.add(j)
        if j % 3 == 2: A.I(f'v_add_u32 {v(vMA)}, 1536, {v(vMA)}')
    for j in range(3): rd(j)
    for j in range(14):
        lg.wait(j)
        for t in range(7):
            d = v(ACC + 4*t, 4)
            A.I(f'v_mfma_f32_16x16x32_bf16 {d}, {v(RING+4*(j%4),4)}, {wtile(t,j)}, {d if j else 0}')
            if t == 0 and j + 3 < 14: rd(j + 3)
    A.I(f'v_subrev_u32 {v(vMA)}, {4*1536}, {v(vMA)}')
    A.I('s_mov_b32 exec_hi, 0')
    for t in range(7):
        o = O + 2 * t
        for k in range(2): A.I(f'v_cvt_pk_bf16_f32 {v(o+k)}, {v(ACC+4*t+2*k)}, {v(ACC+4*t+2*k+1)}')
        if t == 4: addp(A, 40, sVO, 4096)
        if t < 6: A.I(f'global_store_dwordx2 {v(vWT)}, {v(o,2)}, {s(sVO if t < 4 else 40,2)} offset:{(t%4)*1024} sc1')
        else: A.I(f'global_store_dwordx2 {v(vWT)}, {v(o,2)}, {s(sVS,2)} sc1')
    A.I('s_mov_b64 exec, -1'); tl(A, 1, 6, 24); A.I('s_waitcnt vmcnt(0)\n s_barrier')
    flag_store(A, sFL, vOne, vZero)
    addp(A, sFL, sFL, 1024); addp(A, sMT, sMT, 4 * MEMT_SLOT); addp(A, sVO, sVO, 4 * WT_SEG); addp(A, sVS, sVS, 4 * WT_SEG)
    A.I(f's_add_u32 {s(sSEG)}, {s(sSEG)}, 4\n s_cmp_lt_u32 {s(sSEG)}, 64\n s_cbranch_scc1 L_tw_item'); tl(A, 1, 2, 8); A.I('s_endpgm')

def tokt(A):
    ACC, RING = 64, 32
    TB = 8
    vX, vXc, vOne, vZero, vG, vMB0, vMB1, vSW, vSR0, vSR1, vPX, vXI0, vXI1 = 4, 5, 6, 7, 56, 58, 59, 60, 61, 62, 63, 4, 1
    vXS = 2
    L_MEM, L_SB = 61440, 61440 + 8192
    SBW = 32 * 176
    sX, sPX, sFL, sMT = sA, sC_, sD, sE
    sK = 48
    sCC, sM5, sMK0 = 30, 32, 34
    A.label('L_tokt')
    wave_setup(A)
    gate(A, 'tu')
    wait_tiles(A, 'tt', 8, 0, 'head', sH, 8)
    load_head(A, 0)
    tl(A, 1, 1, 8)
    A.I(f's_load_dwordx2 {s(sX,2)}, s[0:1], {KA_X}\n s_waitcnt lgkmcnt(0)')
    xsetup(A, sX, 21, vXc, 8); xdma(A, sX, 21)
    mem_fetch_setup(A, vG)
    p0p3(A, 40, 41)
    A.I(f'''
    v_mov_b32 {v(vOne)}, 1
    v_mov_b32 {v(vZero)}, 0
    v_lshrrev_b32 v8, 3, v1
    v_xor_b32 v8, v8, v2
    v_and_b32 v8, 1, v8
    v_lshlrev_b32 v8, 5, v8
    v_lshl_add_u32 v8, v1, 6, v8
    v_lshrrev_b32 v9, 1, v2
    v_lshl_add_u32 v8, v9, 3, v8
    s_lshl_b32 s42, s40, 11
    v_add_u32 {v(vXI0)}, s42, v8
    s_lshl_b32 s42, s41, 11
    s_and_b32 s45, {s(sW)}, 1
    s_lshl_b32 s45, s45, 4
    s_add_u32 s42, s42, s45
    v_add_u32 v20, s42, v8
    v_and_b32 v9, 7, v0
    v_lshlrev_b32 v8, 7, v2
    v_lshl_add_u32 v8, v9, 4, v8
    s_lshr_b32 s45, s45, 1
    s_lshl_b32 s42, s40, 9
    s_add_u32 s42, s42, {L_MEM}
    v_add_u32 {v(vMB0)}, s42, v8
    s_lshl_b32 s42, s41, 9
    s_add_u32 s42, s42, s45
    s_add_u32 s42, s42, {L_MEM}
    v_add_u32 {v(vMB1)}, s42, v8
    s_mul_i32 s42, {s(sW)}, {SBW}
    s_add_u32 s42, s42, {L_SB}
    v_mul_u32_u24 v8, 176, v1
    v_lshl_add_u32 v8, v2, 4, v8
    v_add_u32 {v(vSW)}, s42, v8
    v_lshrrev_b32 v10, 3, v0
    v_lshl_add_u32 v10, {s(sW)}, 3, v10
    v_min_u32 v11, 4, v9
    v_subrev_u32 v11, 1, v11
    v_lshrrev_b32 v12, 1, v11
    v_and_b32 v13, 1, v11
    v_lshlrev_b32 v13, 2, v13
    v_lshl_add_u32 v13, v12, 4, v13
    v_lshlrev_b32 v14, 2, v13
    v_add_u32 v14, 32, v14
    v_add_u32 v15, 32, v14
    v_cmp_eq_u32 {s(sMK0,2)}, 0, v9
    v_cndmask_b32 v14, v14, 0, {s(sMK0,2)}
    v_cndmask_b32 v15, v15, 16, {s(sMK0,2)}
    v_mul_u32_u24 v8, 176, v10
    v_add_u32 v8, {L_SB}, v8
    v_add_u32 {v(vSR0)}, v8, v14
    v_add_u32 {v(vSR1)}, v8, v15
    v_mov_b32 {v(vXS)}, v21
    v_mov_b32 {v(vXI1)}, v20
    v_cmp_gt_u32 {s(sM5,2)}, 5, v9
    ''')
    for i in range(8):
        A.I(f'''
        v_add_u32 v8, {8*(i>>2) + (i&3)}, v13
        v_cmp_le_u32 vcc, v8, v10
        s_or_b64 vcc, vcc, {s(sMK0,2)}
        s_and_b64 {s(sK+2*i,2)}, vcc, {s(sM5,2)}
        ''')
    A.I(f'''
    s_and_b32 s42, {s(sH)}, 3
    v_mov_b32 v8, s42
    v_cndmask_b32 v12, v11, v8, {s(sMK0,2)}
    v_cndmask_b32 v8, v8, 4, {s(sMK0,2)}
    v_lshrrev_b32 v14, 4, v10
    v_lshl_add_u32 v8, v8, 1, v14
    v_lshlrev_b32 v8, 10, v8
    v_and_b32 v14, 15, v10
    v_lshl_add_u32 v14, v12, 4, v14
    v_lshl_add_u32 {v(vPX)}, v14, 4, v8
    s_mul_i32 s42, {s(sREP)}, {PX_SEG}
    s_lshr_b32 s43, {s(sH)}, 2
    s_mul_i32 s43, s43, 10240
    s_add_u32 s42, s42, s43
    ''')
    addp(A, sPX, sWS, PX_OFF); addps(A, sPX, sPX, 42)
    A.I(f's_lshl_b32 s42, {s(sREP)}, 8\n s_lshl_b32 s43, {s(sH)}, 2\n s_add_u32 s42, s42, s43')
    addp(A, sFL, sWS, FL_OFF + 64); addps(A, sFL, sFL, 42)
    A.I(f's_mul_i32 s42, {s(sREP)}, {MEMT_SLOT}'); addp(A, sMT, sWS, MEMT_OFF); addps(A, sMT, sMT, 42)
    A.label('L_tt_item')
    A.I(f'''
    s_waitcnt vmcnt(0)
    s_barrier
    s_xor_b32 {s(sLB)}, {s(sLB)}, 0x8000
    s_cmp_ge_u32 {s(sSEG)}, 60
    s_cbranch_scc1 L_tt_nox
    ''')
    xdma(A, sX, vXS)
    A.label('L_tt_nox')
    gemm(A, 7, wtile, ACC, RING, [vXc, vXc], [0, 1024], True)
    A.I(f'v_xor_b32 {v(vXc)}, 0x8000, {v(vXc)}')
    for tt in range(2):
        for t in range(7):
            for k in range(2):
                d = TB + 8*(t>>1) + 4*tt + 2*(t&1) + k if t < 6 else TB + 24 + 2*tt + k
                A.I(f'v_cvt_pk_bf16_f32 {v(d)}, {v(ACC+8*t+4*tt+2*k)}, {v(ACC+8*t+4*tt+2*k+1)}')
    XF, MB, SA = 64, 36, 96
    for L in range(3):
        for t in range(2): A.I(f'ds_read2_b64 {v(XF+8*L+4*t,4)}, {v(vXI0)} offset0:{t*128} offset1:{t*128+2}')
        A.I(f'v_add_u32 {v(vXI0)}, {2048 if L < 2 else -4096 & 0xffffffff}, {v(vXI0)}')
    for t in range(2): A.I(f'ds_read_b64 {v(XF+24+2*t,2)}, {v(vXI1)} offset:{t*1024}')
    A.I(f'v_xor_b32 {v(vXI0)}, 0x8000, {v(vXI0)}\n v_xor_b32 {v(vXI1)}, 0x8000, {v(vXI1)}\n s_waitcnt lgkmcnt(0)')
    def smm(a4, a2, tt, d):
        for L in range(3): A.I(f'v_mfma_f32_16x16x32_bf16 {v(d,4)}, {v(a4(L),4)}, {v(TB+8*L+4*tt,4)}, {v(d,4) if L else 0}')
        A.I(f'v_mfma_f32_16x16x16_bf16 {v(d,4)}, {v(a2,2)}, {v(TB+24+2*tt,2)}, {v(d,4)}')
    smm(lambda L: XF + 8*L, XF + 24, 0, SA); smm(lambda L: XF + 8*L, XF + 24, 1, SA + 4); smm(lambda L: XF + 8*L + 4, XF + 26, 1, SA + 8)
    mem_fetch(A, 'tt', sMT, vG, 64, L_MEM)
    tl(A, 1, 5, 64)
    for L in range(3): A.I(f'ds_read_b128 {v(MB+4*L,4)}, {v(vMB0)} offset:{L*512}')
    A.I(f'ds_read_b64 {v(MB+12,2)}, {v(vMB1)}\n s_waitcnt lgkmcnt(0)')
    smm(lambda L: MB + 4*L, MB + 12, 0, SA + 12); smm(lambda L: MB + 4*L, MB + 12, 1, SA + 16)
    A.I(f'''
    ds_write_b128 {v(vSW)}, {v(SA+12,4)}
    ds_write_b128 {v(vSW)}, {v(SA+16,4)} offset:{16*176}
    ds_write_b128 {v(vSW)}, {v(SA,4)} offset:32
    ds_write_b128 {v(vSW)}, {v(SA+4,4)} offset:{16*176+32}
    ds_write_b128 {v(vSW)}, {v(SA+8,4)} offset:{16*176+96}
    s_waitcnt lgkmcnt(0)
    s_barrier
    ''')
    Z, M = 64, 36
    for k in range(4):
        A.I(f'ds_read_b128 {v(Z+8*k,4)}, {v(vSR0)} offset:{k*SBW}\n ds_read_b128 {v(Z+8*k+4,4)}, {v(vSR1)} offset:{k*SBW}')
    A.I(f'v_mov_b32 {v(M+1)}, 0xff800000\n s_waitcnt lgkmcnt(0)')
    for a, b in ((0, 8), (16, 24), (0, 16)):
        for k in range(0, 8, 2): A.I(f'v_pk_add_f32 {v(Z+a+k,2)}, {v(Z+a+k,2)}, {v(Z+b+k,2)}')
    for i in range(8): A.I(f'v_cndmask_b32 {v(Z+i)}, {v(M+1)}, {v(Z+i)}, {s(sK+2*i,2)}')
    red = ['quad_perm:[1,0,3,2] row_mask:0xf bank_mask:0xf', 'quad_perm:[2,3,0,1] row_mask:0xf bank_mask:0xf', 'row_half_mirror row_mask:0xf bank_mask:0xf']
    A.I(f'''
    v_max3_f32 {v(M)}, {v(Z)}, {v(Z+1)}, {v(Z+2)}
    v_max3_f32 {v(M)}, {v(M)}, {v(Z+3)}, {v(Z+4)}
    v_max3_f32 {v(M)}, {v(M)}, {v(Z+5)}, {v(Z+6)}
    v_max_f32 {v(M)}, {v(M)}, {v(Z+7)}
    ''')
    for r in red: A.I(f'v_max_f32_dpp {v(M)}, {v(M)}, {v(M)} {r}')
    for i in range(8): A.I(f'v_sub_f32 {v(Z+i)}, {v(Z+i)}, {v(M)}')
    for i in range(8): A.I(f'v_exp_f32 {v(Z+i)}, {v(Z+i)}')
    A.I(f'''
    v_pk_add_f32 {v(M,2)}, {v(Z,2)}, {v(Z+2,2)}
    v_pk_add_f32 {v(M+2,2)}, {v(Z+4,2)}, {v(Z+6,2)}
    v_pk_add_f32 {v(M,2)}, {v(M,2)}, {v(M+2,2)}
    v_add_f32 {v(M)}, {v(M)}, {v(M+1)}
    ''')
    for r in red: A.I(f'v_add_f32_dpp {v(M)}, {v(M)}, {v(M)} {r}')
    A.I(f'v_rcp_f32 {v(M)}, {v(M)}')
    for i in range(8): A.I(f'v_mul_f32 {v(Z+i)}, {v(Z+i)}, {v(M)}')
    O = Z + 8
    A.I(f'''
    v_cvt_pk_bf16_f32 {v(O)}, {v(Z)}, {v(Z+1)}
    v_cvt_pk_bf16_f32 {v(O+4)}, {v(Z+2)}, {v(Z+3)}
    v_cvt_pk_bf16_f32 {v(O+5)}, {v(Z+4)}, {v(Z+5)}
    v_cvt_pk_bf16_f32 {v(O+3)}, {v(Z+6)}, {v(Z+7)}
    v_cndmask_b32 {v(O+1)}, {v(O+5)}, {v(O+4)}, {s(sMK0,2)}
    v_cndmask_b32 {v(O+2)}, {v(O+4)}, {v(O+5)}, {s(sMK0,2)}
    s_mov_b64 exec, {s(sM5,2)}
    global_store_dwordx4 {v(vPX)}, {v(O,4)}, {s(sPX,2)} sc1
    s_mov_b64 exec, -1
    ''')
    tl(A, 1, 6, 36)
    A.I('s_waitcnt vmcnt(0)\n s_barrier')
    flag_store(A, sFL, vOne, vZero)
    addp(A, sFL, sFL, 1024); addp(A, sMT, sMT, 4 * MEMT_SLOT); addp(A, sPX, sPX, 4 * PX_SEG)
    A.I(f's_add_u32 {s(sSEG)}, {s(sSEG)}, 4\n s_cmp_lt_u32 {s(sSEG)}, 64\n s_cbranch_scc1 L_tt_item'); tl(A, 1, 2, 8); A.I('s_endpgm')

def load_tr(A, ptr, stride, natural):
    vS = 8
    A.I(f'''
    s_mul_i32 s42, {s(sW)}, 28672
    v_lshrrev_b32 v10, 3, v0
    v_and_b32 v11, 7, v0
    {'v_bfe_u32 v12, v0, 4, 1' if natural else 'v_lshrrev_b32 v12, 4, v0'}
    v_lshlrev_b32 v12, 1, v12
    v_xor_b32 v11, v11, v12
    v_mul_u32_u24 v10, {stride}, v10
    v_lshl_add_u32 {v(vS)}, v11, 4, v10
    v_xor_b32 v11, {4 if natural else 0}, v11
    v_lshl_add_u32 {v(vS+1)}, v11, 4, v10
    v_bfe_u32 v10, v0, 2, 2
    v_lshl_add_u32 v11, v2, {3 if natural else 2}, v10
    v_lshlrev_b32 v11, 7, v11
    v_and_b32 v12, 1, v0
    v_lshl_add_u32 v11, v12, 3, v11
    v_add_u32 v11, s42, v11
    v_and_b32 v10, 2, v10
    v_and_b32 v12, 1, v2
    v_lshl_add_u32 v10, v12, 2, v10
    v_bfe_u32 v12, v0, 1, 1
    v_xor_b32 v10, v10, v12
    ''')
    for t in range(4):
        A.I(f'v_xor_b32 v12, {2*t}, v10\n v_lshl_add_u32 {v(13+t)}, v12, 4, v11')
    for half in range(2):
        for k in range(28):
            A.I(f's_add_u32 m0, s42, {k*1024}')
            A.I(f'global_load_lds_dwordx4 {v(vS+(k&1))}, {s(ptr,2)}')
            addp(A, ptr, ptr, 8 * stride)
        A.I('s_waitcnt vmcnt(0)')
        for jj in range(7):
            j = 7 * half + jj
            for t in range(4):
                for hi in range(2):
                    A.I(f'ds_read_b64_tr_b16 {a_((t*14+j)*4+2*hi,2)}, {v(13+t)} offset:{jj*4096 + hi*(512 if natural else 2048)}')
            A.I('s_waitcnt lgkmcnt(0)')

def at(t, j): return a_((t * 14 + j) * 4, 4)

def ffn1(A):
    ACC, RING = 64, 32
    vXc, vOne, vZero, vGT, vOG, vXS, GT = 5, 6, 7, 4, 56, 58, 120
    sX, sW1, sHO, sFL, sG = sA, sB_, sC_, sD, sE
    A.label('L_ffn1')
    A.I(f's_load_dwordx2 {s(sW1,2)}, s[0:1], {KA_W1}\n s_load_dwordx2 {s(sX,2)}, s[0:1], {KA_X}\n s_load_dwordx2 {s(sF,2)}, s[0:1], {KA_GW}')
    wave_setup(A)
    A.I(f's_lshl_b32 s40, {s(sH)}, 9\n s_lshl_b32 s41, {s(sW)}, 7\n s_add_u32 s40, s40, s41\n s_waitcnt lgkmcnt(0)')
    addps(A, sW1, sW1, 40)
    gate(A, 'f1')
    A.I('v_lshlrev_b32 v8, 4, v2')
    for j in range(14): A.I(f'global_load_dwordx4 {v(GT+4*j,4)}, v8, {s(sF,2)} offset:{64*j}')
    load_tr(A, sW1, 3584, True)
    tl(A, 1, 1, 8)
    A.I('s_barrier')
    xsetup(A, sX, vXS, vXc, 8); xdma(A, sX, vXS)
    A.I(f'''
    v_mov_b32 {v(vOne)}, 1
    v_mov_b32 {v(vZero)}, 0
    v_lshlrev_b32 {v(vGT)}, 2, v1
    s_mul_i32 s42, {s(sREP)}, {HI_SEG}
    s_lshl_b32 s43, {s(sH)}, 14
    s_add_u32 s42, s42, s43
    s_lshl_b32 s43, {s(sW)}, 12
    s_add_u32 s42, s42, s43
    ''')
    addp(A, sHO, sWS, HI_OFF); addps(A, sHO, sHO, 42)
    A.I(f's_lshl_b32 s42, {s(sREP)}, 8\n s_lshl_b32 s43, {s(sH)}, 2\n s_add_u32 s42, s42, s43')
    addp(A, sFL, sWS, FL_OFF + 192); addps(A, sFL, sFL, 42)
    A.I(f's_lshl_b32 s42, {s(sREP)}, 7'); addp(A, sG, sWS, G_OFF); addps(A, sG, sG, 42)
    A.label('L_f1_item')
    A.I(f'''
    s_waitcnt vmcnt(0)
    s_barrier
    s_cmp_lt_u32 {s(sSEG)}, 4
    s_cbranch_scc1 L_f1_nofl
    ''')
    flag_store(A, sFL, vOne, vZero); addp(A, sFL, sFL, 1024)
    A.label('L_f1_nofl')
    A.I(f'''
    s_cmp_ge_u32 {s(sSEG)}, 64
    s_cbranch_scc1 L_f1_end
    s_xor_b32 {s(sLB)}, {s(sLB)}, 0x8000
    s_cmp_ge_u32 {s(sSEG)}, 60
    s_cbranch_scc1 L_f1_nox
    ''')
    xdma(A, sX, vXS)
    A.label('L_f1_nox')
    gemm(A, 5, lambda t, j: at(t, j) if t < 4 else v(GT + 4*j, 4), ACC, RING, [vXc, vXc], [0, 1024], True)
    A.I(f'v_xor_b32 {v(vXc)}, 0x8000, {v(vXc)}')
    for tt in range(2):
        A.I(f'''
        v_mul_f32 {v(vOG+tt)}, {f32(-1.4426950408889634)}, {v(ACC+32+4*tt)}
        v_exp_f32 {v(vOG+tt)}, {v(vOG+tt)}
        v_add_f32 {v(vOG+tt)}, 1.0, {v(vOG+tt)}
        v_rcp_f32 {v(vOG+tt)}, {v(vOG+tt)}
        ''')
    A.I(f'''
    s_or_b32 s40, {s(sH)}, {s(sW)}
    s_cbranch_scc1 L_f1_nog
    global_store_dword {v(vGT)}, {v(vOG)}, {s(sG,2)} sc1
    global_store_dword {v(vGT)}, {v(vOG+1)}, {s(sG,2)} offset:64 sc1
L_f1_nog:
    v_sub_f32 {v(vOG)}, 1.0, {v(vOG)}
    v_sub_f32 {v(vOG+1)}, 1.0, {v(vOG+1)}
    ''')
    E, O = 8, 16
    for p in range(2):
        for tt in range(2):
            regs = [ACC + 8*(2*p+y) + 4*tt + r for y in range(2) for r in range(4)]
            for i, r in enumerate(regs): A.I(f'v_mul_f32 {v(E+i)}, {f32(-1.4426950408889634)}, {v(r)}')
            for i in range(8): A.I(f'v_exp_f32 {v(E+i)}, {v(E+i)}')
            for i in range(8): A.I(f'v_add_f32 {v(E+i)}, 1.0, {v(E+i)}')
            for i in range(8): A.I(f'v_rcp_f32 {v(E+i)}, {v(E+i)}')
            for i, r in enumerate(regs): A.I(f'v_mul_f32 {v(r)}, {v(r)}, {v(vOG+tt)}')
            for i, r in enumerate(regs): A.I(f'v_mul_f32 {v(E+i)}, {v(E+i)}, {v(r)}')
            o = O + 4 * (2*p + tt)
            for k in range(4): A.I(f'v_cvt_pk_bf16_f32 {v(o+k)}, {v(E+2*k)}, {v(E+2*k+1)}')
            A.I(f'global_store_dwordx4 v3, {v(o,4)}, {s(sHO,2)} offset:{(2*p+tt)*1024} sc1')
    addp(A, sHO, sHO, 4 * HI_SEG); addp(A, sG, sG, 512)
    A.I(f's_add_u32 {s(sSEG)}, {s(sSEG)}, 4\n s_branch L_f1_item')
    A.label('L_f1_end'); tl(A, 1, 2, 8); A.I('s_endpgm')

def outs(A):
    ACC, VF, WF, PF, HR = 8, 40, 104, 120, 160
    NH = 8
    vF, vFA, vRW, vRR, vO, vV1, vGA, vG = 4, 5, 6, 7, 224, 225, 226, 228
    AC2 = HR
    RBW = 32 * 272
    sW2, sHI, sVX, sWT, sPX, sFL, sOUT, sG = sA, sB_, sC_, sD, sE, sF, 30, 32
    sMA, sMB = sM0, sM1
    A.label('L_outs')
    A.I(f's_load_dwordx2 {s(sW2,2)}, s[0:1], {KA_W2}\n s_load_dwordx2 {s(sOUT,2)}, s[0:1], {KA_OUT}')
    wave_setup(A)
    A.I(f's_mul_i32 s40, {s(sW)}, {448*896}\n s_lshl_b32 s41, {s(sH)}, 7\n s_add_u32 s40, s40, s41\n s_waitcnt lgkmcnt(0)')
    addps(A, sW2, sW2, 40)
    gate(A, 'ou')
    load_tr(A, sW2, 896, False)
    tl(A, 1, 1, 8)
    A.I(f'''
    s_barrier
    v_lshlrev_b32 {v(vGA)}, 2, v1
    s_mov_b32 {s(sSEG)}, {s(sREP)}
    v_lshlrev_b32 {v(vFA)}, 2, v0
    v_add_u32 {v(vV1)}, 4096, v3
    s_mov_b32 {s(sMA)}, 0x0000ffff
    s_mov_b32 {s(sMA+1)}, 0x007f0000
    s_mov_b32 {s(sMB)}, 0xffff0000
    s_mov_b32 {s(sMB+1)}, 0x0000ffff
    s_mul_i32 s42, {s(sW)}, {RBW}
    v_mul_u32_u24 {v(vRW)}, 272, v1
    v_lshl_add_u32 {v(vRW)}, v2, 4, {v(vRW)}
    v_add_u32 {v(vRW)}, s42, {v(vRW)}
    v_lshrrev_b32 v10, 3, v0
    v_lshl_add_u32 v10, {s(sW)}, 3, v10
    v_and_b32 v11, 7, v0
    v_mul_u32_u24 {v(vRR)}, 272, v10
    v_lshl_add_u32 {v(vRR)}, v11, 5, {v(vRR)}
    v_mul_u32_u24 {v(vO)}, 896, v10
    v_lshl_add_u32 {v(vO)}, v11, 4, {v(vO)}
    s_mul_i32 s42, {s(sREP)}, {32*896}
    s_lshl_b32 s43, {s(sH)}, 7
    s_add_u32 s42, s42, s43
    ''')
    addps(A, sOUT, sOUT, 42)
    A.I(f's_mul_i32 s42, {s(sREP)}, {HI_SEG}\n s_mul_i32 s43, {s(sW)}, 28672\n s_add_u32 s42, s42, s43')
    addp(A, sHI, sWS, HI_OFF); addps(A, sHI, sHI, 42)
    A.I(f's_mul_i32 s42, {s(sREP)}, {14*VX_SC}\n s_lshl_b32 s43, {s(sH)}, 16\n s_add_u32 s42, s42, s43\n s_lshl_b32 s43, {s(sW)}, 13\n s_add_u32 s42, s42, s43')
    addp(A, sVX, sWS, VX_OFF); addps(A, sVX, sVX, 42)
    A.I(f's_mul_i32 s42, {s(sREP)}, {WT_SEG}\n s_mul_i32 s43, {s(sW)}, 28672\n s_add_u32 s42, s42, s43\n s_lshl_b32 s43, {s(sH)}, 12\n s_add_u32 s42, s42, s43')
    addp(A, sWT, sWS, WT_OFF); addps(A, sWT, sWT, 42)
    A.I(f's_mul_i32 s42, {s(sREP)}, {PX_SEG}\n s_mul_i32 s43, {s(sW)}, 10240\n s_add_u32 s42, s42, s43')
    addp(A, sPX, sWS, PX_OFF); addps(A, sPX, sPX, 42)
    A.I(f's_lshl_b32 s42, {s(sREP)}, 8'); addp(A, sFL, sWS, FL_OFF); addps(A, sFL, sFL, 42)
    A.I(f's_lshl_b32 s42, {s(sREP)}, 7'); addp(A, sG, sWS, G_OFF); addps(A, sG, sG, 42)
    def wait_flags(tag, mask):
        if LIGHT: A.I(f's_cmp_lg_u32 {s(sW)}, 0\n s_cbranch_scc1 L_{tag}_ok')
        A.I(f'''
L_{tag}:
        global_load_dword {v(vF)}, {v(vFA)}, {s(sFL,2)} sc1
        ''')
        budget(A)
        A.I(f'''
        s_waitcnt vmcnt(0)
        v_cmp_eq_u32 vcc, 0, {v(vF)}
        s_and_b64 vcc, vcc, {s(mask,2)}
        s_cbranch_vccz L_{tag}_ok
        s_sleep {TS}
        s_branch L_{tag}
L_{tag}_ok:
        ''')
        if LIGHT: A.I('s_waitcnt vmcnt(0)\n s_barrier')
    A.label('L_ou_item')
    wait_flags('ou_f1', sMA)
    vm = Cnt(A, 'vmcnt', 63)
    A.I(f'global_load_dword {v(vG)}, {v(vGA)}, {s(sG,2)} sc1\n global_load_dword {v(vG+1)}, {v(vGA)}, {s(sG,2)} offset:64 sc1')
    A.I(f's_mov_b64 s[40:41], {s(sHI,2)}')
    def hload(i):
        A.I(f'global_load_dwordx4 {v(HR+4*(i%(2*NH)),4)}, v3, s[40:41] offset:{(i%4)*1024} sc1'); vm.add(('h', i))
        if i % 4 == 3: addp(A, 40, 40, 4096)
    for i in range(2 * NH): hload(i)
    addp(A, 42, sVX, 32768)
    vl = [(hh, ct) for hh in range(4) for ct in range(4)]
    def vload(n):
        hh, ct = vl[n]
        A.I(f'global_load_dwordx4 {v(VF+16*hh+4*ct,4)}, {v(3 if hh < 2 else vV1)}, {s(sVX if ct < 2 else 42,2)} offset:{(hh&1)*2048+(ct&1)*1024} sc1'); vm.add(('v', n))
    for j in range(14):
        for tt in range(2):
            i = 2*j + tt
            vm.wait(('h', i))
            for ct in range(4):
                d = v(ACC + 8*ct + 4*tt, 4)
                A.I(f'v_mfma_f32_16x16x32_bf16 {d}, {at(ct,j)}, {v(HR+4*(i%(2*NH)),4)}, {d if j else 0}')
            if i + 2 * NH < 28: hload(i + 2 * NH)
            elif i - 12 < 16: vload(i - 12)
    wait_flags('ou_f2', sMB)
    tl(A, 1, 5, 230)
    vm.clear()
    addp(A, 40, sPX, 4096); addp(A, 42, sPX, 8192)
    for i in range(10):
        A.I(f'global_load_dwordx4 {v(PF+4*i,4)}, v3, {s([sPX,40,42][i>>2],2)} offset:{(i%4)*1024} sc1'); vm.add(('p', i))
        if i == 3:
            for ct in range(4):
                A.I(f'global_load_dwordx4 {v(WF+4*ct,4)}, v3, {s(sWT,2)} offset:{ct*1024} sc1'); vm.add(('w', ct))
    for k in range(5):
        for tt in range(2):
            vm.wait(('p', 2*k + tt))
            for ct in range(4):
                d = v(AC2 + 8*ct + 4*tt, 4)
                a = v(VF + 16*k + 4*ct, 4) if k < 4 else v(WF + 4*ct, 4)
                A.I(f'v_mfma_f32_16x16x32_bf16 {d}, {a}, {v(PF+8*k+4*tt,4)}, {d if k else 0}')
    tl(A, 1, 6, 230)
    A.I('s_barrier')
    for tt in range(2):
        for ct in range(4):
            for r in range(4): A.I(f'v_fmac_f32 {v(ACC+8*ct+4*tt+r)}, {v(vG+tt)}, {v(AC2+8*ct+4*tt+r)}')
            A.I(f'ds_write_b128 {v(vRW)}, {v(ACC+8*ct+4*tt,4)} offset:{tt*16*272 + ct*64}')
    A.I('s_waitcnt lgkmcnt(0)\n s_barrier')
    Z = VF
    for k in range(4):
        A.I(f'ds_read_b128 {v(Z+8*k,4)}, {v(vRR)} offset:{k*RBW}\n ds_read_b128 {v(Z+8*k+4,4)}, {v(vRR)} offset:{k*RBW+16}')
    A.I('s_waitcnt lgkmcnt(0)')
    for a, b in ((0, 8), (16, 24), (0, 16)):
        for k in range(0, 8, 2): A.I(f'v_pk_add_f32 {v(Z+a+k,2)}, {v(Z+a+k,2)}, {v(Z+b+k,2)}')
    for k in range(4): A.I(f'v_cvt_pk_bf16_f32 {v(Z+8+k)}, {v(Z+2*k)}, {v(Z+2*k+1)}')
    A.I(f'global_store_dwordx4 {v(vO)}, {v(Z+8,4)}, {s(sOUT,2)} {OST}')
    tl(A, 1, 7, 230)
    addp(A, sOUT, sOUT, 7 * 32 * 896); addp(A, sHI, sHI, 7 * HI_SEG); addp(A, sVX, sVX, 7 * 14 * VX_SC)
    addp(A, sWT, sWT, 7 * WT_SEG); addp(A, sPX, sPX, 7 * PX_SEG); addp(A, sFL, sFL, 7 * 256); addp(A, sG, sG, 7 * 128)
    A.I(f's_add_u32 {s(sSEG)}, {s(sSEG)}, 7\n s_cmp_lt_u32 {s(sSEG)}, 64\n s_cbranch_scc1 L_ou_item'); A.I('s_waitcnt vmcnt(0)'); tl(A, 1, 2, 8); A.I('s_endpgm')
```

```python
import sys
from common import *
import chain, tok, prep

NAME = 'gated_mix__memory_aug_recurrent_mem_tr__dense_activation_silu__prompt'

def main_kernel(prof=0, roles=('chain', 'tokv', 'tokt', 'ffn1', 'outs')):
    A = Asm(); TL['role'] = 'e'
    A.I(f'''
    s_cmp_ge_u32 s2, 256
    s_cbranch_scc1 L_bail
    s_load_dwordx2 s[8:9], s[0:1], {KA_WS}
    s_load_dwordx2 {s(prep.sDB,2)}, s[0:1], {KA_DBG}
    v_lshrrev_b32 v1, 6, v0
    v_and_b32 v0, 63, v0
    s_and_b32 s38, s2, 7
    s_lshr_b32 s3, s2, 3
    v_readfirstlane_b32 s4, v1
    v_and_b32 v1, 15, v0
    v_lshrrev_b32 v2, 4, v0
    s_waitcnt lgkmcnt(0)
    s_mov_b32 s70, s2
    ''')
    if chain.GX or chain.GE: A.I('s_memrealtime s[92:93]\n s_waitcnt lgkmcnt(0)')
    tl(A, 1, 0, 200)
    A.I(f'''
    s_mov_b32 s44, -1
    s_mov_b32 s45, -1
    s_mov_b32 s46, -1
    s_cmp_lg_u32 s38, 0
    s_cbranch_scc1 L_tok0
    s_cmp_lg_u32 s3, 30
    s_cbranch_scc1 L_noinit
    ''')
    TL['role'] = 'he'; prep.init_job(A); TL['role'] = 'e'
    A.label('L_noinit')
    if 'sc' not in chain.OPT: A.I('s_cmp_ge_u32 s3, 16\n s_cbranch_scc1 L_jobs\n s_add_u32 s45, s3, 208')
    else: A.I('s_cmp_lt_u32 s3, 16\n s_cbranch_scc1 L_score\n s_add_u32 s45, s3, 192')
    A.I(f'''
    s_branch L_jobs
L_bail:
    s_endpgm
L_tok0:
    s_sub_u32 s39, s38, 1
    s_lshl_b32 s44, s39, 5
    s_add_u32 s44, s44, s3
    s_mul_i32 s39, s39, 21
    s_max_u32 s40, s3, 11
    s_add_u32 s39, s39, s40
    s_sub_u32 s39, s39, 11
    s_min_u32 s40, s39, 128
    s_add_u32 s40, s40, 7
    s_lshr_b32 s40, s40, 3
    s_sub_u32 s45, s44, s40
    s_cmp_lt_u32 s3, 11
    s_cbranch_scc1 L_jobs
    s_cmp_ge_u32 s39, 128
    s_cbranch_scc1 L_jobs
    s_and_b32 s39, s39, 7
    s_cselect_b32 s45, s45, -1
    ''')
    A.label('L_jobs')
    prep.gemm_jobs(A, 44)
    A.I(f'''
    s_mov_b32 s40, s38
    s_cmp_lg_u32 s38, 0
    s_cbranch_scc1 L_tok
    s_cmp_lt_u32 s3, 16
    s_cbranch_scc1 L_score
    s_cmp_lt_u32 s3, 30
    s_cbranch_scc1 L_value
    s_cmp_eq_u32 s3, 30
    s_cbranch_scc1 L_helper
    {'s_branch L_fetch' if 'fetch' in chain.OPT else 's_branch L_spare'}
L_tok:
    s_sub_u32 s40, s40, 1
    s_cmp_ge_u32 s3, 7
    s_cbranch_scc1 L_tok1
    s_mov_b32 {s(tok.sREP)}, s40
    s_branch {'L_outs' if 'outs' in roles else 'L_bail'}
L_tok1:
    s_cmp_ge_u32 s3, 11
    s_cbranch_scc1 L_tok2
    s_sub_u32 {s(tok.sREP)}, s3, 7
    s_mov_b32 s3, s40
    s_branch {'L_ffn1' if 'ffn1' in roles else 'L_bail'}
L_tok2:
    s_mul_i32 s40, s40, 21
    s_add_u32 s40, s40, s3
    s_sub_u32 s40, s40, 11
    s_cmp_ge_u32 s40, 128
    s_cbranch_scc1 L_bail
    s_and_b32 {s(tok.sREP)}, s40, 3
    s_lshr_b32 s3, s40, 3
    s_bitcmp1_b32 s40, 2
    s_cbranch_scc1 {'L_tokt' if 'tokt' in roles else 'L_bail'}
    s_branch {'L_tokv' if 'tokv' in roles else 'L_bail'}
    ''')
    for r, f in (('sc', lambda A: chain.score(A, prof)), ('va', lambda A: chain.value(A, prof if 'sonly' not in chain.OPT else 0)), ('he', chain.helper), ('fe', chain.fetcher), ('sp', chain.spare), ('tv', tok.tokv), ('tt', tok.tokt), ('f1', tok.ffn1), ('ou', tok.outs)):
        TL['role'] = r; f(A)
    return A

KD = '''.section .rodata,"a"
.p2align 6
.amdhsa_kernel {name}
  .amdhsa_next_free_vgpr {nv}
  .amdhsa_next_free_sgpr 102
  .amdhsa_accum_offset 256
  .amdhsa_group_segment_fixed_size 0
  .amdhsa_kernarg_size 112
  .amdhsa_user_sgpr_count 2
  .amdhsa_user_sgpr_kernarg_segment_ptr 1
  .amdhsa_system_sgpr_workgroup_id_x 1
  .amdhsa_float_denorm_mode_32 3
.end_amdhsa_kernel
'''
def full(prof=0, **kw):
    n = NAME + '_kernel'
    out = [HEADER, '; @launch grid=(256,1,1) block=(256,1,1) lds=163840',
           '.amdgcn_target "amdgcn-amd-amdhsa--gfx950"', '.text',
           f'.globl {n}', '.p2align 8', f'.type {n},@function', f'{n}:', main_kernel(prof, **kw).text(), KD.format(name=n, nv=512)]
    return '\n'.join(out)

HEADER = '''; Kernarg layout for this problem (112 bytes, ptrs only, base s[0:1]):
; second phase: memory recurrence (16 score + 14 value + 1 relay workgroups) and the token side (x B, x A + softmax, FFN, mix)'''

if __name__ == '__main__':
    args = sys.argv[1:]
    outn = 'cdna_kernels/' + NAME + '.s'
    for o in args:
        if o == 'dbg': TL['dbg'] = 1
        elif o.startswith('out='): outn = o[4:]
        elif '=' in o:
            k_, val = o.split('=')
            for mod in (chain, tok, prep):
                if hasattr(mod, k_): setattr(mod, k_, int(val) if val.lstrip('-').isdigit() else val)
        else: chain.OPT.add(o)
    open(outn, 'w').write(full())
```

```python
from common import *
import prep
from prep import wait_tiles, sDB, DB_XCC

NSTEP = 63
CLK = 's_memrealtime'
OPT = {'poisT', 'mtouch', 'mtdirect'}
HSLEEP = 2
LIM = 60
XD = 0
VE = 4
GX = 0
GE = 0
AGE = 99
L3P = ''
PD = 3
FA, FB, FC, FD = 5, 3, 4, 3
PFL = 16
PFA = 2
NRES = 4
HD = 4
sROLE, sW, sSTEP, sBUD, sSENT = 3, 4, 5, 6, 7
sWS, sX0, sX1, sMEM, sP, sVX, sMT, sWT = 8, 10, 12, 14, 16, 18, 20, 24
sTMP, sTMP2 = 27, 28
sM20, sMHI, sMG = 30, 32, 34
sLB, sXB, sM48 = 36, 37, 38
sDBG = 44
sXCC, sEA, sEB, sFL = 75, 64, 66, 68
BUDGET = 1 << 21

def bud(A):
    A.I(f's_add_u32 {s(sBUD)}, {s(sBUD)}, 1\n s_cmp_gt_u32 {s(sBUD)}, {BUDGET}\n s_cbranch_scc1 L_bail')

def chain_common(A):
    A.I(f'''
    s_mov_b32 {s(sSTEP)}, 0
    s_mov_b32 {s(sBUD)}, 0
    s_mov_b32 {s(sSENT)}, {SENT}
    s_mov_b32 s90, 0
    ''')

def xcc_publish(A, role, t):
    A.I(f'''
    s_getreg_b32 {s(sXCC)}, hwreg(HW_REG_XCC_ID, 0, 4)
    s_add_u32 {s(sXCC)}, {s(sXCC)}, 1
    v_mov_b32 {v(t)}, {s(role)}
    v_mov_b32 {v(t+1)}, {s(sXCC)}
    s_waitcnt vmcnt(0)
    s_barrier
    global_store_byte {v(t)}, {v(t+1)}, {s(sDB,2)} offset:{DB_XCC} sc1
    ''')

def xcc_check(A, tag, mlo, mhi, t):
    A.I(f'''
    v_min_u32 {v(t)}, {31 if 'fetch' in OPT else 30}, v0
L_{tag}_xc:
    global_load_ubyte {v(t+1)}, {v(t)}, {s(sDB,2)} offset:{DB_XCC} sc1
    ''')
    bud(A)
    A.I(f'''
    s_waitcnt vmcnt(0)
    v_cmp_eq_u32 vcc, 0, {v(t+1)}
    s_cbranch_vccnz L_{tag}_xc
    v_cmp_ne_u32 vcc, {s(sXCC)}, {v(t+1)}
    s_mov_b32 s40, {mlo}
    s_mov_b32 s41, {mhi}
    s_cmp_eq_u64 vcc, {0 if 'slow' not in OPT else -1}
    s_cselect_b64 {s(sEA,2)}, s[40:41], 0
    s_cselect_b64 {s(sEB,2)}, 0, s[40:41]
    ''')

def store2(A, ins):
    A.I(f'''
    s_mov_b64 exec, {s(sEA,2)}
    {ins}
    s_mov_b64 exec, {s(sEB,2)}
    {ins} sc1
    ''')

def mem_poll(A, tag, vG0, vPR, vD):
    A.I(f'''
L_{tag}_mp:
    s_mov_b32 m0, {s(sLB)}
L_{tag}_mpl:
    global_load_dword {v(vD)}, {v(vPR)}, {s(sMEM,2)} sc1
    global_load_lds_dwordx4 {v(vG0)}, {s(sMEM,2)} sc1
    s_mov_b64 exec, {s(sM48,2)}
    global_load_lds_dwordx4 {v(vG0)}, {s(sMEM,2)} offset:1024 sc1
    s_mov_b64 exec, -1
    ''')
    bud(A)
    A.I(f'''
    s_waitcnt vmcnt(2)
    v_cmp_eq_u32 vcc, {s(sSENT)}, {v(vD)}
    s_cbranch_vccnz L_{tag}_mpl
    s_waitcnt vmcnt(0) lgkmcnt(0)
    s_barrier
    ''')

def mem_poll_half(A, tag, vG0, vPR, vD):
    A.I(f'''
L_{tag}_mp:
    s_cmp_ge_u32 {s(sW)}, 2
    s_cbranch_scc1 L_{tag}_mpb
    s_mov_b32 m0, {s(sLB)}
L_{tag}_mpl:
    global_load_dword {v(vD)}, {v(vPR)}, {s(sMEM,2)} sc1
    global_load_lds_dwordx4 {v(vG0)}, {s(sMEM,2)} sc1
    global_load_lds_dwordx4 {v(vG0)}, {s(sMEM,2)} offset:1024 sc1
    global_load_lds_dwordx4 {v(vG0)}, {s(sMEM,2)} offset:2048 sc1
    s_mov_b32 exec_hi, 0
    global_load_lds_dwordx4 {v(vG0)}, {s(sMEM,2)} offset:3072 sc1
    s_mov_b64 exec, -1
    ''')
    bud(A)
    A.I(f'''
    s_waitcnt vmcnt(4)
    v_cmp_eq_u32 vcc, {s(sSENT)}, {v(vD)}
    s_cbranch_vccnz L_{tag}_mpl
    s_waitcnt vmcnt(0)
L_{tag}_mpb:
    s_waitcnt lgkmcnt(0)
    s_barrier
    ''')

def mem_poll_setup(A, vG0, vPR, t, half=False):
    A.I(f'''
    s_mul_i32 {s(sLB)}, {s(sW)}, {3584 if half else 1792}
    v_lshlrev_b32 {v(vG0)}, 4, v0
    v_add_u32 {v(vG0)}, {s(sLB)}, {v(vG0)}
    s_mov_b32 {s(sM48)}, -1
    s_mov_b32 {s(sM48+1)}, 0xffff
    v_min_u32 {v(t)}, {27 if half else 13}, v0
    v_lshlrev_b32 {v(t)}, 7, {v(t)}
    v_add3_u32 {v(vPR)}, {s(sLB)}, {v(t)}, 64
    ''')

def sreg(i): return 48 + 2 * i if i < 8 else 76 + 2 * (i - 8)

def stamp(A, idx, prof):
    if not prof: return
    A.I(f'{CLK} {s(sreg(idx), 2)}')

def stamp_flush(A, prof):
    if not prof: return
    A.I('s_waitcnt lgkmcnt(0)')
    for i in range(16): A.I(f'v_writelane_b32 v21, {s(sreg(i))}, {i}')
    A.I(f'''
    v_lshlrev_b32 v20, 2, v0
    s_mov_b64 exec, 0xffff
    global_store_dword v20, v21, {s(sDBG,2)}
    s_mov_b64 exec, -1
    ''')
    addp(A, sDBG, sDBG, 64)

def idx_setup(A, vIDX, T):
    A.I(f'''
    v_and_b32 {v(T)}, 15, v0
    v_lshrrev_b32 {v(T+1)}, 4, v0
    v_and_b32 {v(T+2)}, 7, v0
    v_mov_b32 {v(vIDX)}, 0x4444
    v_mov_b32 {v(T+3)}, 0xeeee
    v_cmp_lt_u32 vcc, 7, {v(T)}
    v_cndmask_b32 {v(vIDX)}, {v(vIDX)}, {v(T+3)}, vcc
    ''')

def score(A, prof=0):
    L_MEM, L_TB, L_SB, L_RW, L_XB = 0, 8192, 20480, 26624, 51200
    vIDX, vG0, vXB, vPR, vAF0, vAF1, vMB0, vMB1, vTW, vTR, vSW, vSR, vPS, vX0, vX1, vRW, vSM, vSN = range(1, 19)
    vCK = 19
    RING, XF, R, TOPC, TMP, SACC, TACC, WV = 20, 52, 84, 108, 112, 116, 128, 144
    MEMB, TOPA, TOPB = R, R + 16, R + 20
    import layout
    if L3P: layout.L3T[:] = [int(c, 16) for c in str(L3P)]
    seq = score_seq()
    def wreg(i):
        if i < 3: return v(R + 8 * i, 8)
        if i < 35: return a_(8 * (i - 3), 8)
        return v(WV + 8 * (i - 35), 8)
    lg = Cnt(A, 'lgkmcnt', 15)
    A.label('L_score')
    A.I(f's_load_dwordx2 {s(sX0,2)}, s[0:1], {KA_X}')
    chain_common(A)
    T = 20
    idx_setup(A, vIDX, T)
    mem_poll_setup(A, vG0, vPR, T + 4)
    A.I(f'''
    v_lshlrev_b32 {v(T+4)}, 7, {v(T+1)}
    v_lshl_add_u32 {v(T+4)}, {v(T+2)}, 4, {v(T+4)}
    s_and_b32 {s(sTMP)}, {s(sW)}, 1
    s_mul_i32 {s(sTMP2)}, {s(sTMP)}, {7*512}
    v_mov_b32 {v(vAF0)}, {v(T+4)}
    v_add_u32 {v(vAF1)}, {s(sTMP2)}, {v(T+4)}
    s_lshr_b32 {s(sTMP2)}, {s(sW)}, 1
    s_mul_i32 {s(sTMP2)}, {s(sTMP2)}, 7
    s_lshl_b32 {s(sTMP)}, {s(sTMP)}, 2
    s_add_u32 {s(sTMP)}, {s(sTMP)}, {s(sTMP2)}
    s_add_u32 {s(sTMP2)}, {s(sTMP2)}, 3
    s_lshl_b32 s40, {s(sTMP)}, 9
    s_lshl_b32 s41, {s(sTMP2)}, 9
    v_add_u32 {v(vMB0)}, s40, {v(T+4)}
    v_add_u32 {v(vMB1)}, s41, {v(T+4)}
    s_lshl_b32 s40, {s(sTMP)}, 6
    s_lshl_b32 s41, {s(sTMP2)}, 6
    v_lshrrev_b32 {v(T+4)}, 2, v0
    v_mul_u32_u24 {v(T+4)}, 896, {v(T+4)}
    v_lshrrev_b32 {v(T+5)}, 5, v0
    v_lshlrev_b32 {v(T+5)}, 1, {v(T+5)}
    v_and_b32 {v(T+6)}, 3, v0
    v_xor_b32 {v(T+5)}, {v(T+5)}, {v(T+6)}
    v_lshl_add_u32 {v(T+4)}, {v(T+5)}, 4, {v(T+4)}
    v_add_u32 {v(vX0)}, s40, {v(T+4)}
    v_add_u32 {v(vX1)}, s41, {v(T+4)}
    s_lshl_b32 {s(sXB)}, {s(sW)}, 13
    s_add_u32 {s(sXB)}, {s(sXB)}, {L_XB}
    v_lshrrev_b32 {v(T+4)}, 3, {v(T)}
    v_lshlrev_b32 {v(T+4)}, 1, {v(T+4)}
    v_xor_b32 {v(T+4)}, {v(T+4)}, {v(T+1)}
    v_lshl_add_u32 {v(T+4)}, {v(T)}, 2, {v(T+4)}
    v_lshl_add_u32 {v(vXB)}, {v(T+4)}, 4, {s(sXB)}
    s_mul_i32 s40, {s(sW)}, 3072
    s_add_u32 s40, s40, {L_TB}
    v_mul_u32_u24 {v(T+5)}, 192, {v(T+1)}
    v_lshl_add_u32 {v(T+5)}, {v(T)}, 3, {v(T+5)}
    v_add_u32 {v(vTW)}, s40, {v(T+5)}
    v_and_b32 {v(T+5)}, 1, v0
    v_mul_u32_u24 {v(T+5)}, 192, {v(T+5)}
    v_lshrrev_b32 {v(T+6)}, 2, v0
    v_lshl_add_u32 {v(T+5)}, {v(T+6)}, 3, {v(T+5)}
    v_add_u32 {v(vTR)}, s40, {v(T+5)}
    s_mul_i32 s40, {s(sW)}, 1408
    s_add_u32 s40, s40, {L_SB}
    v_mul_u32_u24 {v(T+5)}, 176, {v(T+2)}
    v_add_u32 {v(T+5)}, s40, {v(T+5)}
    v_mov_b32 {v(vCK)}, {v(T+5)}
    v_lshrrev_b32 {v(T+6)}, 3, {v(T)}
    v_and_b32 {v(T+7)}, 1, {v(T+1)}
    v_mul_u32_u24 {v(T+7)}, 704, {v(T+7)}
    v_lshrrev_b32 {v(T+8)}, 1, {v(T+1)}
    v_lshl_add_u32 {v(T+7)}, {v(T+8)}, 6, {v(T+7)}
    v_lshl_add_u32 {v(T+7)}, {v(T)}, 2, {v(T+7)}
    v_add3_u32 {v(vSW)}, s40, {v(T+7)}, 32
    v_and_b32 {v(T+7)}, 1, {v(T+1)}
    v_lshlrev_b32 {v(T+7)}, 4, {v(T+7)}
    v_lshrrev_b32 {v(T+8)}, 1, {v(T+1)}
    v_lshl_add_u32 {v(T+8)}, {v(T+8)}, 1, {v(T+6)}
    v_lshl_add_u32 {v(T+7)}, {v(T+8)}, 2, {v(T+7)}
    v_add_u32 {v(vSM)}, {v(T+5)}, {v(T+7)}
    v_lshrrev_b32 {v(T+5)}, 5, v0
    v_lshl_add_u32 {v(T+5)}, {s(sW)}, 1, {v(T+5)}
    v_and_b32 {v(T+6)}, 31, v0
    v_min_u32 {v(T+6)}, 20, {v(T+6)}
    v_mul_u32_u24 {v(T+7)}, 176, {v(T+5)}
    v_lshl_add_u32 {v(T+7)}, {v(T+6)}, 3, {v(T+7)}
    v_add_u32 {v(vSR)}, {L_SB}, {v(T+7)}
    s_lshr_b32 s40, {s(sROLE)}, 2
    s_mul_i32 s40, s40, 2560
    s_and_b32 s41, {s(sROLE)}, 1
    s_bfe_u32 s42, {s(sROLE)}, 0x10001
    s_lshl_b32 s43, s41, 7
    s_lshl_b32 s46, s42, 5
    s_add_u32 s43, s43, s46
    s_add_u32 s43, s43, s40
    s_add_u32 s43, s43, 2048
    v_and_b32 {v(T+7)}, 1, {v(T+6)}
    v_lshlrev_b32 {v(T+7)}, 8, {v(T+7)}
    v_lshrrev_b32 {v(T+8)}, 1, {v(T+6)}
    v_lshl_add_u32 {v(T+7)}, {v(T+8)}, 6, {v(T+7)}
    v_lshl_add_u32 {v(T+7)}, {v(T+5)}, 2, {v(T+7)}
    v_add_u32 {v(T+7)}, s43, {v(T+7)}
    s_lshl_b32 s43, s42, 10
    s_lshl_b32 s46, s41, 9
    s_add_u32 s43, s43, s46
    s_add_u32 s43, s43, s40
    v_subrev_u32 {v(T+8)}, 4, {v(T+6)}
    v_lshrrev_b32 {v(T+9)}, 2, {v(T+8)}
    v_and_b32 {v(T+8)}, 3, {v(T+8)}
    v_lshlrev_b32 {v(T+8)}, 2, {v(T+8)}
    v_lshl_add_u32 {v(T+8)}, {v(T+9)}, 7, {v(T+8)}
    v_lshl_add_u32 {v(T+8)}, {v(T+5)}, 4, {v(T+8)}
    v_add_u32 {v(T+8)}, s43, {v(T+8)}
    v_cmp_gt_u32 vcc, 4, {v(T+6)}
    v_cndmask_b32 {v(vPS)}, {v(T+8)}, {v(T+7)}, vcc
    s_mul_i32 s40, {s(sW)}, 6144
    s_add_u32 s40, s40, {L_RW}
    v_lshl_add_u32 {v(vRW)}, v0, 4, s40
    s_mov_b32 {s(sM20)}, 0x000fffff
    s_mov_b32 {s(sM20+1)}, 0x000fffff
    s_mov_b32 {s(sMHI)}, 0xff00ff00
    s_mov_b32 {s(sMHI+1)}, 0xff00ff00
    s_mov_b32 {s(sMG)}, 0
    s_mov_b32 {s(sMG+1)}, -1
    v_mov_b32 {v(vSN)}, {SENT}
    ''')
    addp(A, sP, sWS, PS_OFF); addp(A, 40, sP, PS_SLOT)
    A.I(f'''
    s_mov_b64 exec, {s(sM20,2)}
    global_store_dword {v(vPS)}, {v(vSN)}, {s(sP,2)} sc1
    global_store_dword {v(vPS)}, {v(vSN)}, s[40:41] sc1
    s_mov_b64 exec, -1
    s_waitcnt lgkmcnt(0)
    ''')
    xcc_publish(A, sROLE, T + 12)
    addp(A, sX1, sX0, 16 * 896)
    def xdma():
        for k in range(8):
            L, t = k >> 1, k & 1
            A.I(f's_add_u32 m0, {s(sXB)}, {k*1024 - (64*L if L < 3 else 0)}')
            base = s(sX0 if t == 0 else sX1, 2)
            A.I(f'global_load_lds_dwordx4 {v(vX0)}, {base} offset:{64*L}' if L < 3 else f'global_load_lds_dwordx4 {v(vX1)}, {base}')
        addp(A, sX0, sX0, XI_SEG); addp(A, sX1, sX1, XI_SEG)
    def xread():
        for k in range(8): A.I(f'ds_read_b128 {v(RING+4*k,4)}, {v(vXB)} offset:{k*1024}')
        for L in range(4):
            A.I(f's_waitcnt lgkmcnt({6-2*L})')
            for k in range(8): A.I(f'v_mov_b32 {v(XF+8*L+k)}, {v(RING+8*L+4*(k&1)+(k>>1))}')
        for k in range(4): A.I(f'v_mov_b32 {v(SACC+4+k)}, 0')
    SC = 'sc' in OPT
    ixw = {x: i for i, x in enumerate(seq)}
    def wq(i, hf):
        if i < 3: return ('v', R + 8 * i + 4 * hf)
        if i < 35: return ('a', 8 * (i - 3) + 4 * hf)
        return ('v', WV + 8 * (i - 35) + 4 * hf)
    def rq(q, n=4): return (v if q[0] == 'v' else a_)(q[1], n)
    if SC:
        VREG = [wq(i, hf) for i, (L, jj) in enumerate(seq) if L >= 2 and i >= 3 for hf in range(2)][:32]
        UR, TC, ACC, vUS, vVS, vL, vUB, vUR = 20, 44, 52, 108, 110, 114, 118, 122
        sQ, sK, sL = 46, 48, 50
        A.I(f'''
        s_load_dwordx4 s[52:55], s[0:1], {KA_WQ}
        v_lshrrev_b32 v20, 5, v0
        v_and_b32 v21, 31, v0
        v_and_b32 v22, 15, v0
        v_lshrrev_b32 v23, 4, v0
        s_and_b32 s40, {s(sW)}, 1
        s_lshl_b32 s40, s40, 1
        s_lshl_b32 s41, {s(sW)}, 3
        ''')
        for b in range(2):
            A.I(f'''
            v_add_u32 v24, {2*b}, v20
            v_lshlrev_b32 v25, 2, v24
            v_xor_b32 v25, v25, v21
            v_lshlrev_b32 v26, 13, v24
            v_lshl_add_u32 {v(vVS+b)}, v25, 4, v26
            v_xor_b32 {v(vVS+2+b)}, 32, {v(vVS+b)}
            v_xor_b32 v25, s40, v25
            v_add_u32 v24, s41, v24
            v_lshlrev_b32 v26, 13, v24
            v_lshl_add_u32 {v(vUS+b)}, v25, 4, v26
            ''')
        A.I(f'''
        v_and_b32 v24, 3, v22
        v_lshlrev_b32 v25, 2, v24
        v_bfe_u32 v26, v22, 2, 1
        v_lshl_add_u32 v25, v26, 1, v25
        v_lshrrev_b32 v27, 2, v22
        v_lshl_add_u32 v27, v27, 3, v24
        v_lshlrev_b32 v27, 9, v27
        v_lshlrev_b32 v26, 4, v26
        v_lshrrev_b32 v28, 3, v22
        v_lshl_add_u32 v26, v28, 2, v26
        v_add_u32 v26, v26, v24
        v_lshlrev_b32 v26, 9, v26
        s_lshl_b32 {s(sL)}, {s(sW)}, 15
        v_add_u32 v26, {s(sL)}, v26
        ''')
        for b in range(4):
            A.I(f'''
            v_add_u32 v24, {4*b}, v23
            v_xor_b32 v24, v24, v25
            v_lshl_add_u32 {v(vUB+b)}, v24, 4, v27
            v_lshl_add_u32 {v(vL+b)}, v24, 4, v26
            ''')
        A.I(f'''
        s_lshl_b32 s40, {s(sROLE)}, 9
        s_lshl_b32 s41, {s(sTMP)}, 18
        s_add_u32 s41, s41, s40
        s_waitcnt lgkmcnt(0)
        ''')
        addps(A, sQ, 52, 40); addps(A, sK, 54, 41)
        vm = Cnt(A, 'vmcnt', 63); l2 = Cnt(A, 'lgkmcnt', 15)
        for k in range(32):
            A.I(f's_add_u32 m0, {s(sL)}, {k*1024}')
            A.I(f'global_load_lds_dwordx4 {v(vVS + (k&1) + 2*((k>>3)&1))}, {s(sK,2)} {prep.LDNT}'); vm.add('V')
            if k & 1: addp(A, sK, sK, 32768)
        A.I(f's_lshl_b32 {s(sL)}, {s(sW)}, 12')
        slot = lambda j: [8, 9][j] if j < 2 else (j - 2) % 10
        def issueU(j):
            for kk in range(4):
                A.I(f's_add_u32 m0, {s(sL)}, {slot(j)*16384 + kk*1024}')
                A.I(f'global_load_lds_dwordx4 {v(vUS + (kk&1))}, {s(sQ,2)} {prep.LDNT}'); vm.add(('U', j))
                if kk == 1: addp(A, sQ, sQ, 32768)
            addp(A, sQ, sQ, 32 * 8192 - 32768)
        issueU(0); issueU(1)
        vm.wait('V')
        for t in range(4):
            for kk in range(8):
                A.I(f'ds_read_b128 {rq(VREG[8*t+kk])}, {v(vL+(kk&3))} offset:{(t>>1)*16384 + (t&1)*4096 + (kk>>2)*256}')
            A.I('s_waitcnt lgkmcnt(0)')
        tl(A, 1, 6, 44)
        A.I('s_barrier')
        for j in range(2, 10): issueU(j)
        for j in range(14):
            for b in range(4): A.I(f'v_add_u32 {v(vUR+b)}, {slot(j)*16384}, {v(vUB+b)}')
            vm.wait(('U', j)); A.I('s_barrier')
            if 1 <= j <= 4: issueU(j + 9)
            if j == 7: tl(A, 1, 7, 44)
            def rdu(kk):
                for tp in range(2):
                    A.I(f'ds_read_b128 {v(UR+8*(kk%3)+4*tp,4)}, {v(vUR+(kk&3))} offset:{tp*2048 + (kk>>2)*256}'); l2.add((kk, tp))
            rdu(0); rdu(1)
            for kk in range(8):
                for tp in range(2):
                    l2.wait((kk, tp))
                    for t in range(4):
                        acc = v(ACC + 8*t + 4*tp, 4)
                        A.I(f'v_mfma_f32_16x16x32_bf16 {acc}, {v(UR+8*(kk%3)+4*tp,4)}, {rq(VREG[8*t+kk])}, {acc if kk else 0}')
                        if tp == 0 and t == 0 and kk + 2 < 8: rdu(kk + 2)
            A.I(f's_mov_b32 s40, {f32(CSC)}\n s_mov_b32 s41, s40')
            for e in range(2):
                for tp in range(2):
                    q = wq(ixw[(e, j)], tp)
                    for k in range(2):
                        for y in range(2):
                            r = ACC + 8*(2*e+y) + 4*tp + 2*k
                            A.I(f'v_pk_mul_f32 {v(r,2)}, {v(r,2)}, s[40:41]')
                    for k in range(2):
                        for y in range(2):
                            r = ACC + 8*(2*e+y) + 4*tp + 2*k
                            d = q[1] + 2*k + y if q[0] == 'v' else TC + 2*k + y
                            A.I(f'v_cvt_pk_bf16_f32 {v(d)}, {v(r)}, {v(r+1)}')
                    if q[0] == 'a':
                        for k in range(4): A.I(f'v_accvgpr_write_b32 {a_(q[1]+k)}, {v(TC+k)}')
        A.I('s_barrier')
        for k in range(6): A.I(f'ds_write_b128 {v(vRW)}, {v(R+4*k,4)} offset:{k*1024}')
        tl(A, 1, 5, T)
    A.I(f'''
    v_mov_b32 {v(T+6)}, 0xff800000
    v_mov_b32 {v(T+7)}, 0xff800000
    ds_write_b64 {v(vCK)}, {v(T+6,2)} offset:160
    ''')
    xdma()
    A.I(f'''
    s_mul_i32 s40, {s(sROLE)}, {MF_HEAD}
    s_and_b32 s41, {s(sW)}, 1
    s_mul_i32 s41, s41, {7*2048}
    s_mul_i32 s42, {s(sTMP)}, {14*2048}
    s_mul_i32 s43, {s(sTMP2)}, {14*2048}
    v_lshlrev_b32 {v(T+8)}, 4, v0
    v_add_u32 {v(T+9)}, s42, {v(T+8)}
    s_add_u32 s46, s43, s41
    v_add_u32 {v(T+11)}, s46, {v(T+8)}
    ''')
    addp(A, sWT, sWS, MF_OFF); addps(A, sWT, sWT, 40)
    def wload(i):
        L, jj = seq[i]
        addp(A, 40, sWT, ((L % 3) * 14 + jj) * 2048)
        for hf in range(2): A.I(f'global_load_dwordx4 {rq(wq(i, hf))}, {v(T + 11 if L == 3 else T + 9)}, s[40:41] offset:{hf*1024} sc1')
    if SC or 'noprog' in OPT:
        xcc_check(A, 'sc0', '0', '0', T + 12)
        wait_tiles(A, 'sc', T + 12, 0, 'head', sROLE)
        tl(A, 1, 4, T + 12)
        for i, (L, jj) in enumerate(seq):
            if SC and L < 2: continue
            wload(i)
            if i > 23: A.I('s_waitcnt vmcnt(42)')
    else:
        addp(A, sVX, sWS, PF_OFF)
        A.I(f'''
        s_lshl_b32 s40, {s(sROLE)}, 5
        v_and_b32 {v(T+12)}, 1, v0
        v_lshl_add_u32 {v(T+12)}, {v(T+12)}, 9, s40
        ''')
        for jb in range(7):
            if jb: A.I(f's_waitcnt vmcnt(12)\n v_cmp_eq_u32 vcc, 0, {v(T+13)}\n s_cbranch_vccz L_sc_w{jb}ok')
            A.I(f'L_sc_w{jb}:\n global_load_dword {v(T+13)}, {v(T+12)}, {s(sVX,2)} offset:{4*jb} sc1')
            bud(A)
            A.I(f's_waitcnt vmcnt(0)\n v_cmp_eq_u32 vcc, 0, {v(T+13)}\n s_cbranch_vccnz L_sc_w{jb}\nL_sc_w{jb}ok:')
            if jb == 0: tl(A, 1, 4, T + 14)
            if jb < 6: A.I(f'global_load_dword {v(T+13)}, {v(T+12)}, {s(sVX,2)} offset:{4*jb+4} sc1')
            for j in (2 * jb, 2 * jb + 1):
                for L in range(3): wload(ixw[(L, j)])
        for jj in range(7): wload(ixw[(3, jj)])
    xcc_check(A, 'sc', '0x000fffff', '0x000fffff', T + 12)
    if not SC:
        for k in range(6): A.I(f'ds_write_b128 {v(vRW)}, {v(R+4*k,4)} offset:{k*1024}')
    xread()
    addp(A, sMEM, sWS, MEMS_OFF)
    if prof:
        A.I(f's_lshl_b32 s40, {s(sROLE)}, 2\n s_add_u32 s40, s40, {s(sW)}\n s_lshl_b32 s40, s40, 12')
        addp(A, sDBG, sWS, END_OFF); addps(A, sDBG, sDBG, 40)
    for k in range(16): A.I(f'v_mov_b32 {v(TACC+k)}, 0')
    A.I('s_waitcnt vmcnt(0) lgkmcnt(0)')
    tl(A, 1, 1, T)
    if GX:
        A.I(f'''
L_gx:
        s_memrealtime s[40:41]
        s_waitcnt lgkmcnt(0)
        s_sub_u32 s40, s40, s92
        s_cmp_lt_u32 s40, {GX*100}
        s_cbranch_scc1 L_gx
        ''')
    A.label('L_sc_step')
    stamp(A, 0, prof)
    if prof: A.I('s_memtime s[62:63]')
    mem_poll(A, 'sc', vG0, vPR, TMP)
    stamp(A, 1, prof)
    lg.clear()
    def rdfrag(jj):
        A.I(f'ds_read_b128 {v(RING + 4*(jj%8), 4)}, {v(vAF0)} offset:{jj*512}'); lg.add(('f', jj))
    GR = [SACC, SACC + 8]
    def rdg(jj):
        if 'nog' in OPT: return
        A.I(f'ds_read_b128 {v(GR[jj&1], 4)}, {v(vAF1)} offset:{jj*512}'); lg.add(('g', jj))
    def rdmemb(L):
        if 'nomb' in OPT: return
        ad = f'{v(vMB0)} offset:{L*512}' if L < 3 else f'{v(vMB1)}'
        A.I(f'ds_read_b128 {v(MEMB + 4*L, 4)}, {ad}'); lg.add(('m', L))
    def cvt(L, k): A.I(f'v_cvt_pk_bf16_f32 {v(TMP + 2*(L&1) + k)}, {v(TACC+4*L+2*k)}, {v(TACC+4*L+2*k+1)}')
    def twr(L):
        A.I(f'ds_write_b64 {v(vTW)}, {v(TMP + 2*(L&1), 2)} offset:{L*768}'); lg.add(('w', L))
    TOPD = RING + 4 * (8 % 8)
    top = {0: TOPA, 1: TOPB, 2: TOPD, 3: TOPC}
    def trr(L):
        A.I(f'ds_read_b64_tr_b16 {v(top[L], 2)}, {v(vTR)} offset:{L*768}'); lg.add(('x', L))
        A.I(f'ds_read_b64_tr_b16 {v(top[L]+2, 2)}, {v(vTR)} offset:{L*768+384}'); lg.add(('t', L))
    def smm1(L, t, first=False):
        lg.wait(('m', L)); lg.wait(('t', L))
        if t == 0: A.I(f'v_mfma_f32_16x16x32_bf16 {v(SACC,4)}, {v(MEMB + 4*L, 4)}, {v(top[L],4)}, {0 if first else v(SACC,4)}')
        else: A.I(f'v_smfmac_f32_16x16x64_bf16 {v(SACC+4,4)}, {v(top[L],4)}, {v(XF + 8*L, 8)}, {v(vIDX)}')
    def chk(j0, first=False):
        if 'nochk' in OPT and not first: return
        a, b = v(RING + 4*(j0 % 8)), v(RING + 4*((j0+1) % 8))
        if first: A.I(f'v_max_u32 {v(vCK)}, {a}, {b}')
        else: A.I(f'v_max3_u32 {v(vCK)}, {a}, {b}, {v(vCK)}')
    fill = {i: [] for i in range(49)}
    ix = {x: i for i, x in enumerate(seq)}
    fill[0].append(lambda: rdg(0)); fill[1].append(lambda: rdfrag(2)); fill[ix[(1, 1)]].append(lambda: rdg(1))
    for k in range(3, 8): fill[ix[(0, k - PD)]].append(lambda k=k: rdfrag(k))
    for k in range(5): fill[ix[(3, k)]].append(lambda k=k: rdg(k + 2))
    for k in range(6): fill[ix[(2, k)]].append(lambda k=k: rdfrag(8 + k))
    e3 = ix[(3, 6)]
    if 'nol3' not in OPT: fill[e3 + 2].append(lambda: cvt(3, 0)); fill[e3 + 3].append(lambda: cvt(3, 1)); fill[e3 + 5].append(lambda: twr(3)); fill[e3 + 6].append(lambda: trr(3))
    for k, L in enumerate([3, 0, 1, 2]): fill[ix[(0, 10 + k)]].append(lambda L=L: rdmemb(L))
    for j0 in range(0, 14, 2):
        i = ix[(0, j0 + 1)]
        while i in (e3 + 2, e3 + 3): i += 1
        fill[i].append(lambda j0=j0: chk(j0, j0 == 0))
    fill[42].append(lambda: A.I(f'v_cmp_eq_u32 vcc, {s(sSENT)}, {v(vCK)}'))
    fill[43].append(lambda: cvt(0, 0)); fill[44].append(lambda: cvt(0, 1))
    fill[45] += [lambda: twr(0), lambda: cvt(1, 0)]; fill[46] += [lambda: trr(0), lambda: cvt(1, 1)]
    fill[47].append(lambda: twr(1)); fill[48].append(lambda: trr(1))
    if 'poisT' in OPT and 'nopois' not in OPT:
        fill[ix[(1, 5)]].insert(0, lambda: addp(A, 40, sP, 2 * PS_SLOT))
        fill[ix[(1, 6)]].insert(0, lambda: A.I(f's_mov_b64 exec, {s(sEA,2)}\n global_store_dword {v(vPS)}, {v(vSN)}, s[40:41]\n s_mov_b64 exec, -1'))
        fill[ix[(1, 7)]].insert(0, lambda: A.I(f's_mov_b64 exec, {s(sEB,2)}\n global_store_dword {v(vPS)}, {v(vSN)}, s[40:41] sc1\n s_mov_b64 exec, -1'))
    rdfrag(0); rdfrag(1)
    for i, (L, jj) in enumerate(seq):
        lg.now = i; lg.wait_old(('f', jj) if L < 3 else ('g', jj), AGE)
        A.I(f'v_smfmac_f32_16x16x64_bf16 {v(TACC+4*L,4)}, {v(RING+4*(jj%8) if L < 3 else GR[jj&1],4)}, {wreg(i)}, {v(vIDX)}')
        if i == 0: stamp(A, 8, prof > 1)
        if i == 24: stamp(A, 9, prof > 1)
        for f in fill[i]: f()
    stamp(A, 2, prof > 1)
    smm1(3, 1); smm1(3, 0, True)
    cvt(2, 0); cvt(2, 1); twr(2); trr(2)
    A.I('s_cbranch_vccnz L_sc_redo')
    for L in (0, 1): smm1(L, 1); smm1(L, 0)
    smm1(2, 0); smm1(2, 1)
    stamp(A, 10, prof > 1)
    Z = RING + 4
    A.I(f'''
    v_cndmask_b32 {v(Z)}, {v(SACC)}, {v(SACC+1)}, {s(sMHI,2)}
    v_cndmask_b32 {v(Z+1)}, {v(SACC+2)}, {v(SACC+3)}, {s(sMHI,2)}
    v_cndmask_b32 {v(Z)}, {v(Z)}, {v(Z+1)}, {s(sMG,2)}
    ds_write_b32 {v(vSM)}, {v(Z)}
    ds_write2_b32 {v(vSW)}, {v(SACC+4)}, {v(SACC+5)} offset0:0 offset1:44
    ds_write2_b32 {v(vSW)}, {v(SACC+6)}, {v(SACC+7)} offset0:88 offset1:132
    ''')
    stamp(A, 11, prof > 1)
    for k in range(FA): A.I(f'v_mov_b32 {v(TACC+k)}, 0')
    A.I('s_waitcnt lgkmcnt(0)')
    stamp(A, 12, prof > 1)
    A.I('s_barrier')
    stamp(A, 3, prof)
    for k in range(4): A.I(f'ds_read_b64 {v(Z+2*k,2)}, {v(vSR)} offset:{k*1408}')
    for k in range(FA, FA + FB): A.I(f'v_mov_b32 {v(TACC+k)}, 0')
    E, M = Z + 8, Z + 10
    A.I(f'''
    s_waitcnt lgkmcnt(2)
    v_pk_add_f32 {v(Z,2)}, {v(Z,2)}, {v(Z+2,2)}
    s_waitcnt lgkmcnt(0)
    v_pk_add_f32 {v(Z+4,2)}, {v(Z+4,2)}, {v(Z+6,2)}
    v_pk_add_f32 {v(Z,2)}, {v(Z,2)}, {v(Z+4,2)}
    ''')
    stamp(A, 13, prof > 1)
    def summ(a):
        A.I(f'''
        v_exp_f32 {v(E)}, {v(a)}
        v_exp_f32 {v(E+1)}, {v(a+1)}
        v_add_f32 {v(M)}, {v(E)}, {v(E+1)}
        ''')
        for k in (8, 4, 2, 1): A.I(f'v_add_f32_dpp {v(M)}, {v(M)}, {v(M)} {dpp(k)}')
        A.I(f'''
        v_mov_b32 {v(M+1)}, {v(M)}
        v_permlane16_swap_b32 {v(M)}, {v(M+1)}
        v_add_f32 {v(M)}, {v(M)}, {v(M+1)}
        ''')
    def truemax():
        A.I(f'v_max_f32 {v(M)}, {v(Z)}, {v(Z+1)}')
        for k in (8, 4, 2, 1): A.I(f'v_max_f32_dpp {v(M)}, {v(M)}, {v(M)} {dpp(k)}')
        A.I(f'''
        v_mov_b32 {v(M+1)}, {v(M)}
        v_permlane16_swap_b32 {v(M)}, {v(M+1)}
        v_max_f32 {v(M)}, {v(M)}, {v(M+1)}
        v_sub_f32 {v(E)}, {v(Z)}, {v(M)}
        v_sub_f32 {v(E+1)}, {v(Z+1)}, {v(M)}
        ''')
        summ(E)
    def norm(check):
        if check:
            A.I(f'''
            v_subrev_u32 {v(M+3)}, {(127 - LIM) << 23}, {v(M)}
            v_cmp_lt_u32 vcc, {(2 * LIM) << 23}, {v(M+3)}
            ''')
        A.I(f'''
        v_rcp_f32 {v(M+2)}, {v(M)}
        v_pk_mul_f32 {v(E,2)}, {v(E,2)}, {v(M+2,2)} op_sel_hi:[1,0]
        v_cvt_pk_bf16_f32 {v(E)}, {v(E)}, {v(E+1)}
        ''')
        if check: A.I('s_cbranch_vccnz L_sc_max')
    if 'max' in OPT: truemax(); norm(False)
    else: summ(Z); stamp(A, 14, prof > 1); norm(True)
    A.label('L_sc_norm')
    store2(A, f'global_store_dword {v(vPS)}, {v(E)}, {s(sP,2)}')
    stamp(A, 4, prof)
    if 'poisT' not in OPT:
        addp(A, 40, sP, 2 * PS_SLOT)
        store2(A, f'global_store_dword {v(vPS)}, {v(vSN)}, s[40:41]')
    A.I(f's_mov_b64 exec, -1\n s_add_u32 {s(sSTEP)}, {s(sSTEP)}, 1\n s_cmp_ge_u32 {s(sSTEP)}, {NSTEP}\n s_cbranch_scc1 L_sc_end')
    if 'nox' not in OPT: xdma()
    for k in range(6): A.I(f'ds_read_b128 {v(R+4*k,4)}, {v(vRW)} offset:{k*1024}')
    for k in range(FA + FB, 16): A.I(f'v_mov_b32 {v(TACC+k)}, 0')
    addp(A, sP, sP, PS_SLOT); addp(A, sMEM, sMEM, MEM_SLOT)
    stamp_flush(A, prof)
    A.I('s_waitcnt vmcnt(0)')
    xread()
    stamp(A, 5, prof)
    A.I('s_branch L_sc_step')
    if 'max' not in OPT:
        A.label('L_sc_max'); A.I('s_nop 1'); truemax(); norm(False); A.I('s_branch L_sc_norm')
    A.label('L_sc_redo')
    if prof: A.I(f's_add_u32 {s(sreg(15))}, {s(sreg(15))}, 1')
    A.I('s_waitcnt vmcnt(0) lgkmcnt(0)\n s_nop 15\n s_barrier')
    for k in range(6): A.I(f'ds_read_b128 {v(R+4*k,4)}, {v(vRW)} offset:{k*1024}')
    for k in range(16): A.I(f'v_mov_b32 {v(TACC+k)}, 0')
    for k in range(4): A.I(f'v_mov_b32 {v(SACC+4+k)}, 0')
    A.I('s_branch L_sc_mp')
    A.label('L_sc_end')
    tl(A, 1, 2, T)
    stamp_flush(A, prof)
    A.I('s_endpgm')

def value(A, prof=0):
    L_MEM, L_RB, L_WL, L_VB = 0, 8192, 16384, 131072
    DEC = 'dec' in OPT
    H3R, NR = 136, NRES
    RBW = 32 * 48
    vIDX, vG0, vCK, vPR, vAF, vWL, vV0, vV1, vPM, vPX, vSN, vRWR, vRRD, vMS, vZ, vDUM, vFL, vVB, vVP = range(1, 20)
    ARING, HRING, VXF, WACC, WX, WY, OX, OY, PF, WV = 20, 36, 60, 92, 108, 112, 116, 120, 124, 176
    lg = Cnt(A, 'lgkmcnt', 15)
    def wreg(hh, j):
        k = (hh * 14 + j) * 8
        return a_(k, 8) if k < 256 else v(WV + k - 256, 8)
    A.label('L_value')
    chain_common(A)
    T = 20
    A.I(f's_mov_b32 {s(sTMP)}, {s(sROLE)}\n s_sub_u32 {s(sROLE)}, {s(sROLE)}, 16')
    idx_setup(A, vIDX, T)
    mem_poll_setup(A, vG0, vPR, T + 4, DEC)
    A.I(f'''
    v_lshlrev_b32 {v(vAF)}, 7, {v(T+1)}
    v_lshl_add_u32 {v(vAF)}, {v(T+2)}, 4, {v(vAF)}
    s_mul_i32 s40, {s(sW)}, 28672
    s_add_u32 s40, s40, {L_WL}
    v_lshl_add_u32 {v(vWL)}, v0, 4, s40
    s_lshl_b32 s40, {s(sW)}, 13
    v_lshl_add_u32 {v(vV0)}, v0, 4, s40
    v_add_u32 {v(vV1)}, 4096, {v(vV0)}
    s_mul_i32 s40, {s(sW)}, 2560
    v_and_b32 {v(T+5)}, 1, {v(T+1)}
    v_lshl_add_u32 {v(vPX)}, v0, 4, s40
    v_lshl_add_u32 {v(vPM)}, v0, 2, s40
    v_lshlrev_b32 {v(vFL)}, 2, {v(T)}
    s_and_b32 s41, {s(sW)}, 1
    s_lshl_b32 s41, s41, 13
    v_lshl_add_u32 {v(vVP)}, v0, 4, s41
    s_add_u32 {s(sXB)}, s41, {L_VB}
    v_lshl_add_u32 {v(vVB)}, v0, 4, {s(sXB)}
    s_mul_i32 s40, {s(sW)}, {RBW}
    s_add_u32 s40, s40, {L_RB}
    v_lshrrev_b32 {v(T+7)}, 5, v0
    v_lshl_add_u32 {v(T+7)}, {v(T+7)}, 4, {v(T)}
    v_mul_u32_u24 {v(T+7)}, 48, {v(T+7)}
    v_lshl_add_u32 {v(T+7)}, {v(T+5)}, 4, {v(T+7)}
    v_add_u32 {v(vRWR)}, s40, {v(T+7)}
    s_and_b32 s40, {s(sW)}, 1
    s_lshl_b32 s40, s40, 4
    s_lshr_b32 s41, {s(sW)}, 1
    s_lshl_b32 s41, s41, 2
    s_add_u32 s40, s40, s41
    v_bfe_u32 {v(T+7)}, v0, 2, 1
    v_lshlrev_b32 {v(T+7)}, 3, {v(T+7)}
    v_and_b32 {v(T+8)}, 3, v0
    v_add3_u32 {v(T+7)}, {v(T+7)}, {v(T+8)}, s40
    v_mul_u32_u24 {v(T+7)}, 48, {v(T+7)}
    v_lshrrev_b32 {v(T+8)}, 3, v0
    v_lshl_add_u32 {v(T+7)}, {v(T+8)}, 2, {v(T+7)}
    v_add_u32 {v(vRRD)}, {L_RB}, {v(T+7)}
    s_lshl_b32 s40, {s(sROLE)}, 9
    s_lshl_b32 s41, {s(sW)}, 7
    s_add_u32 s40, s40, s41
    v_lshl_add_u32 {v(vMS)}, v0, 1, s40
    v_mov_b32 {v(vSN)}, {SENT}
    ''')
    addp(A, sMEM, sWS, MEMS_OFF); addp(A, 40, sMEM, MEM_SLOT); addp(A, 42, sMEM, 2 * MEM_SLOT)
    A.I(f'''
    global_store_short {v(vMS)}, {v(vSN)}, s[40:41] sc1
    global_store_short {v(vMS)}, {v(vSN)}, s[42:43] sc1
    ''')
    xcc_publish(A, sTMP, T + 12)
    A.I(f'''
    s_mul_i32 s40, {s(sW)}, {4*MF_HEAD}
    s_mul_i32 s41, {s(sROLE)}, {14*2048}
    s_add_u32 s40, s40, s41
    s_cmp_ge_u32 {s(sROLE)}, 8
    s_cselect_b32 {s(sTMP)}, 1, 0
    v_lshlrev_b32 {v(T+8)}, 4, v0
    ''')
    addp(A, sWT, sWS, MF_OFF + MF_MAT); addps(A, sWT, sWT, 40)
    addp(A, sVX, sWS, PF_OFF + 1024)
    A.I(f'''
    s_lshl_b32 s40, {s(sTMP)}, 9
    s_lshl_b32 s41, {s(sW)}, 7
    s_add_u32 s40, s40, s41
    v_lshl_add_u32 {v(T+12)}, {v(T+2)}, 2, s40
    ''')
    order = (3, 0, 1, 2)
    for n, hh in enumerate(order):
        if n: A.I(f's_waitcnt vmcnt(28)\n v_cmp_eq_u32 vcc, 0, {v(T+13)}\n s_cbranch_vccz L_va_w{hh}ok')
        A.I(f'L_va_w{hh}:\n global_load_dword {v(T+13)}, {v(T+12)}, {s(sVX,2)} offset:{32*hh} sc1')
        bud(A)
        A.I(f's_waitcnt vmcnt(0)\n v_cmp_eq_u32 vcc, 0, {v(T+13)}\n s_cbranch_vccnz L_va_w{hh}\nL_va_w{hh}ok:')
        if hh == 3: tl(A, 1, 4, T + 14)
        if hh == 1:
            for k in range(2 * NR, 28): A.I(f'ds_write_b128 {v(vWL)}, {v(60+4*k,4)} offset:{k*1024}')
            A.I('s_waitcnt lgkmcnt(0)')
            for k in range(8 * NR): A.I(f'v_mov_b32 {v(H3R+k)}, {v(60+k)}')
        if n < 3: A.I(f'global_load_dword {v(T+13)}, {v(T+12)}, {s(sVX,2)} offset:{32*order[n+1]} sc1')
        addp(A, 40, sWT, hh * MF_HEAD)
        for q in range(28):
            if hh == 3: dst = v(60 + 4 * q, 4)
            else:
                k = 112 * hh + 4 * q; dst = a_(k, 4) if k < 256 else v(WV + k - 256, 4)
            A.I(f'global_load_dwordx4 {dst}, {v(T+8)}, s[40:41] offset:{(q%4)*1024} sc1')
            if q % 4 == 3: addp(A, 40, 40, 4096)
    xcc_check(A, 'va', '-1', '-1', T + 12)
    addp(A, sP, sWS, PS_OFF); addp(A, sFL, sWS, FL_OFF); addp(A, sMT, sWS, MEMT_OFF + 63 * MEMT_SLOT)
    A.I(f's_mul_i32 s40, {s(sROLE)}, {VX_SC}'); addp(A, sVX, sWS, VX_OFF); addps(A, sVX, sVX, 40)
    A.I('s_waitcnt vmcnt(0) lgkmcnt(0)')
    tl(A, 1, 1, T)
    def flagwait(tag, loaded):
        if loaded:
            A.I(f'v_cmp_eq_u32 vcc, 0, {v(vDUM)}\n s_cbranch_vccz L_{tag}_ok')
        A.I(f'L_{tag}:\n global_load_dword {v(vDUM)}, {v(vFL)}, {s(sFL,2)} sc1')
        bud(A)
        A.I(f'''
        s_waitcnt vmcnt(0)
        v_cmp_eq_u32 vcc, 0, {v(vDUM)}
        s_cbranch_vccnz L_{tag}
L_{tag}_ok:
        ''')
    flagwait('va_f0', False)
    tl(A, 1, 3, T)
    addp(A, sFL, sFL, 256)
    if prof:
        A.I(f's_add_u32 s40, {s(sROLE)}, 16\n s_lshl_b32 s40, s40, 2\n s_add_u32 s40, s40, {s(sW)}\n s_lshl_b32 s40, s40, 12')
        addp(A, sDBG, sWS, END_OFF); addps(A, sDBG, sDBG, 40)
    def vxload(k):
        hh, t = k >> 1, k & 1
        A.I(f'global_load_dwordx4 {v(VXF+16*t+4*hh,4)}, {v(vV0 if hh < 2 else vV1)}, {s(sVX,2)} offset:{(hh&1)*2048+t*1024} sc1')
    def vxearly(tag):
        if not DEC:
            for k in range(VE): vxload(k)
            return
        A.I(f's_cmp_lt_u32 {s(sW)}, 2\n s_cbranch_scc1 L_{tag}')
        addp(A, 40, sVX, 4096)
        for k in range(8):
            A.I(f's_add_u32 m0, {s(sXB)}, {(k>>2)*4096}')
            A.I(f'global_load_lds_dwordx4 {v(vVP)}, {s(sVX if k < 4 else 40,2)} offset:{(k&3)*1024} sc1')
        for k in range(8): vxload(k)
        A.label(f'L_{tag}')
    def hslot(j): return [HRING, HRING + 8, HRING + 16, 168][(j - NR) % HD]
    def rdh(j):
        if j < NR or j >= 14: return
        for k in range(2):
            A.I(f'ds_read_b128 {v(hslot(j)+4*k,4)}, {v(vWL)} offset:{(2*j+k)*1024}'); lg.add(('h', j))
    def rda(j):
        A.I(f'ds_read_b128 {v(ARING+4*(j%4),4)}, {v(vAF)} offset:{j*512}'); lg.add(('a', j))
    def prep_():
        for k in range(16): A.I(f'v_mov_b32 {v(WACC+k)}, 0')
        for j in range(NR, NR + HD - 1): rdh(j)
    vxearly('va_e0')
    prep_()
    A.label('L_va_step')
    stamp(A, 0, prof)
    (mem_poll_half if DEC else mem_poll)(A, 'va', vG0, vPR, PF + 10)
    stamp(A, 1, prof)
    lg.clear()
    rda(0); rda(1); rda(2)
    addp(A, 40, sMEM, 3 * MEM_SLOT)
    store2(A, f'global_store_short {v(vMS)}, {v(vSN)}, s[40:41]')
    A.I('s_mov_b64 exec, -1')
    for j in range(14):
        lg.wait(('a', j))
        for hh in range(4):
            if hh == 3: lg.wait(('h', j))
            w = wreg(hh, j) if hh < 3 else v(H3R + 8 * j, 8) if j < NR else v(hslot(j), 8)
            A.I(f'v_smfmac_f32_16x16x64_bf16 {v(WACC+4*hh,4)}, {v(ARING+4*(j%4),4)}, {w}, {v(vIDX)}')
            if hh == 0 and j >= NR: rdh(j + HD - 1)
            if hh == 1 and j + 3 < 14: rda(j + 3)
            if hh == 2 and j < 8 - VE and not DEC: vxload(7 - j if 'vrev' in OPT else j + VE)
            if hh == 2 and j == 8 - VE: A.I(f'global_load_dword {v(vDUM)}, {v(vFL)}, {s(sFL,2)} sc1')
            if hh == 2:
                if j == 0: A.I(f'v_mov_b32 {v(vCK)}, {v(ARING)}')
                else: A.I(f'v_max_u32 {v(vCK)}, {v(vCK)}, {v(ARING+4*(j%4))}')
            if hh == 3 and j == 13: A.I(f'v_cmp_eq_u32 vcc, {s(sSENT)}, {v(vCK)}')
    A.I('s_cbranch_vccnz L_va_redo')
    if DEC:
        A.I(f's_waitcnt vmcnt(0)\n s_barrier\n s_cmp_ge_u32 {s(sW)}, 2\n s_cbranch_scc1 L_va_nv')
        for k in range(8): A.I(f'ds_read_b128 {v(VXF+16*(k&1)+4*(k>>1),4)}, {v(vVB)} offset:{k*1024}')
        A.label('L_va_nv')
    for k in range(2):
        for p in range(2):
            A.I(f'v_cvt_pk_bf16_f32 {v(WX+2*k+p)}, {v(WACC+8*p+2*k)}, {v(WACC+8*p+2*k+1)}')
            A.I(f'v_cvt_pk_bf16_f32 {v(WY+2*k+p)}, {v(WACC+8*p+4+2*k)}, {v(WACC+8*p+4+2*k+1)}')
    for k in range(4): A.I(f'v_permlane32_swap_b32 {v(WX+k)}, {v(WY+k)}')
    if DEC: A.I('s_waitcnt lgkmcnt(0)')
    stamp(A, 2, prof)
    if prof: A.I('s_waitcnt vmcnt(0)'); stamp(A, 6, prof)
    F = PF
    A.I(f'''
L_va_pp:
    global_load_dwordx4 {v(F,4)}, {v(vPX)}, {s(sP,2)} sc1
    global_load_dwordx4 {v(F+4,4)}, {v(vPX)}, {s(sP,2)} offset:1024 sc1
    global_load_dword {v(F+8)}, {v(vPM)}, {s(sP,2)} offset:2048 sc1
    global_load_dword {v(F+9)}, {v(vPM)}, {s(sP,2)} offset:2304 sc1
    ''')
    bud(A)
    for k in range(8): A.I(f'v_mov_b32 {v(OX+k)}, 0')
    A.I(f'''
    s_waitcnt vmcnt(3)
    v_smfmac_f32_16x16x64_bf16 {v(OX,4)}, {v(F,4)}, {v(VXF,8)}, {v(vIDX)}
    v_smfmac_f32_16x16x64_bf16 {v(OY,4)}, {v(F,4)}, {v(VXF+16,8)}, {v(vIDX)}
    s_waitcnt vmcnt(0)
    v_max3_u32 {v(vCK)}, {v(F)}, {v(F+4)}, {v(F+8)}
    v_smfmac_f32_16x16x64_bf16 {v(OX,4)}, {v(F+4,4)}, {v(VXF+8,8)}, {v(vIDX)}
    v_max_u32 {v(vCK)}, {v(vCK)}, {v(F+9)}
    v_smfmac_f32_16x16x64_bf16 {v(OY,4)}, {v(F+4,4)}, {v(VXF+24,8)}, {v(vIDX)}
    v_cmp_eq_u32 vcc, {s(sSENT)}, {v(vCK)}
    v_smfmac_f32_16x16x32_bf16 {v(OX,4)}, {v(F+8,2)}, {v(WX,4)}, {v(vIDX)}
    v_smfmac_f32_16x16x32_bf16 {v(OY,4)}, {v(F+8,2)}, {v(WY,4)}, {v(vIDX)}
    s_cbranch_vccnz L_va_pp
    ''')
    stamp(A, 3, prof)
    stamp(A, 8, prof > 1)
    A.flush()
    for r in range(4): A.I(f'v_permlane32_swap_b32 {v(OX+r)}, {v(OY+r)}')
    A.I(f'''
    v_pk_add_f32 {v(OX,2)}, {v(OX,2)}, {v(OY,2)}
    v_pk_add_f32 {v(OX+2,2)}, {v(OX+2,2)}, {v(OY+2,2)}
    ds_write_b128 {v(vRWR)}, {v(OX,4)}
    ''')
    stamp(A, 9, prof > 1)
    for k in range(FC): A.I(f'v_mov_b32 {v(WACC+k)}, 0')
    A.I('s_waitcnt lgkmcnt(0)')
    stamp(A, 10, prof > 1)
    A.I('s_barrier')
    stamp(A, 11, prof > 1)
    Z = ARING + 4
    for k in range(4): A.I(f'ds_read_b32 {v(Z+k)}, {v(vRRD)} offset:{k*RBW}')
    for k in range(FC, FC + FD): A.I(f'v_mov_b32 {v(WACC+k)}, 0')
    addp(A, sMEM, sMEM, MEM_SLOT); addp(A, sP, sP, PS_SLOT)
    A.I('s_waitcnt lgkmcnt(0)')
    stamp(A, 12, prof > 1)
    A.I(f'''
    v_pk_add_f32 {v(Z,2)}, {v(Z,2)}, {v(Z+2,2)}
    v_add_f32 {v(Z)}, {v(Z)}, {v(Z+1)}
    v_cvt_pk_bf16_f32 {v(vZ)}, {v(Z)}, {v(Z)}
    ''')
    store2(A, f'global_store_short {v(vMS)}, {v(vZ)}, {s(sMEM,2)}')
    A.I('s_mov_b64 exec, -1')
    stamp(A, 4, prof)
    A.I(f's_add_u32 {s(sSTEP)}, {s(sSTEP)}, 1\n s_cmp_ge_u32 {s(sSTEP)}, {NSTEP}\n s_cbranch_scc1 L_va_end')
    flagwait('va_f1', True)
    addp(A, sVX, sVX, 14 * VX_SC); addp(A, sFL, sFL, 256)
    vxearly('va_e1')
    lg.clear(); prep_()
    stamp(A, 5, prof)
    stamp_flush(A, prof)
    A.I('s_branch L_va_step')
    A.label('L_va_redo')
    if prof: A.I(f's_add_u32 {s(sreg(15))}, {s(sreg(15))}, 1')
    A.I('s_waitcnt vmcnt(0) lgkmcnt(0)\n s_nop 15\n s_barrier')
    lg.clear(); prep_()
    A.I('s_branch L_va_mp')
    A.label('L_va_end')
    if GE:
        A.I(f'''
L_ge:
        s_memrealtime s[40:41]
        s_waitcnt lgkmcnt(0)
        s_sub_u32 s40, s40, s92
        s_cmp_lt_u32 s40, {GE*100}
        s_cbranch_scc1 L_ge
        ''')
    if 'mtdirect' in OPT: A.I(f'global_store_short {v(vMS)}, {v(vZ)}, {s(sMT,2)} sc1')
    if 'wb' in OPT:
        A.I(f's_or_b32 s40, {s(sROLE)}, {s(sW)}\n s_cbranch_scc1 L_va_nwb\n s_waitcnt vmcnt(0)\n buffer_wbl2 sc1\n s_waitcnt vmcnt(0)\nL_va_nwb:')
    tl(A, 1, 2, T)
    stamp_flush(A, prof)
    A.I('s_endpgm')

def helper(A):
    vG0, vX, vP, vM, D = 1, 2, 3, 4, 8
    A.label('L_helper')
    A.I(f's_load_dwordx2 {s(sX0,2)}, s[0:1], {KA_X}\n s_waitcnt lgkmcnt(0)')
    chain_common(A)
    xcc_publish(A, sROLE, 20)
    A.I(f'''
    s_mul_i32 {s(sLB)}, {s(sW)}, 1792
    v_lshlrev_b32 {v(vG0)}, 4, v0
    v_add_u32 {v(vG0)}, {s(sLB)}, {v(vG0)}
    s_mov_b32 {s(sM48)}, -1
    s_mov_b32 {s(sM48+1)}, 0xffff
    s_mul_i32 s40, {s(sW)}, 7168
    v_min_u32 {v(vX)}, 55, v0
    v_lshl_add_u32 {v(vX)}, {v(vX)}, 7, s40
    s_mul_i32 s40, {s(sW)}, 2560
    v_min_u32 {v(vP)}, 19, v0
    v_lshl_add_u32 {v(vP)}, {v(vP)}, 7, s40
    v_min_u32 {v(vM)}, 13, v0
    v_lshl_add_u32 {v(vM)}, {v(vM)}, 7, {s(sLB)}
    v_add_u32 {v(vM)}, {4*MEM_SLOT}, {v(vM)}
    v_add_u32 {v(vP)}, {PS_SLOT * (2 if 'mtouch' in OPT else 0)}, {v(vP)}
    v_mov_b32 {v(D+4)}, 0
    v_mov_b32 {v(D+5)}, 0
    v_mov_b32 {v(D+6)}, 0
    v_mov_b32 {v(D+7)}, 0
    ''')
    xcc_check(A, 'he', '-1', '-1', 20)
    wait_tiles(A, 'he', 20, 1, 'all', None, 8)
    addp(A, sMEM, sWS, MEMS_OFF); addp(A, sMT, sWS, MEMT_OFF); addp(A, sP, sWS, PS_OFF)
    addp(A, sX0, sX0, XI_SEG)
    A.I(f'''
    global_load_dword v20, {v(vX)}, {s(sX0,2)}
    global_load_dword v21, {v(vP)}, {s(sP,2)} sc1
    ''')
    addp(A, sX0, sX0, XI_SEG); addp(A, sP, sP, PS_SLOT)
    if 'xahead' in OPT:
        A.I(f'global_load_dword v20, {v(vX)}, {s(sX0,2)}'); addp(A, sX0, sX0, XI_SEG)
    A.I(f'''
L_he_step:
    s_sleep {HSLEEP}
    global_load_dwordx4 {v(D,4)}, {v(vG0)}, {s(sMEM,2)} sc1
    s_mov_b64 exec, {s(sM48,2)}
    global_load_dwordx4 {v(D+4,4)}, {v(vG0)}, {s(sMEM,2)} offset:1024 sc1
    s_mov_b64 exec, -1
    ''')
    bud(A)
    A.I(f'''
    s_waitcnt vmcnt(0)
    v_max3_u32 v16, {v(D)}, {v(D+1)}, {v(D+2)}
    v_max3_u32 v16, v16, {v(D+3)}, {v(D+4)}
    v_max3_u32 v16, v16, {v(D+5)}, {v(D+6)}
    v_max_u32 v16, v16, {v(D+7)}
    v_cmp_eq_u32 vcc, {s(sSENT)}, v16
    s_cbranch_vccnz L_he_step
    s_add_u32 {s(sSTEP)}, {s(sSTEP)}, 1
    global_store_dwordx4 {v(vG0)}, {v(D,4)}, {s(sMT,2)} sc1
    s_mov_b64 exec, {s(sM48,2)}
    global_store_dwordx4 {v(vG0)}, {v(D+4,4)}, {s(sMT,2)} offset:1024 sc1
    s_mov_b64 exec, -1
    global_load_dword v21, {v(vP)}, {s(sP,2)} sc1
    {f'global_load_dword v22, {v(vM)}, {s(sMEM,2)} sc1' if 'mtouch' in OPT else ''}
    s_cmp_ge_u32 {s(sSTEP)}, {NSTEP - ('xahead' in OPT)}
    s_cbranch_scc1 L_he_nox
    global_load_dword v20, {v(vX)}, {s(sX0,2)}
L_he_nox:
    ''')
    addp(A, sX0, sX0, XI_SEG); addp(A, sP, sP, PS_SLOT); addp(A, sMEM, sMEM, MEM_SLOT); addp(A, sMT, sMT, MEMT_SLOT)
    A.I(f'''
    s_cmp_le_u32 {s(sSTEP)}, {NSTEP - ('mtdirect' in OPT)}
    s_cbranch_scc1 L_he_step
    s_endpgm
    ''')

def fetcher(A):
    vV, vF, vM = 1, 2, 3
    NL = PFL
    per = 64 // NL
    A.label('L_fetch')
    chain_common(A)
    xcc_publish(A, sROLE, 20)
    A.I(f'''
    v_lshrrev_b32 v4, {NL.bit_length()-1}, v0
    v_and_b32 v5, {NL-1}, v0
    s_lshl_b32 s40, {s(sW)}, 13
    v_lshl_add_u32 v5, v5, 7, s40
    v_and_b32 {v(vF)}, 15, v0
    v_lshlrev_b32 {v(vF)}, 2, {v(vF)}
    v_mov_b32 {v(vM)}, 4000
    ''')
    n = (14 + per - 1) // per
    for i in range(n):
        A.I(f'v_add_u32 v6, {per*i}, v4\n v_min_u32 v6, 13, v6\n v_lshl_add_u32 {v(8+i)}, v6, 15, v5')
    xcc_check(A, 'fe', '-1', '-1', 30)
    addp(A, sMEM, sWS, MEMS_OFF); addp(A, sVX, sWS, VX_OFF + PFA * 14 * VX_SC); addp(A, sFL, sWS, FL_OFF + PFA * 256)
    A.I(f'''
L_fe_step:
    global_load_dword v24, {v(vM)}, {s(sMEM,2)} sc1
    global_load_dword v25, {v(vF)}, {s(sFL,2)} sc1
    ''')
    bud(A)
    A.I(f'''
    s_waitcnt vmcnt(0)
    v_cmp_eq_u32 vcc, {s(sSENT)}, v24
    v_cmp_eq_u32 s[40:41], 0, v25
    s_or_b64 vcc, vcc, s[40:41]
    s_cbranch_vccz L_fe_go
    s_sleep 2
    s_branch L_fe_step
L_fe_go:
    ''')
    for i in range(n): A.I(f'global_load_dword {v(26)}, {v(8+i)}, {s(sVX,2)} sc1')
    addp(A, sMEM, sMEM, MEM_SLOT); addp(A, sVX, sVX, 14 * VX_SC); addp(A, sFL, sFL, 256)
    A.I(f'''
    s_add_u32 {s(sSTEP)}, {s(sSTEP)}, 1
    s_cmp_lt_u32 {s(sSTEP)}, {NSTEP - PFA}
    s_cbranch_scc1 L_fe_step
    s_endpgm
    ''')
```

```python
from common import *
import prep
from prep import wait_tiles, sDB, DB_XCC

NSTEP = 63
CLK = 's_memrealtime'
OPT = {'poisT', 'mtouch', 'mtdirect'}
HSLEEP = 2
LIM = 60
XD = 0
VE = 4
PS_ = 0
SS = 0
AJ = 8
GX = 0
GE = 0
AGE = 99
L3P = ''
PD = 3
FA, FB, FC, FD = 5, 3, 4, 1
PFL = 16
PFA = 2
NRES = 5
HD = 3
sROLE, sW, sSTEP, sBUD, sSENT = 3, 4, 5, 6, 7
sWS, sX0, sX1, sMEM, sP, sVX, sMT, sWT = 8, 10, 12, 14, 16, 18, 20, 24
sTMP, sTMP2 = 27, 28
sM20, sMHI, sMG = 30, 32, 34
sLB, sXB, sM48 = 36, 37, 38
sDBG = 44
sXCC, sEA, sEB, sFL = 75, 64, 66, 68
BUDGET = 1 << 21

def bud(A):
    A.I(f's_add_u32 {s(sBUD)}, {s(sBUD)}, 1\n s_cmp_gt_u32 {s(sBUD)}, {BUDGET}\n s_cbranch_scc1 L_bail')

def chain_common(A):
    A.I(f'''
    s_mov_b32 {s(sSTEP)}, 0
    s_mov_b32 {s(sBUD)}, 0
    s_mov_b32 {s(sSENT)}, {SENT}
    s_mov_b32 s90, 0
    ''')

def xcc_publish(A, role, t):
    A.I(f'''
    s_getreg_b32 {s(sXCC)}, hwreg(HW_REG_XCC_ID, 0, 4)
    s_add_u32 {s(sXCC)}, {s(sXCC)}, 1
    v_mov_b32 {v(t)}, {s(role)}
    v_mov_b32 {v(t+1)}, {s(sXCC)}
    s_waitcnt vmcnt(0)
    s_barrier
    global_store_byte {v(t)}, {v(t+1)}, {s(sDB,2)} offset:{DB_XCC} sc1
    ''')

def xcc_check(A, tag, t):
    A.I(f'''
    v_min_u32 {v(t)}, {31 if 'fetch' in OPT else 30}, v0
L_{tag}_xc:
    global_load_ubyte {v(t+1)}, {v(t)}, {s(sDB,2)} offset:{DB_XCC} sc1
    ''')
    bud(A)
    A.I(f'''
    s_waitcnt vmcnt(0)
    v_cmp_eq_u32 vcc, 0, {v(t+1)}
    s_cbranch_vccnz L_{tag}_xc
    v_cmp_ne_u32 vcc, {s(sXCC)}, {v(t+1)}
    s_cmp_eq_u64 vcc, {0 if 'slow' not in OPT else -1}
    s_cselect_b32 {s(sEA)}, 1, 0
    ''')

def assist(A, tag, head, t):
    if 'noassist' in OPT: return
    wait_tiles(A, tag, t, 0, 'head', head, 1)
    A.I(f's_mul_i32 s40, {s(head)}, {MF_HEAD}'); addp(A, 42, sWS, MF_OFF + AJ * 2048); addps(A, 42, 42, 40)
    per = (14 - AJ) * 16
    tot = 14 * per
    n = (tot // 4 + 63) // 64
    A.I(f's_mul_i32 s40, {s(sW)}, {tot // 4}')
    for i in range(n):
        A.I(f'''
        v_add_u32 {v(t)}, {64*i}, v0
        v_min_u32 {v(t)}, {tot // 4 - 1}, {v(t)}
        v_add_u32 {v(t)}, s40, {v(t)}
        v_mul_u32_u24 {v(t+1)}, {(1 << 20) // per + 1}, {v(t)}
        v_lshrrev_b32 {v(t+1)}, 20, {v(t+1)}
        v_mul_u32_u24 {v(t+1)}, {224 - per}, {v(t+1)}
        v_add_lshl_u32 {v(t)}, {v(t)}, {v(t+1)}, 7
        global_load_dword {v(t+2)}, {v(t)}, s[42:43] sc1
        ''')

def mem_poll(A, tag, vG0, vPR, vD):
    A.I(f'''
L_{tag}_mp:
    s_mov_b32 m0, {s(sLB)}
L_{tag}_mpl:
    global_load_dword {v(vD)}, {v(vPR)}, {s(sMEM,2)} sc1
    global_load_lds_dwordx4 {v(vG0)}, {s(sMEM,2)} sc1
    s_mov_b64 exec, {s(sM48,2)}
    global_load_lds_dwordx4 {v(vG0)}, {s(sMEM,2)} offset:1024 sc1
    s_mov_b64 exec, -1
    ''')
    bud(A)
    A.I(f'''
    s_waitcnt vmcnt(2)
    v_cmp_eq_u32 vcc, {s(sSENT)}, {v(vD)}
    s_cbranch_vccnz L_{tag}_mpl
    s_waitcnt vmcnt(0) lgkmcnt(0)
    s_barrier
    ''')

def mem_poll_half(A, tag, vG0, vPR, vD):
    A.I(f'''
L_{tag}_mp:
    s_cmp_ge_u32 {s(sW)}, 2
    s_cbranch_scc1 L_{tag}_mpb
    s_mov_b32 m0, {s(sLB)}
L_{tag}_mpl:
    global_load_dword {v(vD)}, {v(vPR)}, {s(sMEM,2)} sc1
    global_load_lds_dwordx4 {v(vG0)}, {s(sMEM,2)} sc1
    global_load_lds_dwordx4 {v(vG0)}, {s(sMEM,2)} offset:1024 sc1
    global_load_lds_dwordx4 {v(vG0)}, {s(sMEM,2)} offset:2048 sc1
    s_mov_b32 exec_hi, 0
    global_load_lds_dwordx4 {v(vG0)}, {s(sMEM,2)} offset:3072 sc1
    s_mov_b64 exec, -1
    ''')
    bud(A)
    A.I(f'''
    s_waitcnt vmcnt(4)
    v_cmp_eq_u32 vcc, {s(sSENT)}, {v(vD)}
    s_cbranch_vccnz L_{tag}_mpl
    s_waitcnt vmcnt(0)
L_{tag}_mpb:
    s_waitcnt lgkmcnt(0)
    s_barrier
    ''')

def mem_poll_setup(A, vG0, vPR, t, half=False):
    A.I(f'''
    s_mul_i32 {s(sLB)}, {s(sW)}, {3584 if half else 1792}
    v_lshlrev_b32 {v(vG0)}, 4, v0
    v_add_u32 {v(vG0)}, {s(sLB)}, {v(vG0)}
    s_mov_b32 {s(sM48)}, -1
    s_mov_b32 {s(sM48+1)}, 0xffff
    v_min_u32 {v(t)}, {27 if half else 13}, v0
    v_lshlrev_b32 {v(t)}, 7, {v(t)}
    v_add3_u32 {v(vPR)}, {s(sLB)}, {v(t)}, 64
    ''')

def sreg(i): return 48 + 2 * i if i < 8 else 76 + 2 * (i - 8)

def stamp(A, idx, prof):
    if not prof: return
    A.I(f'{CLK} {s(sreg(idx), 2)}')

def stamp_flush(A, prof):
    if not prof: return
    A.I('s_waitcnt lgkmcnt(0)')
    for i in range(16): A.I(f'v_writelane_b32 v21, {s(sreg(i))}, {i}')
    A.I(f'''
    v_mbcnt_lo_u32_b32 v20, -1, 0
    v_lshlrev_b32 v20, 2, v20
    s_mov_b64 exec, 0xffff
    global_store_dword v20, v21, {s(sDBG,2)}
    s_mov_b64 exec, -1
    ''')
    addp(A, sDBG, sDBG, 64)

def idx_setup(A, vIDX, T):
    A.I(f'''
    v_and_b32 {v(T)}, 15, v0
    v_lshrrev_b32 {v(T+1)}, 4, v0
    v_and_b32 {v(T+2)}, 7, v0
    v_mov_b32 {v(vIDX)}, 0x4444
    v_mov_b32 {v(T+3)}, 0xeeee
    v_cmp_lt_u32 vcc, 7, {v(T)}
    v_cndmask_b32 {v(vIDX)}, {v(vIDX)}, {v(T+3)}, vcc
    ''')

def score(A, prof=0):
    L_MEM, L_TB, L_SB, L_RW, L_XB = 0, 8192, 20480, 26624, 65536
    vIDX, vG0, vXB, vPR, vAF0, vAF1, vMB0, vMB1, vTW, vTR, vSW, vSR, vPS, vX0, vX1, vRW, vSM, vSN = range(1, 19)
    vCK = 19; vLO = 0; sHI = 26
    RING, XF, R, TOPC, TMP, SACC, TACC, WV = 20, 52, 84, 108, 112, 116, 128, 144
    MEMB, TOPA, TOPB = R, R + 16, R + 20
    import layout
    if L3P: layout.L3T[:] = [int(c, 16) for c in str(L3P)]
    seq = score_seq()
    def wreg(i):
        if i < 3: return v(R + 8 * i, 8)
        if i < 35: return a_(8 * (i - 3), 8)
        return v(WV + 8 * (i - 35), 8)
    lg = Cnt(A, 'lgkmcnt', 15)
    A.label('L_score')
    A.I(f's_load_dwordx2 {s(sX0,2)}, s[0:1], {KA_X}')
    chain_common(A)
    T = 20
    idx_setup(A, vIDX, T)
    mem_poll_setup(A, vG0, vPR, T + 4)
    A.I(f'''
    v_lshlrev_b32 {v(T+4)}, 7, {v(T+1)}
    v_lshl_add_u32 {v(T+4)}, {v(T+2)}, 4, {v(T+4)}
    s_and_b32 {s(sTMP)}, {s(sW)}, 1
    s_mul_i32 {s(sTMP2)}, {s(sTMP)}, {7*512}
    v_mov_b32 {v(vAF0)}, {v(T+4)}
    v_add_u32 {v(vAF1)}, {s(sTMP2)}, {v(T+4)}
    s_lshr_b32 {s(sTMP2)}, {s(sW)}, 1
    s_mul_i32 {s(sTMP2)}, {s(sTMP2)}, 7
    s_lshl_b32 {s(sTMP)}, {s(sTMP)}, 2
    s_add_u32 {s(sTMP)}, {s(sTMP)}, {s(sTMP2)}
    s_add_u32 {s(sTMP2)}, {s(sTMP2)}, 3
    s_lshl_b32 s40, {s(sTMP)}, 9
    s_lshl_b32 s41, {s(sTMP2)}, 9
    v_add_u32 {v(vMB0)}, s40, {v(T+4)}
    v_add_u32 {v(vMB1)}, s41, {v(T+4)}
    s_lshl_b32 s40, {s(sTMP)}, 6
    s_lshl_b32 s41, {s(sTMP2)}, 6
    v_lshrrev_b32 {v(T+4)}, 2, v0
    v_mul_u32_u24 {v(T+4)}, 896, {v(T+4)}
    v_lshrrev_b32 {v(T+5)}, 5, v0
    v_lshlrev_b32 {v(T+5)}, 1, {v(T+5)}
    v_and_b32 {v(T+6)}, 3, v0
    v_xor_b32 {v(T+5)}, {v(T+5)}, {v(T+6)}
    v_lshl_add_u32 {v(T+4)}, {v(T+5)}, 4, {v(T+4)}
    v_add_u32 {v(vX0)}, s40, {v(T+4)}
    v_add_u32 {v(vX1)}, s41, {v(T+4)}
    s_lshl_b32 {s(sXB)}, {s(sW)}, 13
    s_add_u32 {s(sXB)}, {s(sXB)}, {L_XB}
    v_lshrrev_b32 {v(T+4)}, 3, {v(T)}
    v_lshlrev_b32 {v(T+4)}, 1, {v(T+4)}
    v_xor_b32 {v(T+4)}, {v(T+4)}, {v(T+1)}
    v_lshl_add_u32 {v(T+4)}, {v(T)}, 2, {v(T+4)}
    v_lshl_add_u32 {v(vXB)}, {v(T+4)}, 4, {s(sXB)}
    s_mul_i32 s40, {s(sW)}, 3072
    s_add_u32 s40, s40, {L_TB}
    v_mul_u32_u24 {v(T+5)}, 192, {v(T+1)}
    v_lshl_add_u32 {v(T+5)}, {v(T)}, 3, {v(T+5)}
    v_add_u32 {v(vTW)}, s40, {v(T+5)}
    v_and_b32 {v(T+5)}, 1, v0
    v_mul_u32_u24 {v(T+5)}, 192, {v(T+5)}
    v_lshrrev_b32 {v(T+6)}, 2, v0
    v_lshl_add_u32 {v(T+5)}, {v(T+6)}, 3, {v(T+5)}
    v_add_u32 {v(vTR)}, s40, {v(T+5)}
    s_mul_i32 s40, {s(sW)}, 1408
    s_add_u32 s40, s40, {L_SB}
    v_mul_u32_u24 {v(T+5)}, 176, {v(T+2)}
    v_add_u32 {v(T+5)}, s40, {v(T+5)}
    v_mov_b32 {v(vCK)}, {v(T+5)}
    v_lshrrev_b32 {v(T+6)}, 3, {v(T)}
    v_and_b32 {v(T+7)}, 1, {v(T+1)}
    v_mul_u32_u24 {v(T+7)}, 704, {v(T+7)}
    v_lshrrev_b32 {v(T+8)}, 1, {v(T+1)}
    v_lshl_add_u32 {v(T+7)}, {v(T+8)}, 6, {v(T+7)}
    v_lshl_add_u32 {v(T+7)}, {v(T)}, 2, {v(T+7)}
    v_add3_u32 {v(vSW)}, s40, {v(T+7)}, 32
    v_and_b32 {v(T+7)}, 1, {v(T+1)}
    v_lshlrev_b32 {v(T+7)}, 4, {v(T+7)}
    v_lshrrev_b32 {v(T+8)}, 1, {v(T+1)}
    v_lshl_add_u32 {v(T+8)}, {v(T+8)}, 1, {v(T+6)}
    v_lshl_add_u32 {v(T+7)}, {v(T+8)}, 2, {v(T+7)}
    v_add_u32 {v(vSM)}, {v(T+5)}, {v(T+7)}
    v_lshrrev_b32 {v(T+5)}, 5, v0
    v_lshl_add_u32 {v(T+5)}, {s(sW)}, 1, {v(T+5)}
    v_and_b32 {v(T+6)}, 31, v0
    v_min_u32 {v(T+6)}, 20, {v(T+6)}
    v_mul_u32_u24 {v(T+7)}, 176, {v(T+5)}
    v_lshl_add_u32 {v(T+7)}, {v(T+6)}, 3, {v(T+7)}
    v_add_u32 {v(vSR)}, {L_SB}, {v(T+7)}
    s_lshr_b32 s40, {s(sROLE)}, 2
    s_mul_i32 s40, s40, 2560
    s_and_b32 s41, {s(sROLE)}, 1
    s_bfe_u32 s42, {s(sROLE)}, 0x10001
    s_lshl_b32 s43, s41, 7
    s_lshl_b32 s46, s42, 5
    s_add_u32 s43, s43, s46
    s_add_u32 s43, s43, s40
    s_add_u32 s43, s43, 2048
    v_and_b32 {v(T+7)}, 1, {v(T+6)}
    v_lshlrev_b32 {v(T+7)}, 8, {v(T+7)}
    v_lshrrev_b32 {v(T+8)}, 1, {v(T+6)}
    v_lshl_add_u32 {v(T+7)}, {v(T+8)}, 6, {v(T+7)}
    v_lshl_add_u32 {v(T+7)}, {v(T+5)}, 2, {v(T+7)}
    v_add_u32 {v(T+7)}, s43, {v(T+7)}
    s_lshl_b32 s43, s42, 10
    s_lshl_b32 s46, s41, 9
    s_add_u32 s43, s43, s46
    s_add_u32 s43, s43, s40
    v_subrev_u32 {v(T+8)}, 4, {v(T+6)}
    v_lshrrev_b32 {v(T+9)}, 2, {v(T+8)}
    v_and_b32 {v(T+8)}, 3, {v(T+8)}
    v_lshlrev_b32 {v(T+8)}, 2, {v(T+8)}
    v_lshl_add_u32 {v(T+8)}, {v(T+9)}, 7, {v(T+8)}
    v_lshl_add_u32 {v(T+8)}, {v(T+5)}, 4, {v(T+8)}
    v_add_u32 {v(T+8)}, s43, {v(T+8)}
    v_cmp_gt_u32 vcc, 4, {v(T+6)}
    v_cndmask_b32 {v(vPS)}, {v(T+8)}, {v(T+7)}, vcc
    s_mul_i32 s40, {s(sW)}, 6144
    s_add_u32 s40, s40, {L_RW}
    v_lshl_add_u32 {v(vRW)}, v0, 4, s40
    s_mov_b32 {s(sM20)}, 0x000fffff
    s_mov_b32 {s(sM20+1)}, 0x000fffff
    s_mov_b32 {s(sMHI)}, 0xff00ff00
    s_mov_b32 {s(sMHI+1)}, 0xff00ff00
    s_mov_b32 {s(sMG)}, 0
    s_mov_b32 {s(sMG+1)}, -1
    v_mov_b32 {v(vSN)}, {SENT}
    ''')
    addp(A, sP, sWS, PS_OFF); addp(A, 40, sP, PS_SLOT)
    A.I(f'''
    s_mov_b64 exec, {s(sM20,2)}
    global_store_dword {v(vPS)}, {v(vSN)}, {s(sP,2)} sc1
    global_store_dword {v(vPS)}, {v(vSN)}, s[40:41] sc1
    s_mov_b64 exec, -1
    s_waitcnt lgkmcnt(0)
    ''')
    xcc_publish(A, sROLE, T + 12)
    addp(A, sX1, sX0, 16 * 896)
    def xdma():
        for k in range(8):
            L, t = k >> 1, k & 1
            A.I(f's_add_u32 m0, {s(sXB)}, {k*1024 - (64*L if L < 3 else 0)}')
            base = s(sX0 if t == 0 else sX1, 2)
            A.I(f'global_load_lds_dwordx4 {v(vX0)}, {base} offset:{64*L}' if L < 3 else f'global_load_lds_dwordx4 {v(vX1)}, {base}')
        addp(A, sX0, sX0, XI_SEG); addp(A, sX1, sX1, XI_SEG)
        if XB2: A.I(f's_xor_b32 {s(sXB)}, {s(sXB)}, 0x8000')
    def xread():
        for k in range(8): A.I(f'ds_read_b128 {v(RING+4*k,4)}, {v(vXB)} offset:{k*1024}')
        for L in range(4):
            A.I(f's_waitcnt lgkmcnt({6-2*L})')
            for k in range(8): A.I(f'v_mov_b32 {v(XF+8*L+k)}, {v(RING+8*L+4*(k&1)+(k>>1))}')
        for k in range(4): A.I(f'v_mov_b32 {v(SACC+4+k)}, 0')
        if XB2: A.I(f'v_xor_b32 {v(vXB)}, 0x8000, {v(vXB)}')
    XB2 = 'nox2' not in OPT
    SC = 'sc' in OPT
    ixw = {x: i for i, x in enumerate(seq)}
    def wq(i, hf):
        if i < 3: return ('v', R + 8 * i + 4 * hf)
        if i < 35: return ('a', 8 * (i - 3) + 4 * hf)
        return ('v', WV + 8 * (i - 35) + 4 * hf)
    def rq(q, n=4): return (v if q[0] == 'v' else a_)(q[1], n)
    if SC:
        VREG = [wq(i, hf) for i, (L, jj) in enumerate(seq) if L >= 2 and i >= 3 for hf in range(2)][:32]
        UR, TC, ACC, vUS, vVS, vL, vUB, vUR = 20, 44, 52, 108, 110, 114, 118, 122
        sQ, sK, sL = 46, 48, 50
        A.I(f'''
        s_load_dwordx4 s[52:55], s[0:1], {KA_WQ}
        v_lshrrev_b32 v20, 5, v0
        v_and_b32 v21, 31, v0
        v_and_b32 v22, 15, v0
        v_lshrrev_b32 v23, 4, v0
        s_and_b32 s40, {s(sW)}, 1
        s_lshl_b32 s40, s40, 1
        s_lshl_b32 s41, {s(sW)}, 3
        ''')
        for b in range(2):
            A.I(f'''
            v_add_u32 v24, {2*b}, v20
            v_lshlrev_b32 v25, 2, v24
            v_xor_b32 v25, v25, v21
            v_lshlrev_b32 v26, 13, v24
            v_lshl_add_u32 {v(vVS+b)}, v25, 4, v26
            v_xor_b32 {v(vVS+2+b)}, 32, {v(vVS+b)}
            v_xor_b32 v25, s40, v25
            v_add_u32 v24, s41, v24
            v_lshlrev_b32 v26, 13, v24
            v_lshl_add_u32 {v(vUS+b)}, v25, 4, v26
            ''')
        A.I(f'''
        v_and_b32 v24, 3, v22
        v_lshlrev_b32 v25, 2, v24
        v_bfe_u32 v26, v22, 2, 1
        v_lshl_add_u32 v25, v26, 1, v25
        v_lshrrev_b32 v27, 2, v22
        v_lshl_add_u32 v27, v27, 3, v24
        v_lshlrev_b32 v27, 9, v27
        v_lshlrev_b32 v26, 4, v26
        v_lshrrev_b32 v28, 3, v22
        v_lshl_add_u32 v26, v28, 2, v26
        v_add_u32 v26, v26, v24
        v_lshlrev_b32 v26, 9, v26
        s_lshl_b32 {s(sL)}, {s(sW)}, 15
        v_add_u32 v26, {s(sL)}, v26
        ''')
        for b in range(4):
            A.I(f'''
            v_add_u32 v24, {4*b}, v23
            v_xor_b32 v24, v24, v25
            v_lshl_add_u32 {v(vUB+b)}, v24, 4, v27
            v_lshl_add_u32 {v(vL+b)}, v24, 4, v26
            ''')
        A.I(f'''
        s_lshl_b32 s40, {s(sROLE)}, 9
        s_lshl_b32 s41, {s(sTMP)}, 18
        s_add_u32 s41, s41, s40
        s_waitcnt lgkmcnt(0)
        ''')
        addps(A, sQ, 52, 40); addps(A, sK, 54, 41)
        vm = Cnt(A, 'vmcnt', 63); l2 = Cnt(A, 'lgkmcnt', 15)
        for k in range(32):
            A.I(f's_add_u32 m0, {s(sL)}, {k*1024}')
            A.I(f'global_load_lds_dwordx4 {v(vVS + (k&1) + 2*((k>>3)&1))}, {s(sK,2)} {prep.LDNT}'); vm.add('V')
            if k & 1: addp(A, sK, sK, 32768)
        A.I(f's_lshl_b32 {s(sL)}, {s(sW)}, 12')
        slot = lambda j: [8, 9][j] if j < 2 else (j - 2) % 10
        def issueU(j):
            for kk in range(4):
                A.I(f's_add_u32 m0, {s(sL)}, {slot(j)*16384 + kk*1024}')
                A.I(f'global_load_lds_dwordx4 {v(vUS + (kk&1))}, {s(sQ,2)} {prep.LDNT}'); vm.add(('U', j))
                if kk == 1: addp(A, sQ, sQ, 32768)
            addp(A, sQ, sQ, 32 * 8192 - 32768)
        issueU(0); issueU(1)
        vm.wait('V')
        for t in range(4):
            for kk in range(8):
                A.I(f'ds_read_b128 {rq(VREG[8*t+kk])}, {v(vL+(kk&3))} offset:{(t>>1)*16384 + (t&1)*4096 + (kk>>2)*256}')
            A.I('s_waitcnt lgkmcnt(0)')
        tl(A, 1, 6, 44)
        A.I('s_barrier')
        for j in range(2, 10): issueU(j)
        for j in range(14):
            for b in range(4): A.I(f'v_add_u32 {v(vUR+b)}, {slot(j)*16384}, {v(vUB+b)}')
            vm.wait(('U', j)); A.I('s_barrier')
            if 1 <= j <= 4: issueU(j + 9)
            if j == 7: tl(A, 1, 7, 44)
            def rdu(kk):
                for tp in range(2):
                    A.I(f'ds_read_b128 {v(UR+8*(kk%3)+4*tp,4)}, {v(vUR+(kk&3))} offset:{tp*2048 + (kk>>2)*256}'); l2.add((kk, tp))
            rdu(0); rdu(1)
            for kk in range(8):
                for tp in range(2):
                    l2.wait((kk, tp))
                    for t in range(4):
                        acc = v(ACC + 8*t + 4*tp, 4)
                        A.I(f'v_mfma_f32_16x16x32_bf16 {acc}, {v(UR+8*(kk%3)+4*tp,4)}, {rq(VREG[8*t+kk])}, {acc if kk else 0}')
                        if tp == 0 and t == 0 and kk + 2 < 8: rdu(kk + 2)
            A.I(f's_mov_b32 s40, {f32(CSC)}\n s_mov_b32 s41, s40')
            for e in range(2):
                for tp in range(2):
                    q = wq(ixw[(e, j)], tp)
                    for k in range(2):
                        for y in range(2):
                            r = ACC + 8*(2*e+y) + 4*tp + 2*k
                            A.I(f'v_pk_mul_f32 {v(r,2)}, {v(r,2)}, s[40:41]')
                    for k in range(2):
                        for y in range(2):
                            r = ACC + 8*(2*e+y) + 4*tp + 2*k
                            d = q[1] + 2*k + y if q[0] == 'v' else TC + 2*k + y
                            A.I(f'v_cvt_pk_bf16_f32 {v(d)}, {v(r)}, {v(r+1)}')
                    if q[0] == 'a':
                        for k in range(4): A.I(f'v_accvgpr_write_b32 {a_(q[1]+k)}, {v(TC+k)}')
        A.I('s_barrier')
        for k in range(6): A.I(f'ds_write_b128 {v(vRW)}, {v(R+4*k,4)} offset:{k*1024}')
        tl(A, 1, 5, T)
    A.I(f'''
    v_mov_b32 {v(T+6)}, 0xff800000
    v_mov_b32 {v(T+7)}, 0xff800000
    ds_write_b64 {v(vCK)}, {v(T+6,2)} offset:160
    ''')
    xdma()
    if XB2: xdma()
    A.I(f'''
    s_mul_i32 s40, {s(sROLE)}, {MF_HEAD}
    s_and_b32 s41, {s(sW)}, 1
    s_mul_i32 s41, s41, {7*2048}
    s_mul_i32 s42, {s(sTMP)}, {14*2048}
    s_mul_i32 s43, {s(sTMP2)}, {14*2048}
    v_lshlrev_b32 {v(T+8)}, 4, v0
    v_add_u32 {v(T+9)}, s42, {v(T+8)}
    s_add_u32 s46, s43, s41
    v_add_u32 {v(T+11)}, s46, {v(T+8)}
    ''')
    addp(A, sWT, sWS, MF_OFF); addps(A, sWT, sWT, 40)
    def wload(i):
        L, jj = seq[i]
        addp(A, 40, sWT, ((L % 3) * 14 + jj) * 2048)
        for hf in range(2): A.I(f'global_load_dwordx4 {rq(wq(i, hf))}, {v(T + 11 if L == 3 else T + 9)}, s[40:41] offset:{hf*1024} sc1')
    if SC or 'noprog' in OPT:
        xcc_check(A, 'sc0', T + 12)
        wait_tiles(A, 'sc', T + 12, 0, 'head', sROLE)
        tl(A, 1, 4, T + 12)
        for i, (L, jj) in enumerate(seq):
            if SC and L < 2: continue
            wload(i)
            if i > 23: A.I('s_waitcnt vmcnt(42)')
    else:
        addp(A, sVX, sWS, PF_OFF)
        A.I(f'''
        s_lshl_b32 s40, {s(sROLE)}, 5
        v_bfe_u32 {v(T+12)}, v0, 3, 1
        v_lshl_add_u32 {v(T+12)}, {v(T+12)}, 9, s40
        v_and_b32 {v(T+13)}, 7, v0
        v_lshl_add_u32 {v(T+12)}, {v(T+13)}, 2, {v(T+12)}
        s_mov_b32 s46, 0x7f
L_sc_w:
        global_load_dword {v(T+13)}, {v(T+12)}, {s(sVX,2)} sc1
        ''')
        bud(A)
        A.I(f'''
        s_waitcnt vmcnt(0)
        v_cmp_ne_u32 vcc, 0, {v(T+13)}
        s_lshr_b32 s47, vcc_lo, 8
        s_and_b32 s47, s47, vcc_lo
        s_and_b32 s47, s47, s46
        s_andn2_b32 s46, s46, s47
        ''')
        for jb in range(7):
            A.I(f's_bitcmp0_b32 s47, {jb}\n s_cbranch_scc1 L_sc_w{jb}\n s_waitcnt vmcnt(48)')
            for j in (2 * jb, 2 * jb + 1):
                for L in range(3): wload(ixw[(L, j)])
            A.label(f'L_sc_w{jb}')
        A.I(f's_cmp_lg_u32 s46, 0\n s_cbranch_scc1 L_sc_w\n s_waitcnt vmcnt(48)')
        tl(A, 1, 4, T + 14)
        for jj in range(7): wload(ixw[(3, jj)])
    xcc_check(A, 'sc', T + 12)
    if not SC:
        for k in range(6): A.I(f'ds_write_b128 {v(vRW)}, {v(R+4*k,4)} offset:{k*1024}')
    xread()
    addp(A, sMEM, sWS, MEMS_OFF)
    if prof:
        A.I(f's_lshl_b32 s40, {s(sROLE)}, 2\n s_add_u32 s40, s40, {s(sW)}\n s_lshl_b32 s40, s40, 12')
        addp(A, sDBG, sWS, END_OFF); addps(A, sDBG, sDBG, 40)
    for k in range(16): A.I(f'v_mov_b32 {v(TACC+k)}, 0')
    A.I(f'''
    v_and_b32 {v(T)}, 16, v0
    v_cmp_eq_u32 vcc, 0, {v(T)}
    v_mov_b32 {v(T)}, {f32(2.0 ** -LIM)}
    v_cndmask_b32 {v(vLO)}, 0, {v(T)}, vcc
    s_mov_b32 {s(sHI)}, {f32(2.0 ** (LIM - 1))}
    s_waitcnt vmcnt(0) lgkmcnt(0)
    ''')
    tl(A, 1, 1, T)
    if GX:
        A.I(f'''
L_gx:
        s_memrealtime s[40:41]
        s_waitcnt lgkmcnt(0)
        s_sub_u32 s40, s40, s92
        s_cmp_lt_u32 s40, {GX*100}
        s_cbranch_scc1 L_gx
        ''')
    A.I(f's_cmp_eq_u32 {s(sEA)}, 0\n s_cbranch_scc1 L_sd_step')
    def loop(tg, sc):
        A.label(f'L_{tg}_step')
        stamp(A, 0, prof)
        if prof: A.I('s_memtime s[62:63]')
        mem_poll(A, tg, vG0, vPR, TMP)
        stamp(A, 1, prof)
        lg.clear()
        def rdfrag(jj):
            A.I(f'ds_read_b128 {v(RING + 4*(jj%8), 4)}, {v(vAF0)} offset:{jj*512}'); lg.add(('f', jj))
        GR = [SACC, SACC + 8]
        def rdg(jj):
            if 'nog' in OPT: return
            A.I(f'ds_read_b128 {v(GR[jj&1], 4)}, {v(vAF1)} offset:{jj*512}'); lg.add(('g', jj))
        def rdmemb(L):
            if 'nomb' in OPT: return
            ad = f'{v(vMB0)} offset:{L*512}' if L < 3 else f'{v(vMB1)}'
            A.I(f'ds_read_b128 {v(MEMB + 4*L, 4)}, {ad}'); lg.add(('m', L))
        def cvt(L, k): A.I(f'v_cvt_pk_bf16_f32 {v(TMP + 2*(L&1) + k)}, {v(TACC+4*L+2*k)}, {v(TACC+4*L+2*k+1)}')
        def twr(L):
            A.I(f'ds_write_b64 {v(vTW)}, {v(TMP + 2*(L&1), 2)} offset:{L*768}'); lg.add(('w', L))
        TOPD = RING + 4 * (8 % 8)
        top = {0: TOPA, 1: TOPB, 2: TOPD, 3: TOPC}
        def trr(L):
            A.I(f'ds_read_b64_tr_b16 {v(top[L], 2)}, {v(vTR)} offset:{L*768}'); lg.add(('x', L))
            A.I(f'ds_read_b64_tr_b16 {v(top[L]+2, 2)}, {v(vTR)} offset:{L*768+384}'); lg.add(('t', L))
        def smm1(L, t, first=False):
            lg.wait(('m', L)); lg.wait(('t', L))
            if t == 0: A.I(f'v_mfma_f32_16x16x32_bf16 {v(SACC,4)}, {v(MEMB + 4*L, 4)}, {v(top[L],4)}, {0 if first else v(SACC,4)}')
            else: A.I(f'v_smfmac_f32_16x16x64_bf16 {v(SACC+4,4)}, {v(top[L],4)}, {v(XF + 8*L, 8)}, {v(vIDX)}')
        def chk(j0, first=False):
            if 'nochk' in OPT and not first: return
            a, b = v(RING + 4*(j0 % 8)), v(RING + 4*((j0+1) % 8))
            if first: A.I(f'v_max_u32 {v(vCK)}, {a}, {b}')
            else: A.I(f'v_max3_u32 {v(vCK)}, {a}, {b}, {v(vCK)}')
        fill = {i: [] for i in range(49)}
        ix = {x: i for i, x in enumerate(seq)}
        fill[0].append(lambda: rdg(0)); fill[1].append(lambda: rdfrag(2)); fill[ix[(1, 1)]].append(lambda: rdg(1))
        for k in range(3, 8): fill[ix[(0, k - PD)]].append(lambda k=k: rdfrag(k))
        for k in range(5): fill[ix[(3, k)]].append(lambda k=k: rdg(k + 2))
        for k in range(6): fill[ix[(2, k)]].append(lambda k=k: rdfrag(8 + k))
        e3 = ix[(3, 6)]
        if 'nol3' not in OPT: fill[e3 + 2].append(lambda: cvt(3, 0)); fill[e3 + 3].append(lambda: cvt(3, 1)); fill[e3 + 5].append(lambda: twr(3)); fill[e3 + 6].append(lambda: trr(3))
        for k, L in enumerate([3, 0, 1, 2]): fill[ix[(0, 10 + k)]].append(lambda L=L: rdmemb(L))
        for j0 in range(0, 14, 2):
            i = ix[(0, j0 + 1)]
            while i in (e3 + 2, e3 + 3): i += 1
            fill[i].append(lambda j0=j0: chk(j0, j0 == 0))
        fill[42].append(lambda: A.I(f'v_cmp_eq_u32 vcc, {s(sSENT)}, {v(vCK)}'))
        fill[43].append(lambda: cvt(0, 0)); fill[44].append(lambda: cvt(0, 1))
        fill[45] += [lambda: twr(0), lambda: cvt(1, 0)]; fill[46] += [lambda: trr(0), lambda: cvt(1, 1)]
        fill[47].append(lambda: twr(1)); fill[48].append(lambda: trr(1))
        fill[ix[(1, 5)]].insert(0, lambda: addp(A, 40, sP, 2 * PS_SLOT))
        fill[ix[(1, 6)]].insert(0, lambda: A.I(f's_mov_b64 exec, {s(sM20,2)}\n global_store_dword {v(vPS)}, {v(vSN)}, s[40:41] {sc}\n s_mov_b64 exec, -1'))
        rdfrag(0); rdfrag(1)
        for i, (L, jj) in enumerate(seq):
            lg.now = i; lg.wait_old(('f', jj) if L < 3 else ('g', jj), AGE)
            A.I(f'v_smfmac_f32_16x16x64_bf16 {v(TACC+4*L,4)}, {v(RING+4*(jj%8) if L < 3 else GR[jj&1],4)}, {wreg(i)}, {v(vIDX)}')
            if i == 0: stamp(A, 8, prof > 1)
            if i == 24: stamp(A, 9, prof > 1)
            for f in fill[i]: f()
        stamp(A, 2, prof > 1)
        smm1(3, 1); smm1(3, 0, True)
        cvt(2, 0); cvt(2, 1); twr(2); trr(2)
        A.I(f's_cbranch_vccnz L_{tg}_redo')
        for L in (0, 1): smm1(L, 1); smm1(L, 0)
        smm1(2, 0); smm1(2, 1)
        stamp(A, 10, prof > 1)
        Z = RING + 4
        A.I(f'''
        v_cndmask_b32 {v(Z)}, {v(SACC)}, {v(SACC+1)}, {s(sMHI,2)}
        v_cndmask_b32 {v(Z+1)}, {v(SACC+2)}, {v(SACC+3)}, {s(sMHI,2)}
        v_cndmask_b32 {v(Z)}, {v(Z)}, {v(Z+1)}, {s(sMG,2)}
        ds_write_b32 {v(vSM)}, {v(Z)}
        ds_write2_b32 {v(vSW)}, {v(SACC+4)}, {v(SACC+5)} offset0:0 offset1:44
        ds_write2_b32 {v(vSW)}, {v(SACC+6)}, {v(SACC+7)} offset0:88 offset1:132
        ''')
        stamp(A, 11, prof > 1)
        for k in range(FA): A.I(f'v_mov_b32 {v(TACC+k)}, 0')
        A.I('s_waitcnt lgkmcnt(0)')
        stamp(A, 12, prof > 1)
        A.I('s_barrier')
        stamp(A, 3, prof)
        for k in range(4): A.I(f'ds_read_b64 {v(Z+2*k,2)}, {v(vSR)} offset:{k*1408}')
        for k in range(FA, FA + FB): A.I(f'v_mov_b32 {v(TACC+k)}, 0')
        E, M = Z + 8, Z + 10
        A.I(f'''
        s_waitcnt lgkmcnt(2)
        v_pk_add_f32 {v(Z,2)}, {v(Z,2)}, {v(Z+2,2)}
        s_waitcnt lgkmcnt(0)
        v_pk_add_f32 {v(Z+4,2)}, {v(Z+4,2)}, {v(Z+6,2)}
        v_pk_add_f32 {v(Z,2)}, {v(Z,2)}, {v(Z+4,2)}
        ''')
        stamp(A, 13, prof > 1)
        def summ(a, check=False):
            A.I(f'''
            v_exp_f32 {v(E)}, {v(a)}
            v_exp_f32 {v(E+1)}, {v(a+1)}
            v_add_f32 {v(M)}, {v(E)}, {v(E+1)}
            ''')
            for k in (8, 4, 2, 1): A.I(f'v_add_f32_dpp {v(M)}, {v(M)}, {v(M)} {dpp(k)}')
            A.I(f'v_mov_b32 {v(M+1)}, {v(M)}')
            if check: A.I(f'v_med3_f32 {v(M+3)}, {v(M)}, {v(vLO)}, {s(sHI)}\n v_cmp_neq_f32 vcc, {v(M+3)}, {v(M)}')
            A.I(f'''
            v_permlane16_swap_b32 {v(M)}, {v(M+1)}
            v_add_f32 {v(M)}, {v(M)}, {v(M+1)}
            ''')
        def truemax():
            A.I(f'v_max_f32 {v(M)}, {v(Z)}, {v(Z+1)}')
            for k in (8, 4, 2, 1): A.I(f'v_max_f32_dpp {v(M)}, {v(M)}, {v(M)} {dpp(k)}')
            A.I(f'''
            v_mov_b32 {v(M+1)}, {v(M)}
            v_permlane16_swap_b32 {v(M)}, {v(M+1)}
            v_max_f32 {v(M)}, {v(M)}, {v(M+1)}
            v_sub_f32 {v(E)}, {v(Z)}, {v(M)}
            v_sub_f32 {v(E+1)}, {v(Z+1)}, {v(M)}
            ''')
            summ(E)
        def norm():
            A.I(f'''
            v_rcp_f32 {v(M+2)}, {v(M)}
            s_mov_b64 exec, {s(sM20,2)}
            v_pk_mul_f32 {v(E,2)}, {v(E,2)}, {v(M+2,2)} op_sel_hi:[1,0]
            v_cvt_pk_bf16_f32 {v(E)}, {v(E)}, {v(E+1)}
            ''')
        if 'max' in OPT: truemax(); norm()
        else: summ(Z, True); stamp(A, 14, prof > 1); norm(); A.I(f's_cbranch_vccnz L_{tg}_max')
        A.label(f'L_{tg}_norm')
        A.I(f'global_store_dword {v(vPS)}, {v(E)}, {s(sP,2)} {sc}')
        stamp(A, 4, prof)
        A.I(f's_mov_b64 exec, -1\n s_add_u32 {s(sSTEP)}, {s(sSTEP)}, 1\n s_cmp_ge_u32 {s(sSTEP)}, {NSTEP}\n s_cbranch_scc1 L_sc_end')
        if XB2: A.I(f's_cmp_ge_u32 {s(sSTEP)}, {NSTEP-1}\n s_cbranch_scc1 L_{tg}_nox')
        if 'nox' not in OPT: xdma()
        A.label(f'L_{tg}_nox')
        for k in range(6): A.I(f'ds_read_b128 {v(R+4*k,4)}, {v(vRW)} offset:{k*1024}')
        for k in range(FA + FB, 16): A.I(f'v_mov_b32 {v(TACC+k)}, 0')
        addp(A, sP, sP, PS_SLOT); addp(A, sMEM, sMEM, MEM_SLOT)
        stamp_flush(A, prof)
        if not XB2: A.I('s_waitcnt vmcnt(0)')
        xread()
        if SS: A.I(f's_sleep {SS}')
        stamp(A, 5, prof)
        A.I(f's_branch L_{tg}_step')
        if 'max' not in OPT:
            A.label(f'L_{tg}_max'); A.I('s_mov_b64 exec, -1\n s_nop 1'); truemax(); norm(); A.I(f's_branch L_{tg}_norm')
        A.label(f'L_{tg}_redo')
        if prof: A.I(f's_add_u32 {s(sreg(15))}, {s(sreg(15))}, 1')
        A.I('s_waitcnt vmcnt(0) lgkmcnt(0)\n s_nop 15\n s_barrier')
        for k in range(6): A.I(f'ds_read_b128 {v(R+4*k,4)}, {v(vRW)} offset:{k*1024}')
        for k in range(16): A.I(f'v_mov_b32 {v(TACC+k)}, 0')
        for k in range(4): A.I(f'v_mov_b32 {v(SACC+4+k)}, 0')
        A.I(f's_branch L_{tg}_mp')
    loop('sc', ''); loop('sd', 'sc1')
    A.label('L_sc_end')
    tl(A, 1, 2, T)
    stamp_flush(A, prof)
    A.I('s_endpgm')

def value(A, prof=0):
    L_MEM, L_RB, L_WL, L_VB = 0, 8192, 16384, 131072
    DEC = 'dec' in OPT
    H3R, NR = 136, NRES
    RBW = 32 * 48
    vIDX, vG0, vCK, vPR, vAF, vWL, vV0, vV1, vPM, vPX, vSN, vRWR, vRRD, vMS, vZ, vDUM, vFL, vVB, vVP = range(1, 20)
    ARING, HRING, VXF, WACC, WX, WY, OX, OY, PF, WV = 20, 36, 60, 92, 108, 112, 116, 120, 124, 176
    lg = Cnt(A, 'lgkmcnt', 15)
    def wreg(hh, j):
        k = (hh * 14 + j) * 8
        return a_(k, 8) if k < 256 else v(WV + k - 256, 8)
    A.label('L_value')
    chain_common(A)
    T = 20
    A.I(f's_mov_b32 {s(sTMP)}, {s(sROLE)}\n s_sub_u32 {s(sROLE)}, {s(sROLE)}, 16')
    idx_setup(A, vIDX, T)
    mem_poll_setup(A, vG0, vPR, T + 4, DEC)
    A.I(f'''
    v_lshlrev_b32 {v(vAF)}, 7, {v(T+1)}
    v_lshl_add_u32 {v(vAF)}, {v(T+2)}, 4, {v(vAF)}
    s_mul_i32 s40, {s(sW)}, 28672
    s_add_u32 s40, s40, {L_WL}
    v_lshl_add_u32 {v(vWL)}, v0, 4, s40
    s_lshl_b32 s40, {s(sW)}, 13
    v_lshl_add_u32 {v(vV0)}, v0, 4, s40
    v_add_u32 {v(vV1)}, 4096, {v(vV0)}
    s_mul_i32 s40, {s(sW)}, 2560
    v_and_b32 {v(T+5)}, 1, {v(T+1)}
    v_lshl_add_u32 {v(vPX)}, v0, 4, s40
    v_lshl_add_u32 {v(vPM)}, v0, 2, s40
    v_lshlrev_b32 {v(vFL)}, 2, {v(T)}
    s_and_b32 s41, {s(sW)}, 1
    s_lshl_b32 s41, s41, 13
    v_lshl_add_u32 {v(vVP)}, v0, 4, s41
    s_add_u32 {s(sXB)}, s41, {L_VB}
    v_lshl_add_u32 {v(vVB)}, v0, 4, {s(sXB)}
    s_mul_i32 s40, {s(sW)}, {RBW}
    s_add_u32 s40, s40, {L_RB}
    v_lshrrev_b32 {v(T+7)}, 5, v0
    v_lshl_add_u32 {v(T+7)}, {v(T+7)}, 4, {v(T)}
    v_mul_u32_u24 {v(T+7)}, 48, {v(T+7)}
    v_lshl_add_u32 {v(T+7)}, {v(T+5)}, 4, {v(T+7)}
    v_add_u32 {v(vRWR)}, s40, {v(T+7)}
    s_and_b32 s40, {s(sW)}, 1
    s_lshl_b32 s40, s40, 4
    s_lshr_b32 s41, {s(sW)}, 1
    s_lshl_b32 s41, s41, 2
    s_add_u32 s40, s40, s41
    v_bfe_u32 {v(T+7)}, v0, 2, 1
    v_lshlrev_b32 {v(T+7)}, 3, {v(T+7)}
    v_and_b32 {v(T+8)}, 3, v0
    v_add3_u32 {v(T+7)}, {v(T+7)}, {v(T+8)}, s40
    v_mul_u32_u24 {v(T+7)}, 48, {v(T+7)}
    v_lshrrev_b32 {v(T+8)}, 3, v0
    v_lshl_add_u32 {v(T+7)}, {v(T+8)}, 2, {v(T+7)}
    v_add_u32 {v(vRRD)}, {L_RB}, {v(T+7)}
    s_lshl_b32 s40, {s(sROLE)}, 9
    s_lshl_b32 s41, {s(sW)}, 7
    s_add_u32 s40, s40, s41
    v_lshl_add_u32 {v(vMS)}, v0, 1, s40
    v_mov_b32 {v(vSN)}, {SENT}
    ''')
    addp(A, sMEM, sWS, MEMS_OFF); addp(A, 40, sMEM, MEM_SLOT); addp(A, 42, sMEM, 2 * MEM_SLOT)
    A.I(f'''
    global_store_short {v(vMS)}, {v(vSN)}, s[40:41] sc1
    global_store_short {v(vMS)}, {v(vSN)}, s[42:43] sc1
    ''')
    xcc_publish(A, sTMP, T + 12)
    A.I(f'''
    s_mul_i32 s40, {s(sW)}, {4*MF_HEAD}
    s_mul_i32 s41, {s(sROLE)}, {14*2048}
    s_add_u32 s40, s40, s41
    s_cmp_ge_u32 {s(sROLE)}, 8
    s_cselect_b32 {s(sTMP)}, 1, 0
    v_lshlrev_b32 {v(T+8)}, 4, v0
    ''')
    addp(A, sWT, sWS, MF_OFF + MF_MAT); addps(A, sWT, sWT, 40)
    addp(A, sVX, sWS, PF_OFF + 1024)
    A.I(f'''
    s_lshl_b32 s40, {s(sTMP)}, 9
    s_lshl_b32 s41, {s(sW)}, 7
    s_add_u32 s40, s40, s41
    v_lshl_add_u32 {v(T+12)}, {v(T+2)}, 2, s40
    ''')
    order = (3, 0, 1, 2)
    for n, hh in enumerate(order):
        if n: A.I(f's_waitcnt vmcnt(28)\n v_cmp_eq_u32 vcc, 0, {v(T+13)}\n s_cbranch_vccz L_va_w{hh}ok')
        A.I(f'L_va_w{hh}:\n global_load_dword {v(T+13)}, {v(T+12)}, {s(sVX,2)} offset:{32*hh} sc1')
        bud(A)
        A.I(f's_waitcnt vmcnt(0)\n v_cmp_eq_u32 vcc, 0, {v(T+13)}\n s_cbranch_vccnz L_va_w{hh}\nL_va_w{hh}ok:')
        if hh == 3: tl(A, 1, 4, T + 14)
        if hh == 1:
            for k in range(2 * NR, 28): A.I(f'ds_write_b128 {v(vWL)}, {v(60+4*k,4)} offset:{k*1024}')
            A.I('s_waitcnt lgkmcnt(0)')
            for k in range(8 * NR): A.I(f'v_mov_b32 {v(H3R+k)}, {v(60+k)}')
        if n < 3: A.I(f'global_load_dword {v(T+13)}, {v(T+12)}, {s(sVX,2)} offset:{32*order[n+1]} sc1')
        addp(A, 40, sWT, hh * MF_HEAD)
        for q in range(28):
            if hh == 3: dst = v(60 + 4 * q, 4)
            else:
                k = 112 * hh + 4 * q; dst = a_(k, 4) if k < 256 else v(WV + k - 256, 4)
            A.I(f'global_load_dwordx4 {dst}, {v(T+8)}, s[40:41] offset:{(q%4)*1024} sc1')
            if q % 4 == 3: addp(A, 40, 40, 4096)
    assist(A, 'va_as', sROLE, T + 12)
    xcc_check(A, 'va', T + 12)
    addp(A, sP, sWS, PS_OFF); addp(A, sFL, sWS, FL_OFF); addp(A, sMT, sWS, MEMT_OFF + 63 * MEMT_SLOT)
    A.I(f's_mul_i32 s40, {s(sROLE)}, {VX_SC}'); addp(A, sVX, sWS, VX_OFF); addps(A, sVX, sVX, 40)
    A.I('s_waitcnt vmcnt(0) lgkmcnt(0)')
    tl(A, 1, 1, T)
    def flagwait(tag, loaded):
        if loaded:
            A.I(f'v_cmp_eq_u32 vcc, 0, {v(vDUM)}\n s_cbranch_vccz L_{tag}_ok')
        A.I(f'L_{tag}:\n global_load_dword {v(vDUM)}, {v(vFL)}, {s(sFL,2)} sc1')
        bud(A)
        A.I(f'''
        s_waitcnt vmcnt(0)
        v_cmp_eq_u32 vcc, 0, {v(vDUM)}
        s_cbranch_vccnz L_{tag}
L_{tag}_ok:
        ''')
    flagwait('va_f0', False)
    tl(A, 1, 3, T)
    addp(A, sFL, sFL, 256)
    if prof:
        A.I(f's_add_u32 s40, {s(sROLE)}, 16\n s_lshl_b32 s40, s40, 2\n s_add_u32 s40, s40, {s(sW)}\n s_lshl_b32 s40, s40, 12')
        addp(A, sDBG, sWS, END_OFF); addps(A, sDBG, sDBG, 40)
    def vxload(k, force=False):
        if 'novx' in OPT and not force: return
        hh, t = k >> 1, k & 1
        A.I(f'global_load_dwordx4 {v(VXF+16*t+4*hh,4)}, {v(vV0 if hh < 2 else vV1)}, {s(sVX,2)} offset:{(hh&1)*2048+t*1024} sc1')
    def vxearly(tag):
        if not DEC:
            for k in range(VE): vxload(k)
            return
        A.I(f's_cmp_lt_u32 {s(sW)}, 2\n s_cbranch_scc1 L_{tag}')
        addp(A, 40, sVX, 4096)
        for k in range(8):
            A.I(f's_add_u32 m0, {s(sXB)}, {(k>>2)*4096}')
            A.I(f'global_load_lds_dwordx4 {v(vVP)}, {s(sVX if k < 4 else 40,2)} offset:{(k&3)*1024} sc1')
        for k in range(8): vxload(k)
        A.label(f'L_{tag}')
    def hslot(j): return [HRING, HRING + 8, HRING + 16, 168][(j - NR) % HD]
    def rdh(j):
        if j < NR or j >= 14: return
        for k in range(2):
            A.I(f'ds_read_b128 {v(hslot(j)+4*k,4)}, {v(vWL)} offset:{(2*j+k)*1024}'); lg.add(('h', j))
    def rda(j):
        A.I(f'ds_read_b128 {v(ARING+4*(j%4),4)}, {v(vAF)} offset:{j*512}'); lg.add(('a', j))
    def prep_():
        for k in range(16): A.I(f'v_mov_b32 {v(WACC+k)}, 0')
        for j in range(NR, NR + HD - 1): rdh(j)
    vxearly('va_e0')
    if 'novx' in OPT:
        for k in range(8): vxload(k, True)
    prep_()
    A.I(f's_cmp_eq_u32 {s(sEA)}, 0\n s_cbranch_scc1 L_vb_step')
    def loop(tg, sc):
        A.label(f'L_{tg}_step')
        stamp(A, 0, prof)
        (mem_poll_half if DEC else mem_poll)(A, tg, vG0, vPR, PF + 10)
        stamp(A, 1, prof)
        lg.clear()
        rda(0); rda(1); rda(2)
        addp(A, 40, sMEM, 3 * MEM_SLOT)
        A.I(f'global_store_short {v(vMS)}, {v(vSN)}, s[40:41] {sc}')
        for j in range(14):
            lg.wait(('a', j))
            for hh in range(4):
                if hh == 3: lg.wait(('h', j))
                w = wreg(hh, j) if hh < 3 else v(H3R + 8 * j, 8) if j < NR else v(hslot(j), 8)
                A.I(f'v_smfmac_f32_16x16x64_bf16 {v(WACC+4*hh,4)}, {v(ARING+4*(j%4),4)}, {w}, {v(vIDX)}' if 'now' not in OPT else 's_nop 3')
                if hh == 0 and j >= NR: rdh(j + HD - 1)
                if hh == 1 and j + 3 < 14: rda(j + 3)
                if hh == 2 and j < 8 - VE and not DEC: vxload(7 - j if 'vrev' in OPT else j + VE)
                if hh == 2 and j == 8 - VE: A.I(f'global_load_dword {v(vDUM)}, {v(vFL)}, {s(sFL,2)} sc1')
                if hh == 2:
                    if j == 0: A.I(f'v_mov_b32 {v(vCK)}, {v(ARING)}')
                    else: A.I(f'v_max_u32 {v(vCK)}, {v(vCK)}, {v(ARING+4*(j%4))}')
                if hh == 3 and j == 13: A.I(f'v_cmp_eq_u32 vcc, {s(sSENT)}, {v(vCK)}')
        A.I(f's_cbranch_vccnz L_{tg}_redo')
        if DEC:
            A.I(f's_waitcnt vmcnt(0)\n s_barrier\n s_cmp_ge_u32 {s(sW)}, 2\n s_cbranch_scc1 L_{tg}_nv')
            for k in range(8): A.I(f'ds_read_b128 {v(VXF+16*(k&1)+4*(k>>1),4)}, {v(vVB)} offset:{k*1024}')
            A.label(f'L_{tg}_nv')
        for k in range(2):
            for p in range(2):
                A.I(f'v_cvt_pk_bf16_f32 {v(WX+2*k+p)}, {v(WACC+8*p+2*k)}, {v(WACC+8*p+2*k+1)}')
                A.I(f'v_cvt_pk_bf16_f32 {v(WY+2*k+p)}, {v(WACC+8*p+4+2*k)}, {v(WACC+8*p+4+2*k+1)}')
        for k in range(4): A.I(f'v_permlane32_swap_b32 {v(WX+k)}, {v(WY+k)}')
        if DEC: A.I('s_waitcnt lgkmcnt(0)')
        stamp(A, 2, prof)
        if prof: A.I('s_waitcnt vmcnt(0)'); stamp(A, 6, prof)
        F = PF
        if 'nospec' in OPT:
            for k in range(8): A.I(f'v_mov_b32 {v(OX+k)}, 0')
        if PS_: A.I(f's_sleep {PS_}')
        A.I(f'''
L_{tg}_pp:
        global_load_dwordx4 {v(F,4)}, {v(vPX)}, {s(sP,2)} sc1
        global_load_dwordx4 {v(F+4,4)}, {v(vPX)}, {s(sP,2)} offset:1024 sc1
        global_load_dword {v(F+8)}, {v(vPM)}, {s(sP,2)} offset:2048 sc1
        global_load_dword {v(F+9)}, {v(vPM)}, {s(sP,2)} offset:2304 sc1
        ''')
        bud(A)
        if 'nospec' in OPT:
            A.I(f'''
            s_waitcnt vmcnt(0)
            v_max3_u32 {v(vCK)}, {v(F)}, {v(F+4)}, {v(F+8)}
            v_max_u32 {v(vCK)}, {v(vCK)}, {v(F+9)}
            v_cmp_eq_u32 vcc, {s(sSENT)}, {v(vCK)}
            s_cbranch_vccnz L_{tg}_pp
            v_smfmac_f32_16x16x64_bf16 {v(OX,4)}, {v(F,4)}, {v(VXF,8)}, {v(vIDX)}
            v_smfmac_f32_16x16x64_bf16 {v(OY,4)}, {v(F,4)}, {v(VXF+16,8)}, {v(vIDX)}
            v_smfmac_f32_16x16x64_bf16 {v(OX,4)}, {v(F+4,4)}, {v(VXF+8,8)}, {v(vIDX)}
            v_smfmac_f32_16x16x64_bf16 {v(OY,4)}, {v(F+4,4)}, {v(VXF+24,8)}, {v(vIDX)}
            v_smfmac_f32_16x16x32_bf16 {v(OX,4)}, {v(F+8,2)}, {v(WX,4)}, {v(vIDX)}
            v_smfmac_f32_16x16x32_bf16 {v(OY,4)}, {v(F+8,2)}, {v(WY,4)}, {v(vIDX)}
            ''')
        elif 'spec2' in OPT:
            for k in range(8): A.I(f'v_mov_b32 {v(OX+k)}, 0')
            A.I(f'''
            s_waitcnt vmcnt(0)
            v_max3_u32 {v(vCK)}, {v(F)}, {v(F+4)}, {v(F+8)}
            v_max_u32 {v(vCK)}, {v(vCK)}, {v(F+9)}
            v_cmp_eq_u32 vcc, {s(sSENT)}, {v(vCK)}
            v_smfmac_f32_16x16x64_bf16 {v(OX,4)}, {v(F,4)}, {v(VXF,8)}, {v(vIDX)}
            v_smfmac_f32_16x16x64_bf16 {v(OY,4)}, {v(F,4)}, {v(VXF+16,8)}, {v(vIDX)}
            s_cbranch_vccnz L_{tg}_pp
            v_smfmac_f32_16x16x64_bf16 {v(OX,4)}, {v(F+4,4)}, {v(VXF+8,8)}, {v(vIDX)}
            v_smfmac_f32_16x16x64_bf16 {v(OY,4)}, {v(F+4,4)}, {v(VXF+24,8)}, {v(vIDX)}
            v_smfmac_f32_16x16x32_bf16 {v(OX,4)}, {v(F+8,2)}, {v(WX,4)}, {v(vIDX)}
            v_smfmac_f32_16x16x32_bf16 {v(OY,4)}, {v(F+8,2)}, {v(WY,4)}, {v(vIDX)}
            ''')
        else:
            for k in range(8): A.I(f'v_mov_b32 {v(OX+k)}, 0')
            A.I(f'''
            s_waitcnt vmcnt(3)
            v_smfmac_f32_16x16x64_bf16 {v(OX,4)}, {v(F,4)}, {v(VXF,8)}, {v(vIDX)}
            v_smfmac_f32_16x16x64_bf16 {v(OY,4)}, {v(F,4)}, {v(VXF+16,8)}, {v(vIDX)}
            s_waitcnt vmcnt(0)
            v_max3_u32 {v(vCK)}, {v(F)}, {v(F+4)}, {v(F+8)}
            v_smfmac_f32_16x16x64_bf16 {v(OX,4)}, {v(F+4,4)}, {v(VXF+8,8)}, {v(vIDX)}
            v_max_u32 {v(vCK)}, {v(vCK)}, {v(F+9)}
            v_smfmac_f32_16x16x64_bf16 {v(OY,4)}, {v(F+4,4)}, {v(VXF+24,8)}, {v(vIDX)}
            v_cmp_eq_u32 vcc, {s(sSENT)}, {v(vCK)}
            v_smfmac_f32_16x16x32_bf16 {v(OX,4)}, {v(F+8,2)}, {v(WX,4)}, {v(vIDX)}
            v_smfmac_f32_16x16x32_bf16 {v(OY,4)}, {v(F+8,2)}, {v(WY,4)}, {v(vIDX)}
            s_cbranch_vccnz L_{tg}_pp
            ''')
        stamp(A, 3, prof)
        stamp(A, 8, prof > 1)
        A.flush()
        for r in range(4): A.I(f'v_permlane32_swap_b32 {v(OX+r)}, {v(OY+r)}')
        A.I(f'''
        v_pk_add_f32 {v(OX,2)}, {v(OX,2)}, {v(OY,2)}
        v_pk_add_f32 {v(OX+2,2)}, {v(OX+2,2)}, {v(OY+2,2)}
        ds_write_b128 {v(vRWR)}, {v(OX,4)}
        ''')
        stamp(A, 9, prof > 1)
        for k in range(FC): A.I(f'v_mov_b32 {v(WACC+k)}, 0')
        A.I('s_waitcnt lgkmcnt(0)')
        stamp(A, 10, prof > 1)
        A.I('s_barrier')
        stamp(A, 11, prof > 1)
        Z = ARING + 4
        for k in range(4): A.I(f'ds_read_b32 {v(Z+k)}, {v(vRRD)} offset:{k*RBW}')
        for k in range(FC, FC + FD): A.I(f'v_mov_b32 {v(WACC+k)}, 0')
        addp(A, sMEM, sMEM, MEM_SLOT); addp(A, sP, sP, PS_SLOT)
        A.I('s_waitcnt lgkmcnt(0)')
        stamp(A, 12, prof > 1)
        A.I(f'''
        v_pk_add_f32 {v(Z,2)}, {v(Z,2)}, {v(Z+2,2)}
        v_add_f32 {v(Z)}, {v(Z)}, {v(Z+1)}
        v_cvt_pk_bf16_f32 {v(vZ)}, {v(Z)}, {v(Z)}
        ''')
        A.I(f'global_store_short {v(vMS)}, {v(vZ)}, {s(sMEM,2)} {sc}')
        stamp(A, 4, prof)
        A.I(f's_add_u32 {s(sSTEP)}, {s(sSTEP)}, 1\n s_cmp_ge_u32 {s(sSTEP)}, {NSTEP}\n s_cbranch_scc1 L_va_end')
        flagwait(tg + '_f1', True)
        addp(A, sVX, sVX, 14 * VX_SC); addp(A, sFL, sFL, 256)
        vxearly(tg + '_e1')
        lg.clear(); prep_()
        stamp(A, 5, prof)
        stamp_flush(A, prof)
        A.I(f's_branch L_{tg}_step')
        A.label(f'L_{tg}_redo')
        if prof: A.I(f's_add_u32 {s(sreg(15))}, {s(sreg(15))}, 1')
        A.I('s_waitcnt vmcnt(0) lgkmcnt(0)\n s_nop 15\n s_barrier')
        lg.clear(); prep_()
        A.I(f's_branch L_{tg}_mp')
    loop('va', ''); loop('vb', 'sc1')
    A.label('L_va_end')
    if GE:
        A.I(f'''
L_ge:
        s_memrealtime s[40:41]
        s_waitcnt lgkmcnt(0)
        s_sub_u32 s40, s40, s92
        s_cmp_lt_u32 s40, {GE*100}
        s_cbranch_scc1 L_ge
        ''')
    if 'mtdirect' in OPT: A.I(f'global_store_short {v(vMS)}, {v(vZ)}, {s(sMT,2)} sc1')
    if 'wb' in OPT:
        A.I(f's_or_b32 s40, {s(sROLE)}, {s(sW)}\n s_cbranch_scc1 L_va_nwb\n s_waitcnt vmcnt(0)\n buffer_wbl2 sc1\n s_waitcnt vmcnt(0)\nL_va_nwb:')
    tl(A, 1, 2, T)
    stamp_flush(A, prof)
    A.I('s_endpgm')

def helper(A):
    vG0, vX, vP, vM, D = 1, 2, 3, 4, 8
    A.label('L_helper')
    A.I(f's_load_dwordx2 {s(sX0,2)}, s[0:1], {KA_X}\n s_waitcnt lgkmcnt(0)')
    chain_common(A)
    xcc_publish(A, sROLE, 20)
    A.I(f'''
    s_mul_i32 {s(sLB)}, {s(sW)}, 1792
    v_lshlrev_b32 {v(vG0)}, 4, v0
    v_add_u32 {v(vG0)}, {s(sLB)}, {v(vG0)}
    s_mov_b32 {s(sM48)}, -1
    s_mov_b32 {s(sM48+1)}, 0xffff
    s_mul_i32 s40, {s(sW)}, 7168
    v_min_u32 {v(vX)}, 55, v0
    v_lshl_add_u32 {v(vX)}, {v(vX)}, 7, s40
    s_mul_i32 s40, {s(sW)}, 2560
    v_min_u32 {v(vP)}, 19, v0
    v_lshl_add_u32 {v(vP)}, {v(vP)}, 7, s40
    v_min_u32 {v(vM)}, 13, v0
    v_lshl_add_u32 {v(vM)}, {v(vM)}, 7, {s(sLB)}
    v_add_u32 {v(vM)}, {4*MEM_SLOT}, {v(vM)}
    v_add_u32 {v(vP)}, {PS_SLOT * (2 if 'mtouch' in OPT else 0)}, {v(vP)}
    v_mov_b32 {v(D+4)}, 0
    v_mov_b32 {v(D+5)}, 0
    v_mov_b32 {v(D+6)}, 0
    v_mov_b32 {v(D+7)}, 0
    ''')
    A.I(f's_mov_b32 {s(sTMP)}, 14'); assist(A, 'he_as', sTMP, 20)
    xcc_check(A, 'he', 20)
    wait_tiles(A, 'he', 20, 1, 'all', None, 8)
    addp(A, sMEM, sWS, MEMS_OFF); addp(A, sMT, sWS, MEMT_OFF); addp(A, sP, sWS, PS_OFF)
    addp(A, sX0, sX0, XI_SEG)
    A.I(f'''
    global_load_dword v20, {v(vX)}, {s(sX0,2)}
    global_load_dword v21, {v(vP)}, {s(sP,2)} sc1
    ''')
    addp(A, sX0, sX0, XI_SEG); addp(A, sP, sP, PS_SLOT)
    if 'nox2' not in OPT:
        A.I(f'global_load_dword v20, {v(vX)}, {s(sX0,2)}'); addp(A, sX0, sX0, XI_SEG)
    A.I(f'''
L_he_step:
    s_sleep {HSLEEP}
    global_load_dwordx4 {v(D,4)}, {v(vG0)}, {s(sMEM,2)} sc1
    s_mov_b64 exec, {s(sM48,2)}
    global_load_dwordx4 {v(D+4,4)}, {v(vG0)}, {s(sMEM,2)} offset:1024 sc1
    s_mov_b64 exec, -1
    ''')
    bud(A)
    A.I(f'''
    s_waitcnt vmcnt(0)
    v_max3_u32 v16, {v(D)}, {v(D+1)}, {v(D+2)}
    v_max3_u32 v16, v16, {v(D+3)}, {v(D+4)}
    v_max3_u32 v16, v16, {v(D+5)}, {v(D+6)}
    v_max_u32 v16, v16, {v(D+7)}
    v_cmp_eq_u32 vcc, {s(sSENT)}, v16
    s_cbranch_vccnz L_he_step
    s_add_u32 {s(sSTEP)}, {s(sSTEP)}, 1
    global_store_dwordx4 {v(vG0)}, {v(D,4)}, {s(sMT,2)} sc1
    s_mov_b64 exec, {s(sM48,2)}
    global_store_dwordx4 {v(vG0)}, {v(D+4,4)}, {s(sMT,2)} offset:1024 sc1
    s_mov_b64 exec, -1
    global_load_dword v21, {v(vP)}, {s(sP,2)} sc1
    {f'global_load_dword v22, {v(vM)}, {s(sMEM,2)} sc1' if 'mtouch' in OPT else ''}
    s_cmp_ge_u32 {s(sSTEP)}, {NSTEP - ('nox2' not in OPT)}
    s_cbranch_scc1 L_he_nox
    global_load_dword v20, {v(vX)}, {s(sX0,2)}
L_he_nox:
    ''')
    addp(A, sX0, sX0, XI_SEG); addp(A, sP, sP, PS_SLOT); addp(A, sMEM, sMEM, MEM_SLOT); addp(A, sMT, sMT, MEMT_SLOT)
    A.I(f'''
    s_cmp_le_u32 {s(sSTEP)}, {NSTEP - ('mtdirect' in OPT)}
    s_cbranch_scc1 L_he_step
    s_endpgm
    ''')

def fetcher(A):
    vV, vF, vM = 1, 2, 3
    NL = PFL
    per = 64 // NL
    A.label('L_fetch')
    chain_common(A)
    xcc_publish(A, sROLE, 20)
    A.I(f'''
    v_lshrrev_b32 v4, {NL.bit_length()-1}, v0
    v_and_b32 v5, {NL-1}, v0
    s_lshl_b32 s40, {s(sW)}, 13
    v_lshl_add_u32 v5, v5, 7, s40
    v_and_b32 {v(vF)}, 15, v0
    v_lshlrev_b32 {v(vF)}, 2, {v(vF)}
    v_mov_b32 {v(vM)}, 4000
    ''')
    n = (14 + per - 1) // per
    for i in range(n):
        A.I(f'v_add_u32 v6, {per*i}, v4\n v_min_u32 v6, 13, v6\n v_lshl_add_u32 {v(8+i)}, v6, 15, v5')
    xcc_check(A, 'fe', 30)
    addp(A, sMEM, sWS, MEMS_OFF); addp(A, sVX, sWS, VX_OFF + PFA * 14 * VX_SC); addp(A, sFL, sWS, FL_OFF + PFA * 256)
    A.I(f'''
L_fe_step:
    global_load_dword v24, {v(vM)}, {s(sMEM,2)} sc1
    global_load_dword v25, {v(vF)}, {s(sFL,2)} sc1
    ''')
    bud(A)
    A.I(f'''
    s_waitcnt vmcnt(0)
    v_cmp_eq_u32 vcc, {s(sSENT)}, v24
    v_cmp_eq_u32 s[40:41], 0, v25
    s_or_b64 vcc, vcc, s[40:41]
    s_cbranch_vccz L_fe_go
    s_sleep 2
    s_branch L_fe_step
L_fe_go:
    ''')
    for i in range(n): A.I(f'global_load_dword {v(26)}, {v(8+i)}, {s(sVX,2)} sc1')
    addp(A, sMEM, sMEM, MEM_SLOT); addp(A, sVX, sVX, 14 * VX_SC); addp(A, sFL, sFL, 256)
    A.I(f'''
    s_add_u32 {s(sSTEP)}, {s(sSTEP)}, 1
    s_cmp_lt_u32 {s(sSTEP)}, {NSTEP - PFA}
    s_cbranch_scc1 L_fe_step
    s_endpgm
    ''')

def spare(A):
    A.label('L_spare')
    A.I(f's_mov_b32 {s(sTMP)}, 15'); assist(A, 'sp_as', sTMP, 20)
    A.I('s_endpgm')
```

```python
from common import *
PRE = 1
MST = 'sc1'
TOUCH = 0
TNT = ''
LDA = 'nt'
LDNT = 'nt'
DB_INIT, DB_XCC = 192, 224
sW, sWS, sDB = 4, 8, 96
BUDGET = 1 << 20

def spin(A, tag, load, regs, sleep=2):
    A.I(f'''
    s_mov_b32 s42, 0
L_{tag}_rp:
    {load}
    s_add_u32 s42, s42, 1
    s_cmp_gt_u32 s42, {BUDGET}
    s_cbranch_scc1 L_bail
    s_waitcnt vmcnt(0)
    ''')
    r = regs[0]
    for k in regs[1:]: A.I(f'v_min_u32 {v(r)}, {v(r)}, {v(k)}')
    A.I(f'''
    v_cmp_eq_u32 vcc, 0, {v(r)}
    s_cbranch_vccz L_{tag}_rb
    s_sleep {sleep}
    s_branch L_{tag}_rp
L_{tag}_rb:
    ''')

def wait_tiles(A, tag, vt, mat, kind, sreg=None, sleep=2):
    A.I(f's_cmp_lg_u32 {s(sW)}, 0\n s_cbranch_scc1 L_{tag}_rb')
    addp(A, 40, sWS, PF_OFF + mat * 1024)
    if kind == 'head':
        A.I(f'''
        v_bfe_u32 {v(vt)}, v0, 3, 1
        v_lshlrev_b32 {v(vt)}, 9, {v(vt)}
        v_and_b32 {v(vt+1)}, 7, v0
        v_lshl_add_u32 {v(vt)}, {v(vt+1)}, 2, {v(vt)}
        s_lshl_b32 s43, {s(sreg)}, 5
        v_add_u32 {v(vt)}, s43, {v(vt)}
        ''')
        spin(A, tag, f'global_load_dword {v(vt+2)}, {v(vt)}, s[40:41] sc1', [vt + 2], sleep)
    elif kind == 'half':
        A.I(f's_lshl_b32 s43, {s(sreg)}, 9\n v_lshl_add_u32 {v(vt)}, v0, 3, s43')
        spin(A, tag, f'global_load_dwordx2 {v(vt+2,2)}, {v(vt)}, s[40:41] sc1', [vt + 2, vt + 3], sleep)
    else:
        A.I(f'v_lshlrev_b32 {v(vt)}, 4, v0')
        spin(A, tag, f'global_load_dwordx4 {v(vt+2,4)}, {v(vt)}, s[40:41] sc1', [vt + 2, vt + 3, vt + 4, vt + 5], sleep)
    A.I('s_barrier')

def gemm_jobs(A, sN):
    sU, sV, sO, sH, sJB, sB, sHF, sFO = 10, 12, 14, 16, 17, 18, 19, 32
    A.I(f's_load_dwordx8 s[24:31], s[0:1], {KA_WQ}\n s_mov_b32 {s(sFO)}, 0\n s_mov_b32 {s(sFO+1)}, 0')
    VA, VB, VR, VU, VV, vO, VL = 8, 12, 16, 20, 24, 28, 32
    UF, RING, ACC, OUT = 64, 128, 160, 176
    UBUF = 128 * 1024
    A.I(f'''
    v_lshlrev_b32 {v(vO)}, 4, v0
    v_lshrrev_b32 v3, 5, v0
    v_and_b32 v4, 31, v0
    s_lshl_b32 s20, {s(sW)}, 4
    s_lshl_b32 {s(sB)}, {s(sW)}, 13
    ''')
    for b in range(4):
        A.I(f'''
        v_add_u32 v5, {2*(b&1)}, v3
        v_lshlrev_b32 v6, 2, v5
        v_xor_b32 v6, v6, v4
        v_xor_b32 v6, {(b>>1)<<1}, v6
        v_add3_u32 v5, s20, v5, {8*(b>>1)}
        v_lshlrev_b32 v5, 13, v5
        v_lshl_add_u32 {v(VA+b)}, v6, 4, v5
        ''')
    A.I(f'''
    v_and_b32 v5, 3, v1
    v_lshrrev_b32 v6, 2, v1
    v_lshl_add_u32 v36, v6, 3, v5
    v_lshlrev_b32 v36, 9, v36
    v_lshlrev_b32 v5, 2, v5
    v_bfe_u32 v6, v1, 2, 1
    v_lshl_add_u32 v5, v6, 1, v5
    s_and_b32 s21, {s(sW)}, 1
    s_lshl_b32 s21, s21, 14
    s_add_u32 s21, s21, {UBUF}
    v_add_u32 v6, s21, v36
    ''')
    for b in range(4):
        A.I(f'''
        v_add_u32 v7, {4*b}, v2
        v_xor_b32 v7, v7, v5
        v_lshlrev_b32 {v(VL+b)}, 4, v7
        v_add_u32 {v(VU+b)}, {v(VL+b)}, v6
        ''')
    A.I('s_waitcnt lgkmcnt(0)')
    vm = Cnt(A, 'vmcnt', 63); lg = Cnt(A, 'lgkmcnt', 15)
    def setup(mat):
        r = sN + 1 - mat
        pu, pv = (24, 26) if mat == 0 else (28, 30)
        A.I(f'''
        s_mul_i32 {s(sH)}, {s(r)}, 4682
        s_lshr_b32 {s(sH)}, {s(sH)}, 16
        s_mul_i32 s20, {s(sH)}, 14
        s_sub_u32 {s(sJB)}, {s(r)}, s20
        s_cmp_ge_u32 {s(sJB)}, 7
        s_cselect_b32 {s(sHF)}, 1, 0
        s_mul_i32 s20, {s(sHF)}, 7
        s_sub_u32 {s(sJB)}, {s(sJB)}, s20
        s_lshl_b32 s20, {s(sHF)}, 9
        s_lshl_b32 s21, {s(sH)}, 5
        s_add_u32 s20, s20, s21
        s_lshl_b32 s21, {s(sJB)}, 2
        s_add_u32 {s(sFO+mat)}, s20, s21
        s_lshl_b32 s20, {s(sJB)}, 19
        s_lshl_b32 s21, {s(sH)}, 9
        s_add_u32 s20, s20, s21
        ''')
        addps(A, sU, pu, 20)
        A.I(f'''
        s_mul_i32 s20, {s(sH)}, {MF_HEAD}
        s_lshr_b32 s22, {s(sW)}, 1
        s_lshl_b32 s23, {s(sHF)}, 3
        s_add_u32 s22, s22, s23
        s_mul_i32 s22, s22, 14
        s_and_b32 s23, {s(sW)}, 1
        s_add_u32 s22, s22, s23
        s_lshl_b32 s23, {s(sJB)}, 1
        s_add_u32 s22, s22, s23
        s_lshl_b32 s22, s22, 11
        s_add_u32 s20, s20, s22
        ''')
        addp(A, sO, sWS, MF_OFF + mat * MF_MAT); addps(A, sO, sO, 20)
        if mat == 0:
            A.I(f's_lshl_b32 s22, {s(sHF)}, 21\n s_add_u32 s21, s21, s22')
            addps(A, sV, pv, 21)
            A.I(f'''
            s_lshr_b32 s21, {s(sW)}, 1
            s_lshl_b32 s21, s21, 5
            v_bfe_u32 v5, v1, 2, 1
            v_lshlrev_b32 v5, 4, v5
            v_lshrrev_b32 v6, 3, v1
            v_lshl_add_u32 v5, v6, 2, v5
            v_and_b32 v6, 3, v1
            v_add3_u32 v5, v5, v6, s21
            v_lshlrev_b32 v5, 9, v5
            s_and_b32 s21, {s(sW)}, 1
            s_lshl_b32 s21, s21, 5
            ''')
            for b in range(4): A.I(f'v_add_u32 {v(VR+b)}, {v(VL+b)}, v5')
            for b in range(4): A.I(f'v_xor_b32 {v(VB+b)}, s21, {v(VA+b)}\n v_xor_b32 {v(VB+b)}, {(b>>1)<<5}, {v(VB+b)}')
        else:
            A.I(f'''
            s_mul_i32 s21, {s(sH)}, {256*896}
            s_mul_i32 s22, {s(sW)}, {64*896}
            s_add_u32 s21, s21, s22
            s_lshl_b32 s22, {s(sHF)}, 9
            s_add_u32 s21, s21, s22
            ''')
            addps(A, sV, pv, 21)
            A.I(f'''
            v_lshrrev_b32 v5, 3, v0
            v_and_b32 v6, 7, v0
            v_bfe_u32 v7, v0, 4, 1
            v_lshlrev_b32 v7, 1, v7
            v_xor_b32 v6, v6, v7
            v_mul_u32_u24 v5, 896, v5
            v_lshl_add_u32 {v(VB)}, v6, 4, v5
            v_xor_b32 v6, 4, v6
            v_lshl_add_u32 {v(VB+1)}, v6, 4, v5
            v_add_u32 {v(VB+1)}, {8*896}, {v(VB+1)}
            v_bfe_u32 v5, v0, 2, 2
            v_lshl_add_u32 v6, v2, 3, v5
            v_lshlrev_b32 v6, 7, v6
            v_and_b32 v7, 1, v0
            v_lshl_add_u32 v6, v7, 3, v6
            v_and_b32 v5, 2, v5
            v_and_b32 v7, 1, v2
            v_lshl_add_u32 v5, v7, 2, v5
            v_bfe_u32 v7, v0, 1, 1
            v_xor_b32 v5, v5, v7
            s_lshr_b32 s21, {s(sW)}, 1
            s_lshl_b32 s21, s21, 2
            v_xor_b32 v5, s21, v5
            v_lshl_add_u32 {v(VR)}, v5, 4, v6
            v_xor_b32 v5, 2, v5
            v_lshl_add_u32 {v(VR+1)}, v5, 4, v6
            ''')
    pol = [LDNT]
    def dma(vaddr, base, lds, tag):
        A.I(f's_add_u32 m0, {s(sB)}, {lds}')
        A.I(f'global_load_lds_dwordx4 {v(vaddr)}, {s(base,2)} {pol[0]}'); vm.add(tag)
    def issueU():
        addp(A, 22, sU, 32768)
        for kk in range(8): dma(VA + (kk & 1) + 2 * (kk >> 2), 22 if kk & 2 else sU, UBUF + kk * 1024, 'U')
    def issueV(mat, cc):
        step = 64 * 8192 if mat == 0 else 128
        if cc == 3:
            A.I(f's_cmp_lg_u32 {s(sHF)}, 0\n s_cbranch_scc1 L_pj_nv{mat}'); q = list(vm.q)
        if mat == 0:
            addp(A, 22, sV, 32768)
            for kk in range(8): dma(VB + (kk & 1) + 2 * (kk >> 2), 22 if kk & 2 else sV, cc * 32768 + kk * 1024, ('V', cc))
        else:
            A.I(f's_mov_b64 s[22:23], {s(sV,2)}')
            for kk in range(8):
                dma(VB + (kk & 1), 22, cc * 32768 + kk * 1024, ('V', cc))
                if kk & 1 and kk < 7: addp(A, 22, 22, 16 * 896)
        if cc < 3: addp(A, sV, sV, step)
        else: vm.q = q; A.label(f'L_pj_nv{mat}')
    def compute(mat):
        vm.wait('U'); A.I('s_barrier')
        for tp in range(2):
            for kk in range(8):
                A.I(f'ds_read_b128 {v(UF + 32*tp + 4*kk, 4)}, {v(VU + (kk&3))} offset:{(kk>>2)*256 + tp*2048}')
            A.I('s_waitcnt lgkmcnt(0)')
        nreg = 4 if mat == 0 else 2
        for cc in range(4):
            for b in range(nreg): A.I(f'v_add_u32 {v(VV+b)}, {cc*32768}, {v(VR+b)}')
            if cc < 3: vm.wait(('V', cc))
            else: A.I('s_waitcnt vmcnt(6)'); vm.clear()
            A.I('s_barrier')
            if cc == 3: A.I(f's_cmp_lg_u32 {s(sHF)}, 0\n s_cbranch_scc1 L_pj_done{mat}')
            def rd(kk):
                r = RING + 8 * (kk % 3)
                for y in range(2):
                    if mat == 0:
                        A.I(f'ds_read_b128 {v(r+4*y,4)}, {v(VV+(kk&3))} offset:{(kk>>2)*256 + y*4096}'); lg.add((kk, y))
                    else:
                        for hi in range(2):
                            A.I(f'ds_read_b64_tr_b16 {v(r+4*y+2*hi,2)}, {v(VV+y)} offset:{kk*4096 + hi*512}'); lg.add((kk, y))
            rd(0); rd(1)
            for kk in range(8):
                r = RING + 8 * (kk % 3)
                for y in range(2):
                    lg.wait((kk, y))
                    for tp in range(2):
                        acc = v(ACC + 8*tp + 4*y, 4)
                        A.I(f'v_mfma_f32_16x16x32_bf16 {acc}, {v(UF+32*tp+4*kk,4)}, {v(r+4*y,4)}, {acc if kk else 0}')
                        if y == 0 and tp == 0 and kk + 2 < 8: rd(kk + 2)
            o = OUT + 8 * (cc & 1)
            if mat == 0:
                for k in range(16): A.I(f'v_mul_f32 {v(ACC+k)}, {f32(CSC)}, {v(ACC+k)}')
            for tp in range(2):
                for k in range(2):
                    for y in range(2):
                        A.I(f'v_cvt_pk_bf16_f32 {v(o+4*tp+2*k+y)}, {v(ACC+8*tp+4*y+2*k)}, {v(ACC+8*tp+4*y+2*k+1)}')
            A.I(f'global_store_dwordx4 {v(vO)}, {v(o,4)}, {s(sO,2)} {MST}'); vm.add('st')
            A.I(f'global_store_dwordx4 {v(vO)}, {v(o+4,4)}, {s(sO,2)} offset:1024 {MST}'); vm.add('st')
            addp(A, sO, sO, 2 * 14 * 2048)
        A.label(f'L_pj_done{mat}')
    def flag(mat, tag):
        A.I(f'''
        s_barrier
        s_cmp_lg_u32 {s(sW)}, 0
        s_cbranch_scc1 L_pj_nf{tag}
        v_mov_b32 v30, {s(sFO+mat)}
        v_mov_b32 v31, 1
        ''')
        addp(A, 20, sWS, PF_OFF + mat * 1024)
        A.I('global_store_dword v30, v31, s[20:21] sc1')
        A.label(f'L_pj_nf{tag}')
        tl(A, 0, 2 - mat, 200)
    def initwait(tag):
        A.I('v_mov_b32 v30, 0')
        spin(A, tag, f'global_load_dword v31, v30, {s(sDB,2)} offset:{DB_INIT} sc1', [31])
    A.I(f'''
    s_cmp_lt_i32 {s(sN)}, 0
    s_cbranch_scc1 L_pj_onlya
    s_lshl_b32 s22, {s(sN)}, 11
    s_lshl_b32 s23, {s(sW)}, 9
    s_add_u32 s22, s22, s23
    v_lshl_add_u32 v30, v0, 3, s22
    v_mov_b32 v6, {SENT}
    v_mov_b32 v7, {SENT}
    ''')
    addp(A, 20, sWS, MEMT_OFF)
    A.I('global_store_dwordx2 v30, v[6:7], s[20:21] sc1')
    setup(1); issueU()
    for cc in range(3): issueV(1, cc)
    A.I(f'v_mov_b32 v38, 0\n global_load_dword v37, v38, {s(sDB,2)} offset:{DB_INIT} sc1'); vm.add('i')
    issueV(1, 3)
    if TOUCH:
        A.I(f'''
        s_lshl_b32 s20, {s(sJB)}, 6
        s_lshl_b32 s21, {s(sW)}, 4
        s_add_u32 s20, s20, s21
        v_lshrrev_b32 v39, 2, v0
        v_and_b32 v40, 3, v0
        v_lshlrev_b32 v40, 7, v40
        s_lshl_b32 s22, {s(sH)}, 9
        v_add_u32 v40, s22, v40
        v_add_u32 v41, s20, v39
        v_lshl_add_u32 v41, v41, 13, v40
        global_load_dword v42, v41, s[24:25] {TNT}
        s_mul_i32 s20, {s(sJB)}, 37
        s_mul_i32 s21, {s(sW)}, 10
        s_add_u32 s20, s20, s21
        s_lshl_b32 s21, {s(sHF)}, 8
        s_add_u32 s20, s20, s21
        v_min_u32 v39, 9, v39
        v_add_u32 v41, s20, v39
        v_min_u32 v41, 447, v41
        v_lshl_add_u32 v41, v41, 13, v40
        global_load_dword v42, v41, s[26:27] {TNT}
        ''')
        vm.add('t'); vm.add('t')
    compute(1)
    A.I('v_cmp_eq_u32 vcc, 0, v37\n s_cbranch_vccz L_pj_iok')
    initwait('pj_i1')
    A.I(f'''
L_pj_iok:
    s_cmp_ge_i32 {s(sN+1)}, 0
    s_cbranch_scc1 L_pj_both
    s_waitcnt vmcnt(0)
    ''')
    flag(1, 'x')
    A.I('s_branch L_pj_end')
    A.label('L_pj_onlya')
    initwait('pj_i0')
    A.I(f's_cmp_lt_i32 {s(sN+1)}, 0\n s_cbranch_scc1 L_pj_end')
    A.label('L_pj_both')
    vm.clear(); pol[0] = LDA
    setup(0)
    if PRE >= 1: issueU()
    for cc in range(PRE - 1): issueV(0, cc)
    A.I(f's_cmp_lt_i32 {s(sN)}, 0\n s_cbranch_scc1 L_pj_nob\n s_waitcnt vmcnt({8*PRE})')
    flag(1, 'y')
    A.label('L_pj_nob')
    if PRE < 1: issueU()
    for cc in range(max(PRE - 1, 0), 4): issueV(0, cc)
    compute(0)
    A.I('s_waitcnt vmcnt(0)')
    flag(0, 'z')
    A.label('L_pj_end')

def orphan(A, dst, o, t):
    A.I(f'''
    s_lshr_b32 {s(t)}, {s(o)}, 2
    s_lshl_b32 {s(t)}, {s(t)}, 3
    s_and_b32 {s(t+1)}, {s(o)}, 3
    s_add_u32 {s(t)}, {s(t)}, {s(t+1)}
    s_mul_i32 {s(t+1)}, {s(t)}, 3121
    s_lshr_b32 {s(t+1)}, {s(t+1)}, 16
    s_mul_i32 {s(t+1)}, {s(t+1)}, 11
    s_add_u32 {s(t)}, {s(t)}, {s(t+1)}
    s_add_u32 {s(dst)}, {s(t)}, 11
    ''')

def init_job(A):
    A.I(f'''
    s_load_dwordx2 s[34:35], s[0:1], {KA_MEM0}
    v_mov_b32 v8, 0
    v_mov_b32 v9, 0
    v_mov_b32 v10, 0
    v_mov_b32 v11, 0
    s_lshl_b32 s22, {s(sW)}, 12
    v_lshl_add_u32 v6, v0, 4, s22
    ''')
    addp(A, 22, sWS, FL_OFF)
    for k in range(4): A.I(f'global_store_dwordx4 v6, v[8:11], s[22:23] offset:{k*1024} sc1')
    A.I(f'''
    s_lshl_b32 s22, {s(sW)}, 9
    v_lshl_add_u32 v6, v0, 3, s22
    v_and_b32 v9, 3, v0
    v_cmp_eq_u32 vcc, 3, v9
    v_cndmask_b32 v9, 0, 1, vcc
    ''')
    addp(A, 22, sWS, PF_OFF)
    A.I(f'''
    global_store_dwordx2 v6, v[8:9], s[22:23] sc1
    s_waitcnt vmcnt(0)
    s_barrier
    v_mov_b32 v6, 0
    v_mov_b32 v7, 1
    global_store_dword v6, v7, {s(sDB,2)} offset:{DB_INIT} sc1
    ''')
    tl(A, 0, 2, 200)
    addp(A, 22, sWS, MEMS_OFF)
    A.I(f's_mul_i32 s30, {s(sW)}, 112\n s_waitcnt lgkmcnt(0)')
    for k in range(2):
        A.I(f'''
        v_min_u32 v6, {63 if k == 0 else 47}, v0
        v_add3_u32 v6, v6, s30, {64*k}
        v_and_b32 v7, 7, v6
        v_mul_u32_u24 v7, 896, v7
        v_lshrrev_b32 v10, 5, v6
        v_lshl_add_u32 v7, v10, 6, v7
        v_bfe_u32 v10, v6, 3, 1
        v_lshl_add_u32 v7, v10, 5, v7
        v_bfe_u32 v10, v6, 4, 1
        v_lshl_add_u32 v7, v10, 3, v7
        global_load_dwordx2 v[12:13], v7, s[34:35]
        global_load_dwordx2 v[14:15], v7, s[34:35] offset:16
        v_lshlrev_b32 v6, 4, v6
        s_waitcnt vmcnt(0)
        ''')
        for r in range(4): A.I(f'v_cmp_eq_u32 vcc, {SENT}, {v(12+r)}\n v_cndmask_b32 {v(12+r)}, {v(12+r)}, -1, vcc')
        A.I('global_store_dwordx4 v6, v[12:15], s[22:23] sc1')
```

```python
from common import *
import prep
from prep import wait_tiles, sDB, DB_XCC

NSTEP = 63
CLK = 's_memrealtime'
OPT = {'poisT', 'mtouch', 'mtdirect'}
HSLEEP = 2
LIM = 60
XD = 0
VE = 4
ALS = -1
ALV = -1
PS_ = 0
SS = 0
AJ = 8
GX = 0
GE = 0
AGE = 99
L3P = ''
PD = 3
FA, FB, FC, FD = 5, 3, 4, 1
PFL = 16
PFA = 2
NRES = 5
HD = 3
sROLE, sW, sSTEP, sBUD, sSENT = 3, 4, 5, 6, 7
sWS, sX0, sX1, sMEM, sP, sVX, sMT, sWT = 8, 10, 12, 14, 16, 18, 20, 24
sTMP, sTMP2 = 27, 28
sM20, sMHI, sMG = 30, 32, 34
sLB, sXB, sM48 = 36, 37, 38
sDBG = 44
sXCC, sEA, sEB, sFL = 75, 64, 66, 68
BUDGET = 1 << 21

def bud(A):
    A.I(f's_add_u32 {s(sBUD)}, {s(sBUD)}, 1\n s_cmp_gt_u32 {s(sBUD)}, {BUDGET}\n s_cbranch_scc1 L_bail')

def chain_common(A):
    A.I(f'''
    s_mov_b32 {s(sSTEP)}, 0
    s_mov_b32 {s(sBUD)}, 0
    s_mov_b32 {s(sSENT)}, {SENT}
    s_mov_b32 s90, 0
    ''')

def xcc_publish(A, role, t):
    A.I(f'''
    s_getreg_b32 {s(sXCC)}, hwreg(HW_REG_XCC_ID, 0, 4)
    s_add_u32 {s(sXCC)}, {s(sXCC)}, 1
    v_mov_b32 {v(t)}, {s(role)}
    v_mov_b32 {v(t+1)}, {s(sXCC)}
    s_waitcnt vmcnt(0)
    s_barrier
    global_store_byte {v(t)}, {v(t+1)}, {s(sDB,2)} offset:{DB_XCC} sc1
    ''')

def xcc_check(A, tag, t):
    A.I(f'''
    v_min_u32 {v(t)}, {31 if 'fetch' in OPT else 30}, v0
L_{tag}_xc:
    global_load_ubyte {v(t+1)}, {v(t)}, {s(sDB,2)} offset:{DB_XCC} sc1
    ''')
    bud(A)
    A.I(f'''
    s_waitcnt vmcnt(0)
    v_cmp_eq_u32 vcc, 0, {v(t+1)}
    s_cbranch_vccnz L_{tag}_xc
    v_cmp_ne_u32 vcc, {s(sXCC)}, {v(t+1)}
    s_cmp_eq_u64 vcc, {0 if 'slow' not in OPT else -1}
    s_cselect_b32 {s(sEA)}, 1, 0
    ''')

def warm(A, first, last, t):
    if 'nowarm' in OPT: return
    A.raw(f'''    s_getpc_b64 s[40:41]
L_pc_{first}:
    s_add_u32 s40, s40, {first} - L_pc_{first}
    s_addc_u32 s41, s41, 0
    v_lshlrev_b32 {v(t)}, 7, v0
    v_min_u32 {v(t)}, {last} - {first}, {v(t)}''')
    A.I(f'global_load_dword {v(t+1)}, {v(t)}, s[40:41]')

def assist(A, tag, head, t):
    if 'noassist' in OPT: return
    wait_tiles(A, tag, t, 0, 'head', head, 1)
    A.I(f's_mul_i32 s40, {s(head)}, {MF_HEAD}'); addp(A, 42, sWS, MF_OFF + AJ * 2048); addps(A, 42, 42, 40)
    per = (14 - AJ) * 16
    tot = 14 * per
    n = (tot // 4 + 63) // 64
    A.I(f's_mul_i32 s40, {s(sW)}, {tot // 4}')
    for i in range(n):
        A.I(f'''
        v_add_u32 {v(t)}, {64*i}, v0
        v_min_u32 {v(t)}, {tot // 4 - 1}, {v(t)}
        v_add_u32 {v(t)}, s40, {v(t)}
        v_mul_u32_u24 {v(t+1)}, {(1 << 20) // per + 1}, {v(t)}
        v_lshrrev_b32 {v(t+1)}, 20, {v(t+1)}
        v_mul_u32_u24 {v(t+1)}, {224 - per}, {v(t+1)}
        v_add_lshl_u32 {v(t)}, {v(t)}, {v(t+1)}, 7
        global_load_dword {v(t+2)}, {v(t)}, s[42:43] sc1
        ''')

def mem_poll(A, tag, vG0, vPR, vD):
    A.I(f'''
L_{tag}_mp:
    s_mov_b32 m0, {s(sLB)}
L_{tag}_mpl:
    global_load_dword {v(vD)}, {v(vPR)}, {s(sMEM,2)} sc1
    global_load_lds_dwordx4 {v(vG0)}, {s(sMEM,2)} sc1
    s_mov_b64 exec, {s(sM48,2)}
    global_load_lds_dwordx4 {v(vG0)}, {s(sMEM,2)} offset:1024 sc1
    s_mov_b64 exec, -1
    ''')
    bud(A)
    A.I(f'''
    s_waitcnt vmcnt(2)
    v_cmp_eq_u32 vcc, {s(sSENT)}, {v(vD)}
    s_cbranch_vccnz L_{tag}_mpl
    s_waitcnt vmcnt(0) lgkmcnt(0)
    s_barrier
    ''')

def mem_poll_half(A, tag, vG0, vPR, vD):
    A.I(f'''
L_{tag}_mp:
    s_cmp_ge_u32 {s(sW)}, 2
    s_cbranch_scc1 L_{tag}_mpb
    s_mov_b32 m0, {s(sLB)}
L_{tag}_mpl:
    global_load_dword {v(vD)}, {v(vPR)}, {s(sMEM,2)} sc1
    global_load_lds_dwordx4 {v(vG0)}, {s(sMEM,2)} sc1
    global_load_lds_dwordx4 {v(vG0)}, {s(sMEM,2)} offset:1024 sc1
    global_load_lds_dwordx4 {v(vG0)}, {s(sMEM,2)} offset:2048 sc1
    s_mov_b32 exec_hi, 0
    global_load_lds_dwordx4 {v(vG0)}, {s(sMEM,2)} offset:3072 sc1
    s_mov_b64 exec, -1
    ''')
    bud(A)
    A.I(f'''
    s_waitcnt vmcnt(4)
    v_cmp_eq_u32 vcc, {s(sSENT)}, {v(vD)}
    s_cbranch_vccnz L_{tag}_mpl
    s_waitcnt vmcnt(0)
L_{tag}_mpb:
    s_waitcnt lgkmcnt(0)
    s_barrier
    ''')

def mem_poll_setup(A, vG0, vPR, t, half=False):
    A.I(f'''
    s_mul_i32 {s(sLB)}, {s(sW)}, {3584 if half else 1792}
    v_lshlrev_b32 {v(vG0)}, 4, v0
    v_add_u32 {v(vG0)}, {s(sLB)}, {v(vG0)}
    s_mov_b32 {s(sM48)}, -1
    s_mov_b32 {s(sM48+1)}, 0xffff
    v_min_u32 {v(t)}, {27 if half else 13}, v0
    v_lshlrev_b32 {v(t)}, 7, {v(t)}
    v_add3_u32 {v(vPR)}, {s(sLB)}, {v(t)}, 64
    ''')

def sreg(i): return 48 + 2 * i if i < 8 else 76 + 2 * (i - 8)

def stamp(A, idx, prof):
    if not prof: return
    A.I(f'{CLK} {s(sreg(idx), 2)}')

def stamp_flush(A, prof):
    if not prof: return
    A.I('s_waitcnt lgkmcnt(0)')
    for i in range(16): A.I(f'v_writelane_b32 v21, {s(sreg(i))}, {i}')
    A.I(f'''
    v_mbcnt_lo_u32_b32 v20, -1, 0
    v_lshlrev_b32 v20, 2, v20
    s_mov_b64 exec, 0xffff
    global_store_dword v20, v21, {s(sDBG,2)}
    s_mov_b64 exec, -1
    ''')
    addp(A, sDBG, sDBG, 64)

def idx_setup(A, vIDX, T):
    A.I(f'''
    v_and_b32 {v(T)}, 15, v0
    v_lshrrev_b32 {v(T+1)}, 4, v0
    v_and_b32 {v(T+2)}, 7, v0
    v_mov_b32 {v(vIDX)}, 0x4444
    v_mov_b32 {v(T+3)}, 0xeeee
    v_cmp_lt_u32 vcc, 7, {v(T)}
    v_cndmask_b32 {v(vIDX)}, {v(vIDX)}, {v(T+3)}, vcc
    ''')

def score(A, prof=0):
    L_MEM, L_TB, L_SB, L_RW, L_XB = 0, 8192, 20480, 26624, 65536
    vIDX, vG0, vXB, vPR, vAF0, vAF1, vMB0, vMB1, vTW, vTR, vSW, vSR, vPS, vX0, vX1, vRW, vSM, vSN = range(1, 19)
    vCK = 19; vLO = 0; sHI = 26
    RING, XF, R, TOPC, TMP, SACC, TACC, WV = 20, 52, 84, 108, 112, 116, 128, 144
    MEMB, TOPA, TOPB = R, R + 16, R + 20
    import layout
    if L3P: layout.L3T[:] = [int(c, 16) for c in str(L3P)]
    seq = score_seq()
    def wreg(i):
        if i < 3: return v(R + 8 * i, 8)
        if i < 35: return a_(8 * (i - 3), 8)
        return v(WV + 8 * (i - 35), 8)
    lg = Cnt(A, 'lgkmcnt', 15)
    A.label('L_score')
    A.I(f's_load_dwordx2 {s(sX0,2)}, s[0:1], {KA_X}')
    chain_common(A)
    T = 20
    idx_setup(A, vIDX, T)
    mem_poll_setup(A, vG0, vPR, T + 4)
    A.I(f'''
    v_lshlrev_b32 {v(T+4)}, 7, {v(T+1)}
    v_lshl_add_u32 {v(T+4)}, {v(T+2)}, 4, {v(T+4)}
    s_and_b32 {s(sTMP)}, {s(sW)}, 1
    s_mul_i32 {s(sTMP2)}, {s(sTMP)}, {7*512}
    v_mov_b32 {v(vAF0)}, {v(T+4)}
    v_add_u32 {v(vAF1)}, {s(sTMP2)}, {v(T+4)}
    s_lshr_b32 {s(sTMP2)}, {s(sW)}, 1
    s_mul_i32 {s(sTMP2)}, {s(sTMP2)}, 7
    s_lshl_b32 {s(sTMP)}, {s(sTMP)}, 2
    s_add_u32 {s(sTMP)}, {s(sTMP)}, {s(sTMP2)}
    s_add_u32 {s(sTMP2)}, {s(sTMP2)}, 3
    s_lshl_b32 s40, {s(sTMP)}, 9
    s_lshl_b32 s41, {s(sTMP2)}, 9
    v_add_u32 {v(vMB0)}, s40, {v(T+4)}
    v_add_u32 {v(vMB1)}, s41, {v(T+4)}
    s_lshl_b32 s40, {s(sTMP)}, 6
    s_lshl_b32 s41, {s(sTMP2)}, 6
    v_lshrrev_b32 {v(T+4)}, 2, v0
    v_mul_u32_u24 {v(T+4)}, 896, {v(T+4)}
    v_lshrrev_b32 {v(T+5)}, 5, v0
    v_lshlrev_b32 {v(T+5)}, 1, {v(T+5)}
    v_and_b32 {v(T+6)}, 3, v0
    v_xor_b32 {v(T+5)}, {v(T+5)}, {v(T+6)}
    v_lshl_add_u32 {v(T+4)}, {v(T+5)}, 4, {v(T+4)}
    v_add_u32 {v(vX0)}, s40, {v(T+4)}
    v_add_u32 {v(vX1)}, s41, {v(T+4)}
    s_lshl_b32 {s(sXB)}, {s(sW)}, 13
    s_add_u32 {s(sXB)}, {s(sXB)}, {L_XB}
    v_lshrrev_b32 {v(T+4)}, 3, {v(T)}
    v_lshlrev_b32 {v(T+4)}, 1, {v(T+4)}
    v_xor_b32 {v(T+4)}, {v(T+4)}, {v(T+1)}
    v_lshl_add_u32 {v(T+4)}, {v(T)}, 2, {v(T+4)}
    v_lshl_add_u32 {v(vXB)}, {v(T+4)}, 4, {s(sXB)}
    s_mul_i32 s40, {s(sW)}, 3072
    s_add_u32 s40, s40, {L_TB}
    v_mul_u32_u24 {v(T+5)}, 192, {v(T+1)}
    v_lshl_add_u32 {v(T+5)}, {v(T)}, 3, {v(T+5)}
    v_add_u32 {v(vTW)}, s40, {v(T+5)}
    v_and_b32 {v(T+5)}, 1, v0
    v_mul_u32_u24 {v(T+5)}, 192, {v(T+5)}
    v_lshrrev_b32 {v(T+6)}, 2, v0
    v_lshl_add_u32 {v(T+5)}, {v(T+6)}, 3, {v(T+5)}
    v_add_u32 {v(vTR)}, s40, {v(T+5)}
    s_mul_i32 s40, {s(sW)}, 1408
    s_add_u32 s40, s40, {L_SB}
    v_mul_u32_u24 {v(T+5)}, 176, {v(T+2)}
    v_add_u32 {v(T+5)}, s40, {v(T+5)}
    v_mov_b32 {v(vCK)}, {v(T+5)}
    v_lshrrev_b32 {v(T+6)}, 3, {v(T)}
    v_and_b32 {v(T+7)}, 1, {v(T+1)}
    v_mul_u32_u24 {v(T+7)}, 704, {v(T+7)}
    v_lshrrev_b32 {v(T+8)}, 1, {v(T+1)}
    v_lshl_add_u32 {v(T+7)}, {v(T+8)}, 6, {v(T+7)}
    v_lshl_add_u32 {v(T+7)}, {v(T)}, 2, {v(T+7)}
    v_add3_u32 {v(vSW)}, s40, {v(T+7)}, 32
    v_and_b32 {v(T+7)}, 1, {v(T+1)}
    v_lshlrev_b32 {v(T+7)}, 4, {v(T+7)}
    v_lshrrev_b32 {v(T+8)}, 1, {v(T+1)}
    v_lshl_add_u32 {v(T+8)}, {v(T+8)}, 1, {v(T+6)}
    v_lshl_add_u32 {v(T+7)}, {v(T+8)}, 2, {v(T+7)}
    v_add_u32 {v(vSM)}, {v(T+5)}, {v(T+7)}
    v_lshrrev_b32 {v(T+5)}, 5, v0
    v_lshl_add_u32 {v(T+5)}, {s(sW)}, 1, {v(T+5)}
    v_and_b32 {v(T+6)}, 31, v0
    v_min_u32 {v(T+6)}, 20, {v(T+6)}
    v_mul_u32_u24 {v(T+7)}, 176, {v(T+5)}
    v_lshl_add_u32 {v(T+7)}, {v(T+6)}, 3, {v(T+7)}
    v_add_u32 {v(vSR)}, {L_SB}, {v(T+7)}
    s_lshr_b32 s40, {s(sROLE)}, 2
    s_mul_i32 s40, s40, 2560
    s_and_b32 s41, {s(sROLE)}, 1
    s_bfe_u32 s42, {s(sROLE)}, 0x10001
    s_lshl_b32 s43, s41, 7
    s_lshl_b32 s46, s42, 5
    s_add_u32 s43, s43, s46
    s_add_u32 s43, s43, s40
    s_add_u32 s43, s43, 2048
    v_and_b32 {v(T+7)}, 1, {v(T+6)}
    v_lshlrev_b32 {v(T+7)}, 8, {v(T+7)}
    v_lshrrev_b32 {v(T+8)}, 1, {v(T+6)}
    v_lshl_add_u32 {v(T+7)}, {v(T+8)}, 6, {v(T+7)}
    v_lshl_add_u32 {v(T+7)}, {v(T+5)}, 2, {v(T+7)}
    v_add_u32 {v(T+7)}, s43, {v(T+7)}
    s_lshl_b32 s43, s42, 10
    s_lshl_b32 s46, s41, 9
    s_add_u32 s43, s43, s46
    s_add_u32 s43, s43, s40
    v_subrev_u32 {v(T+8)}, 4, {v(T+6)}
    v_lshrrev_b32 {v(T+9)}, 2, {v(T+8)}
    v_and_b32 {v(T+8)}, 3, {v(T+8)}
    v_lshlrev_b32 {v(T+8)}, 2, {v(T+8)}
    v_lshl_add_u32 {v(T+8)}, {v(T+9)}, 7, {v(T+8)}
    v_lshl_add_u32 {v(T+8)}, {v(T+5)}, 4, {v(T+8)}
    v_add_u32 {v(T+8)}, s43, {v(T+8)}
    v_cmp_gt_u32 vcc, 4, {v(T+6)}
    v_cndmask_b32 {v(vPS)}, {v(T+8)}, {v(T+7)}, vcc
    s_mul_i32 s40, {s(sW)}, 6144
    s_add_u32 s40, s40, {L_RW}
    v_lshl_add_u32 {v(vRW)}, v0, 4, s40
    s_mov_b32 {s(sM20)}, 0x000fffff
    s_mov_b32 {s(sM20+1)}, 0x000fffff
    s_mov_b32 {s(sMHI)}, 0xff00ff00
    s_mov_b32 {s(sMHI+1)}, 0xff00ff00
    s_mov_b32 {s(sMG)}, 0
    s_mov_b32 {s(sMG+1)}, -1
    v_mov_b32 {v(vSN)}, {SENT}
    ''')
    addp(A, sP, sWS, PS_OFF); addp(A, 40, sP, PS_SLOT)
    A.I(f'''
    s_mov_b64 exec, {s(sM20,2)}
    global_store_dword {v(vPS)}, {v(vSN)}, {s(sP,2)} sc1
    global_store_dword {v(vPS)}, {v(vSN)}, s[40:41] sc1
    s_mov_b64 exec, -1
    s_waitcnt lgkmcnt(0)
    ''')
    xcc_publish(A, sROLE, T + 12)
    warm(A, 'L_sc_step', 'L_sd_step', T + 12)
    addp(A, sX1, sX0, 16 * 896)
    def xdma():
        for k in range(8):
            L, t = k >> 1, k & 1
            A.I(f's_add_u32 m0, {s(sXB)}, {k*1024 - (64*L if L < 3 else 0)}')
            base = s(sX0 if t == 0 else sX1, 2)
            A.I(f'global_load_lds_dwordx4 {v(vX0)}, {base} offset:{64*L}' if L < 3 else f'global_load_lds_dwordx4 {v(vX1)}, {base}')
        addp(A, sX0, sX0, XI_SEG); addp(A, sX1, sX1, XI_SEG)
        if XB2: A.I(f's_xor_b32 {s(sXB)}, {s(sXB)}, 0x8000')
    def xread():
        for k in range(8): A.I(f'ds_read_b128 {v(RING+4*k,4)}, {v(vXB)} offset:{k*1024}')
        for L in range(4):
            A.I(f's_waitcnt lgkmcnt({6-2*L})')
            for k in range(8): A.I(f'v_mov_b32 {v(XF+8*L+k)}, {v(RING+8*L+4*(k&1)+(k>>1))}')
        for k in range(4): A.I(f'v_mov_b32 {v(SACC+4+k)}, 0')
        if XB2: A.I(f'v_xor_b32 {v(vXB)}, 0x8000, {v(vXB)}')
    XB2 = 'nox2' not in OPT
    SC = 'sc' in OPT
    ixw = {x: i for i, x in enumerate(seq)}
    def wq(i, hf):
        if i < 3: return ('v', R + 8 * i + 4 * hf)
        if i < 35: return ('a', 8 * (i - 3) + 4 * hf)
        return ('v', WV + 8 * (i - 35) + 4 * hf)
    def rq(q, n=4): return (v if q[0] == 'v' else a_)(q[1], n)
    if SC:
        VREG = [wq(i, hf) for i, (L, jj) in enumerate(seq) if L >= 2 and i >= 3 for hf in range(2)][:32]
        UR, TC, ACC, vUS, vVS, vL, vUB, vUR = 20, 44, 52, 108, 110, 114, 118, 122
        sQ, sK, sL = 46, 48, 50
        A.I(f'''
        s_load_dwordx4 s[52:55], s[0:1], {KA_WQ}
        v_lshrrev_b32 v20, 5, v0
        v_and_b32 v21, 31, v0
        v_and_b32 v22, 15, v0
        v_lshrrev_b32 v23, 4, v0
        s_and_b32 s40, {s(sW)}, 1
        s_lshl_b32 s40, s40, 1
        s_lshl_b32 s41, {s(sW)}, 3
        ''')
        for b in range(2):
            A.I(f'''
            v_add_u32 v24, {2*b}, v20
            v_lshlrev_b32 v25, 2, v24
            v_xor_b32 v25, v25, v21
            v_lshlrev_b32 v26, 13, v24
            v_lshl_add_u32 {v(vVS+b)}, v25, 4, v26
            v_xor_b32 {v(vVS+2+b)}, 32, {v(vVS+b)}
            v_xor_b32 v25, s40, v25
            v_add_u32 v24, s41, v24
            v_lshlrev_b32 v26, 13, v24
            v_lshl_add_u32 {v(vUS+b)}, v25, 4, v26
            ''')
        A.I(f'''
        v_and_b32 v24, 3, v22
        v_lshlrev_b32 v25, 2, v24
        v_bfe_u32 v26, v22, 2, 1
        v_lshl_add_u32 v25, v26, 1, v25
        v_lshrrev_b32 v27, 2, v22
        v_lshl_add_u32 v27, v27, 3, v24
        v_lshlrev_b32 v27, 9, v27
        v_lshlrev_b32 v26, 4, v26
        v_lshrrev_b32 v28, 3, v22
        v_lshl_add_u32 v26, v28, 2, v26
        v_add_u32 v26, v26, v24
        v_lshlrev_b32 v26, 9, v26
        s_lshl_b32 {s(sL)}, {s(sW)}, 15
        v_add_u32 v26, {s(sL)}, v26
        ''')
        for b in range(4):
            A.I(f'''
            v_add_u32 v24, {4*b}, v23
            v_xor_b32 v24, v24, v25
            v_lshl_add_u32 {v(vUB+b)}, v24, 4, v27
            v_lshl_add_u32 {v(vL+b)}, v24, 4, v26
            ''')
        A.I(f'''
        s_lshl_b32 s40, {s(sROLE)}, 9
        s_lshl_b32 s41, {s(sTMP)}, 18
        s_add_u32 s41, s41, s40
        s_waitcnt lgkmcnt(0)
        ''')
        addps(A, sQ, 52, 40); addps(A, sK, 54, 41)
        vm = Cnt(A, 'vmcnt', 63); l2 = Cnt(A, 'lgkmcnt', 15)
        for k in range(32):
            A.I(f's_add_u32 m0, {s(sL)}, {k*1024}')
            A.I(f'global_load_lds_dwordx4 {v(vVS + (k&1) + 2*((k>>3)&1))}, {s(sK,2)} {prep.LDNT}'); vm.add('V')
            if k & 1: addp(A, sK, sK, 32768)
        A.I(f's_lshl_b32 {s(sL)}, {s(sW)}, 12')
        slot = lambda j: [8, 9][j] if j < 2 else (j - 2) % 10
        def issueU(j):
            for kk in range(4):
                A.I(f's_add_u32 m0, {s(sL)}, {slot(j)*16384 + kk*1024}')
                A.I(f'global_load_lds_dwordx4 {v(vUS + (kk&1))}, {s(sQ,2)} {prep.LDNT}'); vm.add(('U', j))
                if kk == 1: addp(A, sQ, sQ, 32768)
            addp(A, sQ, sQ, 32 * 8192 - 32768)
        issueU(0); issueU(1)
        vm.wait('V')
        for t in range(4):
            for kk in range(8):
                A.I(f'ds_read_b128 {rq(VREG[8*t+kk])}, {v(vL+(kk&3))} offset:{(t>>1)*16384 + (t&1)*4096 + (kk>>2)*256}')
            A.I('s_waitcnt lgkmcnt(0)')
        tl(A, 1, 6, 44)
        A.I('s_barrier')
        for j in range(2, 10): issueU(j)
        for j in range(14):
            for b in range(4): A.I(f'v_add_u32 {v(vUR+b)}, {slot(j)*16384}, {v(vUB+b)}')
            vm.wait(('U', j)); A.I('s_barrier')
            if 1 <= j <= 4: issueU(j + 9)
            if j == 7: tl(A, 1, 7, 44)
            def rdu(kk):
                for tp in range(2):
                    A.I(f'ds_read_b128 {v(UR+8*(kk%3)+4*tp,4)}, {v(vUR+(kk&3))} offset:{tp*2048 + (kk>>2)*256}'); l2.add((kk, tp))
            rdu(0); rdu(1)
            for kk in range(8):
                for tp in range(2):
                    l2.wait((kk, tp))
                    for t in range(4):
                        acc = v(ACC + 8*t + 4*tp, 4)
                        A.I(f'v_mfma_f32_16x16x32_bf16 {acc}, {v(UR+8*(kk%3)+4*tp,4)}, {rq(VREG[8*t+kk])}, {acc if kk else 0}')
                        if tp == 0 and t == 0 and kk + 2 < 8: rdu(kk + 2)
            A.I(f's_mov_b32 s40, {f32(CSC)}\n s_mov_b32 s41, s40')
            for e in range(2):
                for tp in range(2):
                    q = wq(ixw[(e, j)], tp)
                    for k in range(2):
                        for y in range(2):
                            r = ACC + 8*(2*e+y) + 4*tp + 2*k
                            A.I(f'v_pk_mul_f32 {v(r,2)}, {v(r,2)}, s[40:41]')
                    for k in range(2):
                        for y in range(2):
                            r = ACC + 8*(2*e+y) + 4*tp + 2*k
                            d = q[1] + 2*k + y if q[0] == 'v' else TC + 2*k + y
                            A.I(f'v_cvt_pk_bf16_f32 {v(d)}, {v(r)}, {v(r+1)}')
                    if q[0] == 'a':
                        for k in range(4): A.I(f'v_accvgpr_write_b32 {a_(q[1]+k)}, {v(TC+k)}')
        A.I('s_barrier')
        for k in range(6): A.I(f'ds_write_b128 {v(vRW)}, {v(R+4*k,4)} offset:{k*1024}')
        tl(A, 1, 5, T)
    A.I(f'''
    v_mov_b32 {v(T+6)}, 0xff800000
    v_mov_b32 {v(T+7)}, 0xff800000
    ds_write_b64 {v(vCK)}, {v(T+6,2)} offset:160
    ''')
    xdma()
    if XB2: xdma()
    A.I(f'''
    s_mul_i32 s40, {s(sROLE)}, {MF_HEAD}
    s_and_b32 s41, {s(sW)}, 1
    s_mul_i32 s41, s41, {7*2048}
    s_mul_i32 s42, {s(sTMP)}, {14*2048}
    s_mul_i32 s43, {s(sTMP2)}, {14*2048}
    v_lshlrev_b32 {v(T+8)}, 4, v0
    v_add_u32 {v(T+9)}, s42, {v(T+8)}
    s_add_u32 s46, s43, s41
    v_add_u32 {v(T+11)}, s46, {v(T+8)}
    ''')
    addp(A, sWT, sWS, MF_OFF); addps(A, sWT, sWT, 40)
    def wload(i):
        L, jj = seq[i]
        addp(A, 40, sWT, ((L % 3) * 14 + jj) * 2048)
        for hf in range(2): A.I(f'global_load_dwordx4 {rq(wq(i, hf))}, {v(T + 11 if L == 3 else T + 9)}, s[40:41] offset:{hf*1024} sc1')
    if SC or 'noprog' in OPT:
        xcc_check(A, 'sc0', T + 12)
        wait_tiles(A, 'sc', T + 12, 0, 'head', sROLE)
        tl(A, 1, 4, T + 12)
        for i, (L, jj) in enumerate(seq):
            if SC and L < 2: continue
            wload(i)
            if i > 23: A.I('s_waitcnt vmcnt(42)')
    else:
        addp(A, sVX, sWS, PF_OFF)
        A.I(f'''
        s_lshl_b32 s40, {s(sROLE)}, 5
        v_bfe_u32 {v(T+12)}, v0, 3, 1
        v_lshl_add_u32 {v(T+12)}, {v(T+12)}, 9, s40
        v_and_b32 {v(T+13)}, 7, v0
        v_lshl_add_u32 {v(T+12)}, {v(T+13)}, 2, {v(T+12)}
        s_mov_b32 s46, 0x7f
L_sc_w:
        global_load_dword {v(T+13)}, {v(T+12)}, {s(sVX,2)} sc1
        ''')
        bud(A)
        A.I(f'''
        s_waitcnt vmcnt(0)
        v_cmp_ne_u32 vcc, 0, {v(T+13)}
        s_lshr_b32 s47, vcc_lo, 8
        s_and_b32 s47, s47, vcc_lo
        s_and_b32 s47, s47, s46
        s_andn2_b32 s46, s46, s47
        ''')
        for jb in range(7):
            A.I(f's_bitcmp0_b32 s47, {jb}\n s_cbranch_scc1 L_sc_w{jb}\n s_waitcnt vmcnt(48)')
            for j in (2 * jb, 2 * jb + 1):
                for L in range(3): wload(ixw[(L, j)])
            A.label(f'L_sc_w{jb}')
        A.I(f's_cmp_lg_u32 s46, 0\n s_cbranch_scc1 L_sc_w\n s_waitcnt vmcnt(48)')
        tl(A, 1, 4, T + 14)
        for jj in range(7): wload(ixw[(3, jj)])
    xcc_check(A, 'sc', T + 12)
    if not SC:
        for k in range(6): A.I(f'ds_write_b128 {v(vRW)}, {v(R+4*k,4)} offset:{k*1024}')
    xread()
    addp(A, sMEM, sWS, MEMS_OFF)
    if prof:
        A.I(f's_lshl_b32 s40, {s(sROLE)}, 2\n s_add_u32 s40, s40, {s(sW)}\n s_lshl_b32 s40, s40, 12')
        addp(A, sDBG, sWS, END_OFF); addps(A, sDBG, sDBG, 40)
    for k in range(16): A.I(f'v_mov_b32 {v(TACC+k)}, 0')
    A.I(f'''
    v_and_b32 {v(T)}, 16, v0
    v_cmp_eq_u32 vcc, 0, {v(T)}
    v_mov_b32 {v(T)}, {f32(2.0 ** -LIM)}
    v_cndmask_b32 {v(vLO)}, 0, {v(T)}, vcc
    s_mov_b32 {s(sHI)}, {f32(2.0 ** (LIM - 1))}
    s_waitcnt vmcnt(0) lgkmcnt(0)
    ''')
    tl(A, 1, 1, T)
    if GX:
        A.I(f'''
L_gx:
        s_memrealtime s[40:41]
        s_waitcnt lgkmcnt(0)
        s_sub_u32 s40, s40, s92
        s_cmp_lt_u32 s40, {GX*100}
        s_cbranch_scc1 L_gx
        ''')
    A.I(f's_cmp_eq_u32 {s(sEA)}, 0\n s_cbranch_scc1 L_sd_step')
    def loop(tg, sc):
        if ALS >= 0:
            A.raw('.p2align 6, , 63')
            for _ in range(ALS): A.I('s_nop 0')
        A.label(f'L_{tg}_step')
        stamp(A, 0, prof)
        if prof: A.I('s_memtime s[62:63]')
        mem_poll(A, tg, vG0, vPR, TMP)
        stamp(A, 1, prof)
        lg.clear()
        def rdfrag(jj):
            A.I(f'ds_read_b128 {v(RING + 4*(jj%8), 4)}, {v(vAF0)} offset:{jj*512}'); lg.add(('f', jj))
        GR = [SACC, SACC + 8]
        def rdg(jj):
            if 'nog' in OPT: return
            A.I(f'ds_read_b128 {v(GR[jj&1], 4)}, {v(vAF1)} offset:{jj*512}'); lg.add(('g', jj))
        def rdmemb(L):
            if 'nomb' in OPT: return
            ad = f'{v(vMB0)} offset:{L*512}' if L < 3 else f'{v(vMB1)}'
            A.I(f'ds_read_b128 {v(MEMB + 4*L, 4)}, {ad}'); lg.add(('m', L))
        def cvt(L, k): A.I(f'v_cvt_pk_bf16_f32 {v(TMP + 2*(L&1) + k)}, {v(TACC+4*L+2*k)}, {v(TACC+4*L+2*k+1)}')
        def twr(L):
            A.I(f'ds_write_b64 {v(vTW)}, {v(TMP + 2*(L&1), 2)} offset:{L*768}'); lg.add(('w', L))
        TOPD = RING + 4 * (8 % 8)
        top = {0: TOPA, 1: TOPB, 2: TOPD, 3: TOPC}
        def trr(L):
            A.I(f'ds_read_b64_tr_b16 {v(top[L], 2)}, {v(vTR)} offset:{L*768}'); lg.add(('x', L))
            A.I(f'ds_read_b64_tr_b16 {v(top[L]+2, 2)}, {v(vTR)} offset:{L*768+384}'); lg.add(('t', L))
        def smm1(L, t, first=False):
            lg.wait(('m', L)); lg.wait(('t', L))
            if t == 0: A.I(f'v_mfma_f32_16x16x32_bf16 {v(SACC,4)}, {v(MEMB + 4*L, 4)}, {v(top[L],4)}, {0 if first else v(SACC,4)}')
            else: A.I(f'v_smfmac_f32_16x16x64_bf16 {v(SACC+4,4)}, {v(top[L],4)}, {v(XF + 8*L, 8)}, {v(vIDX)}')
        def chk(j0, first=False):
            if 'nochk' in OPT and not first: return
            a, b = v(RING + 4*(j0 % 8)), v(RING + 4*((j0+1) % 8))
            if first: A.I(f'v_max_u32 {v(vCK)}, {a}, {b}')
            else: A.I(f'v_max3_u32 {v(vCK)}, {a}, {b}, {v(vCK)}')
        fill = {i: [] for i in range(49)}
        ix = {x: i for i, x in enumerate(seq)}
        fill[0].append(lambda: rdg(0)); fill[1].append(lambda: rdfrag(2)); fill[ix[(1, 1)]].append(lambda: rdg(1))
        for k in range(3, 8): fill[ix[(0, k - PD)]].append(lambda k=k: rdfrag(k))
        for k in range(5): fill[ix[(3, k)]].append(lambda k=k: rdg(k + 2))
        for k in range(6): fill[ix[(2, k)]].append(lambda k=k: rdfrag(8 + k))
        e3 = ix[(3, 6)]
        if 'nol3' not in OPT: fill[e3 + 2].append(lambda: cvt(3, 0)); fill[e3 + 3].append(lambda: cvt(3, 1)); fill[e3 + 5].append(lambda: twr(3)); fill[e3 + 6].append(lambda: trr(3))
        for k, L in enumerate([3, 0, 1, 2]): fill[ix[(0, 10 + k)]].append(lambda L=L: rdmemb(L))
        for j0 in range(0, 14, 2):
            i = ix[(0, j0 + 1)]
            while i in (e3 + 2, e3 + 3): i += 1
            fill[i].append(lambda j0=j0: chk(j0, j0 == 0))
        fill[42].append(lambda: A.I(f'v_cmp_eq_u32 vcc, {s(sSENT)}, {v(vCK)}'))
        fill[43].append(lambda: cvt(0, 0)); fill[44].append(lambda: cvt(0, 1))
        fill[45] += [lambda: twr(0), lambda: cvt(1, 0)]; fill[46] += [lambda: trr(0), lambda: cvt(1, 1)]
        fill[47].append(lambda: twr(1)); fill[48].append(lambda: trr(1))
        fill[ix[(1, 5)]].insert(0, lambda: addp(A, 40, sP, 2 * PS_SLOT))
        fill[ix[(1, 6)]].insert(0, lambda: A.I(f's_mov_b64 exec, {s(sM20,2)}\n global_store_dword {v(vPS)}, {v(vSN)}, s[40:41] {sc}\n s_mov_b64 exec, -1'))
        rdfrag(0); rdfrag(1)
        for i, (L, jj) in enumerate(seq):
            lg.now = i; lg.wait_old(('f', jj) if L < 3 else ('g', jj), AGE)
            A.I(f'v_smfmac_f32_16x16x64_bf16 {v(TACC+4*L,4)}, {v(RING+4*(jj%8) if L < 3 else GR[jj&1],4)}, {wreg(i)}, {v(vIDX)}')
            if i == 0: stamp(A, 8, prof > 1)
            if i == 24: stamp(A, 9, prof > 1)
            for f in fill[i]: f()
        stamp(A, 2, prof > 1)
        smm1(3, 1); smm1(3, 0, True)
        cvt(2, 0); cvt(2, 1); twr(2); trr(2)
        A.I(f's_cbranch_vccnz L_{tg}_redo')
        for L in (0, 1): smm1(L, 1); smm1(L, 0)
        smm1(2, 0); smm1(2, 1)
        stamp(A, 10, prof > 1)
        Z = RING + 4
        A.I(f'''
        v_cndmask_b32 {v(Z)}, {v(SACC)}, {v(SACC+1)}, {s(sMHI,2)}
        v_cndmask_b32 {v(Z+1)}, {v(SACC+2)}, {v(SACC+3)}, {s(sMHI,2)}
        v_cndmask_b32 {v(Z)}, {v(Z)}, {v(Z+1)}, {s(sMG,2)}
        ds_write_b32 {v(vSM)}, {v(Z)}
        ds_write2_b32 {v(vSW)}, {v(SACC+4)}, {v(SACC+5)} offset0:0 offset1:44
        ds_write2_b32 {v(vSW)}, {v(SACC+6)}, {v(SACC+7)} offset0:88 offset1:132
        ''')
        stamp(A, 11, prof > 1)
        for k in range(FA): A.I(f'v_mov_b32 {v(TACC+k)}, 0')
        A.I('s_waitcnt lgkmcnt(0)')
        stamp(A, 12, prof > 1)
        A.I('s_barrier')
        stamp(A, 3, prof)
        for k in range(4): A.I(f'ds_read_b64 {v(Z+2*k,2)}, {v(vSR)} offset:{k*1408}')
        for k in range(FA, FA + FB): A.I(f'v_mov_b32 {v(TACC+k)}, 0')
        E, M = Z + 8, Z + 10
        A.I(f'''
        s_waitcnt lgkmcnt(2)
        v_pk_add_f32 {v(Z,2)}, {v(Z,2)}, {v(Z+2,2)}
        s_waitcnt lgkmcnt(0)
        v_pk_add_f32 {v(Z+4,2)}, {v(Z+4,2)}, {v(Z+6,2)}
        v_pk_add_f32 {v(Z,2)}, {v(Z,2)}, {v(Z+4,2)}
        ''')
        stamp(A, 13, prof > 1)
        def summ(a, check=False):
            A.I(f'''
            v_exp_f32 {v(E)}, {v(a)}
            v_exp_f32 {v(E+1)}, {v(a+1)}
            v_add_f32 {v(M)}, {v(E)}, {v(E+1)}
            ''')
            for k in (8, 4, 2, 1): A.I(f'v_add_f32_dpp {v(M)}, {v(M)}, {v(M)} {dpp(k)}')
            A.I(f'v_mov_b32 {v(M+1)}, {v(M)}')
            if check: A.I(f'v_med3_f32 {v(M+3)}, {v(M)}, {v(vLO)}, {s(sHI)}\n v_cmp_neq_f32 vcc, {v(M+3)}, {v(M)}')
            A.I(f'''
            v_permlane16_swap_b32 {v(M)}, {v(M+1)}
            v_add_f32 {v(M)}, {v(M)}, {v(M+1)}
            ''')
        def truemax():
            A.I(f'v_max_f32 {v(M)}, {v(Z)}, {v(Z+1)}')
            for k in (8, 4, 2, 1): A.I(f'v_max_f32_dpp {v(M)}, {v(M)}, {v(M)} {dpp(k)}')
            A.I(f'''
            v_mov_b32 {v(M+1)}, {v(M)}
            v_permlane16_swap_b32 {v(M)}, {v(M+1)}
            v_max_f32 {v(M)}, {v(M)}, {v(M+1)}
            v_sub_f32 {v(E)}, {v(Z)}, {v(M)}
            v_sub_f32 {v(E+1)}, {v(Z+1)}, {v(M)}
            ''')
            summ(E)
        def norm():
            A.I(f'''
            v_rcp_f32 {v(M+2)}, {v(M)}
            s_mov_b64 exec, {s(sM20,2)}
            v_pk_mul_f32 {v(E,2)}, {v(E,2)}, {v(M+2,2)} op_sel_hi:[1,0]
            v_cvt_pk_bf16_f32 {v(E)}, {v(E)}, {v(E+1)}
            ''')
        if 'max' in OPT: truemax(); norm()
        else: summ(Z, True); stamp(A, 14, prof > 1); norm(); A.I(f's_cbranch_vccnz L_{tg}_max')
        A.label(f'L_{tg}_norm')
        A.I(f'global_store_dword {v(vPS)}, {v(E)}, {s(sP,2)} {sc}')
        stamp(A, 4, prof)
        A.I(f's_mov_b64 exec, -1\n s_add_u32 {s(sSTEP)}, {s(sSTEP)}, 1\n s_cmp_ge_u32 {s(sSTEP)}, {NSTEP}\n s_cbranch_scc1 L_sc_end')
        if XB2: A.I(f's_cmp_ge_u32 {s(sSTEP)}, {NSTEP-1}\n s_cbranch_scc1 L_{tg}_nox')
        if 'nox' not in OPT: xdma()
        A.label(f'L_{tg}_nox')
        for k in range(6): A.I(f'ds_read_b128 {v(R+4*k,4)}, {v(vRW)} offset:{k*1024}')
        for k in range(FA + FB, 16): A.I(f'v_mov_b32 {v(TACC+k)}, 0')
        addp(A, sP, sP, PS_SLOT); addp(A, sMEM, sMEM, MEM_SLOT)
        stamp_flush(A, prof)
        if not XB2: A.I('s_waitcnt vmcnt(0)')
        xread()
        if SS: A.I(f's_sleep {SS}')
        stamp(A, 5, prof)
        A.I(f's_branch L_{tg}_step')
        if 'max' not in OPT:
            A.label(f'L_{tg}_max'); A.I('s_mov_b64 exec, -1\n s_nop 1'); truemax(); norm(); A.I(f's_branch L_{tg}_norm')
        A.label(f'L_{tg}_redo')
        if prof: A.I(f's_add_u32 {s(sreg(15))}, {s(sreg(15))}, 1')
        A.I('s_waitcnt vmcnt(0) lgkmcnt(0)\n s_nop 15\n s_barrier')
        for k in range(6): A.I(f'ds_read_b128 {v(R+4*k,4)}, {v(vRW)} offset:{k*1024}')
        for k in range(16): A.I(f'v_mov_b32 {v(TACC+k)}, 0')
        for k in range(4): A.I(f'v_mov_b32 {v(SACC+4+k)}, 0')
        A.I(f's_branch L_{tg}_mp')
    loop('sc', ''); loop('sd', 'sc1')
    A.label('L_sc_end')
    tl(A, 1, 2, T)
    stamp_flush(A, prof)
    A.I('s_endpgm')

def value(A, prof=0):
    L_MEM, L_RB, L_WL, L_VB = 0, 8192, 16384, 131072
    DEC = 'dec' in OPT
    H3R, NR = 136, NRES
    RBW = 32 * 48
    vIDX, vG0, vCK, vPR, vAF, vWL, vV0, vV1, vPM, vPX, vSN, vRWR, vRRD, vMS, vZ, vDUM, vFL, vVB, vVP = range(1, 20)
    ARING, HRING, VXF, WACC, WX, WY, OX, OY, PF, WV = 20, 36, 60, 92, 108, 112, 116, 120, 124, 176
    lg = Cnt(A, 'lgkmcnt', 15)
    def wreg(hh, j):
        k = (hh * 14 + j) * 8
        return a_(k, 8) if k < 256 else v(WV + k - 256, 8)
    A.label('L_value')
    chain_common(A)
    T = 20
    A.I(f's_mov_b32 {s(sTMP)}, {s(sROLE)}\n s_sub_u32 {s(sROLE)}, {s(sROLE)}, 16')
    idx_setup(A, vIDX, T)
    mem_poll_setup(A, vG0, vPR, T + 4, DEC)
    A.I(f'''
    v_lshlrev_b32 {v(vAF)}, 7, {v(T+1)}
    v_lshl_add_u32 {v(vAF)}, {v(T+2)}, 4, {v(vAF)}
    s_mul_i32 s40, {s(sW)}, 28672
    s_add_u32 s40, s40, {L_WL}
    v_lshl_add_u32 {v(vWL)}, v0, 4, s40
    s_lshl_b32 s40, {s(sW)}, 13
    v_lshl_add_u32 {v(vV0)}, v0, 4, s40
    v_add_u32 {v(vV1)}, 4096, {v(vV0)}
    s_mul_i32 s40, {s(sW)}, 2560
    v_and_b32 {v(T+5)}, 1, {v(T+1)}
    v_lshl_add_u32 {v(vPX)}, v0, 4, s40
    v_lshl_add_u32 {v(vPM)}, v0, 2, s40
    v_lshlrev_b32 {v(vFL)}, 2, {v(T)}
    s_and_b32 s41, {s(sW)}, 1
    s_lshl_b32 s41, s41, 13
    v_lshl_add_u32 {v(vVP)}, v0, 4, s41
    s_add_u32 {s(sXB)}, s41, {L_VB}
    v_lshl_add_u32 {v(vVB)}, v0, 4, {s(sXB)}
    s_mul_i32 s40, {s(sW)}, {RBW}
    s_add_u32 s40, s40, {L_RB}
    v_lshrrev_b32 {v(T+7)}, 5, v0
    v_lshl_add_u32 {v(T+7)}, {v(T+7)}, 4, {v(T)}
    v_mul_u32_u24 {v(T+7)}, 48, {v(T+7)}
    v_lshl_add_u32 {v(T+7)}, {v(T+5)}, 4, {v(T+7)}
    v_add_u32 {v(vRWR)}, s40, {v(T+7)}
    s_and_b32 s40, {s(sW)}, 1
    s_lshl_b32 s40, s40, 4
    s_lshr_b32 s41, {s(sW)}, 1
    s_lshl_b32 s41, s41, 2
    s_add_u32 s40, s40, s41
    v_bfe_u32 {v(T+7)}, v0, 2, 1
    v_lshlrev_b32 {v(T+7)}, 3, {v(T+7)}
    v_and_b32 {v(T+8)}, 3, v0
    v_add3_u32 {v(T+7)}, {v(T+7)}, {v(T+8)}, s40
    v_mul_u32_u24 {v(T+7)}, 48, {v(T+7)}
    v_lshrrev_b32 {v(T+8)}, 3, v0
    v_lshl_add_u32 {v(T+7)}, {v(T+8)}, 2, {v(T+7)}
    v_add_u32 {v(vRRD)}, {L_RB}, {v(T+7)}
    s_lshl_b32 s40, {s(sROLE)}, 9
    s_lshl_b32 s41, {s(sW)}, 7
    s_add_u32 s40, s40, s41
    v_lshl_add_u32 {v(vMS)}, v0, 1, s40
    v_mov_b32 {v(vSN)}, {SENT}
    ''')
    addp(A, sMEM, sWS, MEMS_OFF); addp(A, 40, sMEM, MEM_SLOT); addp(A, 42, sMEM, 2 * MEM_SLOT)
    A.I(f'''
    global_store_short {v(vMS)}, {v(vSN)}, s[40:41] sc1
    global_store_short {v(vMS)}, {v(vSN)}, s[42:43] sc1
    ''')
    xcc_publish(A, sTMP, T + 12)
    warm(A, 'L_va_step', 'L_vb_step', T + 12)
    A.I(f'''
    s_mul_i32 s40, {s(sW)}, {4*MF_HEAD}
    s_mul_i32 s41, {s(sROLE)}, {14*2048}
    s_add_u32 s40, s40, s41
    s_cmp_ge_u32 {s(sROLE)}, 8
    s_cselect_b32 {s(sTMP)}, 1, 0
    v_lshlrev_b32 {v(T+8)}, 4, v0
    ''')
    addp(A, sWT, sWS, MF_OFF + MF_MAT); addps(A, sWT, sWT, 40)
    addp(A, sVX, sWS, PF_OFF + 1024)
    A.I(f'''
    s_lshl_b32 s40, {s(sTMP)}, 9
    s_lshl_b32 s41, {s(sW)}, 7
    s_add_u32 s40, s40, s41
    v_lshl_add_u32 {v(T+12)}, {v(T+2)}, 2, s40
    ''')
    order = (3, 0, 1, 2)
    for n, hh in enumerate(order):
        if n: A.I(f's_waitcnt vmcnt(28)\n v_cmp_eq_u32 vcc, 0, {v(T+13)}\n s_cbranch_vccz L_va_w{hh}ok')
        A.I(f'L_va_w{hh}:\n global_load_dword {v(T+13)}, {v(T+12)}, {s(sVX,2)} offset:{32*hh} sc1')
        bud(A)
        A.I(f's_waitcnt vmcnt(0)\n v_cmp_eq_u32 vcc, 0, {v(T+13)}\n s_cbranch_vccnz L_va_w{hh}\nL_va_w{hh}ok:')
        if hh == 3: tl(A, 1, 4, T + 14)
        if hh == 1:
            for k in range(2 * NR, 28): A.I(f'ds_write_b128 {v(vWL)}, {v(60+4*k,4)} offset:{k*1024}')
            A.I('s_waitcnt lgkmcnt(0)')
            for k in range(8 * NR): A.I(f'v_mov_b32 {v(H3R+k)}, {v(60+k)}')
        if n < 3: A.I(f'global_load_dword {v(T+13)}, {v(T+12)}, {s(sVX,2)} offset:{32*order[n+1]} sc1')
        addp(A, 40, sWT, hh * MF_HEAD)
        for q in range(28):
            if hh == 3: dst = v(60 + 4 * q, 4)
            else:
                k = 112 * hh + 4 * q; dst = a_(k, 4) if k < 256 else v(WV + k - 256, 4)
            A.I(f'global_load_dwordx4 {dst}, {v(T+8)}, s[40:41] offset:{(q%4)*1024} sc1')
            if q % 4 == 3: addp(A, 40, 40, 4096)
    assist(A, 'va_as', sROLE, T + 12)
    xcc_check(A, 'va', T + 12)
    addp(A, sP, sWS, PS_OFF); addp(A, sFL, sWS, FL_OFF); addp(A, sMT, sWS, MEMT_OFF + 63 * MEMT_SLOT)
    A.I(f's_mul_i32 s40, {s(sROLE)}, {VX_SC}'); addp(A, sVX, sWS, VX_OFF); addps(A, sVX, sVX, 40)
    A.I('s_waitcnt vmcnt(0) lgkmcnt(0)')
    tl(A, 1, 1, T)
    def flagwait(tag, loaded):
        if loaded:
            A.I(f'v_cmp_eq_u32 vcc, 0, {v(vDUM)}\n s_cbranch_vccz L_{tag}_ok')
        A.I(f'L_{tag}:\n global_load_dword {v(vDUM)}, {v(vFL)}, {s(sFL,2)} sc1')
        bud(A)
        A.I(f'''
        s_waitcnt vmcnt(0)
        v_cmp_eq_u32 vcc, 0, {v(vDUM)}
        s_cbranch_vccnz L_{tag}
L_{tag}_ok:
        ''')
    flagwait('va_f0', False)
    tl(A, 1, 3, T)
    addp(A, sFL, sFL, 256)
    if prof:
        A.I(f's_add_u32 s40, {s(sROLE)}, 16\n s_lshl_b32 s40, s40, 2\n s_add_u32 s40, s40, {s(sW)}\n s_lshl_b32 s40, s40, 12')
        addp(A, sDBG, sWS, END_OFF); addps(A, sDBG, sDBG, 40)
    def vxload(k, force=False):
        if 'novx' in OPT and not force: return
        hh, t = k >> 1, k & 1
        A.I(f'global_load_dwordx4 {v(VXF+16*t+4*hh,4)}, {v(vV0 if hh < 2 else vV1)}, {s(sVX,2)} offset:{(hh&1)*2048+t*1024} sc1')
    def vxearly(tag):
        if not DEC:
            for k in range(VE): vxload(k)
            return
        A.I(f's_cmp_lt_u32 {s(sW)}, 2\n s_cbranch_scc1 L_{tag}')
        addp(A, 40, sVX, 4096)
        for k in range(8):
            A.I(f's_add_u32 m0, {s(sXB)}, {(k>>2)*4096}')
            A.I(f'global_load_lds_dwordx4 {v(vVP)}, {s(sVX if k < 4 else 40,2)} offset:{(k&3)*1024} sc1')
        for k in range(8): vxload(k)
        A.label(f'L_{tag}')
    def hslot(j): return [HRING, HRING + 8, HRING + 16, 168][(j - NR) % HD]
    def rdh(j):
        if j < NR or j >= 14: return
        for k in range(2):
            A.I(f'ds_read_b128 {v(hslot(j)+4*k,4)}, {v(vWL)} offset:{(2*j+k)*1024}'); lg.add(('h', j))
    def rda(j):
        A.I(f'ds_read_b128 {v(ARING+4*(j%4),4)}, {v(vAF)} offset:{j*512}'); lg.add(('a', j))
    def prep_():
        for k in range(16): A.I(f'v_mov_b32 {v(WACC+k)}, 0')
        for j in range(NR, NR + HD - 1): rdh(j)
    vxearly('va_e0')
    if 'novx' in OPT:
        for k in range(8): vxload(k, True)
    prep_()
    A.I(f's_cmp_eq_u32 {s(sEA)}, 0\n s_cbranch_scc1 L_vb_step')
    def loop(tg, sc):
        if ALV >= 0:
            A.raw('.p2align 6, , 63')
            for _ in range(ALV): A.I('s_nop 0')
        A.label(f'L_{tg}_step')
        stamp(A, 0, prof)
        (mem_poll_half if DEC else mem_poll)(A, tg, vG0, vPR, PF + 10)
        stamp(A, 1, prof)
        lg.clear()
        rda(0); rda(1); rda(2)
        addp(A, 40, sMEM, 3 * MEM_SLOT)
        A.I(f'global_store_short {v(vMS)}, {v(vSN)}, s[40:41] {sc}')
        for j in range(14):
            lg.wait(('a', j))
            for hh in range(4):
                if hh == 3: lg.wait(('h', j))
                w = wreg(hh, j) if hh < 3 else v(H3R + 8 * j, 8) if j < NR else v(hslot(j), 8)
                A.I(f'v_smfmac_f32_16x16x64_bf16 {v(WACC+4*hh,4)}, {v(ARING+4*(j%4),4)}, {w}, {v(vIDX)}' if 'now' not in OPT else 's_nop 3')
                if hh == 0 and j >= NR: rdh(j + HD - 1)
                if hh == 1 and j + 3 < 14: rda(j + 3)
                if hh == 2 and j < 8 - VE and not DEC: vxload(7 - j if 'vrev' in OPT else j + VE)
                if hh == 2 and j == 8 - VE: A.I(f'global_load_dword {v(vDUM)}, {v(vFL)}, {s(sFL,2)} sc1')
                if hh == 2:
                    if j == 0: A.I(f'v_mov_b32 {v(vCK)}, {v(ARING)}')
                    else: A.I(f'v_max_u32 {v(vCK)}, {v(vCK)}, {v(ARING+4*(j%4))}')
                if hh == 3 and j == 13: A.I(f'v_cmp_eq_u32 vcc, {s(sSENT)}, {v(vCK)}')
        A.I(f's_cbranch_vccnz L_{tg}_redo')
        if DEC:
            A.I(f's_waitcnt vmcnt(0)\n s_barrier\n s_cmp_ge_u32 {s(sW)}, 2\n s_cbranch_scc1 L_{tg}_nv')
            for k in range(8): A.I(f'ds_read_b128 {v(VXF+16*(k&1)+4*(k>>1),4)}, {v(vVB)} offset:{k*1024}')
            A.label(f'L_{tg}_nv')
        for k in range(2):
            for p in range(2):
                A.I(f'v_cvt_pk_bf16_f32 {v(WX+2*k+p)}, {v(WACC+8*p+2*k)}, {v(WACC+8*p+2*k+1)}')
                A.I(f'v_cvt_pk_bf16_f32 {v(WY+2*k+p)}, {v(WACC+8*p+4+2*k)}, {v(WACC+8*p+4+2*k+1)}')
        for k in range(4): A.I(f'v_permlane32_swap_b32 {v(WX+k)}, {v(WY+k)}')
        if DEC: A.I('s_waitcnt lgkmcnt(0)')
        stamp(A, 2, prof)
        if prof: A.I('s_waitcnt vmcnt(0)'); stamp(A, 6, prof)
        F = PF
        if 'nospec' in OPT:
            for k in range(8): A.I(f'v_mov_b32 {v(OX+k)}, 0')
        if PS_: A.I(f's_sleep {PS_}')
        A.I(f'''
L_{tg}_pp:
        global_load_dwordx4 {v(F,4)}, {v(vPX)}, {s(sP,2)} sc1
        global_load_dwordx4 {v(F+4,4)}, {v(vPX)}, {s(sP,2)} offset:1024 sc1
        global_load_dword {v(F+8)}, {v(vPM)}, {s(sP,2)} offset:2048 sc1
        global_load_dword {v(F+9)}, {v(vPM)}, {s(sP,2)} offset:2304 sc1
        ''')
        bud(A)
        if 'nospec' in OPT:
            A.I(f'''
            s_waitcnt vmcnt(0)
            v_max3_u32 {v(vCK)}, {v(F)}, {v(F+4)}, {v(F+8)}
            v_max_u32 {v(vCK)}, {v(vCK)}, {v(F+9)}
            v_cmp_eq_u32 vcc, {s(sSENT)}, {v(vCK)}
            s_cbranch_vccnz L_{tg}_pp
            v_smfmac_f32_16x16x64_bf16 {v(OX,4)}, {v(F,4)}, {v(VXF,8)}, {v(vIDX)}
            v_smfmac_f32_16x16x64_bf16 {v(OY,4)}, {v(F,4)}, {v(VXF+16,8)}, {v(vIDX)}
            v_smfmac_f32_16x16x64_bf16 {v(OX,4)}, {v(F+4,4)}, {v(VXF+8,8)}, {v(vIDX)}
            v_smfmac_f32_16x16x64_bf16 {v(OY,4)}, {v(F+4,4)}, {v(VXF+24,8)}, {v(vIDX)}
            v_smfmac_f32_16x16x32_bf16 {v(OX,4)}, {v(F+8,2)}, {v(WX,4)}, {v(vIDX)}
            v_smfmac_f32_16x16x32_bf16 {v(OY,4)}, {v(F+8,2)}, {v(WY,4)}, {v(vIDX)}
            ''')
        elif 'spec2' in OPT:
            for k in range(8): A.I(f'v_mov_b32 {v(OX+k)}, 0')
            A.I(f'''
            s_waitcnt vmcnt(0)
            v_max3_u32 {v(vCK)}, {v(F)}, {v(F+4)}, {v(F+8)}
            v_max_u32 {v(vCK)}, {v(vCK)}, {v(F+9)}
            v_cmp_eq_u32 vcc, {s(sSENT)}, {v(vCK)}
            v_smfmac_f32_16x16x64_bf16 {v(OX,4)}, {v(F,4)}, {v(VXF,8)}, {v(vIDX)}
            v_smfmac_f32_16x16x64_bf16 {v(OY,4)}, {v(F,4)}, {v(VXF+16,8)}, {v(vIDX)}
            s_cbranch_vccnz L_{tg}_pp
            v_smfmac_f32_16x16x64_bf16 {v(OX,4)}, {v(F+4,4)}, {v(VXF+8,8)}, {v(vIDX)}
            v_smfmac_f32_16x16x64_bf16 {v(OY,4)}, {v(F+4,4)}, {v(VXF+24,8)}, {v(vIDX)}
            v_smfmac_f32_16x16x32_bf16 {v(OX,4)}, {v(F+8,2)}, {v(WX,4)}, {v(vIDX)}
            v_smfmac_f32_16x16x32_bf16 {v(OY,4)}, {v(F+8,2)}, {v(WY,4)}, {v(vIDX)}
            ''')
        else:
            for k in range(8): A.I(f'v_mov_b32 {v(OX+k)}, 0')
            A.I(f'''
            s_waitcnt vmcnt(3)
            v_smfmac_f32_16x16x64_bf16 {v(OX,4)}, {v(F,4)}, {v(VXF,8)}, {v(vIDX)}
            v_smfmac_f32_16x16x64_bf16 {v(OY,4)}, {v(F,4)}, {v(VXF+16,8)}, {v(vIDX)}
            s_waitcnt vmcnt(0)
            v_max3_u32 {v(vCK)}, {v(F)}, {v(F+4)}, {v(F+8)}
            v_smfmac_f32_16x16x64_bf16 {v(OX,4)}, {v(F+4,4)}, {v(VXF+8,8)}, {v(vIDX)}
            v_max_u32 {v(vCK)}, {v(vCK)}, {v(F+9)}
            v_smfmac_f32_16x16x64_bf16 {v(OY,4)}, {v(F+4,4)}, {v(VXF+24,8)}, {v(vIDX)}
            v_cmp_eq_u32 vcc, {s(sSENT)}, {v(vCK)}
            v_smfmac_f32_16x16x32_bf16 {v(OX,4)}, {v(F+8,2)}, {v(WX,4)}, {v(vIDX)}
            v_smfmac_f32_16x16x32_bf16 {v(OY,4)}, {v(F+8,2)}, {v(WY,4)}, {v(vIDX)}
            s_cbranch_vccnz L_{tg}_pp
            ''')
        stamp(A, 3, prof)
        stamp(A, 8, prof > 1)
        A.flush()
        for r in range(4): A.I(f'v_permlane32_swap_b32 {v(OX+r)}, {v(OY+r)}')
        A.I(f'''
        v_pk_add_f32 {v(OX,2)}, {v(OX,2)}, {v(OY,2)}
        v_pk_add_f32 {v(OX+2,2)}, {v(OX+2,2)}, {v(OY+2,2)}
        ds_write_b128 {v(vRWR)}, {v(OX,4)}
        ''')
        stamp(A, 9, prof > 1)
        for k in range(FC): A.I(f'v_mov_b32 {v(WACC+k)}, 0')
        A.I('s_waitcnt lgkmcnt(0)')
        stamp(A, 10, prof > 1)
        A.I('s_barrier')
        stamp(A, 11, prof > 1)
        Z = ARING + 4
        for k in range(4): A.I(f'ds_read_b32 {v(Z+k)}, {v(vRRD)} offset:{k*RBW}')
        for k in range(FC, FC + FD): A.I(f'v_mov_b32 {v(WACC+k)}, 0')
        addp(A, sMEM, sMEM, MEM_SLOT); addp(A, sP, sP, PS_SLOT)
        A.I('s_waitcnt lgkmcnt(0)')
        stamp(A, 12, prof > 1)
        A.I(f'''
        v_pk_add_f32 {v(Z,2)}, {v(Z,2)}, {v(Z+2,2)}
        v_add_f32 {v(Z)}, {v(Z)}, {v(Z+1)}
        v_cvt_pk_bf16_f32 {v(vZ)}, {v(Z)}, {v(Z)}
        ''')
        A.I(f'global_store_short {v(vMS)}, {v(vZ)}, {s(sMEM,2)} {sc}')
        stamp(A, 4, prof)
        A.I(f's_add_u32 {s(sSTEP)}, {s(sSTEP)}, 1\n s_cmp_ge_u32 {s(sSTEP)}, {NSTEP}\n s_cbranch_scc1 L_va_end')
        flagwait(tg + '_f1', True)
        addp(A, sVX, sVX, 14 * VX_SC); addp(A, sFL, sFL, 256)
        vxearly(tg + '_e1')
        lg.clear(); prep_()
        stamp(A, 5, prof)
        stamp_flush(A, prof)
        A.I(f's_branch L_{tg}_step')
        A.label(f'L_{tg}_redo')
        if prof: A.I(f's_add_u32 {s(sreg(15))}, {s(sreg(15))}, 1')
        A.I('s_waitcnt vmcnt(0) lgkmcnt(0)\n s_nop 15\n s_barrier')
        lg.clear(); prep_()
        A.I(f's_branch L_{tg}_mp')
    loop('va', ''); loop('vb', 'sc1')
    A.label('L_va_end')
    if GE:
        A.I(f'''
L_ge:
        s_memrealtime s[40:41]
        s_waitcnt lgkmcnt(0)
        s_sub_u32 s40, s40, s92
        s_cmp_lt_u32 s40, {GE*100}
        s_cbranch_scc1 L_ge
        ''')
    if 'mtdirect' in OPT: A.I(f'global_store_short {v(vMS)}, {v(vZ)}, {s(sMT,2)} sc1')
    if 'wb' in OPT:
        A.I(f's_or_b32 s40, {s(sROLE)}, {s(sW)}\n s_cbranch_scc1 L_va_nwb\n s_waitcnt vmcnt(0)\n buffer_wbl2 sc1\n s_waitcnt vmcnt(0)\nL_va_nwb:')
    tl(A, 1, 2, T)
    stamp_flush(A, prof)
    A.I('s_endpgm')

def helper(A):
    vG0, vX, vP, vM, D = 1, 2, 3, 4, 8
    A.label('L_helper')
    A.I(f's_load_dwordx2 {s(sX0,2)}, s[0:1], {KA_X}\n s_waitcnt lgkmcnt(0)')
    chain_common(A)
    xcc_publish(A, sROLE, 20)
    A.I(f'''
    s_mul_i32 {s(sLB)}, {s(sW)}, 1792
    v_lshlrev_b32 {v(vG0)}, 4, v0
    v_add_u32 {v(vG0)}, {s(sLB)}, {v(vG0)}
    s_mov_b32 {s(sM48)}, -1
    s_mov_b32 {s(sM48+1)}, 0xffff
    s_mul_i32 s40, {s(sW)}, 7168
    v_min_u32 {v(vX)}, 55, v0
    v_lshl_add_u32 {v(vX)}, {v(vX)}, 7, s40
    s_mul_i32 s40, {s(sW)}, 2560
    v_min_u32 {v(vP)}, 19, v0
    v_lshl_add_u32 {v(vP)}, {v(vP)}, 7, s40
    v_min_u32 {v(vM)}, 13, v0
    v_lshl_add_u32 {v(vM)}, {v(vM)}, 7, {s(sLB)}
    v_add_u32 {v(vM)}, {4*MEM_SLOT}, {v(vM)}
    v_add_u32 {v(vP)}, {PS_SLOT * (2 if 'mtouch' in OPT else 0)}, {v(vP)}
    v_mov_b32 {v(D+4)}, 0
    v_mov_b32 {v(D+5)}, 0
    v_mov_b32 {v(D+6)}, 0
    v_mov_b32 {v(D+7)}, 0
    ''')
    A.I(f's_mov_b32 {s(sTMP)}, 14'); assist(A, 'he_as', sTMP, 20)
    xcc_check(A, 'he', 20)
    wait_tiles(A, 'he', 20, 1, 'all', None, 8)
    addp(A, sMEM, sWS, MEMS_OFF); addp(A, sMT, sWS, MEMT_OFF); addp(A, sP, sWS, PS_OFF)
    addp(A, sX0, sX0, XI_SEG)
    A.I(f'''
    global_load_dword v20, {v(vX)}, {s(sX0,2)}
    global_load_dword v21, {v(vP)}, {s(sP,2)} sc1
    ''')
    addp(A, sX0, sX0, XI_SEG); addp(A, sP, sP, PS_SLOT)
    if 'nox2' not in OPT:
        A.I(f'global_load_dword v20, {v(vX)}, {s(sX0,2)}'); addp(A, sX0, sX0, XI_SEG)
    A.I(f'''
L_he_step:
    s_sleep {HSLEEP}
    global_load_dwordx4 {v(D,4)}, {v(vG0)}, {s(sMEM,2)} sc1
    s_mov_b64 exec, {s(sM48,2)}
    global_load_dwordx4 {v(D+4,4)}, {v(vG0)}, {s(sMEM,2)} offset:1024 sc1
    s_mov_b64 exec, -1
    ''')
    bud(A)
    A.I(f'''
    s_waitcnt vmcnt(0)
    v_max3_u32 v16, {v(D)}, {v(D+1)}, {v(D+2)}
    v_max3_u32 v16, v16, {v(D+3)}, {v(D+4)}
    v_max3_u32 v16, v16, {v(D+5)}, {v(D+6)}
    v_max_u32 v16, v16, {v(D+7)}
    v_cmp_eq_u32 vcc, {s(sSENT)}, v16
    s_cbranch_vccnz L_he_step
    s_add_u32 {s(sSTEP)}, {s(sSTEP)}, 1
    global_store_dwordx4 {v(vG0)}, {v(D,4)}, {s(sMT,2)} sc1
    s_mov_b64 exec, {s(sM48,2)}
    global_store_dwordx4 {v(vG0)}, {v(D+4,4)}, {s(sMT,2)} offset:1024 sc1
    s_mov_b64 exec, -1
    global_load_dword v21, {v(vP)}, {s(sP,2)} sc1
    {f'global_load_dword v22, {v(vM)}, {s(sMEM,2)} sc1' if 'mtouch' in OPT else ''}
    s_cmp_ge_u32 {s(sSTEP)}, {NSTEP - ('nox2' not in OPT)}
    s_cbranch_scc1 L_he_nox
    global_load_dword v20, {v(vX)}, {s(sX0,2)}
L_he_nox:
    ''')
    addp(A, sX0, sX0, XI_SEG); addp(A, sP, sP, PS_SLOT); addp(A, sMEM, sMEM, MEM_SLOT); addp(A, sMT, sMT, MEMT_SLOT)
    A.I(f'''
    s_cmp_le_u32 {s(sSTEP)}, {NSTEP - ('mtdirect' in OPT)}
    s_cbranch_scc1 L_he_step
    s_endpgm
    ''')

def fetcher(A):
    vV, vF, vM = 1, 2, 3
    NL = PFL
    per = 64 // NL
    A.label('L_fetch')
    chain_common(A)
    xcc_publish(A, sROLE, 20)
    A.I(f'''
    v_lshrrev_b32 v4, {NL.bit_length()-1}, v0
    v_and_b32 v5, {NL-1}, v0
    s_lshl_b32 s40, {s(sW)}, 13
    v_lshl_add_u32 v5, v5, 7, s40
    v_and_b32 {v(vF)}, 15, v0
    v_lshlrev_b32 {v(vF)}, 2, {v(vF)}
    v_mov_b32 {v(vM)}, 4000
    ''')
    n = (14 + per - 1) // per
    for i in range(n):
        A.I(f'v_add_u32 v6, {per*i}, v4\n v_min_u32 v6, 13, v6\n v_lshl_add_u32 {v(8+i)}, v6, 15, v5')
    xcc_check(A, 'fe', 30)
    addp(A, sMEM, sWS, MEMS_OFF); addp(A, sVX, sWS, VX_OFF + PFA * 14 * VX_SC); addp(A, sFL, sWS, FL_OFF + PFA * 256)
    A.I(f'''
L_fe_step:
    global_load_dword v24, {v(vM)}, {s(sMEM,2)} sc1
    global_load_dword v25, {v(vF)}, {s(sFL,2)} sc1
    ''')
    bud(A)
    A.I(f'''
    s_waitcnt vmcnt(0)
    v_cmp_eq_u32 vcc, {s(sSENT)}, v24
    v_cmp_eq_u32 s[40:41], 0, v25
    s_or_b64 vcc, vcc, s[40:41]
    s_cbranch_vccz L_fe_go
    s_sleep 2
    s_branch L_fe_step
L_fe_go:
    ''')
    for i in range(n): A.I(f'global_load_dword {v(26)}, {v(8+i)}, {s(sVX,2)} sc1')
    addp(A, sMEM, sMEM, MEM_SLOT); addp(A, sVX, sVX, 14 * VX_SC); addp(A, sFL, sFL, 256)
    A.I(f'''
    s_add_u32 {s(sSTEP)}, {s(sSTEP)}, 1
    s_cmp_lt_u32 {s(sSTEP)}, {NSTEP - PFA}
    s_cbranch_scc1 L_fe_step
    s_endpgm
    ''')

def spare(A):
    A.label('L_spare')
    A.I(f's_mov_b32 {s(sTMP)}, 15'); assist(A, 'sp_as', sTMP, 20)
    A.I('s_endpgm')
```

```python
from common import *
from prep import wait_tiles
BUDGET = 1 << 20
sH, sW, sSEG, sBUD, sSENT = 3, 4, 5, 6, 7
sWS = 8
sA, sB_, sC_, sD, sE, sF = 10, 12, 14, 16, 18, 20
sREP, sLB, sPAR = 22, 23, 24
sM0, sM1 = 26, 28
T0 = 40

def wave_setup(A):
    A.I(f'''
    v_lshlrev_b32 v3, 4, v0
    s_mov_b32 {s(sBUD)}, 0
    s_mov_b32 {s(sSENT)}, {SENT}
    ''')

def budget(A):
    A.I(f's_add_u32 {s(sBUD)}, {s(sBUD)}, 1\n s_cmp_gt_u32 {s(sBUD)}, {BUDGET}\n s_cbranch_scc1 L_bail')

GATE = 1
OST = 'nt'
TS = 2
LIGHT = 1
LINE = 4000
GT, GF, GO = 1, 4, 8
def gate(A, tag, slot):
    wait_tiles(A, tag + 'a', 8, 1, 'all', None, 8)
    if not GATE: return
    addp(A, 40, sWS, MEMT_OFF + slot * MEMT_SLOT)
    A.I(f'''
    v_mov_b32 v8, 0
L_{tag}_g:
    s_sleep 16
    global_load_dword v9, v8, s[40:41] sc1
    ''')
    budget(A)
    A.I(f's_waitcnt vmcnt(0)\n v_cmp_eq_u32 vcc, {s(sSENT)}, v9\n s_cbranch_vccnz L_{tag}_g')

def p0p3(A, d0, d3):
    A.I(f'''
    s_and_b32 s46, {s(sW)}, 1
    s_lshr_b32 {s(d3)}, {s(sW)}, 1
    s_mul_i32 {s(d3)}, {s(d3)}, 7
    s_lshl_b32 {s(d0)}, s46, 2
    s_add_u32 {s(d0)}, {s(d0)}, {s(d3)}
    s_add_u32 {s(d3)}, {s(d3)}, 3
    s_sub_u32 {s(sPAR)}, 0, s46
    s_mov_b32 {s(sPAR+1)}, {s(sPAR)}
    ''')

WV, WS_ = 176, 120
def wtile(t, j):
    if t == 6: return v(WS_ + 4 * j, 4)
    k = (t * 14 + j) * 4
    return a_(k, 4) if k < 256 else v(WV + k - 256, 4)
def wmov(t, j, r):
    k = (t * 14 + j) * 4 + r
    return ('v_accvgpr_write_b32', a_(k)) if k < 256 else ('v_mov_b32', v(WV + k - 256))

def load_head(A, mat):
    p0p3(A, 40, 41)
    A.I(f'''
    s_mul_i32 s42, {s(sH)}, {MF_HEAD}
    s_mul_i32 s43, s40, {14*2048}
    s_add_u32 s43, s43, s42
    s_mul_i32 s44, s41, {14*2048}
    s_add_u32 s44, s44, s42
    ''')
    addp(A, sA, sWS, MF_OFF + mat * MF_MAT); addps(A, sB_, sA, 44); addps(A, sA, sA, 43)
    vm = Cnt(A, 'vmcnt', 63)
    ST, N = 32, 11
    blocks = [(L, j) for L in range(4) for j in range(14)]
    def issue(i):
        L, j = blocks[i]; r = ST + 8 * (i % N); base = sA if L < 3 else sB_
        o = (j & 1) * 2048
        A.I(f'global_load_dwordx4 {v(r,4)}, v3, {s(base,2)} offset:{o} sc1'); vm.add(i)
        A.I(f'global_load_dwordx4 {v(r+4,4)}, v3, {s(base,2)} offset:{o+1024} sc1'); vm.add(i)
        if j & 1: addp(A, base, base, 4096)
    for i in range(N): issue(i)
    for i, (L, j) in enumerate(blocks):
        vm.wait(i); r = ST + 8 * (i % N)
        if L < 3:
            for k in range(8):
                op, d = wmov(2 * L + (k & 1), j, k >> 1); A.I(f'{op} {d}, {v(r+k)}')
        else:
            for k in range(4): A.I(f'v_cndmask_b32 {v(WS_+4*j+k)}, {v(r+2*k)}, {v(r+2*k+1)}, {s(sPAR,2)}')
        if i + N < len(blocks): issue(i + N)

sXO = 80
def xdma(A, ptr, vXS):
    for k in range(7):
        addps(A, 40, ptr, sXO + k)
        A.I(f's_add_u32 m0, {s(sLB)}, {k*1024}')
        A.I(f'global_load_lds_dwordx4 {v(vXS)}, s[40:41]')
    addp(A, ptr, ptr, 4 * XI_SEG)

def xsetup(A, ptr, vXS, vXR, t):
    A.I(f'''
    s_mul_i32 {s(sLB)}, {s(sW)}, 7168
    s_mul_i32 s40, {s(sREP)}, {XI_SEG}
    s_mov_b32 {s(sSEG)}, {s(sREP)}
    v_lshrrev_b32 {v(t)}, 2, v0
    v_mul_u32_u24 {v(t)}, 896, {v(t)}
    v_lshrrev_b32 {v(t+1)}, 5, v0
    v_lshlrev_b32 {v(t+1)}, 1, {v(t+1)}
    v_and_b32 {v(vXS)}, 3, v0
    v_xor_b32 {v(t+1)}, {v(t+1)}, {v(vXS)}
    v_lshl_add_u32 {v(vXS)}, {v(t+1)}, 4, {v(t)}
    v_lshrrev_b32 {v(t)}, 3, v1
    v_lshlrev_b32 {v(t)}, 1, {v(t)}
    v_xor_b32 {v(t)}, {v(t)}, v2
    v_lshl_add_u32 {v(t)}, v1, 2, {v(t)}
    v_lshlrev_b32 {v(vXR)}, 4, {v(t)}
    ''')
    addps(A, ptr, ptr, 40)
    for k in range(7):
        A.I(f'''
        s_mul_i32 s40, {s(sW)}, 7
        s_add_u32 s40, s40, {k}
        s_and_b32 s41, s40, 1
        s_mul_i32 s41, s41, 14336
        s_lshr_b32 s40, s40, 1
        s_lshl_b32 s40, s40, 6
        s_add_u32 {s(sXO+k)}, s40, s41
        ''')

def gemm(A, ntile, wt, acc, ring, vX, offs, wfirst, extra=None):
    lg = Cnt(A, 'lgkmcnt', 15)
    def rd(j, tt):
        A.I(f'ds_read_b128 {v(ring + 8*(j%3) + 4*tt, 4)}, {v(vX[tt])} offset:{j*2048 + offs[tt]}'); lg.add((j, tt))
    for j in range(2): rd(j, 0); rd(j, 1)
    n = 0
    for j in range(14):
        for tt in range(2):
            lg.wait((j, tt))
            x = v(ring + 8*(j%3) + 4*tt, 4)
            for t in range(ntile):
                d = v(acc + 8*t + 4*tt, 4)
                a, b = (wt(t, j), x) if wfirst else (x, wt(t, j))
                A.I(f'v_mfma_f32_16x16x32_bf16 {d}, {a}, {b}, {d if j else 0}')
                if t == 0 and j + 2 < 14: rd(j + 2, tt)
                if extra: extra(n)
                n += 1

def flag_store(A, ptr, vOne, vZero):
    flag_store.n += 1
    A.I(f's_cmp_lg_u32 {s(sW)}, 0\n s_cbranch_scc1 L_fs{flag_store.n}\n global_store_dword {v(vZero)}, {v(vOne)}, {s(ptr,2)} sc1\nL_fs{flag_store.n}:')
flag_store.n = 0

def mem_fetch(A, tag, ptr, vG, D, lds):
    if LIGHT:
        A.I(f'''
        s_cmp_lg_u32 {s(sW)}, 0
        s_cbranch_scc1 L_{tag}_mh
        v_mov_b32 {v(D)}, {LINE}
L_{tag}_ml:
        global_load_dword {v(D+1)}, {v(D)}, {s(ptr,2)} sc1
        ''')
        budget(A)
        A.I(f'''
        s_waitcnt vmcnt(0)
        v_cmp_eq_u32 vcc, {s(sSENT)}, {v(D+1)}
        s_cbranch_vccz L_{tag}_mh
        s_sleep {TS}
        s_branch L_{tag}_ml
L_{tag}_mh:
        s_barrier
        ''')
    A.I(f'''
L_{tag}_mf:
    global_load_dwordx4 {v(D,4)}, {v(vG)}, {s(ptr,2)} sc1
    global_load_dwordx4 {v(D+4,4)}, {v(vG+1)}, {s(ptr,2)} sc1
    ''')
    budget(A)
    A.I(f'''
    s_waitcnt vmcnt(0)
    v_max3_u32 {v(D+8)}, {v(D)}, {v(D+1)}, {v(D+2)}
    v_max3_u32 {v(D+8)}, {v(D+8)}, {v(D+3)}, {v(D+4)}
    v_max3_u32 {v(D+8)}, {v(D+8)}, {v(D+5)}, {v(D+6)}
    v_max_u32 {v(D+8)}, {v(D+8)}, {v(D+7)}
    v_cmp_eq_u32 vcc, {s(sSENT)}, {v(D+8)}
    s_cbranch_vccz L_{tag}_mg
    s_sleep {TS if not LIGHT else 1}
    s_branch L_{tag}_mf
L_{tag}_mg:
    ds_write_b128 {v(vG)}, {v(D,4)} offset:{lds}
    ds_write_b128 {v(vG+1)}, {v(D+4,4)} offset:{lds}
    s_waitcnt lgkmcnt(0)
    s_barrier
    ''')

def mem_fetch_setup(A, vG):
    A.I(f'''
    s_mul_i32 s40, {s(sW)}, 1792
    v_add_u32 {v(vG)}, s40, v3
    v_min_u32 {v(vG+1)}, 47, v0
    v_lshlrev_b32 {v(vG+1)}, 4, {v(vG+1)}
    v_add3_u32 {v(vG+1)}, {v(vG+1)}, s40, s40
    v_subrev_u32 {v(vG+1)}, s40, {v(vG+1)}
    v_add_u32 {v(vG+1)}, 1024, {v(vG+1)}
    ''')

def tokv(A):
    ACC, RING, O = 64, 32, 8
    vX, vXc, vOne, vZero, vG, vMA, vWT, vXS = 4, 5, 6, 7, 56, 58, 59, 60
    L_MEM = 57344
    sX, sVO, sVS, sFL, sMT = sF, sB_, sC_, sD, sE
    A.label('L_tokv')
    wave_setup(A)
    A.I(f's_load_dwordx2 {s(sX,2)}, s[0:1], {KA_X}\n s_waitcnt lgkmcnt(0)')
    xsetup(A, sX, vX, vXc, 8); xdma(A, sX, vX)
    wait_tiles(A, 'tv', 8, 1, 'head', sH, 1)
    load_head(A, 1)
    A.I(f'v_mov_b32 {v(vXS)}, {v(vX)}')
    tl(A, 1, 1, 8)
    p0p3(A, 40, 41)
    A.I(f'''
    s_mul_i32 s42, {s(sREP)}, {14*VX_SC}
    s_lshl_b32 s43, {s(sH)}, 11
    s_add_u32 s42, s42, s43
    s_lshl_b32 s43, s40, 15
    s_add_u32 s43, s43, s42
    s_lshl_b32 s44, s41, 15
    s_add_u32 s44, s44, s42
    s_and_b32 s45, {s(sW)}, 1
    s_lshl_b32 s45, s45, 10
    s_add_u32 s44, s44, s45
    v_lshrrev_b32 v8, 3, v1
    v_lshlrev_b32 v8, 10, v8
    v_and_b32 v9, 7, v0
    v_lshl_add_u32 v8, v9, 6, v8
    v_lshl_add_u32 {v(vX)}, v2, 4, v8
    v_xor_b32 v9, 2, v2
    v_lshl_add_u32 {v(vXc)}, v9, 4, v8
    v_mov_b32 {v(vOne)}, 1
    v_mov_b32 {v(vZero)}, 0
    ''')
    addp(A, sVO, sWS, VX_OFF); addps(A, sVS, sVO, 44); addps(A, sVO, sVO, 43)
    A.I(f's_lshl_b32 s42, {s(sREP)}, 8\n s_lshl_b32 s43, {s(sH)}, 2\n s_add_u32 s42, s42, s43')
    addp(A, sFL, sWS, FL_OFF); addps(A, sFL, sFL, 42)
    A.label('L_tv_item')
    A.I(f'''
    s_waitcnt vmcnt(0)
    s_barrier
    s_cmp_lt_u32 {s(sSEG)}, 4
    s_cbranch_scc1 L_tv_nofl
    ''')
    flag_store(A, sFL, vOne, vZero); addp(A, sFL, sFL, 1024)
    A.label('L_tv_nofl')
    A.I(f'''
    s_cmp_ge_u32 {s(sSEG)}, 64
    s_cbranch_scc1 L_tv_w
    s_xor_b32 {s(sLB)}, {s(sLB)}, 0x8000
    s_cmp_ge_u32 {s(sSEG)}, 60
    s_cbranch_scc1 L_tv_nox
    ''')
    xdma(A, sX, vXS)
    A.label('L_tv_nox')
    gemm(A, 7, wtile, ACC, RING, [vX, vXc], [0, 512], False)
    A.I(f'v_xor_b32 {v(vXc)}, 0x8000, {v(vXc)}\n v_xor_b32 {v(vX)}, 0x8000, {v(vX)}')
    for t in range(7):
        o = O + 4 * (t % 4)
        for k in range(2):
            for tt in range(2):
                A.I(f'v_cvt_pk_bf16_f32 {v(o+2*k+tt)}, {v(ACC+8*t+4*tt+2*k)}, {v(ACC+8*t+4*tt+2*k+1)}')
        if t < 6:
            if t == 2: addp(A, 40, sVO, 32768)
            if t == 4: addp(A, 40, 40, 32768)
            A.I(f'global_store_dwordx4 v3, {v(o,4)}, {s(sVO if t < 2 else 40,2)} offset:{(t&1)*1024} sc1')
        else: A.I(f'global_store_dwordx4 v3, {v(o,4)}, {s(sVS,2)} sc1')
    addp(A, sVO, sVO, 4 * 14 * VX_SC); addp(A, sVS, sVS, 4 * 14 * VX_SC)
    A.I(f's_add_u32 {s(sSEG)}, {s(sSEG)}, 4\n s_branch L_tv_item')
    A.label('L_tv_w')
    tl(A, 1, 3, 8)
    wait_tiles(A, 'tw', 8, 1, 'all')
    mem_fetch_setup(A, vG)
    p0p3(A, 40, 41)
    A.I(f'''
    s_mov_b32 {s(sSEG)}, {s(sREP)}
    v_lshrrev_b32 v8, 1, v2
    v_lshlrev_b32 v8, 7, v8
    v_and_b32 v9, 7, v0
    v_lshl_add_u32 v8, v9, 4, v8
    v_and_b32 v9, 1, v2
    v_lshl_add_u32 v8, v9, 3, v8
    v_add_u32 {v(vMA)}, {L_MEM}, v8
    s_and_b32 s42, {s(sH)}, 3
    s_lshl_b32 s42, s42, 8
    v_lshl_add_u32 v8, v1, 4, s42
    v_lshl_add_u32 {v(vWT)}, v9, 3, v8
    s_mul_i32 s42, {s(sREP)}, {WT_SEG}
    s_lshr_b32 s43, {s(sH)}, 2
    s_mul_i32 s43, s43, {28*1024}
    s_add_u32 s42, s42, s43
    s_lshl_b32 s43, s40, 11
    s_add_u32 s43, s43, s42
    s_lshl_b32 s44, s41, 11
    s_add_u32 s44, s44, s42
    s_and_b32 s45, {s(sW)}, 1
    s_lshl_b32 s45, s45, 10
    s_add_u32 s44, s44, s45
    ''')
    addp(A, sVO, sWS, WT_OFF); addps(A, sVS, sVO, 44); addps(A, sVO, sVO, 43)
    A.I(f's_lshl_b32 s42, {s(sREP)}, 8\n s_lshl_b32 s43, {s(sH)}, 2\n s_add_u32 s42, s42, s43')
    addp(A, sFL, sWS, FL_OFF + 128); addps(A, sFL, sFL, 42)
    A.I(f's_mul_i32 s42, {s(sREP)}, {MEMT_SLOT}')
    addp(A, sMT, sWS, MEMT_OFF); addps(A, sMT, sMT, 42)
    A.label('L_tw_item')
    mem_fetch(A, 'tw', sMT, vG, 8, L_MEM)
    tl(A, 1, 5, 8)
    lg = Cnt(A, 'lgkmcnt', 15)
    def rd(j):
        A.I(f'ds_read2_b64 {v(RING+4*(j%4),4)}, {v(vMA)} offset0:{(j%3)*64} offset1:{(j%3)*64+32}'); lg.add(j)
        if j % 3 == 2: A.I(f'v_add_u32 {v(vMA)}, 1536, {v(vMA)}')
    for j in range(3): rd(j)
    for j in range(14):
        lg.wait(j)
        for t in range(7):
            d = v(ACC + 4*t, 4)
            A.I(f'v_mfma_f32_16x16x32_bf16 {d}, {v(RING+4*(j%4),4)}, {wtile(t,j)}, {d if j else 0}')
            if t == 0 and j + 3 < 14: rd(j + 3)
    A.I(f'v_subrev_u32 {v(vMA)}, {4*1536}, {v(vMA)}')
    A.I('s_mov_b32 exec_hi, 0')
    for t in range(7):
        o = O + 2 * t
        for k in range(2): A.I(f'v_cvt_pk_bf16_f32 {v(o+k)}, {v(ACC+4*t+2*k)}, {v(ACC+4*t+2*k+1)}')
        if t == 4: addp(A, 40, sVO, 4096)
        if t < 6: A.I(f'global_store_dwordx2 {v(vWT)}, {v(o,2)}, {s(sVO if t < 4 else 40,2)} offset:{(t%4)*1024} sc1')
        else: A.I(f'global_store_dwordx2 {v(vWT)}, {v(o,2)}, {s(sVS,2)} sc1')
    A.I('s_mov_b64 exec, -1'); tl(A, 1, 6, 24); A.I('s_waitcnt vmcnt(0)\n s_barrier')
    flag_store(A, sFL, vOne, vZero)
    addp(A, sFL, sFL, 1024); addp(A, sMT, sMT, 4 * MEMT_SLOT); addp(A, sVO, sVO, 4 * WT_SEG); addp(A, sVS, sVS, 4 * WT_SEG)
    A.I(f's_add_u32 {s(sSEG)}, {s(sSEG)}, 4\n s_cmp_lt_u32 {s(sSEG)}, 64\n s_cbranch_scc1 L_tw_item'); tl(A, 1, 2, 8); A.I('s_endpgm')

def tokt(A):
    ACC, RING = 64, 32
    TB = 8
    vX, vXc, vOne, vZero, vG, vMB0, vMB1, vSW, vSR0, vSR1, vPX, vXI0, vXI1 = 4, 5, 6, 7, 56, 58, 59, 60, 61, 62, 63, 4, 1
    vXS = 2
    L_MEM, L_SB = 61440, 61440 + 8192
    SBW = 32 * 176
    sX, sPX, sFL, sMT = sA, sC_, sD, sE
    sK = 48
    sCC, sM5, sMK0 = 30, 32, 34
    A.label('L_tokt')
    wave_setup(A)
    gate(A, 'tu', GT)
    wait_tiles(A, 'tt', 8, 0, 'head', sH, 8)
    load_head(A, 0)
    tl(A, 1, 1, 8)
    A.I(f's_load_dwordx2 {s(sX,2)}, s[0:1], {KA_X}\n s_waitcnt lgkmcnt(0)')
    xsetup(A, sX, 21, vXc, 8); xdma(A, sX, 21)
    mem_fetch_setup(A, vG)
    p0p3(A, 40, 41)
    A.I(f'''
    v_mov_b32 {v(vOne)}, 1
    v_mov_b32 {v(vZero)}, 0
    v_lshrrev_b32 v8, 3, v1
    v_xor_b32 v8, v8, v2
    v_and_b32 v8, 1, v8
    v_lshlrev_b32 v8, 5, v8
    v_lshl_add_u32 v8, v1, 6, v8
    v_lshrrev_b32 v9, 1, v2
    v_lshl_add_u32 v8, v9, 3, v8
    s_lshl_b32 s42, s40, 11
    v_add_u32 {v(vXI0)}, s42, v8
    s_lshl_b32 s42, s41, 11
    s_and_b32 s45, {s(sW)}, 1
    s_lshl_b32 s45, s45, 4
    s_add_u32 s42, s42, s45
    v_add_u32 v20, s42, v8
    v_and_b32 v9, 7, v0
    v_lshlrev_b32 v8, 7, v2
    v_lshl_add_u32 v8, v9, 4, v8
    s_lshr_b32 s45, s45, 1
    s_lshl_b32 s42, s40, 9
    s_add_u32 s42, s42, {L_MEM}
    v_add_u32 {v(vMB0)}, s42, v8
    s_lshl_b32 s42, s41, 9
    s_add_u32 s42, s42, s45
    s_add_u32 s42, s42, {L_MEM}
    v_add_u32 {v(vMB1)}, s42, v8
    s_mul_i32 s42, {s(sW)}, {SBW}
    s_add_u32 s42, s42, {L_SB}
    v_mul_u32_u24 v8, 176, v1
    v_lshl_add_u32 v8, v2, 4, v8
    v_add_u32 {v(vSW)}, s42, v8
    v_lshrrev_b32 v10, 3, v0
    v_lshl_add_u32 v10, {s(sW)}, 3, v10
    v_min_u32 v11, 4, v9
    v_subrev_u32 v11, 1, v11
    v_lshrrev_b32 v12, 1, v11
    v_and_b32 v13, 1, v11
    v_lshlrev_b32 v13, 2, v13
    v_lshl_add_u32 v13, v12, 4, v13
    v_lshlrev_b32 v14, 2, v13
    v_add_u32 v14, 32, v14
    v_add_u32 v15, 32, v14
    v_cmp_eq_u32 {s(sMK0,2)}, 0, v9
    v_cndmask_b32 v14, v14, 0, {s(sMK0,2)}
    v_cndmask_b32 v15, v15, 16, {s(sMK0,2)}
    v_mul_u32_u24 v8, 176, v10
    v_add_u32 v8, {L_SB}, v8
    v_add_u32 {v(vSR0)}, v8, v14
    v_add_u32 {v(vSR1)}, v8, v15
    v_mov_b32 {v(vXS)}, v21
    v_mov_b32 {v(vXI1)}, v20
    v_cmp_gt_u32 {s(sM5,2)}, 5, v9
    ''')
    for i in range(8):
        A.I(f'''
        v_add_u32 v8, {8*(i>>2) + (i&3)}, v13
        v_cmp_le_u32 vcc, v8, v10
        s_or_b64 vcc, vcc, {s(sMK0,2)}
        s_and_b64 {s(sK+2*i,2)}, vcc, {s(sM5,2)}
        ''')
    A.I(f'''
    s_and_b32 s42, {s(sH)}, 3
    v_mov_b32 v8, s42
    v_cndmask_b32 v12, v11, v8, {s(sMK0,2)}
    v_cndmask_b32 v8, v8, 4, {s(sMK0,2)}
    v_lshrrev_b32 v14, 4, v10
    v_lshl_add_u32 v8, v8, 1, v14
    v_lshlrev_b32 v8, 10, v8
    v_and_b32 v14, 15, v10
    v_lshl_add_u32 v14, v12, 4, v14
    v_lshl_add_u32 {v(vPX)}, v14, 4, v8
    s_mul_i32 s42, {s(sREP)}, {PX_SEG}
    s_lshr_b32 s43, {s(sH)}, 2
    s_mul_i32 s43, s43, 10240
    s_add_u32 s42, s42, s43
    ''')
    addp(A, sPX, sWS, PX_OFF); addps(A, sPX, sPX, 42)
    A.I(f's_lshl_b32 s42, {s(sREP)}, 8\n s_lshl_b32 s43, {s(sH)}, 2\n s_add_u32 s42, s42, s43')
    addp(A, sFL, sWS, FL_OFF + 64); addps(A, sFL, sFL, 42)
    A.I(f's_mul_i32 s42, {s(sREP)}, {MEMT_SLOT}'); addp(A, sMT, sWS, MEMT_OFF); addps(A, sMT, sMT, 42)
    A.label('L_tt_item')
    A.I(f'''
    s_waitcnt vmcnt(0)
    s_barrier
    s_xor_b32 {s(sLB)}, {s(sLB)}, 0x8000
    s_cmp_ge_u32 {s(sSEG)}, 60
    s_cbranch_scc1 L_tt_nox
    ''')
    xdma(A, sX, vXS)
    A.label('L_tt_nox')
    gemm(A, 7, wtile, ACC, RING, [vXc, vXc], [0, 1024], True)
    A.I(f'v_xor_b32 {v(vXc)}, 0x8000, {v(vXc)}')
    for tt in range(2):
        for t in range(7):
            for k in range(2):
                d = TB + 8*(t>>1) + 4*tt + 2*(t&1) + k if t < 6 else TB + 24 + 2*tt + k
                A.I(f'v_cvt_pk_bf16_f32 {v(d)}, {v(ACC+8*t+4*tt+2*k)}, {v(ACC+8*t+4*tt+2*k+1)}')
    XF, MB, SA = 64, 36, 96
    for L in range(3):
        for t in range(2): A.I(f'ds_read2_b64 {v(XF+8*L+4*t,4)}, {v(vXI0)} offset0:{t*128} offset1:{t*128+2}')
        A.I(f'v_add_u32 {v(vXI0)}, {2048 if L < 2 else -4096 & 0xffffffff}, {v(vXI0)}')
    for t in range(2): A.I(f'ds_read_b64 {v(XF+24+2*t,2)}, {v(vXI1)} offset:{t*1024}')
    A.I(f'v_xor_b32 {v(vXI0)}, 0x8000, {v(vXI0)}\n v_xor_b32 {v(vXI1)}, 0x8000, {v(vXI1)}\n s_waitcnt lgkmcnt(0)')
    def smm(a4, a2, tt, d):
        for L in range(3): A.I(f'v_mfma_f32_16x16x32_bf16 {v(d,4)}, {v(a4(L),4)}, {v(TB+8*L+4*tt,4)}, {v(d,4) if L else 0}')
        A.I(f'v_mfma_f32_16x16x16_bf16 {v(d,4)}, {v(a2,2)}, {v(TB+24+2*tt,2)}, {v(d,4)}')
    smm(lambda L: XF + 8*L, XF + 24, 0, SA); smm(lambda L: XF + 8*L, XF + 24, 1, SA + 4); smm(lambda L: XF + 8*L + 4, XF + 26, 1, SA + 8)
    mem_fetch(A, 'tt', sMT, vG, 64, L_MEM)
    tl(A, 1, 5, 64)
    for L in range(3): A.I(f'ds_read_b128 {v(MB+4*L,4)}, {v(vMB0)} offset:{L*512}')
    A.I(f'ds_read_b64 {v(MB+12,2)}, {v(vMB1)}\n s_waitcnt lgkmcnt(0)')
    smm(lambda L: MB + 4*L, MB + 12, 0, SA + 12); smm(lambda L: MB + 4*L, MB + 12, 1, SA + 16)
    A.I(f'''
    ds_write_b128 {v(vSW)}, {v(SA+12,4)}
    ds_write_b128 {v(vSW)}, {v(SA+16,4)} offset:{16*176}
    ds_write_b128 {v(vSW)}, {v(SA,4)} offset:32
    ds_write_b128 {v(vSW)}, {v(SA+4,4)} offset:{16*176+32}
    ds_write_b128 {v(vSW)}, {v(SA+8,4)} offset:{16*176+96}
    s_waitcnt lgkmcnt(0)
    s_barrier
    ''')
    Z, M = 64, 36
    for k in range(4):
        A.I(f'ds_read_b128 {v(Z+8*k,4)}, {v(vSR0)} offset:{k*SBW}\n ds_read_b128 {v(Z+8*k+4,4)}, {v(vSR1)} offset:{k*SBW}')
    A.I(f'v_mov_b32 {v(M+1)}, 0xff800000\n s_waitcnt lgkmcnt(0)')
    for a, b in ((0, 8), (16, 24), (0, 16)):
        for k in range(0, 8, 2): A.I(f'v_pk_add_f32 {v(Z+a+k,2)}, {v(Z+a+k,2)}, {v(Z+b+k,2)}')
    for i in range(8): A.I(f'v_cndmask_b32 {v(Z+i)}, {v(M+1)}, {v(Z+i)}, {s(sK+2*i,2)}')
    red = ['quad_perm:[1,0,3,2] row_mask:0xf bank_mask:0xf', 'quad_perm:[2,3,0,1] row_mask:0xf bank_mask:0xf', 'row_half_mirror row_mask:0xf bank_mask:0xf']
    A.I(f'''
    v_max3_f32 {v(M)}, {v(Z)}, {v(Z+1)}, {v(Z+2)}
    v_max3_f32 {v(M)}, {v(M)}, {v(Z+3)}, {v(Z+4)}
    v_max3_f32 {v(M)}, {v(M)}, {v(Z+5)}, {v(Z+6)}
    v_max_f32 {v(M)}, {v(M)}, {v(Z+7)}
    ''')
    for r in red: A.I(f'v_max_f32_dpp {v(M)}, {v(M)}, {v(M)} {r}')
    for i in range(8): A.I(f'v_sub_f32 {v(Z+i)}, {v(Z+i)}, {v(M)}')
    for i in range(8): A.I(f'v_exp_f32 {v(Z+i)}, {v(Z+i)}')
    A.I(f'''
    v_pk_add_f32 {v(M,2)}, {v(Z,2)}, {v(Z+2,2)}
    v_pk_add_f32 {v(M+2,2)}, {v(Z+4,2)}, {v(Z+6,2)}
    v_pk_add_f32 {v(M,2)}, {v(M,2)}, {v(M+2,2)}
    v_add_f32 {v(M)}, {v(M)}, {v(M+1)}
    ''')
    for r in red: A.I(f'v_add_f32_dpp {v(M)}, {v(M)}, {v(M)} {r}')
    A.I(f'v_rcp_f32 {v(M)}, {v(M)}')
    for i in range(8): A.I(f'v_mul_f32 {v(Z+i)}, {v(Z+i)}, {v(M)}')
    O = Z + 8
    A.I(f'''
    v_cvt_pk_bf16_f32 {v(O)}, {v(Z)}, {v(Z+1)}
    v_cvt_pk_bf16_f32 {v(O+4)}, {v(Z+2)}, {v(Z+3)}
    v_cvt_pk_bf16_f32 {v(O+5)}, {v(Z+4)}, {v(Z+5)}
    v_cvt_pk_bf16_f32 {v(O+3)}, {v(Z+6)}, {v(Z+7)}
    v_cndmask_b32 {v(O+1)}, {v(O+5)}, {v(O+4)}, {s(sMK0,2)}
    v_cndmask_b32 {v(O+2)}, {v(O+4)}, {v(O+5)}, {s(sMK0,2)}
    s_mov_b64 exec, {s(sM5,2)}
    global_store_dwordx4 {v(vPX)}, {v(O,4)}, {s(sPX,2)} sc1
    s_mov_b64 exec, -1
    ''')
    tl(A, 1, 6, 36)
    A.I('s_waitcnt vmcnt(0)\n s_barrier')
    flag_store(A, sFL, vOne, vZero)
    addp(A, sFL, sFL, 1024); addp(A, sMT, sMT, 4 * MEMT_SLOT); addp(A, sPX, sPX, 4 * PX_SEG)
    A.I(f's_add_u32 {s(sSEG)}, {s(sSEG)}, 4\n s_cmp_lt_u32 {s(sSEG)}, 64\n s_cbranch_scc1 L_tt_item'); tl(A, 1, 2, 8); A.I('s_endpgm')

def load_tr(A, ptr, stride, natural):
    vS = 8
    A.I(f'''
    s_mul_i32 s42, {s(sW)}, 28672
    v_lshrrev_b32 v10, 3, v0
    v_and_b32 v11, 7, v0
    {'v_bfe_u32 v12, v0, 4, 1' if natural else 'v_lshrrev_b32 v12, 4, v0'}
    v_lshlrev_b32 v12, 1, v12
    v_xor_b32 v11, v11, v12
    v_mul_u32_u24 v10, {stride}, v10
    v_lshl_add_u32 {v(vS)}, v11, 4, v10
    v_xor_b32 v11, {4 if natural else 0}, v11
    v_lshl_add_u32 {v(vS+1)}, v11, 4, v10
    v_bfe_u32 v10, v0, 2, 2
    v_lshl_add_u32 v11, v2, {3 if natural else 2}, v10
    v_lshlrev_b32 v11, 7, v11
    v_and_b32 v12, 1, v0
    v_lshl_add_u32 v11, v12, 3, v11
    v_add_u32 v11, s42, v11
    v_and_b32 v10, 2, v10
    v_and_b32 v12, 1, v2
    v_lshl_add_u32 v10, v12, 2, v10
    v_bfe_u32 v12, v0, 1, 1
    v_xor_b32 v10, v10, v12
    ''')
    for t in range(4):
        A.I(f'v_xor_b32 v12, {2*t}, v10\n v_lshl_add_u32 {v(13+t)}, v12, 4, v11')
    for half in range(2):
        for k in range(28):
            A.I(f's_add_u32 m0, s42, {k*1024}')
            A.I(f'global_load_lds_dwordx4 {v(vS+(k&1))}, {s(ptr,2)}')
            addp(A, ptr, ptr, 8 * stride)
        A.I('s_waitcnt vmcnt(0)')
        for jj in range(7):
            j = 7 * half + jj
            for t in range(4):
                for hi in range(2):
                    A.I(f'ds_read_b64_tr_b16 {a_((t*14+j)*4+2*hi,2)}, {v(13+t)} offset:{jj*4096 + hi*(512 if natural else 2048)}')
            A.I('s_waitcnt lgkmcnt(0)')

def at(t, j): return a_((t * 14 + j) * 4, 4)

def ffn1(A):
    ACC, RING = 64, 32
    vXc, vOne, vZero, vGT, vOG, vXS, GT = 5, 6, 7, 4, 56, 58, 120
    sX, sW1, sHO, sFL, sG = sA, sB_, sC_, sD, sE
    A.label('L_ffn1')
    A.I(f's_load_dwordx2 {s(sW1,2)}, s[0:1], {KA_W1}\n s_load_dwordx2 {s(sX,2)}, s[0:1], {KA_X}\n s_load_dwordx2 {s(sF,2)}, s[0:1], {KA_GW}')
    wave_setup(A)
    A.I(f's_lshl_b32 s40, {s(sH)}, 9\n s_lshl_b32 s41, {s(sW)}, 7\n s_add_u32 s40, s40, s41\n s_waitcnt lgkmcnt(0)')
    addps(A, sW1, sW1, 40)
    gate(A, 'f1', GF)
    A.I('v_lshlrev_b32 v8, 4, v2')
    for j in range(14): A.I(f'global_load_dwordx4 {v(GT+4*j,4)}, v8, {s(sF,2)} offset:{64*j}')
    load_tr(A, sW1, 3584, True)
    tl(A, 1, 1, 8)
    A.I('s_barrier')
    xsetup(A, sX, vXS, vXc, 8); xdma(A, sX, vXS)
    A.I(f'''
    v_mov_b32 {v(vOne)}, 1
    v_mov_b32 {v(vZero)}, 0
    v_lshlrev_b32 {v(vGT)}, 2, v1
    s_mul_i32 s42, {s(sREP)}, {HI_SEG}
    s_lshl_b32 s43, {s(sH)}, 14
    s_add_u32 s42, s42, s43
    s_lshl_b32 s43, {s(sW)}, 12
    s_add_u32 s42, s42, s43
    ''')
    addp(A, sHO, sWS, HI_OFF); addps(A, sHO, sHO, 42)
    A.I(f's_lshl_b32 s42, {s(sREP)}, 8\n s_lshl_b32 s43, {s(sH)}, 2\n s_add_u32 s42, s42, s43')
    addp(A, sFL, sWS, FL_OFF + 192); addps(A, sFL, sFL, 42)
    A.I(f's_lshl_b32 s42, {s(sREP)}, 7'); addp(A, sG, sWS, G_OFF); addps(A, sG, sG, 42)
    A.label('L_f1_item')
    A.I(f'''
    s_waitcnt vmcnt(0)
    s_barrier
    s_cmp_lt_u32 {s(sSEG)}, 4
    s_cbranch_scc1 L_f1_nofl
    ''')
    flag_store(A, sFL, vOne, vZero); addp(A, sFL, sFL, 1024)
    A.label('L_f1_nofl')
    A.I(f'''
    s_cmp_ge_u32 {s(sSEG)}, 64
    s_cbranch_scc1 L_f1_end
    s_xor_b32 {s(sLB)}, {s(sLB)}, 0x8000
    s_cmp_ge_u32 {s(sSEG)}, 60
    s_cbranch_scc1 L_f1_nox
    ''')
    xdma(A, sX, vXS)
    A.label('L_f1_nox')
    gemm(A, 5, lambda t, j: at(t, j) if t < 4 else v(GT + 4*j, 4), ACC, RING, [vXc, vXc], [0, 1024], True)
    A.I(f'v_xor_b32 {v(vXc)}, 0x8000, {v(vXc)}')
    for tt in range(2):
        A.I(f'''
        v_mul_f32 {v(vOG+tt)}, {f32(-1.4426950408889634)}, {v(ACC+32+4*tt)}
        v_exp_f32 {v(vOG+tt)}, {v(vOG+tt)}
        v_add_f32 {v(vOG+tt)}, 1.0, {v(vOG+tt)}
        v_rcp_f32 {v(vOG+tt)}, {v(vOG+tt)}
        ''')
    A.I(f'''
    s_or_b32 s40, {s(sH)}, {s(sW)}
    s_cbranch_scc1 L_f1_nog
    global_store_dword {v(vGT)}, {v(vOG)}, {s(sG,2)} sc1
    global_store_dword {v(vGT)}, {v(vOG+1)}, {s(sG,2)} offset:64 sc1
L_f1_nog:
    v_sub_f32 {v(vOG)}, 1.0, {v(vOG)}
    v_sub_f32 {v(vOG+1)}, 1.0, {v(vOG+1)}
    ''')
    E, O = 8, 16
    for p in range(2):
        for tt in range(2):
            regs = [ACC + 8*(2*p+y) + 4*tt + r for y in range(2) for r in range(4)]
            for i, r in enumerate(regs): A.I(f'v_mul_f32 {v(E+i)}, {f32(-1.4426950408889634)}, {v(r)}')
            for i in range(8): A.I(f'v_exp_f32 {v(E+i)}, {v(E+i)}')
            for i in range(8): A.I(f'v_add_f32 {v(E+i)}, 1.0, {v(E+i)}')
            for i in range(8): A.I(f'v_rcp_f32 {v(E+i)}, {v(E+i)}')
            for i, r in enumerate(regs): A.I(f'v_mul_f32 {v(r)}, {v(r)}, {v(vOG+tt)}')
            for i, r in enumerate(regs): A.I(f'v_mul_f32 {v(E+i)}, {v(E+i)}, {v(r)}')
            o = O + 4 * (2*p + tt)
            for k in range(4): A.I(f'v_cvt_pk_bf16_f32 {v(o+k)}, {v(E+2*k)}, {v(E+2*k+1)}')
            A.I(f'global_store_dwordx4 v3, {v(o,4)}, {s(sHO,2)} offset:{(2*p+tt)*1024} sc1')
    addp(A, sHO, sHO, 4 * HI_SEG); addp(A, sG, sG, 512)
    A.I(f's_add_u32 {s(sSEG)}, {s(sSEG)}, 4\n s_branch L_f1_item')
    A.label('L_f1_end'); tl(A, 1, 2, 8); A.I('s_endpgm')

def outs(A):
    ACC, VF, WF, PF, HR = 8, 40, 104, 120, 160
    NH = 8
    vF, vFA, vRW, vRR, vO, vV1, vGA, vG = 4, 5, 6, 7, 224, 225, 226, 228
    AC2 = HR
    RBW = 32 * 272
    sW2, sHI, sVX, sWT, sPX, sFL, sOUT, sG = sA, sB_, sC_, sD, sE, sF, 30, 32
    sMA, sMB = sM0, sM1
    A.label('L_outs')
    A.I(f's_load_dwordx2 {s(sW2,2)}, s[0:1], {KA_W2}\n s_load_dwordx2 {s(sOUT,2)}, s[0:1], {KA_OUT}')
    wave_setup(A)
    A.I(f's_mul_i32 s40, {s(sW)}, {448*896}\n s_lshl_b32 s41, {s(sH)}, 7\n s_add_u32 s40, s40, s41\n s_waitcnt lgkmcnt(0)')
    addps(A, sW2, sW2, 40)
    gate(A, 'ou', GO)
    load_tr(A, sW2, 896, False)
    tl(A, 1, 1, 8)
    A.I(f'''
    s_barrier
    v_lshlrev_b32 {v(vGA)}, 2, v1
    s_mov_b32 {s(sSEG)}, {s(sREP)}
    v_lshlrev_b32 {v(vFA)}, 2, v0
    v_add_u32 {v(vV1)}, 4096, v3
    s_mov_b32 {s(sMA)}, 0x0000ffff
    s_mov_b32 {s(sMA+1)}, 0x007f0000
    s_mov_b32 {s(sMB)}, 0xffff0000
    s_mov_b32 {s(sMB+1)}, 0x0000ffff
    s_mul_i32 s42, {s(sW)}, {RBW}
    v_mul_u32_u24 {v(vRW)}, 272, v1
    v_lshl_add_u32 {v(vRW)}, v2, 4, {v(vRW)}
    v_add_u32 {v(vRW)}, s42, {v(vRW)}
    v_lshrrev_b32 v10, 3, v0
    v_lshl_add_u32 v10, {s(sW)}, 3, v10
    v_and_b32 v11, 7, v0
    v_mul_u32_u24 {v(vRR)}, 272, v10
    v_lshl_add_u32 {v(vRR)}, v11, 5, {v(vRR)}
    v_mul_u32_u24 {v(vO)}, 896, v10
    v_lshl_add_u32 {v(vO)}, v11, 4, {v(vO)}
    s_mul_i32 s42, {s(sREP)}, {32*896}
    s_lshl_b32 s43, {s(sH)}, 7
    s_add_u32 s42, s42, s43
    ''')
    addps(A, sOUT, sOUT, 42)
    A.I(f's_mul_i32 s42, {s(sREP)}, {HI_SEG}\n s_mul_i32 s43, {s(sW)}, 28672\n s_add_u32 s42, s42, s43')
    addp(A, sHI, sWS, HI_OFF); addps(A, sHI, sHI, 42)
    A.I(f's_mul_i32 s42, {s(sREP)}, {14*VX_SC}\n s_lshl_b32 s43, {s(sH)}, 16\n s_add_u32 s42, s42, s43\n s_lshl_b32 s43, {s(sW)}, 13\n s_add_u32 s42, s42, s43')
    addp(A, sVX, sWS, VX_OFF); addps(A, sVX, sVX, 42)
    A.I(f's_mul_i32 s42, {s(sREP)}, {WT_SEG}\n s_mul_i32 s43, {s(sW)}, 28672\n s_add_u32 s42, s42, s43\n s_lshl_b32 s43, {s(sH)}, 12\n s_add_u32 s42, s42, s43')
    addp(A, sWT, sWS, WT_OFF); addps(A, sWT, sWT, 42)
    A.I(f's_mul_i32 s42, {s(sREP)}, {PX_SEG}\n s_mul_i32 s43, {s(sW)}, 10240\n s_add_u32 s42, s42, s43')
    addp(A, sPX, sWS, PX_OFF); addps(A, sPX, sPX, 42)
    A.I(f's_lshl_b32 s42, {s(sREP)}, 8'); addp(A, sFL, sWS, FL_OFF); addps(A, sFL, sFL, 42)
    A.I(f's_lshl_b32 s42, {s(sREP)}, 7'); addp(A, sG, sWS, G_OFF); addps(A, sG, sG, 42)
    def wait_flags(tag, mask):
        if LIGHT: A.I(f's_cmp_lg_u32 {s(sW)}, 0\n s_cbranch_scc1 L_{tag}_ok')
        A.I(f'''
L_{tag}:
        global_load_dword {v(vF)}, {v(vFA)}, {s(sFL,2)} sc1
        ''')
        budget(A)
        A.I(f'''
        s_waitcnt vmcnt(0)
        v_cmp_eq_u32 vcc, 0, {v(vF)}
        s_and_b64 vcc, vcc, {s(mask,2)}
        s_cbranch_vccz L_{tag}_ok
        s_sleep {TS}
        s_branch L_{tag}
L_{tag}_ok:
        ''')
        if LIGHT: A.I('s_waitcnt vmcnt(0)\n s_barrier')
    A.label('L_ou_item')
    wait_flags('ou_f1', sMA)
    vm = Cnt(A, 'vmcnt', 63)
    A.I(f'global_load_dword {v(vG)}, {v(vGA)}, {s(sG,2)} sc1\n global_load_dword {v(vG+1)}, {v(vGA)}, {s(sG,2)} offset:64 sc1')
    A.I(f's_mov_b64 s[40:41], {s(sHI,2)}')
    def hload(i):
        A.I(f'global_load_dwordx4 {v(HR+4*(i%(2*NH)),4)}, v3, s[40:41] offset:{(i%4)*1024} sc1'); vm.add(('h', i))
        if i % 4 == 3: addp(A, 40, 40, 4096)
    for i in range(2 * NH): hload(i)
    addp(A, 42, sVX, 32768)
    vl = [(hh, ct) for hh in range(4) for ct in range(4)]
    def vload(n):
        hh, ct = vl[n]
        A.I(f'global_load_dwordx4 {v(VF+16*hh+4*ct,4)}, {v(3 if hh < 2 else vV1)}, {s(sVX if ct < 2 else 42,2)} offset:{(hh&1)*2048+(ct&1)*1024} sc1'); vm.add(('v', n))
    for j in range(14):
        for tt in range(2):
            i = 2*j + tt
            vm.wait(('h', i))
            for ct in range(4):
                d = v(ACC + 8*ct + 4*tt, 4)
                A.I(f'v_mfma_f32_16x16x32_bf16 {d}, {at(ct,j)}, {v(HR+4*(i%(2*NH)),4)}, {d if j else 0}')
            if i + 2 * NH < 28: hload(i + 2 * NH)
            elif i - 12 < 16: vload(i - 12)
    wait_flags('ou_f2', sMB)
    tl(A, 1, 5, 230)
    vm.clear()
    addp(A, 40, sPX, 4096); addp(A, 42, sPX, 8192)
    for i in range(10):
        A.I(f'global_load_dwordx4 {v(PF+4*i,4)}, v3, {s([sPX,40,42][i>>2],2)} offset:{(i%4)*1024} sc1'); vm.add(('p', i))
        if i == 3:
            for ct in range(4):
                A.I(f'global_load_dwordx4 {v(WF+4*ct,4)}, v3, {s(sWT,2)} offset:{ct*1024} sc1'); vm.add(('w', ct))
    for k in range(5):
        for tt in range(2):
            vm.wait(('p', 2*k + tt))
            for ct in range(4):
                d = v(AC2 + 8*ct + 4*tt, 4)
                a = v(VF + 16*k + 4*ct, 4) if k < 4 else v(WF + 4*ct, 4)
                A.I(f'v_mfma_f32_16x16x32_bf16 {d}, {a}, {v(PF+8*k+4*tt,4)}, {d if k else 0}')
    tl(A, 1, 6, 230)
    A.I('s_barrier')
    for tt in range(2):
        for ct in range(4):
            for r in range(4): A.I(f'v_fmac_f32 {v(ACC+8*ct+4*tt+r)}, {v(vG+tt)}, {v(AC2+8*ct+4*tt+r)}')
            A.I(f'ds_write_b128 {v(vRW)}, {v(ACC+8*ct+4*tt,4)} offset:{tt*16*272 + ct*64}')
    A.I('s_waitcnt lgkmcnt(0)\n s_barrier')
    Z = VF
    for k in range(4):
        A.I(f'ds_read_b128 {v(Z+8*k,4)}, {v(vRR)} offset:{k*RBW}\n ds_read_b128 {v(Z+8*k+4,4)}, {v(vRR)} offset:{k*RBW+16}')
    A.I('s_waitcnt lgkmcnt(0)')
    for a, b in ((0, 8), (16, 24), (0, 16)):
        for k in range(0, 8, 2): A.I(f'v_pk_add_f32 {v(Z+a+k,2)}, {v(Z+a+k,2)}, {v(Z+b+k,2)}')
    for k in range(4): A.I(f'v_cvt_pk_bf16_f32 {v(Z+8+k)}, {v(Z+2*k)}, {v(Z+2*k+1)}')
    A.I(f'global_store_dwordx4 {v(vO)}, {v(Z+8,4)}, {s(sOUT,2)} {OST}')
    tl(A, 1, 7, 230)
    addp(A, sOUT, sOUT, 7 * 32 * 896); addp(A, sHI, sHI, 7 * HI_SEG); addp(A, sVX, sVX, 7 * 14 * VX_SC)
    addp(A, sWT, sWT, 7 * WT_SEG); addp(A, sPX, sPX, 7 * PX_SEG); addp(A, sFL, sFL, 7 * 256); addp(A, sG, sG, 7 * 128)
    A.I(f's_add_u32 {s(sSEG)}, {s(sSEG)}, 7\n s_cmp_lt_u32 {s(sSEG)}, 64\n s_cbranch_scc1 L_ou_item'); A.I('s_waitcnt vmcnt(0)'); tl(A, 1, 2, 8); A.I('s_endpgm')
```

```python
import sys
from common import *
import chain, tok, prep

NAME = 'gated_mix__memory_aug_recurrent_mem_tr__dense_activation_silu__prompt'

def main_kernel(prof=0, roles=('chain', 'tokv', 'tokt', 'ffn1', 'outs')):
    A = Asm(); TL['role'] = 'e'
    A.I(f'''
    s_cmp_ge_u32 s2, 256
    s_cbranch_scc1 L_bail
    s_load_dwordx2 s[8:9], s[0:1], {KA_WS}
    s_load_dwordx2 {s(prep.sDB,2)}, s[0:1], {KA_DBG}
    v_lshrrev_b32 v1, 6, v0
    v_and_b32 v0, 63, v0
    s_and_b32 s38, s2, 7
    s_lshr_b32 s3, s2, 3
    v_readfirstlane_b32 s4, v1
    v_and_b32 v1, 15, v0
    v_lshrrev_b32 v2, 4, v0
    s_waitcnt lgkmcnt(0)
    s_mov_b32 s70, s2
    ''')
    if 'cw' in chain.OPT:
        A.raw(f'''    s_getpc_b64 s[40:41]
L_pc0:
    s_lshl_b32 s42, s3, 2
    s_add_u32 s42, s42, s4
    s_lshl_b32 s42, s42, 3
    v_and_b32 v3, 7, v0
    v_add_lshl_u32 v3, v3, s42, 7
    v_min_u32 v3, L_code_end - L_pc0 - 4, v3''')
        A.I('global_load_dword v255, v3, s[40:41]')
    if chain.GX or chain.GE: A.I('s_memrealtime s[92:93]\n s_waitcnt lgkmcnt(0)')
    tl(A, 1, 0, 200)
    A.I(f'''
    s_mov_b32 s44, -1
    s_mov_b32 s45, -1
    s_mov_b32 s46, -1
    s_cmp_lg_u32 s38, 0
    s_cbranch_scc1 L_tok0
    s_cmp_lg_u32 s3, 30
    s_cbranch_scc1 L_noinit
    ''')
    TL['role'] = 'he'; prep.init_job(A); TL['role'] = 'e'
    A.label('L_noinit')
    if 'sc' not in chain.OPT: A.I('s_cmp_ge_u32 s3, 16\n s_cbranch_scc1 L_jobs\n s_add_u32 s45, s3, 208')
    else: A.I('s_cmp_lt_u32 s3, 16\n s_cbranch_scc1 L_score\n s_add_u32 s45, s3, 192')
    A.I(f'''
    s_branch L_jobs
L_bail:
    s_endpgm
L_tok0:
    s_sub_u32 s39, s38, 1
    s_lshl_b32 s44, s39, 5
    s_add_u32 s44, s44, s3
    s_mul_i32 s39, s39, 21
    s_max_u32 s40, s3, 11
    s_add_u32 s39, s39, s40
    s_sub_u32 s39, s39, 11
    s_min_u32 s40, s39, 128
    s_add_u32 s40, s40, 7
    s_lshr_b32 s40, s40, 3
    s_sub_u32 s45, s44, s40
    s_cmp_lt_u32 s3, 11
    s_cbranch_scc1 L_jobs
    s_cmp_ge_u32 s39, 128
    s_cbranch_scc1 L_jobs
    s_and_b32 s39, s39, 7
    s_cselect_b32 s45, s45, -1
    ''')
    A.label('L_jobs')
    prep.gemm_jobs(A, 44)
    A.I(f'''
    s_mov_b32 s40, s38
    s_cmp_lg_u32 s38, 0
    s_cbranch_scc1 L_tok
    s_cmp_lt_u32 s3, 16
    s_cbranch_scc1 L_score
    s_cmp_lt_u32 s3, 30
    s_cbranch_scc1 L_value
    s_cmp_eq_u32 s3, 30
    s_cbranch_scc1 L_helper
    {'s_branch L_fetch' if 'fetch' in chain.OPT else 's_branch L_spare'}
L_tok:
    s_sub_u32 s40, s40, 1
    s_cmp_ge_u32 s3, 7
    s_cbranch_scc1 L_tok1
    s_mov_b32 {s(tok.sREP)}, s40
    s_branch {'L_outs' if 'outs' in roles else 'L_bail'}
L_tok1:
    s_cmp_ge_u32 s3, 11
    s_cbranch_scc1 L_tok2
    s_sub_u32 {s(tok.sREP)}, s3, 7
    s_mov_b32 s3, s40
    s_branch {'L_ffn1' if 'ffn1' in roles else 'L_bail'}
L_tok2:
    s_mul_i32 s40, s40, 21
    s_add_u32 s40, s40, s3
    s_sub_u32 s40, s40, 11
    s_cmp_ge_u32 s40, 128
    s_cbranch_scc1 L_bail
    s_and_b32 {s(tok.sREP)}, s40, 3
    s_lshr_b32 s3, s40, 3
    s_bitcmp1_b32 s40, 2
    s_cbranch_scc1 {'L_tokt' if 'tokt' in roles else 'L_bail'}
    s_branch {'L_tokv' if 'tokv' in roles else 'L_bail'}
    ''')
    for r, f in (('sc', lambda A: chain.score(A, prof)), ('va', lambda A: chain.value(A, prof if 'sonly' not in chain.OPT else 0)), ('he', chain.helper), ('fe', chain.fetcher), ('sp', chain.spare), ('tv', tok.tokv), ('tt', tok.tokt), ('f1', tok.ffn1), ('ou', tok.outs)):
        TL['role'] = r; f(A)
    A.label('L_code_end')
    return A

KD = '''.section .rodata,"a"
.p2align 6
.amdhsa_kernel {name}
  .amdhsa_next_free_vgpr {nv}
  .amdhsa_next_free_sgpr 102
  .amdhsa_accum_offset 256
  .amdhsa_group_segment_fixed_size 0
  .amdhsa_kernarg_size 112
  .amdhsa_user_sgpr_count 2
  .amdhsa_user_sgpr_kernarg_segment_ptr 1
  .amdhsa_system_sgpr_workgroup_id_x 1
  .amdhsa_float_denorm_mode_32 3
.end_amdhsa_kernel
'''
def full(prof=0, **kw):
    n = NAME + '_kernel'
    out = [HEADER, '; @launch grid=(256,1,1) block=(256,1,1) lds=163840',
           '.amdgcn_target "amdgcn-amd-amdhsa--gfx950"', '.text',
           f'.globl {n}', '.p2align 8', f'.type {n},@function', f'{n}:', main_kernel(prof, **kw).text(), KD.format(name=n, nv=512)]
    return '\n'.join(out)

HEADER = '''; Kernarg layout for this problem (112 bytes, ptrs only, base s[0:1]):
; second phase: memory recurrence (16 score + 14 value + 1 relay workgroups) and the token side (x B, x A + softmax, FFN, mix)'''

if __name__ == '__main__':
    args = sys.argv[1:]
    outn = 'cdna_kernels/' + NAME + '.s'
    for o in args:
        if o == 'dbg': TL['dbg'] = 1
        elif o.startswith('out='): outn = o[4:]
        elif '=' in o:
            k_, val = o.split('=')
            for mod in (chain, tok, prep):
                if hasattr(mod, k_): setattr(mod, k_, int(val) if val.lstrip('-').isdigit() else val)
        else: chain.OPT.add(o)
    open(outn, 'w').write(full())
```

```python
from common import *
import prep, tok
from prep import wait_tiles, sDB, DB_XCC

NSTEP = 63
CLK = 's_memrealtime'
OPT = {'poisT', 'mtouch', 'mtdirect'}
HSLEEP = 2
LIM = 60
XD = 0
VE = 4
DIR = 1
FS = 40
ALS = -1
ALV = -1
PS_ = 0
SS = 0
AJ = 8
GX = 0
GE = 0
AGE = 99
L3P = ''
PD = 3
FA, FB, FC, FD = 5, 3, 4, 1
PFL = 16
PFA = 2
NRES = 5
HD = 3
sROLE, sW, sSTEP, sBUD, sSENT = 3, 4, 5, 6, 7
sWS, sX0, sX1, sMEM, sP, sVX, sMT, sWT = 8, 10, 12, 14, 16, 18, 20, 24
sTMP, sTMP2 = 27, 28
sM20, sMHI, sMG = 30, 32, 34
sLB, sXB, sM48 = 36, 37, 38
sDBG = 44
sXCC, sEA, sEB, sFL = 75, 64, 66, 68
BUDGET = 1 << 21

def bud(A):
    A.I(f's_add_u32 {s(sBUD)}, {s(sBUD)}, 1\n s_cmp_gt_u32 {s(sBUD)}, {BUDGET}\n s_cbranch_scc1 L_bail')

def chain_common(A):
    A.I(f'''
    s_mov_b32 {s(sSTEP)}, 0
    s_mov_b32 {s(sBUD)}, 0
    s_mov_b32 {s(sSENT)}, {SENT}
    s_mov_b32 s90, 0
    ''')

def xcc_publish(A, role, t):
    A.I(f'''
    s_getreg_b32 {s(sXCC)}, hwreg(HW_REG_XCC_ID, 0, 4)
    s_add_u32 {s(sXCC)}, {s(sXCC)}, 1
    v_mov_b32 {v(t)}, {s(role)}
    v_mov_b32 {v(t+1)}, {s(sXCC)}
    s_waitcnt vmcnt(0)
    s_barrier
    global_store_byte {v(t)}, {v(t+1)}, {s(sDB,2)} offset:{DB_XCC} sc1
    ''')

def xcc_check(A, tag, t):
    A.I(f'''
    v_min_u32 {v(t)}, {31 if 'fetch' in OPT else 30}, v0
L_{tag}_xc:
    global_load_ubyte {v(t+1)}, {v(t)}, {s(sDB,2)} offset:{DB_XCC} sc1
    ''')
    bud(A)
    A.I(f'''
    s_waitcnt vmcnt(0)
    v_cmp_eq_u32 vcc, 0, {v(t+1)}
    s_cbranch_vccnz L_{tag}_xc
    v_cmp_ne_u32 vcc, {s(sXCC)}, {v(t+1)}
    s_cmp_eq_u64 vcc, {0 if 'slow' not in OPT else -1}
    s_cselect_b32 {s(sEA)}, 1, 0
    ''')

def warm(A, first, last, t):
    if 'warm' not in OPT: return
    A.raw(f'''    s_getpc_b64 s[40:41]
L_pc_{first}:
    s_add_u32 s40, s40, {first} - L_pc_{first}
    s_addc_u32 s41, s41, 0
    v_lshlrev_b32 {v(t)}, 7, v0
    v_min_u32 {v(t)}, {last} - {first}, {v(t)}''')
    A.I(f'global_load_dword {v(t+1)}, {v(t)}, s[40:41]')

def assist(A, tag, head, t):
    if 'noassist' in OPT: return
    wait_tiles(A, tag, t, 0, 'head', head, 1)
    A.I(f's_mul_i32 s40, {s(head)}, {MF_HEAD}'); addp(A, 42, sWS, MF_OFF + AJ * 2048); addps(A, 42, 42, 40)
    per = (14 - AJ) * 16
    tot = 14 * per
    n = (tot // 4 + 63) // 64
    A.I(f's_mul_i32 s40, {s(sW)}, {tot // 4}')
    for i in range(n):
        A.I(f'''
        v_add_u32 {v(t)}, {64*i}, v0
        v_min_u32 {v(t)}, {tot // 4 - 1}, {v(t)}
        v_add_u32 {v(t)}, s40, {v(t)}
        v_mul_u32_u24 {v(t+1)}, {(1 << 20) // per + 1}, {v(t)}
        v_lshrrev_b32 {v(t+1)}, 20, {v(t+1)}
        v_mul_u32_u24 {v(t+1)}, {224 - per}, {v(t+1)}
        v_add_lshl_u32 {v(t)}, {v(t)}, {v(t+1)}, 7
        global_load_dword {v(t+2)}, {v(t)}, s[42:43] sc1
        ''')

def mem_poll(A, tag, vG0, vPR, vD):
    A.I(f'''
L_{tag}_mp:
    s_mov_b32 m0, {s(sLB)}
L_{tag}_mpl:
    global_load_dword {v(vD)}, {v(vPR)}, {s(sMEM,2)} sc1
    global_load_lds_dwordx4 {v(vG0)}, {s(sMEM,2)} sc1
    s_mov_b64 exec, {s(sM48,2)}
    global_load_lds_dwordx4 {v(vG0)}, {s(sMEM,2)} offset:1024 sc1
    s_mov_b64 exec, -1
    ''')
    bud(A)
    A.I(f'''
    s_waitcnt vmcnt(2)
    v_cmp_eq_u32 vcc, {s(sSENT)}, {v(vD)}
    s_cbranch_vccnz L_{tag}_mpl
    s_waitcnt vmcnt(0) lgkmcnt(0)
    s_barrier
    ''')

def mem_poll_half(A, tag, vG0, vPR, vD):
    A.I(f'''
L_{tag}_mp:
    s_cmp_ge_u32 {s(sW)}, 2
    s_cbranch_scc1 L_{tag}_mpb
    s_mov_b32 m0, {s(sLB)}
L_{tag}_mpl:
    global_load_dword {v(vD)}, {v(vPR)}, {s(sMEM,2)} sc1
    global_load_lds_dwordx4 {v(vG0)}, {s(sMEM,2)} sc1
    global_load_lds_dwordx4 {v(vG0)}, {s(sMEM,2)} offset:1024 sc1
    global_load_lds_dwordx4 {v(vG0)}, {s(sMEM,2)} offset:2048 sc1
    s_mov_b32 exec_hi, 0
    global_load_lds_dwordx4 {v(vG0)}, {s(sMEM,2)} offset:3072 sc1
    s_mov_b64 exec, -1
    ''')
    bud(A)
    A.I(f'''
    s_waitcnt vmcnt(4)
    v_cmp_eq_u32 vcc, {s(sSENT)}, {v(vD)}
    s_cbranch_vccnz L_{tag}_mpl
    s_waitcnt vmcnt(0)
L_{tag}_mpb:
    s_waitcnt lgkmcnt(0)
    s_barrier
    ''')

def mem_poll_setup(A, vG0, vPR, t, half=False):
    A.I(f'''
    s_mul_i32 {s(sLB)}, {s(sW)}, {3584 if half else 1792}
    v_lshlrev_b32 {v(vG0)}, 4, v0
    v_add_u32 {v(vG0)}, {s(sLB)}, {v(vG0)}
    s_mov_b32 {s(sM48)}, -1
    s_mov_b32 {s(sM48+1)}, 0xffff
    v_min_u32 {v(t)}, {27 if half else 13}, v0
    v_lshlrev_b32 {v(t)}, 7, {v(t)}
    v_add3_u32 {v(vPR)}, {s(sLB)}, {v(t)}, 64
    ''')

def sreg(i): return 48 + 2 * i if i < 8 else 76 + 2 * (i - 8)

def stamp(A, idx, prof):
    if not prof: return
    A.I(f'{CLK} {s(sreg(idx), 2)}')

def stamp_flush(A, prof):
    if not prof: return
    A.I('s_waitcnt lgkmcnt(0)')
    for i in range(16): A.I(f'v_writelane_b32 v21, {s(sreg(i))}, {i}')
    A.I(f'''
    v_mbcnt_lo_u32_b32 v20, -1, 0
    v_lshlrev_b32 v20, 2, v20
    s_mov_b64 exec, 0xffff
    global_store_dword v20, v21, {s(sDBG,2)}
    s_mov_b64 exec, -1
    ''')
    addp(A, sDBG, sDBG, 64)

def idx_setup(A, vIDX, T):
    A.I(f'''
    v_and_b32 {v(T)}, 15, v0
    v_lshrrev_b32 {v(T+1)}, 4, v0
    v_and_b32 {v(T+2)}, 7, v0
    v_mov_b32 {v(vIDX)}, 0x4444
    v_mov_b32 {v(T+3)}, 0xeeee
    v_cmp_lt_u32 vcc, 7, {v(T)}
    v_cndmask_b32 {v(vIDX)}, {v(vIDX)}, {v(T+3)}, vcc
    ''')

def score(A, prof=0):
    L_MEM, L_TB, L_SB, L_RW, L_XB = 0, 8192, 20480, 26624, 65536
    vIDX, vG0, vXB, vPR, vAF0, vAF1, vMB0, vMB1, vTW, vTR, vSW, vSR, vPS, vX0, vX1, vRW, vSM, vSN = range(1, 19)
    vCK = 19; vLO = 0; sHI = 26
    RING, XF, R, TOPC, TMP, SACC, TACC, WV = 20, 52, 84, 108, 112, 116, 128, 144
    MEMB, TOPA, TOPB = R, R + 16, R + 20
    import layout
    if L3P: layout.L3T[:] = [int(c, 16) for c in str(L3P)]
    seq = score_seq()
    def wreg(i):
        if i < 3: return v(R + 8 * i, 8)
        if i < 35: return a_(8 * (i - 3), 8)
        return v(WV + 8 * (i - 35), 8)
    lg = Cnt(A, 'lgkmcnt', 15)
    A.label('L_score')
    A.I(f's_load_dwordx2 {s(sX0,2)}, s[0:1], {KA_X}')
    chain_common(A)
    T = 20
    idx_setup(A, vIDX, T)
    mem_poll_setup(A, vG0, vPR, T + 4)
    A.I(f'''
    v_lshlrev_b32 {v(T+4)}, 7, {v(T+1)}
    v_lshl_add_u32 {v(T+4)}, {v(T+2)}, 4, {v(T+4)}
    s_and_b32 {s(sTMP)}, {s(sW)}, 1
    s_mul_i32 {s(sTMP2)}, {s(sTMP)}, {7*512}
    v_mov_b32 {v(vAF0)}, {v(T+4)}
    v_add_u32 {v(vAF1)}, {s(sTMP2)}, {v(T+4)}
    s_lshr_b32 {s(sTMP2)}, {s(sW)}, 1
    s_mul_i32 {s(sTMP2)}, {s(sTMP2)}, 7
    s_lshl_b32 {s(sTMP)}, {s(sTMP)}, 2
    s_add_u32 {s(sTMP)}, {s(sTMP)}, {s(sTMP2)}
    s_add_u32 {s(sTMP2)}, {s(sTMP2)}, 3
    s_lshl_b32 s40, {s(sTMP)}, 9
    s_lshl_b32 s41, {s(sTMP2)}, 9
    v_add_u32 {v(vMB0)}, s40, {v(T+4)}
    v_add_u32 {v(vMB1)}, s41, {v(T+4)}
    s_lshl_b32 s40, {s(sTMP)}, 6
    s_lshl_b32 s41, {s(sTMP2)}, 6
    v_lshrrev_b32 {v(T+4)}, 2, v0
    v_mul_u32_u24 {v(T+4)}, 896, {v(T+4)}
    v_lshrrev_b32 {v(T+5)}, 5, v0
    v_lshlrev_b32 {v(T+5)}, 1, {v(T+5)}
    v_and_b32 {v(T+6)}, 3, v0
    v_xor_b32 {v(T+5)}, {v(T+5)}, {v(T+6)}
    v_lshl_add_u32 {v(T+4)}, {v(T+5)}, 4, {v(T+4)}
    v_add_u32 {v(vX0)}, s40, {v(T+4)}
    v_add_u32 {v(vX1)}, s41, {v(T+4)}
    s_lshl_b32 {s(sXB)}, {s(sW)}, 13
    s_add_u32 {s(sXB)}, {s(sXB)}, {L_XB}
    v_lshrrev_b32 {v(T+4)}, 3, {v(T)}
    v_lshlrev_b32 {v(T+4)}, 1, {v(T+4)}
    v_xor_b32 {v(T+4)}, {v(T+4)}, {v(T+1)}
    v_lshl_add_u32 {v(T+4)}, {v(T)}, 2, {v(T+4)}
    v_lshl_add_u32 {v(vXB)}, {v(T+4)}, 4, {s(sXB)}
    s_mul_i32 s40, {s(sW)}, 3072
    s_add_u32 s40, s40, {L_TB}
    v_mul_u32_u24 {v(T+5)}, 192, {v(T+1)}
    v_lshl_add_u32 {v(T+5)}, {v(T)}, 3, {v(T+5)}
    v_add_u32 {v(vTW)}, s40, {v(T+5)}
    v_and_b32 {v(T+5)}, 1, v0
    v_mul_u32_u24 {v(T+5)}, 192, {v(T+5)}
    v_lshrrev_b32 {v(T+6)}, 2, v0
    v_lshl_add_u32 {v(T+5)}, {v(T+6)}, 3, {v(T+5)}
    v_add_u32 {v(vTR)}, s40, {v(T+5)}
    s_mul_i32 s40, {s(sW)}, 1408
    s_add_u32 s40, s40, {L_SB}
    v_mul_u32_u24 {v(T+5)}, 176, {v(T+2)}
    v_add_u32 {v(T+5)}, s40, {v(T+5)}
    v_mov_b32 {v(vCK)}, {v(T+5)}
    v_lshrrev_b32 {v(T+6)}, 3, {v(T)}
    v_and_b32 {v(T+7)}, 1, {v(T+1)}
    v_mul_u32_u24 {v(T+7)}, 704, {v(T+7)}
    v_lshrrev_b32 {v(T+8)}, 1, {v(T+1)}
    v_lshl_add_u32 {v(T+7)}, {v(T+8)}, 6, {v(T+7)}
    v_lshl_add_u32 {v(T+7)}, {v(T)}, 2, {v(T+7)}
    v_add3_u32 {v(vSW)}, s40, {v(T+7)}, 32
    v_and_b32 {v(T+7)}, 1, {v(T+1)}
    v_lshlrev_b32 {v(T+7)}, 4, {v(T+7)}
    v_lshrrev_b32 {v(T+8)}, 1, {v(T+1)}
    v_lshl_add_u32 {v(T+8)}, {v(T+8)}, 1, {v(T+6)}
    v_lshl_add_u32 {v(T+7)}, {v(T+8)}, 2, {v(T+7)}
    v_add_u32 {v(vSM)}, {v(T+5)}, {v(T+7)}
    v_lshrrev_b32 {v(T+5)}, 5, v0
    v_lshl_add_u32 {v(T+5)}, {s(sW)}, 1, {v(T+5)}
    v_and_b32 {v(T+6)}, 31, v0
    v_min_u32 {v(T+6)}, 20, {v(T+6)}
    v_mul_u32_u24 {v(T+7)}, 176, {v(T+5)}
    v_lshl_add_u32 {v(T+7)}, {v(T+6)}, 3, {v(T+7)}
    v_add_u32 {v(vSR)}, {L_SB}, {v(T+7)}
    s_lshr_b32 s40, {s(sROLE)}, 2
    s_mul_i32 s40, s40, 2560
    s_and_b32 s41, {s(sROLE)}, 1
    s_bfe_u32 s42, {s(sROLE)}, 0x10001
    s_lshl_b32 s43, s41, 7
    s_lshl_b32 s46, s42, 5
    s_add_u32 s43, s43, s46
    s_add_u32 s43, s43, s40
    s_add_u32 s43, s43, 2048
    v_and_b32 {v(T+7)}, 1, {v(T+6)}
    v_lshlrev_b32 {v(T+7)}, 8, {v(T+7)}
    v_lshrrev_b32 {v(T+8)}, 1, {v(T+6)}
    v_lshl_add_u32 {v(T+7)}, {v(T+8)}, 6, {v(T+7)}
    v_lshl_add_u32 {v(T+7)}, {v(T+5)}, 2, {v(T+7)}
    v_add_u32 {v(T+7)}, s43, {v(T+7)}
    s_lshl_b32 s43, s42, 10
    s_lshl_b32 s46, s41, 9
    s_add_u32 s43, s43, s46
    s_add_u32 s43, s43, s40
    v_subrev_u32 {v(T+8)}, 4, {v(T+6)}
    v_lshrrev_b32 {v(T+9)}, 2, {v(T+8)}
    v_and_b32 {v(T+8)}, 3, {v(T+8)}
    v_lshlrev_b32 {v(T+8)}, 2, {v(T+8)}
    v_lshl_add_u32 {v(T+8)}, {v(T+9)}, 7, {v(T+8)}
    v_lshl_add_u32 {v(T+8)}, {v(T+5)}, 4, {v(T+8)}
    v_add_u32 {v(T+8)}, s43, {v(T+8)}
    v_cmp_gt_u32 vcc, 4, {v(T+6)}
    v_cndmask_b32 {v(vPS)}, {v(T+8)}, {v(T+7)}, vcc
    s_mul_i32 s40, {s(sW)}, 6144
    s_add_u32 s40, s40, {L_RW}
    v_lshl_add_u32 {v(vRW)}, v0, 4, s40
    s_mov_b32 {s(sM20)}, 0x000fffff
    s_mov_b32 {s(sM20+1)}, 0x000fffff
    s_mov_b32 {s(sMHI)}, 0xff00ff00
    s_mov_b32 {s(sMHI+1)}, 0xff00ff00
    s_mov_b32 {s(sMG)}, 0
    s_mov_b32 {s(sMG+1)}, -1
    v_mov_b32 {v(vSN)}, {SENT}
    ''')
    addp(A, sP, sWS, PS_OFF); addp(A, 40, sP, PS_SLOT)
    A.I(f'''
    s_mov_b64 exec, {s(sM20,2)}
    global_store_dword {v(vPS)}, {v(vSN)}, {s(sP,2)} sc1
    global_store_dword {v(vPS)}, {v(vSN)}, s[40:41] sc1
    s_mov_b64 exec, -1
    s_waitcnt lgkmcnt(0)
    ''')
    xcc_publish(A, sROLE, T + 12)
    warm(A, 'L_sc_step', 'L_sd_step', T + 12)
    addp(A, sX1, sX0, 16 * 896)
    def xdma():
        for k in range(8):
            L, t = k >> 1, k & 1
            A.I(f's_add_u32 m0, {s(sXB)}, {k*1024 - (64*L if L < 3 else 0)}')
            base = s(sX0 if t == 0 else sX1, 2)
            A.I(f'global_load_lds_dwordx4 {v(vX0)}, {base} offset:{64*L}' if L < 3 else f'global_load_lds_dwordx4 {v(vX1)}, {base}')
        addp(A, sX0, sX0, XI_SEG); addp(A, sX1, sX1, XI_SEG)
        if XB2: A.I(f's_xor_b32 {s(sXB)}, {s(sXB)}, 0x8000')
    def xread():
        for k in range(8): A.I(f'ds_read_b128 {v(RING+4*k,4)}, {v(vXB)} offset:{k*1024}')
        for L in range(4):
            A.I(f's_waitcnt lgkmcnt({6-2*L})')
            for k in range(8): A.I(f'v_mov_b32 {v(XF+8*L+k)}, {v(RING+8*L+4*(k&1)+(k>>1))}')
        for k in range(4): A.I(f'v_mov_b32 {v(SACC+4+k)}, 0')
        if XB2: A.I(f'v_xor_b32 {v(vXB)}, 0x8000, {v(vXB)}')
    XB2 = 'nox2' not in OPT
    SC = 'sc' in OPT
    ixw = {x: i for i, x in enumerate(seq)}
    def wq(i, hf):
        if i < 3: return ('v', R + 8 * i + 4 * hf)
        if i < 35: return ('a', 8 * (i - 3) + 4 * hf)
        return ('v', WV + 8 * (i - 35) + 4 * hf)
    def rq(q, n=4): return (v if q[0] == 'v' else a_)(q[1], n)
    if SC:
        VREG = [wq(i, hf) for i, (L, jj) in enumerate(seq) if L >= 2 and i >= 3 for hf in range(2)][:32]
        UR, TC, ACC, vUS, vVS, vL, vUB, vUR = 20, 44, 52, 108, 110, 114, 118, 122
        sQ, sK, sL = 46, 48, 50
        A.I(f'''
        s_load_dwordx4 s[52:55], s[0:1], {KA_WQ}
        v_lshrrev_b32 v20, 5, v0
        v_and_b32 v21, 31, v0
        v_and_b32 v22, 15, v0
        v_lshrrev_b32 v23, 4, v0
        s_and_b32 s40, {s(sW)}, 1
        s_lshl_b32 s40, s40, 1
        s_lshl_b32 s41, {s(sW)}, 3
        ''')
        for b in range(2):
            A.I(f'''
            v_add_u32 v24, {2*b}, v20
            v_lshlrev_b32 v25, 2, v24
            v_xor_b32 v25, v25, v21
            v_lshlrev_b32 v26, 13, v24
            v_lshl_add_u32 {v(vVS+b)}, v25, 4, v26
            v_xor_b32 {v(vVS+2+b)}, 32, {v(vVS+b)}
            v_xor_b32 v25, s40, v25
            v_add_u32 v24, s41, v24
            v_lshlrev_b32 v26, 13, v24
            v_lshl_add_u32 {v(vUS+b)}, v25, 4, v26
            ''')
        A.I(f'''
        v_and_b32 v24, 3, v22
        v_lshlrev_b32 v25, 2, v24
        v_bfe_u32 v26, v22, 2, 1
        v_lshl_add_u32 v25, v26, 1, v25
        v_lshrrev_b32 v27, 2, v22
        v_lshl_add_u32 v27, v27, 3, v24
        v_lshlrev_b32 v27, 9, v27
        v_lshlrev_b32 v26, 4, v26
        v_lshrrev_b32 v28, 3, v22
        v_lshl_add_u32 v26, v28, 2, v26
        v_add_u32 v26, v26, v24
        v_lshlrev_b32 v26, 9, v26
        s_lshl_b32 {s(sL)}, {s(sW)}, 15
        v_add_u32 v26, {s(sL)}, v26
        ''')
        for b in range(4):
            A.I(f'''
            v_add_u32 v24, {4*b}, v23
            v_xor_b32 v24, v24, v25
            v_lshl_add_u32 {v(vUB+b)}, v24, 4, v27
            v_lshl_add_u32 {v(vL+b)}, v24, 4, v26
            ''')
        A.I(f'''
        s_lshl_b32 s40, {s(sROLE)}, 9
        s_lshl_b32 s41, {s(sTMP)}, 18
        s_add_u32 s41, s41, s40
        s_waitcnt lgkmcnt(0)
        ''')
        addps(A, sQ, 52, 40); addps(A, sK, 54, 41)
        vm = Cnt(A, 'vmcnt', 63); l2 = Cnt(A, 'lgkmcnt', 15)
        for k in range(32):
            A.I(f's_add_u32 m0, {s(sL)}, {k*1024}')
            A.I(f'global_load_lds_dwordx4 {v(vVS + (k&1) + 2*((k>>3)&1))}, {s(sK,2)} {prep.LDNT}'); vm.add('V')
            if k & 1: addp(A, sK, sK, 32768)
        A.I(f's_lshl_b32 {s(sL)}, {s(sW)}, 12')
        slot = lambda j: [8, 9][j] if j < 2 else (j - 2) % 10
        def issueU(j):
            for kk in range(4):
                A.I(f's_add_u32 m0, {s(sL)}, {slot(j)*16384 + kk*1024}')
                A.I(f'global_load_lds_dwordx4 {v(vUS + (kk&1))}, {s(sQ,2)} {prep.LDNT}'); vm.add(('U', j))
                if kk == 1: addp(A, sQ, sQ, 32768)
            addp(A, sQ, sQ, 32 * 8192 - 32768)
        issueU(0); issueU(1)
        vm.wait('V')
        for t in range(4):
            for kk in range(8):
                A.I(f'ds_read_b128 {rq(VREG[8*t+kk])}, {v(vL+(kk&3))} offset:{(t>>1)*16384 + (t&1)*4096 + (kk>>2)*256}')
            A.I('s_waitcnt lgkmcnt(0)')
        tl(A, 1, 6, 44)
        A.I('s_barrier')
        for j in range(2, 10): issueU(j)
        for j in range(14):
            for b in range(4): A.I(f'v_add_u32 {v(vUR+b)}, {slot(j)*16384}, {v(vUB+b)}')
            vm.wait(('U', j)); A.I('s_barrier')
            if 1 <= j <= 4: issueU(j + 9)
            if j == 7: tl(A, 1, 7, 44)
            def rdu(kk):
                for tp in range(2):
                    A.I(f'ds_read_b128 {v(UR+8*(kk%3)+4*tp,4)}, {v(vUR+(kk&3))} offset:{tp*2048 + (kk>>2)*256}'); l2.add((kk, tp))
            rdu(0); rdu(1)
            for kk in range(8):
                for tp in range(2):
                    l2.wait((kk, tp))
                    for t in range(4):
                        acc = v(ACC + 8*t + 4*tp, 4)
                        A.I(f'v_mfma_f32_16x16x32_bf16 {acc}, {v(UR+8*(kk%3)+4*tp,4)}, {rq(VREG[8*t+kk])}, {acc if kk else 0}')
                        if tp == 0 and t == 0 and kk + 2 < 8: rdu(kk + 2)
            A.I(f's_mov_b32 s40, {f32(CSC)}\n s_mov_b32 s41, s40')
            for e in range(2):
                for tp in range(2):
                    q = wq(ixw[(e, j)], tp)
                    for k in range(2):
                        for y in range(2):
                            r = ACC + 8*(2*e+y) + 4*tp + 2*k
                            A.I(f'v_pk_mul_f32 {v(r,2)}, {v(r,2)}, s[40:41]')
                    for k in range(2):
                        for y in range(2):
                            r = ACC + 8*(2*e+y) + 4*tp + 2*k
                            d = q[1] + 2*k + y if q[0] == 'v' else TC + 2*k + y
                            A.I(f'v_cvt_pk_bf16_f32 {v(d)}, {v(r)}, {v(r+1)}')
                    if q[0] == 'a':
                        for k in range(4): A.I(f'v_accvgpr_write_b32 {a_(q[1]+k)}, {v(TC+k)}')
        A.I('s_barrier')
        for k in range(6): A.I(f'ds_write_b128 {v(vRW)}, {v(R+4*k,4)} offset:{k*1024}')
        tl(A, 1, 5, T)
    A.I(f'''
    v_mov_b32 {v(T+6)}, 0xff800000
    v_mov_b32 {v(T+7)}, 0xff800000
    ds_write_b64 {v(vCK)}, {v(T+6,2)} offset:160
    ''')
    xdma()
    if XB2: xdma()
    A.I(f'''
    s_mul_i32 s40, {s(sROLE)}, {MF_HEAD}
    s_and_b32 s41, {s(sW)}, 1
    s_mul_i32 s41, s41, {7*2048}
    s_mul_i32 s42, {s(sTMP)}, {14*2048}
    s_mul_i32 s43, {s(sTMP2)}, {14*2048}
    v_lshlrev_b32 {v(T+8)}, 4, v0
    v_add_u32 {v(108)}, s42, {v(T+8)}
    s_add_u32 s46, s43, s41
    v_add_u32 {v(109)}, s46, {v(T+8)}
    ''')
    addp(A, sWT, sWS, MF_OFF); addps(A, sWT, sWT, 40)
    def wload(i):
        L, jj = seq[i]
        addp(A, 40, sWT, ((L % 3) * 14 + jj) * 2048)
        for hf in range(2): A.I(f'global_load_dwordx4 {rq(wq(i, hf))}, {v(109 if L == 3 else 108)}, s[40:41] offset:{hf*1024} sc1')
    if SC or 'noprog' in OPT:
        xcc_check(A, 'sc0', 110)
        wait_tiles(A, 'sc', 110, 0, 'head', sROLE)
        tl(A, 1, 4, 110)
        for i, (L, jj) in enumerate(seq):
            if SC and L < 2: continue
            wload(i)
            if i > 23: A.I('s_waitcnt vmcnt(42)')
    else:
        xcc_check(A, 'sc', 110)
        addp(A, sMEM, sWS, MEMS_OFF)
        A.I(f'''
        s_mov_b32 m0, {s(sLB)}
        global_load_lds_dwordx4 {v(vG0)}, {s(sMEM,2)} sc1
        s_mov_b64 exec, {s(sM48,2)}
        global_load_lds_dwordx4 {v(vG0)}, {s(sMEM,2)} offset:1024 sc1
        s_mov_b64 exec, -1
        ''')
        xread()
        for k in range(16): A.I(f'v_mov_b32 {v(TACC+k)}, 0')
        addp(A, sVX, sWS, PF_OFF)
        A.I(f'''
        s_lshl_b32 s40, {s(sROLE)}, 5
        v_bfe_u32 {v(110)}, v0, 3, 1
        v_lshl_add_u32 {v(110)}, {v(110)}, 9, s40
        v_and_b32 {v(111)}, 7, v0
        v_lshl_add_u32 {v(110)}, {v(111)}, 2, {v(110)}
        s_mov_b32 s46, 0x7f
L_sc_w:
        global_load_dword {v(111)}, {v(110)}, {s(sVX,2)} sc1
        ''')
        bud(A)
        A.I(f'''
        s_waitcnt vmcnt(0)
        v_cmp_ne_u32 vcc, 0, {v(111)}
        s_lshr_b32 s47, vcc_lo, 8
        s_and_b32 s47, s47, vcc_lo
        s_and_b32 s47, s47, s46
        s_andn2_b32 s46, s46, s47
        ''')
        for jb in range(7):
            A.I(f's_bitcmp0_b32 s47, {jb}\n s_cbranch_scc1 L_sc_w{jb}\n s_waitcnt vmcnt(48)')
            for j in (2 * jb, 2 * jb + 1):
                for L in range(3): wload(ixw[(L, j)])
            A.label(f'L_sc_w{jb}')
        A.I(f's_cmp_lg_u32 s46, 0\n s_cbranch_scc1 L_sc_w\n s_waitcnt vmcnt(48)')
        tl(A, 1, 4, 112)
        for jj in range(7): wload(ixw[(3, jj)])
    if SC or 'noprog' in OPT: xcc_check(A, 'sc', 110)
    if not SC:
        A.I('s_waitcnt vmcnt(14)' if 'noprog' not in OPT else 's_waitcnt vmcnt(0)')
        for k in range(6): A.I(f'ds_write_b128 {v(vRW)}, {v(R+4*k,4)} offset:{k*1024}')
    if SC or 'noprog' in OPT: xread()
    addp(A, sMEM, sWS, MEMS_OFF)
    if prof:
        A.I(f's_lshl_b32 s40, {s(sROLE)}, 2\n s_add_u32 s40, s40, {s(sW)}\n s_lshl_b32 s40, s40, 12')
        addp(A, sDBG, sWS, END_OFF); addps(A, sDBG, sDBG, 40)
    if SC or 'noprog' in OPT:
        for k in range(16): A.I(f'v_mov_b32 {v(TACC+k)}, 0')
    A.I(f'''
    v_and_b32 {v(T)}, 16, v0
    v_cmp_eq_u32 vcc, 0, {v(T)}
    v_mov_b32 {v(T)}, {f32(2.0 ** -LIM)}
    v_cndmask_b32 {v(vLO)}, 0, {v(T)}, vcc
    s_mov_b32 {s(sHI)}, {f32(2.0 ** (LIM - 1))}
    s_waitcnt vmcnt(0) lgkmcnt(0)
    ''')
    tl(A, 1, 1, T)
    if GX:
        A.I(f'''
L_gx:
        s_memrealtime s[40:41]
        s_waitcnt lgkmcnt(0)
        s_sub_u32 s40, s40, s92
        s_cmp_lt_u32 s40, {GX*100}
        s_cbranch_scc1 L_gx
        ''')
    if SC or 'noprog' in OPT: A.I(f's_cmp_eq_u32 {s(sEA)}, 0\n s_cbranch_scc1 L_sd_step')
    else: A.I(f's_barrier\n s_cmp_eq_u32 {s(sEA)}, 0\n s_cbranch_scc1 L_sd_go\n s_branch L_sc_go')
    def loop(tg, sc):
        if ALS >= 0:
            A.raw('.p2align 6, , 63')
            for _ in range(ALS): A.I('s_nop 0')
        A.label(f'L_{tg}_step')
        stamp(A, 0, prof)
        if prof: A.I('s_memtime s[62:63]')
        mem_poll(A, tg, vG0, vPR, TMP)
        A.label(f'L_{tg}_go')
        stamp(A, 1, prof)
        lg.clear()
        def rdfrag(jj):
            A.I(f'ds_read_b128 {v(RING + 4*(jj%8), 4)}, {v(vAF0)} offset:{jj*512}'); lg.add(('f', jj))
        GR = [SACC, SACC + 8]
        def rdg(jj):
            if 'nog' in OPT: return
            A.I(f'ds_read_b128 {v(GR[jj&1], 4)}, {v(vAF1)} offset:{jj*512}'); lg.add(('g', jj))
        def rdmemb(L):
            if 'nomb' in OPT: return
            ad = f'{v(vMB0)} offset:{L*512}' if L < 3 else f'{v(vMB1)}'
            A.I(f'ds_read_b128 {v(MEMB + 4*L, 4)}, {ad}'); lg.add(('m', L))
        def cvt(L, k): A.I(f'v_cvt_pk_bf16_f32 {v(TMP + 2*(L&1) + k)}, {v(TACC+4*L+2*k)}, {v(TACC+4*L+2*k+1)}')
        def twr(L):
            A.I(f'ds_write_b64 {v(vTW)}, {v(TMP + 2*(L&1), 2)} offset:{L*768}'); lg.add(('w', L))
        TOPD = RING + 4 * (8 % 8)
        top = {0: TOPA, 1: TOPB, 2: TOPD, 3: TOPC}
        def trr(L):
            A.I(f'ds_read_b64_tr_b16 {v(top[L], 2)}, {v(vTR)} offset:{L*768}'); lg.add(('x', L))
            A.I(f'ds_read_b64_tr_b16 {v(top[L]+2, 2)}, {v(vTR)} offset:{L*768+384}'); lg.add(('t', L))
        def smm1(L, t, first=False):
            lg.wait(('m', L)); lg.wait(('t', L))
            if t == 0: A.I(f'v_mfma_f32_16x16x32_bf16 {v(SACC,4)}, {v(MEMB + 4*L, 4)}, {v(top[L],4)}, {0 if first else v(SACC,4)}')
            else: A.I(f'v_smfmac_f32_16x16x64_bf16 {v(SACC+4,4)}, {v(top[L],4)}, {v(XF + 8*L, 8)}, {v(vIDX)}')
        def chk(j0, first=False):
            if 'nochk' in OPT and not first: return
            a, b = v(RING + 4*(j0 % 8)), v(RING + 4*((j0+1) % 8))
            if first: A.I(f'v_max_u32 {v(vCK)}, {a}, {b}')
            else: A.I(f'v_max3_u32 {v(vCK)}, {a}, {b}, {v(vCK)}')
        fill = {i: [] for i in range(49)}
        ix = {x: i for i, x in enumerate(seq)}
        fill[0].append(lambda: rdg(0)); fill[1].append(lambda: rdfrag(2)); fill[ix[(1, 1)]].append(lambda: rdg(1))
        for k in range(3, 8): fill[ix[(0, k - PD)]].append(lambda k=k: rdfrag(k))
        for k in range(5): fill[ix[(3, k)]].append(lambda k=k: rdg(k + 2))
        for k in range(6): fill[ix[(2, k)]].append(lambda k=k: rdfrag(8 + k))
        e3 = ix[(3, 6)]
        if 'nol3' not in OPT: fill[e3 + 2].append(lambda: cvt(3, 0)); fill[e3 + 3].append(lambda: cvt(3, 1)); fill[e3 + 5].append(lambda: twr(3)); fill[e3 + 6].append(lambda: trr(3))
        for k, L in enumerate([3, 0, 1, 2]): fill[ix[(0, 10 + k)]].append(lambda L=L: rdmemb(L))
        for j0 in range(0, 14, 2):
            i = ix[(0, j0 + 1)]
            while i in (e3 + 2, e3 + 3): i += 1
            fill[i].append(lambda j0=j0: chk(j0, j0 == 0))
        fill[42].append(lambda: A.I(f'v_cmp_eq_u32 vcc, {s(sSENT)}, {v(vCK)}'))
        fill[43].append(lambda: cvt(0, 0)); fill[44].append(lambda: cvt(0, 1))
        fill[45] += [lambda: twr(0), lambda: cvt(1, 0)]; fill[46] += [lambda: trr(0), lambda: cvt(1, 1)]
        fill[47].append(lambda: twr(1)); fill[48].append(lambda: trr(1))
        fill[ix[(1, 5)]].insert(0, lambda: addp(A, 40, sP, 2 * PS_SLOT))
        fill[ix[(1, 6)]].insert(0, lambda: A.I(f's_mov_b64 exec, {s(sM20,2)}\n global_store_dword {v(vPS)}, {v(vSN)}, s[40:41] {sc}\n s_mov_b64 exec, -1'))
        rdfrag(0); rdfrag(1)
        for i, (L, jj) in enumerate(seq):
            lg.now = i; lg.wait_old(('f', jj) if L < 3 else ('g', jj), AGE)
            A.I(f'v_smfmac_f32_16x16x64_bf16 {v(TACC+4*L,4)}, {v(RING+4*(jj%8) if L < 3 else GR[jj&1],4)}, {wreg(i)}, {v(vIDX)}')
            if i == 0: stamp(A, 8, prof > 1)
            if i == 24: stamp(A, 9, prof > 1)
            for f in fill[i]: f()
        stamp(A, 2, prof > 1)
        smm1(3, 1); smm1(3, 0, True)
        cvt(2, 0); cvt(2, 1); twr(2); trr(2)
        A.I(f's_cbranch_vccnz L_{tg}_redo')
        for L in (0, 1): smm1(L, 1); smm1(L, 0)
        smm1(2, 0); smm1(2, 1)
        stamp(A, 10, prof > 1)
        Z = RING + 4
        A.I(f'''
        v_cndmask_b32 {v(Z)}, {v(SACC)}, {v(SACC+1)}, {s(sMHI,2)}
        v_cndmask_b32 {v(Z+1)}, {v(SACC+2)}, {v(SACC+3)}, {s(sMHI,2)}
        v_cndmask_b32 {v(Z)}, {v(Z)}, {v(Z+1)}, {s(sMG,2)}
        ds_write_b32 {v(vSM)}, {v(Z)}
        ds_write2_b32 {v(vSW)}, {v(SACC+4)}, {v(SACC+5)} offset0:0 offset1:44
        ds_write2_b32 {v(vSW)}, {v(SACC+6)}, {v(SACC+7)} offset0:88 offset1:132
        ''')
        stamp(A, 11, prof > 1)
        for k in range(FA): A.I(f'v_mov_b32 {v(TACC+k)}, 0')
        A.I('s_waitcnt lgkmcnt(0)')
        stamp(A, 12, prof > 1)
        A.I('s_barrier')
        stamp(A, 3, prof)
        for k in range(4): A.I(f'ds_read_b64 {v(Z+2*k,2)}, {v(vSR)} offset:{k*1408}')
        for k in range(FA, FA + FB): A.I(f'v_mov_b32 {v(TACC+k)}, 0')
        E, M = Z + 8, Z + 10
        A.I(f'''
        s_waitcnt lgkmcnt(2)
        v_pk_add_f32 {v(Z,2)}, {v(Z,2)}, {v(Z+2,2)}
        s_waitcnt lgkmcnt(0)
        v_pk_add_f32 {v(Z+4,2)}, {v(Z+4,2)}, {v(Z+6,2)}
        v_pk_add_f32 {v(Z,2)}, {v(Z,2)}, {v(Z+4,2)}
        ''')
        stamp(A, 13, prof > 1)
        def summ(a, check=False):
            A.I(f'''
            v_exp_f32 {v(E)}, {v(a)}
            v_exp_f32 {v(E+1)}, {v(a+1)}
            v_add_f32 {v(M)}, {v(E)}, {v(E+1)}
            ''')
            for k in (8, 4, 2, 1): A.I(f'v_add_f32_dpp {v(M)}, {v(M)}, {v(M)} {dpp(k)}')
            A.I(f'v_mov_b32 {v(M+1)}, {v(M)}')
            if check: A.I(f'v_med3_f32 {v(M+3)}, {v(M)}, {v(vLO)}, {s(sHI)}\n v_cmp_neq_f32 vcc, {v(M+3)}, {v(M)}')
            A.I(f'''
            v_permlane16_swap_b32 {v(M)}, {v(M+1)}
            v_add_f32 {v(M)}, {v(M)}, {v(M+1)}
            ''')
        def truemax():
            A.I(f'v_max_f32 {v(M)}, {v(Z)}, {v(Z+1)}')
            for k in (8, 4, 2, 1): A.I(f'v_max_f32_dpp {v(M)}, {v(M)}, {v(M)} {dpp(k)}')
            A.I(f'''
            v_mov_b32 {v(M+1)}, {v(M)}
            v_permlane16_swap_b32 {v(M)}, {v(M+1)}
            v_max_f32 {v(M)}, {v(M)}, {v(M+1)}
            v_sub_f32 {v(E)}, {v(Z)}, {v(M)}
            v_sub_f32 {v(E+1)}, {v(Z+1)}, {v(M)}
            ''')
            summ(E)
        def norm():
            A.I(f'''
            v_rcp_f32 {v(M+2)}, {v(M)}
            s_mov_b64 exec, {s(sM20,2)}
            v_pk_mul_f32 {v(E,2)}, {v(E,2)}, {v(M+2,2)} op_sel_hi:[1,0]
            v_cvt_pk_bf16_f32 {v(E)}, {v(E)}, {v(E+1)}
            ''')
        if 'max' in OPT: truemax(); norm()
        else: summ(Z, True); stamp(A, 14, prof > 1); norm(); A.I(f's_cbranch_vccnz L_{tg}_max')
        A.label(f'L_{tg}_norm')
        A.I(f'global_store_dword {v(vPS)}, {v(E)}, {s(sP,2)} {sc}')
        stamp(A, 4, prof)
        A.I(f's_mov_b64 exec, -1\n s_add_u32 {s(sSTEP)}, {s(sSTEP)}, 1\n s_cmp_ge_u32 {s(sSTEP)}, {NSTEP}\n s_cbranch_scc1 L_sc_end')
        if XB2: A.I(f's_cmp_ge_u32 {s(sSTEP)}, {NSTEP-1}\n s_cbranch_scc1 L_{tg}_nox')
        if 'nox' not in OPT: xdma()
        if tok.FIN: A.I(f's_branch L_{tg}_nof')
        A.label(f'L_{tg}_nox')
        if tok.FIN:
            A.I(f's_lshl_b32 s42, {s(sROLE)}, 2\n s_add_u32 s42, s42, {s(sW)}\n s_mul_i32 s42, s42, 10240')
            addp(A, 40, sWS, FX_OFF); addps(A, 40, 40, 42)
            A.I(f's_lshl_b32 s42, {s(sW)}, 13\n s_lshl_b32 s43, {s(sW)}, 11\n v_subrev_u32 {v(RING)}, {s(sLB)}, {v(vG0)}')
            for k in range(10):
                A.I(f's_add_u32 m0, s42, {131072 + (k>>2)*4096}' if k < 8 else f's_add_u32 m0, s43, 51200')
                A.I(f'global_load_lds_dwordx4 {v(RING)}, s[40:41] offset:{(k%4)*1024} sc1')
                if k % 4 == 3: addp(A, 40, 40, 4096)
            A.label(f'L_{tg}_nof')
        for k in range(6): A.I(f'ds_read_b128 {v(R+4*k,4)}, {v(vRW)} offset:{k*1024}')
        for k in range(FA + FB, 16): A.I(f'v_mov_b32 {v(TACC+k)}, 0')
        addp(A, sP, sP, PS_SLOT); addp(A, sMEM, sMEM, MEM_SLOT)
        stamp_flush(A, prof)
        if not XB2: A.I('s_waitcnt vmcnt(0)')
        xread()
        if SS: A.I(f's_sleep {SS}')
        stamp(A, 5, prof)
        A.I(f's_branch L_{tg}_step')
        if 'max' not in OPT:
            A.label(f'L_{tg}_max'); A.I('s_mov_b64 exec, -1\n s_nop 1'); truemax(); norm(); A.I(f's_branch L_{tg}_norm')
        A.label(f'L_{tg}_redo')
        if prof: A.I(f's_add_u32 {s(sreg(15))}, {s(sreg(15))}, 1')
        A.I('s_waitcnt vmcnt(0) lgkmcnt(0)\n s_nop 15\n s_barrier')
        for k in range(6): A.I(f'ds_read_b128 {v(R+4*k,4)}, {v(vRW)} offset:{k*1024}')
        for k in range(16): A.I(f'v_mov_b32 {v(TACC+k)}, 0')
        for k in range(4): A.I(f'v_mov_b32 {v(SACC+4+k)}, 0')
        A.I(f's_branch L_{tg}_mp')
    loop('sc', ''); loop('sd', 'sc1')
    A.label('L_sc_end')
    tl(A, 1, 2, T)
    stamp_flush(A, prof)
    if tok.FIN:
        A.I(f'''
        v_mbcnt_lo_u32_b32 v0, -1, 0
        v_mbcnt_hi_u32_b32 v0, -1, v0
        v_and_b32 v1, 15, v0
        v_lshrrev_b32 v2, 4, v0
        v_lshlrev_b32 v3, 4, v0
        ''')
        tok.tt_setup(A)
        A.I(f's_lshl_b32 s42, {s(sW)}, 13\n s_add_u32 s42, s42, 131072\n v_add_u32 v4, s42, v3\n s_lshl_b32 s42, {s(sW)}, 11\n s_add_u32 s42, s42, 51200\n v_add_u32 v5, s42, v3')
        for k in range(10):
            A.I(f'ds_read_b128 {v(tok.TT.TB+4*k if k < 7 else tok.TT.SA+4*(k-7),4)}, {"v4" if k < 8 else "v5"} offset:{(k%8)*1024}')
        addp(A, sMEM, sMEM, MEM_SLOT); addp(A, sP, sWS, PX_OFF + 63 * PX_SEG)
        O = tok.tt_finish(A, 'sf', sMEM, False)
        A.I(f'''
        s_mov_b64 exec, {s(tok.TT.sM5,2)}
        s_cmp_eq_u32 {s(sEA)}, 0
        s_cbranch_scc1 L_sf_slow
        global_store_dwordx4 {v(tok.TT.vPX)}, {v(O,4)}, {s(sP,2)}
        s_endpgm
L_sf_slow:
        global_store_dwordx4 {v(tok.TT.vPX)}, {v(O,4)}, {s(sP,2)} sc1
        ''')
    A.I('s_endpgm')

def value(A, prof=0):
    L_MEM, L_RB, L_WL, L_VB = 0, 8192, 16384, 131072
    DEC = 'dec' in OPT
    H3R, NR = 136, NRES
    RBW = 32 * 48
    vIDX, vG0, vCK, vPR, vAF, vWL, vV0, vV1, vPM, vPX, vSN, vRWR, vRRD, vMS, vZ, vDUM, vFL, vVB, vVP = range(1, 20)
    ARING, HRING, VXF, WACC, WX, WY, OX, OY, PF, WV = 20, 36, 60, 92, 108, 112, 116, 120, 124, 176
    lg = Cnt(A, 'lgkmcnt', 15)
    def wreg(hh, j):
        k = (hh * 14 + j) * 8
        return a_(k, 8) if k < 256 else v(WV + k - 256, 8)
    A.label('L_value')
    A.I(f's_load_dwordx2 {s(sX0,2)}, s[0:1], {KA_OUT}\n s_waitcnt lgkmcnt(0)')
    chain_common(A)
    T = 20
    A.I(f's_mov_b32 {s(sTMP)}, {s(sROLE)}\n s_sub_u32 {s(sROLE)}, {s(sROLE)}, 16')
    idx_setup(A, vIDX, T)
    mem_poll_setup(A, vG0, vPR, T + 4, DEC)
    A.I(f'''
    v_lshlrev_b32 {v(vAF)}, 7, {v(T+1)}
    v_lshl_add_u32 {v(vAF)}, {v(T+2)}, 4, {v(vAF)}
    s_mul_i32 s40, {s(sW)}, 28672
    s_add_u32 s40, s40, {L_WL}
    v_lshl_add_u32 {v(vWL)}, v0, 4, s40
    s_lshl_b32 s40, {s(sW)}, 13
    v_lshl_add_u32 {v(vV0)}, v0, 4, s40
    v_add_u32 {v(vV1)}, 4096, {v(vV0)}
    s_mul_i32 s40, {s(sW)}, 2560
    v_and_b32 {v(T+5)}, 1, {v(T+1)}
    v_lshl_add_u32 {v(vPX)}, v0, 4, s40
    v_lshl_add_u32 {v(vPM)}, v0, 2, s40
    v_lshlrev_b32 {v(vFL)}, 2, {v(T)}
    s_and_b32 s41, {s(sW)}, 1
    s_lshl_b32 s41, s41, 13
    v_lshl_add_u32 {v(vVP)}, v0, 4, s41
    s_add_u32 {s(sXB)}, s41, {L_VB}
    v_lshl_add_u32 {v(vVB)}, v0, 4, {s(sXB)}
    s_mul_i32 s40, {s(sW)}, {RBW}
    s_add_u32 s40, s40, {L_RB}
    v_lshrrev_b32 {v(T+7)}, 5, v0
    v_lshl_add_u32 {v(T+7)}, {v(T+7)}, 4, {v(T)}
    v_mul_u32_u24 {v(T+7)}, 48, {v(T+7)}
    v_lshl_add_u32 {v(T+7)}, {v(T+5)}, 4, {v(T+7)}
    v_add_u32 {v(vRWR)}, s40, {v(T+7)}
    s_and_b32 s40, {s(sW)}, 1
    s_lshl_b32 s40, s40, 4
    s_lshr_b32 s41, {s(sW)}, 1
    s_lshl_b32 s41, s41, 2
    s_add_u32 s40, s40, s41
    v_bfe_u32 {v(T+7)}, v0, 2, 1
    v_lshlrev_b32 {v(T+7)}, 3, {v(T+7)}
    v_and_b32 {v(T+8)}, 3, v0
    v_add3_u32 {v(T+7)}, {v(T+7)}, {v(T+8)}, s40
    v_mul_u32_u24 {v(T+7)}, 48, {v(T+7)}
    v_lshrrev_b32 {v(T+8)}, 3, v0
    v_lshl_add_u32 {v(T+7)}, {v(T+8)}, 2, {v(T+7)}
    v_add_u32 {v(vRRD)}, {L_RB}, {v(T+7)}
    s_lshl_b32 s40, {s(sROLE)}, 9
    s_lshl_b32 s41, {s(sW)}, 7
    s_add_u32 s40, s40, s41
    v_lshl_add_u32 {v(vMS)}, v0, 1, s40
    v_mov_b32 {v(vSN)}, {SENT}
    ''')
    addp(A, sMEM, sWS, MEMS_OFF); addp(A, 40, sMEM, MEM_SLOT); addp(A, 42, sMEM, 2 * MEM_SLOT)
    A.I(f'''
    global_store_short {v(vMS)}, {v(vSN)}, s[40:41] sc1
    global_store_short {v(vMS)}, {v(vSN)}, s[42:43] sc1
    ''')
    xcc_publish(A, sTMP, T + 12)
    warm(A, 'L_va_step', 'L_vb_step', T + 12)
    A.I(f'''
    s_mul_i32 s40, {s(sW)}, {4*MF_HEAD}
    s_mul_i32 s41, {s(sROLE)}, {14*2048}
    s_add_u32 s40, s40, s41
    s_cmp_ge_u32 {s(sROLE)}, 8
    s_cselect_b32 {s(sTMP)}, 1, 0
    v_lshlrev_b32 {v(T+8)}, 4, v0
    ''')
    addp(A, sWT, sWS, MF_OFF + MF_MAT); addps(A, sWT, sWT, 40)
    addp(A, sVX, sWS, PF_OFF + 1024)
    A.I(f'''
    s_lshl_b32 s40, {s(sTMP)}, 9
    s_lshl_b32 s41, {s(sW)}, 7
    s_add_u32 s40, s40, s41
    v_lshl_add_u32 {v(T+12)}, {v(T+2)}, 2, s40
    ''')
    order = (3, 0, 1, 2)
    for n, hh in enumerate(order):
        if n: A.I(f's_waitcnt vmcnt(28)\n v_cmp_eq_u32 vcc, 0, {v(T+13)}\n s_cbranch_vccz L_va_w{hh}ok')
        A.I(f'L_va_w{hh}:\n global_load_dword {v(T+13)}, {v(T+12)}, {s(sVX,2)} offset:{32*hh} sc1')
        bud(A)
        A.I(f's_waitcnt vmcnt(0)\n v_cmp_eq_u32 vcc, 0, {v(T+13)}\n s_cbranch_vccnz L_va_w{hh}\nL_va_w{hh}ok:')
        if hh == 3: tl(A, 1, 4, T + 14)
        if hh == 1:
            for k in range(2 * NR, 28): A.I(f'ds_write_b128 {v(vWL)}, {v(60+4*k,4)} offset:{k*1024}')
            A.I('s_waitcnt lgkmcnt(0)')
            for k in range(8 * NR): A.I(f'v_mov_b32 {v(H3R+k)}, {v(60+k)}')
        if n < 3: A.I(f'global_load_dword {v(T+13)}, {v(T+12)}, {s(sVX,2)} offset:{32*order[n+1]} sc1')
        addp(A, 40, sWT, hh * MF_HEAD)
        for q in range(28):
            if hh == 3: dst = v(60 + 4 * q, 4)
            else:
                k = 112 * hh + 4 * q; dst = a_(k, 4) if k < 256 else v(WV + k - 256, 4)
            A.I(f'global_load_dwordx4 {dst}, {v(T+8)}, s[40:41] offset:{(q%4)*1024} sc1')
            if q % 4 == 3: addp(A, 40, 40, 4096)
    assist(A, 'va_as', sROLE, T + 12)
    xcc_check(A, 'va', T + 12)
    addp(A, sP, sWS, PS_OFF); addp(A, sFL, sWS, FL_OFF); addp(A, sMT, sWS, MEMT_OFF + (62 if tok.FIN else 63) * MEMT_SLOT)
    A.I(f's_mul_i32 s40, {s(sROLE)}, {VX_SC}'); addp(A, sVX, sWS, VX_OFF); addps(A, sVX, sVX, 40)
    A.I('s_waitcnt vmcnt(0) lgkmcnt(0)')
    tl(A, 1, 1, T)
    def flagwait(tag, loaded):
        if loaded:
            A.I(f'v_cmp_eq_u32 vcc, 0, {v(vDUM)}\n s_cbranch_vccz L_{tag}_ok')
        A.I(f'L_{tag}:\n global_load_dword {v(vDUM)}, {v(vFL)}, {s(sFL,2)} sc1')
        bud(A)
        A.I(f'''
        s_waitcnt vmcnt(0)
        v_cmp_eq_u32 vcc, 0, {v(vDUM)}
        s_cbranch_vccnz L_{tag}
L_{tag}_ok:
        ''')
    flagwait('va_f0', False)
    tl(A, 1, 3, T)
    addp(A, sFL, sFL, 256)
    if prof:
        A.I(f's_add_u32 s40, {s(sROLE)}, 16\n s_lshl_b32 s40, s40, 2\n s_add_u32 s40, s40, {s(sW)}\n s_lshl_b32 s40, s40, 12')
        addp(A, sDBG, sWS, END_OFF); addps(A, sDBG, sDBG, 40)
    def vxload(k, force=False):
        if 'novx' in OPT and not force: return
        hh, t = k >> 1, k & 1
        A.I(f'global_load_dwordx4 {v(VXF+16*t+4*hh,4)}, {v(vV0 if hh < 2 else vV1)}, {s(sVX,2)} offset:{(hh&1)*2048+t*1024} sc1')
    def vxearly(tag):
        if not DEC:
            for k in range(VE): vxload(k)
            return
        A.I(f's_cmp_lt_u32 {s(sW)}, 2\n s_cbranch_scc1 L_{tag}')
        addp(A, 40, sVX, 4096)
        for k in range(8):
            A.I(f's_add_u32 m0, {s(sXB)}, {(k>>2)*4096}')
            A.I(f'global_load_lds_dwordx4 {v(vVP)}, {s(sVX if k < 4 else 40,2)} offset:{(k&3)*1024} sc1')
        for k in range(8): vxload(k)
        A.label(f'L_{tag}')
    def hslot(j): return [HRING, HRING + 8, HRING + 16, 168][(j - NR) % HD]
    def rdh(j):
        if j < NR or j >= 14: return
        for k in range(2):
            A.I(f'ds_read_b128 {v(hslot(j)+4*k,4)}, {v(vWL)} offset:{(2*j+k)*1024}'); lg.add(('h', j))
    def rda(j):
        A.I(f'ds_read_b128 {v(ARING+4*(j%4),4)}, {v(vAF)} offset:{j*512}'); lg.add(('a', j))
    def prep_():
        for k in range(16): A.I(f'v_mov_b32 {v(WACC+k)}, 0')
        for j in range(NR, NR + HD - 1): rdh(j)
    vxearly('va_e0')
    if 'novx' in OPT:
        for k in range(8): vxload(k, True)
    prep_()
    P2, AC, BP, G, vA, vF2, vW, vRd, vO, vBa, vGa = 176, 216, 232, 236, 116, 117, 118, 119, 120, 121, 122
    def fin_setup():
        U = 124
        A.I(f'''
        v_min_u32 {v(U)}, 38, v0
        v_cmp_lt_u32 vcc, 22, {v(U)}
        v_cndmask_b32 {v(U+1)}, 0, 9, vcc
        v_add_lshl_u32 {v(U)}, {v(U)}, {v(U+1)}, 2
        v_min_u32 {v(vF2)}, {4*38}, {v(U)}
        s_mul_i32 s40, {s(sW)}, 10240
        v_lshl_add_u32 {v(vA)}, v0, 4, s40
        v_and_b32 {v(U)}, 15, v0
        v_lshrrev_b32 {v(U+1)}, 4, v0
        s_mul_i32 s40, {s(sW)}, 4608
        s_add_u32 s40, s40, {L_WL}
        v_mul_u32_u24 {v(U+2)}, 144, {v(U)}
        v_lshl_add_u32 {v(U+2)}, {v(U+1)}, 4, {v(U+2)}
        v_add_u32 {v(vW)}, s40, {v(U+2)}
        v_lshrrev_b32 {v(U)}, 3, v0
        v_lshl_add_u32 {v(U)}, {s(sW)}, 3, {v(U)}
        v_and_b32 {v(U+1)}, 7, v0
        v_mul_u32_u24 {v(U+2)}, 144, {v(U)}
        v_lshl_add_u32 {v(U+2)}, {v(U+1)}, 4, {v(U+2)}
        v_add_u32 {v(vRd)}, {L_WL}, {v(U+2)}
        s_lshl_b32 s40, {s(sROLE)}, 6
        v_mul_u32_u24 {v(U+2)}, 896, {v(U)}
        v_lshl_add_u32 {v(U+2)}, {v(U+1)}, 3, {v(U+2)}
        v_add_u32 {v(vO)}, s40, {v(U+2)}
        v_lshlrev_b32 {v(vBa)}, 1, {v(vO)}
        v_lshlrev_b32 {v(vGa)}, 2, {v(U)}
        ''')
    A.I(f's_cmp_eq_u32 {s(sEA)}, 0\n s_cbranch_scc1 L_vb_step')
    def loop(tg, sc):
        if ALV >= 0:
            A.raw('.p2align 6, , 63')
            for _ in range(ALV): A.I('s_nop 0')
        A.label(f'L_{tg}_step')
        stamp(A, 0, prof)
        (mem_poll_half if DEC else mem_poll)(A, tg, vG0, vPR, PF + 10)
        stamp(A, 1, prof)
        lg.clear()
        rda(0); rda(1); rda(2)
        addp(A, 40, sMEM, 3 * MEM_SLOT)
        A.I(f'global_store_short {v(vMS)}, {v(vSN)}, s[40:41] {sc}')
        for j in range(14):
            lg.wait(('a', j))
            for hh in range(4):
                if hh == 3: lg.wait(('h', j))
                w = wreg(hh, j) if hh < 3 else v(H3R + 8 * j, 8) if j < NR else v(hslot(j), 8)
                A.I(f'v_smfmac_f32_16x16x64_bf16 {v(WACC+4*hh,4)}, {v(ARING+4*(j%4),4)}, {w}, {v(vIDX)}' if 'now' not in OPT else 's_nop 3')
                if hh == 0 and j >= NR: rdh(j + HD - 1)
                if hh == 1 and j + 3 < 14: rda(j + 3)
                if hh == 2 and j < 8 - VE and not DEC: vxload(7 - j if 'vrev' in OPT else j + VE)
                if hh == 2 and j == 8 - VE: A.I(f'global_load_dword {v(vDUM)}, {v(vFL)}, {s(sFL,2)} sc1')
                if hh == 2:
                    if j == 0: A.I(f'v_mov_b32 {v(vCK)}, {v(ARING)}')
                    else: A.I(f'v_max_u32 {v(vCK)}, {v(vCK)}, {v(ARING+4*(j%4))}')
                if hh == 3 and j == 13: A.I(f'v_cmp_eq_u32 vcc, {s(sSENT)}, {v(vCK)}')
        A.I(f's_cbranch_vccnz L_{tg}_redo')
        if tok.FIN:
            A.I(f'''
            s_cmp_lt_u32 {s(sSTEP)}, {NSTEP-3}
            s_cbranch_scc1 L_{tg}_nr
            s_cmp_eq_u32 {s(sSTEP)}, {NSTEP}
            s_cbranch_scc1 L_va_fin
            v_cmp_eq_u32 vcc, 0, {v(PF+11)}
            s_cbranch_vccz L_{tg}_nr
            ''')
            addp(A, 40, sWS, FL_OFF + 63 * 256 + 64)
            A.I(f'L_{tg}_ex:\n global_load_dword {v(PF+11)}, {v(vFL)}, s[40:41] sc1')
            bud(A)
            A.I(f's_waitcnt vmcnt(0)\n v_cmp_eq_u32 vcc, 0, {v(PF+11)}\n s_cbranch_vccnz L_{tg}_ex\nL_{tg}_nr:')
        if DEC:
            A.I(f's_waitcnt vmcnt(0)\n s_barrier\n s_cmp_ge_u32 {s(sW)}, 2\n s_cbranch_scc1 L_{tg}_nv')
            for k in range(8): A.I(f'ds_read_b128 {v(VXF+16*(k&1)+4*(k>>1),4)}, {v(vVB)} offset:{k*1024}')
            A.label(f'L_{tg}_nv')
        for k in range(2):
            for p in range(2):
                A.I(f'v_cvt_pk_bf16_f32 {v(WX+2*k+p)}, {v(WACC+8*p+2*k)}, {v(WACC+8*p+2*k+1)}')
                A.I(f'v_cvt_pk_bf16_f32 {v(WY+2*k+p)}, {v(WACC+8*p+4+2*k)}, {v(WACC+8*p+4+2*k+1)}')
        for k in range(4): A.I(f'v_permlane32_swap_b32 {v(WX+k)}, {v(WY+k)}')
        if DEC: A.I('s_waitcnt lgkmcnt(0)')
        stamp(A, 2, prof)
        if prof: A.I('s_waitcnt vmcnt(0)'); stamp(A, 6, prof)
        F = PF
        if 'nospec' in OPT:
            for k in range(8): A.I(f'v_mov_b32 {v(OX+k)}, 0')
        if PS_: A.I(f's_sleep {PS_}')
        A.I(f'''
L_{tg}_pp:
        global_load_dwordx4 {v(F,4)}, {v(vPX)}, {s(sP,2)} sc1
        global_load_dwordx4 {v(F+4,4)}, {v(vPX)}, {s(sP,2)} offset:1024 sc1
        global_load_dword {v(F+8)}, {v(vPM)}, {s(sP,2)} offset:2048 sc1
        global_load_dword {v(F+9)}, {v(vPM)}, {s(sP,2)} offset:2304 sc1
        ''')
        bud(A)
        if 'nospec' in OPT:
            A.I(f'''
            s_waitcnt vmcnt(0)
            v_max3_u32 {v(vCK)}, {v(F)}, {v(F+4)}, {v(F+8)}
            v_max_u32 {v(vCK)}, {v(vCK)}, {v(F+9)}
            v_cmp_eq_u32 vcc, {s(sSENT)}, {v(vCK)}
            s_cbranch_vccnz L_{tg}_pp
            v_smfmac_f32_16x16x64_bf16 {v(OX,4)}, {v(F,4)}, {v(VXF,8)}, {v(vIDX)}
            v_smfmac_f32_16x16x64_bf16 {v(OY,4)}, {v(F,4)}, {v(VXF+16,8)}, {v(vIDX)}
            v_smfmac_f32_16x16x64_bf16 {v(OX,4)}, {v(F+4,4)}, {v(VXF+8,8)}, {v(vIDX)}
            v_smfmac_f32_16x16x64_bf16 {v(OY,4)}, {v(F+4,4)}, {v(VXF+24,8)}, {v(vIDX)}
            v_smfmac_f32_16x16x32_bf16 {v(OX,4)}, {v(F+8,2)}, {v(WX,4)}, {v(vIDX)}
            v_smfmac_f32_16x16x32_bf16 {v(OY,4)}, {v(F+8,2)}, {v(WY,4)}, {v(vIDX)}
            ''')
        elif 'spec2' in OPT:
            for k in range(8): A.I(f'v_mov_b32 {v(OX+k)}, 0')
            A.I(f'''
            s_waitcnt vmcnt(0)
            v_max3_u32 {v(vCK)}, {v(F)}, {v(F+4)}, {v(F+8)}
            v_max_u32 {v(vCK)}, {v(vCK)}, {v(F+9)}
            v_cmp_eq_u32 vcc, {s(sSENT)}, {v(vCK)}
            v_smfmac_f32_16x16x64_bf16 {v(OX,4)}, {v(F,4)}, {v(VXF,8)}, {v(vIDX)}
            v_smfmac_f32_16x16x64_bf16 {v(OY,4)}, {v(F,4)}, {v(VXF+16,8)}, {v(vIDX)}
            s_cbranch_vccnz L_{tg}_pp
            v_smfmac_f32_16x16x64_bf16 {v(OX,4)}, {v(F+4,4)}, {v(VXF+8,8)}, {v(vIDX)}
            v_smfmac_f32_16x16x64_bf16 {v(OY,4)}, {v(F+4,4)}, {v(VXF+24,8)}, {v(vIDX)}
            v_smfmac_f32_16x16x32_bf16 {v(OX,4)}, {v(F+8,2)}, {v(WX,4)}, {v(vIDX)}
            v_smfmac_f32_16x16x32_bf16 {v(OY,4)}, {v(F+8,2)}, {v(WY,4)}, {v(vIDX)}
            ''')
        else:
            for k in range(8): A.I(f'v_mov_b32 {v(OX+k)}, 0')
            A.I(f'''
            s_waitcnt vmcnt(3)
            v_smfmac_f32_16x16x64_bf16 {v(OX,4)}, {v(F,4)}, {v(VXF,8)}, {v(vIDX)}
            v_smfmac_f32_16x16x64_bf16 {v(OY,4)}, {v(F,4)}, {v(VXF+16,8)}, {v(vIDX)}
            s_waitcnt vmcnt(0)
            v_max3_u32 {v(vCK)}, {v(F)}, {v(F+4)}, {v(F+8)}
            v_smfmac_f32_16x16x64_bf16 {v(OX,4)}, {v(F+4,4)}, {v(VXF+8,8)}, {v(vIDX)}
            v_max_u32 {v(vCK)}, {v(vCK)}, {v(F+9)}
            v_smfmac_f32_16x16x64_bf16 {v(OY,4)}, {v(F+4,4)}, {v(VXF+24,8)}, {v(vIDX)}
            v_cmp_eq_u32 vcc, {s(sSENT)}, {v(vCK)}
            v_smfmac_f32_16x16x32_bf16 {v(OX,4)}, {v(F+8,2)}, {v(WX,4)}, {v(vIDX)}
            v_smfmac_f32_16x16x32_bf16 {v(OY,4)}, {v(F+8,2)}, {v(WY,4)}, {v(vIDX)}
            s_cbranch_vccnz L_{tg}_pp
            ''')
        stamp(A, 3, prof)
        stamp(A, 8, prof > 1)
        A.flush()
        for r in range(4): A.I(f'v_permlane32_swap_b32 {v(OX+r)}, {v(OY+r)}')
        A.I(f'''
        v_pk_add_f32 {v(OX,2)}, {v(OX,2)}, {v(OY,2)}
        v_pk_add_f32 {v(OX+2,2)}, {v(OX+2,2)}, {v(OY+2,2)}
        ds_write_b128 {v(vRWR)}, {v(OX,4)}
        ''')
        stamp(A, 9, prof > 1)
        for k in range(FC): A.I(f'v_mov_b32 {v(WACC+k)}, 0')
        A.I('s_waitcnt lgkmcnt(0)')
        stamp(A, 10, prof > 1)
        A.I('s_barrier')
        stamp(A, 11, prof > 1)
        Z = ARING + 4
        for k in range(4): A.I(f'ds_read_b32 {v(Z+k)}, {v(vRRD)} offset:{k*RBW}')
        for k in range(FC, FC + FD): A.I(f'v_mov_b32 {v(WACC+k)}, 0')
        addp(A, sMEM, sMEM, MEM_SLOT); addp(A, sP, sP, PS_SLOT)
        A.I('s_waitcnt lgkmcnt(0)')
        stamp(A, 12, prof > 1)
        A.I(f'''
        v_pk_add_f32 {v(Z,2)}, {v(Z,2)}, {v(Z+2,2)}
        v_add_f32 {v(Z)}, {v(Z)}, {v(Z+1)}
        v_cvt_pk_bf16_f32 {v(vZ)}, {v(Z)}, {v(Z)}
        ''')
        A.I(f'global_store_short {v(vMS)}, {v(vZ)}, {s(sMEM,2)} {sc}')
        stamp(A, 4, prof)
        A.I(f's_add_u32 {s(sSTEP)}, {s(sSTEP)}, 1')
        if not tok.FIN: A.I(f's_cmp_ge_u32 {s(sSTEP)}, {NSTEP}\n s_cbranch_scc1 L_va_end')
        flagwait(tg + '_f1', True)
        addp(A, sVX, sVX, 14 * VX_SC); addp(A, sFL, sFL, 256)
        vxearly(tg + '_e1')
        if tok.FIN:
            A.I(f's_cmp_lt_u32 {s(sSTEP)}, {NSTEP-3}\n s_cbranch_scc1 L_{tg}_nd\n s_cmp_eq_u32 {s(sSTEP)}, {NSTEP}\n s_cbranch_scc1 L_{tg}_fs')
            addp(A, 40, sWS, FL_OFF + 63 * 256 + 64)
            A.I(f'global_load_dword {v(PF+11)}, {v(vFL)}, s[40:41] sc1\n s_cmp_lg_u32 {s(sSTEP)}, {NSTEP-1}\n s_cbranch_scc1 L_{tg}_nd')
            if DIR: A.I(f'global_store_short {v(vMS)}, {v(vZ)}, {s(sMT,2)} sc1')
            A.I(f's_branch L_{tg}_nd\nL_{tg}_fs:')
            tl(A, 1, 2, T)
            fin_setup()
            A.label(f'L_{tg}_nd')
        lg.clear(); prep_()
        stamp(A, 5, prof)
        stamp_flush(A, prof)
        A.I(f's_branch L_{tg}_step')
        A.label(f'L_{tg}_redo')
        if prof: A.I(f's_add_u32 {s(sreg(15))}, {s(sreg(15))}, 1')
        A.I('s_waitcnt vmcnt(0) lgkmcnt(0)\n s_nop 15\n s_barrier')
        lg.clear(); prep_()
        A.I(f's_branch L_{tg}_mp')
    loop('va', ''); loop('vb', 'sc1')
    A.label('L_va_end')
    A.I(f'global_store_short {v(vMS)}, {v(vZ)}, {s(sMT,2)} sc1')
    tl(A, 1, 2, T)
    stamp_flush(A, prof)
    A.I('s_endpgm')
    if not tok.FIN: return
    A.label('L_va_fin')
    A.I('s_barrier\n s_nop 7')
    for hh in range(4):
        for k in range(2): A.I(f'v_cvt_pk_bf16_f32 {v(WX+2*hh+k)}, {v(WACC+4*hh+2*k)}, {v(WACC+4*hh+2*k+1)}')
    for k in range(4): A.I(f'v_permlane32_swap_b32 {v(WX+k)}, {v(WY+k)}')
    for k in (0, 1, 4, 5): A.I(f'v_permlane16_swap_b32 {v(WX+k)}, {v(WX+k+2)}')
    addp(A, sFL, sWS, FL_OFF + 63 * 256 + 64); addp(A, sP, sWS, PX_OFF + 63 * PX_SEG); addp(A, 42, sP, 4096); addp(A, 46, sP, 8192)
    A.I(f'v_mov_b32 {v(vFL)}, {v(vF2)}')
    flagwait('va_f2', False)
    addp(A, 40, sWS, BP_OFF); A.I(f'global_load_dwordx4 {v(BP,4)}, {v(vBa)}, s[40:41] sc1')
    addp(A, 40, sWS, G_OFF + 63 * 128); A.I(f'global_load_dword {v(G)}, {v(vGa)}, s[40:41] sc1')
    addp(A, sX0, sX0, 63 * 32 * 896)
    A.label('L_va_fp')
    for i in range(10): A.I(f'global_load_dwordx4 {v(P2+4*i,4)}, {v(vA)}, {s([sP, 42, 46][i>>2],2)} offset:{(i%4)*1024} sc1')
    bud(A)
    A.I('s_waitcnt vmcnt(0)')
    A.I(f'v_max_u32 {v(vCK)}, {v(P2)}, {v(P2+4)}')
    for i in range(2, 10, 2): A.I(f'v_max3_u32 {v(vCK)}, {v(vCK)}, {v(P2+4*i)}, {v(P2+4*i+4)}')
    A.I(f'v_cmp_eq_u32 vcc, {s(sSENT)}, {v(vCK)}')
    n = 0
    for k in range(5):
        for tt in range(2):
            for ct in range(2):
                d = v(AC + 8*ct + 4*tt, 4)
                a = v(VXF + 16*ct + 4*k, 4) if k < 4 else v(WY if ct else WX, 4)
                A.I(f'v_mfma_f32_16x16x32_bf16 {d}, {a}, {v(P2+8*k+4*tt,4)}, {d if k else 0}')
                n += 1
                if n == 2: A.I('s_cbranch_vccnz L_va_fp')
    for tt in range(2):
        for ct in range(2): A.I(f'ds_write_b128 {v(vW)}, {v(AC+8*ct+4*tt,4)} offset:{tt*16*144 + ct*64}')
    A.I('s_waitcnt lgkmcnt(0)\n s_barrier')
    for k in range(4): A.I(f'ds_read_b128 {v(P2+4*k,4)}, {v(vRd)} offset:{k*4608}')
    A.I('s_waitcnt lgkmcnt(0)')
    for a, b in ((0, 4), (8, 12), (0, 8)):
        for k in (0, 2): A.I(f'v_pk_add_f32 {v(P2+a+k,2)}, {v(P2+a+k,2)}, {v(P2+b+k,2)}')
    for k in range(4): A.I(f'v_fmac_f32 {v(BP+k)}, {v(G)}, {v(P2+k)}')
    A.I(f'''
    v_cvt_pk_bf16_f32 {v(BP)}, {v(BP)}, {v(BP+1)}
    v_cvt_pk_bf16_f32 {v(BP+1)}, {v(BP+2)}, {v(BP+3)}
    global_store_dwordx2 {v(vO)}, {v(BP,2)}, {s(sX0,2)} {tok.OST}
    ''')
    if TL['on']: A.I('s_waitcnt vmcnt(0)')
    tl(A, 1, 7, T)
    A.I('s_endpgm')

def helper(A):
    vG0, vX, vP, vM, D = 1, 2, 3, 4, 8
    A.label('L_helper')
    A.I(f's_load_dwordx2 {s(sX0,2)}, s[0:1], {KA_X}\n s_waitcnt lgkmcnt(0)')
    chain_common(A)
    xcc_publish(A, sROLE, 20)
    A.I(f'''
    s_mul_i32 {s(sLB)}, {s(sW)}, 1792
    v_lshlrev_b32 {v(vG0)}, 4, v0
    v_add_u32 {v(vG0)}, {s(sLB)}, {v(vG0)}
    s_mov_b32 {s(sM48)}, -1
    s_mov_b32 {s(sM48+1)}, 0xffff
    s_mul_i32 s40, {s(sW)}, 7168
    v_min_u32 {v(vX)}, 55, v0
    v_lshl_add_u32 {v(vX)}, {v(vX)}, 7, s40
    s_mul_i32 s40, {s(sW)}, 2560
    v_min_u32 {v(vP)}, 19, v0
    v_lshl_add_u32 {v(vP)}, {v(vP)}, 7, s40
    v_min_u32 {v(vM)}, 13, v0
    v_lshl_add_u32 {v(vM)}, {v(vM)}, 7, {s(sLB)}
    v_add_u32 {v(vM)}, {4*MEM_SLOT}, {v(vM)}
    v_add_u32 {v(vP)}, {PS_SLOT * (2 if 'mtouch' in OPT else 0)}, {v(vP)}
    v_mov_b32 {v(D+4)}, 0
    v_mov_b32 {v(D+5)}, 0
    v_mov_b32 {v(D+6)}, 0
    v_mov_b32 {v(D+7)}, 0
    ''')
    xcc_check(A, 'he', 20)
    for k in range(2):
        addp(A, 40, sWS, PS_OFF + (k - 2) * PS_SLOT); A.I(f'global_load_dword v21, {v(vP)}, s[40:41] sc1')
    for k in range(4):
        addp(A, 40, sWS, MEMS_OFF + (k - 4) * MEM_SLOT); A.I(f'global_load_dword v21, {v(vM)}, s[40:41] sc1')
    wait_tiles(A, 'he', 20, 1, 'all', None, 8)
    A.I(f's_mov_b32 {s(sTMP)}, 14'); assist(A, 'he_as', sTMP, 20)
    addp(A, sMEM, sWS, MEMS_OFF); addp(A, sMT, sWS, MEMT_OFF); addp(A, sP, sWS, PS_OFF)
    addp(A, sX0, sX0, XI_SEG)
    A.I(f'''
    global_load_dword v20, {v(vX)}, {s(sX0,2)}
    global_load_dword v21, {v(vP)}, {s(sP,2)} sc1
    ''')
    addp(A, sX0, sX0, XI_SEG); addp(A, sP, sP, PS_SLOT)
    if 'nox2' not in OPT:
        A.I(f'global_load_dword v20, {v(vX)}, {s(sX0,2)}'); addp(A, sX0, sX0, XI_SEG)
    A.I(f'''
L_he_step:
    s_sleep {HSLEEP}
    global_load_dwordx4 {v(D,4)}, {v(vG0)}, {s(sMEM,2)} sc1
    s_mov_b64 exec, {s(sM48,2)}
    global_load_dwordx4 {v(D+4,4)}, {v(vG0)}, {s(sMEM,2)} offset:1024 sc1
    s_mov_b64 exec, -1
    ''')
    bud(A)
    A.I(f'''
    s_waitcnt vmcnt(0)
    v_max3_u32 v16, {v(D)}, {v(D+1)}, {v(D+2)}
    v_max3_u32 v16, v16, {v(D+3)}, {v(D+4)}
    v_max3_u32 v16, v16, {v(D+5)}, {v(D+6)}
    v_max_u32 v16, v16, {v(D+7)}
    v_cmp_eq_u32 vcc, {s(sSENT)}, v16
    s_cbranch_vccnz L_he_step
    s_add_u32 {s(sSTEP)}, {s(sSTEP)}, 1
    global_store_dwordx4 {v(vG0)}, {v(D,4)}, {s(sMT,2)} sc1
    s_mov_b64 exec, {s(sM48,2)}
    global_store_dwordx4 {v(vG0)}, {v(D+4,4)}, {s(sMT,2)} offset:1024 sc1
    s_mov_b64 exec, -1
    global_load_dword v21, {v(vP)}, {s(sP,2)} sc1
    {f'global_load_dword v22, {v(vM)}, {s(sMEM,2)} sc1' if 'mtouch' in OPT else ''}
    s_cmp_ge_u32 {s(sSTEP)}, {NSTEP - ('nox2' not in OPT)}
    s_cbranch_scc1 L_he_nox
    global_load_dword v20, {v(vX)}, {s(sX0,2)}
L_he_nox:
    ''')
    addp(A, sX0, sX0, XI_SEG); addp(A, sP, sP, PS_SLOT); addp(A, sMEM, sMEM, MEM_SLOT); addp(A, sMT, sMT, MEMT_SLOT)
    A.I(f'''
    s_cmp_le_u32 {s(sSTEP)}, {NSTEP - 1 - (tok.FIN and DIR)}
    s_cbranch_scc1 L_he_step
    ''')
    if tok.FIN:
        addp(A, sFL, sWS, FL_OFF + 63 * 256 + 64)
        A.I(f'''
        v_min_u32 v20, 22, v0
        v_lshlrev_b32 v20, 2, v20
L_he_f:
        s_sleep 2
        global_load_dword v21, v20, {s(sFL,2)} sc1
        ''')
        bud(A)
        A.I(f'''
        s_waitcnt vmcnt(0)
        v_cmp_eq_u32 vcc, 0, v21
        s_cbranch_vccnz L_he_f
        s_mul_i32 s40, {s(sW)}, 10240
        v_lshl_add_u32 v20, v0, 7, s40
        v_min_u32 v22, 15, v0
        v_lshl_add_u32 v22, v22, 7, s40
        s_mul_i32 s40, {s(sW)}, 14336
        v_min_u32 v23, 55, v0
        v_lshl_add_u32 v23, v23, 7, s40
        ''')
        addp(A, 40, sWS, PX_OFF + 63 * PX_SEG); addp(A, 42, 40, 8192)
        A.I('global_load_dword v21, v20, s[40:41] sc1\n global_load_dword v21, v22, s[42:43] sc1')
        addp(A, 40, sWS, BP_OFF); addp(A, 42, 40, 7168)
        A.I('global_load_dword v21, v23, s[40:41] sc1\n global_load_dword v21, v23, s[42:43] sc1')
        addp(A, 40, sWS, G_OFF + 63 * 128)
        A.I('v_mov_b32 v20, 0\n global_load_dword v21, v20, s[40:41] sc1\n s_waitcnt vmcnt(0)')
    A.I('s_endpgm')

def fetcher(A):
    vV, vF, vM = 1, 2, 3
    NL = PFL
    per = 64 // NL
    A.label('L_fetch')
    chain_common(A)
    xcc_publish(A, sROLE, 20)
    A.I(f'''
    v_lshrrev_b32 v4, {NL.bit_length()-1}, v0
    v_and_b32 v5, {NL-1}, v0
    s_lshl_b32 s40, {s(sW)}, 13
    v_lshl_add_u32 v5, v5, 7, s40
    v_and_b32 {v(vF)}, 15, v0
    v_lshlrev_b32 {v(vF)}, 2, {v(vF)}
    v_mov_b32 {v(vM)}, 4000
    ''')
    n = (14 + per - 1) // per
    for i in range(n):
        A.I(f'v_add_u32 v6, {per*i}, v4\n v_min_u32 v6, 13, v6\n v_lshl_add_u32 {v(8+i)}, v6, 15, v5')
    xcc_check(A, 'fe', 30)
    addp(A, sMEM, sWS, MEMS_OFF); addp(A, sVX, sWS, VX_OFF + PFA * 14 * VX_SC); addp(A, sFL, sWS, FL_OFF + PFA * 256)
    A.I(f'''
L_fe_step:
    global_load_dword v24, {v(vM)}, {s(sMEM,2)} sc1
    global_load_dword v25, {v(vF)}, {s(sFL,2)} sc1
    ''')
    bud(A)
    A.I(f'''
    s_waitcnt vmcnt(0)
    v_cmp_eq_u32 vcc, {s(sSENT)}, v24
    v_cmp_eq_u32 s[40:41], 0, v25
    s_or_b64 vcc, vcc, s[40:41]
    s_cbranch_vccz L_fe_go
    s_sleep 2
    s_branch L_fe_step
L_fe_go:
    ''')
    for i in range(n): A.I(f'global_load_dword {v(26)}, {v(8+i)}, {s(sVX,2)} sc1')
    addp(A, sMEM, sMEM, MEM_SLOT); addp(A, sVX, sVX, 14 * VX_SC); addp(A, sFL, sFL, 256)
    A.I(f'''
    s_add_u32 {s(sSTEP)}, {s(sSTEP)}, 1
    s_cmp_lt_u32 {s(sSTEP)}, {NSTEP - PFA}
    s_cbranch_scc1 L_fe_step
    s_endpgm
    ''')

def spare(A):
    A.label('L_spare')
    A.I(f's_mov_b32 {s(sTMP)}, 15'); assist(A, 'sp_as', sTMP, 20)
    A.I('s_endpgm')
```

```python
from common import *
from prep import wait_tiles
BUDGET = 1 << 20
sH, sW, sSEG, sBUD, sSENT = 3, 4, 5, 6, 7
sWS = 8
sA, sB_, sC_, sD, sE, sF = 10, 12, 14, 16, 18, 20
sREP, sLB, sPAR = 22, 23, 24
sM0, sM1 = 26, 28
T0 = 40

def wave_setup(A):
    A.I(f'''
    v_lshlrev_b32 v3, 4, v0
    s_mov_b32 {s(sBUD)}, 0
    s_mov_b32 {s(sSENT)}, {SENT}
    ''')

def budget(A):
    A.I(f's_add_u32 {s(sBUD)}, {s(sBUD)}, 1\n s_cmp_gt_u32 {s(sBUD)}, {BUDGET}\n s_cbranch_scc1 L_bail')

GATE = 0
OST = 'nt'
TS = 2
LIGHT = 1
LINE = 4000
GT, GF, GO = 1, 4, 8
def gate(A, tag, slot):
    wait_tiles(A, tag + 'a', 8, 1, 'all', None, 8)
    if not GATE: return
    addp(A, 40, sWS, MEMT_OFF + slot * MEMT_SLOT)
    A.I(f'''
    v_mov_b32 v8, 0
L_{tag}_g:
    s_sleep 16
    global_load_dword v9, v8, s[40:41] sc1
    ''')
    budget(A)
    A.I(f's_waitcnt vmcnt(0)\n v_cmp_eq_u32 vcc, {s(sSENT)}, v9\n s_cbranch_vccnz L_{tag}_g')

def p0p3(A, d0, d3):
    A.I(f'''
    s_and_b32 s46, {s(sW)}, 1
    s_lshr_b32 {s(d3)}, {s(sW)}, 1
    s_mul_i32 {s(d3)}, {s(d3)}, 7
    s_lshl_b32 {s(d0)}, s46, 2
    s_add_u32 {s(d0)}, {s(d0)}, {s(d3)}
    s_add_u32 {s(d3)}, {s(d3)}, 3
    s_sub_u32 {s(sPAR)}, 0, s46
    s_mov_b32 {s(sPAR+1)}, {s(sPAR)}
    ''')

WV, WS_ = 176, 120
def wtile(t, j):
    if t == 6: return v(WS_ + 4 * j, 4)
    k = (t * 14 + j) * 4
    return a_(k, 4) if k < 256 else v(WV + k - 256, 4)
def wmov(t, j, r):
    k = (t * 14 + j) * 4 + r
    return ('v_accvgpr_write_b32', a_(k)) if k < 256 else ('v_mov_b32', v(WV + k - 256))

def load_head(A, mat):
    p0p3(A, 40, 41)
    A.I(f'''
    s_mul_i32 s42, {s(sH)}, {MF_HEAD}
    s_mul_i32 s43, s40, {14*2048}
    s_add_u32 s43, s43, s42
    s_mul_i32 s44, s41, {14*2048}
    s_add_u32 s44, s44, s42
    ''')
    addp(A, sA, sWS, MF_OFF + mat * MF_MAT); addps(A, sB_, sA, 44); addps(A, sA, sA, 43)
    vm = Cnt(A, 'vmcnt', 63)
    ST, N = 32, 11
    blocks = [(L, j) for L in range(4) for j in range(14)]
    def issue(i):
        L, j = blocks[i]; r = ST + 8 * (i % N); base = sA if L < 3 else sB_
        o = (j & 1) * 2048
        A.I(f'global_load_dwordx4 {v(r,4)}, v3, {s(base,2)} offset:{o} sc1'); vm.add(i)
        A.I(f'global_load_dwordx4 {v(r+4,4)}, v3, {s(base,2)} offset:{o+1024} sc1'); vm.add(i)
        if j & 1: addp(A, base, base, 4096)
    for i in range(N): issue(i)
    for i, (L, j) in enumerate(blocks):
        vm.wait(i); r = ST + 8 * (i % N)
        if L < 3:
            for k in range(8):
                op, d = wmov(2 * L + (k & 1), j, k >> 1); A.I(f'{op} {d}, {v(r+k)}')
        else:
            for k in range(4): A.I(f'v_cndmask_b32 {v(WS_+4*j+k)}, {v(r+2*k)}, {v(r+2*k+1)}, {s(sPAR,2)}')
        if i + N < len(blocks): issue(i + N)

sXO = 80
def xdma(A, ptr, vXS):
    for k in range(7):
        addps(A, 40, ptr, sXO + k)
        A.I(f's_add_u32 m0, {s(sLB)}, {k*1024}')
        A.I(f'global_load_lds_dwordx4 {v(vXS)}, s[40:41]')
    addp(A, ptr, ptr, 4 * XI_SEG)

def xsetup(A, ptr, vXS, vXR, t):
    A.I(f'''
    s_mul_i32 {s(sLB)}, {s(sW)}, 7168
    s_mul_i32 s40, {s(sREP)}, {XI_SEG}
    s_mov_b32 {s(sSEG)}, {s(sREP)}
    v_lshrrev_b32 {v(t)}, 2, v0
    v_mul_u32_u24 {v(t)}, 896, {v(t)}
    v_lshrrev_b32 {v(t+1)}, 5, v0
    v_lshlrev_b32 {v(t+1)}, 1, {v(t+1)}
    v_and_b32 {v(vXS)}, 3, v0
    v_xor_b32 {v(t+1)}, {v(t+1)}, {v(vXS)}
    v_lshl_add_u32 {v(vXS)}, {v(t+1)}, 4, {v(t)}
    v_lshrrev_b32 {v(t)}, 3, v1
    v_lshlrev_b32 {v(t)}, 1, {v(t)}
    v_xor_b32 {v(t)}, {v(t)}, v2
    v_lshl_add_u32 {v(t)}, v1, 2, {v(t)}
    v_lshlrev_b32 {v(vXR)}, 4, {v(t)}
    ''')
    addps(A, ptr, ptr, 40)
    for k in range(7):
        A.I(f'''
        s_mul_i32 s40, {s(sW)}, 7
        s_add_u32 s40, s40, {k}
        s_and_b32 s41, s40, 1
        s_mul_i32 s41, s41, 14336
        s_lshr_b32 s40, s40, 1
        s_lshl_b32 s40, s40, 6
        s_add_u32 {s(sXO+k)}, s40, s41
        ''')

def gemm(A, ntile, wt, acc, ring, vX, offs, wfirst, extra=None):
    lg = Cnt(A, 'lgkmcnt', 15)
    def rd(j, tt):
        A.I(f'ds_read_b128 {v(ring + 8*(j%3) + 4*tt, 4)}, {v(vX[tt])} offset:{j*2048 + offs[tt]}'); lg.add((j, tt))
    for j in range(2): rd(j, 0); rd(j, 1)
    n = 0
    for j in range(14):
        for tt in range(2):
            lg.wait((j, tt))
            x = v(ring + 8*(j%3) + 4*tt, 4)
            for t in range(ntile):
                d = v(acc + 8*t + 4*tt, 4)
                a, b = (wt(t, j), x) if wfirst else (x, wt(t, j))
                A.I(f'v_mfma_f32_16x16x32_bf16 {d}, {a}, {b}, {d if j else 0}')
                if t == 0 and j + 2 < 14: rd(j + 2, tt)
                if extra: extra(n)
                n += 1

def flag_store(A, ptr, vOne, vZero):
    flag_store.n += 1
    A.I(f's_cmp_lg_u32 {s(sW)}, 0\n s_cbranch_scc1 L_fs{flag_store.n}\n global_store_dword {v(vZero)}, {v(vOne)}, {s(ptr,2)} sc1\nL_fs{flag_store.n}:')
flag_store.n = 0

def mem_fetch(A, tag, ptr, vG, D, lds, light):
    if light:
        A.I(f'''
        s_cmp_lg_u32 {s(sW)}, 0
        s_cbranch_scc1 L_{tag}_mh
        v_mov_b32 {v(D)}, {LINE}
L_{tag}_ml:
        global_load_dword {v(D+1)}, {v(D)}, {s(ptr,2)} sc1
        ''')
        budget(A)
        A.I(f'''
        s_waitcnt vmcnt(0)
        v_cmp_eq_u32 vcc, {s(sSENT)}, {v(D+1)}
        s_cbranch_vccz L_{tag}_mh
        s_sleep {TS}
        s_branch L_{tag}_ml
L_{tag}_mh:
        s_barrier
        ''')
    A.I(f'''
L_{tag}_mf:
    global_load_dwordx4 {v(D,4)}, {v(vG)}, {s(ptr,2)} sc1
    global_load_dwordx4 {v(D+4,4)}, {v(vG+1)}, {s(ptr,2)} sc1
    ''')
    budget(A)
    A.I(f'''
    s_waitcnt vmcnt(0)
    v_max3_u32 {v(D+8)}, {v(D)}, {v(D+1)}, {v(D+2)}
    v_max3_u32 {v(D+8)}, {v(D+8)}, {v(D+3)}, {v(D+4)}
    v_max3_u32 {v(D+8)}, {v(D+8)}, {v(D+5)}, {v(D+6)}
    v_max_u32 {v(D+8)}, {v(D+8)}, {v(D+7)}
    v_cmp_eq_u32 vcc, {s(sSENT)}, {v(D+8)}
    s_cbranch_vccnz L_{tag}_mf
    ds_write_b128 {v(vG)}, {v(D,4)} offset:{lds}
    ds_write_b128 {v(vG+1)}, {v(D+4,4)} offset:{lds}
    s_waitcnt lgkmcnt(0)
    s_barrier
    ''')

def mem_fetch_setup(A, vG):
    A.I(f'''
    s_mul_i32 s40, {s(sW)}, 1792
    v_add_u32 {v(vG)}, s40, v3
    v_min_u32 {v(vG+1)}, 47, v0
    v_lshlrev_b32 {v(vG+1)}, 4, {v(vG+1)}
    v_add3_u32 {v(vG+1)}, {v(vG+1)}, s40, s40
    v_subrev_u32 {v(vG+1)}, s40, {v(vG+1)}
    v_add_u32 {v(vG+1)}, 1024, {v(vG+1)}
    ''')

def tokv(A):
    ACC, RING, O = 64, 32, 8
    vX, vXc, vOne, vZero, vG, vMA, vWT, vXS = 4, 5, 6, 7, 56, 58, 59, 60
    L_MEM = 57344
    sX, sVO, sVS, sFL, sMT = sF, sB_, sC_, sD, sE
    A.label('L_tokv')
    wave_setup(A)
    A.I(f's_load_dwordx2 {s(sX,2)}, s[0:1], {KA_X}\n s_waitcnt lgkmcnt(0)')
    xsetup(A, sX, vX, vXc, 8); xdma(A, sX, vX)
    wait_tiles(A, 'tv', 8, 1, 'head', sH, 1)
    load_head(A, 1)
    A.I(f'v_mov_b32 {v(vXS)}, {v(vX)}')
    tl(A, 1, 1, 8)
    p0p3(A, 40, 41)
    A.I(f'''
    s_mul_i32 s42, {s(sREP)}, {14*VX_SC}
    s_lshl_b32 s43, {s(sH)}, 11
    s_add_u32 s42, s42, s43
    s_lshl_b32 s43, s40, 15
    s_add_u32 s43, s43, s42
    s_lshl_b32 s44, s41, 15
    s_add_u32 s44, s44, s42
    s_and_b32 s45, {s(sW)}, 1
    s_lshl_b32 s45, s45, 10
    s_add_u32 s44, s44, s45
    v_lshrrev_b32 v8, 3, v1
    v_lshlrev_b32 v8, 10, v8
    v_and_b32 v9, 7, v0
    v_lshl_add_u32 v8, v9, 6, v8
    v_lshl_add_u32 {v(vX)}, v2, 4, v8
    v_xor_b32 v9, 2, v2
    v_lshl_add_u32 {v(vXc)}, v9, 4, v8
    v_mov_b32 {v(vOne)}, 1
    v_mov_b32 {v(vZero)}, 0
    ''')
    addp(A, sVO, sWS, VX_OFF); addps(A, sVS, sVO, 44); addps(A, sVO, sVO, 43)
    A.I(f's_lshl_b32 s42, {s(sREP)}, 8\n s_lshl_b32 s43, {s(sH)}, 2\n s_add_u32 s42, s42, s43')
    addp(A, sFL, sWS, FL_OFF); addps(A, sFL, sFL, 42)
    A.label('L_tv_item')
    A.I(f'''
    s_waitcnt vmcnt(0)
    s_barrier
    s_cmp_lt_u32 {s(sSEG)}, 4
    s_cbranch_scc1 L_tv_nofl
    ''')
    flag_store(A, sFL, vOne, vZero); addp(A, sFL, sFL, 1024)
    A.label('L_tv_nofl')
    A.I(f'''
    s_cmp_ge_u32 {s(sSEG)}, 64
    s_cbranch_scc1 L_tv_w
    s_xor_b32 {s(sLB)}, {s(sLB)}, 0x8000
    s_cmp_ge_u32 {s(sSEG)}, 60
    s_cbranch_scc1 L_tv_nox
    ''')
    xdma(A, sX, vXS)
    A.label('L_tv_nox')
    gemm(A, 7, wtile, ACC, RING, [vX, vXc], [0, 512], False)
    A.I(f'v_xor_b32 {v(vXc)}, 0x8000, {v(vXc)}\n v_xor_b32 {v(vX)}, 0x8000, {v(vX)}')
    for t in range(7):
        o = O + 4 * (t % 4)
        for k in range(2):
            for tt in range(2):
                A.I(f'v_cvt_pk_bf16_f32 {v(o+2*k+tt)}, {v(ACC+8*t+4*tt+2*k)}, {v(ACC+8*t+4*tt+2*k+1)}')
        if t < 6:
            if t == 2: addp(A, 40, sVO, 32768)
            if t == 4: addp(A, 40, 40, 32768)
            A.I(f'global_store_dwordx4 v3, {v(o,4)}, {s(sVO if t < 2 else 40,2)} offset:{(t&1)*1024} sc1')
        else: A.I(f'global_store_dwordx4 v3, {v(o,4)}, {s(sVS,2)} sc1')
    addp(A, sVO, sVO, 4 * 14 * VX_SC); addp(A, sVS, sVS, 4 * 14 * VX_SC)
    A.I(f's_add_u32 {s(sSEG)}, {s(sSEG)}, 4\n s_branch L_tv_item')
    A.label('L_tv_w')
    tl(A, 1, 3, 8)
    wait_tiles(A, 'tw', 8, 1, 'all')
    mem_fetch_setup(A, vG)
    p0p3(A, 40, 41)
    A.I(f'''
    s_mov_b32 {s(sSEG)}, {s(sREP)}
    v_lshrrev_b32 v8, 1, v2
    v_lshlrev_b32 v8, 7, v8
    v_and_b32 v9, 7, v0
    v_lshl_add_u32 v8, v9, 4, v8
    v_and_b32 v9, 1, v2
    v_lshl_add_u32 v8, v9, 3, v8
    v_add_u32 {v(vMA)}, {L_MEM}, v8
    s_and_b32 s42, {s(sH)}, 3
    s_lshl_b32 s42, s42, 8
    v_lshl_add_u32 v8, v1, 4, s42
    v_lshl_add_u32 {v(vWT)}, v9, 3, v8
    s_mul_i32 s42, {s(sREP)}, {WT_SEG}
    s_lshr_b32 s43, {s(sH)}, 2
    s_mul_i32 s43, s43, {28*1024}
    s_add_u32 s42, s42, s43
    s_lshl_b32 s43, s40, 11
    s_add_u32 s43, s43, s42
    s_lshl_b32 s44, s41, 11
    s_add_u32 s44, s44, s42
    s_and_b32 s45, {s(sW)}, 1
    s_lshl_b32 s45, s45, 10
    s_add_u32 s44, s44, s45
    ''')
    addp(A, sVO, sWS, WT_OFF); addps(A, sVS, sVO, 44); addps(A, sVO, sVO, 43)
    A.I(f's_lshl_b32 s42, {s(sREP)}, 8\n s_lshl_b32 s43, {s(sH)}, 2\n s_add_u32 s42, s42, s43')
    addp(A, sFL, sWS, FL_OFF + 128); addps(A, sFL, sFL, 42)
    A.I(f's_mul_i32 s42, {s(sREP)}, {MEMT_SLOT}')
    addp(A, sMT, sWS, MEMT_OFF); addps(A, sMT, sMT, 42)
    A.label('L_tw_item')
    mem_fetch(A, 'tw', sMT, vG, 8, L_MEM, LIGHT)
    tl(A, 1, 5, 8)
    lg = Cnt(A, 'lgkmcnt', 15)
    for j in range(14):
        A.I(f'ds_read2_b64 {v(ACC+4*j,4)}, {v(vMA)} offset0:{(j%3)*64} offset1:{(j%3)*64+32}'); lg.add(j)
        if j % 3 == 2: A.I(f'v_add_u32 {v(vMA)}, 1536, {v(vMA)}')
    A.I(f'v_subrev_u32 {v(vMA)}, {4*1536}, {v(vMA)}')
    addp(A, 40, sVO, 4096)
    def wout(t):
        o = O + 2 * t
        for k in range(2): A.I(f'v_cvt_pk_bf16_f32 {v(o+k)}, {v(RING+4*(t&1)+2*k)}, {v(RING+4*(t&1)+2*k+1)}')
        A.I('s_mov_b32 exec_hi, 0')
        if t < 6: A.I(f'global_store_dwordx2 {v(vWT)}, {v(o,2)}, {s(sVO if t < 4 else 40,2)} offset:{(t%4)*1024} sc1')
        else: A.I(f'global_store_dwordx2 {v(vWT)}, {v(o,2)}, {s(sVS,2)} sc1')
        A.I('s_mov_b64 exec, -1')
    for t in range(7):
        d = v(RING + 4*(t&1), 4)
        for j in range(14):
            lg.wait(j)
            A.I(f'v_mfma_f32_16x16x32_bf16 {d}, {v(ACC+4*j,4)}, {wtile(t,j)}, {d if j else 0}')
            if t and j == 2: wout(t - 1)
    wout(6)
    A.I('s_mov_b64 exec, -1'); tl(A, 1, 6, 24); A.I('s_waitcnt vmcnt(0)\n s_barrier')
    flag_store(A, sFL, vOne, vZero)
    addp(A, sFL, sFL, 1024); addp(A, sMT, sMT, 4 * MEMT_SLOT); addp(A, sVO, sVO, 4 * WT_SEG); addp(A, sVS, sVS, 4 * WT_SEG)
    A.I(f's_add_u32 {s(sSEG)}, {s(sSEG)}, 4\n s_cmp_lt_u32 {s(sSEG)}, {63 if FIN else 64}\n s_cbranch_scc1 L_tw_item'); tl(A, 1, 2, 8); A.I('s_endpgm')

class TT:
    TB, MB, SA = 8, 36, 96
    vG, vMB0, vMB1, vSW, vSR0, vSR1, vPX = 56, 58, 59, 60, 61, 62, 63
    L_MEM, L_SB = 61440, 61440 + 8192
    SBW = 32 * 176
    sK, sM5, sMK0 = 48, 32, 34

def tt_setup(A):
    vG, vMB0, vMB1, vSW, vSR0, vSR1, vPX = TT.vG, TT.vMB0, TT.vMB1, TT.vSW, TT.vSR0, TT.vSR1, TT.vPX
    L_MEM, L_SB, SBW, sK, sM5, sMK0 = TT.L_MEM, TT.L_SB, TT.SBW, TT.sK, TT.sM5, TT.sMK0
    mem_fetch_setup(A, vG)
    p0p3(A, 40, 41)
    A.I(f'''
    s_and_b32 s45, {s(sW)}, 1
    s_lshl_b32 s45, s45, 3
    v_and_b32 v9, 7, v0
    v_lshlrev_b32 v8, 7, v2
    v_lshl_add_u32 v8, v9, 4, v8
    s_lshl_b32 s42, s40, 9
    s_add_u32 s42, s42, {L_MEM}
    v_add_u32 {v(vMB0)}, s42, v8
    s_lshl_b32 s42, s41, 9
    s_add_u32 s42, s42, s45
    s_add_u32 s42, s42, {L_MEM}
    v_add_u32 {v(vMB1)}, s42, v8
    s_mul_i32 s42, {s(sW)}, {SBW}
    s_add_u32 s42, s42, {L_SB}
    v_mul_u32_u24 v8, 176, v1
    v_lshl_add_u32 v8, v2, 4, v8
    v_add_u32 {v(vSW)}, s42, v8
    v_lshrrev_b32 v10, 3, v0
    v_lshl_add_u32 v10, {s(sW)}, 3, v10
    v_min_u32 v11, 4, v9
    v_subrev_u32 v11, 1, v11
    v_lshrrev_b32 v12, 1, v11
    v_and_b32 v13, 1, v11
    v_lshlrev_b32 v13, 2, v13
    v_lshl_add_u32 v13, v12, 4, v13
    v_lshlrev_b32 v14, 2, v13
    v_add_u32 v14, 32, v14
    v_add_u32 v15, 32, v14
    v_cmp_eq_u32 {s(sMK0,2)}, 0, v9
    v_cndmask_b32 v14, v14, 0, {s(sMK0,2)}
    v_cndmask_b32 v15, v15, 16, {s(sMK0,2)}
    v_mul_u32_u24 v8, 176, v10
    v_add_u32 v8, {L_SB}, v8
    v_add_u32 {v(vSR0)}, v8, v14
    v_add_u32 {v(vSR1)}, v8, v15
    v_cmp_gt_u32 {s(sM5,2)}, 5, v9
    ''')
    for i in range(8):
        A.I(f'''
        v_add_u32 v8, {8*(i>>2) + (i&3)}, v13
        v_cmp_le_u32 vcc, v8, v10
        s_or_b64 vcc, vcc, {s(sMK0,2)}
        s_and_b64 {s(sK+2*i,2)}, vcc, {s(sM5,2)}
        ''')
    A.I(f'''
    s_and_b32 s42, {s(sH)}, 3
    v_mov_b32 v8, s42
    v_cndmask_b32 v12, v11, v8, {s(sMK0,2)}
    v_cndmask_b32 v8, v8, 4, {s(sMK0,2)}
    v_lshrrev_b32 v14, 4, v10
    v_lshl_add_u32 v8, v8, 1, v14
    v_lshlrev_b32 v8, 10, v8
    v_and_b32 v14, 15, v10
    v_lshl_add_u32 v14, v12, 4, v14
    v_lshl_add_u32 v14, v14, 4, v8
    s_lshr_b32 s43, {s(sH)}, 2
    s_mul_i32 s43, s43, 10240
    v_add_u32 {v(vPX)}, s43, v14
    ''')

def tt_smm(A, a4, a2, tt, d):
    TB = TT.TB
    for L in range(3): A.I(f'v_mfma_f32_16x16x32_bf16 {v(d,4)}, {v(a4(L),4)}, {v(TB+8*L+4*tt,4)}, {v(d,4) if L else 0}')
    A.I(f'v_mfma_f32_16x16x16_bf16 {v(d,4)}, {v(a2,2)}, {v(TB+24+2*tt,2)}, {v(d,4)}')

def tt_finish(A, tag, sMT, light):
    MB, SA, vSW, vSR0, vSR1, SBW, sK, sMK0 = TT.MB, TT.SA, TT.vSW, TT.vSR0, TT.vSR1, TT.SBW, TT.sK, TT.sMK0
    mem_fetch(A, tag, sMT, TT.vG, 64, TT.L_MEM, light)
    tl(A, 1, 5, 64)
    for L in range(3): A.I(f'ds_read_b128 {v(MB+4*L,4)}, {v(TT.vMB0)} offset:{L*512}')
    A.I(f'ds_read_b64 {v(MB+12,2)}, {v(TT.vMB1)}\n s_waitcnt lgkmcnt(0)')
    tt_smm(A, lambda L: MB + 4*L, MB + 12, 0, SA + 12); tt_smm(A, lambda L: MB + 4*L, MB + 12, 1, SA + 16)
    A.I(f'''
    ds_write_b128 {v(vSW)}, {v(SA+12,4)}
    ds_write_b128 {v(vSW)}, {v(SA+16,4)} offset:{16*176}
    ds_write_b128 {v(vSW)}, {v(SA,4)} offset:32
    ds_write_b128 {v(vSW)}, {v(SA+4,4)} offset:{16*176+32}
    ds_write_b128 {v(vSW)}, {v(SA+8,4)} offset:{16*176+96}
    s_waitcnt lgkmcnt(0)
    s_barrier
    ''')
    Z, M = 64, 36
    for k in range(4):
        A.I(f'ds_read_b128 {v(Z+8*k,4)}, {v(vSR0)} offset:{k*SBW}\n ds_read_b128 {v(Z+8*k+4,4)}, {v(vSR1)} offset:{k*SBW}')
    A.I(f'v_mov_b32 {v(M+1)}, 0xff800000\n s_waitcnt lgkmcnt(0)')
    for a, b in ((0, 8), (16, 24), (0, 16)):
        for k in range(0, 8, 2): A.I(f'v_pk_add_f32 {v(Z+a+k,2)}, {v(Z+a+k,2)}, {v(Z+b+k,2)}')
    for i in range(8): A.I(f'v_cndmask_b32 {v(Z+i)}, {v(M+1)}, {v(Z+i)}, {s(sK+2*i,2)}')
    red = ['quad_perm:[1,0,3,2] row_mask:0xf bank_mask:0xf', 'quad_perm:[2,3,0,1] row_mask:0xf bank_mask:0xf', 'row_half_mirror row_mask:0xf bank_mask:0xf']
    A.I(f'''
    v_max3_f32 {v(M)}, {v(Z)}, {v(Z+1)}, {v(Z+2)}
    v_max3_f32 {v(M)}, {v(M)}, {v(Z+3)}, {v(Z+4)}
    v_max3_f32 {v(M)}, {v(M)}, {v(Z+5)}, {v(Z+6)}
    v_max_f32 {v(M)}, {v(M)}, {v(Z+7)}
    ''')
    for r in red: A.I(f'v_max_f32_dpp {v(M)}, {v(M)}, {v(M)} {r}')
    for i in range(8): A.I(f'v_sub_f32 {v(Z+i)}, {v(Z+i)}, {v(M)}')
    for i in range(8): A.I(f'v_exp_f32 {v(Z+i)}, {v(Z+i)}')
    A.I(f'''
    v_pk_add_f32 {v(M,2)}, {v(Z,2)}, {v(Z+2,2)}
    v_pk_add_f32 {v(M+2,2)}, {v(Z+4,2)}, {v(Z+6,2)}
    v_pk_add_f32 {v(M,2)}, {v(M,2)}, {v(M+2,2)}
    v_add_f32 {v(M)}, {v(M)}, {v(M+1)}
    ''')
    for r in red: A.I(f'v_add_f32_dpp {v(M)}, {v(M)}, {v(M)} {r}')
    A.I(f'v_rcp_f32 {v(M)}, {v(M)}')
    for i in range(0, 8, 2): A.I(f'v_pk_mul_f32 {v(Z+i,2)}, {v(Z+i,2)}, {v(M,2)} op_sel_hi:[1,0]')
    O = Z + 8
    A.I(f'''
    v_cvt_pk_bf16_f32 {v(O)}, {v(Z)}, {v(Z+1)}
    v_cvt_pk_bf16_f32 {v(O+4)}, {v(Z+2)}, {v(Z+3)}
    v_cvt_pk_bf16_f32 {v(O+5)}, {v(Z+4)}, {v(Z+5)}
    v_cvt_pk_bf16_f32 {v(O+3)}, {v(Z+6)}, {v(Z+7)}
    v_cndmask_b32 {v(O+1)}, {v(O+5)}, {v(O+4)}, {s(sMK0,2)}
    v_cndmask_b32 {v(O+2)}, {v(O+4)}, {v(O+5)}, {s(sMK0,2)}
    ''')
    return O

FIN = 1
def tokt(A):
    ACC, RING, TB, SA = 64, 32, TT.TB, TT.SA
    vXc, vOne, vZero, vXI0, vXI1, vXS, vPX = 5, 6, 7, 4, 1, 2, TT.vPX
    sX, sPX, sFL, sMT = sA, sC_, sD, sE
    A.label('L_tokt')
    wave_setup(A)
    gate(A, 'tu', GT)
    wait_tiles(A, 'tt', 8, 0, 'head', sH, 8)
    load_head(A, 0)
    tl(A, 1, 1, 8)
    A.I(f's_load_dwordx2 {s(sX,2)}, s[0:1], {KA_X}\n s_waitcnt lgkmcnt(0)')
    xsetup(A, sX, 21, vXc, 8)
    if FIN:
        A.I(f's_cmp_eq_u32 {s(sREP)}, 3\n s_cselect_b32 {s(sSEG)}, 63, {s(sSEG)}\n s_cselect_b32 s44, {60*XI_SEG}, 0\n s_cselect_b32 s45, {64*XI_SEG}, 0')
        addps(A, sX, sX, 44)
    xdma(A, sX, 21)
    if FIN: A.I(f's_sub_u32 {s(sX)}, {s(sX)}, s45\n s_subb_u32 {s(sX+1)}, {s(sX+1)}, 0')
    tt_setup(A)
    A.I(f'''
    v_mov_b32 {v(vOne)}, 1
    v_mov_b32 {v(vZero)}, 0
    v_lshrrev_b32 v8, 3, v1
    v_xor_b32 v8, v8, v2
    v_and_b32 v8, 1, v8
    v_lshlrev_b32 v8, 5, v8
    v_lshl_add_u32 v8, v1, 6, v8
    v_lshrrev_b32 v9, 1, v2
    v_lshl_add_u32 v8, v9, 3, v8
    s_lshl_b32 s42, s40, 11
    v_add_u32 {v(vXI0)}, s42, v8
    s_lshl_b32 s42, s41, 11
    s_and_b32 s45, {s(sW)}, 1
    s_lshl_b32 s45, s45, 4
    s_add_u32 s42, s42, s45
    v_add_u32 {v(vXI1)}, s42, v8
    v_mov_b32 {v(vXS)}, v21
    s_mul_i32 s42, {s(sREP)}, {PX_SEG}
    ''')
    addp(A, sPX, sWS, PX_OFF); addps(A, sPX, sPX, 42)
    A.I(f's_lshl_b32 s42, {s(sREP)}, 8\n s_lshl_b32 s43, {s(sH)}, 2\n s_add_u32 s42, s42, s43')
    addp(A, sFL, sWS, FL_OFF + 64); addps(A, sFL, sFL, 42)
    A.I(f's_mul_i32 s42, {s(sREP)}, {MEMT_SLOT}'); addp(A, sMT, sWS, MEMT_OFF); addps(A, sMT, sMT, 42)
    A.label('L_tt_item')
    A.I(f'''
    s_waitcnt vmcnt(0)
    s_barrier
    s_xor_b32 {s(sLB)}, {s(sLB)}, 0x8000
    s_sub_u32 s40, {s(sSEG)}, {59 if FIN else 60}
    s_cmp_lt_u32 s40, 4
    s_cbranch_scc1 L_tt_nox
    ''')
    xdma(A, sX, vXS)
    A.label('L_tt_nox')
    gemm(A, 7, wtile, ACC, RING, [vXc, vXc], [0, 1024], True)
    A.I(f'v_xor_b32 {v(vXc)}, 0x8000, {v(vXc)}')
    for tt in range(2):
        for t in range(7):
            for k in range(2):
                d = TB + 8*(t>>1) + 4*tt + 2*(t&1) + k if t < 6 else TB + 24 + 2*tt + k
                A.I(f'v_cvt_pk_bf16_f32 {v(d)}, {v(ACC+8*t+4*tt+2*k)}, {v(ACC+8*t+4*tt+2*k+1)}')
    XF = 64
    for L in range(3):
        for t in range(2): A.I(f'ds_read2_b64 {v(XF+8*L+4*t,4)}, {v(vXI0)} offset0:{t*128} offset1:{t*128+2}')
        A.I(f'v_add_u32 {v(vXI0)}, {2048 if L < 2 else -4096 & 0xffffffff}, {v(vXI0)}')
    for t in range(2): A.I(f'ds_read_b64 {v(XF+24+2*t,2)}, {v(vXI1)} offset:{t*1024}')
    A.I(f'v_xor_b32 {v(vXI0)}, 0x8000, {v(vXI0)}\n v_xor_b32 {v(vXI1)}, 0x8000, {v(vXI1)}\n s_waitcnt lgkmcnt(0)')
    tt_smm(A, lambda L: XF + 8*L, XF + 24, 0, SA); tt_smm(A, lambda L: XF + 8*L, XF + 24, 1, SA + 4); tt_smm(A, lambda L: XF + 8*L + 4, XF + 26, 1, SA + 8)
    if FIN: A.I(f's_cmp_eq_u32 {s(sSEG)}, 63\n s_cbranch_scc1 L_tt_exp')
    O = tt_finish(A, 'tt', sMT, LIGHT)
    A.I(f'''
    s_mov_b64 exec, {s(TT.sM5,2)}
    global_store_dwordx4 {v(vPX)}, {v(O,4)}, {s(sPX,2)} sc1
    s_mov_b64 exec, -1
    ''')
    tl(A, 1, 6, 36)
    A.I('s_waitcnt vmcnt(0)\n s_barrier')
    flag_store(A, sFL, vOne, vZero)
    addp(A, sFL, sFL, 1024); addp(A, sMT, sMT, 4 * MEMT_SLOT); addp(A, sPX, sPX, 4 * PX_SEG)
    A.I(f's_add_u32 {s(sSEG)}, {s(sSEG)}, 4\n s_cmp_lt_u32 {s(sSEG)}, {63 if FIN else 64}\n s_cbranch_scc1 L_tt_item'); tl(A, 1, 2, 8); A.I('s_endpgm')
    if FIN:
        A.label('L_tt_exp')
        A.I(f's_lshl_b32 s42, {s(sH)}, 2\n s_add_u32 s42, s42, {s(sW)}\n s_mul_i32 s42, s42, 10240')
        addp(A, 40, sWS, FX_OFF); addps(A, 40, 40, 42)
        A.flush()
        for k in range(10):
            A.I(f'global_store_dwordx4 v3, {v(TB+4*k if k < 7 else SA+4*(k-7),4)}, s[40:41] offset:{(k%4)*1024} sc1')
            if k % 4 == 3: addp(A, 40, 40, 4096)
        for k in range(4): A.I(f'v_mov_b32 {v(64+k)}, {s(sSENT)}')
        addp(A, 40, sPX, 60 * PX_SEG); addp(A, 42, sFL, 60 * 256)
        A.I(f's_mov_b64 exec, {s(TT.sM5,2)}\n global_store_dwordx4 {v(vPX)}, v[64:67], s[40:41] sc1\n s_mov_b64 exec, -1\n s_waitcnt vmcnt(0)\n s_barrier')
        flag_store(A, 42, vOne, vZero)
        A.I(f's_mov_b32 {s(sSEG)}, 3\n s_branch L_tt_item')

def load_tr(A, ptr, stride, natural):
    vS = 8
    A.I(f'''
    s_mul_i32 s42, {s(sW)}, 28672
    v_lshrrev_b32 v10, 3, v0
    v_and_b32 v11, 7, v0
    {'v_bfe_u32 v12, v0, 4, 1' if natural else 'v_lshrrev_b32 v12, 4, v0'}
    v_lshlrev_b32 v12, 1, v12
    v_xor_b32 v11, v11, v12
    v_mul_u32_u24 v10, {stride}, v10
    v_lshl_add_u32 {v(vS)}, v11, 4, v10
    v_xor_b32 v11, {4 if natural else 0}, v11
    v_lshl_add_u32 {v(vS+1)}, v11, 4, v10
    v_bfe_u32 v10, v0, 2, 2
    v_lshl_add_u32 v11, v2, {3 if natural else 2}, v10
    v_lshlrev_b32 v11, 7, v11
    v_and_b32 v12, 1, v0
    v_lshl_add_u32 v11, v12, 3, v11
    v_add_u32 v11, s42, v11
    v_and_b32 v10, 2, v10
    v_and_b32 v12, 1, v2
    v_lshl_add_u32 v10, v12, 2, v10
    v_bfe_u32 v12, v0, 1, 1
    v_xor_b32 v10, v10, v12
    ''')
    for t in range(4):
        A.I(f'v_xor_b32 v12, {2*t}, v10\n v_lshl_add_u32 {v(13+t)}, v12, 4, v11')
    for half in range(2):
        for k in range(28):
            A.I(f's_add_u32 m0, s42, {k*1024}')
            A.I(f'global_load_lds_dwordx4 {v(vS+(k&1))}, {s(ptr,2)}')
            addp(A, ptr, ptr, 8 * stride)
        A.I('s_waitcnt vmcnt(0)')
        for jj in range(7):
            j = 7 * half + jj
            for t in range(4):
                for hi in range(2):
                    A.I(f'ds_read_b64_tr_b16 {a_((t*14+j)*4+2*hi,2)}, {v(13+t)} offset:{jj*4096 + hi*(512 if natural else 2048)}')
            A.I('s_waitcnt lgkmcnt(0)')

def at(t, j): return a_((t * 14 + j) * 4, 4)

def ffn1(A):
    ACC, RING = 64, 32
    vXc, vOne, vZero, vGT, vOG, vXS, GT = 5, 6, 7, 4, 56, 58, 120
    sX, sW1, sHO, sFL, sG = sA, sB_, sC_, sD, sE
    A.label('L_ffn1')
    A.I(f's_load_dwordx2 {s(sW1,2)}, s[0:1], {KA_W1}\n s_load_dwordx2 {s(sX,2)}, s[0:1], {KA_X}\n s_load_dwordx2 {s(sF,2)}, s[0:1], {KA_GW}')
    wave_setup(A)
    A.I(f's_lshl_b32 s40, {s(sH)}, 9\n s_lshl_b32 s41, {s(sW)}, 7\n s_add_u32 s40, s40, s41\n s_waitcnt lgkmcnt(0)')
    addps(A, sW1, sW1, 40)
    gate(A, 'f1', GF)
    A.I('v_lshlrev_b32 v8, 4, v2')
    for j in range(14): A.I(f'global_load_dwordx4 {v(GT+4*j,4)}, v8, {s(sF,2)} offset:{64*j}')
    load_tr(A, sW1, 3584, True)
    tl(A, 1, 1, 8)
    A.I('s_barrier')
    xsetup(A, sX, vXS, vXc, 8); xdma(A, sX, vXS)
    A.I(f'''
    v_mov_b32 {v(vOne)}, 1
    v_mov_b32 {v(vZero)}, 0
    v_lshlrev_b32 {v(vGT)}, 2, v1
    s_mul_i32 s42, {s(sREP)}, {HI_SEG}
    s_lshl_b32 s43, {s(sH)}, 14
    s_add_u32 s42, s42, s43
    s_lshl_b32 s43, {s(sW)}, 12
    s_add_u32 s42, s42, s43
    ''')
    addp(A, sHO, sWS, HI_OFF); addps(A, sHO, sHO, 42)
    A.I(f's_lshl_b32 s42, {s(sREP)}, 8\n s_lshl_b32 s43, {s(sH)}, 2\n s_add_u32 s42, s42, s43')
    addp(A, sFL, sWS, FL_OFF + 192); addps(A, sFL, sFL, 42)
    A.I(f's_lshl_b32 s42, {s(sREP)}, 7'); addp(A, sG, sWS, G_OFF); addps(A, sG, sG, 42)
    A.label('L_f1_item')
    A.I(f'''
    s_waitcnt vmcnt(0)
    s_barrier
    s_cmp_lt_u32 {s(sSEG)}, 4
    s_cbranch_scc1 L_f1_nofl
    ''')
    flag_store(A, sFL, vOne, vZero); addp(A, sFL, sFL, 1024)
    A.label('L_f1_nofl')
    A.I(f'''
    s_cmp_ge_u32 {s(sSEG)}, 64
    s_cbranch_scc1 L_f1_end
    s_xor_b32 {s(sLB)}, {s(sLB)}, 0x8000
    s_cmp_ge_u32 {s(sSEG)}, 60
    s_cbranch_scc1 L_f1_nox
    ''')
    xdma(A, sX, vXS)
    A.label('L_f1_nox')
    gemm(A, 5, lambda t, j: at(t, j) if t < 4 else v(GT + 4*j, 4), ACC, RING, [vXc, vXc], [0, 1024], True)
    A.I(f'v_xor_b32 {v(vXc)}, 0x8000, {v(vXc)}')
    for tt in range(2):
        A.I(f'''
        v_mul_f32 {v(vOG+tt)}, {f32(-1.4426950408889634)}, {v(ACC+32+4*tt)}
        v_exp_f32 {v(vOG+tt)}, {v(vOG+tt)}
        v_add_f32 {v(vOG+tt)}, 1.0, {v(vOG+tt)}
        v_rcp_f32 {v(vOG+tt)}, {v(vOG+tt)}
        ''')
    A.I(f'''
    s_or_b32 s40, {s(sH)}, {s(sW)}
    s_cbranch_scc1 L_f1_nog
    global_store_dword {v(vGT)}, {v(vOG)}, {s(sG,2)} sc1
    global_store_dword {v(vGT)}, {v(vOG+1)}, {s(sG,2)} offset:64 sc1
L_f1_nog:
    v_sub_f32 {v(vOG)}, 1.0, {v(vOG)}
    v_sub_f32 {v(vOG+1)}, 1.0, {v(vOG+1)}
    ''')
    E, O = 8, 16
    for p in range(2):
        for tt in range(2):
            regs = [ACC + 8*(2*p+y) + 4*tt + r for y in range(2) for r in range(4)]
            for i, r in enumerate(regs): A.I(f'v_mul_f32 {v(E+i)}, {f32(-1.4426950408889634)}, {v(r)}')
            for i in range(8): A.I(f'v_exp_f32 {v(E+i)}, {v(E+i)}')
            for i in range(8): A.I(f'v_add_f32 {v(E+i)}, 1.0, {v(E+i)}')
            for i in range(8): A.I(f'v_rcp_f32 {v(E+i)}, {v(E+i)}')
            for i, r in enumerate(regs): A.I(f'v_mul_f32 {v(r)}, {v(r)}, {v(vOG+tt)}')
            for i, r in enumerate(regs): A.I(f'v_mul_f32 {v(E+i)}, {v(E+i)}, {v(r)}')
            o = O + 4 * (2*p + tt)
            for k in range(4): A.I(f'v_cvt_pk_bf16_f32 {v(o+k)}, {v(E+2*k)}, {v(E+2*k+1)}')
            A.I(f'global_store_dwordx4 v3, {v(o,4)}, {s(sHO,2)} offset:{(2*p+tt)*1024} sc1')
    addp(A, sHO, sHO, 4 * HI_SEG); addp(A, sG, sG, 512)
    A.I(f's_add_u32 {s(sSEG)}, {s(sSEG)}, 4\n s_branch L_f1_item')
    A.label('L_f1_end'); tl(A, 1, 2, 8); A.I('s_endpgm')

def outs(A):
    ACC, VF, WF, PF, HR = 8, 40, 104, 120, 160
    NH = 8
    vF, vFA, vRW, vRR, vO, vV1, vGA, vG = 4, 5, 6, 7, 224, 225, 226, 228
    AC2 = HR
    RBW = 32 * 272
    sW2, sHI, sVX, sWT, sPX, sFL, sOUT, sG = sA, sB_, sC_, sD, sE, sF, 30, 32
    sMA, sMB = sM0, sM1
    A.label('L_outs')
    A.I(f's_load_dwordx2 {s(sW2,2)}, s[0:1], {KA_W2}\n s_load_dwordx2 {s(sOUT,2)}, s[0:1], {KA_OUT}')
    wave_setup(A)
    A.I(f's_mul_i32 s40, {s(sW)}, {448*896}\n s_lshl_b32 s41, {s(sH)}, 7\n s_add_u32 s40, s40, s41\n s_waitcnt lgkmcnt(0)')
    addps(A, sW2, sW2, 40)
    gate(A, 'ou', GO)
    load_tr(A, sW2, 896, False)
    tl(A, 1, 1, 8)
    A.I(f'''
    s_barrier
    v_lshlrev_b32 {v(vGA)}, 2, v1
    s_mov_b32 {s(sSEG)}, {s(sREP)}
    v_lshlrev_b32 {v(vFA)}, 2, v0
    v_add_u32 {v(vV1)}, 4096, v3
    s_mov_b32 {s(sMA)}, 0x0000ffff
    s_mov_b32 {s(sMA+1)}, 0x007f0000
    s_mov_b32 {s(sMB)}, 0xffff0000
    s_mov_b32 {s(sMB+1)}, 0x0000ffff
    s_mul_i32 s42, {s(sW)}, {RBW}
    v_mul_u32_u24 {v(vRW)}, 272, v1
    v_lshl_add_u32 {v(vRW)}, v2, 4, {v(vRW)}
    v_add_u32 {v(vRW)}, s42, {v(vRW)}
    v_lshrrev_b32 v10, 3, v0
    v_lshl_add_u32 v10, {s(sW)}, 3, v10
    v_and_b32 v11, 7, v0
    v_mul_u32_u24 {v(vRR)}, 272, v10
    v_lshl_add_u32 {v(vRR)}, v11, 5, {v(vRR)}
    v_mul_u32_u24 {v(vO)}, 896, v10
    v_lshl_add_u32 {v(vO)}, v11, 4, {v(vO)}
    s_mul_i32 s42, {s(sREP)}, {32*896}
    s_lshl_b32 s43, {s(sH)}, 7
    s_add_u32 s42, s42, s43
    ''')
    addps(A, sOUT, sOUT, 42)
    A.I(f's_mul_i32 s42, {s(sREP)}, {HI_SEG}\n s_mul_i32 s43, {s(sW)}, 28672\n s_add_u32 s42, s42, s43')
    addp(A, sHI, sWS, HI_OFF); addps(A, sHI, sHI, 42)
    A.I(f's_mul_i32 s42, {s(sREP)}, {14*VX_SC}\n s_lshl_b32 s43, {s(sH)}, 16\n s_add_u32 s42, s42, s43\n s_lshl_b32 s43, {s(sW)}, 13\n s_add_u32 s42, s42, s43')
    addp(A, sVX, sWS, VX_OFF); addps(A, sVX, sVX, 42)
    A.I(f's_mul_i32 s42, {s(sREP)}, {WT_SEG}\n s_mul_i32 s43, {s(sW)}, 28672\n s_add_u32 s42, s42, s43\n s_lshl_b32 s43, {s(sH)}, 12\n s_add_u32 s42, s42, s43')
    addp(A, sWT, sWS, WT_OFF); addps(A, sWT, sWT, 42)
    A.I(f's_mul_i32 s42, {s(sREP)}, {PX_SEG}\n s_mul_i32 s43, {s(sW)}, 10240\n s_add_u32 s42, s42, s43')
    addp(A, sPX, sWS, PX_OFF); addps(A, sPX, sPX, 42)
    A.I(f's_lshl_b32 s42, {s(sREP)}, 8'); addp(A, sFL, sWS, FL_OFF); addps(A, sFL, sFL, 42)
    A.I(f's_lshl_b32 s42, {s(sREP)}, 7'); addp(A, sG, sWS, G_OFF); addps(A, sG, sG, 42)
    def wait_flags(tag, mask):
        if LIGHT: A.I(f's_cmp_lg_u32 {s(sW)}, 0\n s_cbranch_scc1 L_{tag}_ok')
        A.I(f'''
L_{tag}:
        global_load_dword {v(vF)}, {v(vFA)}, {s(sFL,2)} sc1
        ''')
        budget(A)
        A.I(f'''
        s_waitcnt vmcnt(0)
        v_cmp_eq_u32 vcc, 0, {v(vF)}
        s_and_b64 vcc, vcc, {s(mask,2)}
        s_cbranch_vccz L_{tag}_ok
        s_sleep {TS}
        s_branch L_{tag}
L_{tag}_ok:
        ''')
        if LIGHT: A.I('s_waitcnt vmcnt(0)\n s_barrier')
    A.label('L_ou_item')
    wait_flags('ou_f1', sMA)
    vm = Cnt(A, 'vmcnt', 63)
    A.I(f'global_load_dword {v(vG)}, {v(vGA)}, {s(sG,2)} sc1\n global_load_dword {v(vG+1)}, {v(vGA)}, {s(sG,2)} offset:64 sc1')
    A.I(f's_mov_b64 s[40:41], {s(sHI,2)}')
    def hload(i):
        A.I(f'global_load_dwordx4 {v(HR+4*(i%(2*NH)),4)}, v3, s[40:41] offset:{(i%4)*1024} sc1'); vm.add(('h', i))
        if i % 4 == 3: addp(A, 40, 40, 4096)
    for i in range(2 * NH): hload(i)
    addp(A, 42, sVX, 32768)
    vl = [(hh, ct) for hh in range(4) for ct in range(4)]
    def vload(n):
        hh, ct = vl[n]
        A.I(f'global_load_dwordx4 {v(VF+16*hh+4*ct,4)}, {v(3 if hh < 2 else vV1)}, {s(sVX if ct < 2 else 42,2)} offset:{(hh&1)*2048+(ct&1)*1024} sc1'); vm.add(('v', n))
    for j in range(14):
        for tt in range(2):
            i = 2*j + tt
            vm.wait(('h', i))
            for ct in range(4):
                d = v(ACC + 8*ct + 4*tt, 4)
                A.I(f'v_mfma_f32_16x16x32_bf16 {d}, {at(ct,j)}, {v(HR+4*(i%(2*NH)),4)}, {d if j else 0}')
            if i + 2 * NH < 28: hload(i + 2 * NH)
            elif i - 12 < 16: vload(i - 12)
    if FIN: A.I(f's_cmp_eq_u32 {s(sSEG)}, 63\n s_cbranch_scc1 L_ou_red')
    wait_flags('ou_f2', sMB)
    tl(A, 1, 5, 230)
    vm.clear()
    addp(A, 40, sPX, 4096); addp(A, 42, sPX, 8192)
    for i in range(10):
        A.I(f'global_load_dwordx4 {v(PF+4*i,4)}, v3, {s([sPX,40,42][i>>2],2)} offset:{(i%4)*1024} sc1'); vm.add(('p', i))
        if i == 3:
            for ct in range(4):
                A.I(f'global_load_dwordx4 {v(WF+4*ct,4)}, v3, {s(sWT,2)} offset:{ct*1024} sc1'); vm.add(('w', ct))
    for k in range(5):
        for tt in range(2):
            vm.wait(('p', 2*k + tt))
            for ct in range(4):
                d = v(AC2 + 8*ct + 4*tt, 4)
                a = v(VF + 16*k + 4*ct, 4) if k < 4 else v(WF + 4*ct, 4)
                A.I(f'v_mfma_f32_16x16x32_bf16 {d}, {a}, {v(PF+8*k+4*tt,4)}, {d if k else 0}')
    tl(A, 1, 6, 230)
    for tt in range(2):
        for ct in range(4):
            for r in range(4): A.I(f'v_fmac_f32 {v(ACC+8*ct+4*tt+r)}, {v(vG+tt)}, {v(AC2+8*ct+4*tt+r)}')
    A.label('L_ou_red')
    A.I('s_waitcnt vmcnt(0)\n s_nop 7\n s_barrier')
    for tt in range(2):
        for ct in range(4):
            A.I(f'ds_write_b128 {v(vRW)}, {v(ACC+8*ct+4*tt,4)} offset:{tt*16*272 + ct*64}')
    A.I('s_waitcnt lgkmcnt(0)\n s_barrier')
    Z = VF
    for k in range(4):
        A.I(f'ds_read_b128 {v(Z+8*k,4)}, {v(vRR)} offset:{k*RBW}\n ds_read_b128 {v(Z+8*k+4,4)}, {v(vRR)} offset:{k*RBW+16}')
    A.I('s_waitcnt lgkmcnt(0)')
    for a, b in ((0, 8), (16, 24), (0, 16)):
        for k in range(0, 8, 2): A.I(f'v_pk_add_f32 {v(Z+a+k,2)}, {v(Z+a+k,2)}, {v(Z+b+k,2)}')
    if FIN: A.I(f's_cmp_eq_u32 {s(sSEG)}, 63\n s_cbranch_scc1 L_ou_exp')
    for k in range(4): A.I(f'v_cvt_pk_bf16_f32 {v(Z+8+k)}, {v(Z+2*k)}, {v(Z+2*k+1)}')
    A.I(f'global_store_dwordx4 {v(vO)}, {v(Z+8,4)}, {s(sOUT,2)} {OST}')
    tl(A, 1, 7, 230)
    addp(A, sOUT, sOUT, 7 * 32 * 896); addp(A, sHI, sHI, 7 * HI_SEG); addp(A, sVX, sVX, 7 * 14 * VX_SC)
    addp(A, sWT, sWT, 7 * WT_SEG); addp(A, sPX, sPX, 7 * PX_SEG); addp(A, sFL, sFL, 7 * 256); addp(A, sG, sG, 7 * 128)
    A.I(f's_add_u32 {s(sSEG)}, {s(sSEG)}, 7\n s_cmp_lt_u32 {s(sSEG)}, 64\n s_cbranch_scc1 L_ou_item'); A.I('s_waitcnt vmcnt(0)'); tl(A, 1, 2, 8); A.I('s_endpgm')
    if FIN:
        A.label('L_ou_exp')
        A.I(f's_lshl_b32 s42, {s(sH)}, 8\n v_lshlrev_b32 {v(vO)}, 1, {v(vO)}')
        addp(A, 40, sWS, BP_OFF); addps(A, 40, 40, 42)
        A.I(f'''
        global_store_dwordx4 {v(vO)}, {v(Z,4)}, s[40:41] sc1
        global_store_dwordx4 {v(vO)}, {v(Z+4,4)}, s[40:41] offset:16 sc1
        s_lshl_b32 s42, {s(sH)}, 2
        s_add_u32 s42, s42, 128
        v_mov_b32 v8, s42
        v_mov_b32 v9, 1
        s_waitcnt vmcnt(0)
        s_barrier
        ''')
        flag_store(A, sFL, 9, 8)
        tl(A, 1, 2, 8); A.I('s_endpgm')
```

```python
from common import *
import prep, tok
from prep import wait_tiles, sDB, DB_XCC

NSTEP = 63
CLK = 's_memrealtime'
OPT = {'poisT', 'mtouch', 'mtdirect'}
HSLEEP = 2
LIM = 60
XD = 0
VE = 4
CX = 3
DIR = 1
FS = 40
ALS = -1
ALV = -1
PS_ = 0
SS = 0
AJ = 8
GX = 0
GE = 0
AGE = 99
L3P = ''
GB = 2
PD = 3
FA, FB, FC, FD = 5, 3, 4, 1
PFL = 16
PFA = 2
NRES = 5
HD = 3
sROLE, sW, sSTEP, sBUD, sSENT = 3, 4, 5, 6, 7
sWS, sX0, sX1, sMEM, sP, sVX, sMT, sWT = 8, 10, 12, 14, 16, 18, 20, 24
sTMP, sTMP2 = 27, 28
sM20, sMHI, sMG = 30, 32, 34
sLB, sXB, sM48 = 36, 37, 38
sDBG = 44
sXCC, sEA, sEB, sFL = 75, 64, 66, 68
BUDGET = 1 << 21

def bud(A):
    A.I(f's_add_u32 {s(sBUD)}, {s(sBUD)}, 1\n s_cmp_gt_u32 {s(sBUD)}, {BUDGET}\n s_cbranch_scc1 L_bail')

def chain_common(A):
    A.I(f'''
    s_mov_b32 {s(sSTEP)}, 0
    s_mov_b32 {s(sBUD)}, 0
    s_mov_b32 {s(sSENT)}, {SENT}
    s_mov_b32 s90, 0
    ''')

def xcc_publish(A, role, t):
    A.I(f'''
    s_getreg_b32 {s(sXCC)}, hwreg(HW_REG_XCC_ID, 0, 4)
    s_add_u32 {s(sXCC)}, {s(sXCC)}, 1
    v_mov_b32 {v(t)}, {s(role)}
    v_mov_b32 {v(t+1)}, {s(sXCC)}
    s_waitcnt vmcnt(0)
    s_barrier
    global_store_byte {v(t)}, {v(t+1)}, {s(sDB,2)} offset:{DB_XCC} sc1
    ''')

def xcc_check(A, tag, t):
    A.I(f'''
    v_min_u32 {v(t)}, {31 if 'fetch' in OPT else 30}, v0
L_{tag}_xc:
    global_load_ubyte {v(t+1)}, {v(t)}, {s(sDB,2)} offset:{DB_XCC} sc1
    ''')
    bud(A)
    A.I(f'''
    s_waitcnt vmcnt(0)
    v_cmp_eq_u32 vcc, 0, {v(t+1)}
    s_cbranch_vccnz L_{tag}_xc
    v_cmp_ne_u32 vcc, {s(sXCC)}, {v(t+1)}
    s_cmp_eq_u64 vcc, {0 if 'slow' not in OPT else -1}
    s_cselect_b32 {s(sEA)}, 1, 0
    ''')

def warm(A, first, last, t):
    if 'warm' not in OPT: return
    A.raw(f'''    s_getpc_b64 s[40:41]
L_pc_{first}:
    s_add_u32 s40, s40, {first} - L_pc_{first}
    s_addc_u32 s41, s41, 0
    v_lshlrev_b32 {v(t)}, 7, v0
    v_min_u32 {v(t)}, {last} - {first}, {v(t)}''')
    A.I(f'global_load_dword {v(t+1)}, {v(t)}, s[40:41]')

def assist(A, tag, head, t):
    if 'noassist' in OPT: return
    wait_tiles(A, tag, t, 0, 'head', head, 1)
    A.I(f's_mul_i32 s40, {s(head)}, {MF_HEAD}'); addp(A, 42, sWS, MF_OFF + AJ * 2048); addps(A, 42, 42, 40)
    per = (14 - AJ) * 16
    tot = 14 * per
    n = (tot // 4 + 63) // 64
    A.I(f's_mul_i32 s40, {s(sW)}, {tot // 4}')
    for i in range(n):
        A.I(f'''
        v_add_u32 {v(t)}, {64*i}, v0
        v_min_u32 {v(t)}, {tot // 4 - 1}, {v(t)}
        v_add_u32 {v(t)}, s40, {v(t)}
        v_mul_u32_u24 {v(t+1)}, {(1 << 20) // per + 1}, {v(t)}
        v_lshrrev_b32 {v(t+1)}, 20, {v(t+1)}
        v_mul_u32_u24 {v(t+1)}, {224 - per}, {v(t+1)}
        v_add_lshl_u32 {v(t)}, {v(t)}, {v(t+1)}, 7
        global_load_dword {v(t+2)}, {v(t)}, s[42:43] sc1
        ''')

def mem_poll(A, tag, vG0, vPR, vD):
    A.I(f'''
L_{tag}_mp:
    s_mov_b32 m0, {s(sLB)}
L_{tag}_mpl:
    global_load_dword {v(vD)}, {v(vPR)}, {s(sMEM,2)} sc1
    global_load_lds_dwordx4 {v(vG0)}, {s(sMEM,2)} sc1
    s_mov_b64 exec, {s(sM48,2)}
    global_load_lds_dwordx4 {v(vG0)}, {s(sMEM,2)} offset:1024 sc1
    s_mov_b64 exec, -1
    ''')
    bud(A)
    A.I(f'''
    s_waitcnt vmcnt(2)
    v_cmp_eq_u32 vcc, {s(sSENT)}, {v(vD)}
    s_cbranch_vccnz L_{tag}_mpl
    s_waitcnt vmcnt(0) lgkmcnt(0)
    s_barrier
    ''')

sMEM2, sLB2 = 66, 29
def dma_split(A, vG0):
    A.I(f'''
    global_load_lds_dwordx4 {v(vG0)}, {s(sMEM,2)} sc1
    s_mov_b32 m0, {s(sLB2)}
    s_mov_b64 exec, {s(sM48,2)}
    global_load_lds_dwordx4 {v(vG0)}, {s(sMEM2,2)} sc1
    s_mov_b64 exec, -1
    s_mov_b32 m0, {s(sLB)}
    ''')

def mem_poll_split(A, tag, vG0, vPR, vD):
    A.I(f'''
L_{tag}_mp:
    s_mov_b32 m0, {s(sLB)}
L_{tag}_mpl:
    global_load_dword {v(vD)}, {v(vPR)}, {s(sMEM,2)} sc1
    ''')
    dma_split(A, vG0)
    bud(A)
    A.I(f'''
    s_waitcnt vmcnt(2)
    v_cmp_eq_u32 vcc, {s(sSENT)}, {v(vD)}
    s_cbranch_vccnz L_{tag}_mpl
    s_waitcnt vmcnt(1) lgkmcnt(0)
    s_barrier
    ''')

def mem_poll_half(A, tag, vG0, vPR, vD):
    A.I(f'''
L_{tag}_mp:
    s_cmp_ge_u32 {s(sW)}, 2
    s_cbranch_scc1 L_{tag}_mpb
    s_mov_b32 m0, {s(sLB)}
L_{tag}_mpl:
    global_load_dword {v(vD)}, {v(vPR)}, {s(sMEM,2)} sc1
    global_load_lds_dwordx4 {v(vG0)}, {s(sMEM,2)} sc1
    global_load_lds_dwordx4 {v(vG0)}, {s(sMEM,2)} offset:1024 sc1
    global_load_lds_dwordx4 {v(vG0)}, {s(sMEM,2)} offset:2048 sc1
    s_mov_b32 exec_hi, 0
    global_load_lds_dwordx4 {v(vG0)}, {s(sMEM,2)} offset:3072 sc1
    s_mov_b64 exec, -1
    ''')
    bud(A)
    A.I(f'''
    s_waitcnt vmcnt(4)
    v_cmp_eq_u32 vcc, {s(sSENT)}, {v(vD)}
    s_cbranch_vccnz L_{tag}_mpl
    s_waitcnt vmcnt(0)
L_{tag}_mpb:
    s_waitcnt lgkmcnt(0)
    s_barrier
    ''')

def mem_poll_setup(A, vG0, vPR, t, half=False):
    A.I(f'''
    s_mul_i32 {s(sLB)}, {s(sW)}, {3584 if half else 1792}
    v_lshlrev_b32 {v(vG0)}, 4, v0
    v_add_u32 {v(vG0)}, {s(sLB)}, {v(vG0)}
    s_mov_b32 {s(sM48)}, -1
    s_mov_b32 {s(sM48+1)}, 0xffff
    v_min_u32 {v(t)}, {27 if half else 13}, v0
    v_lshlrev_b32 {v(t)}, 7, {v(t)}
    v_add3_u32 {v(vPR)}, {s(sLB)}, {v(t)}, 64
    ''')

def sreg(i): return 48 + 2 * i if i < 8 else 76 + 2 * (i - 8)

def stamp(A, idx, prof):
    if not prof: return
    A.I(f'{CLK} {s(sreg(idx), 2)}')

def stamp_flush(A, prof):
    if not prof: return
    A.I('s_waitcnt lgkmcnt(0)')
    for i in range(16): A.I(f'v_writelane_b32 v21, {s(sreg(i))}, {i}')
    A.I(f'''
    v_mbcnt_lo_u32_b32 v20, -1, 0
    v_lshlrev_b32 v20, 2, v20
    s_mov_b64 exec, 0xffff
    global_store_dword v20, v21, {s(sDBG,2)}
    s_mov_b64 exec, -1
    ''')
    addp(A, sDBG, sDBG, 64)

def idx_setup(A, vIDX, T):
    A.I(f'''
    v_and_b32 {v(T)}, 15, v0
    v_lshrrev_b32 {v(T+1)}, 4, v0
    v_and_b32 {v(T+2)}, 7, v0
    v_mov_b32 {v(vIDX)}, 0x4444
    v_mov_b32 {v(T+3)}, 0xeeee
    v_cmp_lt_u32 vcc, 7, {v(T)}
    v_cndmask_b32 {v(vIDX)}, {v(vIDX)}, {v(T+3)}, vcc
    ''')

def score(A, prof=0):
    L_MEM, L_TB, L_SB, L_RW, L_XB = 0, 8192, 20480, 26624, 65536
    vIDX, vG0, vXB, vPR, vAF0, vAF1, vMB0, vMB1, vTW, vTR, vSW, vSR, vPS, vX0, vX1, vRW, vSM, vSN = range(1, 19)
    vCK = 19; vLO = 0; sHI = 26
    RING, XF, R, TOPC, TMP, SACC, TACC, WV = 20, 52, 84, 108, 112, 116, 128, 144
    MEMB, TOPA, TOPB = R, R + 16, R + 20
    import layout
    layout.L3T[:] = [int(c, 16) for c in str(L3P or ('1234567' if 'split' not in OPT else '3456789'))]
    seq = score_seq()
    def wreg(i):
        if i < 3: return v(R + 8 * i, 8)
        if i < 35: return a_(8 * (i - 3), 8)
        return v(WV + 8 * (i - 35), 8)
    lg = Cnt(A, 'lgkmcnt', 15)
    A.label('L_score')
    A.I(f's_load_dwordx2 {s(sX0,2)}, s[0:1], {KA_X}')
    chain_common(A)
    T = 20
    idx_setup(A, vIDX, T)
    SPL = 'split' in OPT
    if not SPL: mem_poll_setup(A, vG0, vPR, T + 4)
    else: A.I(f'''
    s_lshl_b32 {s(sLB)}, {s(sW)}, 10
    s_mul_i32 {s(sLB2)}, {s(sW)}, 768
    s_add_u32 {s(sLB2)}, {s(sLB2)}, 4096
    v_lshl_add_u32 {v(vG0)}, v0, 4, {s(sLB)}
    s_mov_b32 {s(sM48)}, -1
    s_mov_b32 {s(sM48+1)}, 0xffff
    v_min_u32 {v(T+4)}, 13, v0
    v_lshlrev_b32 {v(T+4)}, 7, {v(T+4)}
    v_add3_u32 {v(vPR)}, {s(sLB)}, {v(T+4)}, 64
    s_sub_u32 s40, {s(sLB2)}, 960
    v_add_u32 {v(T+4)}, s40, {v(T+4)}
    v_cmp_lt_u32 vcc, 7, v0
    v_cndmask_b32 {v(vPR)}, {v(vPR)}, {v(T+4)}, vcc
    ''')
    A.I(f'''
    v_lshlrev_b32 {v(T+4)}, 7, {v(T+1)}
    v_lshl_add_u32 {v(T+4)}, {v(T+2)}, 4, {v(T+4)}
    s_and_b32 {s(sTMP)}, {s(sW)}, 1
    s_mul_i32 {s(sTMP2)}, {s(sTMP)}, {7*512}
    v_mov_b32 {v(vAF0)}, {v(T+4)}
    v_add_u32 {v(vAF1)}, {s(sTMP2)}, {v(T+4)}
    s_lshr_b32 {s(sTMP2)}, {s(sW)}, 1
    s_mul_i32 {s(sTMP2)}, {s(sTMP2)}, 7
    s_lshl_b32 {s(sTMP)}, {s(sTMP)}, 2
    s_add_u32 {s(sTMP)}, {s(sTMP)}, {s(sTMP2)}
    s_add_u32 {s(sTMP2)}, {s(sTMP2)}, 3
    s_lshl_b32 s40, {s(sTMP)}, 9
    s_lshl_b32 s41, {s(sTMP2)}, 9
    v_add_u32 {v(vMB0)}, s40, {v(T+4)}
    v_add_u32 {v(vMB1)}, s41, {v(T+4)}
    s_lshl_b32 s40, {s(sTMP)}, 6
    s_lshl_b32 s41, {s(sTMP2)}, 6
    v_lshrrev_b32 {v(T+4)}, 2, v0
    v_mul_u32_u24 {v(T+4)}, 896, {v(T+4)}
    v_lshrrev_b32 {v(T+5)}, 5, v0
    v_lshlrev_b32 {v(T+5)}, 1, {v(T+5)}
    v_and_b32 {v(T+6)}, 3, v0
    v_xor_b32 {v(T+5)}, {v(T+5)}, {v(T+6)}
    v_lshl_add_u32 {v(T+4)}, {v(T+5)}, 4, {v(T+4)}
    v_add_u32 {v(vX0)}, s40, {v(T+4)}
    v_add_u32 {v(vX1)}, s41, {v(T+4)}
    s_lshl_b32 {s(sXB)}, {s(sW)}, 13
    s_add_u32 {s(sXB)}, {s(sXB)}, {L_XB}
    v_lshrrev_b32 {v(T+4)}, 3, {v(T)}
    v_lshlrev_b32 {v(T+4)}, 1, {v(T+4)}
    v_xor_b32 {v(T+4)}, {v(T+4)}, {v(T+1)}
    v_lshl_add_u32 {v(T+4)}, {v(T)}, 2, {v(T+4)}
    v_lshl_add_u32 {v(vXB)}, {v(T+4)}, 4, {s(sXB)}
    s_mul_i32 s40, {s(sW)}, 3072
    s_add_u32 s40, s40, {L_TB}
    v_mul_u32_u24 {v(T+5)}, 192, {v(T+1)}
    v_lshl_add_u32 {v(T+5)}, {v(T)}, 3, {v(T+5)}
    v_add_u32 {v(vTW)}, s40, {v(T+5)}
    v_and_b32 {v(T+5)}, 1, v0
    v_mul_u32_u24 {v(T+5)}, 192, {v(T+5)}
    v_lshrrev_b32 {v(T+6)}, 2, v0
    v_lshl_add_u32 {v(T+5)}, {v(T+6)}, 3, {v(T+5)}
    v_add_u32 {v(vTR)}, s40, {v(T+5)}
    s_mul_i32 s40, {s(sW)}, 1408
    s_add_u32 s40, s40, {L_SB}
    v_mul_u32_u24 {v(T+5)}, 176, {v(T+2)}
    v_add_u32 {v(T+5)}, s40, {v(T+5)}
    v_mov_b32 {v(vCK)}, {v(T+5)}
    v_lshrrev_b32 {v(T+6)}, 3, {v(T)}
    v_and_b32 {v(T+7)}, 1, {v(T+1)}
    v_mul_u32_u24 {v(T+7)}, 704, {v(T+7)}
    v_lshrrev_b32 {v(T+8)}, 1, {v(T+1)}
    v_lshl_add_u32 {v(T+7)}, {v(T+8)}, 6, {v(T+7)}
    v_lshl_add_u32 {v(T+7)}, {v(T)}, 2, {v(T+7)}
    v_add3_u32 {v(vSW)}, s40, {v(T+7)}, 32
    v_and_b32 {v(T+7)}, 1, {v(T+1)}
    v_lshlrev_b32 {v(T+7)}, 4, {v(T+7)}
    v_lshrrev_b32 {v(T+8)}, 1, {v(T+1)}
    v_lshl_add_u32 {v(T+8)}, {v(T+8)}, 1, {v(T+6)}
    v_lshl_add_u32 {v(T+7)}, {v(T+8)}, 2, {v(T+7)}
    v_add_u32 {v(vSM)}, {v(T+5)}, {v(T+7)}
    v_lshrrev_b32 {v(T+5)}, 5, v0
    v_lshl_add_u32 {v(T+5)}, {s(sW)}, 1, {v(T+5)}
    v_and_b32 {v(T+6)}, 31, v0
    v_min_u32 {v(T+6)}, 20, {v(T+6)}
    v_mul_u32_u24 {v(T+7)}, 176, {v(T+5)}
    v_lshl_add_u32 {v(T+7)}, {v(T+6)}, 3, {v(T+7)}
    v_add_u32 {v(vSR)}, {L_SB}, {v(T+7)}
    s_lshr_b32 s40, {s(sROLE)}, 2
    s_mul_i32 s40, s40, 2560
    s_and_b32 s41, {s(sROLE)}, 1
    s_bfe_u32 s42, {s(sROLE)}, 0x10001
    s_lshl_b32 s43, s41, 7
    s_lshl_b32 s46, s42, 5
    s_add_u32 s43, s43, s46
    s_add_u32 s43, s43, s40
    s_add_u32 s43, s43, 2048
    v_and_b32 {v(T+7)}, 1, {v(T+6)}
    v_lshlrev_b32 {v(T+7)}, 8, {v(T+7)}
    v_lshrrev_b32 {v(T+8)}, 1, {v(T+6)}
    v_lshl_add_u32 {v(T+7)}, {v(T+8)}, 6, {v(T+7)}
    v_lshl_add_u32 {v(T+7)}, {v(T+5)}, 2, {v(T+7)}
    v_add_u32 {v(T+7)}, s43, {v(T+7)}
    s_lshl_b32 s43, s42, 10
    s_lshl_b32 s46, s41, 9
    s_add_u32 s43, s43, s46
    s_add_u32 s43, s43, s40
    v_subrev_u32 {v(T+8)}, 4, {v(T+6)}
    v_lshrrev_b32 {v(T+9)}, 2, {v(T+8)}
    v_and_b32 {v(T+8)}, 3, {v(T+8)}
    v_lshlrev_b32 {v(T+8)}, 2, {v(T+8)}
    v_lshl_add_u32 {v(T+8)}, {v(T+9)}, 7, {v(T+8)}
    v_lshl_add_u32 {v(T+8)}, {v(T+5)}, 4, {v(T+8)}
    v_add_u32 {v(T+8)}, s43, {v(T+8)}
    v_cmp_gt_u32 vcc, 4, {v(T+6)}
    v_cndmask_b32 {v(vPS)}, {v(T+8)}, {v(T+7)}, vcc
    s_mul_i32 s40, {s(sW)}, 6144
    s_add_u32 s40, s40, {L_RW}
    v_lshl_add_u32 {v(vRW)}, v0, 4, s40
    s_mov_b32 {s(sM20)}, 0x000fffff
    s_mov_b32 {s(sM20+1)}, 0x000fffff
    s_mov_b32 {s(sMHI)}, 0xff00ff00
    s_mov_b32 {s(sMHI+1)}, 0xff00ff00
    s_mov_b32 {s(sMG)}, 0
    s_mov_b32 {s(sMG+1)}, -1
    v_mov_b32 {v(vSN)}, {SENT}
    ''')
    addp(A, sP, sWS, PS_OFF); addp(A, 40, sP, PS_SLOT)
    A.I(f'''
    s_mov_b64 exec, {s(sM20,2)}
    global_store_dword {v(vPS)}, {v(vSN)}, {s(sP,2)} sc1
    global_store_dword {v(vPS)}, {v(vSN)}, s[40:41] sc1
    s_mov_b64 exec, -1
    s_waitcnt lgkmcnt(0)
    ''')
    xcc_publish(A, sROLE, T + 12)
    warm(A, 'L_sc_step', 'L_sd_step', T + 12)
    addp(A, sX1, sX0, 16 * 896)
    def xdma():
        for k in range(8):
            L, t = k >> 1, k & 1
            A.I(f's_add_u32 m0, {s(sXB)}, {k*1024 - (64*L if L < 3 else 0)}')
            base = s(sX0 if t == 0 else sX1, 2)
            A.I(f'global_load_lds_dwordx4 {v(vX0)}, {base} offset:{64*L}' if L < 3 else f'global_load_lds_dwordx4 {v(vX1)}, {base}')
        addp(A, sX0, sX0, XI_SEG); addp(A, sX1, sX1, XI_SEG)
        if XB2: A.I(f's_xor_b32 {s(sXB)}, {s(sXB)}, 0x8000')
    def xread():
        for k in range(8): A.I(f'ds_read_b128 {v(RING+4*k,4)}, {v(vXB)} offset:{k*1024}')
        for L in range(4):
            A.I(f's_waitcnt lgkmcnt({6-2*L})')
            for k in range(8): A.I(f'v_mov_b32 {v(XF+8*L+k)}, {v(RING+8*L+4*(k&1)+(k>>1))}')
        for k in range(4): A.I(f'v_mov_b32 {v(SACC+4+k)}, 0')
        if XB2: A.I(f'v_xor_b32 {v(vXB)}, 0x8000, {v(vXB)}')
    XB2 = 'nox2' not in OPT
    SC = 'sc' in OPT
    ixw = {x: i for i, x in enumerate(seq)}
    def wq(i, hf):
        if i < 3: return ('v', R + 8 * i + 4 * hf)
        if i < 35: return ('a', 8 * (i - 3) + 4 * hf)
        return ('v', WV + 8 * (i - 35) + 4 * hf)
    def rq(q, n=4): return (v if q[0] == 'v' else a_)(q[1], n)
    if SC:
        VREG = [wq(i, hf) for i, (L, jj) in enumerate(seq) if L >= 2 and i >= 3 for hf in range(2)][:32]
        UR, TC, ACC, vUS, vVS, vL, vUB, vUR = 20, 44, 52, 108, 110, 114, 118, 122
        sQ, sK, sL = 46, 48, 50
        A.I(f'''
        s_load_dwordx4 s[52:55], s[0:1], {KA_WQ}
        v_lshrrev_b32 v20, 5, v0
        v_and_b32 v21, 31, v0
        v_and_b32 v22, 15, v0
        v_lshrrev_b32 v23, 4, v0
        s_and_b32 s40, {s(sW)}, 1
        s_lshl_b32 s40, s40, 1
        s_lshl_b32 s41, {s(sW)}, 3
        ''')
        for b in range(2):
            A.I(f'''
            v_add_u32 v24, {2*b}, v20
            v_lshlrev_b32 v25, 2, v24
            v_xor_b32 v25, v25, v21
            v_lshlrev_b32 v26, 13, v24
            v_lshl_add_u32 {v(vVS+b)}, v25, 4, v26
            v_xor_b32 {v(vVS+2+b)}, 32, {v(vVS+b)}
            v_xor_b32 v25, s40, v25
            v_add_u32 v24, s41, v24
            v_lshlrev_b32 v26, 13, v24
            v_lshl_add_u32 {v(vUS+b)}, v25, 4, v26
            ''')
        A.I(f'''
        v_and_b32 v24, 3, v22
        v_lshlrev_b32 v25, 2, v24
        v_bfe_u32 v26, v22, 2, 1
        v_lshl_add_u32 v25, v26, 1, v25
        v_lshrrev_b32 v27, 2, v22
        v_lshl_add_u32 v27, v27, 3, v24
        v_lshlrev_b32 v27, 9, v27
        v_lshlrev_b32 v26, 4, v26
        v_lshrrev_b32 v28, 3, v22
        v_lshl_add_u32 v26, v28, 2, v26
        v_add_u32 v26, v26, v24
        v_lshlrev_b32 v26, 9, v26
        s_lshl_b32 {s(sL)}, {s(sW)}, 15
        v_add_u32 v26, {s(sL)}, v26
        ''')
        for b in range(4):
            A.I(f'''
            v_add_u32 v24, {4*b}, v23
            v_xor_b32 v24, v24, v25
            v_lshl_add_u32 {v(vUB+b)}, v24, 4, v27
            v_lshl_add_u32 {v(vL+b)}, v24, 4, v26
            ''')
        A.I(f'''
        s_lshl_b32 s40, {s(sROLE)}, 9
        s_lshl_b32 s41, {s(sTMP)}, 18
        s_add_u32 s41, s41, s40
        s_waitcnt lgkmcnt(0)
        ''')
        addps(A, sQ, 52, 40); addps(A, sK, 54, 41)
        vm = Cnt(A, 'vmcnt', 63); l2 = Cnt(A, 'lgkmcnt', 15)
        for k in range(32):
            A.I(f's_add_u32 m0, {s(sL)}, {k*1024}')
            A.I(f'global_load_lds_dwordx4 {v(vVS + (k&1) + 2*((k>>3)&1))}, {s(sK,2)} {prep.LDNT}'); vm.add('V')
            if k & 1: addp(A, sK, sK, 32768)
        A.I(f's_lshl_b32 {s(sL)}, {s(sW)}, 12')
        slot = lambda j: [8, 9][j] if j < 2 else (j - 2) % 10
        def issueU(j):
            for kk in range(4):
                A.I(f's_add_u32 m0, {s(sL)}, {slot(j)*16384 + kk*1024}')
                A.I(f'global_load_lds_dwordx4 {v(vUS + (kk&1))}, {s(sQ,2)} {prep.LDNT}'); vm.add(('U', j))
                if kk == 1: addp(A, sQ, sQ, 32768)
            addp(A, sQ, sQ, 32 * 8192 - 32768)
        issueU(0); issueU(1)
        vm.wait('V')
        for t in range(4):
            for kk in range(8):
                A.I(f'ds_read_b128 {rq(VREG[8*t+kk])}, {v(vL+(kk&3))} offset:{(t>>1)*16384 + (t&1)*4096 + (kk>>2)*256}')
            A.I('s_waitcnt lgkmcnt(0)')
        tl(A, 1, 6, 44)
        A.I('s_barrier')
        for j in range(2, 10): issueU(j)
        for j in range(14):
            for b in range(4): A.I(f'v_add_u32 {v(vUR+b)}, {slot(j)*16384}, {v(vUB+b)}')
            vm.wait(('U', j)); A.I('s_barrier')
            if 1 <= j <= 4: issueU(j + 9)
            if j == 7: tl(A, 1, 7, 44)
            def rdu(kk):
                for tp in range(2):
                    A.I(f'ds_read_b128 {v(UR+8*(kk%3)+4*tp,4)}, {v(vUR+(kk&3))} offset:{tp*2048 + (kk>>2)*256}'); l2.add((kk, tp))
            rdu(0); rdu(1)
            for kk in range(8):
                for tp in range(2):
                    l2.wait((kk, tp))
                    for t in range(4):
                        acc = v(ACC + 8*t + 4*tp, 4)
                        A.I(f'v_mfma_f32_16x16x32_bf16 {acc}, {v(UR+8*(kk%3)+4*tp,4)}, {rq(VREG[8*t+kk])}, {acc if kk else 0}')
                        if tp == 0 and t == 0 and kk + 2 < 8: rdu(kk + 2)
            A.I(f's_mov_b32 s40, {f32(CSC)}\n s_mov_b32 s41, s40')
            for e in range(2):
                for tp in range(2):
                    q = wq(ixw[(e, j)], tp)
                    for k in range(2):
                        for y in range(2):
                            r = ACC + 8*(2*e+y) + 4*tp + 2*k
                            A.I(f'v_pk_mul_f32 {v(r,2)}, {v(r,2)}, s[40:41]')
                    for k in range(2):
                        for y in range(2):
                            r = ACC + 8*(2*e+y) + 4*tp + 2*k
                            d = q[1] + 2*k + y if q[0] == 'v' else TC + 2*k + y
                            A.I(f'v_cvt_pk_bf16_f32 {v(d)}, {v(r)}, {v(r+1)}')
                    if q[0] == 'a':
                        for k in range(4): A.I(f'v_accvgpr_write_b32 {a_(q[1]+k)}, {v(TC+k)}')
        A.I('s_barrier')
        for k in range(6): A.I(f'ds_write_b128 {v(vRW)}, {v(R+4*k,4)} offset:{k*1024}')
        tl(A, 1, 5, T)
    A.I(f'''
    v_mov_b32 {v(T+6)}, 0xff800000
    v_mov_b32 {v(T+7)}, 0xff800000
    ds_write_b64 {v(vCK)}, {v(T+6,2)} offset:160
    ''')
    xdma()
    if XB2: xdma()
    A.I(f'''
    s_mul_i32 s40, {s(sROLE)}, {MF_HEAD}
    s_and_b32 s41, {s(sW)}, 1
    s_mul_i32 s41, s41, {7*2048}
    s_mul_i32 s42, {s(sTMP)}, {14*2048}
    s_mul_i32 s43, {s(sTMP2)}, {14*2048}
    v_lshlrev_b32 {v(T+8)}, 4, v0
    v_add_u32 {v(108)}, s42, {v(T+8)}
    s_add_u32 s46, s43, s41
    v_add_u32 {v(109)}, s46, {v(T+8)}
    ''')
    addp(A, sWT, sWS, MF_OFF); addps(A, sWT, sWT, 40)
    def wload(i):
        L, jj = seq[i]
        addp(A, 40, sWT, ((L % 3) * 14 + jj) * 2048)
        for hf in range(2): A.I(f'global_load_dwordx4 {rq(wq(i, hf))}, {v(109 if L == 3 else 108)}, s[40:41] offset:{hf*1024} sc1')
    if SC or 'noprog' in OPT:
        xcc_check(A, 'sc0', 110)
        wait_tiles(A, 'sc', 110, 0, 'head', sROLE)
        tl(A, 1, 4, 110)
        for i, (L, jj) in enumerate(seq):
            if SC and L < 2: continue
            wload(i)
            if i > 23: A.I('s_waitcnt vmcnt(42)')
    else:
        xcc_check(A, 'sc', 110)
        addp(A, sMEM, sWS, MEMS_OFF)
        if SPL:
            A.I(f's_sub_u32 s40, {s(sLB2)}, {s(sLB)}'); addps(A, sMEM2, sMEM, 40)
            A.I(f's_mov_b32 m0, {s(sLB)}'); dma_split(A, vG0)
        else: A.I(f'''
        s_mov_b32 m0, {s(sLB)}
        global_load_lds_dwordx4 {v(vG0)}, {s(sMEM,2)} sc1
        s_mov_b64 exec, {s(sM48,2)}
        global_load_lds_dwordx4 {v(vG0)}, {s(sMEM,2)} offset:1024 sc1
        s_mov_b64 exec, -1
        ''')
        xread()
        for k in range(16): A.I(f'v_mov_b32 {v(TACC+k)}, 0')
        addp(A, sVX, sWS, PF_OFF)
        A.I(f'''
        s_lshl_b32 s40, {s(sROLE)}, 5
        v_bfe_u32 {v(110)}, v0, 3, 1
        v_lshl_add_u32 {v(110)}, {v(110)}, 9, s40
        v_and_b32 {v(111)}, 7, v0
        v_lshl_add_u32 {v(110)}, {v(111)}, 2, {v(110)}
        s_mov_b32 s46, 0x7f
L_sc_w:
        global_load_dword {v(111)}, {v(110)}, {s(sVX,2)} sc1
        ''')
        bud(A)
        A.I(f'''
        s_waitcnt vmcnt(0)
        v_cmp_ne_u32 vcc, 0, {v(111)}
        s_lshr_b32 s47, vcc_lo, 8
        s_and_b32 s47, s47, vcc_lo
        s_and_b32 s47, s47, s46
        s_andn2_b32 s46, s46, s47
        ''')
        for jb in range(7):
            A.I(f's_bitcmp0_b32 s47, {jb}\n s_cbranch_scc1 L_sc_w{jb}\n s_waitcnt vmcnt(48)')
            for j in (2 * jb, 2 * jb + 1):
                for L in range(3): wload(ixw[(L, j)])
            A.label(f'L_sc_w{jb}')
        A.I(f's_cmp_lg_u32 s46, 0\n s_cbranch_scc1 L_sc_w\n s_waitcnt vmcnt(48)')
        tl(A, 1, 4, 112)
        for jj in range(7): wload(ixw[(3, jj)])
    if SC or 'noprog' in OPT: xcc_check(A, 'sc', 110)
    if not SC:
        A.I('s_waitcnt vmcnt(14)' if 'noprog' not in OPT else 's_waitcnt vmcnt(0)')
        for k in range(6): A.I(f'ds_write_b128 {v(vRW)}, {v(R+4*k,4)} offset:{k*1024}')
    if SC or 'noprog' in OPT: xread()
    addp(A, sMEM, sWS, MEMS_OFF)
    if prof:
        A.I(f's_lshl_b32 s40, {s(sROLE)}, 2\n s_add_u32 s40, s40, {s(sW)}\n s_lshl_b32 s40, s40, 12')
        addp(A, sDBG, sWS, END_OFF); addps(A, sDBG, sDBG, 40)
    if SC or 'noprog' in OPT:
        for k in range(16): A.I(f'v_mov_b32 {v(TACC+k)}, 0')
    A.I(f'''
    v_and_b32 {v(T)}, 16, v0
    v_cmp_eq_u32 vcc, 0, {v(T)}
    v_mov_b32 {v(T)}, {f32(2.0 ** -LIM)}
    v_cndmask_b32 {v(vLO)}, 0, {v(T)}, vcc
    s_mov_b32 {s(sHI)}, {f32(2.0 ** (LIM - 1))}
    s_waitcnt vmcnt(0) lgkmcnt(0)
    ''')
    tl(A, 1, 1, T)
    if GX:
        A.I(f'''
L_gx:
        s_memrealtime s[40:41]
        s_waitcnt lgkmcnt(0)
        s_sub_u32 s40, s40, s92
        s_cmp_lt_u32 s40, {GX*100}
        s_cbranch_scc1 L_gx
        ''')
    if SC or 'noprog' in OPT: A.I(f's_cmp_eq_u32 {s(sEA)}, 0\n s_cbranch_scc1 L_sd_step')
    else: A.I(f's_barrier\n s_cmp_eq_u32 {s(sEA)}, 0\n s_cbranch_scc1 L_sd_go\n s_branch L_sc_go')
    def loop(tg, sc):
        if ALS >= 0:
            A.raw('.p2align 6, , 63')
            for _ in range(ALS): A.I('s_nop 0')
        A.label(f'L_{tg}_step')
        stamp(A, 0, prof)
        if prof: A.I('s_memtime s[62:63]')
        (mem_poll_split if SPL else mem_poll)(A, tg, vG0, vPR, TMP)
        A.label(f'L_{tg}_go')
        stamp(A, 1, prof)
        lg.clear()
        def rdfrag(jj):
            A.I(f'ds_read_b128 {v(RING + 4*(jj%8), 4)}, {v(vAF0)} offset:{jj*512}'); lg.add(('f', jj))
        GR = [SACC, SACC + 8]
        def rdg(jj):
            if 'nog' in OPT: return
            A.I(f'ds_read_b128 {v(GR[jj&1], 4)}, {v(vAF1)} offset:{jj*512}'); lg.add(('g', jj))
        def rdmemb(L):
            if 'nomb' in OPT: return
            ad = f'{v(vMB0)} offset:{L*512}' if L < 3 else f'{v(vMB1)}'
            A.I(f'ds_read_b128 {v(MEMB + 4*L, 4)}, {ad}'); lg.add(('m', L))
        def cvt(L, k): A.I(f'v_cvt_pk_bf16_f32 {v(TMP + 2*(L&1) + k)}, {v(TACC+4*L+2*k)}, {v(TACC+4*L+2*k+1)}')
        def twr(L):
            A.I(f'ds_write_b64 {v(vTW)}, {v(TMP + 2*(L&1), 2)} offset:{L*768}'); lg.add(('w', L))
        TOPD = RING + 4 * (8 % 8)
        top = {0: TOPA, 1: TOPB, 2: TOPD, 3: TOPC}
        def trr(L):
            A.I(f'ds_read_b64_tr_b16 {v(top[L], 2)}, {v(vTR)} offset:{L*768}'); lg.add(('x', L))
            A.I(f'ds_read_b64_tr_b16 {v(top[L]+2, 2)}, {v(vTR)} offset:{L*768+384}'); lg.add(('t', L))
        def smm1(L, t, first=False):
            lg.wait(('m', L)); lg.wait(('t', L))
            if t == 0: A.I(f'v_mfma_f32_16x16x32_bf16 {v(SACC,4)}, {v(MEMB + 4*L, 4)}, {v(top[L],4)}, {0 if first else v(SACC,4)}')
            else: A.I(f'v_smfmac_f32_16x16x64_bf16 {v(SACC+4,4)}, {v(top[L],4)}, {v(XF + 8*L, 8)}, {v(vIDX)}')
        def chk(j0, first=False):
            if 'nochk' in OPT and not first: return
            a, b = v(RING + 4*(j0 % 8)), v(RING + 4*((j0+1) % 8))
            if first: A.I(f'v_max_u32 {v(vCK)}, {a}, {b}')
            else: A.I(f'v_max3_u32 {v(vCK)}, {a}, {b}, {v(vCK)}')
        fill = {i: [] for i in range(49)}
        ix = {x: i for i, x in enumerate(seq)}
        if SPL:
            fill[0].append(lambda: rdfrag(2))
            fill[GB].append(lambda: A.I('s_waitcnt vmcnt(0)\n s_barrier')); fill[GB + 1].append(lambda: rdg(0)); fill[GB + 2].append(lambda: rdg(1))
        else:
            fill[0].append(lambda: rdg(0)); fill[1].append(lambda: rdfrag(2)); fill[ix[(1, 1)]].append(lambda: rdg(1))
        for k in range(3, 8): fill[ix[(0, k - PD)]].append(lambda k=k: rdfrag(k))
        for k in range(5): fill[ix[(3, k)]].append(lambda k=k: rdg(k + 2))
        for k in range(6): fill[ix[(2, k)]].append(lambda k=k: rdfrag(8 + k))
        e3 = ix[(3, 6)]
        if 'nol3' not in OPT: fill[e3 + 2].append(lambda: cvt(3, 0)); fill[e3 + 3].append(lambda: cvt(3, 1)); fill[e3 + 5].append(lambda: twr(3)); fill[e3 + 6].append(lambda: trr(3))
        for k, L in enumerate([3, 0, 1, 2]): fill[ix[(0, 10 + k)]].append(lambda L=L: rdmemb(L))
        for j0 in range(0, 14, 2):
            i = ix[(0, j0 + 1)]
            while i in (e3 + 2, e3 + 3): i += 1
            fill[i].append(lambda j0=j0: chk(j0, j0 == 0))
        fill[42].append(lambda: A.I(f'v_cmp_eq_u32 vcc, {s(sSENT)}, {v(vCK)}'))
        fill[43].append(lambda: cvt(0, 0)); fill[44].append(lambda: cvt(0, 1))
        fill[45] += [lambda: twr(0), lambda: cvt(1, 0)]; fill[46] += [lambda: trr(0), lambda: cvt(1, 1)]
        fill[47].append(lambda: twr(1)); fill[48].append(lambda: trr(1))
        fill[ix[(1, 5)]].insert(0, lambda: addp(A, 40, sP, 2 * PS_SLOT))
        fill[ix[(1, 6)]].insert(0, lambda: A.I(f's_mov_b64 exec, {s(sM20,2)}\n global_store_dword {v(vPS)}, {v(vSN)}, s[40:41] {sc}\n s_mov_b64 exec, -1'))
        rdfrag(0); rdfrag(1)
        for i, (L, jj) in enumerate(seq):
            lg.now = i; lg.wait_old(('f', jj) if L < 3 else ('g', jj), AGE)
            A.I(f'v_smfmac_f32_16x16x64_bf16 {v(TACC+4*L,4)}, {v(RING+4*(jj%8) if L < 3 else GR[jj&1],4)}, {wreg(i)}, {v(vIDX)}')
            if i == 0: stamp(A, 8, prof > 1)
            if i == 24: stamp(A, 9, prof > 1)
            for f in fill[i]: f()
        stamp(A, 2, prof > 1)
        smm1(3, 1); smm1(3, 0, True)
        cvt(2, 0); cvt(2, 1); twr(2); trr(2)
        A.I(f's_cbranch_vccnz L_{tg}_redo')
        for L in (0, 1): smm1(L, 1); smm1(L, 0)
        smm1(2, 0); smm1(2, 1)
        stamp(A, 10, prof > 1)
        Z = RING + 4
        A.I(f'''
        v_cndmask_b32 {v(Z)}, {v(SACC)}, {v(SACC+1)}, {s(sMHI,2)}
        v_cndmask_b32 {v(Z+1)}, {v(SACC+2)}, {v(SACC+3)}, {s(sMHI,2)}
        v_cndmask_b32 {v(Z)}, {v(Z)}, {v(Z+1)}, {s(sMG,2)}
        ds_write_b32 {v(vSM)}, {v(Z)}
        ds_write2_b32 {v(vSW)}, {v(SACC+4)}, {v(SACC+5)} offset0:0 offset1:44
        ds_write2_b32 {v(vSW)}, {v(SACC+6)}, {v(SACC+7)} offset0:88 offset1:132
        ''')
        stamp(A, 11, prof > 1)
        for k in range(FA): A.I(f'v_mov_b32 {v(TACC+k)}, 0')
        A.I('s_waitcnt lgkmcnt(0)')
        stamp(A, 12, prof > 1)
        A.I('s_barrier')
        stamp(A, 3, prof)
        for k in range(4): A.I(f'ds_read_b64 {v(Z+2*k,2)}, {v(vSR)} offset:{k*1408}')
        for k in range(FA, FA + FB): A.I(f'v_mov_b32 {v(TACC+k)}, 0')
        E, M = Z + 8, Z + 10
        A.I(f'''
        s_waitcnt lgkmcnt(2)
        v_pk_add_f32 {v(Z,2)}, {v(Z,2)}, {v(Z+2,2)}
        s_waitcnt lgkmcnt(0)
        v_pk_add_f32 {v(Z+4,2)}, {v(Z+4,2)}, {v(Z+6,2)}
        v_pk_add_f32 {v(Z,2)}, {v(Z,2)}, {v(Z+4,2)}
        ''')
        stamp(A, 13, prof > 1)
        def summ(a, check=False):
            A.I(f'''
            v_exp_f32 {v(E)}, {v(a)}
            v_exp_f32 {v(E+1)}, {v(a+1)}
            v_add_f32 {v(M)}, {v(E)}, {v(E+1)}
            ''')
            for k in (8, 4, 2, 1): A.I(f'v_add_f32_dpp {v(M)}, {v(M)}, {v(M)} {dpp(k)}')
            A.I(f'v_mov_b32 {v(M+1)}, {v(M)}')
            if check: A.I(f'v_med3_f32 {v(M+3)}, {v(M)}, {v(vLO)}, {s(sHI)}\n v_cmp_neq_f32 vcc, {v(M+3)}, {v(M)}')
            A.I(f'''
            v_permlane16_swap_b32 {v(M)}, {v(M+1)}
            v_add_f32 {v(M)}, {v(M)}, {v(M+1)}
            ''')
        def truemax():
            A.I(f'v_max_f32 {v(M)}, {v(Z)}, {v(Z+1)}')
            for k in (8, 4, 2, 1): A.I(f'v_max_f32_dpp {v(M)}, {v(M)}, {v(M)} {dpp(k)}')
            A.I(f'''
            v_mov_b32 {v(M+1)}, {v(M)}
            v_permlane16_swap_b32 {v(M)}, {v(M+1)}
            v_max_f32 {v(M)}, {v(M)}, {v(M+1)}
            v_sub_f32 {v(E)}, {v(Z)}, {v(M)}
            v_sub_f32 {v(E+1)}, {v(Z+1)}, {v(M)}
            ''')
            summ(E)
        def norm():
            A.I(f'''
            v_rcp_f32 {v(M+2)}, {v(M)}
            s_mov_b64 exec, {s(sM20,2)}
            v_pk_mul_f32 {v(E,2)}, {v(E,2)}, {v(M+2,2)} op_sel_hi:[1,0]
            v_cvt_pk_bf16_f32 {v(E)}, {v(E)}, {v(E+1)}
            ''')
        if 'max' in OPT: truemax(); norm()
        else: summ(Z, True); stamp(A, 14, prof > 1); norm(); A.I(f's_cbranch_vccnz L_{tg}_max')
        A.label(f'L_{tg}_norm')
        A.I(f'global_store_dword {v(vPS)}, {v(E)}, {s(sP,2)} {sc}')
        stamp(A, 4, prof)
        A.I(f's_mov_b64 exec, -1\n s_add_u32 {s(sSTEP)}, {s(sSTEP)}, 1\n s_cmp_ge_u32 {s(sSTEP)}, {NSTEP}\n s_cbranch_scc1 L_sc_end')
        if XB2: A.I(f's_cmp_ge_u32 {s(sSTEP)}, {NSTEP-1}\n s_cbranch_scc1 L_{tg}_nox')
        if 'nox' not in OPT: xdma()
        if tok.FIN: A.I(f's_branch L_{tg}_nof')
        A.label(f'L_{tg}_nox')
        if tok.FIN:
            A.I(f's_lshl_b32 s42, {s(sROLE)}, 2\n s_add_u32 s42, s42, {s(sW)}\n s_mul_i32 s42, s42, 10240')
            addp(A, 40, sWS, FX_OFF); addps(A, 40, 40, 42)
            A.I(f's_lshl_b32 s42, {s(sW)}, 13\n s_lshl_b32 s43, {s(sW)}, 11\n v_subrev_u32 {v(RING)}, {s(sLB)}, {v(vG0)}')
            for k in range(10):
                A.I(f's_add_u32 m0, s42, {131072 + (k>>2)*4096}' if k < 8 else f's_add_u32 m0, s43, 51200')
                A.I(f'global_load_lds_dwordx4 {v(RING)}, s[40:41] offset:{(k%4)*1024} sc1')
                if k % 4 == 3: addp(A, 40, 40, 4096)
            A.label(f'L_{tg}_nof')
        for k in range(6): A.I(f'ds_read_b128 {v(R+4*k,4)}, {v(vRW)} offset:{k*1024}')
        for k in range(FA + FB, 16): A.I(f'v_mov_b32 {v(TACC+k)}, 0')
        addp(A, sP, sP, PS_SLOT); addp(A, sMEM, sMEM, MEM_SLOT)
        if SPL: addp(A, sMEM2, sMEM2, MEM_SLOT)
        stamp_flush(A, prof)
        if not XB2: A.I('s_waitcnt vmcnt(0)')
        xread()
        if SS: A.I(f's_sleep {SS}')
        stamp(A, 5, prof)
        A.I(f's_branch L_{tg}_step')
        if 'max' not in OPT:
            A.label(f'L_{tg}_max'); A.I('s_mov_b64 exec, -1\n s_nop 1'); truemax(); norm(); A.I(f's_branch L_{tg}_norm')
        A.label(f'L_{tg}_redo')
        if prof: A.I(f's_add_u32 {s(sreg(15))}, {s(sreg(15))}, 1')
        A.I('s_waitcnt vmcnt(0) lgkmcnt(0)\n s_nop 15\n s_barrier')
        for k in range(6): A.I(f'ds_read_b128 {v(R+4*k,4)}, {v(vRW)} offset:{k*1024}')
        for k in range(16): A.I(f'v_mov_b32 {v(TACC+k)}, 0')
        for k in range(4): A.I(f'v_mov_b32 {v(SACC+4+k)}, 0')
        A.I(f's_branch L_{tg}_mp')
    loop('sc', ''); loop('sd', 'sc1')
    A.label('L_sc_end')
    tl(A, 1, 2, T)
    stamp_flush(A, prof)
    if tok.FIN:
        A.I(f'''
        v_mbcnt_lo_u32_b32 v0, -1, 0
        v_mbcnt_hi_u32_b32 v0, -1, v0
        v_and_b32 v1, 15, v0
        v_lshrrev_b32 v2, 4, v0
        v_lshlrev_b32 v3, 4, v0
        ''')
        tok.tt_setup(A)
        A.I(f's_lshl_b32 s42, {s(sW)}, 13\n s_add_u32 s42, s42, 131072\n v_add_u32 v4, s42, v3\n s_lshl_b32 s42, {s(sW)}, 11\n s_add_u32 s42, s42, 51200\n v_add_u32 v5, s42, v3')
        for k in range(10):
            A.I(f'ds_read_b128 {v(tok.TT.TB+4*k if k < 7 else tok.TT.SA+4*(k-7),4)}, {"v4" if k < 8 else "v5"} offset:{(k%8)*1024}')
        addp(A, sMEM, sMEM, MEM_SLOT); addp(A, sP, sWS, PX_OFF + 63 * PX_SEG)
        O = tok.tt_finish(A, 'sf', sMEM, False)
        A.I(f'''
        s_mov_b64 exec, {s(tok.TT.sM5,2)}
        s_cmp_eq_u32 {s(sEA)}, 0
        s_cbranch_scc1 L_sf_slow
        global_store_dwordx4 {v(tok.TT.vPX)}, {v(O,4)}, {s(sP,2)}
        s_endpgm
L_sf_slow:
        global_store_dwordx4 {v(tok.TT.vPX)}, {v(O,4)}, {s(sP,2)} sc1
        ''')
    A.I('s_endpgm')

def value(A, prof=0):
    L_MEM, L_RB, L_WL, L_VB = 0, 8192, 16384, 131072
    DEC = 'dec' in OPT
    H3R, NR = 136, NRES
    RBW = 32 * 48
    vIDX, vG0, vCK, vPR, vAF, vWL, vV0, vV1, vPM, vPX, vSN, vRWR, vRRD, vMS, vZ, vDUM, vFL, vVB, vVP = range(1, 20)
    ARING, HRING, VXF, WACC, WX, WY, OX, OY, PF, WV = 20, 36, 60, 92, 108, 112, 116, 120, 124, 176
    lg = Cnt(A, 'lgkmcnt', 15)
    def wreg(hh, j):
        k = (hh * 14 + j) * 8
        return a_(k, 8) if k < 256 else v(WV + k - 256, 8)
    A.label('L_value')
    A.I(f's_load_dwordx2 {s(sX0,2)}, s[0:1], {KA_OUT}\n s_waitcnt lgkmcnt(0)')
    chain_common(A)
    T = 20
    A.I(f's_mov_b32 {s(sTMP)}, {s(sROLE)}\n s_sub_u32 {s(sROLE)}, {s(sROLE)}, 16')
    idx_setup(A, vIDX, T)
    mem_poll_setup(A, vG0, vPR, T + 4, DEC)
    A.I(f'''
    v_lshlrev_b32 {v(vAF)}, 7, {v(T+1)}
    v_lshl_add_u32 {v(vAF)}, {v(T+2)}, 4, {v(vAF)}
    s_mul_i32 s40, {s(sW)}, 28672
    s_add_u32 s40, s40, {L_WL}
    v_lshl_add_u32 {v(vWL)}, v0, 4, s40
    s_lshl_b32 s40, {s(sW)}, 13
    v_lshl_add_u32 {v(vV0)}, v0, 4, s40
    v_add_u32 {v(vV1)}, 4096, {v(vV0)}
    s_mul_i32 s40, {s(sW)}, 2560
    v_and_b32 {v(T+5)}, 1, {v(T+1)}
    v_lshl_add_u32 {v(vPX)}, v0, 4, s40
    v_lshl_add_u32 {v(vPM)}, v0, 2, s40
    v_lshlrev_b32 {v(vFL)}, 2, {v(T)}
    s_and_b32 s41, {s(sW)}, 1
    s_lshl_b32 s41, s41, 13
    v_lshl_add_u32 {v(vVP)}, v0, 4, s41
    s_add_u32 {s(sXB)}, s41, {L_VB}
    v_lshl_add_u32 {v(vVB)}, v0, 4, {s(sXB)}
    s_mul_i32 s40, {s(sW)}, {RBW}
    s_add_u32 s40, s40, {L_RB}
    v_lshrrev_b32 {v(T+7)}, 5, v0
    v_lshl_add_u32 {v(T+7)}, {v(T+7)}, 4, {v(T)}
    v_mul_u32_u24 {v(T+7)}, 48, {v(T+7)}
    v_lshl_add_u32 {v(T+7)}, {v(T+5)}, 4, {v(T+7)}
    v_add_u32 {v(vRWR)}, s40, {v(T+7)}
    s_and_b32 s40, {s(sW)}, 1
    s_lshl_b32 s40, s40, 4
    s_lshr_b32 s41, {s(sW)}, 1
    s_lshl_b32 s41, s41, 2
    s_add_u32 s40, s40, s41
    v_bfe_u32 {v(T+7)}, v0, 2, 1
    v_lshlrev_b32 {v(T+7)}, 3, {v(T+7)}
    v_and_b32 {v(T+8)}, 3, v0
    v_add3_u32 {v(T+7)}, {v(T+7)}, {v(T+8)}, s40
    v_mul_u32_u24 {v(T+7)}, 48, {v(T+7)}
    v_lshrrev_b32 {v(T+8)}, 3, v0
    v_lshl_add_u32 {v(T+7)}, {v(T+8)}, 2, {v(T+7)}
    v_add_u32 {v(vRRD)}, {L_RB}, {v(T+7)}
    s_lshl_b32 s40, {s(sROLE)}, 9
    s_lshl_b32 s41, {s(sW)}, 7
    s_add_u32 s40, s40, s41
    v_lshl_add_u32 {v(vMS)}, v0, 1, s40
    v_mov_b32 {v(vSN)}, {SENT}
    ''')
    addp(A, sMEM, sWS, MEMS_OFF); addp(A, 40, sMEM, MEM_SLOT); addp(A, 42, sMEM, 2 * MEM_SLOT)
    A.I(f'''
    global_store_short {v(vMS)}, {v(vSN)}, s[40:41] sc1
    global_store_short {v(vMS)}, {v(vSN)}, s[42:43] sc1
    ''')
    xcc_publish(A, sTMP, T + 12)
    warm(A, 'L_va_step', 'L_vb_step', T + 12)
    A.I(f'''
    s_mul_i32 s40, {s(sW)}, {4*MF_HEAD}
    s_mul_i32 s41, {s(sROLE)}, {14*2048}
    s_add_u32 s40, s40, s41
    s_cmp_ge_u32 {s(sROLE)}, 8
    s_cselect_b32 {s(sTMP)}, 1, 0
    v_lshlrev_b32 {v(T+8)}, 4, v0
    ''')
    addp(A, sWT, sWS, MF_OFF + MF_MAT); addps(A, sWT, sWT, 40)
    addp(A, sVX, sWS, PF_OFF + 1024)
    A.I(f'''
    s_lshl_b32 s40, {s(sTMP)}, 9
    s_lshl_b32 s41, {s(sW)}, 7
    s_add_u32 s40, s40, s41
    v_and_b32 {v(T+12)}, 31, v0
    v_lshl_add_u32 {v(T+12)}, {v(T+12)}, 2, s40
    s_mov_b32 s46, 15
L_va_w:
    global_load_dword {v(T+13)}, {v(T+12)}, {s(sVX,2)} sc1
    ''')
    bud(A)
    A.I(f's_waitcnt vmcnt(0)\n v_cmp_eq_u32 vcc, 0, {v(T+13)}\n s_mov_b32 s47, vcc_lo')
    for hh in (3, 0, 1, 2):
        A.I(f'''
        s_bitcmp0_b32 s46, {hh}
        s_cbranch_scc1 L_va_w{hh}
        s_and_b32 s40, s47, {0xff << (8*hh)}
        s_cbranch_scc1 L_va_w{hh}
        s_bitset0_b32 s46, {hh}
        s_waitcnt vmcnt(32)
        ''')
        addp(A, 40, sWT, hh * MF_HEAD)
        for q in range(28):
            if hh == 3: dst = v(60 + 4 * q, 4)
            else:
                k = 112 * hh + 4 * q; dst = a_(k, 4) if k < 256 else v(WV + k - 256, 4)
            A.I(f'global_load_dwordx4 {dst}, {v(T+8)}, s[40:41] offset:{(q%4)*1024} sc1')
            if q % 4 == 3 and q < 27: addp(A, 40, 40, 4096)
        A.label(f'L_va_w{hh}')
    A.I(f's_cmp_lg_u32 s46, 0\n s_cbranch_scc1 L_va_w\n s_waitcnt vmcnt(0)')
    tl(A, 1, 4, T + 14)
    for k in range(2 * NR, 28): A.I(f'ds_write_b128 {v(vWL)}, {v(60+4*k,4)} offset:{k*1024}')
    A.I('s_waitcnt lgkmcnt(0)')
    for k in range(8 * NR): A.I(f'v_mov_b32 {v(H3R+k)}, {v(60+k)}')
    assist(A, 'va_as', sROLE, T + 12)
    xcc_check(A, 'va', T + 12)
    addp(A, sP, sWS, PS_OFF); addp(A, sFL, sWS, FL_OFF); addp(A, sMT, sWS, MEMT_OFF + (62 if tok.FIN else 63) * MEMT_SLOT)
    A.I(f's_mul_i32 s40, {s(sROLE)}, {VX_SC}'); addp(A, sVX, sWS, VX_OFF); addps(A, sVX, sVX, 40)
    A.I('s_waitcnt vmcnt(0) lgkmcnt(0)')
    tl(A, 1, 1, T)
    def flagwait(tag, loaded):
        if loaded:
            A.I(f'v_cmp_eq_u32 vcc, 0, {v(vDUM)}\n s_cbranch_vccz L_{tag}_ok')
        A.I(f'L_{tag}:\n global_load_dword {v(vDUM)}, {v(vFL)}, {s(sFL,2)} sc1')
        bud(A)
        A.I(f'''
        s_waitcnt vmcnt(0)
        v_cmp_eq_u32 vcc, 0, {v(vDUM)}
        s_cbranch_vccnz L_{tag}
L_{tag}_ok:
        ''')
    flagwait('va_f0', False)
    tl(A, 1, 3, T)
    addp(A, sFL, sFL, 256)
    if prof:
        A.I(f's_add_u32 s40, {s(sROLE)}, 16\n s_lshl_b32 s40, s40, 2\n s_add_u32 s40, s40, {s(sW)}\n s_lshl_b32 s40, s40, 12')
        addp(A, sDBG, sWS, END_OFF); addps(A, sDBG, sDBG, 40)
    def vxload(k, force=False):
        if 'novx' in OPT and not force: return
        hh, t = k >> 1, k & 1
        A.I(f'global_load_dwordx4 {v(VXF+16*t+4*hh,4)}, {v(vV0 if hh < 2 else vV1)}, {s(sVX,2)} offset:{(hh&1)*2048+t*1024} sc1')
    def vxearly(tag):
        if not DEC:
            for k in range(VE): vxload(k)
            return
        A.I(f's_cmp_lt_u32 {s(sW)}, 2\n s_cbranch_scc1 L_{tag}')
        addp(A, 40, sVX, 4096)
        for k in range(8):
            A.I(f's_add_u32 m0, {s(sXB)}, {(k>>2)*4096}')
            A.I(f'global_load_lds_dwordx4 {v(vVP)}, {s(sVX if k < 4 else 40,2)} offset:{(k&3)*1024} sc1')
        for k in range(8): vxload(k)
        A.label(f'L_{tag}')
    def hslot(j): return [HRING, HRING + 8, HRING + 16, 168][(j - NR) % HD]
    def rdh(j):
        if j < NR or j >= 14: return
        for k in range(2):
            A.I(f'ds_read_b128 {v(hslot(j)+4*k,4)}, {v(vWL)} offset:{(2*j+k)*1024}'); lg.add(('h', j))
    def rda(j):
        A.I(f'ds_read_b128 {v(ARING+4*(j%4),4)}, {v(vAF)} offset:{j*512}'); lg.add(('a', j))
    def prep_():
        for k in range(16): A.I(f'v_mov_b32 {v(WACC+k)}, 0')
        for j in range(NR, NR + HD - 1): rdh(j)
    for k in range(8): A.I(f'v_mov_b32 {v(OX+k)}, 0')
    vxearly('va_e0')
    if 'novx' in OPT:
        for k in range(8): vxload(k, True)
    prep_()
    P2, AC, BP, G, vA, vF2, vW, vRd, vO, vBa, vGa = 176, 216, 232, 236, 116, 117, 118, 119, 120, 121, 122
    def fin_setup():
        U = 124
        A.I(f'''
        v_min_u32 {v(U)}, 38, v0
        v_cmp_lt_u32 vcc, 22, {v(U)}
        v_cndmask_b32 {v(U+1)}, 0, 9, vcc
        v_add_lshl_u32 {v(U)}, {v(U)}, {v(U+1)}, 2
        v_min_u32 {v(vF2)}, {4*38}, {v(U)}
        s_mul_i32 s40, {s(sW)}, 10240
        v_lshl_add_u32 {v(vA)}, v0, 4, s40
        v_and_b32 {v(U)}, 15, v0
        v_lshrrev_b32 {v(U+1)}, 4, v0
        s_mul_i32 s40, {s(sW)}, 4608
        s_add_u32 s40, s40, {L_WL}
        v_mul_u32_u24 {v(U+2)}, 144, {v(U)}
        v_lshl_add_u32 {v(U+2)}, {v(U+1)}, 4, {v(U+2)}
        v_add_u32 {v(vW)}, s40, {v(U+2)}
        v_lshrrev_b32 {v(U)}, 3, v0
        v_lshl_add_u32 {v(U)}, {s(sW)}, 3, {v(U)}
        v_and_b32 {v(U+1)}, 7, v0
        v_mul_u32_u24 {v(U+2)}, 144, {v(U)}
        v_lshl_add_u32 {v(U+2)}, {v(U+1)}, 4, {v(U+2)}
        v_add_u32 {v(vRd)}, {L_WL}, {v(U+2)}
        s_lshl_b32 s40, {s(sROLE)}, 6
        v_mul_u32_u24 {v(U+2)}, 896, {v(U)}
        v_lshl_add_u32 {v(U+2)}, {v(U+1)}, 3, {v(U+2)}
        v_add_u32 {v(vO)}, s40, {v(U+2)}
        v_lshlrev_b32 {v(vBa)}, 1, {v(vO)}
        v_lshlrev_b32 {v(vGa)}, 2, {v(U)}
        ''')
    A.I(f's_cmp_eq_u32 {s(sEA)}, 0\n s_cbranch_scc1 L_vb_step')
    def loop(tg, sc):
        if ALV >= 0:
            A.raw('.p2align 6, , 63')
            for _ in range(ALV): A.I('s_nop 0')
        A.label(f'L_{tg}_step')
        stamp(A, 0, prof)
        (mem_poll_half if DEC else mem_poll)(A, tg, vG0, vPR, PF + 10)
        stamp(A, 1, prof)
        lg.clear()
        rda(0); rda(1); rda(2)
        addp(A, 40, sMEM, 3 * MEM_SLOT)
        A.I(f'global_store_short {v(vMS)}, {v(vSN)}, s[40:41] {sc}')
        for j in range(14):
            lg.wait(('a', j))
            for hh in range(4):
                if hh == 3: lg.wait(('h', j))
                w = wreg(hh, j) if hh < 3 else v(H3R + 8 * j, 8) if j < NR else v(hslot(j), 8)
                A.I(f'v_smfmac_f32_16x16x64_bf16 {v(WACC+4*hh,4)}, {v(ARING+4*(j%4),4)}, {w}, {v(vIDX)}' if 'now' not in OPT else 's_nop 3')
                if hh == 0 and j >= NR: rdh(j + HD - 1)
                if hh == 1 and j + 3 < 14: rda(j + 3)
                if hh == 2 and j < 8 - VE and not DEC: vxload(7 - j if 'vrev' in OPT else j + VE)
                if hh == 2 and j == 8 - VE: A.I(f'global_load_dword {v(vDUM)}, {v(vFL)}, {s(sFL,2)} sc1')
                if hh == 2:
                    if j == 0: A.I(f'v_mov_b32 {v(vCK)}, {v(ARING)}')
                    else: A.I(f'v_max_u32 {v(vCK)}, {v(vCK)}, {v(ARING+4*(j%4))}')
                if hh == 3 and j == 13: A.I(f'v_cmp_eq_u32 vcc, {s(sSENT)}, {v(vCK)}')
        A.I(f's_cbranch_vccnz L_{tg}_redo')
        if tok.FIN:
            A.I(f'''
            s_cmp_lt_u32 {s(sSTEP)}, {NSTEP-3}
            s_cbranch_scc1 L_{tg}_nr
            s_cmp_eq_u32 {s(sSTEP)}, {NSTEP}
            s_cbranch_scc1 L_va_fin
            v_cmp_eq_u32 vcc, 0, {v(PF+11)}
            s_cbranch_vccz L_{tg}_nr
            ''')
            addp(A, 40, sWS, FL_OFF + 63 * 256 + 64)
            A.I(f'L_{tg}_ex:\n global_load_dword {v(PF+11)}, {v(vFL)}, s[40:41] sc1')
            bud(A)
            A.I(f's_waitcnt vmcnt(0)\n v_cmp_eq_u32 vcc, 0, {v(PF+11)}\n s_cbranch_vccnz L_{tg}_ex\nL_{tg}_nr:')
        if DEC:
            A.I(f's_waitcnt vmcnt(0)\n s_barrier\n s_cmp_ge_u32 {s(sW)}, 2\n s_cbranch_scc1 L_{tg}_nv')
            for k in range(8): A.I(f'ds_read_b128 {v(VXF+16*(k&1)+4*(k>>1),4)}, {v(vVB)} offset:{k*1024}')
            A.label(f'L_{tg}_nv')
        for k in range(2):
            for p in range(2):
                A.I(f'v_cvt_pk_bf16_f32 {v(WX+2*k+p)}, {v(WACC+8*p+2*k)}, {v(WACC+8*p+2*k+1)}')
                A.I(f'v_cvt_pk_bf16_f32 {v(WY+2*k+p)}, {v(WACC+8*p+4+2*k)}, {v(WACC+8*p+4+2*k+1)}')
        for k in range(4): A.I(f'v_permlane32_swap_b32 {v(WX+k)}, {v(WY+k)}')
        if DEC: A.I('s_waitcnt lgkmcnt(0)')
        stamp(A, 2, prof)
        if prof: A.I('s_waitcnt vmcnt(0)'); stamp(A, 6, prof)
        F = PF
        if 'nospec' in OPT:
            for k in range(8): A.I(f'v_mov_b32 {v(OX+k)}, 0')
        if PS_: A.I(f's_sleep {PS_}')
        A.I(f'''
L_{tg}_pp:
        global_load_dwordx4 {v(F,4)}, {v(vPX)}, {s(sP,2)} sc1
        global_load_dwordx4 {v(F+4,4)}, {v(vPX)}, {s(sP,2)} offset:1024 sc1
        global_load_dword {v(F+8)}, {v(vPM)}, {s(sP,2)} offset:2048 sc1
        global_load_dword {v(F+9)}, {v(vPM)}, {s(sP,2)} offset:2304 sc1
        ''')
        bud(A)
        if 'nospec' in OPT:
            A.I(f'''
            s_waitcnt vmcnt(0)
            v_max3_u32 {v(vCK)}, {v(F)}, {v(F+4)}, {v(F+8)}
            v_max_u32 {v(vCK)}, {v(vCK)}, {v(F+9)}
            v_cmp_eq_u32 vcc, {s(sSENT)}, {v(vCK)}
            s_cbranch_vccnz L_{tg}_pp
            v_smfmac_f32_16x16x64_bf16 {v(OX,4)}, {v(F,4)}, {v(VXF,8)}, {v(vIDX)}
            v_smfmac_f32_16x16x64_bf16 {v(OY,4)}, {v(F,4)}, {v(VXF+16,8)}, {v(vIDX)}
            v_smfmac_f32_16x16x64_bf16 {v(OX,4)}, {v(F+4,4)}, {v(VXF+8,8)}, {v(vIDX)}
            v_smfmac_f32_16x16x64_bf16 {v(OY,4)}, {v(F+4,4)}, {v(VXF+24,8)}, {v(vIDX)}
            v_smfmac_f32_16x16x32_bf16 {v(OX,4)}, {v(F+8,2)}, {v(WX,4)}, {v(vIDX)}
            v_smfmac_f32_16x16x32_bf16 {v(OY,4)}, {v(F+8,2)}, {v(WY,4)}, {v(vIDX)}
            ''')
        elif 'spec2' in OPT:
            for k in range(8): A.I(f'v_mov_b32 {v(OX+k)}, 0')
            A.I(f'''
            s_waitcnt vmcnt(0)
            v_max3_u32 {v(vCK)}, {v(F)}, {v(F+4)}, {v(F+8)}
            v_max_u32 {v(vCK)}, {v(vCK)}, {v(F+9)}
            v_cmp_eq_u32 vcc, {s(sSENT)}, {v(vCK)}
            v_smfmac_f32_16x16x64_bf16 {v(OX,4)}, {v(F,4)}, {v(VXF,8)}, {v(vIDX)}
            v_smfmac_f32_16x16x64_bf16 {v(OY,4)}, {v(F,4)}, {v(VXF+16,8)}, {v(vIDX)}
            s_cbranch_vccnz L_{tg}_pp
            v_smfmac_f32_16x16x64_bf16 {v(OX,4)}, {v(F+4,4)}, {v(VXF+8,8)}, {v(vIDX)}
            v_smfmac_f32_16x16x64_bf16 {v(OY,4)}, {v(F+4,4)}, {v(VXF+24,8)}, {v(vIDX)}
            v_smfmac_f32_16x16x32_bf16 {v(OX,4)}, {v(F+8,2)}, {v(WX,4)}, {v(vIDX)}
            v_smfmac_f32_16x16x32_bf16 {v(OY,4)}, {v(F+8,2)}, {v(WY,4)}, {v(vIDX)}
            ''')
        else:
            for k in range(8): A.I(f'v_mov_b32 {v(OX+k)}, 0')
            A.I(f'''
            s_waitcnt vmcnt(3)
            v_smfmac_f32_16x16x64_bf16 {v(OX,4)}, {v(F,4)}, {v(VXF,8)}, {v(vIDX)}
            v_smfmac_f32_16x16x64_bf16 {v(OY,4)}, {v(F,4)}, {v(VXF+16,8)}, {v(vIDX)}
            s_waitcnt vmcnt(0)
            v_max3_u32 {v(vCK)}, {v(F)}, {v(F+4)}, {v(F+8)}
            v_smfmac_f32_16x16x64_bf16 {v(OX,4)}, {v(F+4,4)}, {v(VXF+8,8)}, {v(vIDX)}
            v_max_u32 {v(vCK)}, {v(vCK)}, {v(F+9)}
            v_smfmac_f32_16x16x64_bf16 {v(OY,4)}, {v(F+4,4)}, {v(VXF+24,8)}, {v(vIDX)}
            v_cmp_eq_u32 vcc, {s(sSENT)}, {v(vCK)}
            v_smfmac_f32_16x16x32_bf16 {v(OX,4)}, {v(F+8,2)}, {v(WX,4)}, {v(vIDX)}
            v_smfmac_f32_16x16x32_bf16 {v(OY,4)}, {v(F+8,2)}, {v(WY,4)}, {v(vIDX)}
            s_cbranch_vccnz L_{tg}_pp
            ''')
        stamp(A, 3, prof)
        stamp(A, 8, prof > 1)
        A.flush()
        for r in range(4): A.I(f'v_permlane32_swap_b32 {v(OX+r)}, {v(OY+r)}')
        A.I(f'''
        v_pk_add_f32 {v(OX,2)}, {v(OX,2)}, {v(OY,2)}
        v_pk_add_f32 {v(OX+2,2)}, {v(OX+2,2)}, {v(OY+2,2)}
        ds_write_b128 {v(vRWR)}, {v(OX,4)}
        ''')
        stamp(A, 9, prof > 1)
        for k in range(FC): A.I(f'v_mov_b32 {v(WACC+k)}, 0')
        A.I('s_waitcnt lgkmcnt(0)')
        stamp(A, 10, prof > 1)
        A.I('s_barrier')
        stamp(A, 11, prof > 1)
        Z = ARING + 4
        for k in range(4): A.I(f'ds_read_b32 {v(Z+k)}, {v(vRRD)} offset:{k*RBW}')
        for k in range(FC, FC + FD): A.I(f'v_mov_b32 {v(WACC+k)}, 0')
        addp(A, sMEM, sMEM, MEM_SLOT); addp(A, sP, sP, PS_SLOT)
        A.I('s_waitcnt lgkmcnt(0)')
        stamp(A, 12, prof > 1)
        A.I(f'''
        v_pk_add_f32 {v(Z,2)}, {v(Z,2)}, {v(Z+2,2)}
        v_add_f32 {v(Z)}, {v(Z)}, {v(Z+1)}
        v_cvt_pk_bf16_f32 {v(vZ)}, {v(Z)}, {v(Z)}
        ''')
        A.I(f'global_store_short {v(vMS)}, {v(vZ)}, {s(sMEM,2)} {sc}')
        stamp(A, 4, prof)
        A.I(f's_add_u32 {s(sSTEP)}, {s(sSTEP)}, 1')
        if not tok.FIN: A.I(f's_cmp_ge_u32 {s(sSTEP)}, {NSTEP}\n s_cbranch_scc1 L_va_end')
        flagwait(tg + '_f1', True)
        addp(A, sVX, sVX, 14 * VX_SC); addp(A, sFL, sFL, 256)
        vxearly(tg + '_e1')
        if tok.FIN:
            A.I(f's_cmp_lt_u32 {s(sSTEP)}, {NSTEP-3}\n s_cbranch_scc1 L_{tg}_nd\n s_cmp_eq_u32 {s(sSTEP)}, {NSTEP}\n s_cbranch_scc1 L_{tg}_fs')
            addp(A, 40, sWS, FL_OFF + 63 * 256 + 64)
            A.I(f'global_load_dword {v(PF+11)}, {v(vFL)}, s[40:41] sc1\n s_cmp_lg_u32 {s(sSTEP)}, {NSTEP-1}\n s_cbranch_scc1 L_{tg}_nd')
            if DIR: A.I(f'global_store_short {v(vMS)}, {v(vZ)}, {s(sMT,2)} sc1')
            A.I(f's_branch L_{tg}_nd\nL_{tg}_fs:')
            tl(A, 1, 2, T)
            fin_setup()
            A.label(f'L_{tg}_nd')
        lg.clear(); prep_()
        stamp(A, 5, prof)
        stamp_flush(A, prof)
        A.I(f's_branch L_{tg}_step')
        A.label(f'L_{tg}_redo')
        if prof: A.I(f's_add_u32 {s(sreg(15))}, {s(sreg(15))}, 1')
        A.I('s_waitcnt vmcnt(0) lgkmcnt(0)\n s_nop 15\n s_barrier')
        lg.clear(); prep_()
        A.I(f's_branch L_{tg}_mp')
    loop('va', ''); loop('vb', 'sc1')
    A.label('L_va_end')
    A.I(f'global_store_short {v(vMS)}, {v(vZ)}, {s(sMT,2)} sc1')
    tl(A, 1, 2, T)
    stamp_flush(A, prof)
    A.I('s_endpgm')
    if not tok.FIN: return
    A.label('L_va_fin')
    A.I('s_barrier\n s_nop 7')
    for hh in range(4):
        for k in range(2): A.I(f'v_cvt_pk_bf16_f32 {v(WX+2*hh+k)}, {v(WACC+4*hh+2*k)}, {v(WACC+4*hh+2*k+1)}')
    for k in range(4): A.I(f'v_permlane32_swap_b32 {v(WX+k)}, {v(WY+k)}')
    for k in (0, 1, 4, 5): A.I(f'v_permlane16_swap_b32 {v(WX+k)}, {v(WX+k+2)}')
    addp(A, sFL, sWS, FL_OFF + 63 * 256 + 64); addp(A, sP, sWS, PX_OFF + 63 * PX_SEG); addp(A, 42, sP, 4096); addp(A, 46, sP, 8192)
    A.I(f'v_mov_b32 {v(vFL)}, {v(vF2)}')
    flagwait('va_f2', False)
    addp(A, 40, sWS, BP_OFF); A.I(f'global_load_dwordx4 {v(BP,4)}, {v(vBa)}, s[40:41] sc1')
    addp(A, 40, sWS, G_OFF + 63 * 128); A.I(f'global_load_dword {v(G)}, {v(vGa)}, s[40:41] sc1')
    addp(A, sX0, sX0, 63 * 32 * 896)
    A.label('L_va_fp')
    for i in range(10): A.I(f'global_load_dwordx4 {v(P2+4*i,4)}, {v(vA)}, {s([sP, 42, 46][i>>2],2)} offset:{(i%4)*1024} sc1')
    bud(A)
    A.I('s_waitcnt vmcnt(0)')
    A.I(f'v_max_u32 {v(vCK)}, {v(P2)}, {v(P2+4)}')
    for i in range(2, 10, 2): A.I(f'v_max3_u32 {v(vCK)}, {v(vCK)}, {v(P2+4*i)}, {v(P2+4*i+4)}')
    A.I(f'v_cmp_eq_u32 vcc, {s(sSENT)}, {v(vCK)}')
    n = 0
    for k in range(5):
        for tt in range(2):
            for ct in range(2):
                d = v(AC + 8*ct + 4*tt, 4)
                a = v(VXF + 16*ct + 4*k, 4) if k < 4 else v(WY if ct else WX, 4)
                A.I(f'v_mfma_f32_16x16x32_bf16 {d}, {a}, {v(P2+8*k+4*tt,4)}, {d if k else 0}')
                n += 1
                if n == 2: A.I('s_cbranch_vccnz L_va_fp')
    for tt in range(2):
        for ct in range(2): A.I(f'ds_write_b128 {v(vW)}, {v(AC+8*ct+4*tt,4)} offset:{tt*16*144 + ct*64}')
    A.I('s_waitcnt lgkmcnt(0)\n s_barrier')
    for k in range(4): A.I(f'ds_read_b128 {v(P2+4*k,4)}, {v(vRd)} offset:{k*4608}')
    A.I('s_waitcnt lgkmcnt(0)')
    for a, b in ((0, 4), (8, 12), (0, 8)):
        for k in (0, 2): A.I(f'v_pk_add_f32 {v(P2+a+k,2)}, {v(P2+a+k,2)}, {v(P2+b+k,2)}')
    for k in range(4): A.I(f'v_fmac_f32 {v(BP+k)}, {v(G)}, {v(P2+k)}')
    A.I(f'''
    v_cvt_pk_bf16_f32 {v(BP)}, {v(BP)}, {v(BP+1)}
    v_cvt_pk_bf16_f32 {v(BP+1)}, {v(BP+2)}, {v(BP+3)}
    global_store_dwordx2 {v(vO)}, {v(BP,2)}, {s(sX0,2)} {tok.OST}
    ''')
    if TL['on']: A.I('s_waitcnt vmcnt(0)')
    tl(A, 1, 7, T)
    A.I('s_endpgm')

def helper(A):
    vG0, vX, vP, vM, D = 1, 2, 3, 4, 8
    A.label('L_helper')
    A.I(f's_load_dwordx2 {s(sX0,2)}, s[0:1], {KA_X}\n s_waitcnt lgkmcnt(0)')
    chain_common(A)
    xcc_publish(A, sROLE, 20)
    A.I(f'''
    s_mul_i32 {s(sLB)}, {s(sW)}, 1792
    v_lshlrev_b32 {v(vG0)}, 4, v0
    v_add_u32 {v(vG0)}, {s(sLB)}, {v(vG0)}
    s_mov_b32 {s(sM48)}, -1
    s_mov_b32 {s(sM48+1)}, 0xffff
    s_mul_i32 s40, {s(sW)}, 7168
    v_min_u32 {v(vX)}, 55, v0
    v_lshl_add_u32 {v(vX)}, {v(vX)}, 7, s40
    s_mul_i32 s40, {s(sW)}, 2560
    v_min_u32 {v(vP)}, 19, v0
    v_lshl_add_u32 {v(vP)}, {v(vP)}, 7, s40
    v_min_u32 {v(vM)}, 13, v0
    v_lshl_add_u32 {v(vM)}, {v(vM)}, 7, {s(sLB)}
    v_add_u32 {v(vM)}, {4*MEM_SLOT}, {v(vM)}
    v_add_u32 {v(vP)}, {PS_SLOT * (2 if 'mtouch' in OPT else 0)}, {v(vP)}
    v_mov_b32 {v(D+4)}, 0
    v_mov_b32 {v(D+5)}, 0
    v_mov_b32 {v(D+6)}, 0
    v_mov_b32 {v(D+7)}, 0
    ''')
    xcc_check(A, 'he', 20)
    for k in range(2):
        addp(A, 40, sWS, PS_OFF + (k - 2) * PS_SLOT); A.I(f'global_load_dword v21, {v(vP)}, s[40:41] sc1')
    for k in range(4):
        addp(A, 40, sWS, MEMS_OFF + (k - 4) * MEM_SLOT); A.I(f'global_load_dword v21, {v(vM)}, s[40:41] sc1')
    wait_tiles(A, 'he', 20, 1, 'all', None, 8)
    A.I(f's_mov_b32 {s(sTMP)}, 14'); assist(A, 'he_as', sTMP, 20)
    addp(A, sMEM, sWS, MEMS_OFF); addp(A, sMT, sWS, MEMT_OFF); addp(A, sP, sWS, PS_OFF)
    addp(A, sX0, sX0, XI_SEG)
    A.I(f'''
    global_load_dword v20, {v(vX)}, {s(sX0,2)}
    global_load_dword v21, {v(vP)}, {s(sP,2)} sc1
    ''')
    addp(A, sX0, sX0, XI_SEG); addp(A, sP, sP, PS_SLOT)
    if 'nox2' not in OPT:
        A.I(f'global_load_dword v20, {v(vX)}, {s(sX0,2)}'); addp(A, sX0, sX0, XI_SEG)
    A.I(f'''
L_he_step:
    s_sleep {HSLEEP}
    global_load_dwordx4 {v(D,4)}, {v(vG0)}, {s(sMEM,2)} sc1
    s_mov_b64 exec, {s(sM48,2)}
    global_load_dwordx4 {v(D+4,4)}, {v(vG0)}, {s(sMEM,2)} offset:1024 sc1
    s_mov_b64 exec, -1
    ''')
    bud(A)
    A.I(f'''
    s_waitcnt vmcnt(0)
    v_max3_u32 v16, {v(D)}, {v(D+1)}, {v(D+2)}
    v_max3_u32 v16, v16, {v(D+3)}, {v(D+4)}
    v_max3_u32 v16, v16, {v(D+5)}, {v(D+6)}
    v_max_u32 v16, v16, {v(D+7)}
    v_cmp_eq_u32 vcc, {s(sSENT)}, v16
    s_cbranch_vccnz L_he_step
    s_add_u32 {s(sSTEP)}, {s(sSTEP)}, 1
    global_store_dwordx4 {v(vG0)}, {v(D,4)}, {s(sMT,2)} sc1
    s_mov_b64 exec, {s(sM48,2)}
    global_store_dwordx4 {v(vG0)}, {v(D+4,4)}, {s(sMT,2)} offset:1024 sc1
    s_mov_b64 exec, -1
    global_load_dword v21, {v(vP)}, {s(sP,2)} sc1
    {f'global_load_dword v22, {v(vM)}, {s(sMEM,2)} sc1' if 'mtouch' in OPT else ''}
    s_cmp_ge_u32 {s(sSTEP)}, {NSTEP - ('nox2' not in OPT)}
    s_cbranch_scc1 L_he_nox
    global_load_dword v20, {v(vX)}, {s(sX0,2)}
L_he_nox:
    ''')
    addp(A, sX0, sX0, XI_SEG); addp(A, sP, sP, PS_SLOT); addp(A, sMEM, sMEM, MEM_SLOT); addp(A, sMT, sMT, MEMT_SLOT)
    A.I(f'''
    s_cmp_le_u32 {s(sSTEP)}, {NSTEP - 1 - (tok.FIN and DIR)}
    s_cbranch_scc1 L_he_step
    ''')
    if tok.FIN:
        addp(A, sFL, sWS, FL_OFF + 63 * 256 + 64)
        A.I(f'''
        v_min_u32 v20, 22, v0
        v_lshlrev_b32 v20, 2, v20
L_he_f:
        s_sleep 2
        global_load_dword v21, v20, {s(sFL,2)} sc1
        ''')
        bud(A)
        A.I(f'''
        s_waitcnt vmcnt(0)
        v_cmp_eq_u32 vcc, 0, v21
        s_cbranch_vccnz L_he_f
        s_mul_i32 s40, {s(sW)}, 10240
        v_lshl_add_u32 v20, v0, 7, s40
        v_min_u32 v22, 15, v0
        v_lshl_add_u32 v22, v22, 7, s40
        s_mul_i32 s40, {s(sW)}, 14336
        v_min_u32 v23, 55, v0
        v_lshl_add_u32 v23, v23, 7, s40
        ''')
        addp(A, 40, sWS, PX_OFF + 63 * PX_SEG); addp(A, 42, 40, 8192)
        A.I('global_load_dword v21, v20, s[40:41] sc1\n global_load_dword v21, v22, s[42:43] sc1')
        addp(A, 40, sWS, BP_OFF); addp(A, 42, 40, 7168)
        A.I('global_load_dword v21, v23, s[40:41] sc1\n global_load_dword v21, v23, s[42:43] sc1')
        addp(A, 40, sWS, G_OFF + 63 * 128)
        A.I('v_mov_b32 v20, 0\n global_load_dword v21, v20, s[40:41] sc1\n s_waitcnt vmcnt(0)')
    A.I('s_endpgm')

def fetcher(A):
    vV, vF, vM = 1, 2, 3
    NL = PFL
    per = 64 // NL
    A.label('L_fetch')
    chain_common(A)
    xcc_publish(A, sROLE, 20)
    A.I(f'''
    v_lshrrev_b32 v4, {NL.bit_length()-1}, v0
    v_and_b32 v5, {NL-1}, v0
    s_lshl_b32 s40, {s(sW)}, 13
    v_lshl_add_u32 v5, v5, 7, s40
    v_and_b32 {v(vF)}, 15, v0
    v_lshlrev_b32 {v(vF)}, 2, {v(vF)}
    v_mov_b32 {v(vM)}, 4000
    ''')
    n = (14 + per - 1) // per
    for i in range(n):
        A.I(f'v_add_u32 v6, {per*i}, v4\n v_min_u32 v6, 13, v6\n v_lshl_add_u32 {v(8+i)}, v6, 15, v5')
    xcc_check(A, 'fe', 30)
    addp(A, sMEM, sWS, MEMS_OFF); addp(A, sVX, sWS, VX_OFF + PFA * 14 * VX_SC); addp(A, sFL, sWS, FL_OFF + PFA * 256)
    A.I(f'''
L_fe_step:
    global_load_dword v24, {v(vM)}, {s(sMEM,2)} sc1
    global_load_dword v25, {v(vF)}, {s(sFL,2)} sc1
    ''')
    bud(A)
    A.I(f'''
    s_waitcnt vmcnt(0)
    v_cmp_eq_u32 vcc, {s(sSENT)}, v24
    v_cmp_eq_u32 s[40:41], 0, v25
    s_or_b64 vcc, vcc, s[40:41]
    s_cbranch_vccz L_fe_go
    s_sleep 2
    s_branch L_fe_step
L_fe_go:
    ''')
    for i in range(n): A.I(f'global_load_dword {v(26)}, {v(8+i)}, {s(sVX,2)} sc1')
    addp(A, sMEM, sMEM, MEM_SLOT); addp(A, sVX, sVX, 14 * VX_SC); addp(A, sFL, sFL, 256)
    A.I(f'''
    s_add_u32 {s(sSTEP)}, {s(sSTEP)}, 1
    s_cmp_lt_u32 {s(sSTEP)}, {NSTEP - PFA}
    s_cbranch_scc1 L_fe_step
    s_endpgm
    ''')

def spare(A):
    A.label('L_spare')
    A.I(f's_mov_b32 {s(sTMP)}, 15'); assist(A, 'sp_as', sTMP, 20)
    A.I('s_endpgm')
```

```python
import sys
from common import *
import chain, tok, prep

NAME = 'gated_mix__memory_aug_recurrent_mem_tr__dense_activation_silu__prompt'

def main_kernel(prof=0, roles=('chain', 'tokv', 'tokt', 'ffn1', 'outs')):
    A = Asm(); TL['role'] = 'e'
    A.I(f'''
    s_cmp_ge_u32 s2, 256
    s_cbranch_scc1 L_bail
    s_load_dwordx2 s[8:9], s[0:1], {KA_WS}
    s_load_dwordx2 {s(prep.sDB,2)}, s[0:1], {KA_DBG}
    v_lshrrev_b32 v1, 6, v0
    v_and_b32 v0, 63, v0
    s_add_u32 s38, s2, {8 - chain.CX}
    s_and_b32 s38, s38, 7
    s_lshr_b32 s3, s2, 3
    v_readfirstlane_b32 s4, v1
    v_and_b32 v1, 15, v0
    v_lshrrev_b32 v2, 4, v0
    s_waitcnt lgkmcnt(0)
    s_lshl_b32 s70, s3, 3
    s_add_u32 s70, s70, s38
    ''')
    if 'cw' in chain.OPT:
        A.raw(f'''    s_getpc_b64 s[40:41]
L_pc0:
    s_lshl_b32 s42, s3, 2
    s_add_u32 s42, s42, s4
    s_lshl_b32 s42, s42, 3
    v_and_b32 v3, 7, v0
    v_add_lshl_u32 v3, v3, s42, 7
    v_min_u32 v3, L_code_end - L_pc0 - 4, v3''')
        A.I('global_load_dword v255, v3, s[40:41]')
    if chain.GX or chain.GE: A.I('s_memrealtime s[92:93]\n s_waitcnt lgkmcnt(0)')
    tl(A, 1, 0, 200)
    A.I(f'''
    s_mov_b32 s44, -1
    s_mov_b32 s45, -1
    s_mov_b32 s46, -1
    s_cmp_lg_u32 s38, 0
    s_cbranch_scc1 L_tok0
    s_cmp_lg_u32 s3, 30
    s_cbranch_scc1 L_noinit
    ''')
    TL['role'] = 'he'; prep.init_job(A); TL['role'] = 'e'
    A.label('L_noinit')
    if 'sc' not in chain.OPT: A.I('s_cmp_ge_u32 s3, 16\n s_cbranch_scc1 L_jobs\n s_add_u32 s45, s3, 208')
    else: A.I('s_cmp_lt_u32 s3, 16\n s_cbranch_scc1 L_score\n s_add_u32 s45, s3, 192')
    A.I(f'''
    s_branch L_jobs
L_bail:
    s_endpgm
L_tok0:
    s_sub_u32 s39, s38, 1
    s_lshl_b32 s44, s39, 5
    s_add_u32 s44, s44, s3
    s_mul_i32 s39, s39, 21
    s_max_u32 s40, s3, 11
    s_add_u32 s39, s39, s40
    s_sub_u32 s39, s39, 11
    s_min_u32 s40, s39, 128
    s_add_u32 s40, s40, 7
    s_lshr_b32 s40, s40, 3
    s_sub_u32 s45, s44, s40
    s_cmp_lt_u32 s3, 11
    s_cbranch_scc1 L_jobs
    s_cmp_ge_u32 s39, 128
    s_cbranch_scc1 L_jobs
    s_and_b32 s39, s39, 7
    s_cselect_b32 s45, s45, -1
    ''')
    A.label('L_jobs')
    prep.gemm_jobs(A, 44)
    A.I(f'''
    s_mov_b32 s40, s38
    s_cmp_lg_u32 s38, 0
    s_cbranch_scc1 L_tok
    s_cmp_lt_u32 s3, 16
    s_cbranch_scc1 L_score
    s_cmp_lt_u32 s3, 30
    s_cbranch_scc1 L_value
    s_cmp_eq_u32 s3, 30
    s_cbranch_scc1 L_helper
    {'s_branch L_fetch' if 'fetch' in chain.OPT else 's_branch L_spare'}
L_tok:
    s_sub_u32 s40, s40, 1
    s_cmp_ge_u32 s3, 7
    s_cbranch_scc1 L_tok1
    s_mov_b32 {s(tok.sREP)}, s40
    s_branch {'L_outs' if 'outs' in roles else 'L_bail'}
L_tok1:
    s_cmp_ge_u32 s3, 11
    s_cbranch_scc1 L_tok2
    s_sub_u32 {s(tok.sREP)}, s3, 7
    s_mov_b32 s3, s40
    s_branch {'L_ffn1' if 'ffn1' in roles else 'L_bail'}
L_tok2:
    s_mul_i32 s40, s40, 21
    s_add_u32 s40, s40, s3
    s_sub_u32 s40, s40, 11
    s_cmp_ge_u32 s40, 128
    s_cbranch_scc1 L_bail
    s_and_b32 {s(tok.sREP)}, s40, 3
    s_lshr_b32 s3, s40, 3
    s_bitcmp1_b32 s40, 2
    s_cbranch_scc1 {'L_tokt' if 'tokt' in roles else 'L_bail'}
    s_branch {'L_tokv' if 'tokv' in roles else 'L_bail'}
    ''')
    for r, f in (('sc', lambda A: chain.score(A, prof)), ('va', lambda A: chain.value(A, prof if 'sonly' not in chain.OPT else 0)), ('he', chain.helper), ('fe', chain.fetcher), ('sp', chain.spare), ('tv', tok.tokv), ('tt', tok.tokt), ('f1', tok.ffn1), ('ou', tok.outs)):
        TL['role'] = r; f(A)
    A.label('L_code_end')
    return A

KD = '''.section .rodata,"a"
.p2align 6
.amdhsa_kernel {name}
  .amdhsa_next_free_vgpr {nv}
  .amdhsa_next_free_sgpr 102
  .amdhsa_accum_offset 256
  .amdhsa_group_segment_fixed_size 0
  .amdhsa_kernarg_size 112
  .amdhsa_user_sgpr_count 2
  .amdhsa_user_sgpr_kernarg_segment_ptr 1
  .amdhsa_system_sgpr_workgroup_id_x 1
  .amdhsa_float_denorm_mode_32 3
.end_amdhsa_kernel
'''
def full(prof=0, **kw):
    n = NAME + '_kernel'
    out = [HEADER, '; @launch grid=(256,1,1) block=(256,1,1) lds=163840',
           '.amdgcn_target "amdgcn-amd-amdhsa--gfx950"', '.text',
           f'.globl {n}', '.p2align 8', f'.type {n},@function', f'{n}:', main_kernel(prof, **kw).text(), KD.format(name=n, nv=512)]
    return '\n'.join(out)

HEADER = '''; Kernarg layout for this problem (112 bytes, ptrs only, base s[0:1]):
; second phase: memory recurrence (16 score + 14 value + 1 relay workgroups) and the token side (x B, x A + softmax, FFN, mix)'''

if __name__ == '__main__':
    args = sys.argv[1:]
    outn = 'cdna_kernels/' + NAME + '.s'
    for o in args:
        if o == 'dbg': TL['dbg'] = 1
        elif o.startswith('out='): outn = o[4:]
        elif '=' in o:
            k_, val = o.split('=')
            for mod in (chain, tok, prep):
                if hasattr(mod, k_): setattr(mod, k_, int(val) if val.lstrip('-').isdigit() else val)
        else: chain.OPT.add(o)
    open(outn, 'w').write(full())
```

```python
from common import *
import prep, tok
from prep import wait_tiles, sDB, DB_XCC

NSTEP = 63
CLK = 's_memrealtime'
OPT = {'poisT', 'mtouch', 'mtdirect', 'ffl'}
HSLEEP = 2
LIM = 60
XD = 0
VE = 3
CX = 3
DIR = 1
FS = 40
ALS = -1
ALV = -1
PS_ = 0
SS = 0
AJ = 8
GX = 0
GE = 0
AGE = 99
L3P = ''
GB = 2
PD = 3
FA, FB, FC, FD = 5, 3, 4, 1
PFL = 16
PFA = 2
NRES = 5
HD = 3
sROLE, sW, sSTEP, sBUD, sSENT = 3, 4, 5, 6, 7
sWS, sX0, sX1, sMEM, sP, sVX, sMT, sWT = 8, 10, 12, 14, 16, 18, 20, 24
sTMP, sTMP2 = 27, 28
sM20, sMHI, sMG = 30, 32, 34
sLB, sXB, sM48 = 36, 37, 38
sDBG = 44
sXCC, sEA, sEB, sFL = 75, 64, 66, 68
BUDGET = 1 << 21

def delay(A, n):
    if n >= 4: A.I(f's_sleep {n // 4}')
    if n % 4: A.I(f's_nop {4 * (n % 4) - 1}')

def bud(A):
    A.I(f's_add_u32 {s(sBUD)}, {s(sBUD)}, 1\n s_cmp_gt_u32 {s(sBUD)}, {BUDGET}\n s_cbranch_scc1 L_bail')

def chain_common(A):
    A.I(f'''
    s_mov_b32 {s(sSTEP)}, 0
    s_mov_b32 {s(sBUD)}, 0
    s_mov_b32 {s(sSENT)}, {SENT}
    s_mov_b32 s90, 0
    ''')

def xcc_publish(A, role, t):
    A.I(f'''
    s_getreg_b32 {s(sXCC)}, hwreg(HW_REG_XCC_ID, 0, 4)
    s_add_u32 {s(sXCC)}, {s(sXCC)}, 1
    v_mov_b32 {v(t)}, {s(role)}
    v_mov_b32 {v(t+1)}, {s(sXCC)}
    s_waitcnt vmcnt(0)
    s_barrier
    global_store_byte {v(t)}, {v(t+1)}, {s(sDB,2)} offset:{DB_XCC} sc1
    ''')

def xcc_check(A, tag, t):
    A.I(f'''
    v_min_u32 {v(t)}, {31 if 'fetch' in OPT else 30}, v0
L_{tag}_xc:
    global_load_ubyte {v(t+1)}, {v(t)}, {s(sDB,2)} offset:{DB_XCC} sc1
    ''')
    bud(A)
    A.I(f'''
    s_waitcnt vmcnt(0)
    v_cmp_eq_u32 vcc, 0, {v(t+1)}
    s_cbranch_vccnz L_{tag}_xc
    v_cmp_ne_u32 vcc, {s(sXCC)}, {v(t+1)}
    s_cmp_eq_u64 vcc, {0 if 'slow' not in OPT else -1}
    s_cselect_b32 {s(sEA)}, 1, 0
    ''')

def warm(A, first, last, t):
    if 'warm' not in OPT: return
    A.raw(f'''    s_getpc_b64 s[40:41]
L_pc_{first}:
    s_add_u32 s40, s40, {first} - L_pc_{first}
    s_addc_u32 s41, s41, 0
    v_lshlrev_b32 {v(t)}, 7, v0
    v_min_u32 {v(t)}, {last} - {first}, {v(t)}''')
    A.I(f'global_load_dword {v(t+1)}, {v(t)}, s[40:41]')

def assist(A, tag, head, t):
    if 'noassist' in OPT: return
    wait_tiles(A, tag, t, 0, 'head', head, 1)
    A.I(f's_mul_i32 s40, {s(head)}, {MF_HEAD}'); addp(A, 42, sWS, MF_OFF + AJ * 2048); addps(A, 42, 42, 40)
    per = (14 - AJ) * 16
    tot = 14 * per
    n = (tot // 4 + 63) // 64
    A.I(f's_mul_i32 s40, {s(sW)}, {tot // 4}')
    for i in range(n):
        A.I(f'''
        v_add_u32 {v(t)}, {64*i}, v0
        v_min_u32 {v(t)}, {tot // 4 - 1}, {v(t)}
        v_add_u32 {v(t)}, s40, {v(t)}
        v_mul_u32_u24 {v(t+1)}, {(1 << 20) // per + 1}, {v(t)}
        v_lshrrev_b32 {v(t+1)}, 20, {v(t+1)}
        v_mul_u32_u24 {v(t+1)}, {224 - per}, {v(t+1)}
        v_add_lshl_u32 {v(t)}, {v(t)}, {v(t+1)}, 7
        global_load_dword {v(t+2)}, {v(t)}, s[42:43] sc1
        ''')

def mem_poll(A, tag, vG0, vPR, vD):
    A.I(f'''
L_{tag}_mp:
    s_mov_b32 m0, {s(sLB)}
L_{tag}_mpl:
    global_load_dword {v(vD)}, {v(vPR)}, {s(sMEM,2)} sc1
    global_load_lds_dwordx4 {v(vG0)}, {s(sMEM,2)} sc1
    s_mov_b64 exec, {s(sM48,2)}
    global_load_lds_dwordx4 {v(vG0)}, {s(sMEM,2)} offset:1024 sc1
    s_mov_b64 exec, -1
    ''')
    bud(A)
    A.I(f'''
    s_waitcnt vmcnt(2)
    v_cmp_eq_u32 vcc, {s(sSENT)}, {v(vD)}
    s_cbranch_vccnz L_{tag}_mpl
    s_waitcnt vmcnt(0) lgkmcnt(0)
    s_barrier
    ''')

sMEM2, sLB2 = 66, 29
def dma_split(A, vG0):
    A.I(f'''
    global_load_lds_dwordx4 {v(vG0)}, {s(sMEM,2)} sc1
    s_mov_b32 m0, {s(sLB2)}
    s_mov_b64 exec, {s(sM48,2)}
    global_load_lds_dwordx4 {v(vG0)}, {s(sMEM2,2)} sc1
    s_mov_b64 exec, -1
    s_mov_b32 m0, {s(sLB)}
    ''')

def mem_poll_split(A, tag, vG0, vPR, vD):
    A.I(f'''
L_{tag}_mp:
    s_mov_b32 m0, {s(sLB)}
L_{tag}_mpl:
    global_load_dword {v(vD)}, {v(vPR)}, {s(sMEM,2)} sc1
    ''')
    dma_split(A, vG0)
    bud(A)
    A.I(f'''
    s_waitcnt vmcnt(2)
    v_cmp_eq_u32 vcc, {s(sSENT)}, {v(vD)}
    s_cbranch_vccnz L_{tag}_mpl
    s_waitcnt vmcnt(1) lgkmcnt(0)
    s_barrier
    ''')

def mem_poll_half(A, tag, vG0, vPR, vD):
    A.I(f'''
L_{tag}_mp:
    s_cmp_ge_u32 {s(sW)}, 2
    s_cbranch_scc1 L_{tag}_mpb
    s_mov_b32 m0, {s(sLB)}
L_{tag}_mpl:
    global_load_dword {v(vD)}, {v(vPR)}, {s(sMEM,2)} sc1
    global_load_lds_dwordx4 {v(vG0)}, {s(sMEM,2)} sc1
    global_load_lds_dwordx4 {v(vG0)}, {s(sMEM,2)} offset:1024 sc1
    global_load_lds_dwordx4 {v(vG0)}, {s(sMEM,2)} offset:2048 sc1
    s_mov_b32 exec_hi, 0
    global_load_lds_dwordx4 {v(vG0)}, {s(sMEM,2)} offset:3072 sc1
    s_mov_b64 exec, -1
    ''')
    bud(A)
    A.I(f'''
    s_waitcnt vmcnt(4)
    v_cmp_eq_u32 vcc, {s(sSENT)}, {v(vD)}
    s_cbranch_vccnz L_{tag}_mpl
    s_waitcnt vmcnt(0)
L_{tag}_mpb:
    s_waitcnt lgkmcnt(0)
    s_barrier
    ''')

def mem_poll_setup(A, vG0, vPR, t, half=False):
    A.I(f'''
    s_mul_i32 {s(sLB)}, {s(sW)}, {3584 if half else 1792}
    v_lshlrev_b32 {v(vG0)}, 4, v0
    v_add_u32 {v(vG0)}, {s(sLB)}, {v(vG0)}
    s_mov_b32 {s(sM48)}, -1
    s_mov_b32 {s(sM48+1)}, 0xffff
    v_min_u32 {v(t)}, {27 if half else 13}, v0
    v_lshlrev_b32 {v(t)}, 7, {v(t)}
    v_add3_u32 {v(vPR)}, {s(sLB)}, {v(t)}, 64
    ''')

def sreg(i): return 48 + 2 * i if i < 8 else 76 + 2 * (i - 8)

def stamp(A, idx, prof):
    if not prof: return
    A.I(f'{CLK} {s(sreg(idx), 2)}')

def stamp_flush(A, prof):
    if not prof: return
    A.I('s_waitcnt lgkmcnt(0)')
    for i in range(16): A.I(f'v_writelane_b32 v21, {s(sreg(i))}, {i}')
    A.I(f'''
    v_mbcnt_lo_u32_b32 v20, -1, 0
    v_lshlrev_b32 v20, 2, v20
    s_mov_b64 exec, 0xffff
    global_store_dword v20, v21, {s(sDBG,2)}
    s_mov_b64 exec, -1
    ''')
    addp(A, sDBG, sDBG, 64)

def idx_setup(A, vIDX, T):
    A.I(f'''
    v_and_b32 {v(T)}, 15, v0
    v_lshrrev_b32 {v(T+1)}, 4, v0
    v_and_b32 {v(T+2)}, 7, v0
    v_mov_b32 {v(vIDX)}, 0x4444
    v_mov_b32 {v(T+3)}, 0xeeee
    v_cmp_lt_u32 vcc, 7, {v(T)}
    v_cndmask_b32 {v(vIDX)}, {v(vIDX)}, {v(T+3)}, vcc
    ''')

def score(A, prof=0):
    L_MEM, L_TB, L_SB, L_RW, L_XB = 0, 8192, 20480, 26624, 65536
    vIDX, vG0, vXB, vPR, vAF0, vAF1, vMB0, vMB1, vTW, vTR, vSW, vSR, vPS, vX0, vX1, vRW, vSM, vSN = range(1, 19)
    vCK = 19; vLO = 0; sHI = 26
    RING, XF, R, TOPC, TMP, SACC, TACC, WV = 20, 52, 84, 108, 112, 116, 128, 144
    MEMB, TOPA, TOPB = R, R + 16, R + 20
    import layout
    layout.L3T[:] = [int(c, 16) for c in str(L3P or ('1234567' if 'split' not in OPT else '3456789'))]
    seq = score_seq()
    def wreg(i):
        if i < 3: return v(R + 8 * i, 8)
        if i < 35: return a_(8 * (i - 3), 8)
        return v(WV + 8 * (i - 35), 8)
    lg = Cnt(A, 'lgkmcnt', 15)
    A.label('L_score')
    A.I(f's_load_dwordx2 {s(sX0,2)}, s[0:1], {KA_X}')
    chain_common(A)
    T = 20
    idx_setup(A, vIDX, T)
    SPL = 'split' in OPT
    if not SPL: mem_poll_setup(A, vG0, vPR, T + 4)
    else: A.I(f'''
    s_lshl_b32 {s(sLB)}, {s(sW)}, 10
    s_mul_i32 {s(sLB2)}, {s(sW)}, 768
    s_add_u32 {s(sLB2)}, {s(sLB2)}, 4096
    v_lshl_add_u32 {v(vG0)}, v0, 4, {s(sLB)}
    s_mov_b32 {s(sM48)}, -1
    s_mov_b32 {s(sM48+1)}, 0xffff
    v_min_u32 {v(T+4)}, 13, v0
    v_lshlrev_b32 {v(T+4)}, 7, {v(T+4)}
    v_add3_u32 {v(vPR)}, {s(sLB)}, {v(T+4)}, 64
    s_sub_u32 s40, {s(sLB2)}, 960
    v_add_u32 {v(T+4)}, s40, {v(T+4)}
    v_cmp_lt_u32 vcc, 7, v0
    v_cndmask_b32 {v(vPR)}, {v(vPR)}, {v(T+4)}, vcc
    ''')
    A.I(f'''
    v_lshlrev_b32 {v(T+4)}, 7, {v(T+1)}
    v_lshl_add_u32 {v(T+4)}, {v(T+2)}, 4, {v(T+4)}
    s_and_b32 {s(sTMP)}, {s(sW)}, 1
    s_mul_i32 {s(sTMP2)}, {s(sTMP)}, {7*512}
    v_mov_b32 {v(vAF0)}, {v(T+4)}
    v_add_u32 {v(vAF1)}, {s(sTMP2)}, {v(T+4)}
    s_lshr_b32 {s(sTMP2)}, {s(sW)}, 1
    s_mul_i32 {s(sTMP2)}, {s(sTMP2)}, 7
    s_lshl_b32 {s(sTMP)}, {s(sTMP)}, 2
    s_add_u32 {s(sTMP)}, {s(sTMP)}, {s(sTMP2)}
    s_add_u32 {s(sTMP2)}, {s(sTMP2)}, 3
    s_lshl_b32 s40, {s(sTMP)}, 9
    s_lshl_b32 s41, {s(sTMP2)}, 9
    v_add_u32 {v(vMB0)}, s40, {v(T+4)}
    v_add_u32 {v(vMB1)}, s41, {v(T+4)}
    s_lshl_b32 s40, {s(sTMP)}, 6
    s_lshl_b32 s41, {s(sTMP2)}, 6
    v_lshrrev_b32 {v(T+4)}, 2, v0
    v_mul_u32_u24 {v(T+4)}, 896, {v(T+4)}
    v_lshrrev_b32 {v(T+5)}, 5, v0
    v_lshlrev_b32 {v(T+5)}, 1, {v(T+5)}
    v_and_b32 {v(T+6)}, 3, v0
    v_xor_b32 {v(T+5)}, {v(T+5)}, {v(T+6)}
    v_lshl_add_u32 {v(T+4)}, {v(T+5)}, 4, {v(T+4)}
    v_add_u32 {v(vX0)}, s40, {v(T+4)}
    v_add_u32 {v(vX1)}, s41, {v(T+4)}
    s_lshl_b32 {s(sXB)}, {s(sW)}, 13
    s_add_u32 {s(sXB)}, {s(sXB)}, {L_XB}
    v_lshrrev_b32 {v(T+4)}, 3, {v(T)}
    v_lshlrev_b32 {v(T+4)}, 1, {v(T+4)}
    v_xor_b32 {v(T+4)}, {v(T+4)}, {v(T+1)}
    v_lshl_add_u32 {v(T+4)}, {v(T)}, 2, {v(T+4)}
    v_lshl_add_u32 {v(vXB)}, {v(T+4)}, 4, {s(sXB)}
    s_mul_i32 s40, {s(sW)}, 3072
    s_add_u32 s40, s40, {L_TB}
    v_mul_u32_u24 {v(T+5)}, 192, {v(T+1)}
    v_lshl_add_u32 {v(T+5)}, {v(T)}, 3, {v(T+5)}
    v_add_u32 {v(vTW)}, s40, {v(T+5)}
    v_and_b32 {v(T+5)}, 1, v0
    v_mul_u32_u24 {v(T+5)}, 192, {v(T+5)}
    v_lshrrev_b32 {v(T+6)}, 2, v0
    v_lshl_add_u32 {v(T+5)}, {v(T+6)}, 3, {v(T+5)}
    v_add_u32 {v(vTR)}, s40, {v(T+5)}
    s_mul_i32 s40, {s(sW)}, 1408
    s_add_u32 s40, s40, {L_SB}
    v_mul_u32_u24 {v(T+5)}, 176, {v(T+2)}
    v_add_u32 {v(T+5)}, s40, {v(T+5)}
    v_mov_b32 {v(vCK)}, {v(T+5)}
    v_lshrrev_b32 {v(T+6)}, 3, {v(T)}
    v_and_b32 {v(T+7)}, 1, {v(T+1)}
    v_mul_u32_u24 {v(T+7)}, 704, {v(T+7)}
    v_lshrrev_b32 {v(T+8)}, 1, {v(T+1)}
    v_lshl_add_u32 {v(T+7)}, {v(T+8)}, 6, {v(T+7)}
    v_lshl_add_u32 {v(T+7)}, {v(T)}, 2, {v(T+7)}
    v_add3_u32 {v(vSW)}, s40, {v(T+7)}, 32
    v_and_b32 {v(T+7)}, 1, {v(T+1)}
    v_lshlrev_b32 {v(T+7)}, 4, {v(T+7)}
    v_lshrrev_b32 {v(T+8)}, 1, {v(T+1)}
    v_lshl_add_u32 {v(T+8)}, {v(T+8)}, 1, {v(T+6)}
    v_lshl_add_u32 {v(T+7)}, {v(T+8)}, 2, {v(T+7)}
    v_add_u32 {v(vSM)}, {v(T+5)}, {v(T+7)}
    v_lshrrev_b32 {v(T+5)}, 5, v0
    v_lshl_add_u32 {v(T+5)}, {s(sW)}, 1, {v(T+5)}
    v_and_b32 {v(T+6)}, 31, v0
    v_min_u32 {v(T+6)}, 20, {v(T+6)}
    v_mul_u32_u24 {v(T+7)}, 176, {v(T+5)}
    v_lshl_add_u32 {v(T+7)}, {v(T+6)}, 3, {v(T+7)}
    v_add_u32 {v(vSR)}, {L_SB}, {v(T+7)}
    s_lshr_b32 s40, {s(sROLE)}, 2
    s_mul_i32 s40, s40, 2560
    s_and_b32 s41, {s(sROLE)}, 1
    s_bfe_u32 s42, {s(sROLE)}, 0x10001
    s_lshl_b32 s43, s41, 7
    s_lshl_b32 s46, s42, 5
    s_add_u32 s43, s43, s46
    s_add_u32 s43, s43, s40
    s_add_u32 s43, s43, 2048
    v_and_b32 {v(T+7)}, 1, {v(T+6)}
    v_lshlrev_b32 {v(T+7)}, 8, {v(T+7)}
    v_lshrrev_b32 {v(T+8)}, 1, {v(T+6)}
    v_lshl_add_u32 {v(T+7)}, {v(T+8)}, 6, {v(T+7)}
    v_lshl_add_u32 {v(T+7)}, {v(T+5)}, 2, {v(T+7)}
    v_add_u32 {v(T+7)}, s43, {v(T+7)}
    s_lshl_b32 s43, s42, 10
    s_lshl_b32 s46, s41, 9
    s_add_u32 s43, s43, s46
    s_add_u32 s43, s43, s40
    v_subrev_u32 {v(T+8)}, 4, {v(T+6)}
    v_lshrrev_b32 {v(T+9)}, 2, {v(T+8)}
    v_and_b32 {v(T+8)}, 3, {v(T+8)}
    v_lshlrev_b32 {v(T+8)}, 2, {v(T+8)}
    v_lshl_add_u32 {v(T+8)}, {v(T+9)}, 7, {v(T+8)}
    v_lshl_add_u32 {v(T+8)}, {v(T+5)}, 4, {v(T+8)}
    v_add_u32 {v(T+8)}, s43, {v(T+8)}
    v_cmp_gt_u32 vcc, 4, {v(T+6)}
    v_cndmask_b32 {v(vPS)}, {v(T+8)}, {v(T+7)}, vcc
    s_mul_i32 s40, {s(sW)}, 6144
    s_add_u32 s40, s40, {L_RW}
    v_lshl_add_u32 {v(vRW)}, v0, 4, s40
    s_mov_b32 {s(sM20)}, 0x000fffff
    s_mov_b32 {s(sM20+1)}, 0x000fffff
    s_mov_b32 {s(sMHI)}, 0xff00ff00
    s_mov_b32 {s(sMHI+1)}, 0xff00ff00
    s_mov_b32 {s(sMG)}, 0
    s_mov_b32 {s(sMG+1)}, -1
    v_mov_b32 {v(vSN)}, {SENT}
    ''')
    addp(A, sP, sWS, PS_OFF); addp(A, 40, sP, PS_SLOT)
    A.I(f'''
    s_mov_b64 exec, {s(sM20,2)}
    global_store_dword {v(vPS)}, {v(vSN)}, {s(sP,2)} sc1
    global_store_dword {v(vPS)}, {v(vSN)}, s[40:41] sc1
    s_mov_b64 exec, -1
    s_waitcnt lgkmcnt(0)
    ''')
    xcc_publish(A, sROLE, T + 12)
    warm(A, 'L_sc_step', 'L_sd_step', T + 12)
    addp(A, sX1, sX0, 16 * 896)
    def xdma():
        for k in range(8):
            L, t = k >> 1, k & 1
            A.I(f's_add_u32 m0, {s(sXB)}, {k*1024 - (64*L if L < 3 else 0)}')
            base = s(sX0 if t == 0 else sX1, 2)
            A.I(f'global_load_lds_dwordx4 {v(vX0)}, {base} offset:{64*L}' if L < 3 else f'global_load_lds_dwordx4 {v(vX1)}, {base}')
        addp(A, sX0, sX0, XI_SEG); addp(A, sX1, sX1, XI_SEG)
        if XB2: A.I(f's_xor_b32 {s(sXB)}, {s(sXB)}, 0x8000')
    def xread():
        for k in range(8): A.I(f'ds_read_b128 {v(RING+4*k,4)}, {v(vXB)} offset:{k*1024}')
        for L in range(4):
            A.I(f's_waitcnt lgkmcnt({6-2*L})')
            for k in range(8): A.I(f'v_mov_b32 {v(XF+8*L+k)}, {v(RING+8*L+4*(k&1)+(k>>1))}')
        for k in range(4): A.I(f'v_mov_b32 {v(SACC+4+k)}, 0')
        if XB2: A.I(f'v_xor_b32 {v(vXB)}, 0x8000, {v(vXB)}')
    XB2 = 'nox2' not in OPT
    SC = 'sc' in OPT
    ixw = {x: i for i, x in enumerate(seq)}
    def wq(i, hf):
        if i < 3: return ('v', R + 8 * i + 4 * hf)
        if i < 35: return ('a', 8 * (i - 3) + 4 * hf)
        return ('v', WV + 8 * (i - 35) + 4 * hf)
    def rq(q, n=4): return (v if q[0] == 'v' else a_)(q[1], n)
    if SC:
        VREG = [wq(i, hf) for i, (L, jj) in enumerate(seq) if L >= 2 and i >= 3 for hf in range(2)][:32]
        UR, TC, ACC, vUS, vVS, vL, vUB, vUR = 20, 44, 52, 108, 110, 114, 118, 122
        sQ, sK, sL = 46, 48, 50
        A.I(f'''
        s_load_dwordx4 s[52:55], s[0:1], {KA_WQ}
        v_lshrrev_b32 v20, 5, v0
        v_and_b32 v21, 31, v0
        v_and_b32 v22, 15, v0
        v_lshrrev_b32 v23, 4, v0
        s_and_b32 s40, {s(sW)}, 1
        s_lshl_b32 s40, s40, 1
        s_lshl_b32 s41, {s(sW)}, 3
        ''')
        for b in range(2):
            A.I(f'''
            v_add_u32 v24, {2*b}, v20
            v_lshlrev_b32 v25, 2, v24
            v_xor_b32 v25, v25, v21
            v_lshlrev_b32 v26, 13, v24
            v_lshl_add_u32 {v(vVS+b)}, v25, 4, v26
            v_xor_b32 {v(vVS+2+b)}, 32, {v(vVS+b)}
            v_xor_b32 v25, s40, v25
            v_add_u32 v24, s41, v24
            v_lshlrev_b32 v26, 13, v24
            v_lshl_add_u32 {v(vUS+b)}, v25, 4, v26
            ''')
        A.I(f'''
        v_and_b32 v24, 3, v22
        v_lshlrev_b32 v25, 2, v24
        v_bfe_u32 v26, v22, 2, 1
        v_lshl_add_u32 v25, v26, 1, v25
        v_lshrrev_b32 v27, 2, v22
        v_lshl_add_u32 v27, v27, 3, v24
        v_lshlrev_b32 v27, 9, v27
        v_lshlrev_b32 v26, 4, v26
        v_lshrrev_b32 v28, 3, v22
        v_lshl_add_u32 v26, v28, 2, v26
        v_add_u32 v26, v26, v24
        v_lshlrev_b32 v26, 9, v26
        s_lshl_b32 {s(sL)}, {s(sW)}, 15
        v_add_u32 v26, {s(sL)}, v26
        ''')
        for b in range(4):
            A.I(f'''
            v_add_u32 v24, {4*b}, v23
            v_xor_b32 v24, v24, v25
            v_lshl_add_u32 {v(vUB+b)}, v24, 4, v27
            v_lshl_add_u32 {v(vL+b)}, v24, 4, v26
            ''')
        A.I(f'''
        s_lshl_b32 s40, {s(sROLE)}, 9
        s_lshl_b32 s41, {s(sTMP)}, 18
        s_add_u32 s41, s41, s40
        s_waitcnt lgkmcnt(0)
        ''')
        addps(A, sQ, 52, 40); addps(A, sK, 54, 41)
        vm = Cnt(A, 'vmcnt', 63); l2 = Cnt(A, 'lgkmcnt', 15)
        for k in range(32):
            A.I(f's_add_u32 m0, {s(sL)}, {k*1024}')
            A.I(f'global_load_lds_dwordx4 {v(vVS + (k&1) + 2*((k>>3)&1))}, {s(sK,2)} {prep.LDNT}'); vm.add('V')
            if k & 1: addp(A, sK, sK, 32768)
        A.I(f's_lshl_b32 {s(sL)}, {s(sW)}, 12')
        slot = lambda j: [8, 9][j] if j < 2 else (j - 2) % 10
        def issueU(j):
            for kk in range(4):
                A.I(f's_add_u32 m0, {s(sL)}, {slot(j)*16384 + kk*1024}')
                A.I(f'global_load_lds_dwordx4 {v(vUS + (kk&1))}, {s(sQ,2)} {prep.LDNT}'); vm.add(('U', j))
                if kk == 1: addp(A, sQ, sQ, 32768)
            addp(A, sQ, sQ, 32 * 8192 - 32768)
        issueU(0); issueU(1)
        vm.wait('V')
        for t in range(4):
            for kk in range(8):
                A.I(f'ds_read_b128 {rq(VREG[8*t+kk])}, {v(vL+(kk&3))} offset:{(t>>1)*16384 + (t&1)*4096 + (kk>>2)*256}')
            A.I('s_waitcnt lgkmcnt(0)')
        tl(A, 1, 6, 44)
        A.I('s_barrier')
        for j in range(2, 10): issueU(j)
        for j in range(14):
            for b in range(4): A.I(f'v_add_u32 {v(vUR+b)}, {slot(j)*16384}, {v(vUB+b)}')
            vm.wait(('U', j)); A.I('s_barrier')
            if 1 <= j <= 4: issueU(j + 9)
            if j == 7: tl(A, 1, 7, 44)
            def rdu(kk):
                for tp in range(2):
                    A.I(f'ds_read_b128 {v(UR+8*(kk%3)+4*tp,4)}, {v(vUR+(kk&3))} offset:{tp*2048 + (kk>>2)*256}'); l2.add((kk, tp))
            rdu(0); rdu(1)
            for kk in range(8):
                for tp in range(2):
                    l2.wait((kk, tp))
                    for t in range(4):
                        acc = v(ACC + 8*t + 4*tp, 4)
                        A.I(f'v_mfma_f32_16x16x32_bf16 {acc}, {v(UR+8*(kk%3)+4*tp,4)}, {rq(VREG[8*t+kk])}, {acc if kk else 0}')
                        if tp == 0 and t == 0 and kk + 2 < 8: rdu(kk + 2)
            A.I(f's_mov_b32 s40, {f32(CSC)}\n s_mov_b32 s41, s40')
            for e in range(2):
                for tp in range(2):
                    q = wq(ixw[(e, j)], tp)
                    for k in range(2):
                        for y in range(2):
                            r = ACC + 8*(2*e+y) + 4*tp + 2*k
                            A.I(f'v_pk_mul_f32 {v(r,2)}, {v(r,2)}, s[40:41]')
                    for k in range(2):
                        for y in range(2):
                            r = ACC + 8*(2*e+y) + 4*tp + 2*k
                            d = q[1] + 2*k + y if q[0] == 'v' else TC + 2*k + y
                            A.I(f'v_cvt_pk_bf16_f32 {v(d)}, {v(r)}, {v(r+1)}')
                    if q[0] == 'a':
                        for k in range(4): A.I(f'v_accvgpr_write_b32 {a_(q[1]+k)}, {v(TC+k)}')
        A.I('s_barrier')
        for k in range(6): A.I(f'ds_write_b128 {v(vRW)}, {v(R+4*k,4)} offset:{k*1024}')
        tl(A, 1, 5, T)
    A.I(f'''
    v_mov_b32 {v(T+6)}, 0xff800000
    v_mov_b32 {v(T+7)}, 0xff800000
    ds_write_b64 {v(vCK)}, {v(T+6,2)} offset:160
    ''')
    xdma()
    if XB2: xdma()
    A.I(f'''
    s_mul_i32 s40, {s(sROLE)}, {MF_HEAD}
    s_and_b32 s41, {s(sW)}, 1
    s_mul_i32 s41, s41, {7*2048}
    s_mul_i32 s42, {s(sTMP)}, {14*2048}
    s_mul_i32 s43, {s(sTMP2)}, {14*2048}
    v_lshlrev_b32 {v(T+8)}, 4, v0
    v_add_u32 {v(108)}, s42, {v(T+8)}
    s_add_u32 s46, s43, s41
    v_add_u32 {v(109)}, s46, {v(T+8)}
    ''')
    addp(A, sWT, sWS, MF_OFF); addps(A, sWT, sWT, 40)
    def wload(i):
        L, jj = seq[i]
        addp(A, 40, sWT, ((L % 3) * 14 + jj) * 2048)
        for hf in range(2): A.I(f'global_load_dwordx4 {rq(wq(i, hf))}, {v(109 if L == 3 else 108)}, s[40:41] offset:{hf*1024} sc1')
    if SC or 'noprog' in OPT:
        xcc_check(A, 'sc0', 110)
        wait_tiles(A, 'sc', 110, 0, 'head', sROLE)
        tl(A, 1, 4, 110)
        for i, (L, jj) in enumerate(seq):
            if SC and L < 2: continue
            wload(i)
            if i > 23: A.I('s_waitcnt vmcnt(42)')
    else:
        xcc_check(A, 'sc', 110)
        addp(A, sMEM, sWS, MEMS_OFF)
        if SPL:
            A.I(f's_sub_u32 s40, {s(sLB2)}, {s(sLB)}'); addps(A, sMEM2, sMEM, 40)
            A.I(f's_mov_b32 m0, {s(sLB)}'); dma_split(A, vG0)
        else: A.I(f'''
        s_mov_b32 m0, {s(sLB)}
        global_load_lds_dwordx4 {v(vG0)}, {s(sMEM,2)} sc1
        s_mov_b64 exec, {s(sM48,2)}
        global_load_lds_dwordx4 {v(vG0)}, {s(sMEM,2)} offset:1024 sc1
        s_mov_b64 exec, -1
        ''')
        xread()
        for k in range(16): A.I(f'v_mov_b32 {v(TACC+k)}, 0')
        addp(A, sVX, sWS, PF_OFF)
        A.I(f'''
        s_lshl_b32 s40, {s(sROLE)}, 5
        v_bfe_u32 {v(110)}, v0, 3, 1
        v_lshl_add_u32 {v(110)}, {v(110)}, 9, s40
        v_and_b32 {v(111)}, 7, v0
        v_lshl_add_u32 {v(110)}, {v(111)}, 2, {v(110)}
        s_mov_b32 s46, 0x7f
L_sc_w:
        global_load_dword {v(111)}, {v(110)}, {s(sVX,2)} sc1
        ''')
        bud(A)
        A.I(f'''
        s_waitcnt vmcnt(0)
        v_cmp_ne_u32 vcc, 0, {v(111)}
        s_lshr_b32 s47, vcc_lo, 8
        s_and_b32 s47, s47, vcc_lo
        s_and_b32 s47, s47, s46
        s_andn2_b32 s46, s46, s47
        ''')
        for jb in range(7):
            A.I(f's_bitcmp0_b32 s47, {jb}\n s_cbranch_scc1 L_sc_w{jb}\n s_waitcnt vmcnt(48)')
            for j in (2 * jb, 2 * jb + 1):
                for L in range(3): wload(ixw[(L, j)])
            A.label(f'L_sc_w{jb}')
        A.I(f's_cmp_lg_u32 s46, 0\n s_cbranch_scc1 L_sc_w\n s_waitcnt vmcnt(48)')
        tl(A, 1, 4, 112)
        for jj in range(7): wload(ixw[(3, jj)])
    if SC or 'noprog' in OPT: xcc_check(A, 'sc', 110)
    if not SC:
        A.I('s_waitcnt vmcnt(14)' if 'noprog' not in OPT else 's_waitcnt vmcnt(0)')
        for k in range(6): A.I(f'ds_write_b128 {v(vRW)}, {v(R+4*k,4)} offset:{k*1024}')
    if SC or 'noprog' in OPT: xread()
    addp(A, sMEM, sWS, MEMS_OFF)
    if prof:
        A.I(f's_lshl_b32 s40, {s(sROLE)}, 2\n s_add_u32 s40, s40, {s(sW)}\n s_lshl_b32 s40, s40, 12')
        addp(A, sDBG, sWS, END_OFF); addps(A, sDBG, sDBG, 40)
    if SC or 'noprog' in OPT:
        for k in range(16): A.I(f'v_mov_b32 {v(TACC+k)}, 0')
    A.I(f'''
    v_and_b32 {v(T)}, 16, v0
    v_cmp_eq_u32 vcc, 0, {v(T)}
    v_mov_b32 {v(T)}, {f32(2.0 ** -LIM)}
    v_cndmask_b32 {v(vLO)}, 0, {v(T)}, vcc
    s_mov_b32 {s(sHI)}, {f32(2.0 ** (LIM - 1))}
    s_waitcnt vmcnt(0) lgkmcnt(0)
    ''')
    tl(A, 1, 1, T)
    if GX:
        A.I(f'''
L_gx:
        s_memrealtime s[40:41]
        s_waitcnt lgkmcnt(0)
        s_sub_u32 s40, s40, s92
        s_cmp_lt_u32 s40, {GX*100}
        s_cbranch_scc1 L_gx
        ''')
    if SC or 'noprog' in OPT: A.I(f's_cmp_eq_u32 {s(sEA)}, 0\n s_cbranch_scc1 L_sd_step')
    else: A.I(f's_barrier\n s_cmp_eq_u32 {s(sEA)}, 0\n s_cbranch_scc1 L_sd_go\n s_branch L_sc_go')
    def loop(tg, sc):
        if ALS >= 0:
            A.raw('.p2align 6, , 63')
            for _ in range(ALS): A.I('s_nop 0')
        A.label(f'L_{tg}_step')
        stamp(A, 0, prof)
        if prof: A.I('s_memtime s[62:63]')
        (mem_poll_split if SPL else mem_poll)(A, tg, vG0, vPR, TMP)
        A.label(f'L_{tg}_go')
        stamp(A, 1, prof)
        lg.clear()
        def rdfrag(jj):
            A.I(f'ds_read_b128 {v(RING + 4*(jj%8), 4)}, {v(vAF0)} offset:{jj*512}'); lg.add(('f', jj))
        GR = [SACC, SACC + 8]
        def rdg(jj):
            if 'nog' in OPT: return
            A.I(f'ds_read_b128 {v(GR[jj&1], 4)}, {v(vAF1)} offset:{jj*512}'); lg.add(('g', jj))
        def rdmemb(L):
            if 'nomb' in OPT: return
            ad = f'{v(vMB0)} offset:{L*512}' if L < 3 else f'{v(vMB1)}'
            A.I(f'ds_read_b128 {v(MEMB + 4*L, 4)}, {ad}'); lg.add(('m', L))
        def cvt(L, k): A.I(f'v_cvt_pk_bf16_f32 {v(TMP + 2*(L&1) + k)}, {v(TACC+4*L+2*k)}, {v(TACC+4*L+2*k+1)}')
        def twr(L):
            A.I(f'ds_write_b64 {v(vTW)}, {v(TMP + 2*(L&1), 2)} offset:{L*768}'); lg.add(('w', L))
        TOPD = RING + 4 * (8 % 8)
        top = {0: TOPA, 1: TOPB, 2: TOPD, 3: TOPC}
        def trr(L):
            A.I(f'ds_read_b64_tr_b16 {v(top[L], 2)}, {v(vTR)} offset:{L*768}'); lg.add(('x', L))
            A.I(f'ds_read_b64_tr_b16 {v(top[L]+2, 2)}, {v(vTR)} offset:{L*768+384}'); lg.add(('t', L))
        def smm1(L, t, first=False):
            lg.wait(('m', L)); lg.wait(('t', L))
            if t == 0: A.I(f'v_mfma_f32_16x16x32_bf16 {v(SACC,4)}, {v(MEMB + 4*L, 4)}, {v(top[L],4)}, {0 if first else v(SACC,4)}')
            else: A.I(f'v_smfmac_f32_16x16x64_bf16 {v(SACC+4,4)}, {v(top[L],4)}, {v(XF + 8*L, 8)}, {v(vIDX)}')
        def chk(j0, first=False):
            if 'nochk' in OPT and not first: return
            a, b = v(RING + 4*(j0 % 8)), v(RING + 4*((j0+1) % 8))
            if first: A.I(f'v_max_u32 {v(vCK)}, {a}, {b}')
            else: A.I(f'v_max3_u32 {v(vCK)}, {a}, {b}, {v(vCK)}')
        fill = {i: [] for i in range(49)}
        ix = {x: i for i, x in enumerate(seq)}
        if SPL:
            fill[0].append(lambda: rdfrag(2))
            fill[GB].append(lambda: A.I('s_waitcnt vmcnt(0)\n s_barrier')); fill[GB + 1].append(lambda: rdg(0)); fill[GB + 2].append(lambda: rdg(1))
        else:
            fill[0].append(lambda: rdg(0)); fill[1].append(lambda: rdfrag(2)); fill[ix[(1, 1)]].append(lambda: rdg(1))
        for k in range(3, 8): fill[ix[(0, k - PD)]].append(lambda k=k: rdfrag(k))
        for k in range(5): fill[ix[(3, k)]].append(lambda k=k: rdg(k + 2))
        for k in range(6): fill[ix[(2, k)]].append(lambda k=k: rdfrag(8 + k))
        e3 = ix[(3, 6)]
        if 'nol3' not in OPT: fill[e3 + 2].append(lambda: cvt(3, 0)); fill[e3 + 3].append(lambda: cvt(3, 1)); fill[e3 + 5].append(lambda: twr(3)); fill[e3 + 6].append(lambda: trr(3))
        for k, L in enumerate([3, 0, 1, 2]): fill[ix[(0, 10 + k)]].append(lambda L=L: rdmemb(L))
        for j0 in range(0, 14, 2):
            i = ix[(0, j0 + 1)]
            while i in (e3 + 2, e3 + 3): i += 1
            fill[i].append(lambda j0=j0: chk(j0, j0 == 0))
        fill[42].append(lambda: A.I(f'v_cmp_eq_u32 vcc, {s(sSENT)}, {v(vCK)}'))
        fill[43].append(lambda: cvt(0, 0)); fill[44].append(lambda: cvt(0, 1))
        fill[45] += [lambda: twr(0), lambda: cvt(1, 0)]; fill[46] += [lambda: trr(0), lambda: cvt(1, 1)]
        fill[47].append(lambda: twr(1)); fill[48].append(lambda: trr(1))
        fill[ix[(1, 5)]].insert(0, lambda: addp(A, 40, sP, 2 * PS_SLOT))
        fill[ix[(1, 6)]].insert(0, lambda: A.I(f's_mov_b64 exec, {s(sM20,2)}\n global_store_dword {v(vPS)}, {v(vSN)}, s[40:41] {sc}\n s_mov_b64 exec, -1'))
        rdfrag(0); rdfrag(1)
        for i, (L, jj) in enumerate(seq):
            lg.now = i; lg.wait_old(('f', jj) if L < 3 else ('g', jj), AGE)
            A.I(f'v_smfmac_f32_16x16x64_bf16 {v(TACC+4*L,4)}, {v(RING+4*(jj%8) if L < 3 else GR[jj&1],4)}, {wreg(i)}, {v(vIDX)}')
            if i == 0: stamp(A, 8, prof > 1)
            if i == 24: stamp(A, 9, prof > 1)
            for f in fill[i]: f()
        stamp(A, 2, prof > 1)
        smm1(3, 1); smm1(3, 0, True)
        cvt(2, 0); cvt(2, 1); twr(2); trr(2)
        A.I(f's_cbranch_vccnz L_{tg}_redo')
        for L in (0, 1): smm1(L, 1); smm1(L, 0)
        smm1(2, 0); smm1(2, 1)
        stamp(A, 10, prof > 1)
        Z = RING + 4
        A.I(f'''
        v_cndmask_b32 {v(Z)}, {v(SACC)}, {v(SACC+1)}, {s(sMHI,2)}
        v_cndmask_b32 {v(Z+1)}, {v(SACC+2)}, {v(SACC+3)}, {s(sMHI,2)}
        v_cndmask_b32 {v(Z)}, {v(Z)}, {v(Z+1)}, {s(sMG,2)}
        ds_write_b32 {v(vSM)}, {v(Z)}
        ds_write2_b32 {v(vSW)}, {v(SACC+4)}, {v(SACC+5)} offset0:0 offset1:44
        ds_write2_b32 {v(vSW)}, {v(SACC+6)}, {v(SACC+7)} offset0:88 offset1:132
        ''')
        stamp(A, 11, prof > 1)
        for k in range(FA): A.I(f'v_mov_b32 {v(TACC+k)}, 0')
        A.I('s_waitcnt lgkmcnt(0)')
        stamp(A, 12, prof > 1)
        A.I('s_barrier')
        stamp(A, 3, prof)
        for k in range(4): A.I(f'ds_read_b64 {v(Z+2*k,2)}, {v(vSR)} offset:{k*1408}')
        for k in range(FA, FA + FB): A.I(f'v_mov_b32 {v(TACC+k)}, 0')
        E, M = Z + 8, Z + 10
        A.I(f'''
        s_waitcnt lgkmcnt(2)
        v_pk_add_f32 {v(Z,2)}, {v(Z,2)}, {v(Z+2,2)}
        s_waitcnt lgkmcnt(0)
        v_pk_add_f32 {v(Z+4,2)}, {v(Z+4,2)}, {v(Z+6,2)}
        v_pk_add_f32 {v(Z,2)}, {v(Z,2)}, {v(Z+4,2)}
        ''')
        stamp(A, 13, prof > 1)
        def summ(a, check=False):
            A.I(f'''
            v_exp_f32 {v(E)}, {v(a)}
            v_exp_f32 {v(E+1)}, {v(a+1)}
            v_add_f32 {v(M)}, {v(E)}, {v(E+1)}
            ''')
            for k in (8, 4, 2, 1): A.I(f'v_add_f32_dpp {v(M)}, {v(M)}, {v(M)} {dpp(k)}')
            A.I(f'v_mov_b32 {v(M+1)}, {v(M)}')
            if check: A.I(f'v_med3_f32 {v(M+3)}, {v(M)}, {v(vLO)}, {s(sHI)}\n v_cmp_neq_f32 vcc, {v(M+3)}, {v(M)}')
            A.I(f'''
            v_permlane16_swap_b32 {v(M)}, {v(M+1)}
            v_add_f32 {v(M)}, {v(M)}, {v(M+1)}
            ''')
        def truemax():
            A.I(f'v_max_f32 {v(M)}, {v(Z)}, {v(Z+1)}')
            for k in (8, 4, 2, 1): A.I(f'v_max_f32_dpp {v(M)}, {v(M)}, {v(M)} {dpp(k)}')
            A.I(f'''
            v_mov_b32 {v(M+1)}, {v(M)}
            v_permlane16_swap_b32 {v(M)}, {v(M+1)}
            v_max_f32 {v(M)}, {v(M)}, {v(M+1)}
            v_sub_f32 {v(E)}, {v(Z)}, {v(M)}
            v_sub_f32 {v(E+1)}, {v(Z+1)}, {v(M)}
            ''')
            summ(E)
        def norm():
            A.I(f'''
            v_rcp_f32 {v(M+2)}, {v(M)}
            s_mov_b64 exec, {s(sM20,2)}
            v_pk_mul_f32 {v(E,2)}, {v(E,2)}, {v(M+2,2)} op_sel_hi:[1,0]
            v_cvt_pk_bf16_f32 {v(E)}, {v(E)}, {v(E+1)}
            ''')
        if 'max' in OPT: truemax(); norm()
        else: summ(Z, True); stamp(A, 14, prof > 1); norm(); A.I(f's_cbranch_vccnz L_{tg}_max')
        A.label(f'L_{tg}_norm')
        A.I(f'global_store_dword {v(vPS)}, {v(E)}, {s(sP,2)} {sc}')
        stamp(A, 4, prof)
        A.I(f's_mov_b64 exec, -1\n s_add_u32 {s(sSTEP)}, {s(sSTEP)}, 1\n s_cmp_ge_u32 {s(sSTEP)}, {NSTEP}\n s_cbranch_scc1 L_sc_end')
        if XB2: A.I(f's_cmp_ge_u32 {s(sSTEP)}, {NSTEP-1}\n s_cbranch_scc1 L_{tg}_nox')
        if 'nox' not in OPT: xdma()
        if tok.FIN: A.I(f's_branch L_{tg}_nof')
        A.label(f'L_{tg}_nox')
        if tok.FIN:
            A.I(f's_lshl_b32 s42, {s(sROLE)}, 2\n s_add_u32 s42, s42, {s(sW)}\n s_mul_i32 s42, s42, 10240')
            addp(A, 40, sWS, FX_OFF); addps(A, 40, 40, 42)
            A.I(f's_lshl_b32 s42, {s(sW)}, 13\n s_lshl_b32 s43, {s(sW)}, 11\n v_subrev_u32 {v(RING)}, {s(sLB)}, {v(vG0)}')
            for k in range(10):
                A.I(f's_add_u32 m0, s42, {131072 + (k>>2)*4096}' if k < 8 else f's_add_u32 m0, s43, 51200')
                A.I(f'global_load_lds_dwordx4 {v(RING)}, s[40:41] offset:{(k%4)*1024} sc1')
                if k % 4 == 3: addp(A, 40, 40, 4096)
            A.label(f'L_{tg}_nof')
        for k in range(6): A.I(f'ds_read_b128 {v(R+4*k,4)}, {v(vRW)} offset:{k*1024}')
        for k in range(FA + FB, 16): A.I(f'v_mov_b32 {v(TACC+k)}, 0')
        addp(A, sP, sP, PS_SLOT); addp(A, sMEM, sMEM, MEM_SLOT)
        if SPL: addp(A, sMEM2, sMEM2, MEM_SLOT)
        stamp_flush(A, prof)
        if not XB2: A.I('s_waitcnt vmcnt(0)')
        xread()
        delay(A, SS)
        stamp(A, 5, prof)
        A.I(f's_branch L_{tg}_step')
        if 'max' not in OPT:
            A.label(f'L_{tg}_max'); A.I('s_mov_b64 exec, -1\n s_nop 1'); truemax(); norm(); A.I(f's_branch L_{tg}_norm')
        A.label(f'L_{tg}_redo')
        if prof: A.I(f's_add_u32 {s(sreg(15))}, {s(sreg(15))}, 1')
        A.I('s_waitcnt vmcnt(0) lgkmcnt(0)\n s_nop 15\n s_barrier')
        for k in range(6): A.I(f'ds_read_b128 {v(R+4*k,4)}, {v(vRW)} offset:{k*1024}')
        for k in range(16): A.I(f'v_mov_b32 {v(TACC+k)}, 0')
        for k in range(4): A.I(f'v_mov_b32 {v(SACC+4+k)}, 0')
        A.I(f's_branch L_{tg}_mp')
    loop('sc', ''); loop('sd', 'sc1')
    A.label('L_sc_end')
    tl(A, 1, 2, T)
    stamp_flush(A, prof)
    if tok.FIN:
        A.I(f'''
        v_mbcnt_lo_u32_b32 v0, -1, 0
        v_mbcnt_hi_u32_b32 v0, -1, v0
        v_and_b32 v1, 15, v0
        v_lshrrev_b32 v2, 4, v0
        v_lshlrev_b32 v3, 4, v0
        ''')
        tok.tt_setup(A)
        A.I(f's_lshl_b32 s42, {s(sW)}, 13\n s_add_u32 s42, s42, 131072\n v_add_u32 v4, s42, v3\n s_lshl_b32 s42, {s(sW)}, 11\n s_add_u32 s42, s42, 51200\n v_add_u32 v5, s42, v3')
        for k in range(10):
            A.I(f'ds_read_b128 {v(tok.TT.TB+4*k if k < 7 else tok.TT.SA+4*(k-7),4)}, {"v4" if k < 8 else "v5"} offset:{(k%8)*1024}')
        addp(A, sMEM, sMEM, MEM_SLOT); addp(A, sP, sWS, PX_OFF + 63 * PX_SEG)
        O = tok.tt_finish(A, 'sf', sMEM, False)
        A.I(f'''
        s_mov_b64 exec, {s(tok.TT.sM5,2)}
        s_cmp_eq_u32 {s(sEA)}, 0
        s_cbranch_scc1 L_sf_slow
        global_store_dwordx4 {v(tok.TT.vPX)}, {v(O,4)}, {s(sP,2)}
        s_endpgm
L_sf_slow:
        global_store_dwordx4 {v(tok.TT.vPX)}, {v(O,4)}, {s(sP,2)} sc1
        ''')
    A.I('s_endpgm')

def value(A, prof=0):
    L_MEM, L_RB, L_WL, L_VB = 0, 8192, 16384, 131072
    DEC = 'dec' in OPT
    H3R, NR = 136, NRES
    RBW = 32 * 48
    vIDX, vG0, vCK, vPR, vAF, vWL, vV0, vV1, vPM, vPX, vSN, vRWR, vRRD, vMS, vZ, vDUM, vFL, vVB, vVP = range(1, 20)
    ARING, HRING, VXF, WACC, WX, WY, OX, OY, PF, WV = 20, 36, 60, 92, 108, 112, 116, 120, 124, 176
    lg = Cnt(A, 'lgkmcnt', 15)
    def wreg(hh, j):
        k = (hh * 14 + j) * 8
        return a_(k, 8) if k < 256 else v(WV + k - 256, 8)
    A.label('L_value')
    A.I(f's_load_dwordx2 {s(sX0,2)}, s[0:1], {KA_OUT}\n s_waitcnt lgkmcnt(0)')
    chain_common(A)
    T = 20
    A.I(f's_mov_b32 {s(sTMP)}, {s(sROLE)}\n s_sub_u32 {s(sROLE)}, {s(sROLE)}, 16')
    idx_setup(A, vIDX, T)
    mem_poll_setup(A, vG0, vPR, T + 4, DEC)
    A.I(f'''
    v_lshlrev_b32 {v(vAF)}, 7, {v(T+1)}
    v_lshl_add_u32 {v(vAF)}, {v(T+2)}, 4, {v(vAF)}
    s_mul_i32 s40, {s(sW)}, 28672
    s_add_u32 s40, s40, {L_WL}
    v_lshl_add_u32 {v(vWL)}, v0, 4, s40
    s_lshl_b32 s40, {s(sW)}, 13
    v_lshl_add_u32 {v(vV0)}, v0, 4, s40
    v_add_u32 {v(vV1)}, 4096, {v(vV0)}
    s_mul_i32 s40, {s(sW)}, 2560
    v_and_b32 {v(T+5)}, 1, {v(T+1)}
    v_lshl_add_u32 {v(vPX)}, v0, 4, s40
    v_lshl_add_u32 {v(vPM)}, v0, 2, s40
    v_lshlrev_b32 {v(vFL)}, 2, {v(T)}
    s_and_b32 s41, {s(sW)}, 1
    s_lshl_b32 s41, s41, 13
    v_lshl_add_u32 {v(vVP)}, v0, 4, s41
    s_add_u32 {s(sXB)}, s41, {L_VB}
    v_lshl_add_u32 {v(vVB)}, v0, 4, {s(sXB)}
    s_mul_i32 s40, {s(sW)}, {RBW}
    s_add_u32 s40, s40, {L_RB}
    v_lshrrev_b32 {v(T+7)}, 5, v0
    v_lshl_add_u32 {v(T+7)}, {v(T+7)}, 4, {v(T)}
    v_mul_u32_u24 {v(T+7)}, 48, {v(T+7)}
    v_lshl_add_u32 {v(T+7)}, {v(T+5)}, 4, {v(T+7)}
    v_add_u32 {v(vRWR)}, s40, {v(T+7)}
    s_and_b32 s40, {s(sW)}, 1
    s_lshl_b32 s40, s40, 4
    s_lshr_b32 s41, {s(sW)}, 1
    s_lshl_b32 s41, s41, 2
    s_add_u32 s40, s40, s41
    v_bfe_u32 {v(T+7)}, v0, 2, 1
    v_lshlrev_b32 {v(T+7)}, 3, {v(T+7)}
    v_and_b32 {v(T+8)}, 3, v0
    v_add3_u32 {v(T+7)}, {v(T+7)}, {v(T+8)}, s40
    v_mul_u32_u24 {v(T+7)}, 48, {v(T+7)}
    v_lshrrev_b32 {v(T+8)}, 3, v0
    v_lshl_add_u32 {v(T+7)}, {v(T+8)}, 2, {v(T+7)}
    v_add_u32 {v(vRRD)}, {L_RB}, {v(T+7)}
    s_lshl_b32 s40, {s(sROLE)}, 9
    s_lshl_b32 s41, {s(sW)}, 7
    s_add_u32 s40, s40, s41
    v_lshl_add_u32 {v(vMS)}, v0, 1, s40
    v_mov_b32 {v(vSN)}, {SENT}
    ''')
    addp(A, sMEM, sWS, MEMS_OFF); addp(A, 40, sMEM, MEM_SLOT); addp(A, 42, sMEM, 2 * MEM_SLOT)
    A.I(f'''
    global_store_short {v(vMS)}, {v(vSN)}, s[40:41] sc1
    global_store_short {v(vMS)}, {v(vSN)}, s[42:43] sc1
    ''')
    xcc_publish(A, sTMP, T + 12)
    warm(A, 'L_va_step', 'L_vb_step', T + 12)
    A.I(f'''
    s_mul_i32 s40, {s(sW)}, {4*MF_HEAD}
    s_mul_i32 s41, {s(sROLE)}, {14*2048}
    s_add_u32 s40, s40, s41
    s_cmp_ge_u32 {s(sROLE)}, 8
    s_cselect_b32 {s(sTMP)}, 1, 0
    v_lshlrev_b32 {v(T+8)}, 4, v0
    ''')
    addp(A, sWT, sWS, MF_OFF + MF_MAT); addps(A, sWT, sWT, 40)
    addp(A, sVX, sWS, PF_OFF + 1024)
    A.I(f'''
    s_lshl_b32 s40, {s(sTMP)}, 9
    s_lshl_b32 s41, {s(sW)}, 7
    s_add_u32 s40, s40, s41
    v_and_b32 {v(T+12)}, 31, v0
    v_lshl_add_u32 {v(T+12)}, {v(T+12)}, 2, s40
    s_mov_b32 s46, 15
L_va_w:
    global_load_dword {v(T+13)}, {v(T+12)}, {s(sVX,2)} sc1
    ''')
    bud(A)
    A.I(f's_waitcnt vmcnt(0)\n v_cmp_eq_u32 vcc, 0, {v(T+13)}\n s_mov_b32 s47, vcc_lo')
    for hh in (3, 0, 1, 2):
        A.I(f'''
        s_bitcmp0_b32 s46, {hh}
        s_cbranch_scc1 L_va_w{hh}
        s_and_b32 s40, s47, {0xff << (8*hh)}
        s_cbranch_scc1 L_va_w{hh}
        s_bitset0_b32 s46, {hh}
        s_waitcnt vmcnt(32)
        ''')
        addp(A, 40, sWT, hh * MF_HEAD)
        for q in range(28):
            if hh == 3: dst = v(60 + 4 * q, 4)
            else:
                k = 112 * hh + 4 * q; dst = a_(k, 4) if k < 256 else v(WV + k - 256, 4)
            A.I(f'global_load_dwordx4 {dst}, {v(T+8)}, s[40:41] offset:{(q%4)*1024} sc1')
            if q % 4 == 3 and q < 27: addp(A, 40, 40, 4096)
        A.label(f'L_va_w{hh}')
    A.I(f's_cmp_lg_u32 s46, 0\n s_cbranch_scc1 L_va_w\n s_waitcnt vmcnt(0)')
    tl(A, 1, 4, T + 14)
    for k in range(2 * NR, 28): A.I(f'ds_write_b128 {v(vWL)}, {v(60+4*k,4)} offset:{k*1024}')
    A.I('s_waitcnt lgkmcnt(0)')
    for k in range(8 * NR): A.I(f'v_mov_b32 {v(H3R+k)}, {v(60+k)}')
    assist(A, 'va_as', sROLE, T + 12)
    xcc_check(A, 'va', T + 12)
    addp(A, sP, sWS, PS_OFF); addp(A, sFL, sWS, FL_OFF); addp(A, sMT, sWS, MEMT_OFF + (62 if tok.FIN else 63) * MEMT_SLOT)
    A.I(f's_mul_i32 s40, {s(sROLE)}, {VX_SC}'); addp(A, sVX, sWS, VX_OFF); addps(A, sVX, sVX, 40)
    A.I('s_waitcnt vmcnt(0) lgkmcnt(0)')
    tl(A, 1, 1, T)
    def flagwait(tag, loaded):
        if loaded:
            A.I(f'v_cmp_eq_u32 vcc, 0, {v(vDUM)}\n s_cbranch_vccz L_{tag}_ok')
        A.I(f'L_{tag}:\n global_load_dword {v(vDUM)}, {v(vFL)}, {s(sFL,2)} sc1')
        bud(A)
        A.I(f'''
        s_waitcnt vmcnt(0)
        v_cmp_eq_u32 vcc, 0, {v(vDUM)}
        s_cbranch_vccnz L_{tag}
L_{tag}_ok:
        ''')
    flagwait('va_f0', False)
    tl(A, 1, 3, T)
    addp(A, sFL, sFL, 256)
    if prof:
        A.I(f's_add_u32 s40, {s(sROLE)}, 16\n s_lshl_b32 s40, s40, 2\n s_add_u32 s40, s40, {s(sW)}\n s_lshl_b32 s40, s40, 12')
        addp(A, sDBG, sWS, END_OFF); addps(A, sDBG, sDBG, 40)
    def vxload(k, force=False):
        if 'novx' in OPT and not force: return
        hh, t = k >> 1, k & 1
        A.I(f'global_load_dwordx4 {v(VXF+16*t+4*hh,4)}, {v(vV0 if hh < 2 else vV1)}, {s(sVX,2)} offset:{(hh&1)*2048+t*1024} sc1')
    def vxearly(tag):
        if not DEC:
            for k in range(VE): vxload(k)
            return
        A.I(f's_cmp_lt_u32 {s(sW)}, 2\n s_cbranch_scc1 L_{tag}')
        addp(A, 40, sVX, 4096)
        for k in range(8):
            A.I(f's_add_u32 m0, {s(sXB)}, {(k>>2)*4096}')
            A.I(f'global_load_lds_dwordx4 {v(vVP)}, {s(sVX if k < 4 else 40,2)} offset:{(k&3)*1024} sc1')
        for k in range(8): vxload(k)
        A.label(f'L_{tag}')
    def hslot(j): return [HRING, HRING + 8, HRING + 16, 168][(j - NR) % HD]
    def rdh(j):
        if j < NR or j >= 14: return
        for k in range(2):
            A.I(f'ds_read_b128 {v(hslot(j)+4*k,4)}, {v(vWL)} offset:{(2*j+k)*1024}'); lg.add(('h', j))
    def rda(j):
        A.I(f'ds_read_b128 {v(ARING+4*(j%4),4)}, {v(vAF)} offset:{j*512}'); lg.add(('a', j))
    def prep_():
        for k in range(16): A.I(f'v_mov_b32 {v(WACC+k)}, 0')
        for j in range(NR, NR + HD - 1): rdh(j)
    for k in range(8): A.I(f'v_mov_b32 {v(OX+k)}, 0')
    vxearly('va_e0')
    if 'novx' in OPT:
        for k in range(8): vxload(k, True)
    prep_()
    P2, AC, BP, G, vA, vF2, vW, vRd, vO, vBa, vGa = 176, 216, 232, 236, 116, 117, 118, 119, 120, 121, 122
    def fin_setup():
        U = 124
        A.I(f'''
        v_min_u32 {v(U)}, 38, v0
        v_cmp_lt_u32 vcc, 22, {v(U)}
        v_cndmask_b32 {v(U+1)}, 0, 9, vcc
        v_add_lshl_u32 {v(U)}, {v(U)}, {v(U+1)}, 2
        v_min_u32 {v(vF2)}, {4*38}, {v(U)}
        s_mul_i32 s40, {s(sW)}, 10240
        v_lshl_add_u32 {v(vA)}, v0, 4, s40
        v_and_b32 {v(U)}, 15, v0
        v_lshrrev_b32 {v(U+1)}, 4, v0
        s_mul_i32 s40, {s(sW)}, 4608
        s_add_u32 s40, s40, {L_WL}
        v_mul_u32_u24 {v(U+2)}, 144, {v(U)}
        v_lshl_add_u32 {v(U+2)}, {v(U+1)}, 4, {v(U+2)}
        v_add_u32 {v(vW)}, s40, {v(U+2)}
        v_lshrrev_b32 {v(U)}, 3, v0
        v_lshl_add_u32 {v(U)}, {s(sW)}, 3, {v(U)}
        v_and_b32 {v(U+1)}, 7, v0
        v_mul_u32_u24 {v(U+2)}, 144, {v(U)}
        v_lshl_add_u32 {v(U+2)}, {v(U+1)}, 4, {v(U+2)}
        v_add_u32 {v(vRd)}, {L_WL}, {v(U+2)}
        s_lshl_b32 s40, {s(sROLE)}, 6
        v_mul_u32_u24 {v(U+2)}, 896, {v(U)}
        v_lshl_add_u32 {v(U+2)}, {v(U+1)}, 3, {v(U+2)}
        v_add_u32 {v(vO)}, s40, {v(U+2)}
        v_lshlrev_b32 {v(vBa)}, 1, {v(vO)}
        v_lshlrev_b32 {v(vGa)}, 2, {v(U)}
        ''')
    A.I(f's_cmp_eq_u32 {s(sEA)}, 0\n s_cbranch_scc1 L_vb_step')
    def loop(tg, sc):
        if ALV >= 0:
            A.raw('.p2align 6, , 63')
            for _ in range(ALV): A.I('s_nop 0')
        A.label(f'L_{tg}_step')
        stamp(A, 0, prof)
        (mem_poll_half if DEC else mem_poll)(A, tg, vG0, vPR, PF + 10)
        stamp(A, 1, prof)
        lg.clear()
        rda(0); rda(1); rda(2)
        addp(A, 40, sMEM, 3 * MEM_SLOT)
        A.I(f'global_store_short {v(vMS)}, {v(vSN)}, s[40:41] {sc}')
        for j in range(14):
            lg.wait(('a', j))
            for hh in range(4):
                if hh == 3: lg.wait(('h', j))
                w = wreg(hh, j) if hh < 3 else v(H3R + 8 * j, 8) if j < NR else v(hslot(j), 8)
                A.I(f'v_smfmac_f32_16x16x64_bf16 {v(WACC+4*hh,4)}, {v(ARING+4*(j%4),4)}, {w}, {v(vIDX)}' if 'now' not in OPT else 's_nop 3')
                if hh == 0 and j >= NR: rdh(j + HD - 1)
                if hh == 1 and j + 3 < 14: rda(j + 3)
                if hh == 2 and j < 8 - VE and not DEC: vxload(7 - j if 'vrev' in OPT else j + VE)
                if hh == 2 and j == 8 - VE: A.I(f'global_load_dword {v(vDUM)}, {v(vFL)}, {s(sFL,2)} sc1')
                if hh == 2:
                    if j == 0: A.I(f'v_mov_b32 {v(vCK)}, {v(ARING)}')
                    else: A.I(f'v_max_u32 {v(vCK)}, {v(vCK)}, {v(ARING+4*(j%4))}')
                if hh == 3 and j == 13: A.I(f'v_cmp_eq_u32 vcc, {s(sSENT)}, {v(vCK)}')
        A.I(f's_cbranch_vccnz L_{tg}_redo')
        if tok.FIN:
            A.I(f'''
            s_cmp_lt_u32 {s(sSTEP)}, {NSTEP-3}
            s_cbranch_scc1 L_{tg}_nr
            s_cmp_eq_u32 {s(sSTEP)}, {NSTEP}
            s_cbranch_scc1 L_va_fin
            v_cmp_eq_u32 vcc, 0, {v(PF+11)}
            s_cbranch_vccz L_{tg}_nr
            ''')
            addp(A, 40, sWS, FL_OFF + 63 * 256 + 64)
            A.I(f'L_{tg}_ex:\n global_load_dword {v(PF+11)}, {v(vFL)}, s[40:41] sc1')
            bud(A)
            A.I(f's_waitcnt vmcnt(0)\n v_cmp_eq_u32 vcc, 0, {v(PF+11)}\n s_cbranch_vccnz L_{tg}_ex\nL_{tg}_nr:')
        if DEC:
            A.I(f's_waitcnt vmcnt(0)\n s_barrier\n s_cmp_ge_u32 {s(sW)}, 2\n s_cbranch_scc1 L_{tg}_nv')
            for k in range(8): A.I(f'ds_read_b128 {v(VXF+16*(k&1)+4*(k>>1),4)}, {v(vVB)} offset:{k*1024}')
            A.label(f'L_{tg}_nv')
        for k in range(2):
            for p in range(2):
                A.I(f'v_cvt_pk_bf16_f32 {v(WX+2*k+p)}, {v(WACC+8*p+2*k)}, {v(WACC+8*p+2*k+1)}')
                A.I(f'v_cvt_pk_bf16_f32 {v(WY+2*k+p)}, {v(WACC+8*p+4+2*k)}, {v(WACC+8*p+4+2*k+1)}')
        for k in range(4): A.I(f'v_permlane32_swap_b32 {v(WX+k)}, {v(WY+k)}')
        if DEC: A.I('s_waitcnt lgkmcnt(0)')
        stamp(A, 2, prof)
        if prof: A.I('s_waitcnt vmcnt(0)'); stamp(A, 6, prof)
        F = PF
        if 'nospec' in OPT:
            for k in range(8): A.I(f'v_mov_b32 {v(OX+k)}, 0')
        delay(A, PS_)
        A.I(f'''
L_{tg}_pp:
        global_load_dwordx4 {v(F,4)}, {v(vPX)}, {s(sP,2)} sc1
        global_load_dwordx4 {v(F+4,4)}, {v(vPX)}, {s(sP,2)} offset:1024 sc1
        global_load_dword {v(F+8)}, {v(vPM)}, {s(sP,2)} offset:2048 sc1
        global_load_dword {v(F+9)}, {v(vPM)}, {s(sP,2)} offset:2304 sc1
        ''')
        bud(A)
        if 'nospec' in OPT:
            A.I(f'''
            s_waitcnt vmcnt(0)
            v_max3_u32 {v(vCK)}, {v(F)}, {v(F+4)}, {v(F+8)}
            v_max_u32 {v(vCK)}, {v(vCK)}, {v(F+9)}
            v_cmp_eq_u32 vcc, {s(sSENT)}, {v(vCK)}
            s_cbranch_vccnz L_{tg}_pp
            v_smfmac_f32_16x16x64_bf16 {v(OX,4)}, {v(F,4)}, {v(VXF,8)}, {v(vIDX)}
            v_smfmac_f32_16x16x64_bf16 {v(OY,4)}, {v(F,4)}, {v(VXF+16,8)}, {v(vIDX)}
            v_smfmac_f32_16x16x64_bf16 {v(OX,4)}, {v(F+4,4)}, {v(VXF+8,8)}, {v(vIDX)}
            v_smfmac_f32_16x16x64_bf16 {v(OY,4)}, {v(F+4,4)}, {v(VXF+24,8)}, {v(vIDX)}
            v_smfmac_f32_16x16x32_bf16 {v(OX,4)}, {v(F+8,2)}, {v(WX,4)}, {v(vIDX)}
            v_smfmac_f32_16x16x32_bf16 {v(OY,4)}, {v(F+8,2)}, {v(WY,4)}, {v(vIDX)}
            ''')
        elif 'spec2' in OPT:
            for k in range(8): A.I(f'v_mov_b32 {v(OX+k)}, 0')
            A.I(f'''
            s_waitcnt vmcnt(0)
            v_max3_u32 {v(vCK)}, {v(F)}, {v(F+4)}, {v(F+8)}
            v_max_u32 {v(vCK)}, {v(vCK)}, {v(F+9)}
            v_cmp_eq_u32 vcc, {s(sSENT)}, {v(vCK)}
            v_smfmac_f32_16x16x64_bf16 {v(OX,4)}, {v(F,4)}, {v(VXF,8)}, {v(vIDX)}
            v_smfmac_f32_16x16x64_bf16 {v(OY,4)}, {v(F,4)}, {v(VXF+16,8)}, {v(vIDX)}
            s_cbranch_vccnz L_{tg}_pp
            v_smfmac_f32_16x16x64_bf16 {v(OX,4)}, {v(F+4,4)}, {v(VXF+8,8)}, {v(vIDX)}
            v_smfmac_f32_16x16x64_bf16 {v(OY,4)}, {v(F+4,4)}, {v(VXF+24,8)}, {v(vIDX)}
            v_smfmac_f32_16x16x32_bf16 {v(OX,4)}, {v(F+8,2)}, {v(WX,4)}, {v(vIDX)}
            v_smfmac_f32_16x16x32_bf16 {v(OY,4)}, {v(F+8,2)}, {v(WY,4)}, {v(vIDX)}
            ''')
        else:
            for k in range(8): A.I(f'v_mov_b32 {v(OX+k)}, 0')
            A.I(f'''
            s_waitcnt vmcnt(3)
            v_smfmac_f32_16x16x64_bf16 {v(OX,4)}, {v(F,4)}, {v(VXF,8)}, {v(vIDX)}
            v_smfmac_f32_16x16x64_bf16 {v(OY,4)}, {v(F,4)}, {v(VXF+16,8)}, {v(vIDX)}
            s_waitcnt vmcnt(0)
            v_max3_u32 {v(vCK)}, {v(F)}, {v(F+4)}, {v(F+8)}
            v_smfmac_f32_16x16x64_bf16 {v(OX,4)}, {v(F+4,4)}, {v(VXF+8,8)}, {v(vIDX)}
            v_max_u32 {v(vCK)}, {v(vCK)}, {v(F+9)}
            v_smfmac_f32_16x16x64_bf16 {v(OY,4)}, {v(F+4,4)}, {v(VXF+24,8)}, {v(vIDX)}
            v_cmp_eq_u32 vcc, {s(sSENT)}, {v(vCK)}
            v_smfmac_f32_16x16x32_bf16 {v(OX,4)}, {v(F+8,2)}, {v(WX,4)}, {v(vIDX)}
            v_smfmac_f32_16x16x32_bf16 {v(OY,4)}, {v(F+8,2)}, {v(WY,4)}, {v(vIDX)}
            s_cbranch_vccnz L_{tg}_pp
            ''')
        stamp(A, 3, prof)
        stamp(A, 8, prof > 1)
        A.flush()
        for r in range(4): A.I(f'v_permlane32_swap_b32 {v(OX+r)}, {v(OY+r)}')
        A.I(f'''
        v_pk_add_f32 {v(OX,2)}, {v(OX,2)}, {v(OY,2)}
        v_pk_add_f32 {v(OX+2,2)}, {v(OX+2,2)}, {v(OY+2,2)}
        ds_write_b128 {v(vRWR)}, {v(OX,4)}
        ''')
        stamp(A, 9, prof > 1)
        for k in range(FC): A.I(f'v_mov_b32 {v(WACC+k)}, 0')
        A.I('s_waitcnt lgkmcnt(0)')
        stamp(A, 10, prof > 1)
        A.I('s_barrier')
        stamp(A, 11, prof > 1)
        Z = ARING + 4
        for k in range(4): A.I(f'ds_read_b32 {v(Z+k)}, {v(vRRD)} offset:{k*RBW}')
        for k in range(FC, FC + FD): A.I(f'v_mov_b32 {v(WACC+k)}, 0')
        addp(A, sMEM, sMEM, MEM_SLOT); addp(A, sP, sP, PS_SLOT)
        A.I('s_waitcnt lgkmcnt(0)')
        stamp(A, 12, prof > 1)
        A.I(f'''
        v_pk_add_f32 {v(Z,2)}, {v(Z,2)}, {v(Z+2,2)}
        v_add_f32 {v(Z)}, {v(Z)}, {v(Z+1)}
        v_cvt_pk_bf16_f32 {v(vZ)}, {v(Z)}, {v(Z)}
        ''')
        A.I(f'global_store_short {v(vMS)}, {v(vZ)}, {s(sMEM,2)} {sc}')
        stamp(A, 4, prof)
        A.I(f's_add_u32 {s(sSTEP)}, {s(sSTEP)}, 1')
        if not tok.FIN: A.I(f's_cmp_ge_u32 {s(sSTEP)}, {NSTEP}\n s_cbranch_scc1 L_va_end')
        flagwait(tg + '_f1', True)
        addp(A, sVX, sVX, 14 * VX_SC); addp(A, sFL, sFL, 256)
        vxearly(tg + '_e1')
        if tok.FIN:
            A.I(f's_cmp_lt_u32 {s(sSTEP)}, {NSTEP-3}\n s_cbranch_scc1 L_{tg}_nd\n s_cmp_eq_u32 {s(sSTEP)}, {NSTEP}\n s_cbranch_scc1 L_{tg}_fs')
            addp(A, 40, sWS, FL_OFF + 63 * 256 + 64)
            A.I(f'global_load_dword {v(PF+11)}, {v(vFL)}, s[40:41] sc1\n s_cmp_lg_u32 {s(sSTEP)}, {NSTEP-1}\n s_cbranch_scc1 L_{tg}_nd')
            if DIR: A.I(f'global_store_short {v(vMS)}, {v(vZ)}, {s(sMT,2)} sc1')
            A.I(f's_branch L_{tg}_nd\nL_{tg}_fs:')
            tl(A, 1, 2, T)
            fin_setup()
            A.label(f'L_{tg}_nd')
        lg.clear(); prep_()
        stamp(A, 5, prof)
        stamp_flush(A, prof)
        A.I(f's_branch L_{tg}_step')
        A.label(f'L_{tg}_redo')
        if prof: A.I(f's_add_u32 {s(sreg(15))}, {s(sreg(15))}, 1')
        A.I('s_waitcnt vmcnt(0) lgkmcnt(0)\n s_nop 15\n s_barrier')
        lg.clear(); prep_()
        A.I(f's_branch L_{tg}_mp')
    loop('va', ''); loop('vb', 'sc1')
    A.label('L_va_end')
    A.I(f'global_store_short {v(vMS)}, {v(vZ)}, {s(sMT,2)} sc1')
    tl(A, 1, 2, T)
    stamp_flush(A, prof)
    A.I('s_endpgm')
    if not tok.FIN: return
    A.label('L_va_fin')
    A.I('s_barrier\n s_nop 7')
    for hh in range(4):
        for k in range(2): A.I(f'v_cvt_pk_bf16_f32 {v(WX+2*hh+k)}, {v(WACC+4*hh+2*k)}, {v(WACC+4*hh+2*k+1)}')
    for k in range(4): A.I(f'v_permlane32_swap_b32 {v(WX+k)}, {v(WY+k)}')
    for k in (0, 1, 4, 5): A.I(f'v_permlane16_swap_b32 {v(WX+k)}, {v(WX+k+2)}')
    addp(A, sFL, sWS, FL_OFF + 63 * 256 + 64); addp(A, sP, sWS, PX_OFF + 63 * PX_SEG); addp(A, 42, sP, 4096); addp(A, 46, sP, 8192)
    A.I(f'v_mov_b32 {v(vFL)}, {v(vF2)}')
    flagwait('va_f2', False)
    addp(A, 40, sWS, BP_OFF); A.I(f'global_load_dwordx4 {v(BP,4)}, {v(vBa)}, s[40:41] sc1')
    addp(A, 40, sWS, G_OFF + 63 * 128); A.I(f'global_load_dword {v(G)}, {v(vGa)}, s[40:41] sc1')
    addp(A, sX0, sX0, 63 * 32 * 896)
    A.label('L_va_fp')
    for i in range(10): A.I(f'global_load_dwordx4 {v(P2+4*i,4)}, {v(vA)}, {s([sP, 42, 46][i>>2],2)} offset:{(i%4)*1024} sc1')
    bud(A)
    A.I('s_waitcnt vmcnt(0)')
    A.I(f'v_max_u32 {v(vCK)}, {v(P2)}, {v(P2+4)}')
    for i in range(2, 10, 2): A.I(f'v_max3_u32 {v(vCK)}, {v(vCK)}, {v(P2+4*i)}, {v(P2+4*i+4)}')
    A.I(f'v_cmp_eq_u32 vcc, {s(sSENT)}, {v(vCK)}')
    n = 0
    for k in range(5):
        for tt in range(2):
            for ct in range(2):
                d = v(AC + 8*ct + 4*tt, 4)
                a = v(VXF + 16*ct + 4*k, 4) if k < 4 else v(WY if ct else WX, 4)
                A.I(f'v_mfma_f32_16x16x32_bf16 {d}, {a}, {v(P2+8*k+4*tt,4)}, {d if k else 0}')
                n += 1
                if n == 2: A.I('s_cbranch_vccnz L_va_fp')
    for tt in range(2):
        for ct in range(2): A.I(f'ds_write_b128 {v(vW)}, {v(AC+8*ct+4*tt,4)} offset:{tt*16*144 + ct*64}')
    A.I('s_waitcnt lgkmcnt(0)\n s_barrier')
    for k in range(4): A.I(f'ds_read_b128 {v(P2+4*k,4)}, {v(vRd)} offset:{k*4608}')
    A.I('s_waitcnt lgkmcnt(0)')
    for a, b in ((0, 4), (8, 12), (0, 8)):
        for k in (0, 2): A.I(f'v_pk_add_f32 {v(P2+a+k,2)}, {v(P2+a+k,2)}, {v(P2+b+k,2)}')
    for k in range(4): A.I(f'v_fmac_f32 {v(BP+k)}, {v(G)}, {v(P2+k)}')
    A.I(f'''
    v_cvt_pk_bf16_f32 {v(BP)}, {v(BP)}, {v(BP+1)}
    v_cvt_pk_bf16_f32 {v(BP+1)}, {v(BP+2)}, {v(BP+3)}
    global_store_dwordx2 {v(vO)}, {v(BP,2)}, {s(sX0,2)} {tok.OST}
    ''')
    if TL['on']: A.I('s_waitcnt vmcnt(0)')
    tl(A, 1, 7, T)
    A.I('s_endpgm')

def helper(A):
    vG0, vX, vP, vM, D = 1, 2, 3, 4, 8
    A.label('L_helper')
    A.I(f's_load_dwordx2 {s(sX0,2)}, s[0:1], {KA_X}\n s_waitcnt lgkmcnt(0)')
    chain_common(A)
    xcc_publish(A, sROLE, 20)
    A.I(f'''
    s_mul_i32 {s(sLB)}, {s(sW)}, 1792
    v_lshlrev_b32 {v(vG0)}, 4, v0
    v_add_u32 {v(vG0)}, {s(sLB)}, {v(vG0)}
    s_mov_b32 {s(sM48)}, -1
    s_mov_b32 {s(sM48+1)}, 0xffff
    s_mul_i32 s40, {s(sW)}, 7168
    v_min_u32 {v(vX)}, 55, v0
    v_lshl_add_u32 {v(vX)}, {v(vX)}, 7, s40
    s_mul_i32 s40, {s(sW)}, 2560
    v_min_u32 {v(vP)}, 19, v0
    v_lshl_add_u32 {v(vP)}, {v(vP)}, 7, s40
    v_min_u32 {v(vM)}, 13, v0
    v_lshl_add_u32 {v(vM)}, {v(vM)}, 7, {s(sLB)}
    v_add_u32 {v(vM)}, {4*MEM_SLOT}, {v(vM)}
    v_add_u32 {v(vP)}, {PS_SLOT * (2 if 'mtouch' in OPT else 0)}, {v(vP)}
    v_mov_b32 {v(D+4)}, 0
    v_mov_b32 {v(D+5)}, 0
    v_mov_b32 {v(D+6)}, 0
    v_mov_b32 {v(D+7)}, 0
    ''')
    xcc_check(A, 'he', 20)
    for k in range(2):
        addp(A, 40, sWS, PS_OFF + (k - 2) * PS_SLOT); A.I(f'global_load_dword v21, {v(vP)}, s[40:41] sc1')
    for k in range(4):
        addp(A, 40, sWS, MEMS_OFF + (k - 4) * MEM_SLOT); A.I(f'global_load_dword v21, {v(vM)}, s[40:41] sc1')
    wait_tiles(A, 'he', 20, 1, 'all', None, 8)
    A.I(f's_mov_b32 {s(sTMP)}, 14'); assist(A, 'he_as', sTMP, 20)
    addp(A, sMEM, sWS, MEMS_OFF); addp(A, sMT, sWS, MEMT_OFF); addp(A, sP, sWS, PS_OFF)
    addp(A, sX0, sX0, XI_SEG)
    A.I(f'''
    global_load_dword v20, {v(vX)}, {s(sX0,2)}
    global_load_dword v21, {v(vP)}, {s(sP,2)} sc1
    ''')
    addp(A, sX0, sX0, XI_SEG); addp(A, sP, sP, PS_SLOT)
    if 'nox2' not in OPT:
        A.I(f'global_load_dword v20, {v(vX)}, {s(sX0,2)}'); addp(A, sX0, sX0, XI_SEG)
    A.I(f'''
L_he_step:
    s_sleep {HSLEEP}
    global_load_dwordx4 {v(D,4)}, {v(vG0)}, {s(sMEM,2)} sc1
    s_mov_b64 exec, {s(sM48,2)}
    global_load_dwordx4 {v(D+4,4)}, {v(vG0)}, {s(sMEM,2)} offset:1024 sc1
    s_mov_b64 exec, -1
    ''')
    bud(A)
    A.I(f'''
    s_waitcnt vmcnt(0)
    v_max3_u32 v16, {v(D)}, {v(D+1)}, {v(D+2)}
    v_max3_u32 v16, v16, {v(D+3)}, {v(D+4)}
    v_max3_u32 v16, v16, {v(D+5)}, {v(D+6)}
    v_max_u32 v16, v16, {v(D+7)}
    v_cmp_eq_u32 vcc, {s(sSENT)}, v16
    s_cbranch_vccnz L_he_step
    s_add_u32 {s(sSTEP)}, {s(sSTEP)}, 1
    global_store_dwordx4 {v(vG0)}, {v(D,4)}, {s(sMT,2)} sc1
    s_mov_b64 exec, {s(sM48,2)}
    global_store_dwordx4 {v(vG0)}, {v(D+4,4)}, {s(sMT,2)} offset:1024 sc1
    s_mov_b64 exec, -1
    global_load_dword v21, {v(vP)}, {s(sP,2)} sc1
    {f'global_load_dword v22, {v(vM)}, {s(sMEM,2)} sc1' if 'mtouch' in OPT else ''}
    s_cmp_ge_u32 {s(sSTEP)}, {NSTEP - ('nox2' not in OPT)}
    s_cbranch_scc1 L_he_nox
    global_load_dword v20, {v(vX)}, {s(sX0,2)}
L_he_nox:
    ''')
    addp(A, sX0, sX0, XI_SEG); addp(A, sP, sP, PS_SLOT); addp(A, sMEM, sMEM, MEM_SLOT); addp(A, sMT, sMT, MEMT_SLOT)
    A.I(f'''
    s_cmp_le_u32 {s(sSTEP)}, {NSTEP - 1 - (tok.FIN and DIR)}
    s_cbranch_scc1 L_he_step
    ''')
    if tok.FIN:
        addp(A, sFL, sWS, FL_OFF + 63 * 256 + 64)
        A.I(f'''
        v_min_u32 v20, 22, v0
        v_lshlrev_b32 v20, 2, v20
L_he_f:
        s_sleep 2
        global_load_dword v21, v20, {s(sFL,2)} sc1
        ''')
        bud(A)
        A.I(f'''
        s_waitcnt vmcnt(0)
        v_cmp_eq_u32 vcc, 0, v21
        s_cbranch_vccnz L_he_f
        s_mul_i32 s40, {s(sW)}, 10240
        v_lshl_add_u32 v20, v0, 7, s40
        v_min_u32 v22, 15, v0
        v_lshl_add_u32 v22, v22, 7, s40
        s_mul_i32 s40, {s(sW)}, 14336
        v_min_u32 v23, 55, v0
        v_lshl_add_u32 v23, v23, 7, s40
        ''')
        addp(A, 40, sWS, PX_OFF + 63 * PX_SEG); addp(A, 42, 40, 8192)
        A.I('global_load_dword v21, v20, s[40:41] sc1\n global_load_dword v21, v22, s[42:43] sc1')
        addp(A, 40, sWS, BP_OFF); addp(A, 42, 40, 7168)
        A.I('global_load_dword v21, v23, s[40:41] sc1\n global_load_dword v21, v23, s[42:43] sc1')
        addp(A, 40, sWS, G_OFF + 63 * 128)
        A.I('v_mov_b32 v20, 0\n global_load_dword v21, v20, s[40:41] sc1\n s_waitcnt vmcnt(0)')
    A.I('s_endpgm')

def fetcher(A):
    vV, vF, vM = 1, 2, 3
    NL = PFL
    per = 64 // NL
    A.label('L_fetch')
    chain_common(A)
    xcc_publish(A, sROLE, 20)
    A.I(f'''
    v_lshrrev_b32 v4, {NL.bit_length()-1}, v0
    v_and_b32 v5, {NL-1}, v0
    s_lshl_b32 s40, {s(sW)}, 13
    v_lshl_add_u32 v5, v5, 7, s40
    v_and_b32 {v(vF)}, 15, v0
    v_lshlrev_b32 {v(vF)}, 2, {v(vF)}
    v_mov_b32 {v(vM)}, 4000
    ''')
    n = (14 + per - 1) // per
    for i in range(n):
        A.I(f'v_add_u32 v6, {per*i}, v4\n v_min_u32 v6, 13, v6\n v_lshl_add_u32 {v(8+i)}, v6, 15, v5')
    xcc_check(A, 'fe', 30)
    addp(A, sMEM, sWS, MEMS_OFF); addp(A, sVX, sWS, VX_OFF + PFA * 14 * VX_SC); addp(A, sFL, sWS, FL_OFF + PFA * 256)
    A.I(f'''
L_fe_step:
    global_load_dword v24, {v(vM)}, {s(sMEM,2)} sc1
    global_load_dword v25, {v(vF)}, {s(sFL,2)} sc1
    ''')
    bud(A)
    A.I(f'''
    s_waitcnt vmcnt(0)
    v_cmp_eq_u32 vcc, {s(sSENT)}, v24
    v_cmp_eq_u32 s[40:41], 0, v25
    s_or_b64 vcc, vcc, s[40:41]
    s_cbranch_vccz L_fe_go
    s_sleep 2
    s_branch L_fe_step
L_fe_go:
    ''')
    for i in range(n): A.I(f'global_load_dword {v(26)}, {v(8+i)}, {s(sVX,2)} sc1')
    addp(A, sMEM, sMEM, MEM_SLOT); addp(A, sVX, sVX, 14 * VX_SC); addp(A, sFL, sFL, 256)
    A.I(f'''
    s_add_u32 {s(sSTEP)}, {s(sSTEP)}, 1
    s_cmp_lt_u32 {s(sSTEP)}, {NSTEP - PFA}
    s_cbranch_scc1 L_fe_step
    s_endpgm
    ''')

def spare(A):
    A.label('L_spare')
    A.I(f's_mov_b32 {s(sTMP)}, 15'); assist(A, 'sp_as', sTMP, 20)
    A.I('s_endpgm')
```

```python
import sys
from common import *
import chain, tok, prep

NAME = 'gated_mix__memory_aug_recurrent_mem_tr__dense_activation_silu__prompt'

def main_kernel(prof=0, roles=('chain', 'tokv', 'tokt', 'ffn1', 'outs')):
    A = Asm(); TL['role'] = 'e'
    A.I(f'''
    s_cmp_ge_u32 s2, 256
    s_cbranch_scc1 L_bail
    s_load_dwordx2 s[8:9], s[0:1], {KA_WS}
    s_load_dwordx2 {s(prep.sDB,2)}, s[0:1], {KA_DBG}
    v_lshrrev_b32 v1, 6, v0
    v_and_b32 v0, 63, v0
    {f's_add_u32 s38, s2, {8 - chain.CX}' if 'rev' not in chain.OPT else f's_sub_u32 s38, {256 + chain.CX}, s2'}
    s_and_b32 s38, s38, 7
    s_lshr_b32 s3, s2, 3
    v_readfirstlane_b32 s4, v1
    v_and_b32 v1, 15, v0
    v_lshrrev_b32 v2, 4, v0
    s_waitcnt lgkmcnt(0)
    s_lshl_b32 s70, s3, 3
    s_add_u32 s70, s70, s38
    ''')
    if 'cw' in chain.OPT:
        A.raw(f'''    s_getpc_b64 s[40:41]
L_pc0:
    s_lshl_b32 s42, s3, 2
    s_add_u32 s42, s42, s4
    s_lshl_b32 s42, s42, 3
    v_and_b32 v3, 7, v0
    v_add_lshl_u32 v3, v3, s42, 7
    v_min_u32 v3, L_code_end - L_pc0 - 4, v3''')
        A.I('global_load_dword v255, v3, s[40:41]')
    if chain.GX or chain.GE: A.I('s_memrealtime s[92:93]\n s_waitcnt lgkmcnt(0)')
    tl(A, 1, 0, 200)
    A.I(f'''
    s_mov_b32 s44, -1
    s_mov_b32 s45, -1
    s_mov_b32 s46, -1
    s_cmp_lg_u32 s38, 0
    s_cbranch_scc1 L_tok0
    s_cmp_lg_u32 s3, 30
    s_cbranch_scc1 L_noinit
    ''')
    TL['role'] = 'he'; prep.init_job(A); TL['role'] = 'e'
    A.label('L_noinit')
    if 'sc' not in chain.OPT: A.I('s_cmp_ge_u32 s3, 16\n s_cbranch_scc1 L_jobs\n s_add_u32 s45, s3, 208')
    else: A.I('s_cmp_lt_u32 s3, 16\n s_cbranch_scc1 L_score\n s_add_u32 s45, s3, 192')
    A.I(f'''
    s_branch L_jobs
L_bail:
    s_endpgm
L_tok0:
    ''')
    if 'oldmap' in chain.OPT: A.I('''
    s_sub_u32 s39, s38, 1
    s_lshl_b32 s44, s39, 5
    s_add_u32 s44, s44, s3
    s_mul_i32 s39, s39, 21
    s_max_u32 s40, s3, 11
    s_add_u32 s39, s39, s40
    s_sub_u32 s39, s39, 11
    s_min_u32 s40, s39, 128
    s_add_u32 s40, s40, 7
    s_lshr_b32 s40, s40, 3
    s_sub_u32 s45, s44, s40
    s_cmp_lt_u32 s3, 11
    s_cbranch_scc1 L_jobs
    s_cmp_ge_u32 s39, 128
    s_cbranch_scc1 L_jobs
    s_and_b32 s39, s39, 7
    s_cselect_b32 s45, s45, -1
    ''')
    else: A.I('''
    s_sub_u32 s39, s38, 1
    s_lshl_b32 s44, s39, 5
    s_add_u32 s44, s44, s3
    s_min_u32 s40, s44, 128
    s_add_u32 s40, s40, 7
    s_lshr_b32 s40, s40, 3
    s_sub_u32 s45, s44, s40
    s_cmp_ge_u32 s44, 128
    s_cbranch_scc1 L_jobs
    s_and_b32 s39, s44, 7
    s_cselect_b32 s45, s45, -1
    ''')
    A.label('L_jobs')
    prep.gemm_jobs(A, 44)
    A.I(f'''
    s_mov_b32 s40, s38
    s_cmp_lg_u32 s38, 0
    s_cbranch_scc1 L_tok
    s_cmp_lt_u32 s3, 16
    s_cbranch_scc1 L_score
    s_cmp_lt_u32 s3, 30
    s_cbranch_scc1 L_value
    s_cmp_eq_u32 s3, 30
    s_cbranch_scc1 L_helper
    {'s_branch L_fetch' if 'fetch' in chain.OPT else 's_branch L_spare'}
L_tok:
    ''')
    if 'oldmap' in chain.OPT: A.I(f'''
    s_sub_u32 s40, s40, 1
    s_cmp_ge_u32 s3, 7
    s_cbranch_scc1 L_tok1
    s_mov_b32 {s(tok.sREP)}, s40
    s_branch {'L_outs' if 'outs' in roles else 'L_bail'}
L_tok1:
    s_cmp_ge_u32 s3, 11
    s_cbranch_scc1 L_tok2
    s_sub_u32 {s(tok.sREP)}, s3, 7
    s_mov_b32 s3, s40
    s_branch {'L_ffn1' if 'ffn1' in roles else 'L_bail'}
L_tok2:
    s_mul_i32 s40, s40, 21
    s_add_u32 s40, s40, s3
    s_sub_u32 s40, s40, 11
    s_cmp_ge_u32 s40, 128
    s_cbranch_scc1 L_bail
    s_and_b32 {s(tok.sREP)}, s40, 3
    s_lshr_b32 s3, s40, 3
    s_bitcmp1_b32 s40, 2
    s_cbranch_scc1 {'L_tokt' if 'tokt' in roles else 'L_bail'}
    s_branch {'L_tokv' if 'tokv' in roles else 'L_bail'}
    ''')
    else: A.I(f'''
    s_cmp_lt_u32 s44, 128
    s_cbranch_scc1 L_tok2
    {'s_sub_u32 s40, s44, 128' if 'ffl' in chain.OPT else 's_sub_u32 s40, s44, 156'}
    s_cmp_ge_u32 s40, 49
    s_cbranch_scc1 L_tok1
    s_mul_i32 {s(tok.sREP)}, s40, 37
    s_lshr_b32 {s(tok.sREP)}, {s(tok.sREP)}, 8
    s_mul_i32 s41, {s(tok.sREP)}, 7
    s_sub_u32 s3, s40, s41
    s_branch L_outs
L_tok1:
    {'s_sub_u32 s40, s40, 49' if 'ffl' in chain.OPT else 's_sub_u32 s40, s44, 128'}
    s_cmp_ge_u32 s40, 28
    s_cbranch_scc1 L_bail
    s_and_b32 {s(tok.sREP)}, s40, 3
    s_lshr_b32 s3, s40, 2
    s_branch L_ffn1
L_tok2:
    s_and_b32 {s(tok.sREP)}, s44, 3
    s_lshr_b32 s3, s44, 3
    s_bitcmp1_b32 s44, 2
    s_cbranch_scc1 L_tokt
    s_branch L_tokv
    ''')
    for r, f in (('sc', lambda A: chain.score(A, prof)), ('va', lambda A: chain.value(A, prof if 'sonly' not in chain.OPT else 0)), ('he', chain.helper), ('fe', chain.fetcher), ('sp', chain.spare), ('tv', tok.tokv), ('tt', tok.tokt), ('f1', tok.ffn1), ('ou', tok.outs)):
        TL['role'] = r; f(A)
    A.label('L_code_end')
    return A

KD = '''.section .rodata,"a"
.p2align 6
.amdhsa_kernel {name}
  .amdhsa_next_free_vgpr {nv}
  .amdhsa_next_free_sgpr 102
  .amdhsa_accum_offset 256
  .amdhsa_group_segment_fixed_size 0
  .amdhsa_kernarg_size 112
  .amdhsa_user_sgpr_count 2
  .amdhsa_user_sgpr_kernarg_segment_ptr 1
  .amdhsa_system_sgpr_workgroup_id_x 1
  .amdhsa_float_denorm_mode_32 3
.end_amdhsa_kernel
'''
def full(prof=0, **kw):
    n = NAME + '_kernel'
    out = [HEADER, '; @launch grid=(256,1,1) block=(256,1,1) lds=163840',
           '.amdgcn_target "amdgcn-amd-amdhsa--gfx950"', '.text',
           f'.globl {n}', '.p2align 8', f'.type {n},@function', f'{n}:', main_kernel(prof, **kw).text(), KD.format(name=n, nv=512)]
    return '\n'.join(out)

HEADER = '''; Kernarg layout for this problem (112 bytes, ptrs only, base s[0:1]):
; second phase: memory recurrence (16 score + 14 value + 1 relay workgroups) and the token side (x B, x A + softmax, FFN, mix)'''

if __name__ == '__main__':
    args = sys.argv[1:]
    outn = 'cdna_kernels/' + NAME + '.s'
    for o in args:
        if o == 'dbg': TL['dbg'] = 1
        elif o.startswith('out='): outn = o[4:]
        elif '=' in o:
            k_, val = o.split('=')
            for mod in (chain, tok, prep):
                if hasattr(mod, k_): setattr(mod, k_, int(val) if val.lstrip('-').isdigit() else val)
        else: chain.OPT.add(o)
    open(outn, 'w').write(full())
```

```python
from common import *
import prep, tok
from prep import wait_tiles, sDB, DB_XCC

NSTEP = 63
CLK = 's_memrealtime'
OPT = {'poisT', 'mtouch', 'mtdirect', 'ffl'}
HSLEEP = 2
LIM = 60
XD = 0
VE = 3
WS = 2
AH0, AH1 = 14, 15
RP = 0
CX = 3
DIR = 1
FS = 40
ALS = -1
ALV = -1
PS_ = 0
SS = 0
AJ = 8
GX = 0
GE = 0
AGE = 99
L3P = ''
GB = 2
PD = 3
FA, FB, FC, FD = 5, 3, 4, 1
PFL = 16
PFA = 2
NRES = 5
HD = 3
sROLE, sW, sSTEP, sBUD, sSENT = 3, 4, 5, 6, 7
sWS, sX0, sX1, sMEM, sP, sVX, sMT, sWT = 8, 10, 12, 14, 16, 18, 20, 24
sTMP, sTMP2 = 27, 28
sM20, sMHI, sMG = 30, 32, 34
sLB, sXB, sM48 = 36, 37, 38
sDBG = 44
sXCC, sEA, sEB, sFL = 75, 64, 66, 68
BUDGET = 1 << 21

def delay(A, n):
    if n >= 4: A.I(f's_sleep {n // 4}')
    if n % 4: A.I(f's_nop {4 * (n % 4) - 1}')

def bud(A):
    A.I(f's_add_u32 {s(sBUD)}, {s(sBUD)}, 1\n s_cmp_gt_u32 {s(sBUD)}, {BUDGET}\n s_cbranch_scc1 L_bail')

def chain_common(A):
    A.I(f'''
    s_mov_b32 {s(sSTEP)}, 0
    s_mov_b32 {s(sBUD)}, 0
    s_mov_b32 {s(sSENT)}, {SENT}
    s_mov_b32 s90, 0
    ''')

def xcc_publish(A, role, t):
    A.I(f'''
    s_getreg_b32 {s(sXCC)}, hwreg(HW_REG_XCC_ID, 0, 4)
    s_add_u32 {s(sXCC)}, {s(sXCC)}, 1
    v_mov_b32 {v(t)}, {s(role)}
    v_mov_b32 {v(t+1)}, {s(sXCC)}
    s_waitcnt vmcnt(0)
    s_barrier
    global_store_byte {v(t)}, {v(t+1)}, {s(sDB,2)} offset:{DB_XCC} sc1
    ''')

def xcc_check(A, tag, t):
    A.I(f'''
    v_min_u32 {v(t)}, {31 if 'fetch' in OPT else 30}, v0
L_{tag}_xc:
    global_load_ubyte {v(t+1)}, {v(t)}, {s(sDB,2)} offset:{DB_XCC} sc1
    ''')
    bud(A)
    A.I(f'''
    s_waitcnt vmcnt(0)
    v_cmp_eq_u32 vcc, 0, {v(t+1)}
    s_cbranch_vccnz L_{tag}_xc
    v_cmp_ne_u32 vcc, {s(sXCC)}, {v(t+1)}
    s_cmp_eq_u64 vcc, {0 if 'slow' not in OPT else -1}
    s_cselect_b32 {s(sEA)}, 1, 0
    ''')

def warm(A, first, last, t):
    if 'warm' not in OPT: return
    A.raw(f'''    s_getpc_b64 s[40:41]
L_pc_{first}:
    s_add_u32 s40, s40, {first} - L_pc_{first}
    s_addc_u32 s41, s41, 0
    v_lshlrev_b32 {v(t)}, 7, v0
    v_min_u32 {v(t)}, {last} - {first}, {v(t)}''')
    A.I(f'global_load_dword {v(t+1)}, {v(t)}, s[40:41]')

def assist(A, tag, head, t):
    if 'assist' not in OPT: return
    wait_tiles(A, tag, t, 0, 'head', head, 1)
    A.I(f's_mul_i32 s40, {s(head)}, {MF_HEAD}'); addp(A, 42, sWS, MF_OFF + AJ * 2048); addps(A, 42, 42, 40)
    per = (14 - AJ) * 16
    tot = 14 * per
    n = (tot // 4 + 63) // 64
    A.I(f's_mul_i32 s40, {s(sW)}, {tot // 4}')
    for i in range(n):
        A.I(f'''
        v_add_u32 {v(t)}, {64*i}, v0
        v_min_u32 {v(t)}, {tot // 4 - 1}, {v(t)}
        v_add_u32 {v(t)}, s40, {v(t)}
        v_mul_u32_u24 {v(t+1)}, {(1 << 20) // per + 1}, {v(t)}
        v_lshrrev_b32 {v(t+1)}, 20, {v(t+1)}
        v_mul_u32_u24 {v(t+1)}, {224 - per}, {v(t+1)}
        v_add_lshl_u32 {v(t)}, {v(t)}, {v(t+1)}, 7
        global_load_dword {v(t+2)}, {v(t)}, s[42:43] sc1
        ''')

def mem_poll(A, tag, vG0, vPR, vD):
    A.I(f'''
L_{tag}_mp:
    s_mov_b32 m0, {s(sLB)}
L_{tag}_mpl:
    global_load_dword {v(vD)}, {v(vPR)}, {s(sMEM,2)} sc1
    global_load_lds_dwordx4 {v(vG0)}, {s(sMEM,2)} sc1
    s_mov_b64 exec, {s(sM48,2)}
    global_load_lds_dwordx4 {v(vG0)}, {s(sMEM,2)} offset:1024 sc1
    s_mov_b64 exec, -1
    ''')
    bud(A)
    A.I(f'''
    s_waitcnt vmcnt(2)
    v_cmp_eq_u32 vcc, {s(sSENT)}, {v(vD)}
    s_cbranch_vccnz L_{tag}_mpl
    s_waitcnt vmcnt(0) lgkmcnt(0)
    s_barrier
    ''')

sMEM2, sLB2 = 66, 29
def dma_split(A, vG0):
    A.I(f'''
    global_load_lds_dwordx4 {v(vG0)}, {s(sMEM,2)} sc1
    s_mov_b32 m0, {s(sLB2)}
    s_mov_b64 exec, {s(sM48,2)}
    global_load_lds_dwordx4 {v(vG0)}, {s(sMEM2,2)} sc1
    s_mov_b64 exec, -1
    s_mov_b32 m0, {s(sLB)}
    ''')

def mem_poll_split(A, tag, vG0, vPR, vD):
    A.I(f'''
L_{tag}_mp:
    s_mov_b32 m0, {s(sLB)}
L_{tag}_mpl:
    global_load_dword {v(vD)}, {v(vPR)}, {s(sMEM,2)} sc1
    ''')
    dma_split(A, vG0)
    bud(A)
    A.I(f'''
    s_waitcnt vmcnt(2)
    v_cmp_eq_u32 vcc, {s(sSENT)}, {v(vD)}
    s_cbranch_vccnz L_{tag}_mpl
    s_waitcnt vmcnt(1) lgkmcnt(0)
    s_barrier
    ''')

def mem_poll_half(A, tag, vG0, vPR, vD):
    A.I(f'''
L_{tag}_mp:
    s_cmp_ge_u32 {s(sW)}, 2
    s_cbranch_scc1 L_{tag}_mpb
    s_mov_b32 m0, {s(sLB)}
L_{tag}_mpl:
    global_load_dword {v(vD)}, {v(vPR)}, {s(sMEM,2)} sc1
    global_load_lds_dwordx4 {v(vG0)}, {s(sMEM,2)} sc1
    global_load_lds_dwordx4 {v(vG0)}, {s(sMEM,2)} offset:1024 sc1
    global_load_lds_dwordx4 {v(vG0)}, {s(sMEM,2)} offset:2048 sc1
    s_mov_b32 exec_hi, 0
    global_load_lds_dwordx4 {v(vG0)}, {s(sMEM,2)} offset:3072 sc1
    s_mov_b64 exec, -1
    ''')
    bud(A)
    A.I(f'''
    s_waitcnt vmcnt(4)
    v_cmp_eq_u32 vcc, {s(sSENT)}, {v(vD)}
    s_cbranch_vccnz L_{tag}_mpl
    s_waitcnt vmcnt(0)
L_{tag}_mpb:
    s_waitcnt lgkmcnt(0)
    s_barrier
    ''')

def mem_poll_setup(A, vG0, vPR, t, half=False):
    A.I(f'''
    s_mul_i32 {s(sLB)}, {s(sW)}, {3584 if half else 1792}
    v_lshlrev_b32 {v(vG0)}, 4, v0
    v_add_u32 {v(vG0)}, {s(sLB)}, {v(vG0)}
    s_mov_b32 {s(sM48)}, -1
    s_mov_b32 {s(sM48+1)}, 0xffff
    v_min_u32 {v(t)}, {27 if half else 13}, v0
    v_lshlrev_b32 {v(t)}, 7, {v(t)}
    v_add3_u32 {v(vPR)}, {s(sLB)}, {v(t)}, 64
    ''')

def sreg(i): return 48 + 2 * i if i < 8 else 76 + 2 * (i - 8)

def stamp(A, idx, prof):
    if not prof: return
    A.I(f'{CLK} {s(sreg(idx), 2)}')

def stamp_flush(A, prof):
    if not prof: return
    A.I('s_waitcnt lgkmcnt(0)')
    for i in range(16): A.I(f'v_writelane_b32 v21, {s(sreg(i))}, {i}')
    A.I(f'''
    v_mbcnt_lo_u32_b32 v20, -1, 0
    v_lshlrev_b32 v20, 2, v20
    s_mov_b64 exec, 0xffff
    global_store_dword v20, v21, {s(sDBG,2)}
    s_mov_b64 exec, -1
    ''')
    addp(A, sDBG, sDBG, 64)

def idx_setup(A, vIDX, T):
    A.I(f'''
    v_and_b32 {v(T)}, 15, v0
    v_lshrrev_b32 {v(T+1)}, 4, v0
    v_and_b32 {v(T+2)}, 7, v0
    v_mov_b32 {v(vIDX)}, 0x4444
    v_mov_b32 {v(T+3)}, 0xeeee
    v_cmp_lt_u32 vcc, 7, {v(T)}
    v_cndmask_b32 {v(vIDX)}, {v(vIDX)}, {v(T+3)}, vcc
    ''')

def score(A, prof=0):
    L_MEM, L_TB, L_SB, L_RW, L_XB = 0, 8192, 20480, 26624, 65536
    vIDX, vG0, vXB, vPR, vAF0, vAF1, vMB0, vMB1, vTW, vTR, vSW, vSR, vPS, vX0, vX1, vRW, vSM, vSN = range(1, 19)
    vCK = 19; vLO = 0; sHI = 26
    RING, XF, R, TOPC, TMP, SACC, TACC, WV = 20, 52, 84, 108, 112, 116, 128, 144
    MEMB, TOPA, TOPB = R, R + 16, R + 20
    import layout
    layout.L3T[:] = [int(c, 16) for c in str(L3P or ('1234567' if 'split' not in OPT else '3456789'))]
    seq = score_seq()
    def wreg(i):
        if i < 3: return v(R + 8 * i, 8)
        if i < 35: return a_(8 * (i - 3), 8)
        return v(WV + 8 * (i - 35), 8)
    lg = Cnt(A, 'lgkmcnt', 15)
    A.label('L_score')
    A.I(f's_load_dwordx2 {s(sX0,2)}, s[0:1], {KA_X}')
    chain_common(A)
    T = 20
    idx_setup(A, vIDX, T)
    SPL = 'split' in OPT
    if not SPL: mem_poll_setup(A, vG0, vPR, T + 4)
    else: A.I(f'''
    s_lshl_b32 {s(sLB)}, {s(sW)}, 10
    s_mul_i32 {s(sLB2)}, {s(sW)}, 768
    s_add_u32 {s(sLB2)}, {s(sLB2)}, 4096
    v_lshl_add_u32 {v(vG0)}, v0, 4, {s(sLB)}
    s_mov_b32 {s(sM48)}, -1
    s_mov_b32 {s(sM48+1)}, 0xffff
    v_min_u32 {v(T+4)}, 13, v0
    v_lshlrev_b32 {v(T+4)}, 7, {v(T+4)}
    v_add3_u32 {v(vPR)}, {s(sLB)}, {v(T+4)}, 64
    s_sub_u32 s40, {s(sLB2)}, 960
    v_add_u32 {v(T+4)}, s40, {v(T+4)}
    v_cmp_lt_u32 vcc, 7, v0
    v_cndmask_b32 {v(vPR)}, {v(vPR)}, {v(T+4)}, vcc
    ''')
    A.I(f'''
    v_lshlrev_b32 {v(T+4)}, 7, {v(T+1)}
    v_lshl_add_u32 {v(T+4)}, {v(T+2)}, 4, {v(T+4)}
    s_and_b32 {s(sTMP)}, {s(sW)}, 1
    s_mul_i32 {s(sTMP2)}, {s(sTMP)}, {7*512}
    v_mov_b32 {v(vAF0)}, {v(T+4)}
    v_add_u32 {v(vAF1)}, {s(sTMP2)}, {v(T+4)}
    s_lshr_b32 {s(sTMP2)}, {s(sW)}, 1
    s_mul_i32 {s(sTMP2)}, {s(sTMP2)}, 7
    s_lshl_b32 {s(sTMP)}, {s(sTMP)}, 2
    s_add_u32 {s(sTMP)}, {s(sTMP)}, {s(sTMP2)}
    s_add_u32 {s(sTMP2)}, {s(sTMP2)}, 3
    s_lshl_b32 s40, {s(sTMP)}, 9
    s_lshl_b32 s41, {s(sTMP2)}, 9
    v_add_u32 {v(vMB0)}, s40, {v(T+4)}
    v_add_u32 {v(vMB1)}, s41, {v(T+4)}
    s_lshl_b32 s40, {s(sTMP)}, 6
    s_lshl_b32 s41, {s(sTMP2)}, 6
    v_lshrrev_b32 {v(T+4)}, 2, v0
    v_mul_u32_u24 {v(T+4)}, 896, {v(T+4)}
    v_lshrrev_b32 {v(T+5)}, 5, v0
    v_lshlrev_b32 {v(T+5)}, 1, {v(T+5)}
    v_and_b32 {v(T+6)}, 3, v0
    v_xor_b32 {v(T+5)}, {v(T+5)}, {v(T+6)}
    v_lshl_add_u32 {v(T+4)}, {v(T+5)}, 4, {v(T+4)}
    v_add_u32 {v(vX0)}, s40, {v(T+4)}
    v_add_u32 {v(vX1)}, s41, {v(T+4)}
    s_lshl_b32 {s(sXB)}, {s(sW)}, 13
    s_add_u32 {s(sXB)}, {s(sXB)}, {L_XB}
    v_lshrrev_b32 {v(T+4)}, 3, {v(T)}
    v_lshlrev_b32 {v(T+4)}, 1, {v(T+4)}
    v_xor_b32 {v(T+4)}, {v(T+4)}, {v(T+1)}
    v_lshl_add_u32 {v(T+4)}, {v(T)}, 2, {v(T+4)}
    v_lshl_add_u32 {v(vXB)}, {v(T+4)}, 4, {s(sXB)}
    s_mul_i32 s40, {s(sW)}, 3072
    s_add_u32 s40, s40, {L_TB}
    v_mul_u32_u24 {v(T+5)}, 192, {v(T+1)}
    v_lshl_add_u32 {v(T+5)}, {v(T)}, 3, {v(T+5)}
    v_add_u32 {v(vTW)}, s40, {v(T+5)}
    v_and_b32 {v(T+5)}, 1, v0
    v_mul_u32_u24 {v(T+5)}, 192, {v(T+5)}
    v_lshrrev_b32 {v(T+6)}, 2, v0
    v_lshl_add_u32 {v(T+5)}, {v(T+6)}, 3, {v(T+5)}
    v_add_u32 {v(vTR)}, s40, {v(T+5)}
    s_mul_i32 s40, {s(sW)}, 1408
    s_add_u32 s40, s40, {L_SB}
    v_mul_u32_u24 {v(T+5)}, 176, {v(T+2)}
    v_add_u32 {v(T+5)}, s40, {v(T+5)}
    v_mov_b32 {v(vCK)}, {v(T+5)}
    v_lshrrev_b32 {v(T+6)}, 3, {v(T)}
    v_and_b32 {v(T+7)}, 1, {v(T+1)}
    v_mul_u32_u24 {v(T+7)}, 704, {v(T+7)}
    v_lshrrev_b32 {v(T+8)}, 1, {v(T+1)}
    v_lshl_add_u32 {v(T+7)}, {v(T+8)}, 6, {v(T+7)}
    v_lshl_add_u32 {v(T+7)}, {v(T)}, 2, {v(T+7)}
    v_add3_u32 {v(vSW)}, s40, {v(T+7)}, 32
    v_and_b32 {v(T+7)}, 1, {v(T+1)}
    v_lshlrev_b32 {v(T+7)}, 4, {v(T+7)}
    v_lshrrev_b32 {v(T+8)}, 1, {v(T+1)}
    v_lshl_add_u32 {v(T+8)}, {v(T+8)}, 1, {v(T+6)}
    v_lshl_add_u32 {v(T+7)}, {v(T+8)}, 2, {v(T+7)}
    v_add_u32 {v(vSM)}, {v(T+5)}, {v(T+7)}
    v_lshrrev_b32 {v(T+5)}, 5, v0
    v_lshl_add_u32 {v(T+5)}, {s(sW)}, 1, {v(T+5)}
    v_and_b32 {v(T+6)}, 31, v0
    v_min_u32 {v(T+6)}, 20, {v(T+6)}
    v_mul_u32_u24 {v(T+7)}, 176, {v(T+5)}
    v_lshl_add_u32 {v(T+7)}, {v(T+6)}, 3, {v(T+7)}
    v_add_u32 {v(vSR)}, {L_SB}, {v(T+7)}
    s_lshr_b32 s40, {s(sROLE)}, 2
    s_mul_i32 s40, s40, 2560
    s_and_b32 s41, {s(sROLE)}, 1
    s_bfe_u32 s42, {s(sROLE)}, 0x10001
    s_lshl_b32 s43, s41, 7
    s_lshl_b32 s46, s42, 5
    s_add_u32 s43, s43, s46
    s_add_u32 s43, s43, s40
    s_add_u32 s43, s43, 2048
    v_and_b32 {v(T+7)}, 1, {v(T+6)}
    v_lshlrev_b32 {v(T+7)}, 8, {v(T+7)}
    v_lshrrev_b32 {v(T+8)}, 1, {v(T+6)}
    v_lshl_add_u32 {v(T+7)}, {v(T+8)}, 6, {v(T+7)}
    v_lshl_add_u32 {v(T+7)}, {v(T+5)}, 2, {v(T+7)}
    v_add_u32 {v(T+7)}, s43, {v(T+7)}
    s_lshl_b32 s43, s42, 10
    s_lshl_b32 s46, s41, 9
    s_add_u32 s43, s43, s46
    s_add_u32 s43, s43, s40
    v_subrev_u32 {v(T+8)}, 4, {v(T+6)}
    v_lshrrev_b32 {v(T+9)}, 2, {v(T+8)}
    v_and_b32 {v(T+8)}, 3, {v(T+8)}
    v_lshlrev_b32 {v(T+8)}, 2, {v(T+8)}
    v_lshl_add_u32 {v(T+8)}, {v(T+9)}, 7, {v(T+8)}
    v_lshl_add_u32 {v(T+8)}, {v(T+5)}, 4, {v(T+8)}
    v_add_u32 {v(T+8)}, s43, {v(T+8)}
    v_cmp_gt_u32 vcc, 4, {v(T+6)}
    v_cndmask_b32 {v(vPS)}, {v(T+8)}, {v(T+7)}, vcc
    s_mul_i32 s40, {s(sW)}, 6144
    s_add_u32 s40, s40, {L_RW}
    v_lshl_add_u32 {v(vRW)}, v0, 4, s40
    s_mov_b32 {s(sM20)}, 0x000fffff
    s_mov_b32 {s(sM20+1)}, 0x000fffff
    s_mov_b32 {s(sMHI)}, 0xff00ff00
    s_mov_b32 {s(sMHI+1)}, 0xff00ff00
    s_mov_b32 {s(sMG)}, 0
    s_mov_b32 {s(sMG+1)}, -1
    v_mov_b32 {v(vSN)}, {SENT}
    ''')
    addp(A, sP, sWS, PS_OFF); addp(A, 40, sP, PS_SLOT)
    A.I(f'''
    s_mov_b64 exec, {s(sM20,2)}
    global_store_dword {v(vPS)}, {v(vSN)}, {s(sP,2)} sc1
    global_store_dword {v(vPS)}, {v(vSN)}, s[40:41] sc1
    s_mov_b64 exec, -1
    s_waitcnt lgkmcnt(0)
    ''')
    xcc_publish(A, sROLE, T + 12)
    warm(A, 'L_sc_step', 'L_sd_step', T + 12)
    addp(A, sX1, sX0, 16 * 896)
    def xdma():
        for k in range(8):
            L, t = k >> 1, k & 1
            A.I(f's_add_u32 m0, {s(sXB)}, {k*1024 - (64*L if L < 3 else 0)}')
            base = s(sX0 if t == 0 else sX1, 2)
            A.I(f'global_load_lds_dwordx4 {v(vX0)}, {base} offset:{64*L}' if L < 3 else f'global_load_lds_dwordx4 {v(vX1)}, {base}')
        addp(A, sX0, sX0, XI_SEG); addp(A, sX1, sX1, XI_SEG)
        if XB2: A.I(f's_xor_b32 {s(sXB)}, {s(sXB)}, 0x8000')
    def xread():
        for k in range(8): A.I(f'ds_read_b128 {v(RING+4*k,4)}, {v(vXB)} offset:{k*1024}')
        for L in range(4):
            A.I(f's_waitcnt lgkmcnt({6-2*L})')
            for k in range(8): A.I(f'v_mov_b32 {v(XF+8*L+k)}, {v(RING+8*L+4*(k&1)+(k>>1))}')
        for k in range(4): A.I(f'v_mov_b32 {v(SACC+4+k)}, 0')
        if XB2: A.I(f'v_xor_b32 {v(vXB)}, 0x8000, {v(vXB)}')
    XB2 = 'nox2' not in OPT
    SC = 'sc' in OPT
    ixw = {x: i for i, x in enumerate(seq)}
    def wq(i, hf):
        if i < 3: return ('v', R + 8 * i + 4 * hf)
        if i < 35: return ('a', 8 * (i - 3) + 4 * hf)
        return ('v', WV + 8 * (i - 35) + 4 * hf)
    def rq(q, n=4): return (v if q[0] == 'v' else a_)(q[1], n)
    if SC:
        VREG = [wq(i, hf) for i, (L, jj) in enumerate(seq) if L >= 2 and i >= 3 for hf in range(2)][:32]
        UR, TC, ACC, vUS, vVS, vL, vUB, vUR = 20, 44, 52, 108, 110, 114, 118, 122
        sQ, sK, sL = 46, 48, 50
        A.I(f'''
        s_load_dwordx4 s[52:55], s[0:1], {KA_WQ}
        v_lshrrev_b32 v20, 5, v0
        v_and_b32 v21, 31, v0
        v_and_b32 v22, 15, v0
        v_lshrrev_b32 v23, 4, v0
        s_and_b32 s40, {s(sW)}, 1
        s_lshl_b32 s40, s40, 1
        s_lshl_b32 s41, {s(sW)}, 3
        ''')
        for b in range(2):
            A.I(f'''
            v_add_u32 v24, {2*b}, v20
            v_lshlrev_b32 v25, 2, v24
            v_xor_b32 v25, v25, v21
            v_lshlrev_b32 v26, 13, v24
            v_lshl_add_u32 {v(vVS+b)}, v25, 4, v26
            v_xor_b32 {v(vVS+2+b)}, 32, {v(vVS+b)}
            v_xor_b32 v25, s40, v25
            v_add_u32 v24, s41, v24
            v_lshlrev_b32 v26, 13, v24
            v_lshl_add_u32 {v(vUS+b)}, v25, 4, v26
            ''')
        A.I(f'''
        v_and_b32 v24, 3, v22
        v_lshlrev_b32 v25, 2, v24
        v_bfe_u32 v26, v22, 2, 1
        v_lshl_add_u32 v25, v26, 1, v25
        v_lshrrev_b32 v27, 2, v22
        v_lshl_add_u32 v27, v27, 3, v24
        v_lshlrev_b32 v27, 9, v27
        v_lshlrev_b32 v26, 4, v26
        v_lshrrev_b32 v28, 3, v22
        v_lshl_add_u32 v26, v28, 2, v26
        v_add_u32 v26, v26, v24
        v_lshlrev_b32 v26, 9, v26
        s_lshl_b32 {s(sL)}, {s(sW)}, 15
        v_add_u32 v26, {s(sL)}, v26
        ''')
        for b in range(4):
            A.I(f'''
            v_add_u32 v24, {4*b}, v23
            v_xor_b32 v24, v24, v25
            v_lshl_add_u32 {v(vUB+b)}, v24, 4, v27
            v_lshl_add_u32 {v(vL+b)}, v24, 4, v26
            ''')
        A.I(f'''
        s_lshl_b32 s40, {s(sROLE)}, 9
        s_lshl_b32 s41, {s(sTMP)}, 18
        s_add_u32 s41, s41, s40
        s_waitcnt lgkmcnt(0)
        ''')
        addps(A, sQ, 52, 40); addps(A, sK, 54, 41)
        vm = Cnt(A, 'vmcnt', 63); l2 = Cnt(A, 'lgkmcnt', 15)
        for k in range(32):
            A.I(f's_add_u32 m0, {s(sL)}, {k*1024}')
            A.I(f'global_load_lds_dwordx4 {v(vVS + (k&1) + 2*((k>>3)&1))}, {s(sK,2)} {prep.LDNT}'); vm.add('V')
            if k & 1: addp(A, sK, sK, 32768)
        A.I(f's_lshl_b32 {s(sL)}, {s(sW)}, 12')
        slot = lambda j: [8, 9][j] if j < 2 else (j - 2) % 10
        def issueU(j):
            for kk in range(4):
                A.I(f's_add_u32 m0, {s(sL)}, {slot(j)*16384 + kk*1024}')
                A.I(f'global_load_lds_dwordx4 {v(vUS + (kk&1))}, {s(sQ,2)} {prep.LDNT}'); vm.add(('U', j))
                if kk == 1: addp(A, sQ, sQ, 32768)
            addp(A, sQ, sQ, 32 * 8192 - 32768)
        issueU(0); issueU(1)
        vm.wait('V')
        for t in range(4):
            for kk in range(8):
                A.I(f'ds_read_b128 {rq(VREG[8*t+kk])}, {v(vL+(kk&3))} offset:{(t>>1)*16384 + (t&1)*4096 + (kk>>2)*256}')
            A.I('s_waitcnt lgkmcnt(0)')
        tl(A, 1, 6, 44)
        A.I('s_barrier')
        for j in range(2, 10): issueU(j)
        for j in range(14):
            for b in range(4): A.I(f'v_add_u32 {v(vUR+b)}, {slot(j)*16384}, {v(vUB+b)}')
            vm.wait(('U', j)); A.I('s_barrier')
            if 1 <= j <= 4: issueU(j + 9)
            if j == 7: tl(A, 1, 7, 44)
            def rdu(kk):
                for tp in range(2):
                    A.I(f'ds_read_b128 {v(UR+8*(kk%3)+4*tp,4)}, {v(vUR+(kk&3))} offset:{tp*2048 + (kk>>2)*256}'); l2.add((kk, tp))
            rdu(0); rdu(1)
            for kk in range(8):
                for tp in range(2):
                    l2.wait((kk, tp))
                    for t in range(4):
                        acc = v(ACC + 8*t + 4*tp, 4)
                        A.I(f'v_mfma_f32_16x16x32_bf16 {acc}, {v(UR+8*(kk%3)+4*tp,4)}, {rq(VREG[8*t+kk])}, {acc if kk else 0}')
                        if tp == 0 and t == 0 and kk + 2 < 8: rdu(kk + 2)
            A.I(f's_mov_b32 s40, {f32(CSC)}\n s_mov_b32 s41, s40')
            for e in range(2):
                for tp in range(2):
                    q = wq(ixw[(e, j)], tp)
                    for k in range(2):
                        for y in range(2):
                            r = ACC + 8*(2*e+y) + 4*tp + 2*k
                            A.I(f'v_pk_mul_f32 {v(r,2)}, {v(r,2)}, s[40:41]')
                    for k in range(2):
                        for y in range(2):
                            r = ACC + 8*(2*e+y) + 4*tp + 2*k
                            d = q[1] + 2*k + y if q[0] == 'v' else TC + 2*k + y
                            A.I(f'v_cvt_pk_bf16_f32 {v(d)}, {v(r)}, {v(r+1)}')
                    if q[0] == 'a':
                        for k in range(4): A.I(f'v_accvgpr_write_b32 {a_(q[1]+k)}, {v(TC+k)}')
        A.I('s_barrier')
        for k in range(6): A.I(f'ds_write_b128 {v(vRW)}, {v(R+4*k,4)} offset:{k*1024}')
        tl(A, 1, 5, T)
    A.I(f'''
    v_mov_b32 {v(T+6)}, 0xff800000
    v_mov_b32 {v(T+7)}, 0xff800000
    ds_write_b64 {v(vCK)}, {v(T+6,2)} offset:160
    ''')
    xdma()
    if XB2: xdma()
    A.I(f'''
    s_mul_i32 s40, {s(sROLE)}, {MF_HEAD}
    s_and_b32 s41, {s(sW)}, 1
    s_mul_i32 s41, s41, {7*2048}
    s_mul_i32 s42, {s(sTMP)}, {14*2048}
    s_mul_i32 s43, {s(sTMP2)}, {14*2048}
    v_lshlrev_b32 {v(T+8)}, 4, v0
    v_add_u32 {v(108)}, s42, {v(T+8)}
    s_add_u32 s46, s43, s41
    v_add_u32 {v(109)}, s46, {v(T+8)}
    ''')
    addp(A, sWT, sWS, MF_OFF); addps(A, sWT, sWT, 40)
    def wload(i):
        L, jj = seq[i]
        addp(A, 40, sWT, ((L % 3) * 14 + jj) * 2048)
        for hf in range(2): A.I(f'global_load_dwordx4 {rq(wq(i, hf))}, {v(109 if L == 3 else 108)}, s[40:41] offset:{hf*1024} sc1')
    if SC or 'noprog' in OPT:
        xcc_check(A, 'sc0', 110)
        wait_tiles(A, 'sc', 110, 0, 'head', sROLE)
        tl(A, 1, 4, 110)
        for i, (L, jj) in enumerate(seq):
            if SC and L < 2: continue
            wload(i)
            if i > 23: A.I('s_waitcnt vmcnt(42)')
    else:
        xcc_check(A, 'sc', 110)
        addp(A, sMEM, sWS, MEMS_OFF)
        if SPL:
            A.I(f's_sub_u32 s40, {s(sLB2)}, {s(sLB)}'); addps(A, sMEM2, sMEM, 40)
            A.I(f's_mov_b32 m0, {s(sLB)}'); dma_split(A, vG0)
        else: A.I(f'''
        s_mov_b32 m0, {s(sLB)}
        global_load_lds_dwordx4 {v(vG0)}, {s(sMEM,2)} sc1
        s_mov_b64 exec, {s(sM48,2)}
        global_load_lds_dwordx4 {v(vG0)}, {s(sMEM,2)} offset:1024 sc1
        s_mov_b64 exec, -1
        ''')
        xread()
        for k in range(16): A.I(f'v_mov_b32 {v(TACC+k)}, 0')
        addp(A, sVX, sWS, PF_OFF)
        A.I(f'''
        s_lshl_b32 s40, {s(sROLE)}, 7
        v_bfe_u32 {v(110)}, v0, 3, 1
        v_lshl_add_u32 {v(110)}, {v(110)}, 11, s40
        v_and_b32 {v(111)}, 7, v0
        v_lshl_add_u32 {v(110)}, {v(111)}, 2, {v(110)}
        s_mov_b32 s46, 0x7f
L_sc_w:
        global_load_dword {v(111)}, {v(110)}, {s(sVX,2)} sc1
        ''')
        bud(A)
        A.I(f'''
        s_waitcnt vmcnt(0)
        v_cmp_ne_u32 vcc, 0, {v(111)}
        s_lshr_b32 s47, vcc_lo, 8
        s_and_b32 s47, s47, vcc_lo
        s_and_b32 s47, s47, s46
        s_andn2_b32 s46, s46, s47
        s_cmp_lg_u32 s47, 0
        s_cbranch_scc1 L_sc_wg
        s_sleep {WS}
        s_branch L_sc_w
L_sc_wg:
        ''')
        for jb in range(7):
            A.I(f's_bitcmp0_b32 s47, {jb}\n s_cbranch_scc1 L_sc_w{jb}\n s_waitcnt vmcnt(48)')
            for j in (2 * jb, 2 * jb + 1):
                for L in range(3): wload(ixw[(L, j)])
            A.label(f'L_sc_w{jb}')
        A.I(f's_cmp_lg_u32 s46, 0\n s_cbranch_scc1 L_sc_w\n s_waitcnt vmcnt(48)')
        tl(A, 1, 4, 112)
        for jj in range(7): wload(ixw[(3, jj)])
    if SC or 'noprog' in OPT: xcc_check(A, 'sc', 110)
    if not SC:
        A.I('s_waitcnt vmcnt(14)' if 'noprog' not in OPT else 's_waitcnt vmcnt(0)')
        for k in range(6): A.I(f'ds_write_b128 {v(vRW)}, {v(R+4*k,4)} offset:{k*1024}')
    if SC or 'noprog' in OPT: xread()
    addp(A, sMEM, sWS, MEMS_OFF)
    if prof:
        A.I(f's_lshl_b32 s40, {s(sROLE)}, 2\n s_add_u32 s40, s40, {s(sW)}\n s_lshl_b32 s40, s40, 12')
        addp(A, sDBG, sWS, END_OFF); addps(A, sDBG, sDBG, 40)
    if SC or 'noprog' in OPT:
        for k in range(16): A.I(f'v_mov_b32 {v(TACC+k)}, 0')
    A.I(f'''
    v_and_b32 {v(T)}, 16, v0
    v_cmp_eq_u32 vcc, 0, {v(T)}
    v_mov_b32 {v(T)}, {f32(2.0 ** -LIM)}
    v_cndmask_b32 {v(vLO)}, 0, {v(T)}, vcc
    s_mov_b32 {s(sHI)}, {f32(2.0 ** (LIM - 1))}
    s_waitcnt vmcnt(0) lgkmcnt(0)
    ''')
    tl(A, 1, 1, T)
    if GX:
        A.I(f'''
L_gx:
        s_memrealtime s[40:41]
        s_waitcnt lgkmcnt(0)
        s_sub_u32 s40, s40, s92
        s_cmp_lt_u32 s40, {GX*100}
        s_cbranch_scc1 L_gx
        ''')
    if SC or 'noprog' in OPT: A.I(f's_cmp_eq_u32 {s(sEA)}, 0\n s_cbranch_scc1 L_sd_step')
    else: A.I(f's_barrier\n s_cmp_eq_u32 {s(sEA)}, 0\n s_cbranch_scc1 L_sd_go\n s_branch L_sc_go')
    def loop(tg, sc):
        if ALS >= 0:
            A.raw('.p2align 6, , 63')
            for _ in range(ALS): A.I('s_nop 0')
        A.label(f'L_{tg}_step')
        stamp(A, 0, prof)
        if prof: A.I('s_memtime s[62:63]')
        (mem_poll_split if SPL else mem_poll)(A, tg, vG0, vPR, TMP)
        A.label(f'L_{tg}_go')
        stamp(A, 1, prof)
        lg.clear()
        def rdfrag(jj):
            A.I(f'ds_read_b128 {v(RING + 4*(jj%8), 4)}, {v(vAF0)} offset:{jj*512}'); lg.add(('f', jj))
        GR = [SACC, SACC + 8]
        def rdg(jj):
            if 'nog' in OPT: return
            A.I(f'ds_read_b128 {v(GR[jj&1], 4)}, {v(vAF1)} offset:{jj*512}'); lg.add(('g', jj))
        def rdmemb(L):
            if 'nomb' in OPT: return
            ad = f'{v(vMB0)} offset:{L*512}' if L < 3 else f'{v(vMB1)}'
            A.I(f'ds_read_b128 {v(MEMB + 4*L, 4)}, {ad}'); lg.add(('m', L))
        def cvt(L, k): A.I(f'v_cvt_pk_bf16_f32 {v(TMP + 2*(L&1) + k)}, {v(TACC+4*L+2*k)}, {v(TACC+4*L+2*k+1)}')
        def twr(L):
            A.I(f'ds_write_b64 {v(vTW)}, {v(TMP + 2*(L&1), 2)} offset:{L*768}'); lg.add(('w', L))
        TOPD = RING + 4 * (8 % 8)
        top = {0: TOPA, 1: TOPB, 2: TOPD, 3: TOPC}
        def trr(L):
            A.I(f'ds_read_b64_tr_b16 {v(top[L], 2)}, {v(vTR)} offset:{L*768}'); lg.add(('x', L))
            A.I(f'ds_read_b64_tr_b16 {v(top[L]+2, 2)}, {v(vTR)} offset:{L*768+384}'); lg.add(('t', L))
        def smm1(L, t, first=False):
            lg.wait(('m', L)); lg.wait(('t', L))
            if t == 0: A.I(f'v_mfma_f32_16x16x32_bf16 {v(SACC,4)}, {v(MEMB + 4*L, 4)}, {v(top[L],4)}, {0 if first else v(SACC,4)}')
            else: A.I(f'v_smfmac_f32_16x16x64_bf16 {v(SACC+4,4)}, {v(top[L],4)}, {v(XF + 8*L, 8)}, {v(vIDX)}')
        def chk(j0, first=False):
            if 'nochk' in OPT and not first: return
            a, b = v(RING + 4*(j0 % 8)), v(RING + 4*((j0+1) % 8))
            if first: A.I(f'v_max_u32 {v(vCK)}, {a}, {b}')
            else: A.I(f'v_max3_u32 {v(vCK)}, {a}, {b}, {v(vCK)}')
        fill = {i: [] for i in range(49)}
        ix = {x: i for i, x in enumerate(seq)}
        if SPL:
            fill[0].append(lambda: rdfrag(2))
            fill[GB].append(lambda: A.I('s_waitcnt vmcnt(0)\n s_barrier')); fill[GB + 1].append(lambda: rdg(0)); fill[GB + 2].append(lambda: rdg(1))
        else:
            fill[0].append(lambda: rdg(0)); fill[1].append(lambda: rdfrag(2)); fill[ix[(1, 1)]].append(lambda: rdg(1))
        for k in range(3, 8): fill[ix[(0, k - PD)]].append(lambda k=k: rdfrag(k))
        for k in range(5): fill[ix[(3, k)]].append(lambda k=k: rdg(k + 2))
        for k in range(6): fill[ix[(2, k)]].append(lambda k=k: rdfrag(8 + k))
        e3 = ix[(3, 6)]
        if 'nol3' not in OPT: fill[e3 + 2].append(lambda: cvt(3, 0)); fill[e3 + 3].append(lambda: cvt(3, 1)); fill[e3 + 5].append(lambda: twr(3)); fill[e3 + 6].append(lambda: trr(3))
        for k, L in enumerate([3, 0, 1, 2]): fill[ix[(0, 10 + k)]].append(lambda L=L: rdmemb(L))
        for j0 in range(0, 14, 2):
            i = ix[(0, j0 + 1)]
            while i in (e3 + 2, e3 + 3): i += 1
            fill[i].append(lambda j0=j0: chk(j0, j0 == 0))
        fill[42].append(lambda: A.I(f'v_cmp_eq_u32 vcc, {s(sSENT)}, {v(vCK)}'))
        fill[43].append(lambda: cvt(0, 0)); fill[44].append(lambda: cvt(0, 1))
        fill[45] += [lambda: twr(0), lambda: cvt(1, 0)]; fill[46] += [lambda: trr(0), lambda: cvt(1, 1)]
        fill[47].append(lambda: twr(1)); fill[48].append(lambda: trr(1))
        fill[ix[(1, 5)]].insert(0, lambda: addp(A, 40, sP, 2 * PS_SLOT))
        fill[ix[(1, 6)]].insert(0, lambda: A.I(f's_mov_b64 exec, {s(sM20,2)}\n global_store_dword {v(vPS)}, {v(vSN)}, s[40:41] {sc}\n s_mov_b64 exec, -1'))
        rdfrag(0); rdfrag(1)
        for i, (L, jj) in enumerate(seq):
            lg.now = i; lg.wait_old(('f', jj) if L < 3 else ('g', jj), AGE)
            A.I(f'v_smfmac_f32_16x16x64_bf16 {v(TACC+4*L,4)}, {v(RING+4*(jj%8) if L < 3 else GR[jj&1],4)}, {wreg(i)}, {v(vIDX)}')
            if i == 0: stamp(A, 8, prof > 1)
            if i == 24: stamp(A, 9, prof > 1)
            for f in fill[i]: f()
        stamp(A, 2, prof > 1)
        smm1(3, 1); smm1(3, 0, True)
        cvt(2, 0); cvt(2, 1); twr(2); trr(2)
        A.I(f's_cbranch_vccnz L_{tg}_redo')
        for L in (0, 1): smm1(L, 1); smm1(L, 0)
        smm1(2, 0); smm1(2, 1)
        stamp(A, 10, prof > 1)
        Z = RING + 4
        A.I(f'''
        v_cndmask_b32 {v(Z)}, {v(SACC)}, {v(SACC+1)}, {s(sMHI,2)}
        v_cndmask_b32 {v(Z+1)}, {v(SACC+2)}, {v(SACC+3)}, {s(sMHI,2)}
        v_cndmask_b32 {v(Z)}, {v(Z)}, {v(Z+1)}, {s(sMG,2)}
        ds_write_b32 {v(vSM)}, {v(Z)}
        ds_write2_b32 {v(vSW)}, {v(SACC+4)}, {v(SACC+5)} offset0:0 offset1:44
        ds_write2_b32 {v(vSW)}, {v(SACC+6)}, {v(SACC+7)} offset0:88 offset1:132
        ''')
        stamp(A, 11, prof > 1)
        for k in range(FA): A.I(f'v_mov_b32 {v(TACC+k)}, 0')
        A.I('s_waitcnt lgkmcnt(0)')
        stamp(A, 12, prof > 1)
        A.I('s_barrier')
        stamp(A, 3, prof)
        for k in range(4): A.I(f'ds_read_b64 {v(Z+2*k,2)}, {v(vSR)} offset:{k*1408}')
        for k in range(FA, FA + FB): A.I(f'v_mov_b32 {v(TACC+k)}, 0')
        E, M = Z + 8, Z + 10
        A.I(f'''
        s_waitcnt lgkmcnt(2)
        v_pk_add_f32 {v(Z,2)}, {v(Z,2)}, {v(Z+2,2)}
        s_waitcnt lgkmcnt(0)
        v_pk_add_f32 {v(Z+4,2)}, {v(Z+4,2)}, {v(Z+6,2)}
        v_pk_add_f32 {v(Z,2)}, {v(Z,2)}, {v(Z+4,2)}
        ''')
        stamp(A, 13, prof > 1)
        def summ(a, check=False):
            A.I(f'''
            v_exp_f32 {v(E)}, {v(a)}
            v_exp_f32 {v(E+1)}, {v(a+1)}
            v_add_f32 {v(M)}, {v(E)}, {v(E+1)}
            ''')
            for k in (8, 4, 2, 1): A.I(f'v_add_f32_dpp {v(M)}, {v(M)}, {v(M)} {dpp(k)}')
            A.I(f'v_mov_b32 {v(M+1)}, {v(M)}')
            if check: A.I(f'v_med3_f32 {v(M+3)}, {v(M)}, {v(vLO)}, {s(sHI)}\n v_cmp_neq_f32 vcc, {v(M+3)}, {v(M)}')
            A.I(f'''
            v_permlane16_swap_b32 {v(M)}, {v(M+1)}
            v_add_f32 {v(M)}, {v(M)}, {v(M+1)}
            ''')
        def truemax():
            A.I(f'v_max_f32 {v(M)}, {v(Z)}, {v(Z+1)}')
            for k in (8, 4, 2, 1): A.I(f'v_max_f32_dpp {v(M)}, {v(M)}, {v(M)} {dpp(k)}')
            A.I(f'''
            v_mov_b32 {v(M+1)}, {v(M)}
            v_permlane16_swap_b32 {v(M)}, {v(M+1)}
            v_max_f32 {v(M)}, {v(M)}, {v(M+1)}
            v_sub_f32 {v(E)}, {v(Z)}, {v(M)}
            v_sub_f32 {v(E+1)}, {v(Z+1)}, {v(M)}
            ''')
            summ(E)
        def norm():
            A.I(f'''
            v_rcp_f32 {v(M+2)}, {v(M)}
            s_mov_b64 exec, {s(sM20,2)}
            v_pk_mul_f32 {v(E,2)}, {v(E,2)}, {v(M+2,2)} op_sel_hi:[1,0]
            v_cvt_pk_bf16_f32 {v(E)}, {v(E)}, {v(E+1)}
            ''')
        if 'max' in OPT: truemax(); norm()
        else: summ(Z, True); stamp(A, 14, prof > 1); norm(); A.I(f's_cbranch_vccnz L_{tg}_max')
        A.label(f'L_{tg}_norm')
        A.I(f'global_store_dword {v(vPS)}, {v(E)}, {s(sP,2)} {sc}')
        stamp(A, 4, prof)
        A.I(f's_mov_b64 exec, -1\n s_add_u32 {s(sSTEP)}, {s(sSTEP)}, 1\n s_cmp_ge_u32 {s(sSTEP)}, {NSTEP}\n s_cbranch_scc1 L_sc_end')
        if XB2: A.I(f's_cmp_ge_u32 {s(sSTEP)}, {NSTEP-1}\n s_cbranch_scc1 L_{tg}_nox')
        if 'nox' not in OPT: xdma()
        if tok.FIN: A.I(f's_branch L_{tg}_nof')
        A.label(f'L_{tg}_nox')
        if tok.FIN:
            A.I(f's_lshl_b32 s42, {s(sROLE)}, 2\n s_add_u32 s42, s42, {s(sW)}\n s_mul_i32 s42, s42, 10240')
            addp(A, 40, sWS, FX_OFF); addps(A, 40, 40, 42)
            A.I(f's_lshl_b32 s42, {s(sW)}, 13\n s_lshl_b32 s43, {s(sW)}, 11\n v_subrev_u32 {v(RING)}, {s(sLB)}, {v(vG0)}')
            for k in range(10):
                A.I(f's_add_u32 m0, s42, {131072 + (k>>2)*4096}' if k < 8 else f's_add_u32 m0, s43, 51200')
                A.I(f'global_load_lds_dwordx4 {v(RING)}, s[40:41] offset:{(k%4)*1024} sc1')
                if k % 4 == 3: addp(A, 40, 40, 4096)
            A.label(f'L_{tg}_nof')
        for k in range(6): A.I(f'ds_read_b128 {v(R+4*k,4)}, {v(vRW)} offset:{k*1024}')
        for k in range(FA + FB, 16): A.I(f'v_mov_b32 {v(TACC+k)}, 0')
        addp(A, sP, sP, PS_SLOT); addp(A, sMEM, sMEM, MEM_SLOT)
        if SPL: addp(A, sMEM2, sMEM2, MEM_SLOT)
        stamp_flush(A, prof)
        if not XB2: A.I('s_waitcnt vmcnt(0)')
        xread()
        delay(A, SS)
        stamp(A, 5, prof)
        A.I(f's_branch L_{tg}_step')
        if 'max' not in OPT:
            A.label(f'L_{tg}_max'); A.I('s_mov_b64 exec, -1\n s_nop 1'); truemax(); norm(); A.I(f's_branch L_{tg}_norm')
        A.label(f'L_{tg}_redo')
        if prof: A.I(f's_add_u32 {s(sreg(15))}, {s(sreg(15))}, 1')
        A.I('s_waitcnt vmcnt(0) lgkmcnt(0)\n s_nop 15\n s_barrier')
        for k in range(6): A.I(f'ds_read_b128 {v(R+4*k,4)}, {v(vRW)} offset:{k*1024}')
        for k in range(16): A.I(f'v_mov_b32 {v(TACC+k)}, 0')
        for k in range(4): A.I(f'v_mov_b32 {v(SACC+4+k)}, 0')
        A.I(f's_branch L_{tg}_mp')
    loop('sc', ''); loop('sd', 'sc1')
    A.label('L_sc_end')
    tl(A, 1, 2, T)
    stamp_flush(A, prof)
    if tok.FIN:
        A.I(f'''
        v_mbcnt_lo_u32_b32 v0, -1, 0
        v_mbcnt_hi_u32_b32 v0, -1, v0
        v_and_b32 v1, 15, v0
        v_lshrrev_b32 v2, 4, v0
        v_lshlrev_b32 v3, 4, v0
        ''')
        tok.tt_setup(A)
        A.I(f's_lshl_b32 s42, {s(sW)}, 13\n s_add_u32 s42, s42, 131072\n v_add_u32 v4, s42, v3\n s_lshl_b32 s42, {s(sW)}, 11\n s_add_u32 s42, s42, 51200\n v_add_u32 v5, s42, v3')
        for k in range(10):
            A.I(f'ds_read_b128 {v(tok.TT.TB+4*k if k < 7 else tok.TT.SA+4*(k-7),4)}, {"v4" if k < 8 else "v5"} offset:{(k%8)*1024}')
        addp(A, sMEM, sMEM, MEM_SLOT); addp(A, sP, sWS, PX_OFF + 63 * PX_SEG)
        O = tok.tt_finish(A, 'sf', sMEM, False)
        A.I(f'''
        s_mov_b64 exec, {s(tok.TT.sM5,2)}
        s_cmp_eq_u32 {s(sEA)}, 0
        s_cbranch_scc1 L_sf_slow
        global_store_dwordx4 {v(tok.TT.vPX)}, {v(O,4)}, {s(sP,2)}
        s_endpgm
L_sf_slow:
        global_store_dwordx4 {v(tok.TT.vPX)}, {v(O,4)}, {s(sP,2)} sc1
        ''')
    A.I('s_endpgm')

def value(A, prof=0):
    L_MEM, L_RB, L_WL, L_VB = 0, 8192, 16384, 131072
    DEC = 'dec' in OPT
    H3R, NR = 136, NRES
    RBW = 32 * 48
    vIDX, vG0, vCK, vPR, vAF, vWL, vV0, vV1, vPM, vPX, vSN, vRWR, vRRD, vMS, vZ, vDUM, vFL, vVB, vVP = range(1, 20)
    ARING, HRING, VXF, WACC, WX, WY, OX, OY, PF, WV = 20, 36, 60, 92, 108, 112, 116, 120, 124, 176
    lg = Cnt(A, 'lgkmcnt', 15)
    def wreg(hh, j):
        k = (hh * 14 + j) * 8
        return a_(k, 8) if k < 256 else v(WV + k - 256, 8)
    A.label('L_value')
    A.I(f's_load_dwordx2 {s(sX0,2)}, s[0:1], {KA_OUT}\n s_waitcnt lgkmcnt(0)')
    chain_common(A)
    T = 20
    A.I(f's_mov_b32 {s(sTMP)}, {s(sROLE)}\n s_sub_u32 {s(sROLE)}, {s(sROLE)}, 16')
    idx_setup(A, vIDX, T)
    mem_poll_setup(A, vG0, vPR, T + 4, DEC)
    A.I(f'''
    v_lshlrev_b32 {v(vAF)}, 7, {v(T+1)}
    v_lshl_add_u32 {v(vAF)}, {v(T+2)}, 4, {v(vAF)}
    s_mul_i32 s40, {s(sW)}, 28672
    s_add_u32 s40, s40, {L_WL}
    v_lshl_add_u32 {v(vWL)}, v0, 4, s40
    s_lshl_b32 s40, {s(sW)}, 13
    v_lshl_add_u32 {v(vV0)}, v0, 4, s40
    v_add_u32 {v(vV1)}, 4096, {v(vV0)}
    s_mul_i32 s40, {s(sW)}, 2560
    v_and_b32 {v(T+5)}, 1, {v(T+1)}
    v_lshl_add_u32 {v(vPX)}, v0, 4, s40
    v_lshl_add_u32 {v(vPM)}, v0, 2, s40
    v_lshlrev_b32 {v(vFL)}, 2, {v(T)}
    s_and_b32 s41, {s(sW)}, 1
    s_lshl_b32 s41, s41, 13
    v_lshl_add_u32 {v(vVP)}, v0, 4, s41
    s_add_u32 {s(sXB)}, s41, {L_VB}
    v_lshl_add_u32 {v(vVB)}, v0, 4, {s(sXB)}
    s_mul_i32 s40, {s(sW)}, {RBW}
    s_add_u32 s40, s40, {L_RB}
    v_lshrrev_b32 {v(T+7)}, 5, v0
    v_lshl_add_u32 {v(T+7)}, {v(T+7)}, 4, {v(T)}
    v_mul_u32_u24 {v(T+7)}, 48, {v(T+7)}
    v_lshl_add_u32 {v(T+7)}, {v(T+5)}, 4, {v(T+7)}
    v_add_u32 {v(vRWR)}, s40, {v(T+7)}
    s_and_b32 s40, {s(sW)}, 1
    s_lshl_b32 s40, s40, 4
    s_lshr_b32 s41, {s(sW)}, 1
    s_lshl_b32 s41, s41, 2
    s_add_u32 s40, s40, s41
    v_bfe_u32 {v(T+7)}, v0, 2, 1
    v_lshlrev_b32 {v(T+7)}, 3, {v(T+7)}
    v_and_b32 {v(T+8)}, 3, v0
    v_add3_u32 {v(T+7)}, {v(T+7)}, {v(T+8)}, s40
    v_mul_u32_u24 {v(T+7)}, 48, {v(T+7)}
    v_lshrrev_b32 {v(T+8)}, 3, v0
    v_lshl_add_u32 {v(T+7)}, {v(T+8)}, 2, {v(T+7)}
    v_add_u32 {v(vRRD)}, {L_RB}, {v(T+7)}
    s_lshl_b32 s40, {s(sROLE)}, 9
    s_lshl_b32 s41, {s(sW)}, 7
    s_add_u32 s40, s40, s41
    v_lshl_add_u32 {v(vMS)}, v0, 1, s40
    v_mov_b32 {v(vSN)}, {SENT}
    ''')
    addp(A, sMEM, sWS, MEMS_OFF); addp(A, 40, sMEM, MEM_SLOT); addp(A, 42, sMEM, 2 * MEM_SLOT)
    A.I(f'''
    global_store_short {v(vMS)}, {v(vSN)}, s[40:41] sc1
    global_store_short {v(vMS)}, {v(vSN)}, s[42:43] sc1
    ''')
    xcc_publish(A, sTMP, T + 12)
    warm(A, 'L_va_step', 'L_vb_step', T + 12)
    A.I(f'''
    s_mul_i32 s40, {s(sW)}, {4*MF_HEAD}
    s_mul_i32 s41, {s(sROLE)}, {14*2048}
    s_add_u32 s40, s40, s41
    s_cmp_ge_u32 {s(sROLE)}, 8
    s_cselect_b32 {s(sTMP)}, 1, 0
    v_lshlrev_b32 {v(T+8)}, 4, v0
    ''')
    addp(A, sWT, sWS, MF_OFF + MF_MAT); addps(A, sWT, sWT, 40)
    addp(A, sVX, sWS, PF_OFF + 4096)
    A.I(f'''
    s_lshl_b32 s40, {s(sTMP)}, 11
    s_lshl_b32 s41, {s(sW)}, 9
    s_add_u32 s40, s40, s41
    v_bfe_u32 {v(T+12)}, v0, 3, 2
    v_lshl_add_u32 {v(T+12)}, {v(T+12)}, 7, s40
    v_lshl_add_u32 {v(T+12)}, {v(T+2)}, 2, {v(T+12)}
    s_mov_b32 s46, 15
L_va_w:
    s_sleep {WS}
    global_load_dword {v(T+13)}, {v(T+12)}, {s(sVX,2)} sc1
    ''')
    bud(A)
    A.I(f's_waitcnt vmcnt(0)\n v_cmp_eq_u32 vcc, 0, {v(T+13)}\n s_mov_b32 s47, vcc_lo')
    for hh in (3, 0, 1, 2):
        A.I(f'''
        s_bitcmp0_b32 s46, {hh}
        s_cbranch_scc1 L_va_w{hh}
        s_and_b32 s40, s47, {0xff << (8*hh)}
        s_cbranch_scc1 L_va_w{hh}
        s_bitset0_b32 s46, {hh}
        s_waitcnt vmcnt(32)
        ''')
        addp(A, 40, sWT, hh * MF_HEAD)
        for q in range(28):
            if hh == 3: dst = v(60 + 4 * q, 4)
            else:
                k = 112 * hh + 4 * q; dst = a_(k, 4) if k < 256 else v(WV + k - 256, 4)
            A.I(f'global_load_dwordx4 {dst}, {v(T+8)}, s[40:41] offset:{(q%4)*1024} sc1')
            if q % 4 == 3 and q < 27: addp(A, 40, 40, 4096)
        A.label(f'L_va_w{hh}')
    A.I(f's_cmp_lg_u32 s46, 0\n s_cbranch_scc1 L_va_w\n s_waitcnt vmcnt(0)')
    tl(A, 1, 4, T + 14)
    for k in range(2 * NR, 28): A.I(f'ds_write_b128 {v(vWL)}, {v(60+4*k,4)} offset:{k*1024}')
    A.I('s_waitcnt lgkmcnt(0)')
    for k in range(8 * NR): A.I(f'v_mov_b32 {v(H3R+k)}, {v(60+k)}')
    if 'vassist' in OPT: assist(A, 'va_as', sROLE, T + 12)
    xcc_check(A, 'va', T + 12)
    addp(A, sP, sWS, PS_OFF); addp(A, sFL, sWS, FL_OFF); addp(A, sMT, sWS, MEMT_OFF + (62 if tok.FIN else 63) * MEMT_SLOT)
    A.I(f's_mul_i32 s40, {s(sROLE)}, {VX_SC}'); addp(A, sVX, sWS, VX_OFF); addps(A, sVX, sVX, 40)
    A.I('s_waitcnt vmcnt(0) lgkmcnt(0)')
    tl(A, 1, 1, T)
    def flagwait(tag, loaded):
        if loaded:
            A.I(f'v_cmp_eq_u32 vcc, 0, {v(vDUM)}\n s_cbranch_vccz L_{tag}_ok')
        A.I(f'L_{tag}:\n global_load_dword {v(vDUM)}, {v(vFL)}, {s(sFL,2)} sc1')
        bud(A)
        A.I(f'''
        s_waitcnt vmcnt(0)
        v_cmp_eq_u32 vcc, 0, {v(vDUM)}
        s_cbranch_vccnz L_{tag}
L_{tag}_ok:
        ''')
    flagwait('va_f0', False)
    tl(A, 1, 3, T)
    addp(A, sFL, sFL, 256)
    if prof:
        A.I(f's_add_u32 s40, {s(sROLE)}, 16\n s_lshl_b32 s40, s40, 2\n s_add_u32 s40, s40, {s(sW)}\n s_lshl_b32 s40, s40, 12')
        addp(A, sDBG, sWS, END_OFF); addps(A, sDBG, sDBG, 40)
    def vxload(k, force=False):
        if 'novx' in OPT and not force: return
        hh, t = k >> 1, k & 1
        A.I(f'global_load_dwordx4 {v(VXF+16*t+4*hh,4)}, {v(vV0 if hh < 2 else vV1)}, {s(sVX,2)} offset:{(hh&1)*2048+t*1024} sc1')
    def vxearly(tag):
        if not DEC:
            for k in range(VE): vxload(k)
            return
        A.I(f's_cmp_lt_u32 {s(sW)}, 2\n s_cbranch_scc1 L_{tag}')
        addp(A, 40, sVX, 4096)
        for k in range(8):
            A.I(f's_add_u32 m0, {s(sXB)}, {(k>>2)*4096}')
            A.I(f'global_load_lds_dwordx4 {v(vVP)}, {s(sVX if k < 4 else 40,2)} offset:{(k&3)*1024} sc1')
        for k in range(8): vxload(k)
        A.label(f'L_{tag}')
    def hslot(j): return [HRING, HRING + 8, HRING + 16, 168][(j - NR) % HD]
    def rdh(j):
        if j < NR or j >= 14: return
        for k in range(2):
            A.I(f'ds_read_b128 {v(hslot(j)+4*k,4)}, {v(vWL)} offset:{(2*j+k)*1024}'); lg.add(('h', j))
    def rda(j):
        A.I(f'ds_read_b128 {v(ARING+4*(j%4),4)}, {v(vAF)} offset:{j*512}'); lg.add(('a', j))
    def prep_():
        for k in range(16): A.I(f'v_mov_b32 {v(WACC+k)}, 0')
        for j in range(NR, NR + HD - 1): rdh(j)
    for k in range(8): A.I(f'v_mov_b32 {v(OX+k)}, 0')
    vxearly('va_e0')
    if 'novx' in OPT:
        for k in range(8): vxload(k, True)
    prep_()
    P2, AC, BP, G, vA, vF2, vW, vRd, vO, vBa, vGa = 176, 216, 232, 236, 116, 117, 118, 119, 120, 121, 122
    def fin_setup():
        U = 124
        A.I(f'''
        v_min_u32 {v(U)}, 38, v0
        v_cmp_lt_u32 vcc, 22, {v(U)}
        v_cndmask_b32 {v(U+1)}, 0, 9, vcc
        v_add_lshl_u32 {v(U)}, {v(U)}, {v(U+1)}, 2
        v_min_u32 {v(vF2)}, {4*38}, {v(U)}
        s_mul_i32 s40, {s(sW)}, 10240
        v_lshl_add_u32 {v(vA)}, v0, 4, s40
        v_and_b32 {v(U)}, 15, v0
        v_lshrrev_b32 {v(U+1)}, 4, v0
        s_mul_i32 s40, {s(sW)}, 4608
        s_add_u32 s40, s40, {L_WL}
        v_mul_u32_u24 {v(U+2)}, 144, {v(U)}
        v_lshl_add_u32 {v(U+2)}, {v(U+1)}, 4, {v(U+2)}
        v_add_u32 {v(vW)}, s40, {v(U+2)}
        v_lshrrev_b32 {v(U)}, 3, v0
        v_lshl_add_u32 {v(U)}, {s(sW)}, 3, {v(U)}
        v_and_b32 {v(U+1)}, 7, v0
        v_mul_u32_u24 {v(U+2)}, 144, {v(U)}
        v_lshl_add_u32 {v(U+2)}, {v(U+1)}, 4, {v(U+2)}
        v_add_u32 {v(vRd)}, {L_WL}, {v(U+2)}
        s_lshl_b32 s40, {s(sROLE)}, 6
        v_mul_u32_u24 {v(U+2)}, 896, {v(U)}
        v_lshl_add_u32 {v(U+2)}, {v(U+1)}, 3, {v(U+2)}
        v_add_u32 {v(vO)}, s40, {v(U+2)}
        v_lshlrev_b32 {v(vBa)}, 1, {v(vO)}
        v_lshlrev_b32 {v(vGa)}, 2, {v(U)}
        ''')
    A.I(f's_cmp_eq_u32 {s(sEA)}, 0\n s_cbranch_scc1 L_vb_step')
    def loop(tg, sc):
        if ALV >= 0:
            A.raw('.p2align 6, , 63')
            for _ in range(ALV): A.I('s_nop 0')
        A.label(f'L_{tg}_step')
        stamp(A, 0, prof)
        (mem_poll_half if DEC else mem_poll)(A, tg, vG0, vPR, PF + 10)
        stamp(A, 1, prof)
        lg.clear()
        rda(0); rda(1); rda(2)
        addp(A, 40, sMEM, 3 * MEM_SLOT)
        A.I(f'global_store_short {v(vMS)}, {v(vSN)}, s[40:41] {sc}')
        for j in range(14):
            lg.wait(('a', j))
            for hh in range(4):
                if hh == 3: lg.wait(('h', j))
                w = wreg(hh, j) if hh < 3 else v(H3R + 8 * j, 8) if j < NR else v(hslot(j), 8)
                A.I(f'v_smfmac_f32_16x16x64_bf16 {v(WACC+4*hh,4)}, {v(ARING+4*(j%4),4)}, {w}, {v(vIDX)}' if 'now' not in OPT else 's_nop 3')
                if hh == 0 and j >= NR: rdh(j + HD - 1)
                if hh == 1 and j + 3 < 14: rda(j + 3)
                if hh == 2 and j < 8 - VE and not DEC: vxload(7 - j if 'vrev' in OPT else j + VE)
                if hh == 2 and j == 8 - VE: A.I(f'global_load_dword {v(vDUM)}, {v(vFL)}, {s(sFL,2)} sc1')
                if hh == 2:
                    if j == 0: A.I(f'v_mov_b32 {v(vCK)}, {v(ARING)}')
                    else: A.I(f'v_max_u32 {v(vCK)}, {v(vCK)}, {v(ARING+4*(j%4))}')
                if hh == 3 and j == 13: A.I(f'v_cmp_eq_u32 vcc, {s(sSENT)}, {v(vCK)}')
        A.I(f's_cbranch_vccnz L_{tg}_redo')
        if tok.FIN:
            A.I(f'''
            s_cmp_lt_u32 {s(sSTEP)}, {NSTEP-3}
            s_cbranch_scc1 L_{tg}_nr
            s_cmp_eq_u32 {s(sSTEP)}, {NSTEP}
            s_cbranch_scc1 L_va_fin
            v_cmp_eq_u32 vcc, 0, {v(PF+11)}
            s_cbranch_vccz L_{tg}_nr
            ''')
            addp(A, 40, sWS, FL_OFF + 63 * 256 + 64)
            A.I(f'L_{tg}_ex:\n global_load_dword {v(PF+11)}, {v(vFL)}, s[40:41] sc1')
            bud(A)
            A.I(f's_waitcnt vmcnt(0)\n v_cmp_eq_u32 vcc, 0, {v(PF+11)}\n s_cbranch_vccnz L_{tg}_ex\nL_{tg}_nr:')
        if DEC:
            A.I(f's_waitcnt vmcnt(0)\n s_barrier\n s_cmp_ge_u32 {s(sW)}, 2\n s_cbranch_scc1 L_{tg}_nv')
            for k in range(8): A.I(f'ds_read_b128 {v(VXF+16*(k&1)+4*(k>>1),4)}, {v(vVB)} offset:{k*1024}')
            A.label(f'L_{tg}_nv')
        for k in range(2):
            for p in range(2):
                A.I(f'v_cvt_pk_bf16_f32 {v(WX+2*k+p)}, {v(WACC+8*p+2*k)}, {v(WACC+8*p+2*k+1)}')
                A.I(f'v_cvt_pk_bf16_f32 {v(WY+2*k+p)}, {v(WACC+8*p+4+2*k)}, {v(WACC+8*p+4+2*k+1)}')
        for k in range(4): A.I(f'v_permlane32_swap_b32 {v(WX+k)}, {v(WY+k)}')
        if DEC: A.I('s_waitcnt lgkmcnt(0)')
        stamp(A, 2, prof)
        if prof: A.I('s_waitcnt vmcnt(0)'); stamp(A, 6, prof)
        F = PF
        if 'nospec' in OPT:
            for k in range(8): A.I(f'v_mov_b32 {v(OX+k)}, 0')
        delay(A, PS_)
        A.I(f'''
L_{tg}_pp:
        global_load_dwordx4 {v(F,4)}, {v(vPX)}, {s(sP,2)} sc1
        global_load_dwordx4 {v(F+4,4)}, {v(vPX)}, {s(sP,2)} offset:1024 sc1
        global_load_dword {v(F+8)}, {v(vPM)}, {s(sP,2)} offset:2048 sc1
        global_load_dword {v(F+9)}, {v(vPM)}, {s(sP,2)} offset:2304 sc1
        ''')
        bud(A)
        if 'nospec' in OPT:
            A.I(f'''
            s_waitcnt vmcnt(0)
            v_max3_u32 {v(vCK)}, {v(F)}, {v(F+4)}, {v(F+8)}
            v_max_u32 {v(vCK)}, {v(vCK)}, {v(F+9)}
            v_cmp_eq_u32 vcc, {s(sSENT)}, {v(vCK)}
            s_cbranch_vccnz L_{tg}_pp
            v_smfmac_f32_16x16x64_bf16 {v(OX,4)}, {v(F,4)}, {v(VXF,8)}, {v(vIDX)}
            v_smfmac_f32_16x16x64_bf16 {v(OY,4)}, {v(F,4)}, {v(VXF+16,8)}, {v(vIDX)}
            v_smfmac_f32_16x16x64_bf16 {v(OX,4)}, {v(F+4,4)}, {v(VXF+8,8)}, {v(vIDX)}
            v_smfmac_f32_16x16x64_bf16 {v(OY,4)}, {v(F+4,4)}, {v(VXF+24,8)}, {v(vIDX)}
            v_smfmac_f32_16x16x32_bf16 {v(OX,4)}, {v(F+8,2)}, {v(WX,4)}, {v(vIDX)}
            v_smfmac_f32_16x16x32_bf16 {v(OY,4)}, {v(F+8,2)}, {v(WY,4)}, {v(vIDX)}
            ''')
        elif 'spec2' in OPT:
            for k in range(8): A.I(f'v_mov_b32 {v(OX+k)}, 0')
            A.I(f'''
            s_waitcnt vmcnt(0)
            v_max3_u32 {v(vCK)}, {v(F)}, {v(F+4)}, {v(F+8)}
            v_max_u32 {v(vCK)}, {v(vCK)}, {v(F+9)}
            v_cmp_eq_u32 vcc, {s(sSENT)}, {v(vCK)}
            v_smfmac_f32_16x16x64_bf16 {v(OX,4)}, {v(F,4)}, {v(VXF,8)}, {v(vIDX)}
            v_smfmac_f32_16x16x64_bf16 {v(OY,4)}, {v(F,4)}, {v(VXF+16,8)}, {v(vIDX)}
            s_cbranch_vccnz L_{tg}_pp
            v_smfmac_f32_16x16x64_bf16 {v(OX,4)}, {v(F+4,4)}, {v(VXF+8,8)}, {v(vIDX)}
            v_smfmac_f32_16x16x64_bf16 {v(OY,4)}, {v(F+4,4)}, {v(VXF+24,8)}, {v(vIDX)}
            v_smfmac_f32_16x16x32_bf16 {v(OX,4)}, {v(F+8,2)}, {v(WX,4)}, {v(vIDX)}
            v_smfmac_f32_16x16x32_bf16 {v(OY,4)}, {v(F+8,2)}, {v(WY,4)}, {v(vIDX)}
            ''')
        else:
            for k in range(8): A.I(f'v_mov_b32 {v(OX+k)}, 0')
            A.I(f'''
            s_waitcnt vmcnt(3)
            v_smfmac_f32_16x16x64_bf16 {v(OX,4)}, {v(F,4)}, {v(VXF,8)}, {v(vIDX)}
            v_smfmac_f32_16x16x64_bf16 {v(OY,4)}, {v(F,4)}, {v(VXF+16,8)}, {v(vIDX)}
            s_waitcnt vmcnt(0)
            v_max3_u32 {v(vCK)}, {v(F)}, {v(F+4)}, {v(F+8)}
            v_smfmac_f32_16x16x64_bf16 {v(OX,4)}, {v(F+4,4)}, {v(VXF+8,8)}, {v(vIDX)}
            v_max_u32 {v(vCK)}, {v(vCK)}, {v(F+9)}
            v_smfmac_f32_16x16x64_bf16 {v(OY,4)}, {v(F+4,4)}, {v(VXF+24,8)}, {v(vIDX)}
            v_cmp_eq_u32 vcc, {s(sSENT)}, {v(vCK)}
            v_smfmac_f32_16x16x32_bf16 {v(OX,4)}, {v(F+8,2)}, {v(WX,4)}, {v(vIDX)}
            v_smfmac_f32_16x16x32_bf16 {v(OY,4)}, {v(F+8,2)}, {v(WY,4)}, {v(vIDX)}
            s_cbranch_vccnz L_{tg}_pp
            ''')
        stamp(A, 3, prof)
        stamp(A, 8, prof > 1)
        A.flush()
        for r in range(4): A.I(f'v_permlane32_swap_b32 {v(OX+r)}, {v(OY+r)}')
        A.I(f'''
        v_pk_add_f32 {v(OX,2)}, {v(OX,2)}, {v(OY,2)}
        v_pk_add_f32 {v(OX+2,2)}, {v(OX+2,2)}, {v(OY+2,2)}
        ds_write_b128 {v(vRWR)}, {v(OX,4)}
        ''')
        stamp(A, 9, prof > 1)
        for k in range(FC): A.I(f'v_mov_b32 {v(WACC+k)}, 0')
        A.I('s_waitcnt lgkmcnt(0)')
        stamp(A, 10, prof > 1)
        A.I('s_barrier')
        stamp(A, 11, prof > 1)
        Z = ARING + 4
        for k in range(4): A.I(f'ds_read_b32 {v(Z+k)}, {v(vRRD)} offset:{k*RBW}')
        for k in range(FC, FC + FD): A.I(f'v_mov_b32 {v(WACC+k)}, 0')
        addp(A, sMEM, sMEM, MEM_SLOT); addp(A, sP, sP, PS_SLOT)
        A.I('s_waitcnt lgkmcnt(0)')
        stamp(A, 12, prof > 1)
        A.I(f'''
        v_pk_add_f32 {v(Z,2)}, {v(Z,2)}, {v(Z+2,2)}
        v_add_f32 {v(Z)}, {v(Z)}, {v(Z+1)}
        v_cvt_pk_bf16_f32 {v(vZ)}, {v(Z)}, {v(Z)}
        ''')
        A.I(f'global_store_short {v(vMS)}, {v(vZ)}, {s(sMEM,2)} {sc}')
        stamp(A, 4, prof)
        A.I(f's_add_u32 {s(sSTEP)}, {s(sSTEP)}, 1')
        if not tok.FIN: A.I(f's_cmp_ge_u32 {s(sSTEP)}, {NSTEP}\n s_cbranch_scc1 L_va_end')
        flagwait(tg + '_f1', True)
        addp(A, sVX, sVX, 14 * VX_SC); addp(A, sFL, sFL, 256)
        vxearly(tg + '_e1')
        if tok.FIN:
            A.I(f's_cmp_lt_u32 {s(sSTEP)}, {NSTEP-3}\n s_cbranch_scc1 L_{tg}_nd\n s_cmp_eq_u32 {s(sSTEP)}, {NSTEP}\n s_cbranch_scc1 L_{tg}_fs')
            addp(A, 40, sWS, FL_OFF + 63 * 256 + 64)
            A.I(f'global_load_dword {v(PF+11)}, {v(vFL)}, s[40:41] sc1\n s_cmp_lg_u32 {s(sSTEP)}, {NSTEP-1}\n s_cbranch_scc1 L_{tg}_nd')
            if DIR: A.I(f'global_store_short {v(vMS)}, {v(vZ)}, {s(sMT,2)} sc1')
            A.I(f's_branch L_{tg}_nd\nL_{tg}_fs:')
            tl(A, 1, 2, T)
            fin_setup()
            A.label(f'L_{tg}_nd')
        lg.clear(); prep_()
        stamp(A, 5, prof)
        stamp_flush(A, prof)
        A.I(f's_branch L_{tg}_step')
        A.label(f'L_{tg}_redo')
        if prof: A.I(f's_add_u32 {s(sreg(15))}, {s(sreg(15))}, 1')
        A.I('s_waitcnt vmcnt(0) lgkmcnt(0)\n s_nop 15\n s_barrier')
        lg.clear(); prep_()
        A.I(f's_branch L_{tg}_mp')
    loop('va', ''); loop('vb', 'sc1')
    A.label('L_va_end')
    A.I(f'global_store_short {v(vMS)}, {v(vZ)}, {s(sMT,2)} sc1')
    tl(A, 1, 2, T)
    stamp_flush(A, prof)
    A.I('s_endpgm')
    if not tok.FIN: return
    A.label('L_va_fin')
    A.I('s_barrier\n s_nop 7')
    for hh in range(4):
        for k in range(2): A.I(f'v_cvt_pk_bf16_f32 {v(WX+2*hh+k)}, {v(WACC+4*hh+2*k)}, {v(WACC+4*hh+2*k+1)}')
    for k in range(4): A.I(f'v_permlane32_swap_b32 {v(WX+k)}, {v(WY+k)}')
    for k in (0, 1, 4, 5): A.I(f'v_permlane16_swap_b32 {v(WX+k)}, {v(WX+k+2)}')
    addp(A, sFL, sWS, FL_OFF + 63 * 256 + 64); addp(A, sP, sWS, PX_OFF + 63 * PX_SEG); addp(A, 42, sP, 4096); addp(A, 46, sP, 8192)
    A.I(f'v_mov_b32 {v(vFL)}, {v(vF2)}')
    flagwait('va_f2', False)
    addp(A, 40, sWS, BP_OFF); A.I(f'global_load_dwordx4 {v(BP,4)}, {v(vBa)}, s[40:41] sc1')
    addp(A, 40, sWS, G_OFF + 63 * 128); A.I(f'global_load_dword {v(G)}, {v(vGa)}, s[40:41] sc1')
    addp(A, sX0, sX0, 63 * 32 * 896)
    A.label('L_va_fp')
    for i in range(10): A.I(f'global_load_dwordx4 {v(P2+4*i,4)}, {v(vA)}, {s([sP, 42, 46][i>>2],2)} offset:{(i%4)*1024} sc1')
    bud(A)
    A.I('s_waitcnt vmcnt(0)')
    A.I(f'v_max_u32 {v(vCK)}, {v(P2)}, {v(P2+4)}')
    for i in range(2, 10, 2): A.I(f'v_max3_u32 {v(vCK)}, {v(vCK)}, {v(P2+4*i)}, {v(P2+4*i+4)}')
    A.I(f'v_cmp_eq_u32 vcc, {s(sSENT)}, {v(vCK)}')
    n = 0
    for k in range(5):
        for tt in range(2):
            for ct in range(2):
                d = v(AC + 8*ct + 4*tt, 4)
                a = v(VXF + 16*ct + 4*k, 4) if k < 4 else v(WY if ct else WX, 4)
                A.I(f'v_mfma_f32_16x16x32_bf16 {d}, {a}, {v(P2+8*k+4*tt,4)}, {d if k else 0}')
                n += 1
                if n == 2: A.I('s_cbranch_vccnz L_va_fp')
    for tt in range(2):
        for ct in range(2): A.I(f'ds_write_b128 {v(vW)}, {v(AC+8*ct+4*tt,4)} offset:{tt*16*144 + ct*64}')
    A.I('s_waitcnt lgkmcnt(0)\n s_barrier')
    for k in range(4): A.I(f'ds_read_b128 {v(P2+4*k,4)}, {v(vRd)} offset:{k*4608}')
    A.I('s_waitcnt lgkmcnt(0)')
    for a, b in ((0, 4), (8, 12), (0, 8)):
        for k in (0, 2): A.I(f'v_pk_add_f32 {v(P2+a+k,2)}, {v(P2+a+k,2)}, {v(P2+b+k,2)}')
    for k in range(4): A.I(f'v_fmac_f32 {v(BP+k)}, {v(G)}, {v(P2+k)}')
    A.I(f'''
    v_cvt_pk_bf16_f32 {v(BP)}, {v(BP)}, {v(BP+1)}
    v_cvt_pk_bf16_f32 {v(BP+1)}, {v(BP+2)}, {v(BP+3)}
    global_store_dwordx2 {v(vO)}, {v(BP,2)}, {s(sX0,2)} {tok.OST}
    ''')
    if TL['on']: A.I('s_waitcnt vmcnt(0)')
    tl(A, 1, 7, T)
    A.I('s_endpgm')

def helper(A):
    vG0, vX, vP, vM, D = 1, 2, 3, 4, 8
    A.label('L_helper')
    A.I(f's_load_dwordx2 {s(sX0,2)}, s[0:1], {KA_X}\n s_waitcnt lgkmcnt(0)')
    chain_common(A)
    xcc_publish(A, sROLE, 20)
    A.I(f'''
    s_mul_i32 {s(sLB)}, {s(sW)}, 1792
    v_lshlrev_b32 {v(vG0)}, 4, v0
    v_add_u32 {v(vG0)}, {s(sLB)}, {v(vG0)}
    s_mov_b32 {s(sM48)}, -1
    s_mov_b32 {s(sM48+1)}, 0xffff
    s_mul_i32 s40, {s(sW)}, 7168
    v_min_u32 {v(vX)}, 55, v0
    v_lshl_add_u32 {v(vX)}, {v(vX)}, 7, s40
    s_mul_i32 s40, {s(sW)}, 2560
    v_min_u32 {v(vP)}, 19, v0
    v_lshl_add_u32 {v(vP)}, {v(vP)}, 7, s40
    v_min_u32 {v(vM)}, 13, v0
    v_lshl_add_u32 {v(vM)}, {v(vM)}, 7, {s(sLB)}
    v_add_u32 {v(vM)}, {4*MEM_SLOT}, {v(vM)}
    v_add_u32 {v(vP)}, {PS_SLOT * (2 if 'mtouch' in OPT else 0)}, {v(vP)}
    v_mov_b32 {v(D+4)}, 0
    v_mov_b32 {v(D+5)}, 0
    v_mov_b32 {v(D+6)}, 0
    v_mov_b32 {v(D+7)}, 0
    ''')
    xcc_check(A, 'he', 20)
    for k in range(2):
        addp(A, 40, sWS, PS_OFF + (k - 2) * PS_SLOT); A.I(f'global_load_dword v21, {v(vP)}, s[40:41] sc1')
    for k in range(4):
        addp(A, 40, sWS, MEMS_OFF + (k - 4) * MEM_SLOT); A.I(f'global_load_dword v21, {v(vM)}, s[40:41] sc1')
    wait_tiles(A, 'he', 20, 1, 'all', None, 8)
    A.I(f's_mov_b32 {s(sTMP)}, {AH0}'); assist(A, 'he_as', sTMP, 20)
    addp(A, sMEM, sWS, MEMS_OFF); addp(A, sMT, sWS, MEMT_OFF); addp(A, sP, sWS, PS_OFF)
    addp(A, sX0, sX0, XI_SEG)
    A.I(f'''
    global_load_dword v20, {v(vX)}, {s(sX0,2)}
    global_load_dword v21, {v(vP)}, {s(sP,2)} sc1
    ''')
    addp(A, sX0, sX0, XI_SEG); addp(A, sP, sP, PS_SLOT)
    if 'nox2' not in OPT:
        A.I(f'global_load_dword v20, {v(vX)}, {s(sX0,2)}'); addp(A, sX0, sX0, XI_SEG)
    A.I(f'''
L_he_step:
    s_sleep {HSLEEP}
    global_load_dwordx4 {v(D,4)}, {v(vG0)}, {s(sMEM,2)} sc1
    s_mov_b64 exec, {s(sM48,2)}
    global_load_dwordx4 {v(D+4,4)}, {v(vG0)}, {s(sMEM,2)} offset:1024 sc1
    s_mov_b64 exec, -1
    ''')
    bud(A)
    A.I(f'''
    s_waitcnt vmcnt(0)
    v_max3_u32 v16, {v(D)}, {v(D+1)}, {v(D+2)}
    v_max3_u32 v16, v16, {v(D+3)}, {v(D+4)}
    v_max3_u32 v16, v16, {v(D+5)}, {v(D+6)}
    v_max_u32 v16, v16, {v(D+7)}
    v_cmp_eq_u32 vcc, {s(sSENT)}, v16
    s_cbranch_vccnz L_he_step
    s_add_u32 {s(sSTEP)}, {s(sSTEP)}, 1
    global_store_dwordx4 {v(vG0)}, {v(D,4)}, {s(sMT,2)} sc1
    s_mov_b64 exec, {s(sM48,2)}
    global_store_dwordx4 {v(vG0)}, {v(D+4,4)}, {s(sMT,2)} offset:1024 sc1
    s_mov_b64 exec, -1
    global_load_dword v21, {v(vP)}, {s(sP,2)} sc1
    {f'global_load_dword v22, {v(vM)}, {s(sMEM,2)} sc1' if 'mtouch' in OPT else ''}
    s_cmp_ge_u32 {s(sSTEP)}, {NSTEP - ('nox2' not in OPT)}
    s_cbranch_scc1 L_he_nox
    global_load_dword v20, {v(vX)}, {s(sX0,2)}
L_he_nox:
    ''')
    addp(A, sX0, sX0, XI_SEG); addp(A, sP, sP, PS_SLOT); addp(A, sMEM, sMEM, MEM_SLOT); addp(A, sMT, sMT, MEMT_SLOT)
    A.I(f'''
    s_cmp_le_u32 {s(sSTEP)}, {NSTEP - 1 - (tok.FIN and DIR)}
    s_cbranch_scc1 L_he_step
    ''')
    if tok.FIN:
        addp(A, sFL, sWS, FL_OFF + 63 * 256 + 64)
        A.I(f'''
        v_min_u32 v20, 22, v0
        v_lshlrev_b32 v20, 2, v20
L_he_f:
        s_sleep 2
        global_load_dword v21, v20, {s(sFL,2)} sc1
        ''')
        bud(A)
        A.I(f'''
        s_waitcnt vmcnt(0)
        v_cmp_eq_u32 vcc, 0, v21
        s_cbranch_vccnz L_he_f
        s_mul_i32 s40, {s(sW)}, 10240
        v_lshl_add_u32 v20, v0, 7, s40
        v_min_u32 v22, 15, v0
        v_lshl_add_u32 v22, v22, 7, s40
        s_mul_i32 s40, {s(sW)}, 14336
        v_min_u32 v23, 55, v0
        v_lshl_add_u32 v23, v23, 7, s40
        ''')
        addp(A, 40, sWS, PX_OFF + 63 * PX_SEG); addp(A, 42, 40, 8192)
        A.I('global_load_dword v21, v20, s[40:41] sc1\n global_load_dword v21, v22, s[42:43] sc1')
        addp(A, 40, sWS, BP_OFF); addp(A, 42, 40, 7168)
        A.I('global_load_dword v21, v23, s[40:41] sc1\n global_load_dword v21, v23, s[42:43] sc1')
        addp(A, 40, sWS, G_OFF + 63 * 128)
        A.I('v_mov_b32 v20, 0\n global_load_dword v21, v20, s[40:41] sc1\n s_waitcnt vmcnt(0)')
    A.I('s_endpgm')

def fetcher(A):
    vV, vF, vM = 1, 2, 3
    NL = PFL
    per = 64 // NL
    A.label('L_fetch')
    chain_common(A)
    xcc_publish(A, sROLE, 20)
    A.I(f'''
    v_lshrrev_b32 v4, {NL.bit_length()-1}, v0
    v_and_b32 v5, {NL-1}, v0
    s_lshl_b32 s40, {s(sW)}, 13
    v_lshl_add_u32 v5, v5, 7, s40
    v_and_b32 {v(vF)}, 15, v0
    v_lshlrev_b32 {v(vF)}, 2, {v(vF)}
    v_mov_b32 {v(vM)}, 4000
    ''')
    n = (14 + per - 1) // per
    for i in range(n):
        A.I(f'v_add_u32 v6, {per*i}, v4\n v_min_u32 v6, 13, v6\n v_lshl_add_u32 {v(8+i)}, v6, 15, v5')
    xcc_check(A, 'fe', 30)
    addp(A, sMEM, sWS, MEMS_OFF); addp(A, sVX, sWS, VX_OFF + PFA * 14 * VX_SC); addp(A, sFL, sWS, FL_OFF + PFA * 256)
    A.I(f'''
L_fe_step:
    global_load_dword v24, {v(vM)}, {s(sMEM,2)} sc1
    global_load_dword v25, {v(vF)}, {s(sFL,2)} sc1
    ''')
    bud(A)
    A.I(f'''
    s_waitcnt vmcnt(0)
    v_cmp_eq_u32 vcc, {s(sSENT)}, v24
    v_cmp_eq_u32 s[40:41], 0, v25
    s_or_b64 vcc, vcc, s[40:41]
    s_cbranch_vccz L_fe_go
    s_sleep 2
    s_branch L_fe_step
L_fe_go:
    ''')
    for i in range(n): A.I(f'global_load_dword {v(26)}, {v(8+i)}, {s(sVX,2)} sc1')
    addp(A, sMEM, sMEM, MEM_SLOT); addp(A, sVX, sVX, 14 * VX_SC); addp(A, sFL, sFL, 256)
    A.I(f'''
    s_add_u32 {s(sSTEP)}, {s(sSTEP)}, 1
    s_cmp_lt_u32 {s(sSTEP)}, {NSTEP - PFA}
    s_cbranch_scc1 L_fe_step
    s_endpgm
    ''')

def spare(A):
    A.label('L_spare')
    A.I(f's_mov_b32 {s(sTMP)}, {AH1}'); assist(A, 'sp_as', sTMP, 20)
    A.I('s_endpgm')
```

```python
from common import *
PRE = 1
MST = 'sc1'
TOUCH = 0
TNT = ''
LDA = 'nt'
LDNT = 'nt'
DB_INIT, DB_XCC = 192, 224
sW, sWS, sDB = 4, 8, 96
BUDGET = 1 << 20

def spin(A, tag, load, regs, sleep=2):
    A.I(f'''
    s_mov_b32 s42, 0
L_{tag}_rp:
    {load}
    s_add_u32 s42, s42, 1
    s_cmp_gt_u32 s42, {BUDGET}
    s_cbranch_scc1 L_bail
    s_waitcnt vmcnt(0)
    ''')
    r = regs[0]
    for k in regs[1:]: A.I(f'v_min_u32 {v(r)}, {v(r)}, {v(k)}')
    A.I(f'''
    v_cmp_eq_u32 vcc, 0, {v(r)}
    s_cbranch_vccz L_{tag}_rb
    s_sleep {sleep}
    s_branch L_{tag}_rp
L_{tag}_rb:
    ''')

def wait_tiles(A, tag, vt, mat, kind, sreg=None, sleep=2):
    A.I(f's_cmp_lg_u32 {s(sW)}, 0\n s_cbranch_scc1 L_{tag}_rb')
    addp(A, 40, sWS, PF_OFF + mat * 4096)
    if kind == 'head':
        A.I(f'''
        v_bfe_u32 {v(vt)}, v0, 3, 1
        v_lshlrev_b32 {v(vt)}, 11, {v(vt)}
        v_and_b32 {v(vt+1)}, 7, v0
        v_lshl_add_u32 {v(vt)}, {v(vt+1)}, 2, {v(vt)}
        s_lshl_b32 s43, {s(sreg)}, 7
        v_add_u32 {v(vt)}, s43, {v(vt)}
        ''')
        spin(A, tag, f'global_load_dword {v(vt+2)}, {v(vt)}, s[40:41] sc1', [vt + 2], sleep)
    else:
        A.I(f'v_lshrrev_b32 {v(vt)}, 1, v0\n v_and_b32 {v(vt+1)}, 1, v0\n v_lshlrev_b32 {v(vt+1)}, 4, {v(vt+1)}\n v_lshl_add_u32 {v(vt)}, {v(vt)}, 7, {v(vt+1)}')
        spin(A, tag, f'global_load_dwordx4 {v(vt+2,4)}, {v(vt)}, s[40:41] sc1', [vt + 2, vt + 3, vt + 4, vt + 5], sleep)
    A.I('s_barrier')

def gemm_jobs(A, sN):
    sU, sV, sO, sH, sJB, sB, sHF, sFO = 10, 12, 14, 16, 17, 18, 19, 32
    A.I(f's_load_dwordx8 s[24:31], s[0:1], {KA_WQ}\n s_mov_b32 {s(sFO)}, 0\n s_mov_b32 {s(sFO+1)}, 0')
    VA, VB, VR, VU, VV, vO, VL = 8, 12, 16, 20, 24, 28, 32
    UF, RING, ACC, OUT = 64, 128, 160, 176
    UBUF = 128 * 1024
    A.I(f'''
    v_lshlrev_b32 {v(vO)}, 4, v0
    v_lshrrev_b32 v3, 5, v0
    v_and_b32 v4, 31, v0
    s_lshl_b32 s20, {s(sW)}, 4
    s_lshl_b32 {s(sB)}, {s(sW)}, 13
    ''')
    for b in range(4):
        A.I(f'''
        v_add_u32 v5, {2*(b&1)}, v3
        v_lshlrev_b32 v6, 2, v5
        v_xor_b32 v6, v6, v4
        v_xor_b32 v6, {(b>>1)<<1}, v6
        v_add3_u32 v5, s20, v5, {8*(b>>1)}
        v_lshlrev_b32 v5, 13, v5
        v_lshl_add_u32 {v(VA+b)}, v6, 4, v5
        ''')
    A.I(f'''
    v_and_b32 v5, 3, v1
    v_lshrrev_b32 v6, 2, v1
    v_lshl_add_u32 v36, v6, 3, v5
    v_lshlrev_b32 v36, 9, v36
    v_lshlrev_b32 v5, 2, v5
    v_bfe_u32 v6, v1, 2, 1
    v_lshl_add_u32 v5, v6, 1, v5
    s_and_b32 s21, {s(sW)}, 1
    s_lshl_b32 s21, s21, 14
    s_add_u32 s21, s21, {UBUF}
    v_add_u32 v6, s21, v36
    ''')
    for b in range(4):
        A.I(f'''
        v_add_u32 v7, {4*b}, v2
        v_xor_b32 v7, v7, v5
        v_lshlrev_b32 {v(VL+b)}, 4, v7
        v_add_u32 {v(VU+b)}, {v(VL+b)}, v6
        ''')
    A.I('s_waitcnt lgkmcnt(0)')
    vm = Cnt(A, 'vmcnt', 63); lg = Cnt(A, 'lgkmcnt', 15)
    def setup(mat):
        r = sN + 1 - mat
        pu, pv = (24, 26) if mat == 0 else (28, 30)
        A.I(f'''
        s_mul_i32 {s(sH)}, {s(r)}, 4682
        s_lshr_b32 {s(sH)}, {s(sH)}, 16
        s_mul_i32 s20, {s(sH)}, 14
        s_sub_u32 {s(sJB)}, {s(r)}, s20
        s_cmp_ge_u32 {s(sJB)}, 7
        s_cselect_b32 {s(sHF)}, 1, 0
        s_mul_i32 s20, {s(sHF)}, 7
        s_sub_u32 {s(sJB)}, {s(sJB)}, s20
        s_lshl_b32 s20, {s(sHF)}, 11
        s_lshl_b32 s21, {s(sH)}, 7
        s_add_u32 s20, s20, s21
        s_lshl_b32 s21, {s(sJB)}, 2
        s_add_u32 {s(sFO+mat)}, s20, s21
        s_lshl_b32 s20, {s(sJB)}, 19
        s_lshl_b32 s21, {s(sH)}, 9
        s_add_u32 s20, s20, s21
        ''')
        addps(A, sU, pu, 20)
        A.I(f'''
        s_mul_i32 s20, {s(sH)}, {MF_HEAD}
        s_lshr_b32 s22, {s(sW)}, 1
        s_lshl_b32 s23, {s(sHF)}, 3
        s_add_u32 s22, s22, s23
        s_mul_i32 s22, s22, 14
        s_and_b32 s23, {s(sW)}, 1
        s_add_u32 s22, s22, s23
        s_lshl_b32 s23, {s(sJB)}, 1
        s_add_u32 s22, s22, s23
        s_lshl_b32 s22, s22, 11
        s_add_u32 s20, s20, s22
        ''')
        addp(A, sO, sWS, MF_OFF + mat * MF_MAT); addps(A, sO, sO, 20)
        if mat == 0:
            A.I(f's_lshl_b32 s22, {s(sHF)}, 21\n s_add_u32 s21, s21, s22')
            addps(A, sV, pv, 21)
            A.I(f'''
            s_lshr_b32 s21, {s(sW)}, 1
            s_lshl_b32 s21, s21, 5
            v_bfe_u32 v5, v1, 2, 1
            v_lshlrev_b32 v5, 4, v5
            v_lshrrev_b32 v6, 3, v1
            v_lshl_add_u32 v5, v6, 2, v5
            v_and_b32 v6, 3, v1
            v_add3_u32 v5, v5, v6, s21
            v_lshlrev_b32 v5, 9, v5
            s_and_b32 s21, {s(sW)}, 1
            s_lshl_b32 s21, s21, 5
            ''')
            for b in range(4): A.I(f'v_add_u32 {v(VR+b)}, {v(VL+b)}, v5')
            for b in range(4): A.I(f'v_xor_b32 {v(VB+b)}, s21, {v(VA+b)}\n v_xor_b32 {v(VB+b)}, {(b>>1)<<5}, {v(VB+b)}')
        else:
            A.I(f'''
            s_mul_i32 s21, {s(sH)}, {256*896}
            s_mul_i32 s22, {s(sW)}, {64*896}
            s_add_u32 s21, s21, s22
            s_lshl_b32 s22, {s(sHF)}, 9
            s_add_u32 s21, s21, s22
            ''')
            addps(A, sV, pv, 21)
            A.I(f'''
            v_lshrrev_b32 v5, 3, v0
            v_and_b32 v6, 7, v0
            v_bfe_u32 v7, v0, 4, 1
            v_lshlrev_b32 v7, 1, v7
            v_xor_b32 v6, v6, v7
            v_mul_u32_u24 v5, 896, v5
            v_lshl_add_u32 {v(VB)}, v6, 4, v5
            v_xor_b32 v6, 4, v6
            v_lshl_add_u32 {v(VB+1)}, v6, 4, v5
            v_add_u32 {v(VB+1)}, {8*896}, {v(VB+1)}
            v_bfe_u32 v5, v0, 2, 2
            v_lshl_add_u32 v6, v2, 3, v5
            v_lshlrev_b32 v6, 7, v6
            v_and_b32 v7, 1, v0
            v_lshl_add_u32 v6, v7, 3, v6
            v_and_b32 v5, 2, v5
            v_and_b32 v7, 1, v2
            v_lshl_add_u32 v5, v7, 2, v5
            v_bfe_u32 v7, v0, 1, 1
            v_xor_b32 v5, v5, v7
            s_lshr_b32 s21, {s(sW)}, 1
            s_lshl_b32 s21, s21, 2
            v_xor_b32 v5, s21, v5
            v_lshl_add_u32 {v(VR)}, v5, 4, v6
            v_xor_b32 v5, 2, v5
            v_lshl_add_u32 {v(VR+1)}, v5, 4, v6
            ''')
    pol = [LDNT]
    def dma(vaddr, base, lds, tag):
        A.I(f's_add_u32 m0, {s(sB)}, {lds}')
        A.I(f'global_load_lds_dwordx4 {v(vaddr)}, {s(base,2)} {pol[0]}'); vm.add(tag)
    def issueU():
        addp(A, 22, sU, 32768)
        for kk in range(8): dma(VA + (kk & 1) + 2 * (kk >> 2), 22 if kk & 2 else sU, UBUF + kk * 1024, 'U')
    def issueV(mat, cc):
        step = 64 * 8192 if mat == 0 else 128
        if cc == 3:
            A.I(f's_cmp_lg_u32 {s(sHF)}, 0\n s_cbranch_scc1 L_pj_nv{mat}'); q = list(vm.q)
        if mat == 0:
            addp(A, 22, sV, 32768)
            for kk in range(8): dma(VB + (kk & 1) + 2 * (kk >> 2), 22 if kk & 2 else sV, cc * 32768 + kk * 1024, ('V', cc))
        else:
            A.I(f's_mov_b64 s[22:23], {s(sV,2)}')
            for kk in range(8):
                dma(VB + (kk & 1), 22, cc * 32768 + kk * 1024, ('V', cc))
                if kk & 1 and kk < 7: addp(A, 22, 22, 16 * 896)
        if cc < 3: addp(A, sV, sV, step)
        else: vm.q = q; A.label(f'L_pj_nv{mat}')
    def compute(mat):
        vm.wait('U'); A.I('s_barrier')
        for tp in range(2):
            for kk in range(8):
                A.I(f'ds_read_b128 {v(UF + 32*tp + 4*kk, 4)}, {v(VU + (kk&3))} offset:{(kk>>2)*256 + tp*2048}')
            A.I('s_waitcnt lgkmcnt(0)')
        nreg = 4 if mat == 0 else 2
        for cc in range(4):
            for b in range(nreg): A.I(f'v_add_u32 {v(VV+b)}, {cc*32768}, {v(VR+b)}')
            if cc < 3: vm.wait(('V', cc))
            else: A.I('s_waitcnt vmcnt(6)'); vm.clear()
            A.I('s_barrier')
            if cc == 3: A.I(f's_cmp_lg_u32 {s(sHF)}, 0\n s_cbranch_scc1 L_pj_done{mat}')
            def rd(kk):
                r = RING + 8 * (kk % 3)
                for y in range(2):
                    if mat == 0:
                        A.I(f'ds_read_b128 {v(r+4*y,4)}, {v(VV+(kk&3))} offset:{(kk>>2)*256 + y*4096}'); lg.add((kk, y))
                    else:
                        for hi in range(2):
                            A.I(f'ds_read_b64_tr_b16 {v(r+4*y+2*hi,2)}, {v(VV+y)} offset:{kk*4096 + hi*512}'); lg.add((kk, y))
            rd(0); rd(1)
            for kk in range(8):
                r = RING + 8 * (kk % 3)
                for y in range(2):
                    lg.wait((kk, y))
                    for tp in range(2):
                        acc = v(ACC + 8*tp + 4*y, 4)
                        A.I(f'v_mfma_f32_16x16x32_bf16 {acc}, {v(UF+32*tp+4*kk,4)}, {v(r+4*y,4)}, {acc if kk else 0}')
                        if y == 0 and tp == 0 and kk + 2 < 8: rd(kk + 2)
            o = OUT + 8 * (cc & 1)
            if mat == 0:
                for k in range(16): A.I(f'v_mul_f32 {v(ACC+k)}, {f32(CSC)}, {v(ACC+k)}')
            for tp in range(2):
                for k in range(2):
                    for y in range(2):
                        A.I(f'v_cvt_pk_bf16_f32 {v(o+4*tp+2*k+y)}, {v(ACC+8*tp+4*y+2*k)}, {v(ACC+8*tp+4*y+2*k+1)}')
            A.I(f'global_store_dwordx4 {v(vO)}, {v(o,4)}, {s(sO,2)} {MST}'); vm.add('st')
            A.I(f'global_store_dwordx4 {v(vO)}, {v(o+4,4)}, {s(sO,2)} offset:1024 {MST}'); vm.add('st')
            addp(A, sO, sO, 2 * 14 * 2048)
        A.label(f'L_pj_done{mat}')
    def flag(mat, tag):
        A.I(f'''
        s_barrier
        s_cmp_lg_u32 {s(sW)}, 0
        s_cbranch_scc1 L_pj_nf{tag}
        v_mov_b32 v30, {s(sFO+mat)}
        v_mov_b32 v31, 1
        ''')
        addp(A, 20, sWS, PF_OFF + mat * 4096)
        A.I('global_store_dword v30, v31, s[20:21] sc1')
        A.label(f'L_pj_nf{tag}')
        tl(A, 0, 2 - mat, 200)
    def initwait(tag):
        A.I('v_mov_b32 v30, 0')
        spin(A, tag, f'global_load_dword v31, v30, {s(sDB,2)} offset:{DB_INIT} sc1', [31])
    A.I(f'''
    s_cmp_lt_i32 {s(sN)}, 0
    s_cbranch_scc1 L_pj_onlya
    s_lshl_b32 s22, {s(sN)}, 11
    s_lshl_b32 s23, {s(sW)}, 9
    s_add_u32 s22, s22, s23
    v_lshl_add_u32 v30, v0, 3, s22
    v_mov_b32 v6, {SENT}
    v_mov_b32 v7, {SENT}
    ''')
    addp(A, 20, sWS, MEMT_OFF)
    A.I('global_store_dwordx2 v30, v[6:7], s[20:21] sc1')
    setup(1); issueU()
    for cc in range(3): issueV(1, cc)
    A.I(f'v_mov_b32 v38, 0\n global_load_dword v37, v38, {s(sDB,2)} offset:{DB_INIT} sc1'); vm.add('i')
    issueV(1, 3)
    if TOUCH:
        A.I(f'''
        s_lshl_b32 s20, {s(sJB)}, 6
        s_lshl_b32 s21, {s(sW)}, 4
        s_add_u32 s20, s20, s21
        v_lshrrev_b32 v39, 2, v0
        v_and_b32 v40, 3, v0
        v_lshlrev_b32 v40, 7, v40
        s_lshl_b32 s22, {s(sH)}, 9
        v_add_u32 v40, s22, v40
        v_add_u32 v41, s20, v39
        v_lshl_add_u32 v41, v41, 13, v40
        global_load_dword v42, v41, s[24:25] {TNT}
        s_mul_i32 s20, {s(sJB)}, 37
        s_mul_i32 s21, {s(sW)}, 10
        s_add_u32 s20, s20, s21
        s_lshl_b32 s21, {s(sHF)}, 8
        s_add_u32 s20, s20, s21
        v_min_u32 v39, 9, v39
        v_add_u32 v41, s20, v39
        v_min_u32 v41, 447, v41
        v_lshl_add_u32 v41, v41, 13, v40
        global_load_dword v42, v41, s[26:27] {TNT}
        ''')
        vm.add('t'); vm.add('t')
    compute(1)
    A.I('v_cmp_eq_u32 vcc, 0, v37\n s_cbranch_vccz L_pj_iok')
    initwait('pj_i1')
    A.I(f'''
L_pj_iok:
    s_cmp_ge_i32 {s(sN+1)}, 0
    s_cbranch_scc1 L_pj_both
    s_waitcnt vmcnt(0)
    ''')
    flag(1, 'x')
    A.I('s_branch L_pj_end')
    A.label('L_pj_onlya')
    initwait('pj_i0')
    A.I(f's_cmp_lt_i32 {s(sN+1)}, 0\n s_cbranch_scc1 L_pj_end')
    A.label('L_pj_both')
    vm.clear(); pol[0] = LDA
    setup(0)
    if PRE >= 1: issueU()
    for cc in range(PRE - 1): issueV(0, cc)
    A.I(f's_cmp_lt_i32 {s(sN)}, 0\n s_cbranch_scc1 L_pj_nob\n s_waitcnt vmcnt({8*PRE})')
    flag(1, 'y')
    A.label('L_pj_nob')
    if PRE < 1: issueU()
    for cc in range(max(PRE - 1, 0), 4): issueV(0, cc)
    compute(0)
    A.I('s_waitcnt vmcnt(0)')
    flag(0, 'z')
    A.label('L_pj_end')

def orphan(A, dst, o, t):
    A.I(f'''
    s_lshr_b32 {s(t)}, {s(o)}, 2
    s_lshl_b32 {s(t)}, {s(t)}, 3
    s_and_b32 {s(t+1)}, {s(o)}, 3
    s_add_u32 {s(t)}, {s(t)}, {s(t+1)}
    s_mul_i32 {s(t+1)}, {s(t)}, 3121
    s_lshr_b32 {s(t+1)}, {s(t+1)}, 16
    s_mul_i32 {s(t+1)}, {s(t+1)}, 11
    s_add_u32 {s(t)}, {s(t)}, {s(t+1)}
    s_add_u32 {s(dst)}, {s(t)}, 11
    ''')

def init_job(A):
    A.I(f'''
    s_load_dwordx2 s[34:35], s[0:1], {KA_MEM0}
    v_mov_b32 v8, 0
    v_mov_b32 v9, 0
    v_mov_b32 v10, 0
    v_mov_b32 v11, 0
    s_lshl_b32 s22, {s(sW)}, 12
    v_lshl_add_u32 v6, v0, 4, s22
    ''')
    addp(A, 22, sWS, FL_OFF)
    for k in range(4): A.I(f'global_store_dwordx4 v6, v[8:11], s[22:23] offset:{k*1024} sc1')
    A.I(f's_lshl_b32 s20, {s(sW)}, 14\n v_lshl_add_u32 v7, v0, 7, s20')
    addp(A, 22, sWS, F2_OFF); addp(A, 20, 22, 8192)
    A.I('global_store_dwordx4 v7, v[8:11], s[22:23] sc1\n global_store_dwordx4 v7, v[8:11], s[20:21] sc1')
    A.I(f'''
    s_lshl_b32 s22, {s(sW)}, 11
    v_lshrrev_b32 v6, 2, v0
    v_lshl_add_u32 v6, v6, 7, s22
    v_and_b32 v9, 3, v0
    v_lshl_add_u32 v6, v9, 3, v6
    v_cmp_eq_u32 vcc, 3, v9
    v_cndmask_b32 v9, 0, 1, vcc
    ''')
    addp(A, 22, sWS, PF_OFF)
    A.I(f'''
    global_store_dwordx2 v6, v[8:9], s[22:23] sc1
    s_waitcnt vmcnt(0)
    s_barrier
    v_mov_b32 v6, 0
    v_mov_b32 v7, 1
    global_store_dword v6, v7, {s(sDB,2)} offset:{DB_INIT} sc1
    ''')
    tl(A, 0, 2, 200)
    addp(A, 22, sWS, MEMS_OFF)
    A.I(f's_mul_i32 s30, {s(sW)}, 112\n s_waitcnt lgkmcnt(0)')
    for k in range(2):
        A.I(f'''
        v_min_u32 v6, {63 if k == 0 else 47}, v0
        v_add3_u32 v6, v6, s30, {64*k}
        v_and_b32 v7, 7, v6
        v_mul_u32_u24 v7, 896, v7
        v_lshrrev_b32 v10, 5, v6
        v_lshl_add_u32 v7, v10, 6, v7
        v_bfe_u32 v10, v6, 3, 1
        v_lshl_add_u32 v7, v10, 5, v7
        v_bfe_u32 v10, v6, 4, 1
        v_lshl_add_u32 v7, v10, 3, v7
        global_load_dwordx2 v[12:13], v7, s[34:35]
        global_load_dwordx2 v[14:15], v7, s[34:35] offset:16
        v_lshlrev_b32 v6, 4, v6
        s_waitcnt vmcnt(0)
        ''')
        for r in range(4): A.I(f'v_cmp_eq_u32 vcc, {SENT}, {v(12+r)}\n v_cndmask_b32 {v(12+r)}, {v(12+r)}, -1, vcc')
        A.I('global_store_dwordx4 v6, v[12:15], s[22:23] sc1')
```

```python
from common import *
from prep import wait_tiles
BUDGET = 1 << 20
sH, sW, sSEG, sBUD, sSENT = 3, 4, 5, 6, 7
sWS = 8
sA, sB_, sC_, sD, sE, sF = 10, 12, 14, 16, 18, 20
sREP, sLB, sPAR = 22, 23, 24
sM0, sM1 = 26, 28
T0 = 40

def wave_setup(A):
    A.I(f'''
    v_lshlrev_b32 v3, 4, v0
    s_mov_b32 {s(sBUD)}, 0
    s_mov_b32 {s(sSENT)}, {SENT}
    ''')

def budget(A):
    A.I(f's_add_u32 {s(sBUD)}, {s(sBUD)}, 1\n s_cmp_gt_u32 {s(sBUD)}, {BUDGET}\n s_cbranch_scc1 L_bail')

GATE = 0
W62 = 0
FIN = 1
OST = 'nt'
TS = 2
LIGHT = 1
LINE = 4000
GT, GF, GO = 1, 4, 8
def gate(A, tag, slot):
    wait_tiles(A, tag + 'a', 8, 1, 'all', None, 8)
    if not GATE: return
    addp(A, 40, sWS, MEMT_OFF + slot * MEMT_SLOT)
    A.I(f'''
    v_mov_b32 v8, 0
L_{tag}_g:
    s_sleep 16
    global_load_dword v9, v8, s[40:41] sc1
    ''')
    budget(A)
    A.I(f's_waitcnt vmcnt(0)\n v_cmp_eq_u32 vcc, {s(sSENT)}, v9\n s_cbranch_vccnz L_{tag}_g')

def p0p3(A, d0, d3):
    A.I(f'''
    s_and_b32 s46, {s(sW)}, 1
    s_lshr_b32 {s(d3)}, {s(sW)}, 1
    s_mul_i32 {s(d3)}, {s(d3)}, 7
    s_lshl_b32 {s(d0)}, s46, 2
    s_add_u32 {s(d0)}, {s(d0)}, {s(d3)}
    s_add_u32 {s(d3)}, {s(d3)}, 3
    s_sub_u32 {s(sPAR)}, 0, s46
    s_mov_b32 {s(sPAR+1)}, {s(sPAR)}
    ''')

WV, WS_ = 176, 120
def wtile(t, j):
    if t == 6: return v(WS_ + 4 * j, 4)
    k = (t * 14 + j) * 4
    return a_(k, 4) if k < 256 else v(WV + k - 256, 4)
def wmov(t, j, r):
    k = (t * 14 + j) * 4 + r
    return ('v_accvgpr_write_b32', a_(k)) if k < 256 else ('v_mov_b32', v(WV + k - 256))

def load_head(A, mat):
    p0p3(A, 40, 41)
    A.I(f'''
    s_mul_i32 s42, {s(sH)}, {MF_HEAD}
    s_mul_i32 s43, s40, {14*2048}
    s_add_u32 s43, s43, s42
    s_mul_i32 s44, s41, {14*2048}
    s_add_u32 s44, s44, s42
    ''')
    addp(A, sA, sWS, MF_OFF + mat * MF_MAT); addps(A, sB_, sA, 44); addps(A, sA, sA, 43)
    vm = Cnt(A, 'vmcnt', 63)
    ST, N = 32, 11
    blocks = [(L, j) for L in range(4) for j in range(14)]
    def issue(i):
        L, j = blocks[i]; r = ST + 8 * (i % N); base = sA if L < 3 else sB_
        o = (j & 1) * 2048
        A.I(f'global_load_dwordx4 {v(r,4)}, v3, {s(base,2)} offset:{o} sc1'); vm.add(i)
        A.I(f'global_load_dwordx4 {v(r+4,4)}, v3, {s(base,2)} offset:{o+1024} sc1'); vm.add(i)
        if j & 1: addp(A, base, base, 4096)
    for i in range(N): issue(i)
    for i, (L, j) in enumerate(blocks):
        vm.wait(i); r = ST + 8 * (i % N)
        if L < 3:
            for k in range(8):
                op, d = wmov(2 * L + (k & 1), j, k >> 1); A.I(f'{op} {d}, {v(r+k)}')
        else:
            for k in range(4): A.I(f'v_cndmask_b32 {v(WS_+4*j+k)}, {v(r+2*k)}, {v(r+2*k+1)}, {s(sPAR,2)}')
        if i + N < len(blocks): issue(i + N)

sXO = 80
def xdma(A, ptr, vXS):
    for k in range(7):
        addps(A, 40, ptr, sXO + k)
        A.I(f's_add_u32 m0, {s(sLB)}, {k*1024}')
        A.I(f'global_load_lds_dwordx4 {v(vXS)}, s[40:41]')
    addp(A, ptr, ptr, 4 * XI_SEG)

def xsetup(A, ptr, vXS, vXR, t):
    A.I(f'''
    s_mul_i32 {s(sLB)}, {s(sW)}, 7168
    s_mul_i32 s40, {s(sREP)}, {XI_SEG}
    s_mov_b32 {s(sSEG)}, {s(sREP)}
    v_lshrrev_b32 {v(t)}, 2, v0
    v_mul_u32_u24 {v(t)}, 896, {v(t)}
    v_lshrrev_b32 {v(t+1)}, 5, v0
    v_lshlrev_b32 {v(t+1)}, 1, {v(t+1)}
    v_and_b32 {v(vXS)}, 3, v0
    v_xor_b32 {v(t+1)}, {v(t+1)}, {v(vXS)}
    v_lshl_add_u32 {v(vXS)}, {v(t+1)}, 4, {v(t)}
    v_lshrrev_b32 {v(t)}, 3, v1
    v_lshlrev_b32 {v(t)}, 1, {v(t)}
    v_xor_b32 {v(t)}, {v(t)}, v2
    v_lshl_add_u32 {v(t)}, v1, 2, {v(t)}
    v_lshlrev_b32 {v(vXR)}, 4, {v(t)}
    ''')
    addps(A, ptr, ptr, 40)
    for k in range(7):
        A.I(f'''
        s_mul_i32 s40, {s(sW)}, 7
        s_add_u32 s40, s40, {k}
        s_and_b32 s41, s40, 1
        s_mul_i32 s41, s41, 14336
        s_lshr_b32 s40, s40, 1
        s_lshl_b32 s40, s40, 6
        s_add_u32 {s(sXO+k)}, s40, s41
        ''')

def gemm(A, ntile, wt, acc, ring, vX, offs, wfirst, extra=None):
    lg = Cnt(A, 'lgkmcnt', 15)
    def rd(j, tt):
        A.I(f'ds_read_b128 {v(ring + 8*(j%3) + 4*tt, 4)}, {v(vX[tt])} offset:{j*2048 + offs[tt]}'); lg.add((j, tt))
    for j in range(2): rd(j, 0); rd(j, 1)
    n = 0
    for j in range(14):
        for tt in range(2):
            lg.wait((j, tt))
            x = v(ring + 8*(j%3) + 4*tt, 4)
            for t in range(ntile):
                d = v(acc + 8*t + 4*tt, 4)
                a, b = (wt(t, j), x) if wfirst else (x, wt(t, j))
                A.I(f'v_mfma_f32_16x16x32_bf16 {d}, {a}, {b}, {d if j else 0}')
                if t == 0 and j + 2 < 14: rd(j + 2, tt)
                if extra: extra(n)
                n += 1

def flag_store(A, ptr, vOne, vZero):
    flag_store.n += 1
    A.I(f's_cmp_lg_u32 {s(sW)}, 0\n s_cbranch_scc1 L_fs{flag_store.n}\n global_store_dword {v(vZero)}, {v(vOne)}, {s(ptr,2)} sc1\nL_fs{flag_store.n}:')
flag_store.n = 0

def mem_fetch(A, tag, ptr, vG, D, lds, light):
    if light:
        A.I(f'''
        s_cmp_lg_u32 {s(sW)}, 0
        s_cbranch_scc1 L_{tag}_mh
        v_mov_b32 {v(D)}, {LINE}
L_{tag}_ml:
        global_load_dword {v(D+1)}, {v(D)}, {s(ptr,2)} sc1
        ''')
        budget(A)
        A.I(f'''
        s_waitcnt vmcnt(0)
        v_cmp_eq_u32 vcc, {s(sSENT)}, {v(D+1)}
        s_cbranch_vccz L_{tag}_mh
        s_sleep {TS}
        s_branch L_{tag}_ml
L_{tag}_mh:
        s_barrier
        ''')
    A.I(f'''
L_{tag}_mf:
    global_load_dwordx4 {v(D,4)}, {v(vG)}, {s(ptr,2)} sc1
    global_load_dwordx4 {v(D+4,4)}, {v(vG+1)}, {s(ptr,2)} sc1
    ''')
    budget(A)
    A.I(f'''
    s_waitcnt vmcnt(0)
    v_max3_u32 {v(D+8)}, {v(D)}, {v(D+1)}, {v(D+2)}
    v_max3_u32 {v(D+8)}, {v(D+8)}, {v(D+3)}, {v(D+4)}
    v_max3_u32 {v(D+8)}, {v(D+8)}, {v(D+5)}, {v(D+6)}
    v_max_u32 {v(D+8)}, {v(D+8)}, {v(D+7)}
    v_cmp_eq_u32 vcc, {s(sSENT)}, {v(D+8)}
    s_cbranch_vccnz L_{tag}_mf
    ds_write_b128 {v(vG)}, {v(D,4)} offset:{lds}
    ds_write_b128 {v(vG+1)}, {v(D+4,4)} offset:{lds}
    s_waitcnt lgkmcnt(0)
    s_barrier
    ''')

def mem_fetch_setup(A, vG):
    A.I(f'''
    s_mul_i32 s40, {s(sW)}, 1792
    v_add_u32 {v(vG)}, s40, v3
    v_min_u32 {v(vG+1)}, 47, v0
    v_lshlrev_b32 {v(vG+1)}, 4, {v(vG+1)}
    v_add3_u32 {v(vG+1)}, {v(vG+1)}, s40, s40
    v_subrev_u32 {v(vG+1)}, s40, {v(vG+1)}
    v_add_u32 {v(vG+1)}, 1024, {v(vG+1)}
    ''')

def tokv(A):
    ACC, RING, O = 64, 32, 8
    vX, vXc, vOne, vZero, vG, vMA, vWT, vXS = 4, 5, 6, 7, 56, 58, 59, 60
    L_MEM = 57344
    sX, sVO, sVS, sFL, sMT = sF, sB_, sC_, sD, sE
    A.label('L_tokv')
    wave_setup(A)
    A.I(f's_load_dwordx2 {s(sX,2)}, s[0:1], {KA_X}\n s_waitcnt lgkmcnt(0)')
    xsetup(A, sX, vX, vXc, 8); xdma(A, sX, vX)
    wait_tiles(A, 'tv', 8, 1, 'head', sH, 1)
    load_head(A, 1)
    A.I(f'v_mov_b32 {v(vXS)}, {v(vX)}')
    tl(A, 1, 1, 8)
    p0p3(A, 40, 41)
    A.I(f'''
    s_mul_i32 s42, {s(sREP)}, {14*VX_SC}
    s_lshl_b32 s43, {s(sH)}, 11
    s_add_u32 s42, s42, s43
    s_lshl_b32 s43, s40, 15
    s_add_u32 s43, s43, s42
    s_lshl_b32 s44, s41, 15
    s_add_u32 s44, s44, s42
    s_and_b32 s45, {s(sW)}, 1
    s_lshl_b32 s45, s45, 10
    s_add_u32 s44, s44, s45
    v_lshrrev_b32 v8, 3, v1
    v_lshlrev_b32 v8, 10, v8
    v_and_b32 v9, 7, v0
    v_lshl_add_u32 v8, v9, 6, v8
    v_lshl_add_u32 {v(vX)}, v2, 4, v8
    v_xor_b32 v9, 2, v2
    v_lshl_add_u32 {v(vXc)}, v9, 4, v8
    v_mov_b32 {v(vOne)}, 0x01010101
    v_mov_b32 {v(vZero)}, 0
    ''')
    addp(A, sVO, sWS, VX_OFF); addps(A, sVS, sVO, 44); addps(A, sVO, sVO, 43)
    A.I(f's_lshl_b32 s42, {s(sREP)}, 8\n s_lshl_b32 s43, {s(sH)}, 2\n s_add_u32 s42, s42, s43')
    addp(A, sFL, sWS, FL_OFF); addps(A, sFL, sFL, 42)
    A.label('L_tv_item')
    A.I(f'''
    s_waitcnt vmcnt(0)
    s_barrier
    s_cmp_lt_u32 {s(sSEG)}, 4
    s_cbranch_scc1 L_tv_nofl
    ''')
    flag_store(A, sFL, vOne, vZero); addp(A, sFL, sFL, 1024)
    A.label('L_tv_nofl')
    A.I(f'''
    s_cmp_ge_u32 {s(sSEG)}, 64
    s_cbranch_scc1 L_tv_w
    s_xor_b32 {s(sLB)}, {s(sLB)}, 0x8000
    s_cmp_ge_u32 {s(sSEG)}, 60
    s_cbranch_scc1 L_tv_nox
    ''')
    xdma(A, sX, vXS)
    A.label('L_tv_nox')
    gemm(A, 7, wtile, ACC, RING, [vX, vXc], [0, 512], False)
    A.I(f'v_xor_b32 {v(vXc)}, 0x8000, {v(vXc)}\n v_xor_b32 {v(vX)}, 0x8000, {v(vX)}')
    for t in range(7):
        o = O + 4 * (t % 4)
        for k in range(2):
            for tt in range(2):
                A.I(f'v_cvt_pk_bf16_f32 {v(o+2*k+tt)}, {v(ACC+8*t+4*tt+2*k)}, {v(ACC+8*t+4*tt+2*k+1)}')
        if t < 6:
            if t == 2: addp(A, 40, sVO, 32768)
            if t == 4: addp(A, 40, 40, 32768)
            A.I(f'global_store_dwordx4 v3, {v(o,4)}, {s(sVO if t < 2 else 40,2)} offset:{(t&1)*1024} sc1')
        else: A.I(f'global_store_dwordx4 v3, {v(o,4)}, {s(sVS,2)} sc1')
    addp(A, sVO, sVO, 4 * 14 * VX_SC); addp(A, sVS, sVS, 4 * 14 * VX_SC)
    A.I(f's_add_u32 {s(sSEG)}, {s(sSEG)}, 4\n s_branch L_tv_item')
    A.label('L_tv_w')
    tl(A, 1, 3, 8)
    wait_tiles(A, 'tw', 8, 1, 'all')
    mem_fetch_setup(A, vG)
    p0p3(A, 40, 41)
    A.I(f'''
    s_mov_b32 {s(sSEG)}, {s(sREP)}
    v_lshrrev_b32 v8, 1, v2
    v_lshlrev_b32 v8, 7, v8
    v_and_b32 v9, 7, v0
    v_lshl_add_u32 v8, v9, 4, v8
    v_and_b32 v9, 1, v2
    v_lshl_add_u32 v8, v9, 3, v8
    v_add_u32 {v(vMA)}, {L_MEM}, v8
    s_and_b32 s42, {s(sH)}, 3
    s_lshl_b32 s42, s42, 8
    v_lshl_add_u32 v8, v1, 4, s42
    v_lshl_add_u32 {v(vWT)}, v9, 3, v8
    s_mul_i32 s42, {s(sREP)}, {WT_SEG}
    s_lshr_b32 s43, {s(sH)}, 2
    s_mul_i32 s43, s43, {28*1024}
    s_add_u32 s42, s42, s43
    s_lshl_b32 s43, s40, 11
    s_add_u32 s43, s43, s42
    s_lshl_b32 s44, s41, 11
    s_add_u32 s44, s44, s42
    s_and_b32 s45, {s(sW)}, 1
    s_lshl_b32 s45, s45, 10
    s_add_u32 s44, s44, s45
    ''')
    addp(A, sVO, sWS, WT_OFF); addps(A, sVS, sVO, 44); addps(A, sVO, sVO, 43)
    A.I(f's_lshl_b32 s42, {s(sREP)}, 10\n s_lshr_b32 s43, {s(sH)}, 2\n s_lshl_b32 s43, s43, 7\n s_add_u32 s42, s42, s43\n s_and_b32 s43, {s(sH)}, 3\n s_lshl_b32 s43, s43, 2\n s_add_u32 s42, s42, s43')
    addp(A, sFL, sWS, F2_OFF + 512); addps(A, sFL, sFL, 42)
    A.I(f's_mul_i32 s42, {s(sREP)}, {MEMT_SLOT}')
    addp(A, sMT, sWS, MEMT_OFF); addps(A, sMT, sMT, 42)
    A.label('L_tw_item')
    mem_fetch(A, 'tw', sMT, vG, 8, L_MEM, LIGHT)
    tl(A, 1, 5, 8)
    lg = Cnt(A, 'lgkmcnt', 15)
    for j in range(14):
        A.I(f'ds_read2_b64 {v(ACC+4*j,4)}, {v(vMA)} offset0:{(j%3)*64} offset1:{(j%3)*64+32}'); lg.add(j)
        if j % 3 == 2: A.I(f'v_add_u32 {v(vMA)}, 1536, {v(vMA)}')
    A.I(f'v_subrev_u32 {v(vMA)}, {4*1536}, {v(vMA)}')
    addp(A, 40, sVO, 4096)
    W4 = FIN and W62
    if W4: A.I(f's_cmp_eq_u32 {s(sSEG)}, 62\n s_cbranch_scc1 L_tw_last')
    def wout(t):
        o = O + 2 * t
        for k in range(2): A.I(f'v_cvt_pk_bf16_f32 {v(o+k)}, {v(RING+4*(t&1)+2*k)}, {v(RING+4*(t&1)+2*k+1)}')
        A.I('s_mov_b32 exec_hi, 0')
        if t < 6: A.I(f'global_store_dwordx2 {v(vWT)}, {v(o,2)}, {s(sVO if t < 4 else 40,2)} offset:{(t%4)*1024} sc1')
        else: A.I(f'global_store_dwordx2 {v(vWT)}, {v(o,2)}, {s(sVS,2)} sc1')
        A.I('s_mov_b64 exec, -1')
    for t in range(7):
        d = v(RING + 4*(t&1), 4)
        for j in range(14):
            lg.wait(j)
            A.I(f'v_mfma_f32_16x16x32_bf16 {d}, {v(ACC+4*j,4)}, {wtile(t,j)}, {d if j else 0}')
            if t and j == 2: wout(t - 1)
    wout(6)
    A.I('s_mov_b64 exec, -1'); tl(A, 1, 6, 24); A.I('s_waitcnt vmcnt(0)\n s_barrier')
    flag_store(A, sFL, vOne, vZero)
    addp(A, sFL, sFL, 4096); addp(A, sMT, sMT, 4 * MEMT_SLOT); addp(A, sVO, sVO, 4 * WT_SEG); addp(A, sVS, sVS, 4 * WT_SEG)
    A.I(f's_add_u32 {s(sSEG)}, {s(sSEG)}, 4\n s_cmp_lt_u32 {s(sSEG)}, {63 if FIN else 64}\n s_cbranch_scc1 L_tw_item')
    if not W4:
        tl(A, 1, 2, 8); A.I('s_endpgm'); return
    A.I(f's_sub_u32 s42, {s(sSEG)}, 62\n s_mov_b32 {s(sSEG)}, 62')
    for ptr, step in ((sFL, 1024), (sMT, MEMT_SLOT), (sVO, WT_SEG), (sVS, WT_SEG)):
        A.I(f's_mul_i32 s43, s42, {step}\n s_sub_u32 {s(ptr)}, {s(ptr)}, s43\n s_subb_u32 {s(ptr+1)}, {s(ptr+1)}, 0')
    A.I('s_branch L_tw_item')
    A.label('L_tw_last')
    A.I('s_waitcnt lgkmcnt(0)')
    for t in range(7):
        A.I(f's_cmp_lg_u32 {s(sREP)}, {t & 3}\n s_cbranch_scc1 L_tw_l{t}')
        d = v(RING + 4*(t&1), 4)
        for j in range(14): A.I(f'v_mfma_f32_16x16x32_bf16 {d}, {v(ACC+4*j,4)}, {wtile(t,j)}, {d if j else 0}')
        wout(t)
        A.label(f'L_tw_l{t}')
    A.I(f'''
    v_mov_b32 v8, {s(sREP)}
    s_waitcnt vmcnt(0)
    s_barrier
    s_cmp_lg_u32 {s(sW)}, 0
    s_cbranch_scc1 L_bail
    global_store_byte v8, {v(vOne)}, {s(sFL,2)} sc1
    ''')
    tl(A, 1, 2, 8); A.I('s_endpgm')

class TT:
    TB, MB, SA = 8, 36, 96
    vG, vMB0, vMB1, vSW, vSR0, vSR1, vPX = 56, 58, 59, 60, 61, 62, 63
    L_MEM, L_SB = 61440, 61440 + 8192
    SBW = 32 * 176
    sK, sM5, sMK0 = 48, 32, 34

def tt_setup(A):
    vG, vMB0, vMB1, vSW, vSR0, vSR1, vPX = TT.vG, TT.vMB0, TT.vMB1, TT.vSW, TT.vSR0, TT.vSR1, TT.vPX
    L_MEM, L_SB, SBW, sK, sM5, sMK0 = TT.L_MEM, TT.L_SB, TT.SBW, TT.sK, TT.sM5, TT.sMK0
    mem_fetch_setup(A, vG)
    p0p3(A, 40, 41)
    A.I(f'''
    s_and_b32 s45, {s(sW)}, 1
    s_lshl_b32 s45, s45, 3
    v_and_b32 v9, 7, v0
    v_lshlrev_b32 v8, 7, v2
    v_lshl_add_u32 v8, v9, 4, v8
    s_lshl_b32 s42, s40, 9
    s_add_u32 s42, s42, {L_MEM}
    v_add_u32 {v(vMB0)}, s42, v8
    s_lshl_b32 s42, s41, 9
    s_add_u32 s42, s42, s45
    s_add_u32 s42, s42, {L_MEM}
    v_add_u32 {v(vMB1)}, s42, v8
    s_mul_i32 s42, {s(sW)}, {SBW}
    s_add_u32 s42, s42, {L_SB}
    v_mul_u32_u24 v8, 176, v1
    v_lshl_add_u32 v8, v2, 4, v8
    v_add_u32 {v(vSW)}, s42, v8
    v_lshrrev_b32 v10, 3, v0
    v_lshl_add_u32 v10, {s(sW)}, 3, v10
    v_min_u32 v11, 4, v9
    v_subrev_u32 v11, 1, v11
    v_lshrrev_b32 v12, 1, v11
    v_and_b32 v13, 1, v11
    v_lshlrev_b32 v13, 2, v13
    v_lshl_add_u32 v13, v12, 4, v13
    v_lshlrev_b32 v14, 2, v13
    v_add_u32 v14, 32, v14
    v_add_u32 v15, 32, v14
    v_cmp_eq_u32 {s(sMK0,2)}, 0, v9
    v_cndmask_b32 v14, v14, 0, {s(sMK0,2)}
    v_cndmask_b32 v15, v15, 16, {s(sMK0,2)}
    v_mul_u32_u24 v8, 176, v10
    v_add_u32 v8, {L_SB}, v8
    v_add_u32 {v(vSR0)}, v8, v14
    v_add_u32 {v(vSR1)}, v8, v15
    v_cmp_gt_u32 {s(sM5,2)}, 5, v9
    ''')
    for i in range(8):
        A.I(f'''
        v_add_u32 v8, {8*(i>>2) + (i&3)}, v13
        v_cmp_le_u32 vcc, v8, v10
        s_or_b64 vcc, vcc, {s(sMK0,2)}
        s_and_b64 {s(sK+2*i,2)}, vcc, {s(sM5,2)}
        ''')
    A.I(f'''
    s_and_b32 s42, {s(sH)}, 3
    v_mov_b32 v8, s42
    v_cndmask_b32 v12, v11, v8, {s(sMK0,2)}
    v_cndmask_b32 v8, v8, 4, {s(sMK0,2)}
    v_lshrrev_b32 v14, 4, v10
    v_lshl_add_u32 v8, v8, 1, v14
    v_lshlrev_b32 v8, 10, v8
    v_and_b32 v14, 15, v10
    v_lshl_add_u32 v14, v12, 4, v14
    v_lshl_add_u32 v14, v14, 4, v8
    s_lshr_b32 s43, {s(sH)}, 2
    s_mul_i32 s43, s43, 10240
    v_add_u32 {v(vPX)}, s43, v14
    ''')

def tt_smm(A, a4, a2, tt, d):
    TB = TT.TB
    for L in range(3): A.I(f'v_mfma_f32_16x16x32_bf16 {v(d,4)}, {v(a4(L),4)}, {v(TB+8*L+4*tt,4)}, {v(d,4) if L else 0}')
    A.I(f'v_mfma_f32_16x16x16_bf16 {v(d,4)}, {v(a2,2)}, {v(TB+24+2*tt,2)}, {v(d,4)}')

def tt_finish(A, tag, sMT, light):
    MB, SA, vSW, vSR0, vSR1, SBW, sK, sMK0 = TT.MB, TT.SA, TT.vSW, TT.vSR0, TT.vSR1, TT.SBW, TT.sK, TT.sMK0
    A.I('s_waitcnt lgkmcnt(0)'); A.flush()
    A.I(f'''
    ds_write_b128 {v(vSW)}, {v(SA,4)} offset:32
    ds_write_b128 {v(vSW)}, {v(SA+4,4)} offset:{16*176+32}
    ds_write_b128 {v(vSW)}, {v(SA+8,4)} offset:{16*176+96}
    ''')
    mem_fetch(A, tag, sMT, TT.vG, 64, TT.L_MEM, light)
    tl(A, 1, 5, 64)
    for L in range(3): A.I(f'ds_read_b128 {v(MB+4*L,4)}, {v(TT.vMB0)} offset:{L*512}')
    A.I(f'ds_read_b64 {v(MB+12,2)}, {v(TT.vMB1)}\n s_waitcnt lgkmcnt(1)')
    TB = TT.TB
    for L in range(3):
        for tt in range(2):
            d = v(SA + 12 + 4*tt, 4)
            A.I(f'v_mfma_f32_16x16x32_bf16 {d}, {v(MB+4*L,4)}, {v(TB+8*L+4*tt,4)}, {d if L else 0}')
    A.I('s_waitcnt lgkmcnt(0)')
    for tt in range(2):
        d = v(SA + 12 + 4*tt, 4)
        A.I(f'v_mfma_f32_16x16x16_bf16 {d}, {v(MB+12,2)}, {v(TB+24+2*tt,2)}, {d}')
    A.I(f'''
    s_mov_b32 exec_hi, 0
    ds_write_b128 {v(vSW)}, {v(SA+12,4)}
    ds_write_b128 {v(vSW)}, {v(SA+16,4)} offset:{16*176}
    s_mov_b64 exec, -1
    s_waitcnt lgkmcnt(0)
    s_barrier
    ''')
    Z, M = 64, 36
    for k in range(4):
        A.I(f'ds_read_b128 {v(Z+8*k,4)}, {v(vSR0)} offset:{k*SBW}\n ds_read_b128 {v(Z+8*k+4,4)}, {v(vSR1)} offset:{k*SBW}')
    A.I(f'v_mov_b32 {v(M+1)}, 0xff800000\n s_waitcnt lgkmcnt(0)')
    for a, b in ((0, 8), (16, 24), (0, 16)):
        for k in range(0, 8, 2): A.I(f'v_pk_add_f32 {v(Z+a+k,2)}, {v(Z+a+k,2)}, {v(Z+b+k,2)}')
    for i in range(8): A.I(f'v_cndmask_b32 {v(Z+i)}, {v(M+1)}, {v(Z+i)}, {s(sK+2*i,2)}')
    red = ['quad_perm:[1,0,3,2] row_mask:0xf bank_mask:0xf', 'quad_perm:[2,3,0,1] row_mask:0xf bank_mask:0xf', 'row_half_mirror row_mask:0xf bank_mask:0xf']
    A.I(f'''
    v_max3_f32 {v(M)}, {v(Z)}, {v(Z+1)}, {v(Z+2)}
    v_max3_f32 {v(M)}, {v(M)}, {v(Z+3)}, {v(Z+4)}
    v_max3_f32 {v(M)}, {v(M)}, {v(Z+5)}, {v(Z+6)}
    v_max_f32 {v(M)}, {v(M)}, {v(Z+7)}
    ''')
    for r in red: A.I(f'v_max_f32_dpp {v(M)}, {v(M)}, {v(M)} {r}')
    for i in range(8): A.I(f'v_sub_f32 {v(Z+i)}, {v(Z+i)}, {v(M)}')
    for i in range(8): A.I(f'v_exp_f32 {v(Z+i)}, {v(Z+i)}')
    A.I(f'''
    v_pk_add_f32 {v(M,2)}, {v(Z,2)}, {v(Z+2,2)}
    v_pk_add_f32 {v(M+2,2)}, {v(Z+4,2)}, {v(Z+6,2)}
    v_pk_add_f32 {v(M,2)}, {v(M,2)}, {v(M+2,2)}
    v_add_f32 {v(M)}, {v(M)}, {v(M+1)}
    ''')
    for r in red: A.I(f'v_add_f32_dpp {v(M)}, {v(M)}, {v(M)} {r}')
    A.I(f'v_rcp_f32 {v(M)}, {v(M)}')
    for i in range(0, 8, 2): A.I(f'v_pk_mul_f32 {v(Z+i,2)}, {v(Z+i,2)}, {v(M,2)} op_sel_hi:[1,0]')
    O = Z + 8
    A.I(f'''
    v_cvt_pk_bf16_f32 {v(O)}, {v(Z)}, {v(Z+1)}
    v_cvt_pk_bf16_f32 {v(O+4)}, {v(Z+2)}, {v(Z+3)}
    v_cvt_pk_bf16_f32 {v(O+5)}, {v(Z+4)}, {v(Z+5)}
    v_cvt_pk_bf16_f32 {v(O+3)}, {v(Z+6)}, {v(Z+7)}
    v_cndmask_b32 {v(O+1)}, {v(O+5)}, {v(O+4)}, {s(sMK0,2)}
    v_cndmask_b32 {v(O+2)}, {v(O+4)}, {v(O+5)}, {s(sMK0,2)}
    ''')
    return O

def tokt(A):
    ACC, RING, TB, SA = 64, 32, TT.TB, TT.SA
    vXc, vOne, vZero, vXI0, vXI1, vXS, vPX = 5, 6, 7, 4, 1, 2, TT.vPX
    sX, sPX, sFL, sMT = sA, sC_, sD, sE
    A.label('L_tokt')
    wave_setup(A)
    gate(A, 'tu', GT)
    wait_tiles(A, 'tt', 8, 0, 'head', sH, 8)
    load_head(A, 0)
    tl(A, 1, 1, 8)
    A.I(f's_load_dwordx2 {s(sX,2)}, s[0:1], {KA_X}\n s_waitcnt lgkmcnt(0)')
    xsetup(A, sX, 21, vXc, 8)
    if FIN:
        A.I(f's_cmp_eq_u32 {s(sREP)}, 3\n s_cselect_b32 {s(sSEG)}, 63, {s(sSEG)}\n s_cselect_b32 s44, {60*XI_SEG}, 0\n s_cselect_b32 s45, {64*XI_SEG}, 0')
        addps(A, sX, sX, 44)
    xdma(A, sX, 21)
    if FIN: A.I(f's_sub_u32 {s(sX)}, {s(sX)}, s45\n s_subb_u32 {s(sX+1)}, {s(sX+1)}, 0')
    tt_setup(A)
    A.I(f'''
    v_mov_b32 {v(vOne)}, 0x01010101
    v_mov_b32 {v(vZero)}, 0
    v_lshrrev_b32 v8, 3, v1
    v_xor_b32 v8, v8, v2
    v_and_b32 v8, 1, v8
    v_lshlrev_b32 v8, 5, v8
    v_lshl_add_u32 v8, v1, 6, v8
    v_lshrrev_b32 v9, 1, v2
    v_lshl_add_u32 v8, v9, 3, v8
    s_lshl_b32 s42, s40, 11
    v_add_u32 {v(vXI0)}, s42, v8
    s_lshl_b32 s42, s41, 11
    s_and_b32 s45, {s(sW)}, 1
    s_lshl_b32 s45, s45, 4
    s_add_u32 s42, s42, s45
    v_add_u32 {v(vXI1)}, s42, v8
    v_mov_b32 {v(vXS)}, v21
    s_mul_i32 s42, {s(sREP)}, {PX_SEG}
    ''')
    addp(A, sPX, sWS, PX_OFF); addps(A, sPX, sPX, 42)
    A.I(f's_lshl_b32 s42, {s(sREP)}, 10\n s_lshr_b32 s43, {s(sH)}, 2\n s_lshl_b32 s43, s43, 7\n s_add_u32 s42, s42, s43\n s_and_b32 s43, {s(sH)}, 3\n s_lshl_b32 s43, s43, 2\n s_add_u32 s42, s42, s43')
    addp(A, sFL, sWS, F2_OFF); addps(A, sFL, sFL, 42)
    A.I(f's_mul_i32 s42, {s(sREP)}, {MEMT_SLOT}'); addp(A, sMT, sWS, MEMT_OFF); addps(A, sMT, sMT, 42)
    A.label('L_tt_item')
    A.I(f'''
    s_waitcnt vmcnt(0)
    s_barrier
    s_xor_b32 {s(sLB)}, {s(sLB)}, 0x8000
    s_sub_u32 s40, {s(sSEG)}, {59 if FIN else 60}
    s_cmp_lt_u32 s40, 4
    s_cbranch_scc1 L_tt_nox
    ''')
    xdma(A, sX, vXS)
    A.label('L_tt_nox')
    gemm(A, 7, wtile, ACC, RING, [vXc, vXc], [0, 1024], True)
    A.I(f'v_xor_b32 {v(vXc)}, 0x8000, {v(vXc)}')
    for tt in range(2):
        for t in range(7):
            for k in range(2):
                d = TB + 8*(t>>1) + 4*tt + 2*(t&1) + k if t < 6 else TB + 24 + 2*tt + k
                A.I(f'v_cvt_pk_bf16_f32 {v(d)}, {v(ACC+8*t+4*tt+2*k)}, {v(ACC+8*t+4*tt+2*k+1)}')
    XF = 64
    for L in range(3):
        for t in range(2): A.I(f'ds_read2_b64 {v(XF+8*L+4*t,4)}, {v(vXI0)} offset0:{t*128} offset1:{t*128+2}')
        A.I(f'v_add_u32 {v(vXI0)}, {2048 if L < 2 else -4096 & 0xffffffff}, {v(vXI0)}')
    for t in range(2): A.I(f'ds_read_b64 {v(XF+24+2*t,2)}, {v(vXI1)} offset:{t*1024}')
    A.I(f'v_xor_b32 {v(vXI0)}, 0x8000, {v(vXI0)}\n v_xor_b32 {v(vXI1)}, 0x8000, {v(vXI1)}\n s_waitcnt lgkmcnt(0)')
    tt_smm(A, lambda L: XF + 8*L, XF + 24, 0, SA); tt_smm(A, lambda L: XF + 8*L, XF + 24, 1, SA + 4); tt_smm(A, lambda L: XF + 8*L + 4, XF + 26, 1, SA + 8)
    if FIN: A.I(f's_cmp_eq_u32 {s(sSEG)}, 63\n s_cbranch_scc1 L_tt_exp')
    O = tt_finish(A, 'tt', sMT, LIGHT)
    A.I(f'''
    s_mov_b64 exec, {s(TT.sM5,2)}
    global_store_dwordx4 {v(vPX)}, {v(O,4)}, {s(sPX,2)} sc1
    s_mov_b64 exec, -1
    ''')
    tl(A, 1, 6, 36)
    A.I('s_waitcnt vmcnt(0)\n s_barrier')
    flag_store(A, sFL, vOne, vZero)
    addp(A, sFL, sFL, 4096); addp(A, sMT, sMT, 4 * MEMT_SLOT); addp(A, sPX, sPX, 4 * PX_SEG)
    A.I(f's_add_u32 {s(sSEG)}, {s(sSEG)}, 4\n s_cmp_lt_u32 {s(sSEG)}, {63 if FIN else 64}\n s_cbranch_scc1 L_tt_item'); tl(A, 1, 2, 8); A.I('s_endpgm')
    if FIN:
        A.label('L_tt_exp')
        A.I(f's_lshl_b32 s42, {s(sH)}, 2\n s_add_u32 s42, s42, {s(sW)}\n s_mul_i32 s42, s42, 10240')
        addp(A, 40, sWS, FX_OFF); addps(A, 40, 40, 42)
        A.flush()
        for k in range(10):
            A.I(f'global_store_dwordx4 v3, {v(TB+4*k if k < 7 else SA+4*(k-7),4)}, s[40:41] offset:{(k%4)*1024} sc1')
            if k % 4 == 3: addp(A, 40, 40, 4096)
        for k in range(4): A.I(f'v_mov_b32 {v(64+k)}, {s(sSENT)}')
        addp(A, 40, sPX, 60 * PX_SEG); A.I(f's_lshl_b32 s44, {s(sH)}, 2'); addp(A, 42, sWS, FL_OFF + 63 * 256 + 64); addps(A, 42, 42, 44)
        A.I(f's_mov_b64 exec, {s(TT.sM5,2)}\n global_store_dwordx4 {v(vPX)}, v[64:67], s[40:41] sc1\n s_mov_b64 exec, -1\n s_waitcnt vmcnt(0)\n s_barrier')
        flag_store(A, 42, vOne, vZero)
        A.I(f's_mov_b32 {s(sSEG)}, 3\n s_branch L_tt_item')

def load_tr(A, ptr, stride, natural):
    vS = 8
    A.I(f'''
    s_mul_i32 s42, {s(sW)}, 28672
    v_lshrrev_b32 v10, 3, v0
    v_and_b32 v11, 7, v0
    {'v_bfe_u32 v12, v0, 4, 1' if natural else 'v_lshrrev_b32 v12, 4, v0'}
    v_lshlrev_b32 v12, 1, v12
    v_xor_b32 v11, v11, v12
    v_mul_u32_u24 v10, {stride}, v10
    v_lshl_add_u32 {v(vS)}, v11, 4, v10
    v_xor_b32 v11, {4 if natural else 0}, v11
    v_lshl_add_u32 {v(vS+1)}, v11, 4, v10
    v_bfe_u32 v10, v0, 2, 2
    v_lshl_add_u32 v11, v2, {3 if natural else 2}, v10
    v_lshlrev_b32 v11, 7, v11
    v_and_b32 v12, 1, v0
    v_lshl_add_u32 v11, v12, 3, v11
    v_add_u32 v11, s42, v11
    v_and_b32 v10, 2, v10
    v_and_b32 v12, 1, v2
    v_lshl_add_u32 v10, v12, 2, v10
    v_bfe_u32 v12, v0, 1, 1
    v_xor_b32 v10, v10, v12
    ''')
    for t in range(4):
        A.I(f'v_xor_b32 v12, {2*t}, v10\n v_lshl_add_u32 {v(13+t)}, v12, 4, v11')
    for half in range(2):
        for k in range(28):
            A.I(f's_add_u32 m0, s42, {k*1024}')
            A.I(f'global_load_lds_dwordx4 {v(vS+(k&1))}, {s(ptr,2)}')
            addp(A, ptr, ptr, 8 * stride)
        A.I('s_waitcnt vmcnt(0)')
        for jj in range(7):
            j = 7 * half + jj
            for t in range(4):
                for hi in range(2):
                    A.I(f'ds_read_b64_tr_b16 {a_((t*14+j)*4+2*hi,2)}, {v(13+t)} offset:{jj*4096 + hi*(512 if natural else 2048)}')
            A.I('s_waitcnt lgkmcnt(0)')

def at(t, j): return a_((t * 14 + j) * 4, 4)

def ffn1(A):
    ACC, RING = 64, 32
    vXc, vOne, vZero, vGT, vOG, vXS, GT = 5, 6, 7, 4, 56, 58, 120
    sX, sW1, sHO, sFL, sG = sA, sB_, sC_, sD, sE
    A.label('L_ffn1')
    A.I(f's_load_dwordx2 {s(sW1,2)}, s[0:1], {KA_W1}\n s_load_dwordx2 {s(sX,2)}, s[0:1], {KA_X}\n s_load_dwordx2 {s(sF,2)}, s[0:1], {KA_GW}')
    wave_setup(A)
    A.I(f's_lshl_b32 s40, {s(sH)}, 9\n s_lshl_b32 s41, {s(sW)}, 7\n s_add_u32 s40, s40, s41\n s_waitcnt lgkmcnt(0)')
    addps(A, sW1, sW1, 40)
    gate(A, 'f1', GF)
    A.I('v_lshlrev_b32 v8, 4, v2')
    for j in range(14): A.I(f'global_load_dwordx4 {v(GT+4*j,4)}, v8, {s(sF,2)} offset:{64*j}')
    load_tr(A, sW1, 3584, True)
    tl(A, 1, 1, 8)
    A.I('s_barrier')
    xsetup(A, sX, vXS, vXc, 8); xdma(A, sX, vXS)
    A.I(f'''
    v_mov_b32 {v(vOne)}, 0x01010101
    v_mov_b32 {v(vZero)}, 0
    v_lshlrev_b32 {v(vGT)}, 2, v1
    s_mul_i32 s42, {s(sREP)}, {HI_SEG}
    s_lshl_b32 s43, {s(sH)}, 14
    s_add_u32 s42, s42, s43
    s_lshl_b32 s43, {s(sW)}, 12
    s_add_u32 s42, s42, s43
    ''')
    addp(A, sHO, sWS, HI_OFF); addps(A, sHO, sHO, 42)
    A.I(f's_lshl_b32 s42, {s(sREP)}, 8\n s_lshl_b32 s43, {s(sH)}, 2\n s_add_u32 s42, s42, s43')
    addp(A, sFL, sWS, FL_OFF + 192); addps(A, sFL, sFL, 42)
    A.I(f's_lshl_b32 s42, {s(sREP)}, 7'); addp(A, sG, sWS, G_OFF); addps(A, sG, sG, 42)
    A.label('L_f1_item')
    A.I(f'''
    s_waitcnt vmcnt(0)
    s_barrier
    s_cmp_lt_u32 {s(sSEG)}, 4
    s_cbranch_scc1 L_f1_nofl
    ''')
    flag_store(A, sFL, vOne, vZero); addp(A, sFL, sFL, 1024)
    A.label('L_f1_nofl')
    A.I(f'''
    s_cmp_ge_u32 {s(sSEG)}, 64
    s_cbranch_scc1 L_f1_end
    s_xor_b32 {s(sLB)}, {s(sLB)}, 0x8000
    s_cmp_ge_u32 {s(sSEG)}, 60
    s_cbranch_scc1 L_f1_nox
    ''')
    xdma(A, sX, vXS)
    A.label('L_f1_nox')
    gemm(A, 5, lambda t, j: at(t, j) if t < 4 else v(GT + 4*j, 4), ACC, RING, [vXc, vXc], [0, 1024], True)
    A.I(f'v_xor_b32 {v(vXc)}, 0x8000, {v(vXc)}')
    for tt in range(2):
        A.I(f'''
        v_mul_f32 {v(vOG+tt)}, {f32(-1.4426950408889634)}, {v(ACC+32+4*tt)}
        v_exp_f32 {v(vOG+tt)}, {v(vOG+tt)}
        v_add_f32 {v(vOG+tt)}, 1.0, {v(vOG+tt)}
        v_rcp_f32 {v(vOG+tt)}, {v(vOG+tt)}
        ''')
    A.I(f'''
    s_or_b32 s40, {s(sH)}, {s(sW)}
    s_cbranch_scc1 L_f1_nog
    global_store_dword {v(vGT)}, {v(vOG)}, {s(sG,2)} sc1
    global_store_dword {v(vGT)}, {v(vOG+1)}, {s(sG,2)} offset:64 sc1
L_f1_nog:
    v_sub_f32 {v(vOG)}, 1.0, {v(vOG)}
    v_sub_f32 {v(vOG+1)}, 1.0, {v(vOG+1)}
    ''')
    E, O = 8, 16
    for p in range(2):
        for tt in range(2):
            regs = [ACC + 8*(2*p+y) + 4*tt + r for y in range(2) for r in range(4)]
            for i, r in enumerate(regs): A.I(f'v_mul_f32 {v(E+i)}, {f32(-1.4426950408889634)}, {v(r)}')
            for i in range(8): A.I(f'v_exp_f32 {v(E+i)}, {v(E+i)}')
            for i in range(8): A.I(f'v_add_f32 {v(E+i)}, 1.0, {v(E+i)}')
            for i in range(8): A.I(f'v_rcp_f32 {v(E+i)}, {v(E+i)}')
            for i, r in enumerate(regs): A.I(f'v_mul_f32 {v(r)}, {v(r)}, {v(vOG+tt)}')
            for i, r in enumerate(regs): A.I(f'v_mul_f32 {v(E+i)}, {v(E+i)}, {v(r)}')
            o = O + 4 * (2*p + tt)
            for k in range(4): A.I(f'v_cvt_pk_bf16_f32 {v(o+k)}, {v(E+2*k)}, {v(E+2*k+1)}')
            A.I(f'global_store_dwordx4 v3, {v(o,4)}, {s(sHO,2)} offset:{(2*p+tt)*1024} sc1')
    addp(A, sHO, sHO, 4 * HI_SEG); addp(A, sG, sG, 512)
    A.I(f's_add_u32 {s(sSEG)}, {s(sSEG)}, 4\n s_branch L_f1_item')
    A.label('L_f1_end'); tl(A, 1, 2, 8); A.I('s_endpgm')

def outs(A):
    ACC, VF, WF, PF, HR = 8, 40, 104, 120, 160
    NH = 8
    vF, vFA, vRW, vRR, vO, vV1, vGA, vG, vFB = 4, 5, 6, 7, 224, 225, 226, 228, 227
    AC2 = HR
    RBW = 32 * 272
    sW2, sHI, sVX, sWT, sPX, sFL, sOUT, sG, sF2 = sA, sB_, sC_, sD, sE, sF, 30, 32, 34
    sMA, sMB = sM0, sM1
    A.label('L_outs')
    A.I(f's_load_dwordx2 {s(sW2,2)}, s[0:1], {KA_W2}\n s_load_dwordx2 {s(sOUT,2)}, s[0:1], {KA_OUT}')
    wave_setup(A)
    A.I(f's_mul_i32 s40, {s(sW)}, {448*896}\n s_lshl_b32 s41, {s(sH)}, 7\n s_add_u32 s40, s40, s41\n s_waitcnt lgkmcnt(0)')
    addps(A, sW2, sW2, 40)
    gate(A, 'ou', GO)
    load_tr(A, sW2, 896, False)
    tl(A, 1, 1, 8)
    A.I(f'''
    s_barrier
    v_lshlrev_b32 {v(vGA)}, 2, v1
    s_mov_b32 {s(sSEG)}, {s(sREP)}
    v_lshlrev_b32 {v(vFA)}, 2, v0
    v_add_u32 {v(vV1)}, 4096, v3
    s_mov_b32 {s(sMA)}, 0x0000ffff
    s_mov_b32 {s(sMA+1)}, 0x007f0000
    s_mov_b64 {s(sMB,2)}, -1
    v_bfe_u32 v10, v0, 2, 3
    v_and_b32 v11, 3, v0
    v_lshlrev_b32 v11, 2, v11
    v_lshl_add_u32 {v(vFB)}, v10, 7, v11
    s_mul_i32 s42, {s(sW)}, {RBW}
    v_mul_u32_u24 {v(vRW)}, 272, v1
    v_lshl_add_u32 {v(vRW)}, v2, 4, {v(vRW)}
    v_add_u32 {v(vRW)}, s42, {v(vRW)}
    v_lshrrev_b32 v10, 3, v0
    v_lshl_add_u32 v10, {s(sW)}, 3, v10
    v_and_b32 v11, 7, v0
    v_mul_u32_u24 {v(vRR)}, 272, v10
    v_lshl_add_u32 {v(vRR)}, v11, 5, {v(vRR)}
    v_mul_u32_u24 {v(vO)}, 896, v10
    v_lshl_add_u32 {v(vO)}, v11, 4, {v(vO)}
    s_mul_i32 s42, {s(sREP)}, {32*896}
    s_lshl_b32 s43, {s(sH)}, 7
    s_add_u32 s42, s42, s43
    ''')
    addps(A, sOUT, sOUT, 42)
    A.I(f's_mul_i32 s42, {s(sREP)}, {HI_SEG}\n s_mul_i32 s43, {s(sW)}, 28672\n s_add_u32 s42, s42, s43')
    addp(A, sHI, sWS, HI_OFF); addps(A, sHI, sHI, 42)
    A.I(f's_mul_i32 s42, {s(sREP)}, {14*VX_SC}\n s_lshl_b32 s43, {s(sH)}, 16\n s_add_u32 s42, s42, s43\n s_lshl_b32 s43, {s(sW)}, 13\n s_add_u32 s42, s42, s43')
    addp(A, sVX, sWS, VX_OFF); addps(A, sVX, sVX, 42)
    A.I(f's_mul_i32 s42, {s(sREP)}, {WT_SEG}\n s_mul_i32 s43, {s(sW)}, 28672\n s_add_u32 s42, s42, s43\n s_lshl_b32 s43, {s(sH)}, 12\n s_add_u32 s42, s42, s43')
    addp(A, sWT, sWS, WT_OFF); addps(A, sWT, sWT, 42)
    A.I(f's_mul_i32 s42, {s(sREP)}, {PX_SEG}\n s_mul_i32 s43, {s(sW)}, 10240\n s_add_u32 s42, s42, s43')
    addp(A, sPX, sWS, PX_OFF); addps(A, sPX, sPX, 42)
    A.I(f's_lshl_b32 s42, {s(sREP)}, 8'); addp(A, sFL, sWS, FL_OFF); addps(A, sFL, sFL, 42)
    A.I(f's_lshl_b32 s42, {s(sREP)}, 7'); addp(A, sG, sWS, G_OFF); addps(A, sG, sG, 42)
    A.I(f's_lshl_b32 s42, {s(sREP)}, 10'); addp(A, sF2, sWS, F2_OFF); addps(A, sF2, sF2, 42)
    def wait_flags(tag, mask, vFA=vFA, sFL=sFL):
        if LIGHT: A.I(f's_cmp_lg_u32 {s(sW)}, 0\n s_cbranch_scc1 L_{tag}_ok')
        A.I(f'''
L_{tag}:
        global_load_dword {v(vF)}, {v(vFA)}, {s(sFL,2)} sc1
        ''')
        budget(A)
        A.I(f'''
        s_waitcnt vmcnt(0)
        v_cmp_ne_u32 vcc, 0x01010101, {v(vF)}
        s_and_b64 vcc, vcc, {s(mask,2)}
        s_cbranch_vccz L_{tag}_ok
        s_sleep {TS}
        s_branch L_{tag}
L_{tag}_ok:
        ''')
        if LIGHT: A.I('s_waitcnt vmcnt(0)\n s_barrier')
    A.label('L_ou_item')
    wait_flags('ou_f1', sMA)
    vm = Cnt(A, 'vmcnt', 63)
    A.I(f'global_load_dword {v(vG)}, {v(vGA)}, {s(sG,2)} sc1\n global_load_dword {v(vG+1)}, {v(vGA)}, {s(sG,2)} offset:64 sc1')
    A.I(f's_mov_b64 s[40:41], {s(sHI,2)}')
    def hload(i):
        A.I(f'global_load_dwordx4 {v(HR+4*(i%(2*NH)),4)}, v3, s[40:41] offset:{(i%4)*1024} sc1'); vm.add(('h', i))
        if i % 4 == 3: addp(A, 40, 40, 4096)
    for i in range(2 * NH): hload(i)
    addp(A, 42, sVX, 32768)
    vl = [(hh, ct) for hh in range(4) for ct in range(4)]
    def vload(n):
        hh, ct = vl[n]
        A.I(f'global_load_dwordx4 {v(VF+16*hh+4*ct,4)}, {v(3 if hh < 2 else vV1)}, {s(sVX if ct < 2 else 42,2)} offset:{(hh&1)*2048+(ct&1)*1024} sc1'); vm.add(('v', n))
    for j in range(14):
        for tt in range(2):
            i = 2*j + tt
            vm.wait(('h', i))
            for ct in range(4):
                d = v(ACC + 8*ct + 4*tt, 4)
                A.I(f'v_mfma_f32_16x16x32_bf16 {d}, {at(ct,j)}, {v(HR+4*(i%(2*NH)),4)}, {d if j else 0}')
            if i + 2 * NH < 28: hload(i + 2 * NH)
            elif i - 12 < 16: vload(i - 12)
    if FIN: A.I(f's_cmp_eq_u32 {s(sSEG)}, 63\n s_cbranch_scc1 L_ou_red')
    wait_flags('ou_f2', sMB, vFB, sF2)
    tl(A, 1, 5, 230)
    vm.clear()
    addp(A, 40, sPX, 4096); addp(A, 42, sPX, 8192)
    for i in range(10):
        A.I(f'global_load_dwordx4 {v(PF+4*i,4)}, v3, {s([sPX,40,42][i>>2],2)} offset:{(i%4)*1024} sc1'); vm.add(('p', i))
        if i == 3:
            for ct in range(4):
                A.I(f'global_load_dwordx4 {v(WF+4*ct,4)}, v3, {s(sWT,2)} offset:{ct*1024} sc1'); vm.add(('w', ct))
    for k in range(5):
        for tt in range(2):
            vm.wait(('p', 2*k + tt))
            for ct in range(4):
                d = v(AC2 + 8*ct + 4*tt, 4)
                a = v(VF + 16*k + 4*ct, 4) if k < 4 else v(WF + 4*ct, 4)
                A.I(f'v_mfma_f32_16x16x32_bf16 {d}, {a}, {v(PF+8*k+4*tt,4)}, {d if k else 0}')
    tl(A, 1, 6, 230)
    for tt in range(2):
        for ct in range(4):
            for r in range(4): A.I(f'v_fmac_f32 {v(ACC+8*ct+4*tt+r)}, {v(vG+tt)}, {v(AC2+8*ct+4*tt+r)}')
    A.label('L_ou_red')
    A.I('s_waitcnt vmcnt(0)\n s_nop 7\n s_barrier')
    for tt in range(2):
        for ct in range(4):
            A.I(f'ds_write_b128 {v(vRW)}, {v(ACC+8*ct+4*tt,4)} offset:{tt*16*272 + ct*64}')
    A.I('s_waitcnt lgkmcnt(0)\n s_barrier')
    Z = VF
    for k in range(4):
        A.I(f'ds_read_b128 {v(Z+8*k,4)}, {v(vRR)} offset:{k*RBW}\n ds_read_b128 {v(Z+8*k+4,4)}, {v(vRR)} offset:{k*RBW+16}')
    A.I('s_waitcnt lgkmcnt(0)')
    for a, b in ((0, 8), (16, 24), (0, 16)):
        for k in range(0, 8, 2): A.I(f'v_pk_add_f32 {v(Z+a+k,2)}, {v(Z+a+k,2)}, {v(Z+b+k,2)}')
    if FIN: A.I(f's_cmp_eq_u32 {s(sSEG)}, 63\n s_cbranch_scc1 L_ou_exp')
    for k in range(4): A.I(f'v_cvt_pk_bf16_f32 {v(Z+8+k)}, {v(Z+2*k)}, {v(Z+2*k+1)}')
    A.I(f'global_store_dwordx4 {v(vO)}, {v(Z+8,4)}, {s(sOUT,2)} {OST}')
    tl(A, 1, 7, 230)
    addp(A, sOUT, sOUT, 7 * 32 * 896); addp(A, sHI, sHI, 7 * HI_SEG); addp(A, sVX, sVX, 7 * 14 * VX_SC)
    addp(A, sWT, sWT, 7 * WT_SEG); addp(A, sPX, sPX, 7 * PX_SEG); addp(A, sFL, sFL, 7 * 256); addp(A, sG, sG, 7 * 128); addp(A, sF2, sF2, 7 * 1024)
    A.I(f's_add_u32 {s(sSEG)}, {s(sSEG)}, 7\n s_cmp_lt_u32 {s(sSEG)}, 64\n s_cbranch_scc1 L_ou_item'); A.I('s_waitcnt vmcnt(0)'); tl(A, 1, 2, 8); A.I('s_endpgm')
    if FIN:
        A.label('L_ou_exp')
        A.I(f's_lshl_b32 s42, {s(sH)}, 8\n v_lshlrev_b32 {v(vO)}, 1, {v(vO)}')
        addp(A, 40, sWS, BP_OFF); addps(A, 40, 40, 42)
        A.I(f'''
        global_store_dwordx4 {v(vO)}, {v(Z,4)}, s[40:41] sc1
        global_store_dwordx4 {v(vO)}, {v(Z+4,4)}, s[40:41] offset:16 sc1
        s_lshl_b32 s42, {s(sH)}, 2
        s_add_u32 s42, s42, 128
        v_mov_b32 v8, s42
        v_mov_b32 v9, 0x01010101
        s_waitcnt vmcnt(0)
        s_barrier
        ''')
        flag_store(A, sFL, 9, 8)
        tl(A, 1, 2, 8); A.I('s_endpgm')
```

```python
import sys
from common import *
import chain, tok, prep

NAME = 'gated_mix__memory_aug_recurrent_mem_tr__dense_activation_silu__prompt'

PERM = {1: 's_and_b32 s40, s3, 1\n s_lshl_b32 s40, s40, 4\n s_lshr_b32 s3, s3, 1\n s_add_u32 s3, s3, s40\n s_lshl_b32 s70, s3, 3',
        2: 's_and_b32 s40, s3, 2\n s_lshl_b32 s40, s40, 3\n s_and_b32 s41, s3, 1\n s_lshr_b32 s3, s3, 2\n s_lshl_b32 s3, s3, 1\n s_add_u32 s3, s3, s41\n s_add_u32 s3, s3, s40\n s_lshl_b32 s70, s3, 3',
        4: 's_and_b32 s40, s3, 4\n s_lshl_b32 s40, s40, 2\n s_and_b32 s41, s3, 3\n s_lshr_b32 s3, s3, 3\n s_lshl_b32 s3, s3, 2\n s_add_u32 s3, s3, s41\n s_add_u32 s3, s3, s40\n s_lshl_b32 s70, s3, 3',
        8: 's_and_b32 s40, s3, 8\n s_lshl_b32 s40, s40, 1\n s_and_b32 s41, s3, 7\n s_lshr_b32 s3, s3, 4\n s_lshl_b32 s3, s3, 3\n s_add_u32 s3, s3, s41\n s_add_u32 s3, s3, s40\n s_lshl_b32 s70, s3, 3',
        16: 's_sub_u32 s3, 31, s3\n s_lshl_b32 s70, s3, 3'}
def main_kernel(prof=0, roles=('chain', 'tokv', 'tokt', 'ffn1', 'outs')):
    A = Asm(); TL['role'] = 'e'
    A.I(f'''
    s_cmp_ge_u32 s2, 256
    s_cbranch_scc1 L_bail
    s_load_dwordx2 s[8:9], s[0:1], {KA_WS}
    s_load_dwordx2 {s(prep.sDB,2)}, s[0:1], {KA_DBG}
    v_lshrrev_b32 v1, 6, v0
    v_and_b32 v0, 63, v0
    {f's_add_u32 s38, s2, {8 - chain.CX}' if 'rev' not in chain.OPT else f's_sub_u32 s38, {256 + chain.CX}, s2'}
    s_and_b32 s38, s38, 7
    s_lshr_b32 s3, s2, 3
    v_readfirstlane_b32 s4, v1
    v_and_b32 v1, 15, v0
    v_lshrrev_b32 v2, 4, v0
    s_waitcnt lgkmcnt(0)
    s_lshl_b32 s70, s3, 3
    s_add_u32 s70, s70, s38
    ''')
    if 'cw' in chain.OPT:
        A.raw(f'''    s_getpc_b64 s[40:41]
L_pc0:
    s_lshl_b32 s42, s3, 2
    s_add_u32 s42, s42, s4
    s_lshl_b32 s42, s42, 3
    v_and_b32 v3, 7, v0
    v_add_lshl_u32 v3, v3, s42, 7
    v_min_u32 v3, L_code_end - L_pc0 - 4, v3''')
        A.I('global_load_dword v255, v3, s[40:41]')
    if chain.GX or chain.GE: A.I('s_memrealtime s[92:93]\n s_waitcnt lgkmcnt(0)')
    tl(A, 1, 0, 200)
    A.I(f'''
    s_mov_b32 s44, -1
    s_mov_b32 s45, -1
    s_mov_b32 s46, -1
    s_cmp_lg_u32 s38, 0
    s_cbranch_scc1 L_tok0
    {PERM.get(chain.RP, '')}
    s_cmp_lg_u32 s3, 30
    s_cbranch_scc1 L_noinit
    ''')
    TL['role'] = 'he'; prep.init_job(A); TL['role'] = 'e'
    A.label('L_noinit')
    if 'sc' not in chain.OPT: A.I('s_cmp_ge_u32 s3, 16\n s_cbranch_scc1 L_jobs\n s_add_u32 s45, s3, 208')
    else: A.I('s_cmp_lt_u32 s3, 16\n s_cbranch_scc1 L_score\n s_add_u32 s45, s3, 192')
    A.I(f'''
    s_branch L_jobs
L_bail:
    s_endpgm
L_tok0:
    ''')
    if 'oldmap' in chain.OPT: A.I('''
    s_sub_u32 s39, s38, 1
    s_lshl_b32 s44, s39, 5
    s_add_u32 s44, s44, s3
    s_mul_i32 s39, s39, 21
    s_max_u32 s40, s3, 11
    s_add_u32 s39, s39, s40
    s_sub_u32 s39, s39, 11
    s_min_u32 s40, s39, 128
    s_add_u32 s40, s40, 7
    s_lshr_b32 s40, s40, 3
    s_sub_u32 s45, s44, s40
    s_cmp_lt_u32 s3, 11
    s_cbranch_scc1 L_jobs
    s_cmp_ge_u32 s39, 128
    s_cbranch_scc1 L_jobs
    s_and_b32 s39, s39, 7
    s_cselect_b32 s45, s45, -1
    ''')
    else: A.I('''
    s_sub_u32 s39, s38, 1
    s_lshl_b32 s44, s39, 5
    s_add_u32 s44, s44, s3
    s_min_u32 s40, s44, 128
    s_add_u32 s40, s40, 7
    s_lshr_b32 s40, s40, 3
    s_sub_u32 s45, s44, s40
    s_cmp_ge_u32 s44, 128
    s_cbranch_scc1 L_jobs
    s_and_b32 s39, s44, 7
    s_cselect_b32 s45, s45, -1
    ''')
    A.label('L_jobs')
    prep.gemm_jobs(A, 44)
    A.I(f'''
    s_mov_b32 s40, s38
    s_cmp_lg_u32 s38, 0
    s_cbranch_scc1 L_tok
    s_cmp_lt_u32 s3, 16
    s_cbranch_scc1 L_score
    s_cmp_lt_u32 s3, 30
    s_cbranch_scc1 L_value
    s_cmp_eq_u32 s3, 30
    s_cbranch_scc1 L_helper
    {'s_branch L_fetch' if 'fetch' in chain.OPT else 's_branch L_spare'}
L_tok:
    ''')
    if 'oldmap' in chain.OPT: A.I(f'''
    s_sub_u32 s40, s40, 1
    s_cmp_ge_u32 s3, 7
    s_cbranch_scc1 L_tok1
    s_mov_b32 {s(tok.sREP)}, s40
    s_branch {'L_outs' if 'outs' in roles else 'L_bail'}
L_tok1:
    s_cmp_ge_u32 s3, 11
    s_cbranch_scc1 L_tok2
    s_sub_u32 {s(tok.sREP)}, s3, 7
    s_mov_b32 s3, s40
    s_branch {'L_ffn1' if 'ffn1' in roles else 'L_bail'}
L_tok2:
    s_mul_i32 s40, s40, 21
    s_add_u32 s40, s40, s3
    s_sub_u32 s40, s40, 11
    s_cmp_ge_u32 s40, 128
    s_cbranch_scc1 L_bail
    s_and_b32 {s(tok.sREP)}, s40, 3
    s_lshr_b32 s3, s40, 3
    s_bitcmp1_b32 s40, 2
    s_cbranch_scc1 {'L_tokt' if 'tokt' in roles else 'L_bail'}
    s_branch {'L_tokv' if 'tokv' in roles else 'L_bail'}
    ''')
    else: A.I(f'''
    s_cmp_lt_u32 s44, 128
    s_cbranch_scc1 L_tok2
    {'s_sub_u32 s40, s44, 128' if 'ffl' in chain.OPT else 's_sub_u32 s40, s44, 156'}
    s_cmp_ge_u32 s40, 49
    s_cbranch_scc1 L_tok1
    s_mul_i32 {s(tok.sREP)}, s40, 37
    s_lshr_b32 {s(tok.sREP)}, {s(tok.sREP)}, 8
    s_mul_i32 s41, {s(tok.sREP)}, 7
    s_sub_u32 s3, s40, s41
    s_branch L_outs
L_tok1:
    {'s_sub_u32 s40, s40, 49' if 'ffl' in chain.OPT else 's_sub_u32 s40, s44, 128'}
    s_cmp_ge_u32 s40, 28
    s_cbranch_scc1 L_bail
    s_and_b32 {s(tok.sREP)}, s40, 3
    s_lshr_b32 s3, s40, 2
    s_branch L_ffn1
L_tok2:
    s_and_b32 {s(tok.sREP)}, s44, 3
    s_lshr_b32 s3, s44, 3
    s_bitcmp1_b32 s44, 2
    s_cbranch_scc1 L_tokt
    s_branch L_tokv
    ''')
    for r, f in (('sc', lambda A: chain.score(A, prof)), ('va', lambda A: chain.value(A, prof if 'sonly' not in chain.OPT else 0)), ('he', chain.helper), ('fe', chain.fetcher), ('sp', chain.spare), ('tv', tok.tokv), ('tt', tok.tokt), ('f1', tok.ffn1), ('ou', tok.outs)):
        TL['role'] = r; f(A)
    A.label('L_code_end')
    return A

KD = '''.section .rodata,"a"
.p2align 6
.amdhsa_kernel {name}
  .amdhsa_next_free_vgpr {nv}
  .amdhsa_next_free_sgpr 102
  .amdhsa_accum_offset 256
  .amdhsa_group_segment_fixed_size 0
  .amdhsa_kernarg_size 112
  .amdhsa_user_sgpr_count 2
  .amdhsa_user_sgpr_kernarg_segment_ptr 1
  .amdhsa_system_sgpr_workgroup_id_x 1
  .amdhsa_float_denorm_mode_32 3
.end_amdhsa_kernel
'''
def full(prof=0, **kw):
    n = NAME + '_kernel'
    out = [HEADER, '; @launch grid=(256,1,1) block=(256,1,1) lds=163840',
           '.amdgcn_target "amdgcn-amd-amdhsa--gfx950"', '.text',
           f'.globl {n}', '.p2align 8', f'.type {n},@function', f'{n}:', main_kernel(prof, **kw).text(), KD.format(name=n, nv=512)]
    return '\n'.join(out)

HEADER = '''; Kernarg layout for this problem (112 bytes, ptrs only, base s[0:1]):
; second phase: memory recurrence (16 score + 14 value + 1 relay workgroups) and the token side (x B, x A + softmax, FFN, mix)'''

if __name__ == '__main__':
    args = sys.argv[1:]
    outn = 'cdna_kernels/' + NAME + '.s'
    for o in args:
        if o == 'dbg': TL['dbg'] = 1
        elif o.startswith('out='): outn = o[4:]
        elif '=' in o:
            k_, val = o.split('=')
            for mod in (chain, tok, prep):
                if hasattr(mod, k_): setattr(mod, k_, int(val) if val.lstrip('-').isdigit() else val)
        else: chain.OPT.add(o)
    open(outn, 'w').write(full())
```

```python
import re

REG_RE = re.compile(r'^(-|\|)?(abs\()?([vas])(\d+|\[(\d+):(\d+)\])\)?\|?$')

def parse_reg(tok):
    tok = tok.strip()
    if tok == 'vcc': return [('s', 106), ('s', 107)]
    if tok == 'vcc_lo': return [('s', 106)]
    if tok == 'vcc_hi': return [('s', 107)]
    if tok == 'exec': return [('s', 126), ('s', 127)]
    if tok == 'm0': return [('s', 124)]
    m = REG_RE.match(tok)
    if not m: return []
    k = m.group(3)
    if m.group(5) is not None:
        return [(k, i) for i in range(int(m.group(5)), int(m.group(6)) + 1)]
    return [(k, int(m.group(4)))]

TRANS = ('v_exp_f32', 'v_log_f32', 'v_rcp_f32', 'v_rsq_f32', 'v_sqrt_f32', 'v_sin_f32', 'v_cos_f32')

class Ins:
    __slots__ = ('text', 'op', 'cls', 'w', 'r', 'ws', 'passes', 'A', 'B', 'C', 'dpp', 'data', 'sread')
    def __init__(self, text):
        self.text = text
        t = text.split(';')[0].strip()
        parts = t.split(None, 1)
        self.op = op = parts[0]
        rest = parts[1] if len(parts) > 1 else ''
        rest = re.sub(r'(\w+):\[([^\]]*)\]', lambda m: m.group(1) + ':' + m.group(2).replace(',', '_'), rest)
        ops = [o.strip() for o in rest.split(',')] if rest else []
        mods = ''
        if ops:
            last = ops[-1].split(None, 1)
            ops[-1] = last[0]
            mods = last[1] if len(last) > 1 else ''
        self.w = set(); self.r = set(); self.ws = 1; self.passes = 0
        self.A = self.B = self.C = set(); self.dpp = set(); self.data = set(); self.sread = set()
        R = [set(parse_reg(o)) for o in ops]
        if op == 's_nop':
            self.cls = 'nop'; self.ws = int(ops[0], 0) + 1
        elif op.startswith('v_mfma') or op.startswith('v_smfmac'):
            self.cls = 'mfma'
            self.passes = 8 if '32x32' in op else 4
            if '4x4x4' in op: self.passes = 2
            self.w = R[0]; self.A = R[1]; self.B = R[2]
            if op.startswith('v_smfmac'):
                self.C = set(R[0]); self.A = R[1] | R[3]
            else:
                self.C = R[3]
            self.r = self.A | self.B | self.C
        elif op.startswith('v_'):
            self.cls = 'trans' if op.replace('_e32', '').replace('_e64', '') in TRANS else 'valu'
            if op.startswith('v_swap') or op.startswith('v_permlane'):
                self.w = R[0] | R[1]; self.r = R[0] | R[1]
            elif op.startswith('v_add_co') or op.startswith('v_addc_co') or op.startswith('v_sub_co') or op.startswith('v_mad_u64'):
                self.w = R[0] | R[1]; self.r = set().union(*R[2:])
            elif op == 'v_nop':
                pass
            else:
                self.w = R[0]; self.r = set().union(*R[1:]) if len(R) > 1 else set()
                if op.startswith('v_fmac') or op.startswith('v_pk_fmac') or op.startswith('v_writelane') or op.startswith('v_dot2c'): self.r |= R[0]
                if op.startswith('v_cndmask') and len(ops) == 3: self.r |= set(parse_reg('vcc'))
            if any(k in mods for k in ('row_', 'quad_perm', 'wave_', 'row_bcast', 'row_mirror', 'row_half')):
                self.dpp = R[1]
                self.r |= R[0]
            self.sread = {x for x in self.r if x[0] == 's'}
        elif op.startswith('ds_'):
            self.cls = 'ds'
            if op.startswith('ds_read') or op.startswith('ds_bpermute') or op.startswith('ds_swizzle') or op.startswith('ds_permute'):
                self.w = R[0]; self.r = set().union(*R[1:])
            else:
                self.r = set().union(*R); self.data = set().union(*R[1:])
        elif op.startswith('global_') or op.startswith('buffer_'):
            self.cls = 'vmem'
            lds = ('_lds_' in op) or (' lds' in (' ' + mods))
            if op in ('buffer_wbl2', 'buffer_inv'):
                pass
            elif lds:
                self.r = set().union(*R) | set(parse_reg('m0')); self.cls = 'vmemlds'
            elif '_load' in op:
                self.w = R[0]; self.r = set().union(*R[1:])
            elif op.startswith('global_store'):
                self.r = set().union(*R); self.data = R[1]
            elif op.startswith('buffer_store'):
                self.r = set().union(*R); self.data = R[0]
            elif 'atomic' in op:
                if op.startswith('global_') and 'sc0' in mods:
                    self.w = R[0]; self.r = set().union(*R[1:])
                else:
                    self.r = set().union(*R)
                    if 'sc0' in mods: self.w = R[0]
            self.sread = {x for x in self.r if x[0] == 's'}
        elif op.startswith('s_'):
            self.cls = 'salu'
            if op.startswith('s_cmp') or op.startswith('s_cbranch') or op in ('s_branch', 's_barrier', 's_waitcnt', 's_endpgm', 's_sleep', 's_setprio', 's_bitcmp0_b32', 's_bitcmp1_b32'):
                self.r = set().union(*R) if R else set()
            else:
                self.w = R[0] if R else set(); self.r = set().union(*R[1:]) if len(R) > 1 else set()
                if 'saveexec' in op: self.w |= set(parse_reg('exec'))
        else:
            raise ValueError('unknown instr: ' + text)

def need(p, c):
    n = 0
    pv = p.cls in ('valu', 'trans')
    cv = c.cls in ('valu', 'trans')
    pw_v = {x for x in p.w if x[0] != 's'}
    pw_s = {x for x in p.w if x[0] == 's'}
    if pv:
        if c.cls == 'mfma' and pw_v & c.r: n = max(n, 2)
        if c.dpp and pw_v & c.dpp: n = max(n, 2)
        if c.op.startswith('v_permlane') and pw_v & c.r: n = max(n, 2)
        if (c.op.startswith('v_readlane') or c.op.startswith('v_readfirstlane')) and pw_v & c.r: n = max(n, 1)
        if p.cls == 'trans' and c.cls == 'valu' and pw_v & c.r: n = max(n, 1)
        if p.cls == 'trans' and c.cls in ('ds', 'vmem') and pw_v & c.r: n = max(n, 1)
        if pw_s:
            if cv and pw_s & c.sread: n = max(n, 4 if c.op.startswith('v_readlane') or c.op.startswith('v_writelane') else 2)
            if c.cls in ('vmem', 'vmemlds') and pw_s & c.sread: n = max(n, 5)
    if p.cls == 'mfma':
        big = {2: 5, 4: 8, 8: 12}[p.passes]; mid = {2: 4, 4: 6, 8: 10}[p.passes]
        if c.cls == 'mfma':
            if p.w & (c.A | c.B): n = max(n, big)
            if p.w & c.C:
                if not (p.w == c.C and p.op == c.op): n = max(n, mid)
                elif p.passes == 2: n = max(n, 2)
            elif p.w & c.w: n = max(n, mid)
        elif p.w & (c.r | c.w): n = max(n, big)
        if cv and (p.C - p.w) & c.w: n = max(n, {2: 1, 4: 3, 8: 7}[p.passes])
    if p.cls == 'vmem' and p.data and len(p.data) >= 3 and p.data & c.w:
        n = max(n, 2 if cv else 1)
    if p.cls == 'salu' and ('s', 124) in p.w and c.cls == 'vmemlds': n = max(n, 1)
    return n

class Asm:
    def __init__(self):
        self.out = []
        self.hist = []
        self.nnop = 0
        self.timed = True
    def raw(self, text): self.out.append(text)
    def c(self, text): self.out.append('    ; ' + text)
    def label(self, name):
        self.out.append(name + ':')
    def I(self, text):
        for line in text.strip().split('\n'):
            line = line.strip()
            if not line or line.startswith(';'): continue
            if line.endswith(':'):
                self.label(line[:-1]); continue
            ins = Ins(line)
            pad = self._pad(ins)
            while pad > 0:
                k = min(pad, 16)
                nop = Ins('s_nop %d' % (k - 1)); self.hist.append(nop); self.out.append('    ' + nop.text); self.nnop += 1
                pad -= k
            self.hist.append(ins); self.out.append('    ' + line)
    def _pad(self, ins):
        h = self.hist[-40:]
        t = []; cur = 0; lastm = None
        for p in h + [ins]:
            if self.timed and lastm is not None:
                if p.cls == 'mfma': cur = max(cur, lastm[0] + lastm[1])
                elif p.cls in ('valu', 'trans'): cur = max(cur, lastm[0] + 2)
            t.append(cur)
            if p.cls == 'mfma': lastm = (cur, p.passes)
            cur += p.ws
        pad = 0
        for p, tp in zip(h, t[:-1]):
            k = need(p, ins)
            if k:
                have = t[-1] - tp - 1
                if k > have: pad = max(pad, k - have)
        if pad and self.hist:
            plain = t[-2] + h[-1].ws
            pad += t[-1] - plain
        return pad
    def flush(self, n=12):
        dist = 0; pad = 0
        for p in reversed(self.hist[-24:]):
            k = 0
            if p.cls == 'mfma': k = {2: 5, 4: 8, 8: 12}[p.passes]
            elif p.cls in ('valu', 'trans'): k = 5 if any(x[0] == 's' for x in p.w) else 2
            elif p.cls == 'vmem' and len(p.data) >= 3: k = 2
            if k > dist: pad = max(pad, k - dist)
            dist += p.ws
        if pad: self.I('s_nop %d' % (pad - 1))
    def text(self): return '\n'.join(self.out) + '\n'

def v(a, n=1): return 'v%d' % a if n == 1 else 'v[%d:%d]' % (a, a + n - 1)
def a_(a, n=1): return 'a%d' % a if n == 1 else 'a[%d:%d]' % (a, a + n - 1)
def s(a, n=1): return 's%d' % a if n == 1 else 's[%d:%d]' % (a, a + n - 1)
def u(idx, n):
    return a_(idx, n)


class Cnt:
    def __init__(self, asm, name, cap):
        self.asm = asm; self.name = name; self.cap = cap; self.q = []
    now = 0
    def wait_old(self, tag, age):
        if tag not in self.q: return
        old = [t for t in self.q if self.now - self.t.get(t, self.now) >= age]
        if old and self.q.index(old[-1]) > self.q.index(tag): tag = old[-1]
        self.wait(tag)
    def add(self, tag=None):
        if not hasattr(self, 't'): self.t = {}
        self.t[tag] = self.now
        self.q.append(tag)
        assert len(self.q) <= self.cap, (self.name, len(self.q))
    def text(self, tag):
        if tag not in self.q: return None
        i = len(self.q) - 1 - self.q[::-1].index(tag)
        n = len(self.q) - 1 - i
        self.q = self.q[i + 1:]
        return 's_waitcnt %s(%d)' % (self.name, n)
    def wait(self, tag):
        t = self.text(tag)
        if t: self.asm.I(t)
    def drain(self):
        self.q = []; self.asm.I('s_waitcnt %s(0)' % self.name)
    def clear(self): self.q = []


_INL = {'0.5', '-0.5', '1.0', '-1.0', '2.0', '-2.0', '4.0', '-4.0'}
_VOP12 = ('v_mov_b32', 'v_max_u32', 'v_min_u32', 'v_add_f32', 'v_add_u32', 'v_xor_b32', 'v_and_b32', 'v_exp_f32', 'v_rcp_f32', 'v_mul_f32', 'v_sub_f32', 'v_max_f32',
          'v_lshlrev_b32', 'v_lshrrev_b32', 'v_subrev_u32', 'v_permlane16_swap_b32', 'v_permlane32_swap_b32', 'v_fmac_f32')
def isize(line):
    t = line.split(';')[0].strip()
    if not t or t.endswith(':'): return 0
    op, _, rest = t.partition(' ')
    ops = [o.strip() for o in rest.split(',')]
    def lit(o):
        if o in _INL: return False
        try: x = int(o, 0)
        except ValueError: return False
        return not -16 <= x <= 64
    if op.startswith('s_'):
        if op in ('s_waitcnt', 's_nop', 's_barrier', 's_sleep', 's_branch') or op.startswith('s_cbranch'): return 4
        if op.startswith('s_load') or op.startswith('s_mem'): return 8
        return 8 if any(lit(o) for o in ops) else 4
    if op.startswith('v_cmp'): return (8 if any(lit(o) for o in ops) else 4) if ops[0] == 'vcc' else 8
    if op in _VOP12: return 8 if any(lit(o) for o in ops) else 4
    return 8
```

```python
from common import *
import prep, tok
from prep import wait_tiles, sDB, DB_XCC

NSTEP = 63
CLK = 's_memrealtime'
OPT = {'poisT', 'mtouch', 'mtdirect', 'ffl'}
HSLEEP = 2
LIM = 60
XD = 0
VE = 3
KP = '01234567'
AL8 = 0
WLD = 'sc1'
DEPV = 32
DEPS = 48
VS = 4
WS = 2
AH0, AH1 = 14, 15
RP = 0
CX = 3
DIR = 1
FS = 40
ALS = 2
ALV = 4
PS_ = 0
SS = 0
AJ = 8
GX = 0
GE = 0
AGE = 99
L3P = ''
GB = 2
PD = 3
FA, FB, FC, FD = 5, 3, 4, 1
PFL = 16
PFA = 2
NRES = 5
HD = 3
sROLE, sW, sSTEP, sBUD, sSENT = 3, 4, 5, 6, 7
sWS, sX0, sX1, sMEM, sP, sVX, sMT, sWT = 8, 10, 12, 14, 16, 18, 20, 24
sTMP, sTMP2 = 27, 28
sM20, sMHI, sMG = 30, 32, 34
sLB, sXB, sM48 = 36, 37, 38
sDBG = 44
sXCC, sEA, sEB, sFL = 75, 64, 66, 68
BUDGET = 1 << 21

def delay(A, n):
    if n >= 4: A.I(f's_sleep {n // 4}')
    if n % 4: A.I(f's_nop {4 * (n % 4) - 1}')

def bud(A):
    A.I(f's_add_u32 {s(sBUD)}, {s(sBUD)}, 1\n s_cmp_gt_u32 {s(sBUD)}, {BUDGET}\n s_cbranch_scc1 L_bail')

def chain_common(A):
    A.I(f'''
    s_mov_b32 {s(sSTEP)}, 0
    s_mov_b32 {s(sBUD)}, 0
    s_mov_b32 {s(sSENT)}, {SENT}
    s_mov_b32 s90, 0
    ''')

def xcc_publish(A, role, t):
    A.I(f'''
    s_getreg_b32 {s(sXCC)}, hwreg(HW_REG_XCC_ID, 0, 4)
    s_add_u32 {s(sXCC)}, {s(sXCC)}, 1
    v_mov_b32 {v(t)}, {s(role)}
    v_mov_b32 {v(t+1)}, {s(sXCC)}
    s_waitcnt vmcnt(0)
    s_barrier
    global_store_byte {v(t)}, {v(t+1)}, {s(sDB,2)} offset:{DB_XCC} sc1
    ''')

def xcc_check(A, tag, t, between=None, n=0):
    A.I(f'''
    v_min_u32 {v(t)}, {31 if 'fetch' in OPT else 30}, v0
    ''')
    if between:
        A.I(f'global_load_ubyte {v(t+1)}, {v(t)}, {s(sDB,2)} offset:{DB_XCC} sc1')
        between()
        A.I(f's_waitcnt vmcnt({n})\n v_cmp_eq_u32 vcc, 0, {v(t+1)}\n s_cbranch_vccz L_{tag}_xk')
    A.I(f'''
L_{tag}_xc:
    global_load_ubyte {v(t+1)}, {v(t)}, {s(sDB,2)} offset:{DB_XCC} sc1
    ''')
    bud(A)
    A.I(f'''
    s_waitcnt vmcnt(0)
    v_cmp_eq_u32 vcc, 0, {v(t+1)}
    s_cbranch_vccnz L_{tag}_xc
L_{tag}_xk:
    v_cmp_ne_u32 vcc, {s(sXCC)}, {v(t+1)}
    s_cmp_eq_u64 vcc, {0 if 'slow' not in OPT else -1}
    s_cselect_b32 {s(sEA)}, 1, 0
    ''')

def warm(A, first, last, t):
    if 'warm' not in OPT: return
    A.raw(f'''    s_getpc_b64 s[40:41]
L_pc_{first}:
    s_add_u32 s40, s40, {first} - L_pc_{first}
    s_addc_u32 s41, s41, 0
    v_lshlrev_b32 {v(t)}, 7, v0
    v_min_u32 {v(t)}, {last} - {first}, {v(t)}''')
    A.I(f'global_load_dword {v(t+1)}, {v(t)}, s[40:41]')

def assist(A, tag, head, t):
    if 'assist' not in OPT: return
    wait_tiles(A, tag, t, 0, 'head', head, 1)
    A.I(f's_mul_i32 s40, {s(head)}, {MF_HEAD}'); addp(A, 42, sWS, MF_OFF + AJ * 2048); addps(A, 42, 42, 40)
    per = (14 - AJ) * 16
    tot = 14 * per
    n = (tot // 4 + 63) // 64
    A.I(f's_mul_i32 s40, {s(sW)}, {tot // 4}')
    for i in range(n):
        A.I(f'''
        v_add_u32 {v(t)}, {64*i}, v0
        v_min_u32 {v(t)}, {tot // 4 - 1}, {v(t)}
        v_add_u32 {v(t)}, s40, {v(t)}
        v_mul_u32_u24 {v(t+1)}, {(1 << 20) // per + 1}, {v(t)}
        v_lshrrev_b32 {v(t+1)}, 20, {v(t+1)}
        v_mul_u32_u24 {v(t+1)}, {224 - per}, {v(t+1)}
        v_add_lshl_u32 {v(t)}, {v(t)}, {v(t+1)}, 7
        global_load_dword {v(t+2)}, {v(t)}, s[42:43] sc1
        ''')

def mem_poll(A, tag, vG0, vPR, vD):
    A.I(f'''
L_{tag}_mp:
    s_mov_b32 m0, {s(sLB)}
L_{tag}_mpl:
    global_load_dword {v(vD)}, {v(vPR)}, {s(sMEM,2)} sc1
    global_load_lds_dwordx4 {v(vG0)}, {s(sMEM,2)} sc1
    s_mov_b64 exec, {s(sM48,2)}
    global_load_lds_dwordx4 {v(vG0)}, {s(sMEM,2)} offset:1024 sc1
    s_mov_b64 exec, -1
    ''')
    bud(A)
    A.I(f'''
    s_waitcnt vmcnt(2)
    v_cmp_eq_u32 vcc, {s(sSENT)}, {v(vD)}
    s_cbranch_vccnz L_{tag}_mpl
    s_waitcnt vmcnt(0) lgkmcnt(0)
    s_barrier
    ''')

sMEM2, sLB2 = 66, 29
def dma_split(A, vG0):
    A.I(f'''
    global_load_lds_dwordx4 {v(vG0)}, {s(sMEM,2)} sc1
    s_mov_b32 m0, {s(sLB2)}
    s_mov_b64 exec, {s(sM48,2)}
    global_load_lds_dwordx4 {v(vG0)}, {s(sMEM2,2)} sc1
    s_mov_b64 exec, -1
    s_mov_b32 m0, {s(sLB)}
    ''')

def mem_poll_split(A, tag, vG0, vPR, vD):
    A.I(f'''
L_{tag}_mp:
    s_mov_b32 m0, {s(sLB)}
L_{tag}_mpl:
    global_load_dword {v(vD)}, {v(vPR)}, {s(sMEM,2)} sc1
    ''')
    dma_split(A, vG0)
    bud(A)
    A.I(f'''
    s_waitcnt vmcnt(2)
    v_cmp_eq_u32 vcc, {s(sSENT)}, {v(vD)}
    s_cbranch_vccnz L_{tag}_mpl
    s_waitcnt vmcnt(1) lgkmcnt(0)
    s_barrier
    ''')

def mem_poll_half(A, tag, vG0, vPR, vD):
    A.I(f'''
L_{tag}_mp:
    s_cmp_ge_u32 {s(sW)}, 2
    s_cbranch_scc1 L_{tag}_mpb
    s_mov_b32 m0, {s(sLB)}
L_{tag}_mpl:
    global_load_dword {v(vD)}, {v(vPR)}, {s(sMEM,2)} sc1
    global_load_lds_dwordx4 {v(vG0)}, {s(sMEM,2)} sc1
    global_load_lds_dwordx4 {v(vG0)}, {s(sMEM,2)} offset:1024 sc1
    global_load_lds_dwordx4 {v(vG0)}, {s(sMEM,2)} offset:2048 sc1
    s_mov_b32 exec_hi, 0
    global_load_lds_dwordx4 {v(vG0)}, {s(sMEM,2)} offset:3072 sc1
    s_mov_b64 exec, -1
    ''')
    bud(A)
    A.I(f'''
    s_waitcnt vmcnt(4)
    v_cmp_eq_u32 vcc, {s(sSENT)}, {v(vD)}
    s_cbranch_vccnz L_{tag}_mpl
    s_waitcnt vmcnt(0)
L_{tag}_mpb:
    s_waitcnt lgkmcnt(0)
    s_barrier
    ''')

def mem_poll_setup(A, vG0, vPR, t, half=False):
    A.I(f'''
    s_mul_i32 {s(sLB)}, {s(sW)}, {3584 if half else 1792}
    v_lshlrev_b32 {v(vG0)}, 4, v0
    v_add_u32 {v(vG0)}, {s(sLB)}, {v(vG0)}
    s_mov_b32 {s(sM48)}, -1
    s_mov_b32 {s(sM48+1)}, 0xffff
    v_min_u32 {v(t)}, {27 if half else 13}, v0
    v_lshlrev_b32 {v(t)}, 7, {v(t)}
    v_add3_u32 {v(vPR)}, {s(sLB)}, {v(t)}, 64
    ''')

def sreg(i): return 48 + 2 * i if i < 8 else 76 + 2 * (i - 8)

def stamp(A, idx, prof):
    if not prof: return
    A.I(f'{CLK} {s(sreg(idx), 2)}')

def stamp_flush(A, prof):
    if not prof: return
    A.I('s_waitcnt lgkmcnt(0)')
    for i in range(16): A.I(f'v_writelane_b32 v21, {s(sreg(i))}, {i}')
    A.I(f'''
    v_mbcnt_lo_u32_b32 v20, -1, 0
    v_lshlrev_b32 v20, 2, v20
    s_mov_b64 exec, 0xffff
    global_store_dword v20, v21, {s(sDBG,2)}
    s_mov_b64 exec, -1
    ''')
    addp(A, sDBG, sDBG, 64)

def idx_setup(A, vIDX, T):
    A.I(f'''
    v_and_b32 {v(T)}, 15, v0
    v_lshrrev_b32 {v(T+1)}, 4, v0
    v_and_b32 {v(T+2)}, 7, v0
    v_mov_b32 {v(vIDX)}, 0x4444
    v_mov_b32 {v(T+3)}, 0xeeee
    v_cmp_lt_u32 vcc, 7, {v(T)}
    v_cndmask_b32 {v(vIDX)}, {v(vIDX)}, {v(T+3)}, vcc
    ''')

def score(A, prof=0):
    L_MEM, L_TB, L_SB, L_RW, L_XB = 0, 8192, 20480, 26624, 65536
    vIDX, vG0, vXB, vPR, vAF0, vAF1, vMB0, vMB1, vTW, vTR, vSW, vSR, vPS, vX0, vX1, vRW, vSM, vSN = range(1, 19)
    vCK = 19; vLO = 0; sHI = 26
    RING, XF, R, TOPC, TMP, SACC, TACC, WV = 20, 52, 84, 108, 112, 116, 128, 144
    MEMB, TOPA, TOPB = R, R + 16, R + 20
    import layout
    layout.L3T[:] = [int(c, 16) for c in str(L3P or ('1234567' if 'split' not in OPT else '3456789'))]
    seq = score_seq()
    def wreg(i):
        if i < 3: return v(R + 8 * i, 8)
        if i < 35: return a_(8 * (i - 3), 8)
        return v(WV + 8 * (i - 35), 8)
    lg = Cnt(A, 'lgkmcnt', 15)
    A.label('L_score')
    A.I(f's_load_dwordx2 {s(sX0,2)}, s[0:1], {KA_X}')
    chain_common(A)
    T = 20
    idx_setup(A, vIDX, T)
    SPL = 'split' in OPT
    if not SPL: mem_poll_setup(A, vG0, vPR, T + 4)
    else: A.I(f'''
    s_lshl_b32 {s(sLB)}, {s(sW)}, 10
    s_mul_i32 {s(sLB2)}, {s(sW)}, 768
    s_add_u32 {s(sLB2)}, {s(sLB2)}, 4096
    v_lshl_add_u32 {v(vG0)}, v0, 4, {s(sLB)}
    s_mov_b32 {s(sM48)}, -1
    s_mov_b32 {s(sM48+1)}, 0xffff
    v_min_u32 {v(T+4)}, 13, v0
    v_lshlrev_b32 {v(T+4)}, 7, {v(T+4)}
    v_add3_u32 {v(vPR)}, {s(sLB)}, {v(T+4)}, 64
    s_sub_u32 s40, {s(sLB2)}, 960
    v_add_u32 {v(T+4)}, s40, {v(T+4)}
    v_cmp_lt_u32 vcc, 7, v0
    v_cndmask_b32 {v(vPR)}, {v(vPR)}, {v(T+4)}, vcc
    ''')
    A.I(f'''
    v_lshlrev_b32 {v(T+4)}, 7, {v(T+1)}
    v_lshl_add_u32 {v(T+4)}, {v(T+2)}, 4, {v(T+4)}
    s_and_b32 {s(sTMP)}, {s(sW)}, 1
    s_mul_i32 {s(sTMP2)}, {s(sTMP)}, {7*512}
    v_mov_b32 {v(vAF0)}, {v(T+4)}
    v_add_u32 {v(vAF1)}, {s(sTMP2)}, {v(T+4)}
    s_lshr_b32 {s(sTMP2)}, {s(sW)}, 1
    s_mul_i32 {s(sTMP2)}, {s(sTMP2)}, 7
    s_lshl_b32 {s(sTMP)}, {s(sTMP)}, 2
    s_add_u32 {s(sTMP)}, {s(sTMP)}, {s(sTMP2)}
    s_add_u32 {s(sTMP2)}, {s(sTMP2)}, 3
    s_lshl_b32 s40, {s(sTMP)}, 9
    s_lshl_b32 s41, {s(sTMP2)}, 9
    v_add_u32 {v(vMB0)}, s40, {v(T+4)}
    v_add_u32 {v(vMB1)}, s41, {v(T+4)}
    s_lshl_b32 s40, {s(sTMP)}, 6
    s_lshl_b32 s41, {s(sTMP2)}, 6
    v_lshrrev_b32 {v(T+4)}, 2, v0
    v_mul_u32_u24 {v(T+4)}, 896, {v(T+4)}
    v_lshrrev_b32 {v(T+5)}, 5, v0
    v_lshlrev_b32 {v(T+5)}, 1, {v(T+5)}
    v_and_b32 {v(T+6)}, 3, v0
    v_xor_b32 {v(T+5)}, {v(T+5)}, {v(T+6)}
    v_lshl_add_u32 {v(T+4)}, {v(T+5)}, 4, {v(T+4)}
    v_add_u32 {v(vX0)}, s40, {v(T+4)}
    v_add_u32 {v(vX1)}, s41, {v(T+4)}
    s_lshl_b32 {s(sXB)}, {s(sW)}, 13
    s_add_u32 {s(sXB)}, {s(sXB)}, {L_XB}
    v_lshrrev_b32 {v(T+4)}, 3, {v(T)}
    v_lshlrev_b32 {v(T+4)}, 1, {v(T+4)}
    v_xor_b32 {v(T+4)}, {v(T+4)}, {v(T+1)}
    v_lshl_add_u32 {v(T+4)}, {v(T)}, 2, {v(T+4)}
    v_lshl_add_u32 {v(vXB)}, {v(T+4)}, 4, {s(sXB)}
    s_mul_i32 s40, {s(sW)}, 3072
    s_add_u32 s40, s40, {L_TB}
    v_mul_u32_u24 {v(T+5)}, 192, {v(T+1)}
    v_lshl_add_u32 {v(T+5)}, {v(T)}, 3, {v(T+5)}
    v_add_u32 {v(vTW)}, s40, {v(T+5)}
    v_and_b32 {v(T+5)}, 1, v0
    v_mul_u32_u24 {v(T+5)}, 192, {v(T+5)}
    v_lshrrev_b32 {v(T+6)}, 2, v0
    v_lshl_add_u32 {v(T+5)}, {v(T+6)}, 3, {v(T+5)}
    v_add_u32 {v(vTR)}, s40, {v(T+5)}
    s_mul_i32 s40, {s(sW)}, 1408
    s_add_u32 s40, s40, {L_SB}
    v_mul_u32_u24 {v(T+5)}, 176, {v(T+2)}
    v_add_u32 {v(T+5)}, s40, {v(T+5)}
    v_mov_b32 {v(vCK)}, {v(T+5)}
    v_lshrrev_b32 {v(T+6)}, 3, {v(T)}
    v_and_b32 {v(T+7)}, 1, {v(T+1)}
    v_mul_u32_u24 {v(T+7)}, 704, {v(T+7)}
    v_lshrrev_b32 {v(T+8)}, 1, {v(T+1)}
    v_lshl_add_u32 {v(T+7)}, {v(T+8)}, 6, {v(T+7)}
    v_lshl_add_u32 {v(T+7)}, {v(T)}, 2, {v(T+7)}
    v_add3_u32 {v(vSW)}, s40, {v(T+7)}, 32
    v_and_b32 {v(T+7)}, 1, {v(T+1)}
    v_lshlrev_b32 {v(T+7)}, 4, {v(T+7)}
    v_lshrrev_b32 {v(T+8)}, 1, {v(T+1)}
    v_lshl_add_u32 {v(T+8)}, {v(T+8)}, 1, {v(T+6)}
    v_lshl_add_u32 {v(T+7)}, {v(T+8)}, 2, {v(T+7)}
    v_add_u32 {v(vSM)}, {v(T+5)}, {v(T+7)}
    v_lshrrev_b32 {v(T+5)}, 5, v0
    v_lshl_add_u32 {v(T+5)}, {s(sW)}, 1, {v(T+5)}
    v_and_b32 {v(T+6)}, 31, v0
    v_min_u32 {v(T+6)}, 20, {v(T+6)}
    v_mul_u32_u24 {v(T+7)}, 176, {v(T+5)}
    v_lshl_add_u32 {v(T+7)}, {v(T+6)}, 3, {v(T+7)}
    v_add_u32 {v(vSR)}, {L_SB}, {v(T+7)}
    s_lshr_b32 s40, {s(sROLE)}, 2
    s_mul_i32 s40, s40, 2560
    s_and_b32 s41, {s(sROLE)}, 1
    s_bfe_u32 s42, {s(sROLE)}, 0x10001
    s_lshl_b32 s43, s41, 7
    s_lshl_b32 s46, s42, 5
    s_add_u32 s43, s43, s46
    s_add_u32 s43, s43, s40
    s_add_u32 s43, s43, 2048
    v_and_b32 {v(T+7)}, 1, {v(T+6)}
    v_lshlrev_b32 {v(T+7)}, 8, {v(T+7)}
    v_lshrrev_b32 {v(T+8)}, 1, {v(T+6)}
    v_lshl_add_u32 {v(T+7)}, {v(T+8)}, 6, {v(T+7)}
    v_lshl_add_u32 {v(T+7)}, {v(T+5)}, 2, {v(T+7)}
    v_add_u32 {v(T+7)}, s43, {v(T+7)}
    s_lshl_b32 s43, s42, 10
    s_lshl_b32 s46, s41, 9
    s_add_u32 s43, s43, s46
    s_add_u32 s43, s43, s40
    v_subrev_u32 {v(T+8)}, 4, {v(T+6)}
    v_lshrrev_b32 {v(T+9)}, 2, {v(T+8)}
    v_and_b32 {v(T+8)}, 3, {v(T+8)}
    v_lshlrev_b32 {v(T+8)}, 2, {v(T+8)}
    v_lshl_add_u32 {v(T+8)}, {v(T+9)}, 7, {v(T+8)}
    v_lshl_add_u32 {v(T+8)}, {v(T+5)}, 4, {v(T+8)}
    v_add_u32 {v(T+8)}, s43, {v(T+8)}
    v_cmp_gt_u32 vcc, 4, {v(T+6)}
    v_cndmask_b32 {v(vPS)}, {v(T+8)}, {v(T+7)}, vcc
    s_mul_i32 s40, {s(sW)}, 6144
    s_add_u32 s40, s40, {L_RW}
    v_lshl_add_u32 {v(vRW)}, v0, 4, s40
    s_mov_b32 {s(sM20)}, 0x000fffff
    s_mov_b32 {s(sM20+1)}, 0x000fffff
    s_mov_b32 {s(sMHI)}, 0xff00ff00
    s_mov_b32 {s(sMHI+1)}, 0xff00ff00
    s_mov_b32 {s(sMG)}, 0
    s_mov_b32 {s(sMG+1)}, -1
    v_mov_b32 {v(vSN)}, {SENT}
    ''')
    addp(A, sP, sWS, PS_OFF); addp(A, 40, sP, PS_SLOT)
    A.I(f'''
    s_mov_b64 exec, {s(sM20,2)}
    global_store_dword {v(vPS)}, {v(vSN)}, {s(sP,2)} sc1
    global_store_dword {v(vPS)}, {v(vSN)}, s[40:41] sc1
    s_mov_b64 exec, -1
    s_waitcnt lgkmcnt(0)
    ''')
    xcc_publish(A, sROLE, T + 12)
    warm(A, 'L_sc_step', 'L_sd_step', T + 12)
    addp(A, sX1, sX0, 16 * 896)
    def xdma():
        for k in range(8):
            L, t = k >> 1, k & 1
            A.I(f's_add_u32 m0, {s(sXB)}, {k*1024 - (64*L if L < 3 else 0)}')
            base = s(sX0 if t == 0 else sX1, 2)
            A.I(f'global_load_lds_dwordx4 {v(vX0)}, {base} offset:{64*L}' if L < 3 else f'global_load_lds_dwordx4 {v(vX1)}, {base}')
        addp(A, sX0, sX0, XI_SEG); addp(A, sX1, sX1, XI_SEG)
        if XB2: A.I(f's_xor_b32 {s(sXB)}, {s(sXB)}, 0x8000')
    def xread():
        for k in range(8): A.I(f'ds_read_b128 {v(RING+4*k,4)}, {v(vXB)} offset:{k*1024}')
        for L in range(4):
            A.I(f's_waitcnt lgkmcnt({6-2*L})')
            for k in range(8): A.I(f'v_mov_b32 {v(XF+8*L+k)}, {v(RING+8*L+4*(k&1)+(k>>1))}')
        for k in range(4): A.I(f'v_mov_b32 {v(SACC+4+k)}, 0')
        if XB2: A.I(f'v_xor_b32 {v(vXB)}, 0x8000, {v(vXB)}')
    XB2 = 'nox2' not in OPT
    SC = 'sc' in OPT
    ixw = {x: i for i, x in enumerate(seq)}
    def wq(i, hf):
        if i < 3: return ('v', R + 8 * i + 4 * hf)
        if i < 35: return ('a', 8 * (i - 3) + 4 * hf)
        return ('v', WV + 8 * (i - 35) + 4 * hf)
    def rq(q, n=4): return (v if q[0] == 'v' else a_)(q[1], n)
    if SC:
        VREG = [wq(i, hf) for i, (L, jj) in enumerate(seq) if L >= 2 and i >= 3 for hf in range(2)][:32]
        UR, TC, ACC, vUS, vVS, vL, vUB, vUR = 20, 44, 52, 108, 110, 114, 118, 122
        sQ, sK, sL = 46, 48, 50
        A.I(f'''
        s_load_dwordx4 s[52:55], s[0:1], {KA_WQ}
        v_lshrrev_b32 v20, 5, v0
        v_and_b32 v21, 31, v0
        v_and_b32 v22, 15, v0
        v_lshrrev_b32 v23, 4, v0
        s_and_b32 s40, {s(sW)}, 1
        s_lshl_b32 s40, s40, 1
        s_lshl_b32 s41, {s(sW)}, 3
        ''')
        for b in range(2):
            A.I(f'''
            v_add_u32 v24, {2*b}, v20
            v_lshlrev_b32 v25, 2, v24
            v_xor_b32 v25, v25, v21
            v_lshlrev_b32 v26, 13, v24
            v_lshl_add_u32 {v(vVS+b)}, v25, 4, v26
            v_xor_b32 {v(vVS+2+b)}, 32, {v(vVS+b)}
            v_xor_b32 v25, s40, v25
            v_add_u32 v24, s41, v24
            v_lshlrev_b32 v26, 13, v24
            v_lshl_add_u32 {v(vUS+b)}, v25, 4, v26
            ''')
        A.I(f'''
        v_and_b32 v24, 3, v22
        v_lshlrev_b32 v25, 2, v24
        v_bfe_u32 v26, v22, 2, 1
        v_lshl_add_u32 v25, v26, 1, v25
        v_lshrrev_b32 v27, 2, v22
        v_lshl_add_u32 v27, v27, 3, v24
        v_lshlrev_b32 v27, 9, v27
        v_lshlrev_b32 v26, 4, v26
        v_lshrrev_b32 v28, 3, v22
        v_lshl_add_u32 v26, v28, 2, v26
        v_add_u32 v26, v26, v24
        v_lshlrev_b32 v26, 9, v26
        s_lshl_b32 {s(sL)}, {s(sW)}, 15
        v_add_u32 v26, {s(sL)}, v26
        ''')
        for b in range(4):
            A.I(f'''
            v_add_u32 v24, {4*b}, v23
            v_xor_b32 v24, v24, v25
            v_lshl_add_u32 {v(vUB+b)}, v24, 4, v27
            v_lshl_add_u32 {v(vL+b)}, v24, 4, v26
            ''')
        A.I(f'''
        s_lshl_b32 s40, {s(sROLE)}, 9
        s_lshl_b32 s41, {s(sTMP)}, 18
        s_add_u32 s41, s41, s40
        s_waitcnt lgkmcnt(0)
        ''')
        addps(A, sQ, 52, 40); addps(A, sK, 54, 41)
        vm = Cnt(A, 'vmcnt', 63); l2 = Cnt(A, 'lgkmcnt', 15)
        for k in range(32):
            A.I(f's_add_u32 m0, {s(sL)}, {k*1024}')
            A.I(f'global_load_lds_dwordx4 {v(vVS + (k&1) + 2*((k>>3)&1))}, {s(sK,2)} {prep.LDNT}'); vm.add('V')
            if k & 1: addp(A, sK, sK, 32768)
        A.I(f's_lshl_b32 {s(sL)}, {s(sW)}, 12')
        slot = lambda j: [8, 9][j] if j < 2 else (j - 2) % 10
        def issueU(j):
            for kk in range(4):
                A.I(f's_add_u32 m0, {s(sL)}, {slot(j)*16384 + kk*1024}')
                A.I(f'global_load_lds_dwordx4 {v(vUS + (kk&1))}, {s(sQ,2)} {prep.LDNT}'); vm.add(('U', j))
                if kk == 1: addp(A, sQ, sQ, 32768)
            addp(A, sQ, sQ, 32 * 8192 - 32768)
        issueU(0); issueU(1)
        vm.wait('V')
        for t in range(4):
            for kk in range(8):
                A.I(f'ds_read_b128 {rq(VREG[8*t+kk])}, {v(vL+(kk&3))} offset:{(t>>1)*16384 + (t&1)*4096 + (kk>>2)*256}')
            A.I('s_waitcnt lgkmcnt(0)')
        tl(A, 1, 6, 44)
        A.I('s_barrier')
        for j in range(2, 10): issueU(j)
        for j in range(14):
            for b in range(4): A.I(f'v_add_u32 {v(vUR+b)}, {slot(j)*16384}, {v(vUB+b)}')
            vm.wait(('U', j)); A.I('s_barrier')
            if 1 <= j <= 4: issueU(j + 9)
            if j == 7: tl(A, 1, 7, 44)
            def rdu(kk):
                for tp in range(2):
                    A.I(f'ds_read_b128 {v(UR+8*(kk%3)+4*tp,4)}, {v(vUR+(kk&3))} offset:{tp*2048 + (kk>>2)*256}'); l2.add((kk, tp))
            rdu(0); rdu(1)
            for kk in range(8):
                for tp in range(2):
                    l2.wait((kk, tp))
                    for t in range(4):
                        acc = v(ACC + 8*t + 4*tp, 4)
                        A.I(f'v_mfma_f32_16x16x32_bf16 {acc}, {v(UR+8*(kk%3)+4*tp,4)}, {rq(VREG[8*t+kk])}, {acc if kk else 0}')
                        if tp == 0 and t == 0 and kk + 2 < 8: rdu(kk + 2)
            A.I(f's_mov_b32 s40, {f32(CSC)}\n s_mov_b32 s41, s40')
            for e in range(2):
                for tp in range(2):
                    q = wq(ixw[(e, j)], tp)
                    for k in range(2):
                        for y in range(2):
                            r = ACC + 8*(2*e+y) + 4*tp + 2*k
                            A.I(f'v_pk_mul_f32 {v(r,2)}, {v(r,2)}, s[40:41]')
                    for k in range(2):
                        for y in range(2):
                            r = ACC + 8*(2*e+y) + 4*tp + 2*k
                            d = q[1] + 2*k + y if q[0] == 'v' else TC + 2*k + y
                            A.I(f'v_cvt_pk_bf16_f32 {v(d)}, {v(r)}, {v(r+1)}')
                    if q[0] == 'a':
                        for k in range(4): A.I(f'v_accvgpr_write_b32 {a_(q[1]+k)}, {v(TC+k)}')
        A.I('s_barrier')
        for k in range(6): A.I(f'ds_write_b128 {v(vRW)}, {v(R+4*k,4)} offset:{k*1024}')
        tl(A, 1, 5, T)
    A.I(f'''
    v_mov_b32 {v(T+6)}, 0xff800000
    v_mov_b32 {v(T+7)}, 0xff800000
    ds_write_b64 {v(vCK)}, {v(T+6,2)} offset:160
    ''')
    xdma()
    if XB2: xdma()
    A.I(f'''
    s_mul_i32 s40, {s(sROLE)}, {MF_HEAD}
    s_and_b32 s41, {s(sW)}, 1
    s_mul_i32 s41, s41, {7*2048}
    s_mul_i32 s42, {s(sTMP)}, {14*2048}
    s_mul_i32 s43, {s(sTMP2)}, {14*2048}
    v_lshlrev_b32 {v(T+8)}, 4, v0
    v_add_u32 {v(108)}, s42, {v(T+8)}
    s_add_u32 s46, s43, s41
    v_add_u32 {v(109)}, s46, {v(T+8)}
    ''')
    addp(A, sWT, sWS, MF_OFF); addps(A, sWT, sWT, 40)
    def wload(i):
        L, jj = seq[i]
        addp(A, 40, sWT, ((L % 3) * 14 + jj) * 2048)
        for hf in range(2): A.I(f'global_load_dwordx4 {rq(wq(i, hf))}, {v(109 if L == 3 else 108)}, s[40:41] offset:{hf*1024} {WLD}')
    if SC or 'noprog' in OPT:
        xcc_check(A, 'sc0', 110)
        wait_tiles(A, 'sc', 110, 0, 'head', sROLE)
        tl(A, 1, 4, 110)
        for i, (L, jj) in enumerate(seq):
            if SC and L < 2: continue
            wload(i)
            if i > 23: A.I('s_waitcnt vmcnt(42)')
    else:
        A.I('s_waitcnt vmcnt(0)')
        xread()
        for k in range(16): A.I(f'v_mov_b32 {v(TACC+k)}, 0')
        addp(A, sVX, sWS, PF_OFF)
        A.I(f'''
        s_lshl_b32 s40, {s(sROLE)}, 7
        v_bfe_u32 {v(110)}, v0, 3, 1
        v_lshl_add_u32 {v(110)}, {v(110)}, 11, s40
        v_and_b32 {v(111)}, 7, v0
        v_lshl_add_u32 {v(110)}, {v(111)}, 2, {v(110)}
        s_mov_b32 s46, 0x7f
L_sc_w:
        global_load_dword {v(111)}, {v(110)}, {s(sVX,2)} sc1
        ''')
        bud(A)
        A.I(f'''
        s_waitcnt vmcnt(0)
        v_cmp_ne_u32 vcc, 0, {v(111)}
        s_lshr_b32 s47, vcc_lo, 8
        s_and_b32 s47, s47, vcc_lo
        s_and_b32 s47, s47, s46
        s_andn2_b32 s46, s46, s47
        s_cmp_lg_u32 s47, 0
        s_cbranch_scc1 L_sc_wg
        s_sleep {WS}
        s_branch L_sc_w
L_sc_wg:
        ''')
        for jb in range(7):
            A.I(f's_bitcmp0_b32 s47, {jb}\n s_cbranch_scc1 L_sc_w{jb}\n s_waitcnt vmcnt({DEPS})')
            for j in (2 * jb, 2 * jb + 1):
                for L in range(3): wload(ixw[(L, j)])
            A.label(f'L_sc_w{jb}')
        A.I(f's_cmp_lg_u32 s46, 0\n s_cbranch_scc1 L_sc_w\n s_waitcnt vmcnt(48)')
        tl(A, 1, 4, 112)
        def l3():
            for jj in range(7): wload(ixw[(3, jj)])
        xcc_check(A, 'sc', 110, l3, 14)
        addp(A, sMEM, sWS, MEMS_OFF)
        if SPL:
            A.I(f's_sub_u32 s40, {s(sLB2)}, {s(sLB)}'); addps(A, sMEM2, sMEM, 40)
            A.I(f's_mov_b32 m0, {s(sLB)}'); dma_split(A, vG0)
        else: A.I(f'''
        s_mov_b32 m0, {s(sLB)}
        global_load_lds_dwordx4 {v(vG0)}, {s(sMEM,2)} sc1
        s_mov_b64 exec, {s(sM48,2)}
        global_load_lds_dwordx4 {v(vG0)}, {s(sMEM,2)} offset:1024 sc1
        s_mov_b64 exec, -1
        ''')
    if SC or 'noprog' in OPT: xcc_check(A, 'sc', 110)
    if not SC:
        if 'noprog' in OPT: A.I('s_waitcnt vmcnt(0)')
        for k in range(6): A.I(f'ds_write_b128 {v(vRW)}, {v(R+4*k,4)} offset:{k*1024}')
    if SC or 'noprog' in OPT: xread()
    addp(A, sMEM, sWS, MEMS_OFF)
    if prof:
        A.I(f's_lshl_b32 s40, {s(sROLE)}, 2\n s_add_u32 s40, s40, {s(sW)}\n s_lshl_b32 s40, s40, 12')
        addp(A, sDBG, sWS, END_OFF); addps(A, sDBG, sDBG, 40)
    if SC or 'noprog' in OPT:
        for k in range(16): A.I(f'v_mov_b32 {v(TACC+k)}, 0')
    A.I(f'''
    v_and_b32 {v(T)}, 16, v0
    v_cmp_eq_u32 vcc, 0, {v(T)}
    v_mov_b32 {v(T)}, {f32(2.0 ** -LIM)}
    v_cndmask_b32 {v(vLO)}, 0, {v(T)}, vcc
    s_mov_b32 {s(sHI)}, {f32(2.0 ** (LIM - 1))}
    s_waitcnt vmcnt(0) lgkmcnt(0)
    ''')
    tl(A, 1, 1, T)
    if GX:
        A.I(f'''
L_gx:
        s_memrealtime s[40:41]
        s_waitcnt lgkmcnt(0)
        s_sub_u32 s40, s40, s92
        s_cmp_lt_u32 s40, {GX*100}
        s_cbranch_scc1 L_gx
        ''')
    if SC or 'noprog' in OPT: A.I(f's_cmp_eq_u32 {s(sEA)}, 0\n s_cbranch_scc1 L_sd_step')
    else: A.I(f's_barrier\n s_cmp_eq_u32 {s(sEA)}, 0\n s_cbranch_scc1 L_sd_go\n s_branch L_sc_go')
    def loop(tg, sc):
        if ALS >= 0:
            A.raw('.p2align 6, , 63')
            for _ in range(ALS): A.I('s_nop 0')
        A.label(f'L_{tg}_step')
        stamp(A, 0, prof)
        if prof: A.I('s_memtime s[62:63]')
        (mem_poll_split if SPL else mem_poll)(A, tg, vG0, vPR, TMP)
        A.label(f'L_{tg}_go')
        stamp(A, 1, prof)
        lg.clear()
        def rdfrag(jj):
            A.I(f'ds_read_b128 {v(RING + 4*(jj%8), 4)}, {v(vAF0)} offset:{jj*512}'); lg.add(('f', jj))
        GR = [SACC, SACC + 8]
        def rdg(jj):
            if 'nog' in OPT: return
            A.I(f'ds_read_b128 {v(GR[jj&1], 4)}, {v(vAF1)} offset:{jj*512}'); lg.add(('g', jj))
        def rdmemb(L):
            if 'nomb' in OPT: return
            ad = f'{v(vMB0)} offset:{L*512}' if L < 3 else f'{v(vMB1)}'
            A.I(f'ds_read_b128 {v(MEMB + 4*L, 4)}, {ad}'); lg.add(('m', L))
        def cvt(L, k): A.I(f'v_cvt_pk_bf16_f32 {v(TMP + 2*(L&1) + k)}, {v(TACC+4*L+2*k)}, {v(TACC+4*L+2*k+1)}')
        def twr(L):
            A.I(f'ds_write_b64 {v(vTW)}, {v(TMP + 2*(L&1), 2)} offset:{L*768}'); lg.add(('w', L))
        TOPD = RING + 4 * (8 % 8)
        top = {0: TOPA, 1: TOPB, 2: TOPD, 3: TOPC}
        def trr(L):
            A.I(f'ds_read_b64_tr_b16 {v(top[L], 2)}, {v(vTR)} offset:{L*768}'); lg.add(('x', L))
            A.I(f'ds_read_b64_tr_b16 {v(top[L]+2, 2)}, {v(vTR)} offset:{L*768+384}'); lg.add(('t', L))
        def smm1(L, t, first=False):
            lg.wait(('m', L)); lg.wait(('t', L))
            if t == 0: A.I(f'v_mfma_f32_16x16x32_bf16 {v(SACC,4)}, {v(MEMB + 4*L, 4)}, {v(top[L],4)}, {0 if first else v(SACC,4)}')
            else: A.I(f'v_smfmac_f32_16x16x64_bf16 {v(SACC+4,4)}, {v(top[L],4)}, {v(XF + 8*L, 8)}, {v(vIDX)}')
        def chk(j0, first=False):
            if 'nochk' in OPT and not first: return
            a, b = v(RING + 4*(j0 % 8)), v(RING + 4*((j0+1) % 8))
            if first: A.I(f'v_max_u32 {v(vCK)}, {a}, {b}')
            else: A.I(f'v_max3_u32 {v(vCK)}, {a}, {b}, {v(vCK)}')
        fill = {i: [] for i in range(49)}
        ix = {x: i for i, x in enumerate(seq)}
        if SPL:
            fill[0].append(lambda: rdfrag(2))
            fill[GB].append(lambda: A.I('s_waitcnt vmcnt(0)\n s_barrier')); fill[GB + 1].append(lambda: rdg(0)); fill[GB + 2].append(lambda: rdg(1))
        else:
            fill[0].append(lambda: rdg(0)); fill[1].append(lambda: rdfrag(2)); fill[ix[(1, 1)]].append(lambda: rdg(1))
        for k in range(3, 8): fill[ix[(0, k - PD)]].append(lambda k=k: rdfrag(k))
        for k in range(5): fill[ix[(3, k)]].append(lambda k=k: rdg(k + 2))
        for k in range(6): fill[ix[(2, k)]].append(lambda k=k: rdfrag(8 + k))
        e3 = ix[(3, 6)]
        if 'nol3' not in OPT: fill[e3 + 2].append(lambda: cvt(3, 0)); fill[e3 + 3].append(lambda: cvt(3, 1)); fill[e3 + 5].append(lambda: twr(3)); fill[e3 + 6].append(lambda: trr(3))
        for k, L in enumerate([3, 0, 1, 2]): fill[ix[(0, 10 + k)]].append(lambda L=L: rdmemb(L))
        for j0 in range(0, 14, 2):
            i = ix[(0, j0 + 1)]
            while i in (e3 + 2, e3 + 3): i += 1
            fill[i].append(lambda j0=j0: chk(j0, j0 == 0))
        fill[42].append(lambda: A.I(f'v_cmp_eq_u32 vcc, {s(sSENT)}, {v(vCK)}'))
        fill[43].append(lambda: cvt(0, 0)); fill[44].append(lambda: cvt(0, 1))
        fill[45] += [lambda: twr(0), lambda: cvt(1, 0)]; fill[46] += [lambda: trr(0), lambda: cvt(1, 1)]
        fill[47].append(lambda: twr(1)); fill[48].append(lambda: trr(1))
        fill[ix[(1, 5)]].insert(0, lambda: addp(A, 40, sP, 2 * PS_SLOT))
        fill[ix[(1, 6)]].insert(0, lambda: A.I(f's_mov_b64 exec, {s(sM20,2)}\n global_store_dword {v(vPS)}, {v(vSN)}, s[40:41] {sc}\n s_mov_b64 exec, -1'))
        rdfrag(0); rdfrag(1)
        for i, (L, jj) in enumerate(seq):
            lg.now = i; lg.wait_old(('f', jj) if L < 3 else ('g', jj), AGE)
            if AL8 and i:
                if sum(isize(l) for l in A.out[mark:]) % 8: A.out.insert(mark, '    s_nop 0')
            elif AL8: A.raw('.p2align 3')
            A.I(f'v_smfmac_f32_16x16x64_bf16 {v(TACC+4*L,4)}, {v(RING+4*(jj%8) if L < 3 else GR[jj&1],4)}, {wreg(i)}, {v(vIDX)}')
            mark = len(A.out)
            if i == 0: stamp(A, 8, prof > 1)
            if i == 24: stamp(A, 9, prof > 1)
            for f in fill[i]: f()
        stamp(A, 2, prof > 1)
        smm1(3, 1); smm1(3, 0, True)
        cvt(2, 0); cvt(2, 1); twr(2); trr(2)
        A.I(f's_cbranch_vccnz L_{tg}_redo')
        for L in (0, 1): smm1(L, 1); smm1(L, 0)
        smm1(2, 0); smm1(2, 1)
        stamp(A, 10, prof > 1)
        Z = RING + 4
        A.I(f'''
        v_cndmask_b32 {v(Z)}, {v(SACC)}, {v(SACC+1)}, {s(sMHI,2)}
        v_cndmask_b32 {v(Z+1)}, {v(SACC+2)}, {v(SACC+3)}, {s(sMHI,2)}
        v_cndmask_b32 {v(Z)}, {v(Z)}, {v(Z+1)}, {s(sMG,2)}
        ds_write_b32 {v(vSM)}, {v(Z)}
        ds_write2_b32 {v(vSW)}, {v(SACC+4)}, {v(SACC+5)} offset0:0 offset1:44
        ds_write2_b32 {v(vSW)}, {v(SACC+6)}, {v(SACC+7)} offset0:88 offset1:132
        ''')
        stamp(A, 11, prof > 1)
        for k in range(FA): A.I(f'v_mov_b32 {v(TACC+k)}, 0')
        A.I('s_waitcnt lgkmcnt(0)')
        stamp(A, 12, prof > 1)
        A.I('s_barrier')
        stamp(A, 3, prof)
        for k in range(4): A.I(f'ds_read_b64 {v(Z+2*k,2)}, {v(vSR)} offset:{k*1408}')
        for k in range(FA, FA + FB): A.I(f'v_mov_b32 {v(TACC+k)}, 0')
        E, M = Z + 8, Z + 10
        A.I(f'''
        s_waitcnt lgkmcnt(2)
        v_pk_add_f32 {v(Z,2)}, {v(Z,2)}, {v(Z+2,2)}
        s_waitcnt lgkmcnt(0)
        v_pk_add_f32 {v(Z+4,2)}, {v(Z+4,2)}, {v(Z+6,2)}
        v_pk_add_f32 {v(Z,2)}, {v(Z,2)}, {v(Z+4,2)}
        ''')
        stamp(A, 13, prof > 1)
        def summ(a, check=False):
            A.I(f'''
            v_exp_f32 {v(E)}, {v(a)}
            v_exp_f32 {v(E+1)}, {v(a+1)}
            v_add_f32 {v(M)}, {v(E)}, {v(E+1)}
            ''')
            for k in (8, 4, 2, 1): A.I(f'v_add_f32_dpp {v(M)}, {v(M)}, {v(M)} {dpp(k)}')
            A.I(f'v_mov_b32 {v(M+1)}, {v(M)}')
            if check: A.I(f'v_med3_f32 {v(M+3)}, {v(M)}, {v(vLO)}, {s(sHI)}\n v_cmp_neq_f32 vcc, {v(M+3)}, {v(M)}')
            A.I(f'''
            v_permlane16_swap_b32 {v(M)}, {v(M+1)}
            v_add_f32 {v(M)}, {v(M)}, {v(M+1)}
            ''')
        def truemax():
            A.I(f'v_max_f32 {v(M)}, {v(Z)}, {v(Z+1)}')
            for k in (8, 4, 2, 1): A.I(f'v_max_f32_dpp {v(M)}, {v(M)}, {v(M)} {dpp(k)}')
            A.I(f'''
            v_mov_b32 {v(M+1)}, {v(M)}
            v_permlane16_swap_b32 {v(M)}, {v(M+1)}
            v_max_f32 {v(M)}, {v(M)}, {v(M+1)}
            v_sub_f32 {v(E)}, {v(Z)}, {v(M)}
            v_sub_f32 {v(E+1)}, {v(Z+1)}, {v(M)}
            ''')
            summ(E)
        def norm():
            A.I(f'''
            v_rcp_f32 {v(M+2)}, {v(M)}
            s_mov_b64 exec, {s(sM20,2)}
            v_pk_mul_f32 {v(E,2)}, {v(E,2)}, {v(M+2,2)} op_sel_hi:[1,0]
            v_cvt_pk_bf16_f32 {v(E)}, {v(E)}, {v(E+1)}
            ''')
        if 'max' in OPT: truemax(); norm()
        else: summ(Z, True); stamp(A, 14, prof > 1); norm(); A.I(f's_cbranch_vccnz L_{tg}_max')
        A.label(f'L_{tg}_norm')
        A.I(f'global_store_dword {v(vPS)}, {v(E)}, {s(sP,2)} {sc}')
        stamp(A, 4, prof)
        A.I(f's_mov_b64 exec, -1\n s_add_u32 {s(sSTEP)}, {s(sSTEP)}, 1\n s_cmp_ge_u32 {s(sSTEP)}, {NSTEP}\n s_cbranch_scc1 L_sc_end')
        if XB2: A.I(f's_cmp_ge_u32 {s(sSTEP)}, {NSTEP-1}\n s_cbranch_scc1 L_{tg}_nox')
        if 'nox' not in OPT: xdma()
        if tok.FIN: A.I(f's_branch L_{tg}_nof')
        A.label(f'L_{tg}_nox')
        if tok.FIN:
            A.I(f's_lshl_b32 s42, {s(sROLE)}, 2\n s_add_u32 s42, s42, {s(sW)}\n s_mul_i32 s42, s42, 10240')
            addp(A, 40, sWS, FX_OFF); addps(A, 40, 40, 42)
            A.I(f's_lshl_b32 s42, {s(sW)}, 13\n s_lshl_b32 s43, {s(sW)}, 11\n v_subrev_u32 {v(RING)}, {s(sLB)}, {v(vG0)}')
            for k in range(10):
                A.I(f's_add_u32 m0, s42, {131072 + (k>>2)*4096}' if k < 8 else f's_add_u32 m0, s43, 51200')
                A.I(f'global_load_lds_dwordx4 {v(RING)}, s[40:41] offset:{(k%4)*1024} sc1')
                if k % 4 == 3: addp(A, 40, 40, 4096)
            A.label(f'L_{tg}_nof')
        for k in range(6): A.I(f'ds_read_b128 {v(R+4*k,4)}, {v(vRW)} offset:{k*1024}')
        for k in range(FA + FB, 16): A.I(f'v_mov_b32 {v(TACC+k)}, 0')
        addp(A, sP, sP, PS_SLOT); addp(A, sMEM, sMEM, MEM_SLOT)
        if SPL: addp(A, sMEM2, sMEM2, MEM_SLOT)
        stamp_flush(A, prof)
        if not XB2: A.I('s_waitcnt vmcnt(0)')
        xread()
        delay(A, SS)
        stamp(A, 5, prof)
        A.I(f's_branch L_{tg}_step')
        if 'max' not in OPT:
            A.label(f'L_{tg}_max'); A.I('s_mov_b64 exec, -1\n s_nop 1'); truemax(); norm(); A.I(f's_branch L_{tg}_norm')
        A.label(f'L_{tg}_redo')
        if prof: A.I(f's_add_u32 {s(sreg(15))}, {s(sreg(15))}, 1')
        A.I('s_waitcnt vmcnt(0) lgkmcnt(0)\n s_nop 15\n s_barrier')
        for k in range(6): A.I(f'ds_read_b128 {v(R+4*k,4)}, {v(vRW)} offset:{k*1024}')
        for k in range(16): A.I(f'v_mov_b32 {v(TACC+k)}, 0')
        for k in range(4): A.I(f'v_mov_b32 {v(SACC+4+k)}, 0')
        A.I(f's_branch L_{tg}_mp')
    loop('sc', ''); loop('sd', 'sc1')
    A.label('L_sc_end')
    tl(A, 1, 2, T)
    stamp_flush(A, prof)
    if tok.FIN:
        A.I(f'''
        v_mbcnt_lo_u32_b32 v0, -1, 0
        v_mbcnt_hi_u32_b32 v0, -1, v0
        v_and_b32 v1, 15, v0
        v_lshrrev_b32 v2, 4, v0
        v_lshlrev_b32 v3, 4, v0
        ''')
        tok.tt_setup(A)
        A.I(f's_lshl_b32 s42, {s(sW)}, 13\n s_add_u32 s42, s42, 131072\n v_add_u32 v4, s42, v3\n s_lshl_b32 s42, {s(sW)}, 11\n s_add_u32 s42, s42, 51200\n v_add_u32 v5, s42, v3')
        for k in range(10):
            A.I(f'ds_read_b128 {v(tok.TT.TB+4*k if k < 7 else tok.TT.SA+4*(k-7),4)}, {"v4" if k < 8 else "v5"} offset:{(k%8)*1024}')
        addp(A, sMEM, sMEM, MEM_SLOT); addp(A, sP, sWS, PX_OFF + 63 * PX_SEG)
        O = tok.tt_finish(A, 'sf', sMEM, False)
        A.I(f'''
        s_mov_b64 exec, {s(tok.TT.sM5,2)}
        s_cmp_eq_u32 {s(sEA)}, 0
        s_cbranch_scc1 L_sf_slow
        global_store_dwordx4 {v(tok.TT.vPX)}, {v(O,4)}, {s(sP,2)}
        s_endpgm
L_sf_slow:
        global_store_dwordx4 {v(tok.TT.vPX)}, {v(O,4)}, {s(sP,2)} sc1
        ''')
    A.I('s_endpgm')

def value(A, prof=0):
    L_MEM, L_RB, L_WL, L_VB = 0, 8192, 16384, 131072
    DEC = 'dec' in OPT
    H3R, NR = 136, NRES
    RBW = 32 * 48
    vIDX, vG0, vCK, vPR, vAF, vWL, vV0, vV1, vPM, vPX, vSN, vRWR, vRRD, vMS, vZ, vDUM, vFL, vVB, vVP = range(1, 20)
    ARING, HRING, VXF, WACC, WX, WY, OX, OY, PF, WV = 20, 36, 60, 92, 108, 112, 116, 120, 124, 176
    lg = Cnt(A, 'lgkmcnt', 15)
    def wreg(hh, j):
        k = (hh * 14 + j) * 8
        return a_(k, 8) if k < 256 else v(WV + k - 256, 8)
    A.label('L_value')
    A.I(f's_load_dwordx2 {s(sX0,2)}, s[0:1], {KA_OUT}\n s_waitcnt lgkmcnt(0)')
    chain_common(A)
    T = 20
    A.I(f's_mov_b32 {s(sTMP)}, {s(sROLE)}\n s_sub_u32 {s(sROLE)}, {s(sROLE)}, 16')
    idx_setup(A, vIDX, T)
    mem_poll_setup(A, vG0, vPR, T + 4, DEC)
    A.I(f'''
    v_lshlrev_b32 {v(vAF)}, 7, {v(T+1)}
    v_lshl_add_u32 {v(vAF)}, {v(T+2)}, 4, {v(vAF)}
    s_mul_i32 s40, {s(sW)}, 28672
    s_add_u32 s40, s40, {L_WL}
    v_lshl_add_u32 {v(vWL)}, v0, 4, s40
    s_lshl_b32 s40, {s(sW)}, 13
    v_lshl_add_u32 {v(vV0)}, v0, 4, s40
    v_add_u32 {v(vV1)}, 4096, {v(vV0)}
    s_mul_i32 s40, {s(sW)}, 2560
    v_and_b32 {v(T+5)}, 1, {v(T+1)}
    v_lshl_add_u32 {v(vPX)}, v0, 4, s40
    v_lshl_add_u32 {v(vPM)}, v0, 2, s40
    v_lshlrev_b32 {v(vFL)}, 2, {v(T)}
    s_and_b32 s41, {s(sW)}, 1
    s_lshl_b32 s41, s41, 13
    v_lshl_add_u32 {v(vVP)}, v0, 4, s41
    s_add_u32 {s(sXB)}, s41, {L_VB}
    v_lshl_add_u32 {v(vVB)}, v0, 4, {s(sXB)}
    s_mul_i32 s40, {s(sW)}, {RBW}
    s_add_u32 s40, s40, {L_RB}
    v_lshrrev_b32 {v(T+7)}, 5, v0
    v_lshl_add_u32 {v(T+7)}, {v(T+7)}, 4, {v(T)}
    v_mul_u32_u24 {v(T+7)}, 48, {v(T+7)}
    v_lshl_add_u32 {v(T+7)}, {v(T+5)}, 4, {v(T+7)}
    v_add_u32 {v(vRWR)}, s40, {v(T+7)}
    s_and_b32 s40, {s(sW)}, 1
    s_lshl_b32 s40, s40, 4
    s_lshr_b32 s41, {s(sW)}, 1
    s_lshl_b32 s41, s41, 2
    s_add_u32 s40, s40, s41
    v_bfe_u32 {v(T+7)}, v0, 2, 1
    v_lshlrev_b32 {v(T+7)}, 3, {v(T+7)}
    v_and_b32 {v(T+8)}, 3, v0
    v_add3_u32 {v(T+7)}, {v(T+7)}, {v(T+8)}, s40
    v_mul_u32_u24 {v(T+7)}, 48, {v(T+7)}
    v_lshrrev_b32 {v(T+8)}, 3, v0
    v_lshl_add_u32 {v(T+7)}, {v(T+8)}, 2, {v(T+7)}
    v_add_u32 {v(vRRD)}, {L_RB}, {v(T+7)}
    s_lshl_b32 s40, {s(sROLE)}, 9
    s_lshl_b32 s41, {s(sW)}, 7
    s_add_u32 s40, s40, s41
    v_lshl_add_u32 {v(vMS)}, v0, 1, s40
    v_mov_b32 {v(vSN)}, {SENT}
    ''')
    addp(A, sMEM, sWS, MEMS_OFF); addp(A, 40, sMEM, MEM_SLOT); addp(A, 42, sMEM, 2 * MEM_SLOT)
    A.I(f'''
    global_store_short {v(vMS)}, {v(vSN)}, s[40:41] sc1
    global_store_short {v(vMS)}, {v(vSN)}, s[42:43] sc1
    ''')
    xcc_publish(A, sTMP, T + 12)
    warm(A, 'L_va_step', 'L_vb_step', T + 12)
    A.I(f'''
    s_mul_i32 s40, {s(sW)}, {4*MF_HEAD}
    s_mul_i32 s41, {s(sROLE)}, {14*2048}
    s_add_u32 s40, s40, s41
    s_cmp_ge_u32 {s(sROLE)}, 8
    s_cselect_b32 {s(sTMP)}, 1, 0
    v_lshlrev_b32 {v(T+8)}, 4, v0
    ''')
    addp(A, sWT, sWS, MF_OFF + MF_MAT); addps(A, sWT, sWT, 40)
    addp(A, sVX, sWS, PF_OFF + 4096)
    A.I(f'''
    s_lshl_b32 s40, {s(sTMP)}, 11
    s_lshl_b32 s41, {s(sW)}, 9
    s_add_u32 s40, s40, s41
    v_bfe_u32 {v(T+12)}, v0, 3, 2
    v_lshl_add_u32 {v(T+12)}, {v(T+12)}, 7, s40
    v_lshl_add_u32 {v(T+12)}, {v(T+2)}, 2, {v(T+12)}
    s_mov_b32 s46, 15
L_va_w:
    s_sleep {WS}
    global_load_dword {v(T+13)}, {v(T+12)}, {s(sVX,2)} sc1
    ''')
    bud(A)
    A.I(f's_waitcnt vmcnt(0)\n v_cmp_eq_u32 vcc, 0, {v(T+13)}\n s_mov_b32 s47, vcc_lo')
    for hh in (3, 0, 1, 2):
        A.I(f'''
        s_bitcmp0_b32 s46, {hh}
        s_cbranch_scc1 L_va_w{hh}
        s_and_b32 s40, s47, {0xff << (8*hh)}
        s_cbranch_scc1 L_va_w{hh}
        s_bitset0_b32 s46, {hh}
        s_waitcnt vmcnt({DEPV})
        ''')
        addp(A, 40, sWT, hh * MF_HEAD)
        for q in range(28):
            if hh == 3: dst = v(60 + 4 * q, 4)
            else:
                k = 112 * hh + 4 * q; dst = a_(k, 4) if k < 256 else v(WV + k - 256, 4)
            A.I(f'global_load_dwordx4 {dst}, {v(T+8)}, s[40:41] offset:{(q%4)*1024} {WLD}')
            if q % 4 == 3 and q < 27: addp(A, 40, 40, 4096)
        A.label(f'L_va_w{hh}')
    A.I(f's_cmp_lg_u32 s46, 0\n s_cbranch_scc1 L_va_w\n s_waitcnt vmcnt(0)')
    tl(A, 1, 4, T + 14)
    for k in range(2 * NR, 28): A.I(f'ds_write_b128 {v(vWL)}, {v(60+4*k,4)} offset:{k*1024}')
    A.I('s_waitcnt lgkmcnt(0)')
    for k in range(8 * NR): A.I(f'v_mov_b32 {v(H3R+k)}, {v(60+k)}')
    if 'vassist' in OPT: assist(A, 'va_as', sROLE, T + 12)
    xcc_check(A, 'va', T + 12)
    addp(A, sP, sWS, PS_OFF); addp(A, sFL, sWS, FL_OFF); addp(A, sMT, sWS, MEMT_OFF + (62 if tok.FIN else 63) * MEMT_SLOT)
    A.I(f's_mul_i32 s40, {s(sROLE)}, {VX_SC}'); addp(A, sVX, sWS, VX_OFF); addps(A, sVX, sVX, 40)
    A.I('s_waitcnt vmcnt(0) lgkmcnt(0)')
    tl(A, 1, 1, T)
    def flagwait(tag, loaded):
        if loaded:
            A.I(f'v_cmp_eq_u32 vcc, 0, {v(vDUM)}\n s_cbranch_vccz L_{tag}_ok')
        A.I(f'L_{tag}:\n global_load_dword {v(vDUM)}, {v(vFL)}, {s(sFL,2)} sc1')
        bud(A)
        A.I(f'''
        s_waitcnt vmcnt(0)
        v_cmp_eq_u32 vcc, 0, {v(vDUM)}
        s_cbranch_vccnz L_{tag}
L_{tag}_ok:
        ''')
    flagwait('va_f0', False)
    tl(A, 1, 3, T)
    addp(A, sFL, sFL, 256)
    if prof:
        A.I(f's_add_u32 s40, {s(sROLE)}, 16\n s_lshl_b32 s40, s40, 2\n s_add_u32 s40, s40, {s(sW)}\n s_lshl_b32 s40, s40, 12')
        addp(A, sDBG, sWS, END_OFF); addps(A, sDBG, sDBG, 40)
    def vxload(k, force=False):
        if 'novx' in OPT and not force: return
        hh, t = k >> 1, k & 1
        A.I(f'global_load_dwordx4 {v(VXF+16*t+4*hh,4)}, {v(vV0 if hh < 2 else vV1)}, {s(sVX,2)} offset:{(hh&1)*2048+t*1024} sc1')
    def vxearly(tag):
        if not DEC:
            for k in range(VE): vxload(k)
            return
        A.I(f's_cmp_lt_u32 {s(sW)}, 2\n s_cbranch_scc1 L_{tag}')
        addp(A, 40, sVX, 4096)
        for k in range(8):
            A.I(f's_add_u32 m0, {s(sXB)}, {(k>>2)*4096}')
            A.I(f'global_load_lds_dwordx4 {v(vVP)}, {s(sVX if k < 4 else 40,2)} offset:{(k&3)*1024} sc1')
        for k in range(8): vxload(k)
        A.label(f'L_{tag}')
    def hslot(j): return [HRING, HRING + 8, HRING + 16, 168][(j - NR) % HD]
    def rdh(j):
        if j < NR or j >= 14: return
        for k in range(2):
            A.I(f'ds_read_b128 {v(hslot(j)+4*k,4)}, {v(vWL)} offset:{(2*j+k)*1024}'); lg.add(('h', j))
    def rda(j):
        A.I(f'ds_read_b128 {v(ARING+4*(j%4),4)}, {v(vAF)} offset:{j*512}'); lg.add(('a', j))
    def prep_():
        for k in range(16): A.I(f'v_mov_b32 {v(WACC+k)}, 0')
        for j in range(NR, NR + HD - 1): rdh(j)
    for k in range(8): A.I(f'v_mov_b32 {v(OX+k)}, 0')
    vxearly('va_e0')
    if 'novx' in OPT:
        for k in range(8): vxload(k, True)
    prep_()
    P2, AC, BP, G, vA, vF2, vW, vRd, vO, vBa, vGa = 176, 216, 232, 236, 116, 117, 118, 119, 120, 121, 122
    def fin_setup():
        U = 124
        A.I(f'''
        v_min_u32 {v(U)}, 38, v0
        v_cmp_lt_u32 vcc, 22, {v(U)}
        v_cndmask_b32 {v(U+1)}, 0, 9, vcc
        v_add_lshl_u32 {v(U)}, {v(U)}, {v(U+1)}, 2
        v_min_u32 {v(vF2)}, {4*38}, {v(U)}
        s_mul_i32 s40, {s(sW)}, 10240
        v_lshl_add_u32 {v(vA)}, v0, 4, s40
        v_and_b32 {v(U)}, 15, v0
        v_lshrrev_b32 {v(U+1)}, 4, v0
        s_mul_i32 s40, {s(sW)}, 4608
        s_add_u32 s40, s40, {L_WL}
        v_mul_u32_u24 {v(U+2)}, 144, {v(U)}
        v_lshl_add_u32 {v(U+2)}, {v(U+1)}, 4, {v(U+2)}
        v_add_u32 {v(vW)}, s40, {v(U+2)}
        v_lshrrev_b32 {v(U)}, 3, v0
        v_lshl_add_u32 {v(U)}, {s(sW)}, 3, {v(U)}
        v_and_b32 {v(U+1)}, 7, v0
        v_mul_u32_u24 {v(U+2)}, 144, {v(U)}
        v_lshl_add_u32 {v(U+2)}, {v(U+1)}, 4, {v(U+2)}
        v_add_u32 {v(vRd)}, {L_WL}, {v(U+2)}
        s_lshl_b32 s40, {s(sROLE)}, 6
        v_mul_u32_u24 {v(U+2)}, 896, {v(U)}
        v_lshl_add_u32 {v(U+2)}, {v(U+1)}, 3, {v(U+2)}
        v_add_u32 {v(vO)}, s40, {v(U+2)}
        v_lshlrev_b32 {v(vBa)}, 1, {v(vO)}
        v_lshlrev_b32 {v(vGa)}, 2, {v(U)}
        ''')
    A.I(f's_cmp_eq_u32 {s(sEA)}, 0\n s_cbranch_scc1 L_vb_step')
    def loop(tg, sc):
        if ALV >= 0:
            A.raw('.p2align 6, , 63')
            for _ in range(ALV): A.I('s_nop 0')
        A.label(f'L_{tg}_step')
        stamp(A, 0, prof)
        (mem_poll_half if DEC else mem_poll)(A, tg, vG0, vPR, PF + 10)
        stamp(A, 1, prof)
        lg.clear()
        rda(0); rda(1); rda(2)
        addp(A, 40, sMEM, 3 * MEM_SLOT)
        A.I(f'global_store_short {v(vMS)}, {v(vSN)}, s[40:41] {sc}')
        for j in range(14):
            lg.wait(('a', j))
            for hh in range(4):
                if hh == 3: lg.wait(('h', j))
                w = wreg(hh, j) if hh < 3 else v(H3R + 8 * j, 8) if j < NR else v(hslot(j), 8)
                A.I(f'v_smfmac_f32_16x16x64_bf16 {v(WACC+4*hh,4)}, {v(ARING+4*(j%4),4)}, {w}, {v(vIDX)}' if 'now' not in OPT else 's_nop 3')
                if hh == 0 and j >= NR: rdh(j + HD - 1)
                if hh == 1 and j + 3 < 14: rda(j + 3)
                n_ = 4 * j + hh
                if n_ % VS == VS // 2 and n_ // VS < 8 - VE and not DEC: vxload(n_ // VS + VE)
                if n_ % VS == VS // 2 and n_ // VS == 8 - VE: A.I(f'global_load_dword {v(vDUM)}, {v(vFL)}, {s(sFL,2)} sc1')
                if hh == 2:
                    if j == 0: A.I(f'v_mov_b32 {v(vCK)}, {v(ARING)}')
                    else: A.I(f'v_max_u32 {v(vCK)}, {v(vCK)}, {v(ARING+4*(j%4))}')
                if hh == 3 and j == 13: A.I(f'v_cmp_eq_u32 vcc, {s(sSENT)}, {v(vCK)}')
        A.I(f's_cbranch_vccnz L_{tg}_redo')
        if tok.FIN:
            A.I(f'''
            s_cmp_lt_u32 {s(sSTEP)}, {NSTEP-3}
            s_cbranch_scc1 L_{tg}_nr
            s_cmp_eq_u32 {s(sSTEP)}, {NSTEP}
            s_cbranch_scc1 L_va_fin
            v_cmp_eq_u32 vcc, 0, {v(PF+11)}
            s_cbranch_vccz L_{tg}_nr
            ''')
            addp(A, 40, sWS, FL_OFF + 63 * 256 + 64)
            A.I(f'L_{tg}_ex:\n global_load_dword {v(PF+11)}, {v(vFL)}, s[40:41] sc1')
            bud(A)
            A.I(f's_waitcnt vmcnt(0)\n v_cmp_eq_u32 vcc, 0, {v(PF+11)}\n s_cbranch_vccnz L_{tg}_ex\nL_{tg}_nr:')
        if DEC:
            A.I(f's_waitcnt vmcnt(0)\n s_barrier\n s_cmp_ge_u32 {s(sW)}, 2\n s_cbranch_scc1 L_{tg}_nv')
            for k in range(8): A.I(f'ds_read_b128 {v(VXF+16*(k&1)+4*(k>>1),4)}, {v(vVB)} offset:{k*1024}')
            A.label(f'L_{tg}_nv')
        for k in range(2):
            for p in range(2):
                A.I(f'v_cvt_pk_bf16_f32 {v(WX+2*k+p)}, {v(WACC+8*p+2*k)}, {v(WACC+8*p+2*k+1)}')
                A.I(f'v_cvt_pk_bf16_f32 {v(WY+2*k+p)}, {v(WACC+8*p+4+2*k)}, {v(WACC+8*p+4+2*k+1)}')
        for k in range(4): A.I(f'v_permlane32_swap_b32 {v(WX+k)}, {v(WY+k)}')
        if DEC: A.I('s_waitcnt lgkmcnt(0)')
        stamp(A, 2, prof)
        if prof: A.I('s_waitcnt vmcnt(0)'); stamp(A, 6, prof)
        F = PF
        if 'nospec' in OPT:
            for k in range(8): A.I(f'v_mov_b32 {v(OX+k)}, 0')
        delay(A, PS_)
        A.I(f'''
L_{tg}_pp:
        global_load_dwordx4 {v(F,4)}, {v(vPX)}, {s(sP,2)} sc1
        global_load_dwordx4 {v(F+4,4)}, {v(vPX)}, {s(sP,2)} offset:1024 sc1
        global_load_dword {v(F+8)}, {v(vPM)}, {s(sP,2)} offset:2048 sc1
        global_load_dword {v(F+9)}, {v(vPM)}, {s(sP,2)} offset:2304 sc1
        ''')
        bud(A)
        if 'nospec' in OPT:
            A.I(f'''
            s_waitcnt vmcnt(0)
            v_max3_u32 {v(vCK)}, {v(F)}, {v(F+4)}, {v(F+8)}
            v_max_u32 {v(vCK)}, {v(vCK)}, {v(F+9)}
            v_cmp_eq_u32 vcc, {s(sSENT)}, {v(vCK)}
            s_cbranch_vccnz L_{tg}_pp
            v_smfmac_f32_16x16x64_bf16 {v(OX,4)}, {v(F,4)}, {v(VXF,8)}, {v(vIDX)}
            v_smfmac_f32_16x16x64_bf16 {v(OY,4)}, {v(F,4)}, {v(VXF+16,8)}, {v(vIDX)}
            v_smfmac_f32_16x16x64_bf16 {v(OX,4)}, {v(F+4,4)}, {v(VXF+8,8)}, {v(vIDX)}
            v_smfmac_f32_16x16x64_bf16 {v(OY,4)}, {v(F+4,4)}, {v(VXF+24,8)}, {v(vIDX)}
            v_smfmac_f32_16x16x32_bf16 {v(OX,4)}, {v(F+8,2)}, {v(WX,4)}, {v(vIDX)}
            v_smfmac_f32_16x16x32_bf16 {v(OY,4)}, {v(F+8,2)}, {v(WY,4)}, {v(vIDX)}
            ''')
        elif 'spec2' in OPT:
            for k in range(8): A.I(f'v_mov_b32 {v(OX+k)}, 0')
            A.I(f'''
            s_waitcnt vmcnt(0)
            v_max3_u32 {v(vCK)}, {v(F)}, {v(F+4)}, {v(F+8)}
            v_max_u32 {v(vCK)}, {v(vCK)}, {v(F+9)}
            v_cmp_eq_u32 vcc, {s(sSENT)}, {v(vCK)}
            v_smfmac_f32_16x16x64_bf16 {v(OX,4)}, {v(F,4)}, {v(VXF,8)}, {v(vIDX)}
            v_smfmac_f32_16x16x64_bf16 {v(OY,4)}, {v(F,4)}, {v(VXF+16,8)}, {v(vIDX)}
            s_cbranch_vccnz L_{tg}_pp
            v_smfmac_f32_16x16x64_bf16 {v(OX,4)}, {v(F+4,4)}, {v(VXF+8,8)}, {v(vIDX)}
            v_smfmac_f32_16x16x64_bf16 {v(OY,4)}, {v(F+4,4)}, {v(VXF+24,8)}, {v(vIDX)}
            v_smfmac_f32_16x16x32_bf16 {v(OX,4)}, {v(F+8,2)}, {v(WX,4)}, {v(vIDX)}
            v_smfmac_f32_16x16x32_bf16 {v(OY,4)}, {v(F+8,2)}, {v(WY,4)}, {v(vIDX)}
            ''')
        else:
            for k in range(8): A.I(f'v_mov_b32 {v(OX+k)}, 0')
            A.I(f'''
            s_waitcnt vmcnt(3)
            v_smfmac_f32_16x16x64_bf16 {v(OX,4)}, {v(F,4)}, {v(VXF,8)}, {v(vIDX)}
            v_smfmac_f32_16x16x64_bf16 {v(OY,4)}, {v(F,4)}, {v(VXF+16,8)}, {v(vIDX)}
            s_waitcnt vmcnt(0)
            v_max3_u32 {v(vCK)}, {v(F)}, {v(F+4)}, {v(F+8)}
            v_smfmac_f32_16x16x64_bf16 {v(OX,4)}, {v(F+4,4)}, {v(VXF+8,8)}, {v(vIDX)}
            v_max_u32 {v(vCK)}, {v(vCK)}, {v(F+9)}
            v_smfmac_f32_16x16x64_bf16 {v(OY,4)}, {v(F+4,4)}, {v(VXF+24,8)}, {v(vIDX)}
            v_cmp_eq_u32 vcc, {s(sSENT)}, {v(vCK)}
            v_smfmac_f32_16x16x32_bf16 {v(OX,4)}, {v(F+8,2)}, {v(WX,4)}, {v(vIDX)}
            v_smfmac_f32_16x16x32_bf16 {v(OY,4)}, {v(F+8,2)}, {v(WY,4)}, {v(vIDX)}
            s_cbranch_vccnz L_{tg}_pp
            ''')
        stamp(A, 3, prof)
        stamp(A, 8, prof > 1)
        A.flush()
        for r in range(4): A.I(f'v_permlane32_swap_b32 {v(OX+r)}, {v(OY+r)}')
        A.I(f'''
        v_pk_add_f32 {v(OX,2)}, {v(OX,2)}, {v(OY,2)}
        v_pk_add_f32 {v(OX+2,2)}, {v(OX+2,2)}, {v(OY+2,2)}
        ds_write_b128 {v(vRWR)}, {v(OX,4)}
        ''')
        stamp(A, 9, prof > 1)
        for k in range(FC): A.I(f'v_mov_b32 {v(WACC+k)}, 0')
        A.I('s_waitcnt lgkmcnt(0)')
        stamp(A, 10, prof > 1)
        A.I('s_barrier')
        stamp(A, 11, prof > 1)
        Z = ARING + 4
        for k in range(4): A.I(f'ds_read_b32 {v(Z+k)}, {v(vRRD)} offset:{k*RBW}')
        for k in range(FC, FC + FD): A.I(f'v_mov_b32 {v(WACC+k)}, 0')
        addp(A, sMEM, sMEM, MEM_SLOT); addp(A, sP, sP, PS_SLOT)
        A.I('s_waitcnt lgkmcnt(0)')
        stamp(A, 12, prof > 1)
        A.I(f'''
        v_pk_add_f32 {v(Z,2)}, {v(Z,2)}, {v(Z+2,2)}
        v_add_f32 {v(Z)}, {v(Z)}, {v(Z+1)}
        v_cvt_pk_bf16_f32 {v(vZ)}, {v(Z)}, {v(Z)}
        ''')
        A.I(f'global_store_short {v(vMS)}, {v(vZ)}, {s(sMEM,2)} {sc}')
        stamp(A, 4, prof)
        A.I(f's_add_u32 {s(sSTEP)}, {s(sSTEP)}, 1')
        if not tok.FIN: A.I(f's_cmp_ge_u32 {s(sSTEP)}, {NSTEP}\n s_cbranch_scc1 L_va_end')
        flagwait(tg + '_f1', True)
        addp(A, sVX, sVX, 14 * VX_SC); addp(A, sFL, sFL, 256)
        vxearly(tg + '_e1')
        if tok.FIN:
            A.I(f's_cmp_lt_u32 {s(sSTEP)}, {NSTEP-3}\n s_cbranch_scc1 L_{tg}_nd\n s_cmp_eq_u32 {s(sSTEP)}, {NSTEP}\n s_cbranch_scc1 L_{tg}_fs')
            addp(A, 40, sWS, FL_OFF + 63 * 256 + 64)
            A.I(f'global_load_dword {v(PF+11)}, {v(vFL)}, s[40:41] sc1\n s_cmp_lg_u32 {s(sSTEP)}, {NSTEP-1}\n s_cbranch_scc1 L_{tg}_nd')
            if DIR: A.I(f'global_store_short {v(vMS)}, {v(vZ)}, {s(sMT,2)} sc1')
            A.I(f's_branch L_{tg}_nd\nL_{tg}_fs:')
            tl(A, 1, 2, T)
            fin_setup()
            A.label(f'L_{tg}_nd')
        lg.clear(); prep_()
        stamp(A, 5, prof)
        stamp_flush(A, prof)
        A.I(f's_branch L_{tg}_step')
        A.label(f'L_{tg}_redo')
        if prof: A.I(f's_add_u32 {s(sreg(15))}, {s(sreg(15))}, 1')
        A.I('s_waitcnt vmcnt(0) lgkmcnt(0)\n s_nop 15\n s_barrier')
        lg.clear(); prep_()
        A.I(f's_branch L_{tg}_mp')
    loop('va', ''); loop('vb', 'sc1')
    A.label('L_va_end')
    A.I(f'global_store_short {v(vMS)}, {v(vZ)}, {s(sMT,2)} sc1')
    tl(A, 1, 2, T)
    stamp_flush(A, prof)
    A.I('s_endpgm')
    if not tok.FIN: return
    A.label('L_va_fin')
    A.I('s_barrier\n s_nop 7')
    for hh in range(4):
        for k in range(2): A.I(f'v_cvt_pk_bf16_f32 {v(WX+2*hh+k)}, {v(WACC+4*hh+2*k)}, {v(WACC+4*hh+2*k+1)}')
    for k in range(4): A.I(f'v_permlane32_swap_b32 {v(WX+k)}, {v(WY+k)}')
    for k in (0, 1, 4, 5): A.I(f'v_permlane16_swap_b32 {v(WX+k)}, {v(WX+k+2)}')
    addp(A, sFL, sWS, FL_OFF + 63 * 256 + 64); addp(A, sP, sWS, PX_OFF + 63 * PX_SEG); addp(A, 42, sP, 4096); addp(A, 46, sP, 8192)
    A.I(f'v_mov_b32 {v(vFL)}, {v(vF2)}')
    flagwait('va_f2', False)
    addp(A, 40, sWS, BP_OFF); A.I(f'global_load_dwordx4 {v(BP,4)}, {v(vBa)}, s[40:41] sc1')
    addp(A, 40, sWS, G_OFF + 63 * 128); A.I(f'global_load_dword {v(G)}, {v(vGa)}, s[40:41] sc1')
    addp(A, sX0, sX0, 63 * 32 * 896)
    A.label('L_va_fp')
    for i in range(10): A.I(f'global_load_dwordx4 {v(P2+4*i,4)}, {v(vA)}, {s([sP, 42, 46][i>>2],2)} offset:{(i%4)*1024} sc1')
    bud(A)
    A.I('s_waitcnt vmcnt(0)')
    A.I(f'v_max_u32 {v(vCK)}, {v(P2)}, {v(P2+4)}')
    for i in range(2, 10, 2): A.I(f'v_max3_u32 {v(vCK)}, {v(vCK)}, {v(P2+4*i)}, {v(P2+4*i+4)}')
    A.I(f'v_cmp_eq_u32 vcc, {s(sSENT)}, {v(vCK)}')
    n = 0
    for k in range(5):
        for tt in range(2):
            for ct in range(2):
                d = v(AC + 8*ct + 4*tt, 4)
                a = v(VXF + 16*ct + 4*k, 4) if k < 4 else v(WY if ct else WX, 4)
                A.I(f'v_mfma_f32_16x16x32_bf16 {d}, {a}, {v(P2+8*k+4*tt,4)}, {d if k else 0}')
                n += 1
                if n == 2: A.I('s_cbranch_vccnz L_va_fp')
    for tt in range(2):
        for ct in range(2): A.I(f'ds_write_b128 {v(vW)}, {v(AC+8*ct+4*tt,4)} offset:{tt*16*144 + ct*64}')
    A.I('s_waitcnt lgkmcnt(0)\n s_barrier')
    for k in range(4): A.I(f'ds_read_b128 {v(P2+4*k,4)}, {v(vRd)} offset:{k*4608}')
    A.I('s_waitcnt lgkmcnt(0)')
    for a, b in ((0, 4), (8, 12), (0, 8)):
        for k in (0, 2): A.I(f'v_pk_add_f32 {v(P2+a+k,2)}, {v(P2+a+k,2)}, {v(P2+b+k,2)}')
    for k in range(4): A.I(f'v_fmac_f32 {v(BP+k)}, {v(G)}, {v(P2+k)}')
    A.I(f'''
    v_cvt_pk_bf16_f32 {v(BP)}, {v(BP)}, {v(BP+1)}
    v_cvt_pk_bf16_f32 {v(BP+1)}, {v(BP+2)}, {v(BP+3)}
    global_store_dwordx2 {v(vO)}, {v(BP,2)}, {s(sX0,2)} {tok.OST}
    ''')
    if TL['on']: A.I('s_waitcnt vmcnt(0)')
    tl(A, 1, 7, T)
    A.I('s_endpgm')

def helper(A):
    vG0, vX, vP, vM, D = 1, 2, 3, 4, 8
    A.label('L_helper')
    A.I(f's_load_dwordx2 {s(sX0,2)}, s[0:1], {KA_X}\n s_waitcnt lgkmcnt(0)')
    chain_common(A)
    xcc_publish(A, sROLE, 20)
    A.I(f'''
    s_mul_i32 {s(sLB)}, {s(sW)}, 1792
    v_lshlrev_b32 {v(vG0)}, 4, v0
    v_add_u32 {v(vG0)}, {s(sLB)}, {v(vG0)}
    s_mov_b32 {s(sM48)}, -1
    s_mov_b32 {s(sM48+1)}, 0xffff
    s_mul_i32 s40, {s(sW)}, 7168
    v_min_u32 {v(vX)}, 55, v0
    v_lshl_add_u32 {v(vX)}, {v(vX)}, 7, s40
    s_mul_i32 s40, {s(sW)}, 2560
    v_min_u32 {v(vP)}, 19, v0
    v_lshl_add_u32 {v(vP)}, {v(vP)}, 7, s40
    v_min_u32 {v(vM)}, 13, v0
    v_lshl_add_u32 {v(vM)}, {v(vM)}, 7, {s(sLB)}
    v_add_u32 {v(vM)}, {4*MEM_SLOT}, {v(vM)}
    v_add_u32 {v(vP)}, {PS_SLOT * (2 if 'mtouch' in OPT else 0)}, {v(vP)}
    v_mov_b32 {v(D+4)}, 0
    v_mov_b32 {v(D+5)}, 0
    v_mov_b32 {v(D+6)}, 0
    v_mov_b32 {v(D+7)}, 0
    ''')
    xcc_check(A, 'he', 20)
    for k in range(2):
        addp(A, 40, sWS, PS_OFF + (k - 2) * PS_SLOT); A.I(f'global_load_dword v21, {v(vP)}, s[40:41] sc1')
    for k in range(4):
        addp(A, 40, sWS, MEMS_OFF + (k - 4) * MEM_SLOT); A.I(f'global_load_dword v21, {v(vM)}, s[40:41] sc1')
    wait_tiles(A, 'he', 20, 1, 'all', None, 8)
    A.I(f's_mov_b32 {s(sTMP)}, {AH0}'); assist(A, 'he_as', sTMP, 20)
    addp(A, sMEM, sWS, MEMS_OFF); addp(A, sMT, sWS, MEMT_OFF); addp(A, sP, sWS, PS_OFF)
    addp(A, sX0, sX0, XI_SEG)
    A.I(f'''
    global_load_dword v20, {v(vX)}, {s(sX0,2)}
    global_load_dword v21, {v(vP)}, {s(sP,2)} sc1
    ''')
    addp(A, sX0, sX0, XI_SEG); addp(A, sP, sP, PS_SLOT)
    if 'nox2' not in OPT:
        A.I(f'global_load_dword v20, {v(vX)}, {s(sX0,2)}'); addp(A, sX0, sX0, XI_SEG)
    A.I(f'''
L_he_step:
    s_sleep {HSLEEP}
    global_load_dwordx4 {v(D,4)}, {v(vG0)}, {s(sMEM,2)} sc1
    s_mov_b64 exec, {s(sM48,2)}
    global_load_dwordx4 {v(D+4,4)}, {v(vG0)}, {s(sMEM,2)} offset:1024 sc1
    s_mov_b64 exec, -1
    ''')
    bud(A)
    A.I(f'''
    s_waitcnt vmcnt(0)
    v_max3_u32 v16, {v(D)}, {v(D+1)}, {v(D+2)}
    v_max3_u32 v16, v16, {v(D+3)}, {v(D+4)}
    v_max3_u32 v16, v16, {v(D+5)}, {v(D+6)}
    v_max_u32 v16, v16, {v(D+7)}
    v_cmp_eq_u32 vcc, {s(sSENT)}, v16
    s_cbranch_vccnz L_he_step
    s_add_u32 {s(sSTEP)}, {s(sSTEP)}, 1
    global_store_dwordx4 {v(vG0)}, {v(D,4)}, {s(sMT,2)} sc1
    s_mov_b64 exec, {s(sM48,2)}
    global_store_dwordx4 {v(vG0)}, {v(D+4,4)}, {s(sMT,2)} offset:1024 sc1
    s_mov_b64 exec, -1
    global_load_dword v21, {v(vP)}, {s(sP,2)} sc1
    {f'global_load_dword v22, {v(vM)}, {s(sMEM,2)} sc1' if 'mtouch' in OPT else ''}
    s_cmp_ge_u32 {s(sSTEP)}, {NSTEP - ('nox2' not in OPT)}
    s_cbranch_scc1 L_he_nox
    global_load_dword v20, {v(vX)}, {s(sX0,2)}
L_he_nox:
    ''')
    addp(A, sX0, sX0, XI_SEG); addp(A, sP, sP, PS_SLOT); addp(A, sMEM, sMEM, MEM_SLOT); addp(A, sMT, sMT, MEMT_SLOT)
    A.I(f'''
    s_cmp_le_u32 {s(sSTEP)}, {NSTEP - 1 - (tok.FIN and DIR)}
    s_cbranch_scc1 L_he_step
    ''')
    if tok.FIN:
        addp(A, sFL, sWS, FL_OFF + 63 * 256 + 64)
        A.I(f'''
        v_min_u32 v20, 22, v0
        v_lshlrev_b32 v20, 2, v20
L_he_f:
        s_sleep 2
        global_load_dword v21, v20, {s(sFL,2)} sc1
        ''')
        bud(A)
        A.I(f'''
        s_waitcnt vmcnt(0)
        v_cmp_eq_u32 vcc, 0, v21
        s_cbranch_vccnz L_he_f
        s_mul_i32 s40, {s(sW)}, 10240
        v_lshl_add_u32 v20, v0, 7, s40
        v_min_u32 v22, 15, v0
        v_lshl_add_u32 v22, v22, 7, s40
        s_mul_i32 s40, {s(sW)}, 14336
        v_min_u32 v23, 55, v0
        v_lshl_add_u32 v23, v23, 7, s40
        ''')
        addp(A, 40, sWS, PX_OFF + 63 * PX_SEG); addp(A, 42, 40, 8192)
        A.I('global_load_dword v21, v20, s[40:41] sc1\n global_load_dword v21, v22, s[42:43] sc1')
        addp(A, 40, sWS, BP_OFF); addp(A, 42, 40, 7168)
        A.I('global_load_dword v21, v23, s[40:41] sc1\n global_load_dword v21, v23, s[42:43] sc1')
        addp(A, 40, sWS, G_OFF + 63 * 128)
        A.I('v_mov_b32 v20, 0\n global_load_dword v21, v20, s[40:41] sc1\n s_waitcnt vmcnt(0)')
    A.I('s_endpgm')

def fetcher(A):
    vV, vF, vM = 1, 2, 3
    NL = PFL
    per = 64 // NL
    A.label('L_fetch')
    chain_common(A)
    xcc_publish(A, sROLE, 20)
    A.I(f'''
    v_lshrrev_b32 v4, {NL.bit_length()-1}, v0
    v_and_b32 v5, {NL-1}, v0
    s_lshl_b32 s40, {s(sW)}, 13
    v_lshl_add_u32 v5, v5, 7, s40
    v_and_b32 {v(vF)}, 15, v0
    v_lshlrev_b32 {v(vF)}, 2, {v(vF)}
    v_mov_b32 {v(vM)}, 4000
    ''')
    n = (14 + per - 1) // per
    for i in range(n):
        A.I(f'v_add_u32 v6, {per*i}, v4\n v_min_u32 v6, 13, v6\n v_lshl_add_u32 {v(8+i)}, v6, 15, v5')
    xcc_check(A, 'fe', 30)
    addp(A, sMEM, sWS, MEMS_OFF); addp(A, sVX, sWS, VX_OFF + PFA * 14 * VX_SC); addp(A, sFL, sWS, FL_OFF + PFA * 256)
    A.I(f'''
L_fe_step:
    global_load_dword v24, {v(vM)}, {s(sMEM,2)} sc1
    global_load_dword v25, {v(vF)}, {s(sFL,2)} sc1
    ''')
    bud(A)
    A.I(f'''
    s_waitcnt vmcnt(0)
    v_cmp_eq_u32 vcc, {s(sSENT)}, v24
    v_cmp_eq_u32 s[40:41], 0, v25
    s_or_b64 vcc, vcc, s[40:41]
    s_cbranch_vccz L_fe_go
    s_sleep 2
    s_branch L_fe_step
L_fe_go:
    ''')
    for i in range(n): A.I(f'global_load_dword {v(26)}, {v(8+i)}, {s(sVX,2)} sc1')
    addp(A, sMEM, sMEM, MEM_SLOT); addp(A, sVX, sVX, 14 * VX_SC); addp(A, sFL, sFL, 256)
    A.I(f'''
    s_add_u32 {s(sSTEP)}, {s(sSTEP)}, 1
    s_cmp_lt_u32 {s(sSTEP)}, {NSTEP - PFA}
    s_cbranch_scc1 L_fe_step
    s_endpgm
    ''')

def spare(A):
    A.label('L_spare')
    A.I(f's_mov_b32 {s(sTMP)}, {AH1}'); assist(A, 'sp_as', sTMP, 20)
    A.I('s_endpgm')
```

```python
NSEG = 64
MF_OFF   = 0
MF_HEAD  = 14 * 14 * 2048
MF_MAT   = 16 * MF_HEAD
VX_OFF   = MF_OFF + 2 * MF_MAT
VX_SC    = 32768
MEM_SLOT = 8192
MEMS_OFF = VX_OFF + NSEG * 14 * VX_SC
MEMT_OFF = MEMS_OFF + 70 * MEM_SLOT
MEMT_SLOT = 7168
PS_OFF   = MEMT_OFF + 64 * MEMT_SLOT
PS_SLOT  = 10240
G_OFF    = PS_OFF + 70 * PS_SLOT
FL_OFF   = G_OFF + 8192
PF_OFF   = FL_OFF + NSEG * 256
F2_OFF   = PF_OFF + 8192 + int(__import__('os').environ.get('PAD0', '0'))
XI_SEG   = 28672
import os
PAD = int(os.environ.get('PAD', '0')); PAD0 = int(os.environ.get('PAD0', '0'))
HI_OFF   = F2_OFF + NSEG * 1024 + PAD
HI_SEG   = 56 * 2048
PX_OFF   = HI_OFF + NSEG * HI_SEG
PX_SEG   = 40 * 1024
WT_OFF   = PX_OFF + NSEG * PX_SEG
WT_SEG   = 4 * 28 * 1024
FX_OFF   = WT_OFF + NSEG * WT_SEG
BP_OFF   = FX_OFF + 16 * 40960
END_OFF  = BP_OFF + 32 * 1792
SENT = 0xFFBFFFBF
P0 = [0, 4, 7, 11]
P3 = [3, 3, 10, 10]
LAG = 5
L3T = [1, 2, 3, 4, 5, 6, 7]
def score_seq():
    seq = []
    for t in range(14 + LAG):
        if t < 14: seq += [(0, t), (1, t)]
        if t in L3T: seq.append((3, L3T.index(t)))
        if t >= LAG: seq.append((2, t - LAG))
    return seq
if __name__ == '__main__':
    for k, x in list(globals().items()):
        if k.endswith('_OFF') or k.endswith('_END'): print(k, x, x % 4096)
```

```python
from common import *
PRE = 1
MST = 'sc1'
TOUCH = 0
TNT = ''
LDA = 'nt'
LDNT = 'nt'
DB_INIT, DB_XCC = 192, 224
sW, sWS, sDB = 4, 8, 96
BUDGET = 1 << 20

def spin(A, tag, load, regs, sleep=2):
    A.I(f'''
    s_mov_b32 s42, 0
L_{tag}_rp:
    {load}
    s_add_u32 s42, s42, 1
    s_cmp_gt_u32 s42, {BUDGET}
    s_cbranch_scc1 L_bail
    s_waitcnt vmcnt(0)
    ''')
    r = regs[0]
    for k in regs[1:]: A.I(f'v_min_u32 {v(r)}, {v(r)}, {v(k)}')
    A.I(f'''
    v_cmp_eq_u32 vcc, 0, {v(r)}
    s_cbranch_vccz L_{tag}_rb
    s_sleep {sleep}
    s_branch L_{tag}_rp
L_{tag}_rb:
    ''')

def wait_tiles(A, tag, vt, mat, kind, sreg=None, sleep=2):
    A.I(f's_cmp_lg_u32 {s(sW)}, 0\n s_cbranch_scc1 L_{tag}_rb')
    addp(A, 40, sWS, PF_OFF + mat * 4096)
    if kind == 'head':
        A.I(f'''
        v_bfe_u32 {v(vt)}, v0, 3, 1
        v_lshlrev_b32 {v(vt)}, 11, {v(vt)}
        v_and_b32 {v(vt+1)}, 7, v0
        v_lshl_add_u32 {v(vt)}, {v(vt+1)}, 2, {v(vt)}
        s_lshl_b32 s43, {s(sreg)}, 7
        v_add_u32 {v(vt)}, s43, {v(vt)}
        ''')
        spin(A, tag, f'global_load_dword {v(vt+2)}, {v(vt)}, s[40:41] sc1', [vt + 2], sleep)
    else:
        A.I(f'v_lshrrev_b32 {v(vt)}, 1, v0\n v_and_b32 {v(vt+1)}, 1, v0\n v_lshlrev_b32 {v(vt+1)}, 4, {v(vt+1)}\n v_lshl_add_u32 {v(vt)}, {v(vt)}, 7, {v(vt+1)}')
        spin(A, tag, f'global_load_dwordx4 {v(vt+2,4)}, {v(vt)}, s[40:41] sc1', [vt + 2, vt + 3, vt + 4, vt + 5], sleep)
    A.I('s_barrier')

def gemm_jobs(A, sN):
    sU, sV, sO, sH, sJB, sB, sHF, sFO = 10, 12, 14, 16, 17, 18, 19, 32
    A.I(f's_load_dwordx8 s[24:31], s[0:1], {KA_WQ}\n s_mov_b32 {s(sFO)}, 0\n s_mov_b32 {s(sFO+1)}, 0')
    VA, VB, VR, VU, VV, vO, VL = 8, 12, 16, 20, 24, 28, 32
    UF, RING, ACC, OUT = 64, 128, 160, 176
    UBUF = 128 * 1024
    A.I(f'''
    v_lshlrev_b32 {v(vO)}, 4, v0
    v_lshrrev_b32 v3, 5, v0
    v_and_b32 v4, 31, v0
    s_lshl_b32 s20, {s(sW)}, 4
    s_lshl_b32 {s(sB)}, {s(sW)}, 13
    ''')
    for b in range(4):
        A.I(f'''
        v_add_u32 v5, {2*(b&1)}, v3
        v_lshlrev_b32 v6, 2, v5
        v_xor_b32 v6, v6, v4
        v_xor_b32 v6, {(b>>1)<<1}, v6
        v_add3_u32 v5, s20, v5, {8*(b>>1)}
        v_lshlrev_b32 v5, 13, v5
        v_lshl_add_u32 {v(VA+b)}, v6, 4, v5
        ''')
    A.I(f'''
    v_and_b32 v5, 3, v1
    v_lshrrev_b32 v6, 2, v1
    v_lshl_add_u32 v36, v6, 3, v5
    v_lshlrev_b32 v36, 9, v36
    v_lshlrev_b32 v5, 2, v5
    v_bfe_u32 v6, v1, 2, 1
    v_lshl_add_u32 v5, v6, 1, v5
    s_and_b32 s21, {s(sW)}, 1
    s_lshl_b32 s21, s21, 14
    s_add_u32 s21, s21, {UBUF}
    v_add_u32 v6, s21, v36
    ''')
    for b in range(4):
        A.I(f'''
        v_add_u32 v7, {4*b}, v2
        v_xor_b32 v7, v7, v5
        v_lshlrev_b32 {v(VL+b)}, 4, v7
        v_add_u32 {v(VU+b)}, {v(VL+b)}, v6
        ''')
    A.I('s_waitcnt lgkmcnt(0)')
    vm = Cnt(A, 'vmcnt', 63); lg = Cnt(A, 'lgkmcnt', 15)
    def setup(mat):
        r = sN + 1 - mat
        pu, pv = (24, 26) if mat == 0 else (28, 30)
        A.I(f'''
        s_mul_i32 {s(sH)}, {s(r)}, 4682
        s_lshr_b32 {s(sH)}, {s(sH)}, 16
        s_mul_i32 s20, {s(sH)}, 14
        s_sub_u32 {s(sJB)}, {s(r)}, s20
        s_cmp_ge_u32 {s(sJB)}, 7
        s_cselect_b32 {s(sHF)}, 1, 0
        s_mul_i32 s20, {s(sHF)}, 7
        s_sub_u32 {s(sJB)}, {s(sJB)}, s20
        s_lshl_b32 s20, {s(sHF)}, 11
        s_lshl_b32 s21, {s(sH)}, 7
        s_add_u32 s20, s20, s21
        s_lshl_b32 s21, {s(sJB)}, 2
        s_add_u32 {s(sFO+mat)}, s20, s21
        s_lshl_b32 s20, {s(sJB)}, 19
        s_lshl_b32 s21, {s(sH)}, 9
        s_add_u32 s20, s20, s21
        ''')
        addps(A, sU, pu, 20)
        A.I(f'''
        s_mul_i32 s20, {s(sH)}, {MF_HEAD}
        s_lshr_b32 s22, {s(sW)}, 1
        s_lshl_b32 s23, {s(sHF)}, 3
        s_add_u32 s22, s22, s23
        s_mul_i32 s22, s22, 14
        s_and_b32 s23, {s(sW)}, 1
        s_add_u32 s22, s22, s23
        s_lshl_b32 s23, {s(sJB)}, 1
        s_add_u32 s22, s22, s23
        s_lshl_b32 s22, s22, 11
        s_add_u32 s20, s20, s22
        ''')
        addp(A, sO, sWS, MF_OFF + mat * MF_MAT); addps(A, sO, sO, 20)
        if mat == 0:
            A.I(f's_lshl_b32 s22, {s(sHF)}, 21\n s_add_u32 s21, s21, s22')
            addps(A, sV, pv, 21)
            A.I(f'''
            s_lshr_b32 s21, {s(sW)}, 1
            s_lshl_b32 s21, s21, 5
            v_bfe_u32 v5, v1, 2, 1
            v_lshlrev_b32 v5, 4, v5
            v_lshrrev_b32 v6, 3, v1
            v_lshl_add_u32 v5, v6, 2, v5
            v_and_b32 v6, 3, v1
            v_add3_u32 v5, v5, v6, s21
            v_lshlrev_b32 v5, 9, v5
            s_and_b32 s21, {s(sW)}, 1
            s_lshl_b32 s21, s21, 5
            ''')
            for b in range(4): A.I(f'v_add_u32 {v(VR+b)}, {v(VL+b)}, v5')
            for b in range(4): A.I(f'v_xor_b32 {v(VB+b)}, s21, {v(VA+b)}\n v_xor_b32 {v(VB+b)}, {(b>>1)<<5}, {v(VB+b)}')
        else:
            A.I(f'''
            s_mul_i32 s21, {s(sH)}, {256*896}
            s_mul_i32 s22, {s(sW)}, {64*896}
            s_add_u32 s21, s21, s22
            s_lshl_b32 s22, {s(sHF)}, 9
            s_add_u32 s21, s21, s22
            ''')
            addps(A, sV, pv, 21)
            A.I(f'''
            v_lshrrev_b32 v5, 3, v0
            v_and_b32 v6, 7, v0
            v_bfe_u32 v7, v0, 4, 1
            v_lshlrev_b32 v7, 1, v7
            v_xor_b32 v6, v6, v7
            v_mul_u32_u24 v5, 896, v5
            v_lshl_add_u32 {v(VB)}, v6, 4, v5
            v_xor_b32 v6, 4, v6
            v_lshl_add_u32 {v(VB+1)}, v6, 4, v5
            v_add_u32 {v(VB+1)}, {8*896}, {v(VB+1)}
            v_bfe_u32 v5, v0, 2, 2
            v_lshl_add_u32 v6, v2, 3, v5
            v_lshlrev_b32 v6, 7, v6
            v_and_b32 v7, 1, v0
            v_lshl_add_u32 v6, v7, 3, v6
            v_and_b32 v5, 2, v5
            v_and_b32 v7, 1, v2
            v_lshl_add_u32 v5, v7, 2, v5
            v_bfe_u32 v7, v0, 1, 1
            v_xor_b32 v5, v5, v7
            s_lshr_b32 s21, {s(sW)}, 1
            s_lshl_b32 s21, s21, 2
            v_xor_b32 v5, s21, v5
            v_lshl_add_u32 {v(VR)}, v5, 4, v6
            v_xor_b32 v5, 2, v5
            v_lshl_add_u32 {v(VR+1)}, v5, 4, v6
            ''')
    pol = [LDNT]
    def dma(vaddr, base, lds, tag):
        A.I(f's_add_u32 m0, {s(sB)}, {lds}')
        A.I(f'global_load_lds_dwordx4 {v(vaddr)}, {s(base,2)} {pol[0]}'); vm.add(tag)
    def issueU():
        addp(A, 22, sU, 32768)
        for kk in range(8): dma(VA + (kk & 1) + 2 * (kk >> 2), 22 if kk & 2 else sU, UBUF + kk * 1024, 'U')
    def issueV(mat, cc):
        step = 64 * 8192 if mat == 0 else 128
        if cc == 3:
            A.I(f's_cmp_lg_u32 {s(sHF)}, 0\n s_cbranch_scc1 L_pj_nv{mat}'); q = list(vm.q)
        if mat == 0:
            addp(A, 22, sV, 32768)
            for kk in range(8): dma(VB + (kk & 1) + 2 * (kk >> 2), 22 if kk & 2 else sV, cc * 32768 + kk * 1024, ('V', cc))
        else:
            A.I(f's_mov_b64 s[22:23], {s(sV,2)}')
            for kk in range(8):
                dma(VB + (kk & 1), 22, cc * 32768 + kk * 1024, ('V', cc))
                if kk & 1 and kk < 7: addp(A, 22, 22, 16 * 896)
        if cc < 3: addp(A, sV, sV, step)
        else: vm.q = q; A.label(f'L_pj_nv{mat}')
    def compute(mat):
        vm.wait('U'); A.I('s_barrier')
        for tp in range(2):
            for kk in range(8):
                A.I(f'ds_read_b128 {v(UF + 32*tp + 4*kk, 4)}, {v(VU + (kk&3))} offset:{(kk>>2)*256 + tp*2048}')
            A.I('s_waitcnt lgkmcnt(0)')
        nreg = 4 if mat == 0 else 2
        for cc in range(4):
            for b in range(nreg): A.I(f'v_add_u32 {v(VV+b)}, {cc*32768}, {v(VR+b)}')
            if cc < 3: vm.wait(('V', cc))
            else: A.I('s_waitcnt vmcnt(6)'); vm.clear()
            A.I('s_barrier')
            if cc == 3: A.I(f's_cmp_lg_u32 {s(sHF)}, 0\n s_cbranch_scc1 L_pj_done{mat}')
            def rd(kk):
                r = RING + 8 * (kk % 3)
                for y in range(2):
                    if mat == 0:
                        A.I(f'ds_read_b128 {v(r+4*y,4)}, {v(VV+(kk&3))} offset:{(kk>>2)*256 + y*4096}'); lg.add((kk, y))
                    else:
                        for hi in range(2):
                            A.I(f'ds_read_b64_tr_b16 {v(r+4*y+2*hi,2)}, {v(VV+y)} offset:{kk*4096 + hi*512}'); lg.add((kk, y))
            rd(0); rd(1)
            for kk in range(8):
                r = RING + 8 * (kk % 3)
                for y in range(2):
                    lg.wait((kk, y))
                    for tp in range(2):
                        acc = v(ACC + 8*tp + 4*y, 4)
                        A.I(f'v_mfma_f32_16x16x32_bf16 {acc}, {v(UF+32*tp+4*kk,4)}, {v(r+4*y,4)}, {acc if kk else 0}')
                        if y == 0 and tp == 0 and kk + 2 < 8: rd(kk + 2)
            o = OUT + 8 * (cc & 1)
            if mat == 0:
                for k in range(16): A.I(f'v_mul_f32 {v(ACC+k)}, {f32(CSC)}, {v(ACC+k)}')
            for tp in range(2):
                for k in range(2):
                    for y in range(2):
                        A.I(f'v_cvt_pk_bf16_f32 {v(o+4*tp+2*k+y)}, {v(ACC+8*tp+4*y+2*k)}, {v(ACC+8*tp+4*y+2*k+1)}')
            A.I(f'global_store_dwordx4 {v(vO)}, {v(o,4)}, {s(sO,2)} {MST}'); vm.add('st')
            A.I(f'global_store_dwordx4 {v(vO)}, {v(o+4,4)}, {s(sO,2)} offset:1024 {MST}'); vm.add('st')
            addp(A, sO, sO, 2 * 14 * 2048)
        A.label(f'L_pj_done{mat}')
    def flag(mat, tag):
        A.I(f'''
        s_barrier
        s_cmp_lg_u32 {s(sW)}, 0
        s_cbranch_scc1 L_pj_nf{tag}
        v_mov_b32 v30, {s(sFO+mat)}
        v_mov_b32 v31, 1
        ''')
        addp(A, 20, sWS, PF_OFF + mat * 4096)
        A.I('global_store_dword v30, v31, s[20:21] sc1')
        A.label(f'L_pj_nf{tag}')
        tl(A, 0, 2 - mat, 200)
    def initwait(tag):
        A.I('v_mov_b32 v30, 0')
        spin(A, tag, f'global_load_dword v31, v30, {s(sDB,2)} offset:{DB_INIT} sc1', [31])
    A.I(f'''
    s_cmp_lt_i32 {s(sN)}, 0
    s_cbranch_scc1 L_pj_onlya
    s_lshl_b32 s22, {s(sN)}, 11
    s_lshl_b32 s23, {s(sW)}, 9
    s_add_u32 s22, s22, s23
    v_lshl_add_u32 v30, v0, 3, s22
    v_mov_b32 v6, {SENT}
    v_mov_b32 v7, {SENT}
    ''')
    addp(A, 20, sWS, MEMT_OFF)
    A.I('global_store_dwordx2 v30, v[6:7], s[20:21] sc1')
    setup(1); issueU()
    for cc in range(3): issueV(1, cc)
    A.I(f'v_mov_b32 v38, 0\n global_load_dword v37, v38, {s(sDB,2)} offset:{DB_INIT} sc1'); vm.add('i')
    issueV(1, 3)
    if TOUCH:
        A.I(f'''
        s_lshl_b32 s20, {s(sJB)}, 6
        s_lshl_b32 s21, {s(sW)}, 4
        s_add_u32 s20, s20, s21
        v_lshrrev_b32 v39, 2, v0
        v_and_b32 v40, 3, v0
        v_lshlrev_b32 v40, 7, v40
        s_lshl_b32 s22, {s(sH)}, 9
        v_add_u32 v40, s22, v40
        v_add_u32 v41, s20, v39
        v_lshl_add_u32 v41, v41, 13, v40
        global_load_dword v42, v41, s[24:25] {TNT}
        s_mul_i32 s20, {s(sJB)}, 37
        s_mul_i32 s21, {s(sW)}, 10
        s_add_u32 s20, s20, s21
        s_lshl_b32 s21, {s(sHF)}, 8
        s_add_u32 s20, s20, s21
        v_min_u32 v39, 9, v39
        v_add_u32 v41, s20, v39
        v_min_u32 v41, 447, v41
        v_lshl_add_u32 v41, v41, 13, v40
        global_load_dword v42, v41, s[26:27] {TNT}
        ''')
        vm.add('t'); vm.add('t')
    compute(1)
    A.I('v_cmp_eq_u32 vcc, 0, v37\n s_cbranch_vccz L_pj_iok')
    initwait('pj_i1')
    A.I(f'''
L_pj_iok:
    s_cmp_ge_i32 {s(sN+1)}, 0
    s_cbranch_scc1 L_pj_both
    s_waitcnt vmcnt(0)
    ''')
    flag(1, 'x')
    A.I('s_branch L_pj_end')
    A.label('L_pj_onlya')
    initwait('pj_i0')
    A.I(f's_cmp_lt_i32 {s(sN+1)}, 0\n s_cbranch_scc1 L_pj_end')
    A.label('L_pj_both')
    vm.clear(); pol[0] = LDA
    setup(0)
    if PRE >= 1: issueU()
    for cc in range(PRE - 1): issueV(0, cc)
    A.I(f's_cmp_lt_i32 {s(sN)}, 0\n s_cbranch_scc1 L_pj_nob\n s_waitcnt vmcnt({8*PRE})')
    flag(1, 'y')
    A.label('L_pj_nob')
    if PRE < 1: issueU()
    for cc in range(max(PRE - 1, 0), 4): issueV(0, cc)
    compute(0)
    A.I('s_waitcnt vmcnt(0)')
    flag(0, 'z')
    A.label('L_pj_end')

def orphan(A, dst, o, t):
    A.I(f'''
    s_lshr_b32 {s(t)}, {s(o)}, 2
    s_lshl_b32 {s(t)}, {s(t)}, 3
    s_and_b32 {s(t+1)}, {s(o)}, 3
    s_add_u32 {s(t)}, {s(t)}, {s(t+1)}
    s_mul_i32 {s(t+1)}, {s(t)}, 3121
    s_lshr_b32 {s(t+1)}, {s(t+1)}, 16
    s_mul_i32 {s(t+1)}, {s(t+1)}, 11
    s_add_u32 {s(t)}, {s(t)}, {s(t+1)}
    s_add_u32 {s(dst)}, {s(t)}, 11
    ''')

def init_job(A):
    A.I(f'''
    v_mov_b32 v8, 0
    v_mov_b32 v9, 0
    v_mov_b32 v10, 0
    v_mov_b32 v11, 0
    s_lshl_b32 s22, {s(sW)}, 12
    v_lshl_add_u32 v6, v0, 4, s22
    ''')
    addp(A, 22, sWS, FL_OFF)
    for k in range(4): A.I(f'global_store_dwordx4 v6, v[8:11], s[22:23] offset:{k*1024} sc1')
    A.I(f's_lshl_b32 s20, {s(sW)}, 14\n v_lshl_add_u32 v7, v0, 7, s20')
    addp(A, 22, sWS, F2_OFF); addp(A, 20, 22, 8192)
    A.I('global_store_dwordx4 v7, v[8:11], s[22:23] sc1\n global_store_dwordx4 v7, v[8:11], s[20:21] sc1')
    A.I(f'''
    s_lshl_b32 s22, {s(sW)}, 11
    v_lshrrev_b32 v6, 2, v0
    v_lshl_add_u32 v6, v6, 7, s22
    v_and_b32 v9, 3, v0
    v_lshl_add_u32 v6, v9, 3, v6
    v_cmp_eq_u32 vcc, 3, v9
    v_cndmask_b32 v9, 0, 1, vcc
    ''')
    addp(A, 22, sWS, PF_OFF)
    A.I(f'''
    global_store_dwordx2 v6, v[8:9], s[22:23] sc1
    s_waitcnt vmcnt(0)
    s_barrier
    v_mov_b32 v6, 0
    v_mov_b32 v7, 1
    global_store_dword v6, v7, {s(sDB,2)} offset:{DB_INIT} sc1
    ''')
    tl(A, 0, 3, 200)

def mem0_job(A):
    A.I(f's_load_dwordx2 s[34:35], s[0:1], {KA_MEM0}')
    addp(A, 22, sWS, MEMS_OFF)
    A.I(f's_mul_i32 s30, {s(sW)}, 112\n s_waitcnt lgkmcnt(0)')
    for k in range(2):
        A.I(f'''
        v_min_u32 v6, {63 if k == 0 else 47}, v0
        v_add3_u32 v6, v6, s30, {64*k}
        v_and_b32 v7, 7, v6
        v_mul_u32_u24 v7, 896, v7
        v_lshrrev_b32 v10, 5, v6
        v_lshl_add_u32 v7, v10, 6, v7
        v_bfe_u32 v10, v6, 3, 1
        v_lshl_add_u32 v7, v10, 5, v7
        v_bfe_u32 v10, v6, 4, 1
        v_lshl_add_u32 v7, v10, 3, v7
        global_load_dwordx2 v[12:13], v7, s[34:35]
        global_load_dwordx2 v[14:15], v7, s[34:35] offset:16
        v_lshlrev_b32 v6, 4, v6
        s_waitcnt vmcnt(0)
        ''')
        for r in range(4): A.I(f'v_cmp_eq_u32 vcc, {SENT}, {v(12+r)}\n v_cndmask_b32 {v(12+r)}, {v(12+r)}, -1, vcc')
        A.I('global_store_dwordx4 v6, v[12:15], s[22:23] sc1')
```

```python
import sys
from common import *
import chain, tok, prep

NAME = 'gated_mix__memory_aug_recurrent_mem_tr__dense_activation_silu__prompt'

PERM = {1: 's_and_b32 s40, s3, 1\n s_lshl_b32 s40, s40, 4\n s_lshr_b32 s3, s3, 1\n s_add_u32 s3, s3, s40\n s_lshl_b32 s70, s3, 3',
        2: 's_and_b32 s40, s3, 2\n s_lshl_b32 s40, s40, 3\n s_and_b32 s41, s3, 1\n s_lshr_b32 s3, s3, 2\n s_lshl_b32 s3, s3, 1\n s_add_u32 s3, s3, s41\n s_add_u32 s3, s3, s40\n s_lshl_b32 s70, s3, 3',
        4: 's_and_b32 s40, s3, 4\n s_lshl_b32 s40, s40, 2\n s_and_b32 s41, s3, 3\n s_lshr_b32 s3, s3, 3\n s_lshl_b32 s3, s3, 2\n s_add_u32 s3, s3, s41\n s_add_u32 s3, s3, s40\n s_lshl_b32 s70, s3, 3',
        8: 's_and_b32 s40, s3, 8\n s_lshl_b32 s40, s40, 1\n s_and_b32 s41, s3, 7\n s_lshr_b32 s3, s3, 4\n s_lshl_b32 s3, s3, 3\n s_add_u32 s3, s3, s41\n s_add_u32 s3, s3, s40\n s_lshl_b32 s70, s3, 3',
        16: 's_sub_u32 s3, 31, s3\n s_lshl_b32 s70, s3, 3'}
def main_kernel(prof=0, roles=('chain', 'tokv', 'tokt', 'ffn1', 'outs')):
    A = Asm(); TL['role'] = 'e'
    A.I(f'''
    s_cmp_ge_u32 s2, 256
    s_cbranch_scc1 L_bail
    s_load_dwordx2 s[8:9], s[0:1], {KA_WS}
    s_load_dwordx2 {s(prep.sDB,2)}, s[0:1], {KA_DBG}
    v_lshrrev_b32 v1, 6, v0
    v_and_b32 v0, 63, v0
    {f's_add_u32 s38, s2, {8 - chain.CX}' if 'rev' not in chain.OPT else f's_sub_u32 s38, {256 + chain.CX}, s2'}
    s_and_b32 s38, s38, 7
    s_lshr_b32 s3, s2, 3
    v_readfirstlane_b32 s4, v1
    v_and_b32 v1, 15, v0
    v_lshrrev_b32 v2, 4, v0
    s_waitcnt lgkmcnt(0)
    s_lshl_b32 s70, s3, 3
    s_add_u32 s70, s70, s38
    ''')
    if 'cw' in chain.OPT:
        A.raw(f'''    s_getpc_b64 s[40:41]
L_pc0:
    s_lshl_b32 s42, s3, 2
    s_add_u32 s42, s42, s4
    s_lshl_b32 s42, s42, 3
    v_and_b32 v3, 7, v0
    v_add_lshl_u32 v3, v3, s42, 7
    v_min_u32 v3, L_code_end - L_pc0 - 4, v3''')
        A.I('global_load_dword v255, v3, s[40:41]')
    if chain.GX or chain.GE: A.I('s_memrealtime s[92:93]\n s_waitcnt lgkmcnt(0)')
    tl(A, 1, 0, 200)
    A.I(f'''
    s_mov_b32 s44, -1
    s_mov_b32 s45, -1
    s_mov_b32 s46, -1
    s_cmp_lg_u32 s38, 0
    s_cbranch_scc1 L_tok0
    {PERM.get(chain.RP, '')}
    s_cmp_lg_u32 s3, 30
    s_cbranch_scc1 L_noinit
    ''')
    TL['role'] = 'he'; prep.mem0_job(A); TL['role'] = 'e'
    A.label('L_noinit')
    if 'sc' not in chain.OPT: A.I('s_cmp_ge_u32 s3, 16\n s_cbranch_scc1 L_jobs\n s_add_u32 s45, s3, 208')
    else: A.I('s_cmp_lt_u32 s3, 16\n s_cbranch_scc1 L_score\n s_add_u32 s45, s3, 192')
    A.I(f'''
    s_branch L_jobs
L_bail:
    s_endpgm
L_tok0:
    ''')
    if 'oldmap' in chain.OPT: A.I('''
    s_sub_u32 s39, s38, 1
    s_lshl_b32 s44, s39, 5
    s_add_u32 s44, s44, s3
    s_mul_i32 s39, s39, 21
    s_max_u32 s40, s3, 11
    s_add_u32 s39, s39, s40
    s_sub_u32 s39, s39, 11
    s_min_u32 s40, s39, 128
    s_add_u32 s40, s40, 7
    s_lshr_b32 s40, s40, 3
    s_sub_u32 s45, s44, s40
    s_cmp_lt_u32 s3, 11
    s_cbranch_scc1 L_jobs
    s_cmp_ge_u32 s39, 128
    s_cbranch_scc1 L_jobs
    s_and_b32 s39, s39, 7
    s_cselect_b32 s45, s45, -1
    ''')
    else: A.I('''
    s_sub_u32 s39, s38, 1
    s_lshl_b32 s44, s39, 5
    s_add_u32 s44, s44, s3
    s_cmp_lg_u32 s44, 223
    s_cbranch_scc1 L_noinit2
    ''')
    if 'oldmap' not in chain.OPT: prep.init_job(A); A.I('''
L_noinit2:
    s_min_u32 s40, s44, 128
    s_add_u32 s40, s40, 7
    s_lshr_b32 s40, s40, 3
    s_sub_u32 s45, s44, s40
    s_cmp_ge_u32 s44, 128
    s_cbranch_scc1 L_jobs
    s_and_b32 s39, s44, 7
    s_cselect_b32 s45, s45, -1
    ''')
    A.label('L_jobs')
    prep.gemm_jobs(A, 44)
    A.I(f'''
    s_mov_b32 s40, s38
    s_cmp_lg_u32 s38, 0
    s_cbranch_scc1 L_tok
    s_cmp_lt_u32 s3, 16
    s_cbranch_scc1 L_score
    s_cmp_lt_u32 s3, 30
    s_cbranch_scc1 L_value
    s_cmp_eq_u32 s3, 30
    s_cbranch_scc1 L_helper
    {'s_branch L_fetch' if 'fetch' in chain.OPT else 's_branch L_spare'}
L_tok:
    ''')
    if 'oldmap' in chain.OPT: A.I(f'''
    s_sub_u32 s40, s40, 1
    s_cmp_ge_u32 s3, 7
    s_cbranch_scc1 L_tok1
    s_mov_b32 {s(tok.sREP)}, s40
    s_branch {'L_outs' if 'outs' in roles else 'L_bail'}
L_tok1:
    s_cmp_ge_u32 s3, 11
    s_cbranch_scc1 L_tok2
    s_sub_u32 {s(tok.sREP)}, s3, 7
    s_mov_b32 s3, s40
    s_branch {'L_ffn1' if 'ffn1' in roles else 'L_bail'}
L_tok2:
    s_mul_i32 s40, s40, 21
    s_add_u32 s40, s40, s3
    s_sub_u32 s40, s40, 11
    s_cmp_ge_u32 s40, 128
    s_cbranch_scc1 L_bail
    s_and_b32 {s(tok.sREP)}, s40, 3
    s_lshr_b32 s3, s40, 3
    s_bitcmp1_b32 s40, 2
    s_cbranch_scc1 {'L_tokt' if 'tokt' in roles else 'L_bail'}
    s_branch {'L_tokv' if 'tokv' in roles else 'L_bail'}
    ''')
    else: A.I(f'''
    s_cmp_lt_u32 s44, 128
    s_cbranch_scc1 L_tok2
    {'s_sub_u32 s40, s44, 128' if 'ffl' in chain.OPT else 's_sub_u32 s40, s44, 156'}
    s_cmp_ge_u32 s40, 49
    s_cbranch_scc1 L_tok1
    s_mul_i32 {s(tok.sREP)}, s40, 37
    s_lshr_b32 {s(tok.sREP)}, {s(tok.sREP)}, 8
    s_mul_i32 s41, {s(tok.sREP)}, 7
    s_sub_u32 s3, s40, s41
    s_branch L_outs
L_tok1:
    {'s_sub_u32 s40, s40, 49' if 'ffl' in chain.OPT else 's_sub_u32 s40, s44, 128'}
    s_cmp_ge_u32 s40, 28
    s_cbranch_scc1 L_bail
    s_and_b32 {s(tok.sREP)}, s40, 3
    s_lshr_b32 s3, s40, 2
    s_branch L_ffn1
L_tok2:
    s_and_b32 {s(tok.sREP)}, s44, 3
    s_lshr_b32 s3, s44, 3
    s_bitcmp1_b32 s44, 2
    s_cbranch_scc1 L_tokt
    s_branch L_tokv
    ''')
    for r, f in (('sc', lambda A: chain.score(A, prof)), ('va', lambda A: chain.value(A, prof if 'sonly' not in chain.OPT else 0)), ('he', chain.helper), ('fe', chain.fetcher), ('sp', chain.spare), ('tv', tok.tokv), ('tt', tok.tokt), ('f1', tok.ffn1), ('ou', tok.outs)):
        TL['role'] = r; f(A)
    A.label('L_code_end')
    return A

KD = '''.section .rodata,"a"
.p2align 6
.amdhsa_kernel {name}
  .amdhsa_next_free_vgpr {nv}
  .amdhsa_next_free_sgpr 102
  .amdhsa_accum_offset 256
  .amdhsa_group_segment_fixed_size 0
  .amdhsa_kernarg_size 112
  .amdhsa_user_sgpr_count 2
  .amdhsa_user_sgpr_kernarg_segment_ptr 1
  .amdhsa_system_sgpr_workgroup_id_x 1
  .amdhsa_float_denorm_mode_32 3
.end_amdhsa_kernel
'''
def full(prof=0, **kw):
    n = NAME + '_kernel'
    out = [HEADER, '; @launch grid=(256,1,1) block=(256,1,1) lds=163840',
           '.amdgcn_target "amdgcn-amd-amdhsa--gfx950"', '.text',
           f'.globl {n}', '.p2align 8', f'.type {n},@function', f'{n}:', main_kernel(prof, **kw).text(), KD.format(name=n, nv=512)]
    return '\n'.join(out)

HEADER = '''; Kernarg layout for this problem (112 bytes, ptrs only, base s[0:1]):
; second phase: memory recurrence (16 score + 14 value + 1 relay workgroups) and the token side (x B, x A + softmax, FFN, mix)'''

if __name__ == '__main__':
    args = sys.argv[1:]
    outn = 'cdna_kernels/' + NAME + '.s'
    for o in args:
        if o == 'dbg': TL['dbg'] = 1
        elif o.startswith('out='): outn = o[4:]
        elif '=' in o:
            k_, val = o.split('=')
            for mod in (chain, tok, prep):
                if hasattr(mod, k_): setattr(mod, k_, int(val) if val.lstrip('-').isdigit() else val)
        else: chain.OPT.add(o)
    open(outn, 'w').write(full())
```

```python
from common import *
from prep import wait_tiles
BUDGET = 1 << 20
sH, sW, sSEG, sBUD, sSENT = 3, 4, 5, 6, 7
sWS = 8
sA, sB_, sC_, sD, sE, sF = 10, 12, 14, 16, 18, 20
sREP, sLB, sPAR = 22, 23, 24
sM0, sM1 = 26, 28
T0 = 40

def wave_setup(A):
    A.I(f'''
    v_lshlrev_b32 v3, 4, v0
    s_mov_b32 {s(sBUD)}, 0
    s_mov_b32 {s(sSENT)}, {SENT}
    ''')

def budget(A):
    A.I(f's_add_u32 {s(sBUD)}, {s(sBUD)}, 1\n s_cmp_gt_u32 {s(sBUD)}, {BUDGET}\n s_cbranch_scc1 L_bail')

GATE = 0
NF = 2
W62 = 0
FIN = 1
OST = 'nt'
TS = 2
LIGHT = 1
LINE = 4000
GT, GF, GO = 1, 4, 8
def gate(A, tag, slot):
    wait_tiles(A, tag + 'a', 8, 1, 'all', None, 8)
    if not GATE: return
    addp(A, 40, sWS, MEMT_OFF + slot * MEMT_SLOT)
    A.I(f'''
    v_mov_b32 v8, 0
L_{tag}_g:
    s_sleep 16
    global_load_dword v9, v8, s[40:41] sc1
    ''')
    budget(A)
    A.I(f's_waitcnt vmcnt(0)\n v_cmp_eq_u32 vcc, {s(sSENT)}, v9\n s_cbranch_vccnz L_{tag}_g')

def p0p3(A, d0, d3):
    A.I(f'''
    s_and_b32 s46, {s(sW)}, 1
    s_lshr_b32 {s(d3)}, {s(sW)}, 1
    s_mul_i32 {s(d3)}, {s(d3)}, 7
    s_lshl_b32 {s(d0)}, s46, 2
    s_add_u32 {s(d0)}, {s(d0)}, {s(d3)}
    s_add_u32 {s(d3)}, {s(d3)}, 3
    s_sub_u32 {s(sPAR)}, 0, s46
    s_mov_b32 {s(sPAR+1)}, {s(sPAR)}
    ''')

WV, WS_ = 176, 120
def wtile(t, j):
    if t == 6: return v(WS_ + 4 * j, 4)
    k = (t * 14 + j) * 4
    return a_(k, 4) if k < 256 else v(WV + k - 256, 4)
def wmov(t, j, r):
    k = (t * 14 + j) * 4 + r
    return ('v_accvgpr_write_b32', a_(k)) if k < 256 else ('v_mov_b32', v(WV + k - 256))

def load_head(A, mat):
    p0p3(A, 40, 41)
    A.I(f'''
    s_mul_i32 s42, {s(sH)}, {MF_HEAD}
    s_mul_i32 s43, s40, {14*2048}
    s_add_u32 s43, s43, s42
    s_mul_i32 s44, s41, {14*2048}
    s_add_u32 s44, s44, s42
    ''')
    addp(A, sA, sWS, MF_OFF + mat * MF_MAT); addps(A, sB_, sA, 44); addps(A, sA, sA, 43)
    vm = Cnt(A, 'vmcnt', 63)
    ST, N = 32, 11
    blocks = [(L, j) for L in range(4) for j in range(14)]
    def issue(i):
        L, j = blocks[i]; r = ST + 8 * (i % N); base = sA if L < 3 else sB_
        o = (j & 1) * 2048
        A.I(f'global_load_dwordx4 {v(r,4)}, v3, {s(base,2)} offset:{o} sc1'); vm.add(i)
        A.I(f'global_load_dwordx4 {v(r+4,4)}, v3, {s(base,2)} offset:{o+1024} sc1'); vm.add(i)
        if j & 1: addp(A, base, base, 4096)
    for i in range(N): issue(i)
    for i, (L, j) in enumerate(blocks):
        vm.wait(i); r = ST + 8 * (i % N)
        if L < 3:
            for k in range(8):
                op, d = wmov(2 * L + (k & 1), j, k >> 1); A.I(f'{op} {d}, {v(r+k)}')
        else:
            for k in range(4): A.I(f'v_cndmask_b32 {v(WS_+4*j+k)}, {v(r+2*k)}, {v(r+2*k+1)}, {s(sPAR,2)}')
        if i + N < len(blocks): issue(i + N)

sXO = 80
def xdma(A, ptr, vXS, n=4):
    for k in range(7):
        addps(A, 40, ptr, sXO + k)
        A.I(f's_add_u32 m0, {s(sLB)}, {k*1024}')
        A.I(f'global_load_lds_dwordx4 {v(vXS)}, s[40:41]')
    addp(A, ptr, ptr, n * XI_SEG)

def xsetup(A, ptr, vXS, vXR, t):
    A.I(f'''
    s_mul_i32 {s(sLB)}, {s(sW)}, 7168
    s_mul_i32 s40, {s(sREP)}, {XI_SEG}
    s_mov_b32 {s(sSEG)}, {s(sREP)}
    v_lshrrev_b32 {v(t)}, 2, v0
    v_mul_u32_u24 {v(t)}, 896, {v(t)}
    v_lshrrev_b32 {v(t+1)}, 5, v0
    v_lshlrev_b32 {v(t+1)}, 1, {v(t+1)}
    v_and_b32 {v(vXS)}, 3, v0
    v_xor_b32 {v(t+1)}, {v(t+1)}, {v(vXS)}
    v_lshl_add_u32 {v(vXS)}, {v(t+1)}, 4, {v(t)}
    v_lshrrev_b32 {v(t)}, 3, v1
    v_lshlrev_b32 {v(t)}, 1, {v(t)}
    v_xor_b32 {v(t)}, {v(t)}, v2
    v_lshl_add_u32 {v(t)}, v1, 2, {v(t)}
    v_lshlrev_b32 {v(vXR)}, 4, {v(t)}
    ''')
    addps(A, ptr, ptr, 40)
    for k in range(7):
        A.I(f'''
        s_mul_i32 s40, {s(sW)}, 7
        s_add_u32 s40, s40, {k}
        s_and_b32 s41, s40, 1
        s_mul_i32 s41, s41, 14336
        s_lshr_b32 s40, s40, 1
        s_lshl_b32 s40, s40, 6
        s_add_u32 {s(sXO+k)}, s40, s41
        ''')

def gemm(A, ntile, wt, acc, ring, vX, offs, wfirst, extra=None):
    lg = Cnt(A, 'lgkmcnt', 15)
    def rd(j, tt):
        A.I(f'ds_read_b128 {v(ring + 8*(j%3) + 4*tt, 4)}, {v(vX[tt])} offset:{j*2048 + offs[tt]}'); lg.add((j, tt))
    for j in range(2): rd(j, 0); rd(j, 1)
    n = 0
    for j in range(14):
        for tt in range(2):
            lg.wait((j, tt))
            x = v(ring + 8*(j%3) + 4*tt, 4)
            for t in range(ntile):
                d = v(acc + 8*t + 4*tt, 4)
                a, b = (wt(t, j), x) if wfirst else (x, wt(t, j))
                A.I(f'v_mfma_f32_16x16x32_bf16 {d}, {a}, {b}, {d if j else 0}')
                if t == 0 and j + 2 < 14: rd(j + 2, tt)
                if extra: extra(n)
                n += 1

def flag_store(A, ptr, vOne, vZero):
    flag_store.n += 1
    A.I(f's_cmp_lg_u32 {s(sW)}, 0\n s_cbranch_scc1 L_fs{flag_store.n}\n global_store_dword {v(vZero)}, {v(vOne)}, {s(ptr,2)} sc1\nL_fs{flag_store.n}:')
flag_store.n = 0

def mem_fetch(A, tag, ptr, vG, D, lds, light):
    if light:
        A.I(f'''
        s_cmp_lg_u32 {s(sW)}, 0
        s_cbranch_scc1 L_{tag}_mh
        v_mov_b32 {v(D)}, {LINE}
L_{tag}_ml:
        global_load_dword {v(D+1)}, {v(D)}, {s(ptr,2)} sc1
        ''')
        budget(A)
        A.I(f'''
        s_waitcnt vmcnt(0)
        v_cmp_eq_u32 vcc, {s(sSENT)}, {v(D+1)}
        s_cbranch_vccz L_{tag}_mh
        s_sleep {TS}
        s_branch L_{tag}_ml
L_{tag}_mh:
        s_barrier
        ''')
    A.I(f'''
L_{tag}_mf:
    global_load_dwordx4 {v(D,4)}, {v(vG)}, {s(ptr,2)} sc1
    global_load_dwordx4 {v(D+4,4)}, {v(vG+1)}, {s(ptr,2)} sc1
    ''')
    budget(A)
    A.I(f'''
    s_waitcnt vmcnt(0)
    v_max3_u32 {v(D+8)}, {v(D)}, {v(D+1)}, {v(D+2)}
    v_max3_u32 {v(D+8)}, {v(D+8)}, {v(D+3)}, {v(D+4)}
    v_max3_u32 {v(D+8)}, {v(D+8)}, {v(D+5)}, {v(D+6)}
    v_max_u32 {v(D+8)}, {v(D+8)}, {v(D+7)}
    v_cmp_eq_u32 vcc, {s(sSENT)}, {v(D+8)}
    s_cbranch_vccnz L_{tag}_mf
    ds_write_b128 {v(vG)}, {v(D,4)} offset:{lds}
    ds_write_b128 {v(vG+1)}, {v(D+4,4)} offset:{lds}
    s_waitcnt lgkmcnt(0)
    s_barrier
    ''')

def mem_fetch_setup(A, vG):
    A.I(f'''
    s_mul_i32 s40, {s(sW)}, 1792
    v_add_u32 {v(vG)}, s40, v3
    v_min_u32 {v(vG+1)}, 47, v0
    v_lshlrev_b32 {v(vG+1)}, 4, {v(vG+1)}
    v_add3_u32 {v(vG+1)}, {v(vG+1)}, s40, s40
    v_subrev_u32 {v(vG+1)}, s40, {v(vG+1)}
    v_add_u32 {v(vG+1)}, 1024, {v(vG+1)}
    ''')

def tokv(A):
    ACC, RING, O = 64, 32, 8
    vX, vXc, vOne, vZero, vG, vMA, vWT, vXS = 4, 5, 6, 7, 56, 58, 59, 60
    L_MEM = 57344
    sX, sVO, sVS, sFL, sMT = sF, sB_, sC_, sD, sE
    A.label('L_tokv')
    wave_setup(A)
    A.I(f's_load_dwordx2 {s(sX,2)}, s[0:1], {KA_X}\n s_waitcnt lgkmcnt(0)')
    xsetup(A, sX, vX, vXc, 8); xdma(A, sX, vX)
    wait_tiles(A, 'tv', 8, 1, 'head', sH, 1)
    load_head(A, 1)
    A.I(f'v_mov_b32 {v(vXS)}, {v(vX)}')
    tl(A, 1, 1, 8)
    p0p3(A, 40, 41)
    A.I(f'''
    s_mul_i32 s42, {s(sREP)}, {14*VX_SC}
    s_lshl_b32 s43, {s(sH)}, 11
    s_add_u32 s42, s42, s43
    s_lshl_b32 s43, s40, 15
    s_add_u32 s43, s43, s42
    s_lshl_b32 s44, s41, 15
    s_add_u32 s44, s44, s42
    s_and_b32 s45, {s(sW)}, 1
    s_lshl_b32 s45, s45, 10
    s_add_u32 s44, s44, s45
    v_lshrrev_b32 v8, 3, v1
    v_lshlrev_b32 v8, 10, v8
    v_and_b32 v9, 7, v0
    v_lshl_add_u32 v8, v9, 6, v8
    v_lshl_add_u32 {v(vX)}, v2, 4, v8
    v_xor_b32 v9, 2, v2
    v_lshl_add_u32 {v(vXc)}, v9, 4, v8
    v_mov_b32 {v(vOne)}, 0x01010101
    v_mov_b32 {v(vZero)}, 0
    ''')
    addp(A, sVO, sWS, VX_OFF); addps(A, sVS, sVO, 44); addps(A, sVO, sVO, 43)
    A.I(f's_lshl_b32 s42, {s(sREP)}, 8\n s_lshl_b32 s43, {s(sH)}, 2\n s_add_u32 s42, s42, s43')
    addp(A, sFL, sWS, FL_OFF); addps(A, sFL, sFL, 42)
    A.label('L_tv_item')
    A.I(f'''
    s_waitcnt vmcnt(0)
    s_barrier
    s_cmp_lt_u32 {s(sSEG)}, 4
    s_cbranch_scc1 L_tv_nofl
    ''')
    flag_store(A, sFL, vOne, vZero); addp(A, sFL, sFL, 1024)
    A.label('L_tv_nofl')
    A.I(f'''
    s_cmp_ge_u32 {s(sSEG)}, 64
    s_cbranch_scc1 L_tv_w
    s_xor_b32 {s(sLB)}, {s(sLB)}, 0x8000
    s_cmp_ge_u32 {s(sSEG)}, 60
    s_cbranch_scc1 L_tv_nox
    ''')
    xdma(A, sX, vXS)
    A.label('L_tv_nox')
    gemm(A, 7, wtile, ACC, RING, [vX, vXc], [0, 512], False)
    A.I(f'v_xor_b32 {v(vXc)}, 0x8000, {v(vXc)}\n v_xor_b32 {v(vX)}, 0x8000, {v(vX)}')
    for t in range(7):
        o = O + 4 * (t % 4)
        for k in range(2):
            for tt in range(2):
                A.I(f'v_cvt_pk_bf16_f32 {v(o+2*k+tt)}, {v(ACC+8*t+4*tt+2*k)}, {v(ACC+8*t+4*tt+2*k+1)}')
        if t < 6:
            if t == 2: addp(A, 40, sVO, 32768)
            if t == 4: addp(A, 40, 40, 32768)
            A.I(f'global_store_dwordx4 v3, {v(o,4)}, {s(sVO if t < 2 else 40,2)} offset:{(t&1)*1024} sc1')
        else: A.I(f'global_store_dwordx4 v3, {v(o,4)}, {s(sVS,2)} sc1')
    addp(A, sVO, sVO, 4 * 14 * VX_SC); addp(A, sVS, sVS, 4 * 14 * VX_SC)
    A.I(f's_add_u32 {s(sSEG)}, {s(sSEG)}, 4\n s_branch L_tv_item')
    A.label('L_tv_w')
    tl(A, 1, 3, 8)
    wait_tiles(A, 'tw', 8, 1, 'all')
    mem_fetch_setup(A, vG)
    p0p3(A, 40, 41)
    A.I(f'''
    s_mov_b32 {s(sSEG)}, {s(sREP)}
    v_lshrrev_b32 v8, 1, v2
    v_lshlrev_b32 v8, 7, v8
    v_and_b32 v9, 7, v0
    v_lshl_add_u32 v8, v9, 4, v8
    v_and_b32 v9, 1, v2
    v_lshl_add_u32 v8, v9, 3, v8
    v_add_u32 {v(vMA)}, {L_MEM}, v8
    s_and_b32 s42, {s(sH)}, 3
    s_lshl_b32 s42, s42, 8
    v_lshl_add_u32 v8, v1, 4, s42
    v_lshl_add_u32 {v(vWT)}, v9, 3, v8
    s_mul_i32 s42, {s(sREP)}, {WT_SEG}
    s_lshr_b32 s43, {s(sH)}, 2
    s_mul_i32 s43, s43, {28*1024}
    s_add_u32 s42, s42, s43
    s_lshl_b32 s43, s40, 11
    s_add_u32 s43, s43, s42
    s_lshl_b32 s44, s41, 11
    s_add_u32 s44, s44, s42
    s_and_b32 s45, {s(sW)}, 1
    s_lshl_b32 s45, s45, 10
    s_add_u32 s44, s44, s45
    ''')
    addp(A, sVO, sWS, WT_OFF); addps(A, sVS, sVO, 44); addps(A, sVO, sVO, 43)
    A.I(f's_lshl_b32 s42, {s(sREP)}, 10\n s_lshr_b32 s43, {s(sH)}, 2\n s_lshl_b32 s43, s43, 7\n s_add_u32 s42, s42, s43\n s_and_b32 s43, {s(sH)}, 3\n s_lshl_b32 s43, s43, 2\n s_add_u32 s42, s42, s43')
    addp(A, sFL, sWS, F2_OFF + 512); addps(A, sFL, sFL, 42)
    A.I(f's_mul_i32 s42, {s(sREP)}, {MEMT_SLOT}')
    addp(A, sMT, sWS, MEMT_OFF); addps(A, sMT, sMT, 42)
    A.label('L_tw_item')
    mem_fetch(A, 'tw', sMT, vG, 8, L_MEM, LIGHT)
    tl(A, 1, 5, 8)
    lg = Cnt(A, 'lgkmcnt', 15)
    for j in range(14):
        A.I(f'ds_read2_b64 {v(ACC+4*j,4)}, {v(vMA)} offset0:{(j%3)*64} offset1:{(j%3)*64+32}'); lg.add(j)
        if j % 3 == 2: A.I(f'v_add_u32 {v(vMA)}, 1536, {v(vMA)}')
    A.I(f'v_subrev_u32 {v(vMA)}, {4*1536}, {v(vMA)}')
    addp(A, 40, sVO, 4096)
    W4 = FIN and W62
    if W4: A.I(f's_cmp_eq_u32 {s(sSEG)}, 62\n s_cbranch_scc1 L_tw_last')
    def wout(t):
        o = O + 2 * t
        for k in range(2): A.I(f'v_cvt_pk_bf16_f32 {v(o+k)}, {v(RING+4*(t&1)+2*k)}, {v(RING+4*(t&1)+2*k+1)}')
        A.I('s_mov_b32 exec_hi, 0')
        if t < 6: A.I(f'global_store_dwordx2 {v(vWT)}, {v(o,2)}, {s(sVO if t < 4 else 40,2)} offset:{(t%4)*1024} sc1')
        else: A.I(f'global_store_dwordx2 {v(vWT)}, {v(o,2)}, {s(sVS,2)} sc1')
        A.I('s_mov_b64 exec, -1')
    for t in range(7):
        d = v(RING + 4*(t&1), 4)
        for j in range(14):
            lg.wait(j)
            A.I(f'v_mfma_f32_16x16x32_bf16 {d}, {v(ACC+4*j,4)}, {wtile(t,j)}, {d if j else 0}')
            if t and j == 2: wout(t - 1)
    wout(6)
    A.I('s_mov_b64 exec, -1'); tl(A, 1, 6, 24); A.I('s_waitcnt vmcnt(0)\n s_barrier')
    flag_store(A, sFL, vOne, vZero)
    addp(A, sFL, sFL, 4096); addp(A, sMT, sMT, 4 * MEMT_SLOT); addp(A, sVO, sVO, 4 * WT_SEG); addp(A, sVS, sVS, 4 * WT_SEG)
    A.I(f's_add_u32 {s(sSEG)}, {s(sSEG)}, 4\n s_cmp_lt_u32 {s(sSEG)}, {63 if FIN else 64}\n s_cbranch_scc1 L_tw_item')
    if not W4:
        tl(A, 1, 2, 8); A.I('s_endpgm'); return
    A.I(f's_sub_u32 s42, {s(sSEG)}, 62\n s_mov_b32 {s(sSEG)}, 62')
    for ptr, step in ((sFL, 1024), (sMT, MEMT_SLOT), (sVO, WT_SEG), (sVS, WT_SEG)):
        A.I(f's_mul_i32 s43, s42, {step}\n s_sub_u32 {s(ptr)}, {s(ptr)}, s43\n s_subb_u32 {s(ptr+1)}, {s(ptr+1)}, 0')
    A.I('s_branch L_tw_item')
    A.label('L_tw_last')
    A.I('s_waitcnt lgkmcnt(0)')
    for t in range(7):
        A.I(f's_cmp_lg_u32 {s(sREP)}, {t & 3}\n s_cbranch_scc1 L_tw_l{t}')
        d = v(RING + 4*(t&1), 4)
        for j in range(14): A.I(f'v_mfma_f32_16x16x32_bf16 {d}, {v(ACC+4*j,4)}, {wtile(t,j)}, {d if j else 0}')
        wout(t)
        A.label(f'L_tw_l{t}')
    A.I(f'''
    v_mov_b32 v8, {s(sREP)}
    s_waitcnt vmcnt(0)
    s_barrier
    s_cmp_lg_u32 {s(sW)}, 0
    s_cbranch_scc1 L_bail
    global_store_byte v8, {v(vOne)}, {s(sFL,2)} sc1
    ''')
    tl(A, 1, 2, 8); A.I('s_endpgm')

class TT:
    TB, MB, SA = 8, 36, 96
    vG, vMB0, vMB1, vSW, vSR0, vSR1, vPX = 56, 58, 59, 60, 61, 62, 63
    L_MEM, L_SB = 61440, 61440 + 8192
    SBW = 32 * 176
    sK, sM5, sMK0 = 48, 32, 34

def tt_setup(A):
    vG, vMB0, vMB1, vSW, vSR0, vSR1, vPX = TT.vG, TT.vMB0, TT.vMB1, TT.vSW, TT.vSR0, TT.vSR1, TT.vPX
    L_MEM, L_SB, SBW, sK, sM5, sMK0 = TT.L_MEM, TT.L_SB, TT.SBW, TT.sK, TT.sM5, TT.sMK0
    mem_fetch_setup(A, vG)
    p0p3(A, 40, 41)
    A.I(f'''
    s_and_b32 s45, {s(sW)}, 1
    s_lshl_b32 s45, s45, 3
    v_and_b32 v9, 7, v0
    v_lshlrev_b32 v8, 7, v2
    v_lshl_add_u32 v8, v9, 4, v8
    s_lshl_b32 s42, s40, 9
    s_add_u32 s42, s42, {L_MEM}
    v_add_u32 {v(vMB0)}, s42, v8
    s_lshl_b32 s42, s41, 9
    s_add_u32 s42, s42, s45
    s_add_u32 s42, s42, {L_MEM}
    v_add_u32 {v(vMB1)}, s42, v8
    s_mul_i32 s42, {s(sW)}, {SBW}
    s_add_u32 s42, s42, {L_SB}
    v_mul_u32_u24 v8, 176, v1
    v_lshl_add_u32 v8, v2, 4, v8
    v_add_u32 {v(vSW)}, s42, v8
    v_lshrrev_b32 v10, 3, v0
    v_lshl_add_u32 v10, {s(sW)}, 3, v10
    v_min_u32 v11, 4, v9
    v_subrev_u32 v11, 1, v11
    v_lshrrev_b32 v12, 1, v11
    v_and_b32 v13, 1, v11
    v_lshlrev_b32 v13, 2, v13
    v_lshl_add_u32 v13, v12, 4, v13
    v_lshlrev_b32 v14, 2, v13
    v_add_u32 v14, 32, v14
    v_add_u32 v15, 32, v14
    v_cmp_eq_u32 {s(sMK0,2)}, 0, v9
    v_cndmask_b32 v14, v14, 0, {s(sMK0,2)}
    v_cndmask_b32 v15, v15, 16, {s(sMK0,2)}
    v_mul_u32_u24 v8, 176, v10
    v_add_u32 v8, {L_SB}, v8
    v_add_u32 {v(vSR0)}, v8, v14
    v_add_u32 {v(vSR1)}, v8, v15
    v_cmp_gt_u32 {s(sM5,2)}, 5, v9
    ''')
    for i in range(8):
        A.I(f'''
        v_add_u32 v8, {8*(i>>2) + (i&3)}, v13
        v_cmp_le_u32 vcc, v8, v10
        s_or_b64 vcc, vcc, {s(sMK0,2)}
        s_and_b64 {s(sK+2*i,2)}, vcc, {s(sM5,2)}
        ''')
    A.I(f'''
    s_and_b32 s42, {s(sH)}, 3
    v_mov_b32 v8, s42
    v_cndmask_b32 v12, v11, v8, {s(sMK0,2)}
    v_cndmask_b32 v8, v8, 4, {s(sMK0,2)}
    v_lshrrev_b32 v14, 4, v10
    v_lshl_add_u32 v8, v8, 1, v14
    v_lshlrev_b32 v8, 10, v8
    v_and_b32 v14, 15, v10
    v_lshl_add_u32 v14, v12, 4, v14
    v_lshl_add_u32 v14, v14, 4, v8
    s_lshr_b32 s43, {s(sH)}, 2
    s_mul_i32 s43, s43, 10240
    v_add_u32 {v(vPX)}, s43, v14
    ''')

def tt_smm(A, a4, a2, tt, d):
    TB = TT.TB
    for L in range(3): A.I(f'v_mfma_f32_16x16x32_bf16 {v(d,4)}, {v(a4(L),4)}, {v(TB+8*L+4*tt,4)}, {v(d,4) if L else 0}')
    A.I(f'v_mfma_f32_16x16x16_bf16 {v(d,4)}, {v(a2,2)}, {v(TB+24+2*tt,2)}, {v(d,4)}')

def tt_finish(A, tag, sMT, light):
    MB, SA, vSW, vSR0, vSR1, SBW, sK, sMK0 = TT.MB, TT.SA, TT.vSW, TT.vSR0, TT.vSR1, TT.SBW, TT.sK, TT.sMK0
    A.I('s_waitcnt lgkmcnt(0)'); A.flush()
    A.I(f'''
    ds_write_b128 {v(vSW)}, {v(SA,4)} offset:32
    ds_write_b128 {v(vSW)}, {v(SA+4,4)} offset:{16*176+32}
    ds_write_b128 {v(vSW)}, {v(SA+8,4)} offset:{16*176+96}
    ''')
    mem_fetch(A, tag, sMT, TT.vG, 64, TT.L_MEM, light)
    tl(A, 1, 5, 64)
    for L in range(3): A.I(f'ds_read_b128 {v(MB+4*L,4)}, {v(TT.vMB0)} offset:{L*512}')
    A.I(f'ds_read_b64 {v(MB+12,2)}, {v(TT.vMB1)}\n s_waitcnt lgkmcnt(1)')
    TB = TT.TB
    for L in range(3):
        for tt in range(2):
            d = v(SA + 12 + 4*tt, 4)
            A.I(f'v_mfma_f32_16x16x32_bf16 {d}, {v(MB+4*L,4)}, {v(TB+8*L+4*tt,4)}, {d if L else 0}')
    A.I('s_waitcnt lgkmcnt(0)')
    for tt in range(2):
        d = v(SA + 12 + 4*tt, 4)
        A.I(f'v_mfma_f32_16x16x16_bf16 {d}, {v(MB+12,2)}, {v(TB+24+2*tt,2)}, {d}')
    A.I(f'''
    s_mov_b32 exec_hi, 0
    ds_write_b128 {v(vSW)}, {v(SA+12,4)}
    ds_write_b128 {v(vSW)}, {v(SA+16,4)} offset:{16*176}
    s_mov_b64 exec, -1
    s_waitcnt lgkmcnt(0)
    s_barrier
    ''')
    Z, M = 64, 36
    for k in range(4):
        A.I(f'ds_read_b128 {v(Z+8*k,4)}, {v(vSR0)} offset:{k*SBW}\n ds_read_b128 {v(Z+8*k+4,4)}, {v(vSR1)} offset:{k*SBW}')
    A.I(f'v_mov_b32 {v(M+1)}, 0xff800000\n s_waitcnt lgkmcnt(0)')
    for a, b in ((0, 8), (16, 24), (0, 16)):
        for k in range(0, 8, 2): A.I(f'v_pk_add_f32 {v(Z+a+k,2)}, {v(Z+a+k,2)}, {v(Z+b+k,2)}')
    for i in range(8): A.I(f'v_cndmask_b32 {v(Z+i)}, {v(M+1)}, {v(Z+i)}, {s(sK+2*i,2)}')
    red = ['quad_perm:[1,0,3,2] row_mask:0xf bank_mask:0xf', 'quad_perm:[2,3,0,1] row_mask:0xf bank_mask:0xf', 'row_half_mirror row_mask:0xf bank_mask:0xf']
    A.I(f'''
    v_max3_f32 {v(M)}, {v(Z)}, {v(Z+1)}, {v(Z+2)}
    v_max3_f32 {v(M)}, {v(M)}, {v(Z+3)}, {v(Z+4)}
    v_max3_f32 {v(M)}, {v(M)}, {v(Z+5)}, {v(Z+6)}
    v_max_f32 {v(M)}, {v(M)}, {v(Z+7)}
    ''')
    for r in red: A.I(f'v_max_f32_dpp {v(M)}, {v(M)}, {v(M)} {r}')
    for i in range(8): A.I(f'v_sub_f32 {v(Z+i)}, {v(Z+i)}, {v(M)}')
    for i in range(8): A.I(f'v_exp_f32 {v(Z+i)}, {v(Z+i)}')
    A.I(f'''
    v_pk_add_f32 {v(M,2)}, {v(Z,2)}, {v(Z+2,2)}
    v_pk_add_f32 {v(M+2,2)}, {v(Z+4,2)}, {v(Z+6,2)}
    v_pk_add_f32 {v(M,2)}, {v(M,2)}, {v(M+2,2)}
    v_add_f32 {v(M)}, {v(M)}, {v(M+1)}
    ''')
    for r in red: A.I(f'v_add_f32_dpp {v(M)}, {v(M)}, {v(M)} {r}')
    A.I(f'v_rcp_f32 {v(M)}, {v(M)}')
    for i in range(0, 8, 2): A.I(f'v_pk_mul_f32 {v(Z+i,2)}, {v(Z+i,2)}, {v(M,2)} op_sel_hi:[1,0]')
    O = Z + 8
    A.I(f'''
    v_cvt_pk_bf16_f32 {v(O)}, {v(Z)}, {v(Z+1)}
    v_cvt_pk_bf16_f32 {v(O+4)}, {v(Z+2)}, {v(Z+3)}
    v_cvt_pk_bf16_f32 {v(O+5)}, {v(Z+4)}, {v(Z+5)}
    v_cvt_pk_bf16_f32 {v(O+3)}, {v(Z+6)}, {v(Z+7)}
    v_cndmask_b32 {v(O+1)}, {v(O+5)}, {v(O+4)}, {s(sMK0,2)}
    v_cndmask_b32 {v(O+2)}, {v(O+4)}, {v(O+5)}, {s(sMK0,2)}
    ''')
    return O

def tokt(A):
    ACC, RING, TB, SA = 64, 32, TT.TB, TT.SA
    vXc, vOne, vZero, vXI0, vXI1, vXS, vPX = 5, 6, 7, 4, 1, 2, TT.vPX
    sX, sPX, sFL, sMT = sA, sC_, sD, sE
    A.label('L_tokt')
    wave_setup(A)
    gate(A, 'tu', GT)
    wait_tiles(A, 'tt', 8, 0, 'head', sH, 8)
    load_head(A, 0)
    tl(A, 1, 1, 8)
    A.I(f's_load_dwordx2 {s(sX,2)}, s[0:1], {KA_X}\n s_waitcnt lgkmcnt(0)')
    xsetup(A, sX, 21, vXc, 8)
    if FIN:
        A.I(f's_cmp_eq_u32 {s(sREP)}, 3\n s_cselect_b32 {s(sSEG)}, 63, {s(sSEG)}\n s_cselect_b32 s44, {60*XI_SEG}, 0\n s_cselect_b32 s45, {64*XI_SEG}, 0')
        addps(A, sX, sX, 44)
    xdma(A, sX, 21)
    if FIN: A.I(f's_sub_u32 {s(sX)}, {s(sX)}, s45\n s_subb_u32 {s(sX+1)}, {s(sX+1)}, 0')
    tt_setup(A)
    A.I(f'''
    v_mov_b32 {v(vOne)}, 0x01010101
    v_mov_b32 {v(vZero)}, 0
    v_lshrrev_b32 v8, 3, v1
    v_xor_b32 v8, v8, v2
    v_and_b32 v8, 1, v8
    v_lshlrev_b32 v8, 5, v8
    v_lshl_add_u32 v8, v1, 6, v8
    v_lshrrev_b32 v9, 1, v2
    v_lshl_add_u32 v8, v9, 3, v8
    s_lshl_b32 s42, s40, 11
    v_add_u32 {v(vXI0)}, s42, v8
    s_lshl_b32 s42, s41, 11
    s_and_b32 s45, {s(sW)}, 1
    s_lshl_b32 s45, s45, 4
    s_add_u32 s42, s42, s45
    v_add_u32 {v(vXI1)}, s42, v8
    v_mov_b32 {v(vXS)}, v21
    s_mul_i32 s42, {s(sREP)}, {PX_SEG}
    ''')
    addp(A, sPX, sWS, PX_OFF); addps(A, sPX, sPX, 42)
    A.I(f's_lshl_b32 s42, {s(sREP)}, 10\n s_lshr_b32 s43, {s(sH)}, 2\n s_lshl_b32 s43, s43, 7\n s_add_u32 s42, s42, s43\n s_and_b32 s43, {s(sH)}, 3\n s_lshl_b32 s43, s43, 2\n s_add_u32 s42, s42, s43')
    addp(A, sFL, sWS, F2_OFF); addps(A, sFL, sFL, 42)
    A.I(f's_mul_i32 s42, {s(sREP)}, {MEMT_SLOT}'); addp(A, sMT, sWS, MEMT_OFF); addps(A, sMT, sMT, 42)
    A.label('L_tt_item')
    A.I(f'''
    s_waitcnt vmcnt(0)
    s_barrier
    s_xor_b32 {s(sLB)}, {s(sLB)}, 0x8000
    s_sub_u32 s40, {s(sSEG)}, {59 if FIN else 60}
    s_cmp_lt_u32 s40, 4
    s_cbranch_scc1 L_tt_nox
    ''')
    xdma(A, sX, vXS)
    A.label('L_tt_nox')
    gemm(A, 7, wtile, ACC, RING, [vXc, vXc], [0, 1024], True)
    A.I(f'v_xor_b32 {v(vXc)}, 0x8000, {v(vXc)}')
    for tt in range(2):
        for t in range(7):
            for k in range(2):
                d = TB + 8*(t>>1) + 4*tt + 2*(t&1) + k if t < 6 else TB + 24 + 2*tt + k
                A.I(f'v_cvt_pk_bf16_f32 {v(d)}, {v(ACC+8*t+4*tt+2*k)}, {v(ACC+8*t+4*tt+2*k+1)}')
    XF = 64
    for L in range(3):
        for t in range(2): A.I(f'ds_read2_b64 {v(XF+8*L+4*t,4)}, {v(vXI0)} offset0:{t*128} offset1:{t*128+2}')
        A.I(f'v_add_u32 {v(vXI0)}, {2048 if L < 2 else -4096 & 0xffffffff}, {v(vXI0)}')
    for t in range(2): A.I(f'ds_read_b64 {v(XF+24+2*t,2)}, {v(vXI1)} offset:{t*1024}')
    A.I(f'v_xor_b32 {v(vXI0)}, 0x8000, {v(vXI0)}\n v_xor_b32 {v(vXI1)}, 0x8000, {v(vXI1)}\n s_waitcnt lgkmcnt(0)')
    tt_smm(A, lambda L: XF + 8*L, XF + 24, 0, SA); tt_smm(A, lambda L: XF + 8*L, XF + 24, 1, SA + 4); tt_smm(A, lambda L: XF + 8*L + 4, XF + 26, 1, SA + 8)
    if FIN: A.I(f's_cmp_eq_u32 {s(sSEG)}, 63\n s_cbranch_scc1 L_tt_exp')
    O = tt_finish(A, 'tt', sMT, LIGHT)
    A.I(f'''
    s_mov_b64 exec, {s(TT.sM5,2)}
    global_store_dwordx4 {v(vPX)}, {v(O,4)}, {s(sPX,2)} sc1
    s_mov_b64 exec, -1
    ''')
    tl(A, 1, 6, 36)
    A.I('s_waitcnt vmcnt(0)\n s_barrier')
    flag_store(A, sFL, vOne, vZero)
    addp(A, sFL, sFL, 4096); addp(A, sMT, sMT, 4 * MEMT_SLOT); addp(A, sPX, sPX, 4 * PX_SEG)
    A.I(f's_add_u32 {s(sSEG)}, {s(sSEG)}, 4\n s_cmp_lt_u32 {s(sSEG)}, {63 if FIN else 64}\n s_cbranch_scc1 L_tt_item'); tl(A, 1, 2, 8); A.I('s_endpgm')
    if FIN:
        A.label('L_tt_exp')
        A.I(f's_lshl_b32 s42, {s(sH)}, 2\n s_add_u32 s42, s42, {s(sW)}\n s_mul_i32 s42, s42, 10240')
        addp(A, 40, sWS, FX_OFF); addps(A, 40, 40, 42)
        A.flush()
        for k in range(10):
            A.I(f'global_store_dwordx4 v3, {v(TB+4*k if k < 7 else SA+4*(k-7),4)}, s[40:41] offset:{(k%4)*1024} sc1')
            if k % 4 == 3: addp(A, 40, 40, 4096)
        for k in range(4): A.I(f'v_mov_b32 {v(64+k)}, {s(sSENT)}')
        addp(A, 40, sPX, 60 * PX_SEG); A.I(f's_lshl_b32 s44, {s(sH)}, 2'); addp(A, 42, sWS, FL_OFF + 63 * 256 + 64); addps(A, 42, 42, 44)
        A.I(f's_mov_b64 exec, {s(TT.sM5,2)}\n global_store_dwordx4 {v(vPX)}, v[64:67], s[40:41] sc1\n s_mov_b64 exec, -1\n s_waitcnt vmcnt(0)\n s_barrier')
        flag_store(A, 42, vOne, vZero)
        A.I(f's_mov_b32 {s(sSEG)}, 3\n s_branch L_tt_item')

def load_tr(A, ptr, stride, natural):
    vS = 8
    A.I(f'''
    s_mul_i32 s42, {s(sW)}, 28672
    v_lshrrev_b32 v10, 3, v0
    v_and_b32 v11, 7, v0
    {'v_bfe_u32 v12, v0, 4, 1' if natural else 'v_lshrrev_b32 v12, 4, v0'}
    v_lshlrev_b32 v12, 1, v12
    v_xor_b32 v11, v11, v12
    v_mul_u32_u24 v10, {stride}, v10
    v_lshl_add_u32 {v(vS)}, v11, 4, v10
    v_xor_b32 v11, {4 if natural else 0}, v11
    v_lshl_add_u32 {v(vS+1)}, v11, 4, v10
    v_bfe_u32 v10, v0, 2, 2
    v_lshl_add_u32 v11, v2, {3 if natural else 2}, v10
    v_lshlrev_b32 v11, 7, v11
    v_and_b32 v12, 1, v0
    v_lshl_add_u32 v11, v12, 3, v11
    v_add_u32 v11, s42, v11
    v_and_b32 v10, 2, v10
    v_and_b32 v12, 1, v2
    v_lshl_add_u32 v10, v12, 2, v10
    v_bfe_u32 v12, v0, 1, 1
    v_xor_b32 v10, v10, v12
    ''')
    for t in range(4):
        A.I(f'v_xor_b32 v12, {2*t}, v10\n v_lshl_add_u32 {v(13+t)}, v12, 4, v11')
    for half in range(2):
        for k in range(28):
            A.I(f's_add_u32 m0, s42, {k*1024}')
            A.I(f'global_load_lds_dwordx4 {v(vS+(k&1))}, {s(ptr,2)}')
            addp(A, ptr, ptr, 8 * stride)
        A.I('s_waitcnt vmcnt(0)')
        for jj in range(7):
            j = 7 * half + jj
            for t in range(4):
                for hi in range(2):
                    A.I(f'ds_read_b64_tr_b16 {a_((t*14+j)*4+2*hi,2)}, {v(13+t)} offset:{jj*4096 + hi*(512 if natural else 2048)}')
            A.I('s_waitcnt lgkmcnt(0)')

def at(t, j): return a_((t * 14 + j) * 4, 4)

def ffn1(A):
    ACC, RING = 64, 32
    vXc, vOne, vZero, vGT, vOG, vXS, GT = 5, 6, 7, 4, 56, 58, 120
    sX, sW1, sHO, sFL, sG = sA, sB_, sC_, sD, sE
    A.label('L_ffn1')
    A.I(f's_load_dwordx2 {s(sW1,2)}, s[0:1], {KA_W1}\n s_load_dwordx2 {s(sX,2)}, s[0:1], {KA_X}\n s_load_dwordx2 {s(sF,2)}, s[0:1], {KA_GW}')
    wave_setup(A)
    A.I(f's_lshl_b32 s40, {s(sH)}, 9\n s_lshl_b32 s41, {s(sW)}, 7\n s_add_u32 s40, s40, s41\n s_waitcnt lgkmcnt(0)')
    addps(A, sW1, sW1, 40)
    gate(A, 'f1', GF)
    A.I('v_lshlrev_b32 v8, 4, v2')
    for j in range(14): A.I(f'global_load_dwordx4 {v(GT+4*j,4)}, v8, {s(sF,2)} offset:{64*j}')
    load_tr(A, sW1, 3584, True)
    tl(A, 1, 1, 8)
    A.I('s_barrier')
    xsetup(A, sX, vXS, vXc, 8); xdma(A, sX, vXS, NF)
    A.I(f'''
    v_mov_b32 {v(vOne)}, 0x01010101
    v_mov_b32 {v(vZero)}, 0
    v_lshlrev_b32 {v(vGT)}, 2, v1
    s_mul_i32 s42, {s(sREP)}, {HI_SEG}
    s_lshl_b32 s43, {s(sH)}, 14
    s_add_u32 s42, s42, s43
    s_lshl_b32 s43, {s(sW)}, 12
    s_add_u32 s42, s42, s43
    ''')
    addp(A, sHO, sWS, HI_OFF); addps(A, sHO, sHO, 42)
    A.I(f's_lshl_b32 s42, {s(sREP)}, 8\n s_lshl_b32 s43, {s(sH)}, 2\n s_add_u32 s42, s42, s43')
    addp(A, sFL, sWS, FL_OFF + 192); addps(A, sFL, sFL, 42)
    A.I(f's_lshl_b32 s42, {s(sREP)}, 7'); addp(A, sG, sWS, G_OFF); addps(A, sG, sG, 42)
    A.label('L_f1_item')
    A.I(f'''
    s_waitcnt vmcnt(0)
    s_barrier
    s_cmp_lt_u32 {s(sSEG)}, {NF}
    s_cbranch_scc1 L_f1_nofl
    ''')
    flag_store(A, sFL, vOne, vZero); addp(A, sFL, sFL, 256 * NF)
    A.label('L_f1_nofl')
    A.I(f'''
    s_cmp_ge_u32 {s(sSEG)}, 64
    s_cbranch_scc1 L_f1_end
    s_xor_b32 {s(sLB)}, {s(sLB)}, 0x8000
    s_cmp_ge_u32 {s(sSEG)}, {64 - NF}
    s_cbranch_scc1 L_f1_nox
    ''')
    xdma(A, sX, vXS, NF)
    A.label('L_f1_nox')
    gemm(A, 5, lambda t, j: at(t, j) if t < 4 else v(GT + 4*j, 4), ACC, RING, [vXc, vXc], [0, 1024], True)
    A.I(f'v_xor_b32 {v(vXc)}, 0x8000, {v(vXc)}')
    for tt in range(2):
        A.I(f'''
        v_mul_f32 {v(vOG+tt)}, {f32(-1.4426950408889634)}, {v(ACC+32+4*tt)}
        v_exp_f32 {v(vOG+tt)}, {v(vOG+tt)}
        v_add_f32 {v(vOG+tt)}, 1.0, {v(vOG+tt)}
        v_rcp_f32 {v(vOG+tt)}, {v(vOG+tt)}
        ''')
    A.I(f'''
    s_or_b32 s40, {s(sH)}, {s(sW)}
    s_cbranch_scc1 L_f1_nog
    global_store_dword {v(vGT)}, {v(vOG)}, {s(sG,2)} sc1
    global_store_dword {v(vGT)}, {v(vOG+1)}, {s(sG,2)} offset:64 sc1
L_f1_nog:
    v_sub_f32 {v(vOG)}, 1.0, {v(vOG)}
    v_sub_f32 {v(vOG+1)}, 1.0, {v(vOG+1)}
    ''')
    E, O = 8, 16
    for p in range(2):
        for tt in range(2):
            regs = [ACC + 8*(2*p+y) + 4*tt + r for y in range(2) for r in range(4)]
            for i, r in enumerate(regs): A.I(f'v_mul_f32 {v(E+i)}, {f32(-1.4426950408889634)}, {v(r)}')
            for i in range(8): A.I(f'v_exp_f32 {v(E+i)}, {v(E+i)}')
            for i in range(8): A.I(f'v_add_f32 {v(E+i)}, 1.0, {v(E+i)}')
            for i in range(8): A.I(f'v_rcp_f32 {v(E+i)}, {v(E+i)}')
            for i, r in enumerate(regs): A.I(f'v_mul_f32 {v(r)}, {v(r)}, {v(vOG+tt)}')
            for i, r in enumerate(regs): A.I(f'v_mul_f32 {v(E+i)}, {v(E+i)}, {v(r)}')
            o = O + 4 * (2*p + tt)
            for k in range(4): A.I(f'v_cvt_pk_bf16_f32 {v(o+k)}, {v(E+2*k)}, {v(E+2*k+1)}')
            A.I(f'global_store_dwordx4 v3, {v(o,4)}, {s(sHO,2)} offset:{(2*p+tt)*1024} sc1')
    addp(A, sHO, sHO, NF * HI_SEG); addp(A, sG, sG, 128 * NF)
    A.I(f's_add_u32 {s(sSEG)}, {s(sSEG)}, {NF}\n s_branch L_f1_item')
    A.label('L_f1_end'); tl(A, 1, 2, 8); A.I('s_endpgm')

def outs(A):
    ACC, VF, WF, PF, HR = 8, 40, 104, 120, 160
    NH = 8
    vF, vFA, vRW, vRR, vO, vV1, vGA, vG, vFB = 4, 5, 6, 7, 224, 225, 226, 228, 227
    AC2 = HR
    RBW = 32 * 272
    sW2, sHI, sVX, sWT, sPX, sFL, sOUT, sG, sF2 = sA, sB_, sC_, sD, sE, sF, 30, 32, 34
    sMA, sMB = sM0, sM1
    A.label('L_outs')
    A.I(f's_load_dwordx2 {s(sW2,2)}, s[0:1], {KA_W2}\n s_load_dwordx2 {s(sOUT,2)}, s[0:1], {KA_OUT}')
    wave_setup(A)
    A.I(f's_mul_i32 s40, {s(sW)}, {448*896}\n s_lshl_b32 s41, {s(sH)}, 7\n s_add_u32 s40, s40, s41\n s_waitcnt lgkmcnt(0)')
    addps(A, sW2, sW2, 40)
    gate(A, 'ou', GO)
    load_tr(A, sW2, 896, False)
    tl(A, 1, 1, 8)
    A.I(f'''
    s_barrier
    v_lshlrev_b32 {v(vGA)}, 2, v1
    s_mov_b32 {s(sSEG)}, {s(sREP)}
    v_lshlrev_b32 {v(vFA)}, 2, v0
    v_add_u32 {v(vV1)}, 4096, v3
    s_mov_b32 {s(sMA)}, 0x0000ffff
    s_mov_b32 {s(sMA+1)}, 0x007f0000
    s_mov_b64 {s(sMB,2)}, -1
    v_bfe_u32 v10, v0, 2, 3
    v_and_b32 v11, 3, v0
    v_lshlrev_b32 v11, 2, v11
    v_lshl_add_u32 {v(vFB)}, v10, 7, v11
    s_mul_i32 s42, {s(sW)}, {RBW}
    v_mul_u32_u24 {v(vRW)}, 272, v1
    v_lshl_add_u32 {v(vRW)}, v2, 4, {v(vRW)}
    v_add_u32 {v(vRW)}, s42, {v(vRW)}
    v_lshrrev_b32 v10, 3, v0
    v_lshl_add_u32 v10, {s(sW)}, 3, v10
    v_and_b32 v11, 7, v0
    v_mul_u32_u24 {v(vRR)}, 272, v10
    v_lshl_add_u32 {v(vRR)}, v11, 5, {v(vRR)}
    v_mul_u32_u24 {v(vO)}, 896, v10
    v_lshl_add_u32 {v(vO)}, v11, 4, {v(vO)}
    s_mul_i32 s42, {s(sREP)}, {32*896}
    s_lshl_b32 s43, {s(sH)}, 7
    s_add_u32 s42, s42, s43
    ''')
    addps(A, sOUT, sOUT, 42)
    A.I(f's_mul_i32 s42, {s(sREP)}, {HI_SEG}\n s_mul_i32 s43, {s(sW)}, 28672\n s_add_u32 s42, s42, s43')
    addp(A, sHI, sWS, HI_OFF); addps(A, sHI, sHI, 42)
    A.I(f's_mul_i32 s42, {s(sREP)}, {14*VX_SC}\n s_lshl_b32 s43, {s(sH)}, 16\n s_add_u32 s42, s42, s43\n s_lshl_b32 s43, {s(sW)}, 13\n s_add_u32 s42, s42, s43')
    addp(A, sVX, sWS, VX_OFF); addps(A, sVX, sVX, 42)
    A.I(f's_mul_i32 s42, {s(sREP)}, {WT_SEG}\n s_mul_i32 s43, {s(sW)}, 28672\n s_add_u32 s42, s42, s43\n s_lshl_b32 s43, {s(sH)}, 12\n s_add_u32 s42, s42, s43')
    addp(A, sWT, sWS, WT_OFF); addps(A, sWT, sWT, 42)
    A.I(f's_mul_i32 s42, {s(sREP)}, {PX_SEG}\n s_mul_i32 s43, {s(sW)}, 10240\n s_add_u32 s42, s42, s43')
    addp(A, sPX, sWS, PX_OFF); addps(A, sPX, sPX, 42)
    A.I(f's_lshl_b32 s42, {s(sREP)}, 8'); addp(A, sFL, sWS, FL_OFF); addps(A, sFL, sFL, 42)
    A.I(f's_lshl_b32 s42, {s(sREP)}, 7'); addp(A, sG, sWS, G_OFF); addps(A, sG, sG, 42)
    A.I(f's_lshl_b32 s42, {s(sREP)}, 10'); addp(A, sF2, sWS, F2_OFF); addps(A, sF2, sF2, 42)
    def wait_flags(tag, mask, vFA=vFA, sFL=sFL):
        if LIGHT: A.I(f's_cmp_lg_u32 {s(sW)}, 0\n s_cbranch_scc1 L_{tag}_ok')
        A.I(f'''
L_{tag}:
        global_load_dword {v(vF)}, {v(vFA)}, {s(sFL,2)} sc1
        ''')
        budget(A)
        A.I(f'''
        s_waitcnt vmcnt(0)
        v_cmp_ne_u32 vcc, 0x01010101, {v(vF)}
        s_and_b64 vcc, vcc, {s(mask,2)}
        s_cbranch_vccz L_{tag}_ok
        s_sleep {TS}
        s_branch L_{tag}
L_{tag}_ok:
        ''')
        if LIGHT: A.I('s_waitcnt vmcnt(0)\n s_barrier')
    A.label('L_ou_item')
    wait_flags('ou_f1', sMA)
    vm = Cnt(A, 'vmcnt', 63)
    A.I(f'global_load_dword {v(vG)}, {v(vGA)}, {s(sG,2)} sc1\n global_load_dword {v(vG+1)}, {v(vGA)}, {s(sG,2)} offset:64 sc1')
    A.I(f's_mov_b64 s[40:41], {s(sHI,2)}')
    def hload(i):
        A.I(f'global_load_dwordx4 {v(HR+4*(i%(2*NH)),4)}, v3, s[40:41] offset:{(i%4)*1024} sc1'); vm.add(('h', i))
        if i % 4 == 3: addp(A, 40, 40, 4096)
    for i in range(2 * NH): hload(i)
    addp(A, 42, sVX, 32768)
    vl = [(hh, ct) for hh in range(4) for ct in range(4)]
    def vload(n):
        hh, ct = vl[n]
        A.I(f'global_load_dwordx4 {v(VF+16*hh+4*ct,4)}, {v(3 if hh < 2 else vV1)}, {s(sVX if ct < 2 else 42,2)} offset:{(hh&1)*2048+(ct&1)*1024} sc1'); vm.add(('v', n))
    for j in range(14):
        for tt in range(2):
            i = 2*j + tt
            vm.wait(('h', i))
            for ct in range(4):
                d = v(ACC + 8*ct + 4*tt, 4)
                A.I(f'v_mfma_f32_16x16x32_bf16 {d}, {at(ct,j)}, {v(HR+4*(i%(2*NH)),4)}, {d if j else 0}')
            if i + 2 * NH < 28: hload(i + 2 * NH)
            elif i - 12 < 16: vload(i - 12)
    if FIN: A.I(f's_cmp_eq_u32 {s(sSEG)}, 63\n s_cbranch_scc1 L_ou_red')
    wait_flags('ou_f2', sMB, vFB, sF2)
    tl(A, 1, 5, 230)
    vm.clear()
    addp(A, 40, sPX, 4096); addp(A, 42, sPX, 8192)
    for i in range(10):
        A.I(f'global_load_dwordx4 {v(PF+4*i,4)}, v3, {s([sPX,40,42][i>>2],2)} offset:{(i%4)*1024} sc1'); vm.add(('p', i))
        if i == 3:
            for ct in range(4):
                A.I(f'global_load_dwordx4 {v(WF+4*ct,4)}, v3, {s(sWT,2)} offset:{ct*1024} sc1'); vm.add(('w', ct))
    for k in range(5):
        for tt in range(2):
            vm.wait(('p', 2*k + tt))
            for ct in range(4):
                d = v(AC2 + 8*ct + 4*tt, 4)
                a = v(VF + 16*k + 4*ct, 4) if k < 4 else v(WF + 4*ct, 4)
                A.I(f'v_mfma_f32_16x16x32_bf16 {d}, {a}, {v(PF+8*k+4*tt,4)}, {d if k else 0}')
    tl(A, 1, 6, 230)
    for tt in range(2):
        for ct in range(4):
            for r in range(4): A.I(f'v_fmac_f32 {v(ACC+8*ct+4*tt+r)}, {v(vG+tt)}, {v(AC2+8*ct+4*tt+r)}')
    A.label('L_ou_red')
    A.I('s_waitcnt vmcnt(0)\n s_nop 7\n s_barrier')
    for tt in range(2):
        for ct in range(4):
            A.I(f'ds_write_b128 {v(vRW)}, {v(ACC+8*ct+4*tt,4)} offset:{tt*16*272 + ct*64}')
    A.I('s_waitcnt lgkmcnt(0)\n s_barrier')
    Z = VF
    for k in range(4):
        A.I(f'ds_read_b128 {v(Z+8*k,4)}, {v(vRR)} offset:{k*RBW}\n ds_read_b128 {v(Z+8*k+4,4)}, {v(vRR)} offset:{k*RBW+16}')
    A.I('s_waitcnt lgkmcnt(0)')
    for a, b in ((0, 8), (16, 24), (0, 16)):
        for k in range(0, 8, 2): A.I(f'v_pk_add_f32 {v(Z+a+k,2)}, {v(Z+a+k,2)}, {v(Z+b+k,2)}')
    if FIN: A.I(f's_cmp_eq_u32 {s(sSEG)}, 63\n s_cbranch_scc1 L_ou_exp')
    for k in range(4): A.I(f'v_cvt_pk_bf16_f32 {v(Z+8+k)}, {v(Z+2*k)}, {v(Z+2*k+1)}')
    A.I(f'global_store_dwordx4 {v(vO)}, {v(Z+8,4)}, {s(sOUT,2)} {OST}')
    tl(A, 1, 7, 230)
    addp(A, sOUT, sOUT, 7 * 32 * 896); addp(A, sHI, sHI, 7 * HI_SEG); addp(A, sVX, sVX, 7 * 14 * VX_SC)
    addp(A, sWT, sWT, 7 * WT_SEG); addp(A, sPX, sPX, 7 * PX_SEG); addp(A, sFL, sFL, 7 * 256); addp(A, sG, sG, 7 * 128); addp(A, sF2, sF2, 7 * 1024)
    A.I(f's_add_u32 {s(sSEG)}, {s(sSEG)}, 7\n s_cmp_lt_u32 {s(sSEG)}, 64\n s_cbranch_scc1 L_ou_item'); A.I('s_waitcnt vmcnt(0)'); tl(A, 1, 2, 8); A.I('s_endpgm')
    if FIN:
        A.label('L_ou_exp')
        A.I(f's_lshl_b32 s42, {s(sH)}, 8\n v_lshlrev_b32 {v(vO)}, 1, {v(vO)}')
        addp(A, 40, sWS, BP_OFF); addps(A, 40, 40, 42)
        A.I(f'''
        global_store_dwordx4 {v(vO)}, {v(Z,4)}, s[40:41] sc1
        global_store_dwordx4 {v(vO)}, {v(Z+4,4)}, s[40:41] offset:16 sc1
        s_lshl_b32 s42, {s(sH)}, 2
        s_add_u32 s42, s42, 128
        v_mov_b32 v8, s42
        v_mov_b32 v9, 0x01010101
        s_waitcnt vmcnt(0)
        s_barrier
        ''')
        flag_store(A, sFL, 9, 8)
        tl(A, 1, 2, 8); A.I('s_endpgm')
```

```python
import sys
from common import *
import chain, tok, prep

NAME = 'gated_mix__memory_aug_recurrent_mem_tr__dense_activation_silu__prompt'

PERM = {1: 's_and_b32 s40, s3, 1\n s_lshl_b32 s40, s40, 4\n s_lshr_b32 s3, s3, 1\n s_add_u32 s3, s3, s40\n s_lshl_b32 s70, s3, 3',
        2: 's_and_b32 s40, s3, 2\n s_lshl_b32 s40, s40, 3\n s_and_b32 s41, s3, 1\n s_lshr_b32 s3, s3, 2\n s_lshl_b32 s3, s3, 1\n s_add_u32 s3, s3, s41\n s_add_u32 s3, s3, s40\n s_lshl_b32 s70, s3, 3',
        4: 's_and_b32 s40, s3, 4\n s_lshl_b32 s40, s40, 2\n s_and_b32 s41, s3, 3\n s_lshr_b32 s3, s3, 3\n s_lshl_b32 s3, s3, 2\n s_add_u32 s3, s3, s41\n s_add_u32 s3, s3, s40\n s_lshl_b32 s70, s3, 3',
        8: 's_and_b32 s40, s3, 8\n s_lshl_b32 s40, s40, 1\n s_and_b32 s41, s3, 7\n s_lshr_b32 s3, s3, 4\n s_lshl_b32 s3, s3, 3\n s_add_u32 s3, s3, s41\n s_add_u32 s3, s3, s40\n s_lshl_b32 s70, s3, 3',
        16: 's_sub_u32 s3, 31, s3\n s_lshl_b32 s70, s3, 3'}
def main_kernel(prof=0, roles=('chain', 'tokv', 'tokt', 'ffn1', 'outs')):
    A = Asm(); TL['role'] = 'e'
    A.I(f'''
    s_cmp_ge_u32 s2, 256
    s_cbranch_scc1 L_bail
    s_load_dwordx2 s[8:9], s[0:1], {KA_WS}
    s_load_dwordx2 {s(prep.sDB,2)}, s[0:1], {KA_DBG}
    s_load_dwordx8 s[24:31], s[0:1], {KA_WQ}
    v_lshrrev_b32 v1, 6, v0
    v_and_b32 v0, 63, v0
    {f's_add_u32 s38, s2, {8 - chain.CX}' if 'rev' not in chain.OPT else f's_sub_u32 s38, {256 + chain.CX}, s2'}
    s_and_b32 s38, s38, 7
    s_lshl_b32 s38, s38, 2
    s_lshr_b32 s38, {hex(int(str(chain.KP)[::-1], 16))}, s38
    s_and_b32 s38, s38, 7
    s_lshr_b32 s3, s2, 3
    v_readfirstlane_b32 s4, v1
    v_and_b32 v1, 15, v0
    v_lshrrev_b32 v2, 4, v0
    s_waitcnt lgkmcnt(0)
    s_lshl_b32 s70, s3, 3
    s_add_u32 s70, s70, s38
    ''')
    if 'cw' in chain.OPT:
        A.raw(f'''    s_getpc_b64 s[40:41]
L_pc0:
    s_lshl_b32 s42, s3, 2
    s_add_u32 s42, s42, s4
    s_lshl_b32 s42, s42, 3
    v_and_b32 v3, 7, v0
    v_add_lshl_u32 v3, v3, s42, 7
    v_min_u32 v3, L_code_end - L_pc0 - 4, v3''')
        A.I('global_load_dword v255, v3, s[40:41]')
    if chain.GX or chain.GE: A.I('s_memrealtime s[92:93]\n s_waitcnt lgkmcnt(0)')
    tl(A, 1, 0, 200)
    A.I(f'''
    s_mov_b32 s44, -1
    s_mov_b32 s45, -1
    s_mov_b32 s46, -1
    s_cmp_lg_u32 s38, 0
    s_cbranch_scc1 L_tok0
    {PERM.get(chain.RP, '')}
    s_cmp_lg_u32 s3, 30
    s_cbranch_scc1 L_noinit
    ''')
    TL['role'] = 'he'; prep.mem0_job(A); TL['role'] = 'e'
    A.label('L_noinit')
    if 'sc' not in chain.OPT: A.I('s_cmp_ge_u32 s3, 16\n s_cbranch_scc1 L_jobs\n s_add_u32 s45, s3, 208')
    else: A.I('s_cmp_lt_u32 s3, 16\n s_cbranch_scc1 L_score\n s_add_u32 s45, s3, 192')
    A.I(f'''
    s_branch L_jobs
L_bail:
    s_endpgm
L_tok0:
    ''')
    if 'oldmap' in chain.OPT: A.I('''
    s_sub_u32 s39, s38, 1
    s_lshl_b32 s44, s39, 5
    s_add_u32 s44, s44, s3
    s_mul_i32 s39, s39, 21
    s_max_u32 s40, s3, 11
    s_add_u32 s39, s39, s40
    s_sub_u32 s39, s39, 11
    s_min_u32 s40, s39, 128
    s_add_u32 s40, s40, 7
    s_lshr_b32 s40, s40, 3
    s_sub_u32 s45, s44, s40
    s_cmp_lt_u32 s3, 11
    s_cbranch_scc1 L_jobs
    s_cmp_ge_u32 s39, 128
    s_cbranch_scc1 L_jobs
    s_and_b32 s39, s39, 7
    s_cselect_b32 s45, s45, -1
    ''')
    else: A.I('''
    s_sub_u32 s39, s38, 1
    s_lshl_b32 s44, s39, 5
    s_add_u32 s44, s44, s3
    s_cmp_lg_u32 s44, 223
    s_cbranch_scc1 L_noinit2
    ''')
    if 'oldmap' not in chain.OPT: prep.init_job(A); A.I('''
L_noinit2:
    s_min_u32 s40, s44, 128
    s_add_u32 s40, s40, 7
    s_lshr_b32 s40, s40, 3
    s_sub_u32 s45, s44, s40
    s_cmp_ge_u32 s44, 128
    s_cbranch_scc1 L_jobs
    s_and_b32 s39, s44, 7
    s_cselect_b32 s45, s45, -1
    ''')
    A.label('L_jobs')
    prep.gemm_jobs(A, 44)
    A.I(f'''
    s_mov_b32 s40, s38
    s_cmp_lg_u32 s38, 0
    s_cbranch_scc1 L_tok
    s_cmp_lt_u32 s3, 16
    s_cbranch_scc1 L_score
    s_cmp_lt_u32 s3, 30
    s_cbranch_scc1 L_value
    s_cmp_eq_u32 s3, 30
    s_cbranch_scc1 L_helper
    {'s_branch L_fetch' if 'fetch' in chain.OPT else 's_branch L_spare'}
L_tok:
    ''')
    if 'oldmap' in chain.OPT: A.I(f'''
    s_sub_u32 s40, s40, 1
    s_cmp_ge_u32 s3, 7
    s_cbranch_scc1 L_tok1
    s_mov_b32 {s(tok.sREP)}, s40
    s_branch {'L_outs' if 'outs' in roles else 'L_bail'}
L_tok1:
    s_cmp_ge_u32 s3, 11
    s_cbranch_scc1 L_tok2
    s_sub_u32 {s(tok.sREP)}, s3, 7
    s_mov_b32 s3, s40
    s_branch {'L_ffn1' if 'ffn1' in roles else 'L_bail'}
L_tok2:
    s_mul_i32 s40, s40, 21
    s_add_u32 s40, s40, s3
    s_sub_u32 s40, s40, 11
    s_cmp_ge_u32 s40, 128
    s_cbranch_scc1 L_bail
    s_and_b32 {s(tok.sREP)}, s40, 3
    s_lshr_b32 s3, s40, 3
    s_bitcmp1_b32 s40, 2
    s_cbranch_scc1 {'L_tokt' if 'tokt' in roles else 'L_bail'}
    s_branch {'L_tokv' if 'tokv' in roles else 'L_bail'}
    ''')
    else: A.I(f'''
    s_cmp_lt_u32 s44, 128
    s_cbranch_scc1 L_tok2
    {'s_sub_u32 s40, s44, 128' if 'ffl' in chain.OPT else 's_sub_u32 s40, s44, 156'}
    s_cmp_ge_u32 s40, 49
    s_cbranch_scc1 L_tok1
    s_mul_i32 {s(tok.sREP)}, s40, 37
    s_lshr_b32 {s(tok.sREP)}, {s(tok.sREP)}, 8
    s_mul_i32 s41, {s(tok.sREP)}, 7
    s_sub_u32 s3, s40, s41
    s_branch L_outs
L_tok1:
    {'s_sub_u32 s40, s40, 49' if 'ffl' in chain.OPT else 's_sub_u32 s40, s44, 128'}
    s_cmp_ge_u32 s40, {7 * tok.NF}
    s_cbranch_scc1 L_bail
    s_and_b32 {s(tok.sREP)}, s40, {tok.NF - 1}
    s_lshr_b32 s3, s40, {tok.NF.bit_length() - 1}
    s_branch L_ffn1
L_tok2:
    s_and_b32 {s(tok.sREP)}, s44, 3
    s_lshr_b32 s3, s44, 3
    s_bitcmp1_b32 s44, 2
    s_cbranch_scc1 L_tokt
    s_branch L_tokv
    ''')
    for r, f in (('sc', lambda A: chain.score(A, prof)), ('va', lambda A: chain.value(A, prof if 'sonly' not in chain.OPT else 0)), ('he', chain.helper), ('fe', chain.fetcher), ('sp', chain.spare), ('tv', tok.tokv), ('tt', tok.tokt), ('f1', tok.ffn1), ('ou', tok.outs)):
        TL['role'] = r; f(A)
    A.label('L_code_end')
    return A

KD = '''.section .rodata,"a"
.p2align 6
.amdhsa_kernel {name}
  .amdhsa_next_free_vgpr {nv}
  .amdhsa_next_free_sgpr 102
  .amdhsa_accum_offset 256
  .amdhsa_group_segment_fixed_size 0
  .amdhsa_kernarg_size 112
  .amdhsa_user_sgpr_count 2
  .amdhsa_user_sgpr_kernarg_segment_ptr 1
  .amdhsa_system_sgpr_workgroup_id_x 1
  .amdhsa_float_denorm_mode_32 3
.end_amdhsa_kernel
'''
def full(prof=0, **kw):
    n = NAME + '_kernel'
    out = [HEADER, '; @launch grid=(256,1,1) block=(256,1,1) lds=163840',
           '.amdgcn_target "amdgcn-amd-amdhsa--gfx950"', '.text',
           f'.globl {n}', '.p2align 8', f'.type {n},@function', f'{n}:', main_kernel(prof, **kw).text(), KD.format(name=n, nv=512)]
    return '\n'.join(out)

HEADER = '''; Kernarg layout for this problem (112 bytes, ptrs only, base s[0:1]):
; second phase: memory recurrence (16 score + 14 value + 1 relay workgroups) and the token side (x B, x A + softmax, FFN, mix)'''

if __name__ == '__main__':
    args = sys.argv[1:]
    outn = 'cdna_kernels/' + NAME + '.s'
    for o in args:
        if o == 'dbg': TL['dbg'] = 1
        elif o.startswith('out='): outn = o[4:]
        elif '=' in o:
            k_, val = o.split('=')
            for mod in (chain, tok, prep):
                if hasattr(mod, k_): setattr(mod, k_, int(val) if val.lstrip('-').isdigit() and k_ != 'KP' else val)
        else: chain.OPT.add(o)
    open(outn, 'w').write(full())
```

```python
from common import *
PRE = 1
MST = 'sc1'
TOUCH = 0
TNT = ''
LDA = 'nt'
LDNT = 'nt'
DB_INIT, DB_XCC = 192, 224
sW, sWS, sDB = 4, 8, 96
BUDGET = 1 << 20

def spin(A, tag, load, regs, sleep=2):
    A.I(f'''
    s_mov_b32 s42, 0
L_{tag}_rp:
    {load}
    s_add_u32 s42, s42, 1
    s_cmp_gt_u32 s42, {BUDGET}
    s_cbranch_scc1 L_bail
    s_waitcnt vmcnt(0)
    ''')
    r = regs[0]
    for k in regs[1:]: A.I(f'v_min_u32 {v(r)}, {v(r)}, {v(k)}')
    A.I(f'''
    v_cmp_eq_u32 vcc, 0, {v(r)}
    s_cbranch_vccz L_{tag}_rb
    s_sleep {sleep}
    s_branch L_{tag}_rp
L_{tag}_rb:
    ''')

def wait_tiles(A, tag, vt, mat, kind, sreg=None, sleep=2):
    A.I(f's_cmp_lg_u32 {s(sW)}, 0\n s_cbranch_scc1 L_{tag}_rb')
    addp(A, 40, sWS, PF_OFF + mat * 4096)
    if kind == 'head':
        A.I(f'''
        v_bfe_u32 {v(vt)}, v0, 3, 1
        v_lshlrev_b32 {v(vt)}, 11, {v(vt)}
        v_and_b32 {v(vt+1)}, 7, v0
        v_lshl_add_u32 {v(vt)}, {v(vt+1)}, 2, {v(vt)}
        s_lshl_b32 s43, {s(sreg)}, 7
        v_add_u32 {v(vt)}, s43, {v(vt)}
        ''')
        spin(A, tag, f'global_load_dword {v(vt+2)}, {v(vt)}, s[40:41] sc1', [vt + 2], sleep)
    else:
        A.I(f'v_lshrrev_b32 {v(vt)}, 1, v0\n v_and_b32 {v(vt+1)}, 1, v0\n v_lshlrev_b32 {v(vt+1)}, 4, {v(vt+1)}\n v_lshl_add_u32 {v(vt)}, {v(vt)}, 7, {v(vt+1)}')
        spin(A, tag, f'global_load_dwordx4 {v(vt+2,4)}, {v(vt)}, s[40:41] sc1', [vt + 2, vt + 3, vt + 4, vt + 5], sleep)
    A.I('s_barrier')

def gemm_jobs(A, sN):
    sU, sV, sO, sH, sJB, sB, sHF, sFO = 10, 12, 14, 16, 17, 18, 19, 32
    A.I(f's_mov_b32 {s(sFO)}, 0\n s_mov_b32 {s(sFO+1)}, 0')
    VA, VB, VR, VU, VV, vO, VL = 8, 12, 16, 20, 24, 28, 32
    UF, RING, ACC, OUT = 64, 128, 160, 176
    UBUF = 128 * 1024
    A.I(f'''
    v_lshlrev_b32 {v(vO)}, 4, v0
    v_lshrrev_b32 v3, 5, v0
    v_and_b32 v4, 31, v0
    s_lshl_b32 s20, {s(sW)}, 4
    s_lshl_b32 {s(sB)}, {s(sW)}, 13
    ''')
    for b in range(4):
        A.I(f'''
        v_add_u32 v5, {2*(b&1)}, v3
        v_lshlrev_b32 v6, 2, v5
        v_xor_b32 v6, v6, v4
        v_xor_b32 v6, {(b>>1)<<1}, v6
        v_add3_u32 v5, s20, v5, {8*(b>>1)}
        v_lshlrev_b32 v5, 13, v5
        v_lshl_add_u32 {v(VA+b)}, v6, 4, v5
        ''')
    A.I(f'''
    v_and_b32 v5, 3, v1
    v_lshrrev_b32 v6, 2, v1
    v_lshl_add_u32 v36, v6, 3, v5
    v_lshlrev_b32 v36, 9, v36
    v_lshlrev_b32 v5, 2, v5
    v_bfe_u32 v6, v1, 2, 1
    v_lshl_add_u32 v5, v6, 1, v5
    s_and_b32 s21, {s(sW)}, 1
    s_lshl_b32 s21, s21, 14
    s_add_u32 s21, s21, {UBUF}
    v_add_u32 v6, s21, v36
    ''')
    for b in range(4):
        A.I(f'''
        v_add_u32 v7, {4*b}, v2
        v_xor_b32 v7, v7, v5
        v_lshlrev_b32 {v(VL+b)}, 4, v7
        v_add_u32 {v(VU+b)}, {v(VL+b)}, v6
        ''')
    vm = Cnt(A, 'vmcnt', 63); lg = Cnt(A, 'lgkmcnt', 15)
    def setup(mat):
        r = sN + 1 - mat
        pu, pv = (24, 26) if mat == 0 else (28, 30)
        A.I(f'''
        s_mul_i32 {s(sH)}, {s(r)}, 4682
        s_lshr_b32 {s(sH)}, {s(sH)}, 16
        s_mul_i32 s20, {s(sH)}, 14
        s_sub_u32 {s(sJB)}, {s(r)}, s20
        s_cmp_ge_u32 {s(sJB)}, 7
        s_cselect_b32 {s(sHF)}, 1, 0
        s_mul_i32 s20, {s(sHF)}, 7
        s_sub_u32 {s(sJB)}, {s(sJB)}, s20
        s_lshl_b32 s20, {s(sHF)}, 11
        s_lshl_b32 s21, {s(sH)}, 7
        s_add_u32 s20, s20, s21
        s_lshl_b32 s21, {s(sJB)}, 2
        s_add_u32 {s(sFO+mat)}, s20, s21
        s_lshl_b32 s20, {s(sJB)}, 19
        s_lshl_b32 s21, {s(sH)}, 9
        s_add_u32 s20, s20, s21
        ''')
        addps(A, sU, pu, 20)
        A.I(f'''
        s_mul_i32 s20, {s(sH)}, {MF_HEAD}
        s_lshr_b32 s22, {s(sW)}, 1
        s_lshl_b32 s23, {s(sHF)}, 3
        s_add_u32 s22, s22, s23
        s_mul_i32 s22, s22, 14
        s_and_b32 s23, {s(sW)}, 1
        s_add_u32 s22, s22, s23
        s_lshl_b32 s23, {s(sJB)}, 1
        s_add_u32 s22, s22, s23
        s_lshl_b32 s22, s22, 11
        s_add_u32 s20, s20, s22
        ''')
        addp(A, sO, sWS, MF_OFF + mat * MF_MAT); addps(A, sO, sO, 20)
        if mat == 0:
            A.I(f's_lshl_b32 s22, {s(sHF)}, 21\n s_add_u32 s21, s21, s22')
            addps(A, sV, pv, 21)
            A.I(f'''
            s_lshr_b32 s21, {s(sW)}, 1
            s_lshl_b32 s21, s21, 5
            v_bfe_u32 v5, v1, 2, 1
            v_lshlrev_b32 v5, 4, v5
            v_lshrrev_b32 v6, 3, v1
            v_lshl_add_u32 v5, v6, 2, v5
            v_and_b32 v6, 3, v1
            v_add3_u32 v5, v5, v6, s21
            v_lshlrev_b32 v5, 9, v5
            s_and_b32 s21, {s(sW)}, 1
            s_lshl_b32 s21, s21, 5
            ''')
            for b in range(4): A.I(f'v_add_u32 {v(VR+b)}, {v(VL+b)}, v5')
            for b in range(4): A.I(f'v_xor_b32 {v(VB+b)}, s21, {v(VA+b)}\n v_xor_b32 {v(VB+b)}, {(b>>1)<<5}, {v(VB+b)}')
        else:
            A.I(f'''
            s_mul_i32 s21, {s(sH)}, {256*896}
            s_mul_i32 s22, {s(sW)}, {64*896}
            s_add_u32 s21, s21, s22
            s_lshl_b32 s22, {s(sHF)}, 9
            s_add_u32 s21, s21, s22
            ''')
            addps(A, sV, pv, 21)
            A.I(f'''
            v_lshrrev_b32 v5, 3, v0
            v_and_b32 v6, 7, v0
            v_bfe_u32 v7, v0, 4, 1
            v_lshlrev_b32 v7, 1, v7
            v_xor_b32 v6, v6, v7
            v_mul_u32_u24 v5, 896, v5
            v_lshl_add_u32 {v(VB)}, v6, 4, v5
            v_xor_b32 v6, 4, v6
            v_lshl_add_u32 {v(VB+1)}, v6, 4, v5
            v_add_u32 {v(VB+1)}, {8*896}, {v(VB+1)}
            v_bfe_u32 v5, v0, 2, 2
            v_lshl_add_u32 v6, v2, 3, v5
            v_lshlrev_b32 v6, 7, v6
            v_and_b32 v7, 1, v0
            v_lshl_add_u32 v6, v7, 3, v6
            v_and_b32 v5, 2, v5
            v_and_b32 v7, 1, v2
            v_lshl_add_u32 v5, v7, 2, v5
            v_bfe_u32 v7, v0, 1, 1
            v_xor_b32 v5, v5, v7
            s_lshr_b32 s21, {s(sW)}, 1
            s_lshl_b32 s21, s21, 2
            v_xor_b32 v5, s21, v5
            v_lshl_add_u32 {v(VR)}, v5, 4, v6
            v_xor_b32 v5, 2, v5
            v_lshl_add_u32 {v(VR+1)}, v5, 4, v6
            ''')
    pol = [LDNT]
    def dma(vaddr, base, lds, tag):
        A.I(f's_add_u32 m0, {s(sB)}, {lds}')
        A.I(f'global_load_lds_dwordx4 {v(vaddr)}, {s(base,2)} {pol[0]}'); vm.add(tag)
    def issueU():
        addp(A, 22, sU, 32768)
        for kk in range(8): dma(VA + (kk & 1) + 2 * (kk >> 2), 22 if kk & 2 else sU, UBUF + kk * 1024, 'U')
    def issueV(mat, cc):
        step = 64 * 8192 if mat == 0 else 128
        if cc == 3:
            A.I(f's_cmp_lg_u32 {s(sHF)}, 0\n s_cbranch_scc1 L_pj_nv{mat}'); q = list(vm.q)
        if mat == 0:
            addp(A, 22, sV, 32768)
            for kk in range(8): dma(VB + (kk & 1) + 2 * (kk >> 2), 22 if kk & 2 else sV, cc * 32768 + kk * 1024, ('V', cc))
        else:
            A.I(f's_mov_b64 s[22:23], {s(sV,2)}')
            for kk in range(8):
                dma(VB + (kk & 1), 22, cc * 32768 + kk * 1024, ('V', cc))
                if kk & 1 and kk < 7: addp(A, 22, 22, 16 * 896)
        if cc < 3: addp(A, sV, sV, step)
        else: vm.q = q; A.label(f'L_pj_nv{mat}')
    def compute(mat):
        vm.wait('U'); A.I('s_barrier')
        for tp in range(2):
            for kk in range(8):
                A.I(f'ds_read_b128 {v(UF + 32*tp + 4*kk, 4)}, {v(VU + (kk&3))} offset:{(kk>>2)*256 + tp*2048}')
            A.I('s_waitcnt lgkmcnt(0)')
        nreg = 4 if mat == 0 else 2
        for cc in range(4):
            for b in range(nreg): A.I(f'v_add_u32 {v(VV+b)}, {cc*32768}, {v(VR+b)}')
            if cc < 3: vm.wait(('V', cc))
            else: A.I('s_waitcnt vmcnt(6)'); vm.clear()
            A.I('s_barrier')
            if cc == 3: A.I(f's_cmp_lg_u32 {s(sHF)}, 0\n s_cbranch_scc1 L_pj_done{mat}')
            def rd(kk):
                r = RING + 8 * (kk % 3)
                for y in range(2):
                    if mat == 0:
                        A.I(f'ds_read_b128 {v(r+4*y,4)}, {v(VV+(kk&3))} offset:{(kk>>2)*256 + y*4096}'); lg.add((kk, y))
                    else:
                        for hi in range(2):
                            A.I(f'ds_read_b64_tr_b16 {v(r+4*y+2*hi,2)}, {v(VV+y)} offset:{kk*4096 + hi*512}'); lg.add((kk, y))
            rd(0); rd(1)
            for kk in range(8):
                r = RING + 8 * (kk % 3)
                for y in range(2):
                    lg.wait((kk, y))
                    for tp in range(2):
                        acc = v(ACC + 8*tp + 4*y, 4)
                        A.I(f'v_mfma_f32_16x16x32_bf16 {acc}, {v(UF+32*tp+4*kk,4)}, {v(r+4*y,4)}, {acc if kk else 0}')
                        if y == 0 and tp == 0 and kk + 2 < 8: rd(kk + 2)
            o = OUT + 8 * (cc & 1)
            if mat == 0:
                for k in range(16): A.I(f'v_mul_f32 {v(ACC+k)}, {f32(CSC)}, {v(ACC+k)}')
            for tp in range(2):
                for k in range(2):
                    for y in range(2):
                        A.I(f'v_cvt_pk_bf16_f32 {v(o+4*tp+2*k+y)}, {v(ACC+8*tp+4*y+2*k)}, {v(ACC+8*tp+4*y+2*k+1)}')
            A.I(f'global_store_dwordx4 {v(vO)}, {v(o,4)}, {s(sO,2)} {MST}'); vm.add('st')
            A.I(f'global_store_dwordx4 {v(vO)}, {v(o+4,4)}, {s(sO,2)} offset:1024 {MST}'); vm.add('st')
            addp(A, sO, sO, 2 * 14 * 2048)
        A.label(f'L_pj_done{mat}')
    def flag(mat, tag):
        A.I(f'''
        s_barrier
        s_cmp_lg_u32 {s(sW)}, 0
        s_cbranch_scc1 L_pj_nf{tag}
        v_mov_b32 v30, {s(sFO+mat)}
        v_mov_b32 v31, 1
        ''')
        addp(A, 20, sWS, PF_OFF + mat * 4096)
        A.I('global_store_dword v30, v31, s[20:21] sc1')
        A.label(f'L_pj_nf{tag}')
        tl(A, 0, 2 - mat, 200)
    def initwait(tag):
        A.I('v_mov_b32 v30, 0')
        spin(A, tag, f'global_load_dword v31, v30, {s(sDB,2)} offset:{DB_INIT} sc1', [31])
    A.I(f'''
    s_cmp_lt_i32 {s(sN)}, 0
    s_cbranch_scc1 L_pj_onlya
    s_lshl_b32 s22, {s(sN)}, 11
    s_lshl_b32 s23, {s(sW)}, 9
    s_add_u32 s22, s22, s23
    v_lshl_add_u32 v30, v0, 3, s22
    v_mov_b32 v6, {SENT}
    v_mov_b32 v7, {SENT}
    ''')
    addp(A, 20, sWS, MEMT_OFF)
    A.I('global_store_dwordx2 v30, v[6:7], s[20:21] sc1')
    setup(1); issueU()
    for cc in range(3): issueV(1, cc)
    A.I(f'v_mov_b32 v38, 0\n global_load_dword v37, v38, {s(sDB,2)} offset:{DB_INIT} sc1'); vm.add('i')
    issueV(1, 3)
    if TOUCH:
        A.I(f'''
        s_lshl_b32 s20, {s(sJB)}, 6
        s_lshl_b32 s21, {s(sW)}, 4
        s_add_u32 s20, s20, s21
        v_lshrrev_b32 v39, 2, v0
        v_and_b32 v40, 3, v0
        v_lshlrev_b32 v40, 7, v40
        s_lshl_b32 s22, {s(sH)}, 9
        v_add_u32 v40, s22, v40
        v_add_u32 v41, s20, v39
        v_lshl_add_u32 v41, v41, 13, v40
        global_load_dword v42, v41, s[24:25] {TNT}
        s_mul_i32 s20, {s(sJB)}, 37
        s_mul_i32 s21, {s(sW)}, 10
        s_add_u32 s20, s20, s21
        s_lshl_b32 s21, {s(sHF)}, 8
        s_add_u32 s20, s20, s21
        v_min_u32 v39, 9, v39
        v_add_u32 v41, s20, v39
        v_min_u32 v41, 447, v41
        v_lshl_add_u32 v41, v41, 13, v40
        global_load_dword v42, v41, s[26:27] {TNT}
        ''')
        vm.add('t'); vm.add('t')
    compute(1)
    A.I('v_cmp_eq_u32 vcc, 0, v37\n s_cbranch_vccz L_pj_iok')
    initwait('pj_i1')
    A.I(f'''
L_pj_iok:
    s_cmp_ge_i32 {s(sN+1)}, 0
    s_cbranch_scc1 L_pj_both
    s_waitcnt vmcnt(0)
    ''')
    flag(1, 'x')
    A.I('s_branch L_pj_end')
    A.label('L_pj_onlya')
    initwait('pj_i0')
    A.I(f's_cmp_lt_i32 {s(sN+1)}, 0\n s_cbranch_scc1 L_pj_end')
    A.label('L_pj_both')
    vm.clear(); pol[0] = LDA
    setup(0)
    if PRE >= 1: issueU()
    for cc in range(PRE - 1): issueV(0, cc)
    A.I(f's_cmp_lt_i32 {s(sN)}, 0\n s_cbranch_scc1 L_pj_nob\n s_waitcnt vmcnt({8*PRE})')
    flag(1, 'y')
    A.label('L_pj_nob')
    if PRE < 1: issueU()
    for cc in range(max(PRE - 1, 0), 4): issueV(0, cc)
    compute(0)
    A.I('s_waitcnt vmcnt(0)')
    flag(0, 'z')
    A.label('L_pj_end')

def orphan(A, dst, o, t):
    A.I(f'''
    s_lshr_b32 {s(t)}, {s(o)}, 2
    s_lshl_b32 {s(t)}, {s(t)}, 3
    s_and_b32 {s(t+1)}, {s(o)}, 3
    s_add_u32 {s(t)}, {s(t)}, {s(t+1)}
    s_mul_i32 {s(t+1)}, {s(t)}, 3121
    s_lshr_b32 {s(t+1)}, {s(t+1)}, 16
    s_mul_i32 {s(t+1)}, {s(t+1)}, 11
    s_add_u32 {s(t)}, {s(t)}, {s(t+1)}
    s_add_u32 {s(dst)}, {s(t)}, 11
    ''')

def init_job(A):
    A.I(f'''
    v_mov_b32 v8, 0
    v_mov_b32 v9, 0
    v_mov_b32 v10, 0
    v_mov_b32 v11, 0
    s_lshl_b32 s22, {s(sW)}, 12
    v_lshl_add_u32 v6, v0, 4, s22
    ''')
    addp(A, 22, sWS, FL_OFF)
    for k in range(4): A.I(f'global_store_dwordx4 v6, v[8:11], s[22:23] offset:{k*1024} sc1')
    A.I(f's_lshl_b32 s20, {s(sW)}, 14\n v_lshl_add_u32 v7, v0, 7, s20')
    addp(A, 22, sWS, F2_OFF); addp(A, 20, 22, 8192)
    A.I('global_store_dwordx4 v7, v[8:11], s[22:23] sc1\n global_store_dwordx4 v7, v[8:11], s[20:21] sc1')
    A.I(f'''
    s_lshl_b32 s22, {s(sW)}, 11
    v_lshrrev_b32 v6, 2, v0
    v_lshl_add_u32 v6, v6, 7, s22
    v_and_b32 v9, 3, v0
    v_lshl_add_u32 v6, v9, 3, v6
    v_cmp_eq_u32 vcc, 3, v9
    v_cndmask_b32 v9, 0, 1, vcc
    ''')
    addp(A, 22, sWS, PF_OFF)
    A.I(f'''
    global_store_dwordx2 v6, v[8:9], s[22:23] sc1
    s_waitcnt vmcnt(0)
    s_barrier
    v_mov_b32 v6, 0
    v_mov_b32 v7, 1
    global_store_dword v6, v7, {s(sDB,2)} offset:{DB_INIT} sc1
    ''')
    tl(A, 0, 3, 200)

def mem0_job(A):
    A.I(f's_load_dwordx2 s[34:35], s[0:1], {KA_MEM0}')
    addp(A, 22, sWS, MEMS_OFF)
    A.I(f's_mul_i32 s36, {s(sW)}, 112\n s_waitcnt lgkmcnt(0)')
    for k in range(2):
        A.I(f'''
        v_min_u32 v6, {63 if k == 0 else 47}, v0
        v_add3_u32 v6, v6, s36, {64*k}
        v_and_b32 v7, 7, v6
        v_mul_u32_u24 v7, 896, v7
        v_lshrrev_b32 v10, 5, v6
        v_lshl_add_u32 v7, v10, 6, v7
        v_bfe_u32 v10, v6, 3, 1
        v_lshl_add_u32 v7, v10, 5, v7
        v_bfe_u32 v10, v6, 4, 1
        v_lshl_add_u32 v7, v10, 3, v7
        global_load_dwordx2 v[12:13], v7, s[34:35]
        global_load_dwordx2 v[14:15], v7, s[34:35] offset:16
        v_lshlrev_b32 v6, 4, v6
        s_waitcnt vmcnt(0)
        ''')
        for r in range(4): A.I(f'v_cmp_eq_u32 vcc, {SENT}, {v(12+r)}\n v_cndmask_b32 {v(12+r)}, {v(12+r)}, -1, vcc')
        A.I('global_store_dwordx4 v6, v[12:15], s[22:23] sc1')
```
